```python
import torch

def _softmax(x, axis=-1):
    return torch.softmax(x, dim=axis)

def _gelu(x):
    return torch.nn.functional.gelu(x, approximate='tanh')

def _silu(x):
    return torch.nn.functional.silu(x)

def _sigmoid(x):
    return torch.sigmoid(x)

def _layernorm(x, axis=-1, eps=1e-05):
    m = x.mean(dim=axis, keepdim=True)
    v = x.var(dim=axis, keepdim=True, unbiased=False)
    return (x - m) / torch.sqrt(v + eps)

def _scatter_add(tgt, idx, src, axis=0):
    return tgt.clone().index_add_(axis, idx, src)

def _segment_sum(src, seg, n):
    out = torch.zeros((n,) + src.shape[1:], dtype=src.dtype)
    return out.index_add_(0, seg, src)

def _pad(x, pw):
    flat = tuple((v for pair in reversed(pw) for v in pair))
    return torch.nn.functional.pad(x, flat)
kernel_name = 'interleave_layers__sliding_local_dilated__memory_aug_recurrent_mem_tr__prompt'

def setup_inputs():

    _w = lambda a: (lambda t: t.to(torch.bfloat16) if t.is_floating_point() else t)(torch.as_tensor(a))

    def _A_setup():
        B, S, D = (1, 2048, 576)
        return {'x': _w((lambda *s: torch.randn(*s, dtype=torch.bfloat16) * 0.05)(B, S, D)), 'wqkv': _w((lambda *s: torch.randn(*s, dtype=torch.bfloat16) * 0.05)(D, 3 * D)), 'wo': _w((lambda *s: torch.randn(*s, dtype=torch.bfloat16) * 0.05)(D, D))}
    _A_in = _A_setup()

    def _B_setup():
        B, S, Dm = (1, 2048, 576)
        H, Dh = (32, 128)
        M, seg = (8, 32)
        seg = min(seg, S)
        S = S // seg * seg
        return {'x': _w((lambda *s: torch.randn(*s, dtype=torch.bfloat16) * 0.05)(B, S, Dm)), 'mem0': _w((lambda *s: torch.randn(*s, dtype=torch.bfloat16) * 0.8)(B, M, Dm)), 'Wq': _w((lambda *s: torch.randn(*s, dtype=torch.bfloat16) * 1.6)(Dm, H, Dh) * Dm ** (-0.5)), 'Wk': _w((lambda *s: torch.randn(*s, dtype=torch.bfloat16) * 1.6)(Dm, H, Dh) * Dm ** (-0.5)), 'Wv': _w((lambda *s: torch.randn(*s, dtype=torch.bfloat16) * 0.8)(Dm, H, Dh) * Dm ** (-0.5)), 'Wo': _w((lambda *s: torch.randn(*s, dtype=torch.bfloat16) * 0.8)(H, Dh, Dm) * (H * Dh) ** (-0.5)), 'seg_len': seg}
    _B_in = _B_setup()
    return {'A_x': _A_in['x'], 'A_wqkv': _A_in['wqkv'], 'A_wo': _A_in['wo'], 'B_x': _B_in['x'], 'B_mem0': _B_in['mem0'], 'B_Wq': _B_in['Wq'], 'B_Wk': _B_in['Wk'], 'B_Wv': _B_in['Wv'], 'B_Wo': _B_in['Wo'], 'B_seg_len': _B_in['seg_len']}

def reference(A_x, A_wqkv, A_wo, B_x, B_mem0, B_Wq, B_Wk, B_Wv, B_Wo, B_seg_len):

    def _A_ref(x, wqkv, wo):
        B, S, D = x.shape
        H = 32
        Dh = D // H
        W, dil = (8, 2)
        qkv = (lambda x, *d: x.permute(*d))((x @ wqkv).reshape(B, S, 3, H, Dh), 2, 0, 3, 1, 4)
        q, k, v = (qkv[0], qkv[1], qkv[2])
        scale = Dh ** (-0.5)
        pos = torch.arange(S)
        off = torch.arange(W) * dil
        idx = pos[:, None] - off[None, :]
        mask = idx >= 0
        idx_c = torch.where(mask, idx, 0).reshape(-1)
        kg = k[:, :, idx_c, :].reshape(B, H, S, W, Dh)
        vg = v[:, :, idx_c, :].reshape(B, H, S, W, Dh)
        logits = torch.einsum('bhsd,bhswd->bhsw', q, kg) * scale
        logits = torch.where(mask[None, None, :, :], logits, -1000000000.0)
        attn = _softmax(logits, axis=-1)
        o = torch.einsum('bhsw,bhswd->bhsd', attn, vg)
        return (lambda x, *d: x.permute(*d))(o, 0, 2, 1, 3).reshape(B, S, D) @ wo

    def _B_ref(x, mem0, Wq, Wk, Wv, Wo, seg_len):
        B, S, Dm = x.shape
        H, Dh = (Wq.shape[1], Wq.shape[2])
        M = mem0.shape[1]
        scale = Dh ** (-0.5)
        n_seg = S // seg_len
        L = M + seg_len
        idx = torch.arange(L)
        mask = (idx[:, None] < M) | (idx[:, None] >= idx[None, :])
        mem = mem0
        outs = []
        for s in range(n_seg):
            xs = x[:, s * seg_len:(s + 1) * seg_len, :].clone()
            h = torch.concatenate([mem, xs], axis=1)
            q = torch.einsum('btd,dhe->bhte', h, Wq)
            k = torch.einsum('btd,dhe->bhte', h, Wk)
            v = torch.einsum('btd,dhe->bhte', h, Wv)
            scores = torch.einsum('bhqe,bhke->bhqk', q, k) * scale
            scores = torch.where(mask[None, None], scores, -1000000000.0)
            p = _softmax(scores, axis=-1)
            o = torch.einsum('bhqk,bhke->bhqe', p, v)
            o = torch.einsum('bhte,hed->btd', o, Wo)
            mem = o[:, :M, :].clone()
            outs.append(o[:, M:, :])
        return torch.concatenate(outs, axis=1)
    x = A_x
    x = x + _A_ref(_layernorm(x, axis=-1), A_wqkv, A_wo)
    x = x + _B_ref(_layernorm(x, axis=-1), B_mem0, B_Wq, B_Wk, B_Wv, B_Wo, B_seg_len)
    x = x + _A_ref(_layernorm(x, axis=-1), A_wqkv, A_wo)
    x = x + _B_ref(_layernorm(x, axis=-1), B_mem0, B_Wq, B_Wk, B_Wv, B_Wo, B_seg_len)
    return x
```

```python
import re

V0, A0 = 1000, 2000
SPECIAL = {"vcc": (106, 2), "vcc_lo": (106, 1), "vcc_hi": (107, 1), "exec": (126, 2), "exec_lo": (126, 1),
           "exec_hi": (127, 1), "m0": (124, 1)}
_reg_re = re.compile(r"^([vas])(?:(\d+)|\[(\d+):(\d+)\])$")


def regs_of(tok):
    tok = tok.strip()
    if tok.startswith("-"):
        tok = tok[1:]
    if tok.startswith("abs(") and tok.endswith(")"):
        tok = tok[4:-1]
    if tok.startswith("|") and tok.endswith("|"):
        tok = tok[1:-1]
    if tok in SPECIAL:
        b, n = SPECIAL[tok]
        return list(range(b, b + n))
    m = _reg_re.match(tok)
    if not m:
        return []
    base = {"v": V0, "a": A0, "s": 0}[m.group(1)]
    if m.group(2) is not None:
        lo = hi = int(m.group(2))
    else:
        lo, hi = int(m.group(3)), int(m.group(4))
    return list(range(base + lo, base + hi + 1))


TRANS = ("v_exp_", "v_log_", "v_rcp_", "v_rsq_", "v_sqrt_", "v_sin_", "v_cos_")


def passes_of(mn):
    if "32x32x16" in mn or "32x32x8" in mn or "32x32x32" in mn:
        return 8
    if "16x16x4_f32" in mn:
        return 8
    return 4


class Inst:
    __slots__ = ("text", "mn", "kind", "rd", "wr", "srcC", "passes", "slots", "storedata", "dpp", "smask")

    def __init__(self, text):
        self.text = text
        body = text.split(";")[0].strip()
        parts = body.split(None, 1)
        mn = parts[0]
        self.mn = mn
        ops = []
        mods = ""
        if len(parts) > 1:
            raw = [o.strip() for o in parts[1].split(",")]
            for i, o in enumerate(raw):
                sp = o.split()
                ops.append(sp[0] if sp else "")
                if len(sp) > 1:
                    mods += " " + " ".join(sp[1:])
        self.rd, self.wr, self.srcC = [], [], []
        self.passes = 0
        self.slots = 1
        self.storedata = []
        self.dpp = ("_dpp" in mn) or ("row_" in mods) or ("quad_perm" in mods)
        R = [regs_of(o) for o in ops]
        if mn.startswith("v_smfmac"):
            self.kind = "mfma"
            self.passes = passes_of(mn)
            self.wr = R[0]
            self.srcC = R[0]
            self.rd = R[1] + R[2] + R[3]
        elif mn.startswith("v_mfma"):
            self.kind = "mfma"
            self.passes = passes_of(mn)
            self.wr = R[0]
            self.srcC = R[3]
            self.rd = R[1] + R[2]
        elif mn.startswith("v_"):
            self.kind = "valu"
            if mn.startswith("v_nop"):
                pass
            elif mn.startswith("v_permlane") and "swap" in mn:
                self.wr = R[0] + R[1]
                self.rd = R[0] + R[1]
            elif "_co_" in mn:
                self.wr = R[0] + R[1]
                self.rd = sum(R[2:], [])
            else:
                self.wr = R[0]
                self.rd = sum(R[1:], [])
                if mn.startswith(("v_fmac", "v_mac", "v_dot2c", "v_pk_fmac", "v_writelane")):
                    self.rd = self.rd + R[0]
                if self.dpp:
                    self.rd = self.rd + R[0]
                if mn.startswith("v_cndmask") and len(ops) == 3:
                    self.rd = self.rd + [106, 107]
        elif mn.startswith("ds_"):
            self.kind = "ds"
            if mn.startswith(("ds_read", "ds_bpermute", "ds_permute", "ds_swizzle")):
                self.wr = R[0]
                self.rd = sum(R[1:], [])
                if "d16" in mn:
                    self.rd = self.rd + R[0]
            else:
                self.rd = sum(R, [])
        elif mn.startswith(("global_", "buffer_")):
            self.kind = "vmem"
            lds = ("_lds_" in mn) or (" lds" in mods)
            if mn.startswith(("buffer_wbl2", "buffer_inv")):
                pass
            elif lds:
                self.rd = sum(R, []) + [124]
            elif "load" in mn:
                self.wr = R[0]
                self.rd = sum(R[1:], [])
                if "d16" in mn:
                    self.rd = self.rd + R[0]
            elif "atomic" in mn and " sc0" in mods:
                self.wr = R[0]
                self.rd = sum(R[1:], []) if mn.startswith("global_") else sum(R, [])
            else:
                self.rd = sum(R, [])
                if "x4" in mn or "x3" in mn:
                    self.storedata = R[1] if mn.startswith("global_") else R[0]
        elif mn.startswith(("s_load", "s_memtime", "s_memrealtime", "s_buffer_load", "s_atomic")):
            self.kind = "smem"
            self.wr = R[0]
            self.rd = sum(R[1:], [])
        elif mn.startswith("s_"):
            self.kind = "salu"
            if mn == "s_nop":
                self.slots = int(ops[0], 0) + 1
            elif mn.startswith(("s_cmp", "s_cbranch", "s_branch", "s_waitcnt", "s_barrier", "s_endpgm", "s_sleep",
                                "s_setprio", "s_bitcmp", "s_setpc")):
                self.rd = sum(R, [])
            else:
                self.wr = R[0]
                self.rd = sum(R[1:], [])
                if "saveexec" in mn:
                    self.wr = self.wr + [126, 127]
        else:
            raise ValueError("unknown instruction: " + text)


def need(prev, cur):
    n = 0
    pw = set(prev.wr)
    if prev.kind == "valu":
        vw = {r for r in pw if r >= V0}
        sw = {r for r in pw if r < V0}
        if vw:
            if cur.kind == "mfma" and vw & set(cur.rd + cur.srcC):
                n = max(n, 2)
            if cur.kind == "valu":
                if vw & set(cur.rd):
                    if cur.mn.startswith("v_permlane") or cur.dpp:
                        n = max(n, 2)
                    if cur.mn.startswith(("v_readlane", "v_readfirstlane")):
                        n = max(n, 1)
                    if prev.mn.startswith(TRANS) and not cur.mn.startswith(TRANS):
                        n = max(n, 1)
                    if prev.mn.startswith(TRANS):
                        n = max(n, 1)
        if sw:
            if cur.kind == "valu" and sw & set(cur.rd):
                n = max(n, 4 if cur.mn.startswith(("v_readlane", "v_writelane")) else 2)
            if cur.kind == "vmem" and sw & set(cur.rd):
                n = max(n, 5)
            if cur.kind in ("salu", "smem") and sw & set(cur.rd):
                n = max(n, 1)
            if cur.mn.startswith("s_cbranch_vcc") and sw & {106, 107}:
                n = max(n, 1)
    elif prev.kind == "mfma":
        p = prev.passes
        big = {2: 5, 4: 8, 8: 12, 16: 20}[p]
        if cur.kind == "mfma":
            if pw & set(cur.rd):
                n = max(n, big)
            if pw & set(cur.srcC):
                if not (cur.srcC == prev.wr and cur.passes == prev.passes and p >= 4):
                    n = max(n, {2: 4, 4: 6, 8: 10, 16: 18}[p])
            elif pw & set(cur.wr):
                n = max(n, {2: 4, 4: 6, 8: 10, 16: 18}[p])
        elif cur.kind in ("valu", "ds", "vmem"):
            if pw & set(cur.rd + cur.wr):
                n = max(n, big)
        if cur.kind == "valu" and set(prev.srcC) & set(cur.wr):
            n = max(n, {2: 1, 4: 3, 8: 7, 16: 15}[p])
    elif prev.kind == "vmem":
        if prev.storedata and set(prev.storedata) & set(cur.wr):
            n = max(n, 2 if cur.kind == "valu" else 1)
    elif prev.kind == "salu":
        if 124 in pw and cur.kind == "vmem" and 124 in cur.rd:
            n = max(n, 1)
    return n


class Asm:
    WIN = 24

    def __init__(self):
        self.out = []
        self.win = []
        self.vmq = []
        self.lgq = []
        self.branches = []
        self.auto = True
        self.uid = 0
        self.skip = ()

    def text(self, t):
        self.out.append(("t", t))

    def comment(self, t):
        self.out.append(("t", "    ; " + t))

    def newlabel(self, base="L"):
        self.uid += 1
        return f"{base}_{self.uid}"

    def label(self, name):
        self.out.append(("l", name))

    def _push(self, ins):
        self.out.append(("i", ins))
        self.win.append(ins)
        if len(self.win) > self.WIN:
            self.win.pop(0)

    @staticmethod
    def _needed(win, ins):
        dist = 0
        worst = 0
        for p in reversed(win):
            n = need(p, ins)
            if n - dist > worst:
                worst = n - dist
            dist += p.slots
            if dist > 20:
                break
        return worst

    def _auto_wait(self, ins):
        touched = set(ins.rd) | set(ins.wr) | set(ins.srcC)
        vm = lg = None
        for i, (d, _) in enumerate(self.vmq):
            if d & touched:
                vm = len(self.vmq) - 1 - i
        for i, (d, _) in enumerate(self.lgq):
            if d & touched:
                lg = len(self.lgq) - 1 - i
        if vm is not None or lg is not None:
            self.wait(vm=vm, lg=lg)

    def wait(self, vm=None, lg=None):
        s = []
        if vm is not None and vm < len(self.vmq):
            k = min(vm, 63)
            s.append(f"vmcnt({k})")
            self.vmq = self.vmq[len(self.vmq) - k:] if k else []
        if lg is not None and lg < len(self.lgq):
            k = min(lg, 15)
            s.append(f"lgkmcnt({k})")
            self.lgq = self.lgq[len(self.lgq) - k:] if k else []
        if s:
            self._push(Inst("s_waitcnt " + " ".join(s)))

    def force_wait(self, vm=None, lg=None):
        s = []
        if vm is not None:
            s.append(f"vmcnt({vm})")
            self.vmq = self.vmq[len(self.vmq) - vm:] if vm and vm < len(self.vmq) else ([] if not vm else self.vmq)
        if lg is not None:
            s.append(f"lgkmcnt({lg})")
            self.lgq = self.lgq[len(self.lgq) - lg:] if lg and lg < len(self.lgq) else ([] if not lg else self.lgq)
        self._push(Inst("s_waitcnt " + " ".join(s)))

    def wait_tag(self, tag):
        vm = None
        for i, (_, t) in enumerate(self.vmq):
            if t == tag:
                vm = len(self.vmq) - 1 - i
        if vm is not None:
            self.wait(vm=vm)

    def I(self, text, tag=None):
        if self.skip and text.startswith(self.skip):
            return None
        ins = Inst(text)
        if ins.kind == "smem":
            pass
        if self.auto:
            self._auto_wait(ins)
        n = self._needed(self.win, ins)
        while n > 0:
            k = min(n, 16)
            self._push(Inst(f"s_nop {k - 1}"))
            n -= k
        self._push(ins)
        if ins.kind == "vmem" and not ins.mn.startswith(("buffer_wbl2", "buffer_inv")):
            self.vmq.append((frozenset(ins.wr), tag))
        elif ins.kind == "ds":
            self.lgq.append((frozenset(ins.wr), tag))
        if ins.mn.startswith(("s_cbranch", "s_branch")):
            tgt = text.split(";")[0].split()[1]
            self.branches.append((tgt, list(self.win)))
        return ins

    def __call__(self, text, tag=None):
        for line in text.strip().split("\n"):
            line = line.strip()
            if not line or line.startswith(";"):
                continue
            if line.endswith(":"):
                self.label(line[:-1])
            else:
                self.I(line, tag)

    def nop(self, n):
        while n > 0:
            k = min(n, 16)
            self._push(Inst(f"s_nop {k - 1}"))
            n -= k

    def barrier(self, lg=0):
        if lg is not None:
            self.wait(lg=lg)
        self.I("s_barrier")

    def snap(self):
        return (list(self.vmq), list(self.lgq))

    def restore(self, s):
        self.vmq, self.lgq = list(s[0]), list(s[1])

    def check_same(self, s, what=""):
        def norm(q):
            return [(tuple(sorted(d)), t) for d, t in q]
        for name, a, b in (("vm", s[0], self.vmq), ("lg", s[1], self.lgq)):
            a, b = norm(a), norm(b)
            if len(b) > len(a) or a[len(a) - len(b):] != b:
                raise RuntimeError(f"queue mismatch {what} {name}:\n entry={a}\n back={b}")

    def reset_window(self):
        self.win = []
        self.vmq = []
        self.lgq = []

    def check_branches(self):
        pos = {}
        for i, (k, p) in enumerate(self.out):
            if k == "l":
                pos[p] = i
        errs = []
        for tgt, win in self.branches:
            if tgt not in pos:
                raise RuntimeError("unknown label " + tgt)
            w = list(win)
            dist = 0
            i = pos[tgt]
            while i < len(self.out) and dist < 20:
                k, p = self.out[i]
                i += 1
                if k != "i":
                    continue
                if self._needed(w, p) > 0:
                    errs.append(f"hazard across branch to {tgt}: {p.text}")
                w.append(p)
                dist += p.slots
                if p.mn in ("s_branch", "s_endpgm", "s_setpc_b64"):
                    break
        if errs:
            raise RuntimeError("\n".join(errs))

    def render(self):
        self.check_branches()
        lines = []
        for k, p in self.out:
            if k == "i":
                lines.append("    " + p.text)
            elif k == "l":
                lines.append(p + ":")
            else:
                lines.append(p)
        return "\n".join(lines) + "\n"


def interleave(main, fill, every=1, per=1, start=0):
    out = []
    fi = 0
    for i, m in enumerate(main):
        out.append(m)
        if i >= start and (i - start) % every == every - 1:
            for _ in range(per):
                if fi < len(fill):
                    out.append(fill[fi])
                    fi += 1
    out.extend(fill[fi:])
    return out


def vr(b, n=1):
    return f"v{b}" if n == 1 else f"v[{b}:{b + n - 1}]"


def ar(b, n=1):
    return f"a{b}" if n == 1 else f"a[{b}:{b + n - 1}]"


def sr(b, n=1):
    return f"s{b}" if n == 1 else f"s[{b}:{b + n - 1}]"
```

```python
from asmlib import *

KNAME = "interleave_layers__sliding_local_dilated__memory_aug_recurrent_mem_tr__prompt"
NSEG = 64
KA_X, KA_WQKV, KA_WO, KA_BX, KA_MEM0, KA_WQ, KA_WK, KA_WV, KA_BWO, KA_SEG, KA_OUT, KA_DBG, KA_WS = [8 * i for i in range(13)]

WS_BYTES = 268435456
WS_FLAGS = 8 * 0x5800
FL_STRIDE = 0x5800
FL_XA, FL_OA, FL_XB, FL_OF, FL_QKV = 0, 1536, 3584, 4224, 5376
WS_ZERO = 0x2F0000
FLAGS_BYTES = 0x2F8000
WS_DUMMY = 0x300000
WS_RING = 0x400000
RING_TEAM = 0x100000
PART_SLOT = 0x80000
import os
PART_H = int(os.environ.get("PARTH", "12288"))
MEMB_OFF = 0xF0000
MEMB_SLOT = 0x4000
WS_X = 0x600000
X_BYTES = 0x240000
X_SEG = 36864
WS_ST = WS_X + 4 * X_BYTES
ST_SEG = 12 * 32 * 16
ST_BYTES = NSEG * ST_SEG
WS_OA = WS_ST + 4 * ST_BYTES
WS_AW = WS_OA + 2 * X_BYTES
WS_KM = 0x1A00000
KM_UNIT = 4096
KM_D = 8
WS_QKV = WS_KM + 2 * NSEG * 32 * KM_UNIT
QKV_M = NSEG * 32 * 8192
WS_OF = WS_QKV + 6 * QKV_M
WS_END = WS_OF + 2 * QKV_M
assert WS_AW + 32 * 90 * 1024 <= WS_KM
assert WS_END <= WS_BYTES, WS_END

SPIN_MAX = int(os.environ.get("SPIN_MAX", "100000"))

S_KARG = 0
S_WG = 2
SRD_WS = 8
S_DBG = 12
S_WAVE = 14
S_ROLE = 15
S_SPIN = 16
S_TMP = 17
SRD_A = 20
SRD_B = 24
SRD_C = 28
S_FREE = 32


def srd(a, base, ka_off, nbytes):
    a(f"s_load_dwordx2 s[{base}:{base + 1}], s[0:1], {ka_off}")
    a(f"s_mov_b32 s{base + 2}, {nbytes}")
    a(f"s_mov_b32 s{base + 3}, 0x00020000")
    a.force_wait(lg=0)
    a(f"s_and_b32 s{base + 1}, s{base + 1}, 0xffff")


def spin_check(a, abort_label):
    a(f"s_add_u32 s{S_SPIN}, s{S_SPIN}, 1")
    a(f"s_cmp_gt_u32 s{S_SPIN}, {SPIN_MAX}")
    a(f"s_cbranch_scc1 {abort_label}")


TRACE = int(os.environ.get("TRACE", "0"))
WS_TRACE = WS_END


def trace_init(a):
    if TRACE:
        a(f"s_lshl_b32 s5, s3, 5")
        a(f"s_add_u32 s5, s5, s4")
        a(f"s_lshl_b32 s5, s5, 2")
        a(f"s_add_u32 s5, s5, s{S_WAVE}")
        a(f"s_lshl_b32 s5, s5, 10")
        a(f"s_add_u32 s5, s5, {WS_TRACE}")


def trace(a, v0, v1, light=False):
    if TRACE in (1, 3) or (TRACE in (2, 4, 5) and light):
        a("s_memrealtime s[6:7]")
        a.force_wait(lg=0)
        a(f"v_mov_b32 v{v0}, s6")
        a(f"v_mov_b32 v{v1}, 0")
        a("s_mov_b64 exec, 1")
        a(f"buffer_store_dword v{v0}, v{v1}, s[{SRD_WS}:{SRD_WS + 3}], s5 offen")
        a("s_mov_b64 exec, -1")
        a("s_add_u32 s5, s5, 4")


PROF = int(os.environ.get("PROF", "0"))


def prof_begin(a):
    if PROF:
        a("s_memtime s[88:89]")
        a.force_wait(lg=0)


def prof_end(a, k):
    if PROF:
        a("s_memtime s[86:87]")
        a.force_wait(lg=0)
        a("s_sub_u32 s86, s86, s88")
        a(f"s_add_u32 s{90 + k}, s{90 + k}, s86")


def prof_init(a):
    if PROF:
        for k in range(8):
            a(f"s_mov_b32 s{90 + k}, 0")


def prof_dump(a, v0, v1):
    if PROF:
        a(f"s_lshl_b32 s5, s3, 5")
        a(f"s_add_u32 s5, s5, s4")
        a(f"s_lshl_b32 s5, s5, 2")
        a(f"s_add_u32 s5, s5, s{S_WAVE}")
        a(f"s_lshl_b32 s5, s5, 5")
        a(f"s_add_u32 s5, s5, {WS_TRACE}")
        for k in range(8):
            a(f"v_writelane_b32 v{v0}, s{90 + k}, {k}")
        a(f"v_mbcnt_lo_u32_b32 v{v1}, -1, 0")
        a(f"v_lshlrev_b32 v{v1}, 2, v{v1}")
        a("s_mov_b64 exec, 0xff")
        a(f"buffer_store_dword v{v0}, v{v1}, s[{SRD_WS}:{SRD_WS + 3}], s5 offen")
        a("s_mov_b64 exec, -1")


def wait_units(a, lab):
    a.label(lab)
    a("s_cmp_eq_u32 s6, 0")
    a(f"s_cbranch_scc1 {lab}_d")
    a("s_sleep 127")
    a("s_sub_u32 s6, s6, 1")
    a(f"s_branch {lab}")
    a.label(lab + "_d")


DB_TICKET = 0
DB_HOMELESS = 32
DB_ABORT = 60
DB_POOL = 160
DB_POOLA = 40
DB_LOADED = 48
ORDER = int(os.environ.get('ORDER', '0'))
DB_TEAM = 192
N_POOL = 192
SRD_DBG = 4


def dbg_add(a, off, v0, v1):
    a(f"v_mov_b32 v{v0}, {off}" if isinstance(off, int) else f"v_mov_b32 v{v0}, {off}")
    a(f"v_mov_b32 v{v1}, 1")
    a("s_mov_b64 exec, 1")
    a(f"global_atomic_add v{v0}, v{v1}, s[{S_DBG}:{S_DBG + 1}]")
    a("s_mov_b64 exec, -1")


def dbg_wait(a, off, target, v0, v1, abort, name, slp=8):
    a(f"s_cmp_lg_u32 s{S_WAVE}, 0")
    a(f"s_cbranch_scc1 {name}_d")
    a(f"v_mov_b32 v{v0}, {off}")
    a(f"s_mov_b32 s{S_SPIN}, 0")
    a.label(name)
    a(f"global_load_dword v{v1}, v{v0}, s[{S_DBG}:{S_DBG + 1}] sc1")
    spin_check(a, abort)
    a(f"v_cmp_gt_u32 vcc, {target}, v{v1}")
    a(f"s_cbranch_vccz {name}_d")
    a(f"s_sleep {slp}")
    a(f"s_branch {name}")
    a.label(name + "_d")
    a("s_barrier")


def trace_at(a, sidx, v0, vz):
    if TRACE == 4:
        a("s_memrealtime s[6:7]")
        a.force_wait(lg=0)
        a(f"s_lshl_b32 s7, s{sidx}, 2")
        a(f"s_add_u32 s7, s7, s5")
        a(f"v_mov_b32 v{v0}, s6")
        a("s_mov_b64 exec, 1")
        a(f"buffer_store_dword v{v0}, v{vz}, s[{SRD_WS}:{SRD_WS + 3}], s7 offen offset:12")
        a("s_mov_b64 exec, -1")


def trace5(a, sseg, k, v0, vz):
    if TRACE == 5:
        a("s_memrealtime s[6:7]")
        a.force_wait(lg=0)
        a(f"s_and_b32 s7, s{sseg}, 31")
        a(f"s_lshl_b32 s7, s7, 4")
        a(f"s_add_u32 s7, s7, s5")
        a(f"v_mov_b32 v{v0}, s6")
        a("s_mov_b64 exec, 1")
        a(f"buffer_store_dword v{v0}, v{vz}, s[{SRD_WS}:{SRD_WS + 3}], s7 offen offset:{16 + 4 * k}")
        a.vmq.pop()
        a("s_mov_b64 exec, -1")


DBGT = int(os.environ.get("DBGT", "0"))


def stamp_max(a, word, v0, v1, cond=None):
    if DBGT:
        a("s_memrealtime s[6:7]")
        a.force_wait(lg=0)
        a("s_sub_u32 s6, s6, s5")
        if cond:
            a(f"s_cmp_eq_u32 s{cond[0]}, {cond[1]}")
            a("s_cselect_b32 s6, s6, 0")
        a(f"v_mov_b32 v{v0}, {word}" if isinstance(word, str) else f"v_mov_b32 v{v0}, {4 * word}")
        a(f"v_mov_b32 v{v1}, s6")
        a("s_mov_b64 exec, 1")
        a(f"global_atomic_umax v{v0}, v{v1}, s[{S_DBG}:{S_DBG + 1}]")
        a("s_mov_b64 exec, -1")


_MAPS = {0: {2: [("W", 24), ("P", 8)], 3: [("W", 12), ("P", 20)], 4: [("A", 16), ("O", 5), ("P", 11)],
             5: [("A", 16), ("O", 5), ("P", 11)], 6: [("T", 8), ("P", 23)], 7: [("T", 8), ("P", 23)]},
         1: {2: [("W", 12), ("P", 20)], 3: [("W", 12), ("P", 20)], 4: [("A", 16), ("O", 5), ("P", 11)],
             5: [("A", 16), ("O", 5), ("P", 11)], 6: [("T", 8), ("W", 12), ("P", 11)], 7: [("T", 8), ("P", 23)]}}
ROLE_MAP = _MAPS[int(os.environ.get("RMAP", "1"))]


def role_slots(ch):
    out = []
    for cls, lst in ROLE_MAP.items():
        t0 = 0
        for c, n in lst:
            if c == ch:
                out += [(cls, t0 + i) for i in range(n)]
            t0 += n
    return out
```

```python
from common import *
import struct, os

WS = f"s[{SRD_WS}:{SRD_WS + 3}]"
L0_AP = 16
L0_T = 16
SLP = int(os.environ.get("SLP", "4"))
AQLDW = int(os.environ.get("AQLDW", "1"))
EARLYF = int(os.environ.get("EARLYF", "0"))


def f32bits(x):
    return struct.unpack("<I", struct.pack("<f", x))[0]


sN0, sN1 = S_FREE, S_FREE + 1
sCL, sCS = S_FREE + 2, S_FREE + 3
sNL, sNS = S_FREE + 4, S_FREE + 5
sLEFT = S_FREE + 6
sPF = S_FREE + 7
sBUF = S_FREE + 8
sNX = S_FREE + 9
sNFL = S_FREE + 10
sPEND = S_FREE + 11
sSELX, sSELY = S_FREE + 12, S_FREE + 13
sO1, sO2, sO3 = S_FREE + 14, S_FREE + 15, S_FREE + 16
sK1, sK2, sK3, sK4 = S_FREE + 17, S_FREE + 18, S_FREE + 19, S_FREE + 20
sE = S_FREE + 22
sNO = S_FREE + 24
sCO = S_FREE + 25
sWQ = S_FREE + 26
sOB = S_FREE + 27
sF0, sF1, sDEC = S_FREE + 28, S_FREE + 29, S_FREE + 30
sLAYS = S_FREE + 31
sSB, sW1K = S_FREE + 34, S_FREE + 35
sX0, sX1 = S_FREE + 32, S_FREE + 33

vL16, vFLA, vFLV, vONE, vZERO, vT0, vT1, vC, vG = range(9)
XBUF = X_SEG


def seq(a, *items):
    for it in items:
        if isinstance(it, (list, tuple)):
            seq(a, *it)
        elif callable(it):
            it()
        elif it:
            a(it)


def MF(acc, A, B, C=None):
    return f"v_mfma_f32_16x16x32_bf16 {vr(acc, 4)}, {A}, {B}, {vr(acc, 4) if C is None else C}"


def lane_setup(a, nflags):
    a(f"""
    v_and_b32 v{vT0}, 63, v0
    v_lshlrev_b32 v{vL16}, 4, v{vT0}
    v_and_b32 v{vC}, 15, v{vT0}
    v_lshrrev_b32 v{vG}, 4, v{vT0}
    v_min_u32 v{vFLA}, {nflags - 1}, v{vT0}
    v_lshrrev_b32 v{vT1}, 2, v{vFLA}
    v_and_b32 v{vFLA}, 3, v{vFLA}
    v_lshlrev_b32 v{vFLA}, 2, v{vFLA}
    v_lshl_add_u32 v{vFLA}, v{vT1}, 7, v{vFLA}
    v_mov_b32 v{vONE}, 1
    v_mov_b32 v{vZERO}, 0
    s_mov_b32 s{sSELX}, 0x05040100
    s_mov_b32 s{sSELY}, 0x07060302
    """)


def pick_next(a, step, l0):
    a(f"""
    s_add_u32 s{S_TMP}, s{sN1}, {l0}
    s_min_u32 s{S_TMP}, s{S_TMP}, {NSEG}
    s_cmp_lt_u32 s{sN0}, s{S_TMP}
    s_cselect_b32 s{sNL}, 0, 1
    s_cselect_b32 s{sNS}, s{sN0}, s{sN1}
    s_cselect_b32 s{S_TMP}, {step}, 0
    s_cselect_b32 s{S_TMP + 1}, 0, {step}
    s_add_u32 s{sN0}, s{sN0}, s{S_TMP}
    s_add_u32 s{sN1}, s{sN1}, s{S_TMP + 1}
    s_lshl_b32 s{sNO}, s{sNL}, 6
    s_add_u32 s{sNO}, s{sNO}, s{sNS}
    """)


def flag_out(a, sreg):
    a("s_mov_b64 exec, 1")
    a(f"buffer_store_dword v{vONE}, v{vZERO}, {WS}, s{sreg} offen sc1")
    a("s_mov_b64 exec, -1")


def flag_block(a, name, abort):
    L = a.newlabel(name)
    a(f"s_mov_b32 s{S_SPIN}, 0")
    a.label(L)
    a(f"buffer_load_dword v{vFLV}, v{vFLA}, {WS}, s{sNFL} offen sc1")
    spin_check(a, abort)
    a(f"v_cmp_eq_u32 vcc, 0, v{vFLV}")
    Ld = a.newlabel(name + "d")
    a(f"s_cbranch_vccz {Ld}")
    a(f"s_sleep {SLP}")
    a(f"s_branch {L}")
    a.label(Ld)


PFS = f"s[{SRD_C}:{SRD_C + 3}]"


STB3 = 0x1C000
sCSB = S_FREE + 39
P3 = int(os.environ.get('P3', '0'))
MBOX = 2 * XBUF + 1024
vFL1 = 15


def cand_addr(a, flag_off):
    a(f"""
    s_mul_i32 s{sF0}, s{sN0}, {FL_STRIDE}
    s_add_u32 s{sF0}, s{sF0}, {WS_FLAGS + flag_off}
    s_cmp_lt_u32 s{sN0}, {NSEG}
    s_cselect_b32 s{sF0}, s{sF0}, {WS_ZERO}
    s_mul_i32 s{sF1}, s{sN1}, {FL_STRIDE}
    s_add_u32 s{sF1}, s{sF1}, {WS_FLAGS + flag_off + NSEG * FL_STRIDE}
    s_cmp_lt_u32 s{sN1}, {NSEG}
    s_cselect_b32 s{sF1}, s{sF1}, {WS_ZERO}
    """)


def sample2(a):
    a(f"buffer_load_dword v{vFLV}, v{vFLA}, {WS}, s{sF0} offen sc1")
    a(f"buffer_load_dword v{vFL1}, v{vFLA}, {WS}, s{sF1} offen sc1")


def decide(a, prio=1):
    a(f"v_cmp_eq_u32 vcc, 0, v{vFLV}")
    a(f"v_cmp_eq_u32 s[{sE}:{sE + 1}], 0, v{vFL1}")
    m = ["vcc", f"s[{sE}:{sE + 1}]"]
    a(f"s_cmp_eq_u64 {m[1 - prio]}, 0")
    a(f"s_cselect_b32 s{sDEC}, {2 - prio}, 0")
    a(f"s_cmp_eq_u64 {m[prio]}, 0")
    a(f"s_cselect_b32 s{sDEC}, {1 + prio}, s{sDEC}")


def take(dec, step, step1=None):
    return [f"s_cmp_eq_u32 s{dec}, 2",
            f"s_cselect_b32 s{sNL}, 1, 0",
            f"s_cselect_b32 s{sNS}, s{sN1}, s{sN0}",
            f"s_cselect_b32 s{S_TMP}, {step if step1 is None else step1}, 0",
            f"s_add_u32 s{sN1}, s{sN1}, s{S_TMP}",
            f"s_cmp_eq_u32 s{dec}, 1",
            f"s_cselect_b32 s{S_TMP}, {step}, 0",
            f"s_add_u32 s{sN0}, s{sN0}, s{S_TMP}",
            f"s_lshl_b32 s{sNO}, s{sNL}, 6",
            f"s_add_u32 s{sNO}, s{sNO}, s{sNS}"]


def poll2(a, name, abort, flag_off, prio=1):
    cand_addr(a, flag_off)
    L = a.newlabel(name)
    a(f"s_mov_b32 s{S_SPIN}, 0")
    a.label(L)
    sample2(a)
    spin_check(a, abort)
    decide(a, prio)
    a(f"s_cmp_lg_u32 s{sDEC}, 0")
    a(f"s_cbranch_scc1 {L}d")
    a(f"s_sleep {SLP}")
    a(f"s_branch {L}")
    a.label(L + "d")


def staged_loop(a, name, abort, done, xbase, xlayer, flag_off, extra_loads, compute, out_flag, nst, vMB, laysel=None, waited=False, epi=None, early=None, vsrc=None, pub2=None):
    crit = [f"s_cmp_eq_u32 s{sDEC}, 2", f"s_cselect_b32 s{sNX}, s{sX1}, s{sX0}",
            f"s_cmp_lg_u32 s{sDEC}, 0", f"s_cselect_b32 s{SRD_C + 2}, {WS_BYTES}, 0"]
    adv_x = [f"s_cmp_eq_u32 s{sDEC}, 2", f"s_cselect_b32 s{S_TMP}, {X_SEG}, 0", f"s_add_u32 s{sX1}, s{sX1}, s{S_TMP}",
             f"s_cmp_eq_u32 s{sDEC}, 1", f"s_cselect_b32 s{S_TMP}, {X_SEG}, 0", f"s_add_u32 s{sX0}, s{sX0}, s{S_TMP}"]

    def dma_ops(srd_):
        ops = []
        for i in range(9):
            pre = []
            if i % 4 == 0:
                pre = [f"s_add_u32 m0, s{sOB}, {i * 1024}", f"s_add_u32 s{sO2}, s{sNX}, {i * 1024}"]
            ops.append(pre + [f"buffer_load_dwordx4 v{vL16 if vsrc is None else vsrc}, {srd_}, s{sO2} offen offset:{(i % 4) * 1024} lds"])
        return ops

    def post():
        a(f"v_mov_b32 v{vT0}, s{sDEC}")
        a(f"ds_write_b32 v{vMB}, v{vT0}")
        a.wait(lg=0)

    def publish():
        a(f"s_cmp_lg_u32 s{sPEND}, 0")
        a("s_cselect_b64 exec, 1, 0")
        if pub2 is None:
            a(f"buffer_store_dword v{vONE}, v{vZERO}, {WS}, s{sPEND} offen sc1")
        else:
            a(f"buffer_store_dwordx2 {vr(pub2, 2)}, v{vZERO}, {WS}, s{sPEND} offen sc1")
        a("s_mov_b64 exec, -1")
        a(f"s_mov_b32 s{sPEND}, 0")

    def cur_from_next():
        a(f"s_mov_b32 s{sCL}, s{sNL}")
        a(f"s_mov_b32 s{sCS}, s{sNS}")
        a(f"s_mov_b32 s{sCO}, s{sNO}")

    def roll():
        Ls = a.newlabel(name + "_ns")
        a(f"s_cmp_lg_u32 s{S_WAVE}, 0")
        a(f"s_cbranch_scc1 {Ls}")
        sn = a.snap()
        cand_addr(a, flag_off)
        sample2(a)
        a.restore(sn)
        a.label(Ls)

    a(f"""
    s_mov_b32 s{sN0}, 0
    s_mov_b32 s{sN1}, 0
    s_mov_b32 s{sLEFT}, {2 * NSEG}
    s_mul_i32 s{sWQ}, s{S_WAVE}, 9216
    s_mov_b32 s{sBUF}, {XBUF}
    s_mov_b32 s{sOB}, s{sWQ}
    s_mov_b32 s{sPEND}, 0
    s_mov_b32 s{SRD_C}, s{SRD_WS}
    s_mov_b32 s{SRD_C + 1}, s{SRD_WS + 1}
    s_mov_b32 s{SRD_C + 2}, 0
    s_mov_b32 s{SRD_C + 3}, 0x00020000
    v_mov_b32 v{vMB}, {MBOX}
    s_add_u32 s{sX0}, s{sWQ}, {xbase}
    s_add_u32 s{sX1}, s{sWQ}, {xbase + xlayer}
    """)
    if laysel is not None:
        a(f"s_cmp_eq_u32 s{laysel}, 0")
        a(f"s_cselect_b32 s{sN0}, 0, {NSEG}")
        a(f"s_cselect_b32 s{sN1}, {NSEG}, 0")
        a(f"s_mov_b32 s{sLEFT}, {NSEG}")
    a(f"ds_write2_b32 v{vMB}, v{vZERO}, v{vZERO} offset0:0 offset1:1")
    a.wait(lg=0)
    if not waited:
        dbg_wait(a, DB_POOL, N_POOL, vT0, vT1, abort, name + "_ini")
    trace(a, vT0, vT1)
    prof_init(a)
    a(f"s_branch {name}_idle0")
    head = name + "_item"
    a.label(head)
    a.restore(([], []))
    prof_begin(a)
    a.force_wait(vm=nst)
    if EARLYF and (laysel is not None or EARLYF > 1):
        a(f"s_cmp_lt_u32 s{sPEND}, {NSEG * FL_STRIDE}")
        a(f"s_cbranch_scc1 {name}_defer")
        a.force_wait(vm=0)
        publish()
    a.label(name + "_defer")
    prof_end(a, 0)
    a(f"s_cmp_lg_u32 s{S_WAVE}, 0")
    a(f"s_cbranch_scc1 {name}_nw0")
    decide(a)
    post()
    a.label(name + "_nw0")
    prof_begin(a)
    a("s_barrier")
    prof_end(a, 1)
    a(f"ds_read_b32 v{vT1}, v{vMB}")
    a(f"""
    v_xor_b32 v{vMB}, 4, v{vMB}
    s_xor_b32 s{sBUF}, s{sBUF}, {XBUF}
    s_xor_b32 s{sOB}, s{sOB}, {XBUF}
    s_xor_b32 s{sSB}, s{sSB}, 0x2000
    s_xor_b32 s{sCSB}, s{sCSB}, 0x2000
    s_sub_u32 s{sLEFT}, s{sLEFT}, 1
    """)
    if epi:
        early()
        a(f"s_cmp_eq_u32 s{sPEND}, 0")
        a(f"s_cbranch_scc1 {name}_noepi")
        lg = list(a.lgq)
        epi()
        assert a.lgq == lg or not a.lgq
        a.lgq = lg
        a.label(name + "_noepi")
    a.vmq = [(frozenset(), "st")] * nst
    ex = extra_loads(PFS)
    tk = take(sDEC, 1)
    pre = ([f"v_readfirstlane_b32 s{sDEC}, v{vT1}"] + crit, [tk[:5], tk[5:], ex[0][:-1], adv_x[:3], adv_x[3:]] if os.environ.get('BSPLIT', '1') == '1' else [tk, ex[0][:-1], adv_x, [], []])
    ex[0] = ex[0][-1:]

    def mid():
        prof_begin(a) if PROF == 1 else None
        a.wait_tag("st")
        prof_end(a, 2) if PROF == 1 else None
        publish()

    compute(pre, dma_ops(PFS), ex, mid, roll)
    out_flag()
    trace_at(a, sCO, vT0, vZERO)
    if name.startswith("Lp"):
        stamp_max(a, 9, vT0, vT1, (sCO, 1)) if DBGT == 2 else None
    cur_from_next()
    if TRACE == 1:
        a.force_wait(vm=0)
        trace(a, vT0, vT1)
        a.force_wait(vm=0)
    a(f"s_min_u32 s{sDEC}, s{sDEC}, s{sLEFT}")
    a(f"s_cmp_lg_u32 s{sDEC}, 0")
    a(f"s_cbranch_scc1 {head}")
    roll()
    a.force_wait(vm=0)
    publish()
    a(f"s_cmp_eq_u32 s{sLEFT}, 0")
    a(f"s_cbranch_scc1 {name}_end")
    a(f"s_cmp_lg_u32 s{S_WAVE}, 0")
    a(f"s_cbranch_scc1 {name}_nw1")
    decide(a)
    a(f"s_cmp_lg_u32 s{sDEC}, 0")
    a(f"s_cbranch_scc1 {name}_got")
    a.label(name + "_idle0")
    a.restore(([], []))
    a(f"s_cmp_lg_u32 s{S_WAVE}, 0")
    a(f"s_cbranch_scc1 {name}_nw1")
    poll2(a, name + "_pl", abort, flag_off)
    a.label(name + "_got")
    post()
    a.label(name + "_nw1")
    a("s_barrier")
    a(f"ds_read_b32 v{vT1}, v{vMB}")
    a(f"v_xor_b32 v{vMB}, 4, v{vMB}")
    a(f"v_readfirstlane_b32 s{sDEC}, v{vT1}")
    a(f"s_cmp_eq_u32 s{sDEC}, 0")
    a(f"s_cbranch_scc1 {abort}")
    seq(a, crit, take(sDEC, 1), adv_x, dma_ops(WS), extra_loads(WS))
    cur_from_next()
    roll()
    a.force_wait(vm=0)
    if PROF:
        a("s_add_u32 s96, s96, 1000")
    a(f"s_branch {head}")
    a.label(name + "_end")
    prof_dump(a, vT0, vT1)
    a(f"s_branch {done}")


WB = 112


def MF32(acc, A, B, C=None):
    return f"v_mfma_f32_32x32x16_bf16 {vr(acc, 16)}, {A}, {B}, {vr(acc, 16) if C is None else C}"


def load_cols(a, srdb, vad, vsel, items, nt=os.environ.get("NT_P", "")):
    D = 28
    n = len(items)
    for i in range(n + D):
        if i < n:
            r = 16 + 2 * (i % 48)
            a(f"s_add_u32 s{S_TMP}, s{sK1}, {items[i][0]}")
            a(f"buffer_load_dword v{r}, v{vad}, s[{srdb}:{srdb + 3}], s{S_TMP} offen {nt}")
            a(f"buffer_load_dword v{r + 1}, v{vad + 1}, s[{srdb}:{srdb + 3}], s{S_TMP} offen {nt}")
        j = i - D
        if j >= 0:
            r = 16 + 2 * (j % 48)
            a(f"v_perm_b32 v{items[j][1]}, v{r + 1}, v{r}, v{vsel}")


def feat_of_row(a, dst, row, t1):
    a(f"""
    v_and_b32 v{dst}, 19, v{row}
    v_bfe_u32 v{t1}, v{row}, 2, 1
    v_lshl_add_u32 v{dst}, v{t1}, 3, v{dst}
    v_bfe_u32 v{t1}, v{row}, 3, 1
    v_lshl_add_u32 v{dst}, v{t1}, 2, v{dst}
    """)


def sel_of_parity(a, vsel, par, t1):
    a(f"""
    v_mov_b32 v{vsel}, s{sSELX}
    v_mov_b32 v{t1}, s{sSELY}
    v_cmp_eq_u32 vcc, 1, v{par}
    v_cndmask_b32 v{vsel}, v{vsel}, v{t1}, vcc
    """)


def gemm32(a, acc, swap, vXA, ring, pre, dma, extra, mid, roll, init=None, fill=None, issued=False):
    nr = len(ring)

    def rd(t):
        return f"ds_read_b128 {vr(ring[t % nr], 4)}, v{vXA} offset:{t * 1024}"
    if PROF == 2:
        a("s_memtime s[84:85]")
    if not issued:
        for t in range(nr - 1):
            a(rd(t))
    fill = list(fill or [])
    crit, blocks = pre
    blocks = list(blocks)
    vm = list(dma) + list(extra)
    for t in range(36):
        x, w = vr(ring[t % nr], 4), vr(WB + 4 * t, 4)
        a(MF32(acc, x if swap else w, w if swap else x, "0" if (t == 0 and not init) else None))
        if t + nr - 1 < 36:
            a(rd(t + nr - 1))
        k = 3 if t < 16 else 4
        if t == 1:
            seq(a, crit); k = 0
        elif t >= 2 and t % 2 == 1 and blocks:
            k = min(3, 5 - len(blocks[0]))
            seq(a, blocks.pop(0))
        elif t >= 2 and vm and (len(vm) > len(extra) or len(blocks) <= 2):
            assert len(vm) > len(extra) or len(blocks) <= 2
            seq(a, vm.pop(0)); k -= 2
        while fill and k > 0:
            seq(a, fill.pop(0)); k -= 1
        if t == 10:
            mid()
        if t == 16:
            roll()
    assert not vm and not fill and not blocks
    if PROF == 2:
        a("s_memtime s[86:87]")
        a.force_wait(lg=0)
        a("s_sub_u32 s86, s86, s84")
        a("s_add_u32 s97, s97, s86")


VMDENSE = int(os.environ.get("VMDENSE", "1"))
STB = 0x14000


def stats_dma(base, srd_):
    pre = [f"s_mul_i32 s{sO3}, s{sNL}, {2 * ST_BYTES}", f"s_mul_i32 s{S_TMP + 1}, s{sNS}, {ST_SEG}",
           f"s_add_u32 s{sO3}, s{sO3}, s{S_TMP + 1}", f"s_add_u32 s{sO3}, s{sO3}, {base + 4096}"]
    return [pre + [[f"s_add_u32 m0, s{sSB}, 4096", f"s_nop 0",
                    f"buffer_load_dwordx4 v{vL16}, {srd_}, s{sO3} offen lds"]],
            [f"s_add_u32 m0, s{sSB}, s{sW1K}", f"s_sub_u32 s{sO3}, s{sO3}, 4096", f"s_add_u32 s{sO3}, s{sO3}, s{sW1K}",
             f"buffer_load_dwordx4 v{vL16}, {srd_}, s{sO3} offen lds"]]


def stats_loads(base, STR, vaddr, srd_):
    pre = [f"s_mul_i32 s{sO3}, s{sNL}, {2 * ST_BYTES}", f"s_mul_i32 s{S_TMP + 1}, s{sNS}, {ST_SEG}",
           f"s_add_u32 s{sO3}, s{sO3}, s{S_TMP + 1}", f"s_add_u32 s{sO3}, s{sO3}, {base}"]
    ops = [[f"buffer_load_dwordx4 {vr(STR + 4 * i, 4)}, v{vaddr}, {srd_}, s{sO3} offen offset:{512 * i}"] for i in range(6)]
    ops[0] = pre + ops[0]
    return ops


def stats_math(STR, RS, MR):
    ops = []
    for i in range(1, 5):
        ops += [f"v_add_f32 v{STR + j}, v{STR + j}, v{STR + 4 * i + j}" for j in range(4)]
    S1, S2 = STR, STR + 1
    ops += [f"v_add_f32 v{S1}, v{S1}, v{STR + 2}", f"v_add_f32 v{S2}, v{S2}, v{STR + 3}",
            f"v_mov_b32 v{STR + 2}, v{S1}", f"v_mov_b32 v{STR + 3}, v{S2}",
            f"v_permlane32_swap_b32 v{S1}, v{STR + 2}", f"v_permlane32_swap_b32 v{S2}, v{STR + 3}",
            f"v_add_f32 v{S1}, v{S1}, v{STR + 2}", f"v_add_f32 v{S2}, v{S2}, v{STR + 3}",
            f"v_mul_f32 v{S1}, {hex(f32bits(1.0 / 576))}, v{S1}",
            f"v_mul_f32 v{S2}, {hex(f32bits(1.0 / 576))}, v{S2}",
            f"v_fma_f32 v{S2}, -v{S1}, v{S1}, v{S2}",
            f"v_max_f32 v{S2}, 0, v{S2}",
            f"v_add_f32 v{S2}, {hex(f32bits(1e-5))}, v{S2}",
            f"v_rsq_f32 v{RS}, v{S2}",
            f"v_mul_f32 v{MR}, v{S1}, v{RS}"]
    return ops


def role_p(a, abort, done):
    lane_setup(a, 18)
    vXA, vSTA, vCS, vA0, vLDS, vO = 9, 10, 11, 12, 12, 14
    vMB = 108
    ACC, RING, STR, LN = 16, 32, 56, 76
    TT = 96
    CS = 80
    a(f"""
    s_lshr_b32 s{sK2}, s{S_ROLE}, 5
    s_and_b32 s{sK3}, s{S_ROLE}, 31
    s_lshl_b32 s{S_TMP}, s{sK2}, 3
    s_add_u32 s{S_TMP}, s{S_TMP}, {KA_WQ}
    s_load_dwordx2 s[{SRD_A}:{SRD_A + 1}], s[0:1], s{S_TMP}
    s_mov_b32 s{SRD_A + 2}, {576 * 8192}
    s_mov_b32 s{SRD_A + 3}, 0x00020000
    s_lshl_b32 s{sK1}, s{sK3}, 8
    s_lshl_b32 s{S_TMP}, s{S_WAVE}, 6
    s_add_u32 s{sK1}, s{sK1}, s{S_TMP}
    v_bfe_u32 v{vSTA}, v{vL16}, 4, 5
    """)
    feat_of_row(a, vO, vSTA, vT0)
    a(f"""
    v_bfe_u32 v{vT0}, v{vL16}, 8, 1
    v_lshl_add_u32 v{vT1}, v{vC}, 1, v{vT0}
    s_cmp_eq_u32 s{sK2}, 2
    s_cselect_b64 vcc, -1, 0
    v_cndmask_b32 v{vO}, v{vO}, v{vT1}, vcc
    v_and_b32 v{vT0}, 1, v{vO}
    """)
    sel_of_parity(a, vCS, vT0, vT1)
    a(f"""
    v_and_b32 v{vO}, 30, v{vO}
    v_lshrrev_b32 v{vT0}, 9, v{vL16}
    v_lshlrev_b32 v{vA0}, 16, v{vT0}
    v_lshl_add_u32 v{vA0}, v{vO}, 1, v{vA0}
    v_add_u32 v{vA0 + 1}, 8192, v{vA0}
    v_lshlrev_b32 v{vSTA}, 4, v{vSTA}
    v_mul_u32_u24 v{vT1}, 2560, v{vT0}
    v_add_u32 v{vSTA}, v{vSTA}, v{vT1}
    v_add_u32 v{vSTA}, {STB3}, v{vSTA}
    s_lshl_b32 s{sW1K}, s{S_WAVE}, 10
    v_bfe_u32 v{vT1}, v{vL16}, 8, 1
    v_lshlrev_b32 v{vO}, 10, v{vT1}
    v_lshl_add_u32 v{vO}, v{vC}, 4, v{vO}
    v_lshl_add_u32 v{vO}, v{vT0}, 8, v{vO}
    """)
    a.force_wait(lg=0)
    a(f"s_and_b32 s{SRD_A + 1}, s{SRD_A + 1}, 0xffff")
    load_cols(a, SRD_A, vA0, vCS, [((16 * t + 2 * d) * 8192, WB + 4 * t + d) for t in range(36) for d in range(4)])
    a(f"""
    s_mul_i32 s{sK4}, s{sK2}, {QKV_M}
    s_lshl_b32 s{S_TMP}, s{sK3}, 13
    s_add_u32 s{sK4}, s{sK4}, s{S_TMP}
    s_lshl_b32 s{S_TMP}, s{S_WAVE}, 11
    s_add_u32 s{sK4}, s{sK4}, s{S_TMP}
    s_add_u32 s{sK4}, s{sK4}, {WS_QKV}
    s_lshl_b32 s{sK1}, s{sK3}, 9
    s_lshl_b32 s{S_TMP}, s{sK2}, 7
    s_add_u32 s{sK1}, s{sK1}, s{S_TMP}
    s_lshl_b32 s{S_TMP}, s{S_WAVE}, 2
    s_add_u32 s{sK1}, s{sK1}, s{S_TMP}
    s_add_u32 s{sK1}, s{sK1}, {WS_FLAGS + FL_QKV}
    v_mov_b32 v{RING}, 0x3f803f80
    v_mov_b32 v{RING + 1}, 0x3f803f80
    v_mov_b32 v{RING + 2}, 0x3f803f80
    v_mov_b32 v{RING + 3}, 0x3f803f80
    s_lshl_b32 s{S_TMP}, s{S_WAVE}, 8
    s_add_u32 s{S_TMP}, s{S_TMP}, {3 * XBUF}
    v_bfe_u32 v{vT0}, v{vL16}, 4, 5
    v_lshl_add_u32 v{vLDS}, v{vT0}, 2, s{S_TMP}
    v_lshrrev_b32 v{vT0}, 9, v{vL16}
    v_lshl_add_u32 v{vLDS + 1}, v{vT0}, 4, s{S_TMP}
    s_cmp_eq_u32 s{sK2}, 2
    s_cbranch_scc1 Lp_v
    """)
    for swap in (0, 1):
        nm = "LpV" if swap else "LpQ"
        if swap:
            a.label("Lp_v")
            a.restore(([], []))
        for t in range(36):
            w, o = vr(WB + 4 * t, 4), vr(RING, 4)
            a(MF32(ACC if swap else CS, o if swap else w, w if swap else o, "0" if t == 0 else None))
        if swap:
            a(f"v_mov_b32 v{vCS}, v{ACC}")

        def early():
            a(f"v_add_u32 v{vXA}, s{sBUF}, v{vL16}")
            a(f"v_add_u32 v{vT0}, s{sCSB}, v{vSTA}")
            for t in range(3):
                a(f"ds_read_b128 {vr(RING + 4 * t, 4)}, v{vXA} offset:{t * 1024}")
            for i in range(5):
                a(f"ds_read_b128 {vr(STR + 4 * i, 4)}, v{vT0} offset:{512 * i}")

        def compute(pre, dma, extra, mid, roll, swap=swap):
            early()
            sm = [None] * 3 + stats_math(STR, LN, LN + 1)
            if swap:
                sm += [f"ds_write2_b32 v{vLDS}, v{LN}, v{LN + 1} offset0:0 offset1:32"]
                sm += [f"ds_read_b128 {vr(LN + 4 * i, 4)}, v{vLDS + 1} offset:{(i >> 2) * 128 + (i & 3) * 32}" for i in range(8)]
                sm += [None] * 9 + [f"v_mul_f32 v{LN + 16 + i}, v{vCS}, v{LN + 16 + i}" for i in range(16)]
            else:
                sm += [f"v_mul_f32 v{TT + i}, v{LN + 1}, v{CS + i}" for i in range(16)]
            sm += [f"s_mul_i32 s{sO1}, s{sCL}, {3 * QKV_M}", f"s_lshl_b32 s{sK3}, s{sCS}, 18",
                   f"s_add_u32 s{sO1}, s{sO1}, s{sK3}", f"s_add_u32 s{sO1}, s{sO1}, s{sK4}"]
            gemm32(a, ACC, swap, vXA, [RING + 4 * i for i in range(4)], pre, dma, extra, mid, roll, fill=sm, issued=True)
            epi()

        def epi(swap=swap):
            for k in range(2):
                regs = [0, 1, 2, 3, 8, 9, 10, 11] if swap else list(range(8))
                regs = [r + (4 if swap else 8) * k for r in regs]
                for i in regs[::2]:
                    if swap:
                        a(f"v_pk_fma_f32 {vr(ACC + i, 2)}, {vr(ACC + i, 2)}, {vr(LN + i, 2)}, {vr(LN + 16 + i, 2)} neg_lo:[0,0,1] neg_hi:[0,0,1]")
                    else:
                        a(f"v_pk_fma_f32 {vr(ACC + i, 2)}, {vr(ACC + i, 2)}, {vr(LN, 2)}, {vr(TT + i, 2)} op_sel_hi:[1,0,1] neg_lo:[0,0,1] neg_hi:[0,0,1]")
                o = RING + 16 + 4 * k
                for i in range(4):
                    a(f"v_cvt_pk_bf16_f32 v{o + i}, v{ACC + regs[2 * i]}, v{ACC + regs[2 * i + 1]}")
                a(f"buffer_store_dwordx4 {vr(o, 4)}, v{vO}, {WS}, s{sO1} offen offset:{512 * k} sc1", tag="st")

        def out_flag():
            a(f"s_mul_i32 s{sPEND}, s{sCO}, {FL_STRIDE}")
            a(f"s_add_u32 s{sPEND}, s{sPEND}, s{sK1}")

        a(f"s_mov_b32 s{sSB}, {STB3}")
        a(f"s_mov_b32 s{sCSB}, 0x2000")
        staged_loop(a, nm, abort, done, WS_X + X_BYTES, 2 * X_BYTES, FL_XB,
                    lambda sr_: stats_dma(WS_ST + ST_BYTES, sr_), compute, out_flag, 2, vMB if swap else 78)


def role_awo(a, abort, done):
    lane_setup(a, 64)
    vXA, vSTO, vSEL, vA0, vRES = 9, 10, 11, 12, 14
    ACC, RING, RES, SS = 16, 32, 64, 72
    if AQLDW:
        a(f"s_cmp_lt_u32 s{S_ROLE}, 5")
        a("s_cbranch_scc1 Lawo_noord")
        dbg_wait(a, DB_LOADED, AQLDW, vT0, vT1, abort, "Lawo_ord", 64)
        a.label("Lawo_noord")
    srd(a, SRD_A, KA_WO, 576 * 1152)
    a(f"""
    s_cmp_ge_u32 s{S_ROLE}, 5
    s_cselect_b32 s{sLAYS}, 1, 0
    s_cselect_b32 s{S_TMP}, 5, 0
    s_sub_u32 s{S_ROLE}, s{S_ROLE}, s{S_TMP}
    s_lshl_b32 s{sK2}, s{S_ROLE}, 2
    s_add_u32 s{sK2}, s{sK2}, s{S_WAVE}
    s_min_u32 s{sK2}, s{sK2}, 17
    s_lshl_b32 s{sK1}, s{sK2}, 6
    v_bfe_u32 v{vSTO}, v{vL16}, 4, 5
    """)
    feat_of_row(a, vRES, vSTO, vT0)
    a(f"v_and_b32 v{vT0}, 1, v{vRES}")
    sel_of_parity(a, vSEL, vT0, vT1)
    a(f"""
    v_and_b32 v{vRES}, 30, v{vRES}
    v_lshlrev_b32 v{vRES}, 1, v{vRES}
    v_lshrrev_b32 v{vXA}, 9, v{vL16}
    v_mul_u32_u24 v{vT0}, {8 * 1152}, v{vXA}
    v_add_u32 v{vA0}, v{vT0}, v{vRES}
    v_add_u32 v{vA0 + 1}, 1152, v{vA0}
    """)
    load_cols(a, SRD_A, vA0, vSEL, [((18 * t + 2 * d) * 1152, WB + 4 * t + d) for t in range(32) for d in range(4)])
    a(f"""
    v_mul_u32_u24 v{vT0}, {72 * 1152}, v{vXA}
    v_add_u32 v{vA0}, v{vT0}, v{vRES}
    v_add_u32 v{vA0 + 1}, 1152, v{vA0}
    """)
    load_cols(a, SRD_A, vA0, vSEL, [((144 * t + 18 * d + 16) * 1152, WB + 128 + 4 * t + d) for t in range(4) for d in range(4)])
    a(f"""
    v_lshlrev_b32 v{vSTO}, 4, v{vSTO}
    v_lshl_add_u32 v{vRES}, v{vXA}, 9, v{vSTO}
    s_lshl_b32 s{S_TMP}, s{sK2}, 11
    v_add_u32 v{vRES}, s{S_TMP}, v{vRES}
    s_lshr_b32 s{S_TMP}, s{sK2}, 1
    s_lshl_b32 s{S_TMP}, s{S_TMP}, 9
    s_and_b32 s{S_TMP + 1}, s{sK2}, 1
    s_lshl_b32 s{S_TMP + 1}, s{S_TMP + 1}, 3
    s_add_u32 s{S_TMP}, s{S_TMP}, s{S_TMP + 1}
    v_add_u32 v{vSTO}, s{S_TMP}, v{vSTO}
    s_lshr_b32 s{sK1}, s{sK2}, 2
    s_lshl_b32 s{sK1}, s{sK1}, 7
    s_and_b32 s{S_TMP}, s{sK2}, 3
    s_lshl_b32 s{S_TMP}, s{S_TMP}, 2
    s_add_u32 s{sK1}, s{sK1}, s{S_TMP}
    s_add_u32 s{sK1}, s{sK1}, {WS_FLAGS + FL_XB}
    """)

    def res_loads(srd_):
        pre = [f"s_mul_i32 s{sO3}, s{sNL}, {2 * X_BYTES}", f"s_mul_i32 s{S_TMP + 1}, s{sNS}, {X_SEG}",
               f"s_add_u32 s{sO3}, s{sO3}, s{S_TMP + 1}", f"s_add_u32 s{sO3}, s{sO3}, {WS_X}"]
        ops = [[f"buffer_load_dwordx4 {vr(RES + 4 * k, 4)}, v{vRES}, {srd_}, s{sO3} offen offset:{1024 * k}"] for k in range(2)]
        ops[0] = pre + ops[0]
        return ops

    AOST = int(os.environ.get("AOST", "14"))
    AODEC = int(os.environ.get("AODEC", "32"))

    def compute(start, decide, vm):
        vm = list(vm)
        a(f"v_add_u32 v{vXA}, s{sBUF}, v{vL16}")
        nr = 8
        ring = [RING + 4 * i for i in range(nr)]

        def rd(t):
            return f"ds_read_b128 {vr(ring[t % nr], 4)}, v{vXA} offset:{t * 1024}"
        for t in range(nr - 1):
            a(rd(t))
        for i in range(8):
            a(f"v_lshlrev_b32 v{ACC + 2 * i}, 16, v{RES + i}")
            a(f"v_and_b32 v{ACC + 2 * i + 1}, 0xffff0000, v{RES + i}")
        fl = [f"s_mul_i32 s{sO1}, s{sCL}, {2 * X_BYTES}", f"s_mul_i32 s{sK3}, s{sCS}, {X_SEG}",
              f"s_add_u32 s{sO1}, s{sO1}, s{sK3}", f"s_add_u32 s{sO1}, s{sO1}, {WS_X + X_BYTES}",
              f"s_mul_i32 s{sK4}, s{sCL}, {2 * ST_BYTES}", f"s_mul_i32 s{sK3}, s{sCS}, {ST_SEG}",
              f"s_add_u32 s{sK4}, s{sK4}, s{sK3}", f"s_add_u32 s{sK4}, s{sK4}, {WS_ST + ST_BYTES}"]
        for t in range(36):
            a(MF32(ACC, vr(WB + 4 * t, 4), vr(ring[t % nr], 4), None))
            if t + nr - 1 < 36:
                a(rd(t + nr - 1))
            if fl:
                a(fl.pop(0))
            if t == AOST:
                start()
            if t == AODEC:
                decide()
            elif t > AODEC and vm:
                seq(a, vm.pop(0))
                if vm:
                    seq(a, vm.pop(0))
        seq(a, vm)
        for k in range(2):
            for i in range(4):
                a(f"v_cvt_pk_bf16_f32 v{RING + 4 * k + i}, v{ACC + 8 * k + 2 * i}, v{ACC + 8 * k + 2 * i + 1}")
            a(f"buffer_store_dwordx4 {vr(RING + 4 * k, 4)}, v{vRES}, {WS}, s{sO1} offen offset:{1024 * k} sc1")
        a(f"v_add_f32 v{SS}, v{ACC}, v{ACC + 1}")
        a(f"v_mul_f32 v{SS + 1}, v{ACC}, v{ACC}")
        a(f"v_fmac_f32 v{SS + 1}, v{ACC + 1}, v{ACC + 1}")
        for i in range(2, 16):
            a(f"v_add_f32 v{SS}, v{SS}, v{ACC + i}")
            a(f"v_fmac_f32 v{SS + 1}, v{ACC + i}, v{ACC + i}")
        seq(a, f"v_mov_b32 v{SS + 2}, v{SS}", f"v_mov_b32 v{SS + 3}, v{SS + 1}",
            f"v_permlane32_swap_b32 v{SS}, v{SS + 2}", f"v_permlane32_swap_b32 v{SS + 1}, v{SS + 3}",
            f"v_add_f32 v{SS}, v{SS}, v{SS + 2}", f"v_add_f32 v{SS + 1}, v{SS + 1}, v{SS + 3}",
            f"buffer_store_dwordx2 {vr(SS, 2)}, v{vSTO}, {WS}, s{sK4} offen sc1")

    def out_flag():
        a(f"s_mul_i32 s{sPEND}, s{sCO}, {FL_STRIDE}")
        a(f"s_add_u32 s{sPEND}, s{sPEND}, s{sK1}")

    seq_loop(a, "Lawo", abort, done, WS_OA, X_BYTES, FL_OA, res_loads, compute, out_flag, 3, sLAYS, slp=2)


def role_aq(a, abort, done, nt=""):
    lane_setup(a, 48)
    vXA, vSTA, vLDS, vOUT = 9, 10, 11, 13
    ACC, CS, RING, STR = 16, 36, 56, 68
    LN, BI = 92, 72
    ST8 = 112
    QB, KC, VA, VB, SP, PP = 128, 132, 136, 140, 144, 68
    AQST = int(os.environ.get("AQST", "10"))
    AQDEC = int(os.environ.get("AQDEC", "22"))
    NR = int(os.environ.get("AQNR", "4"))
    RG = [RING, RING + 4, RING + 8, 104][:NR]
    vSRC = 111
    WV = 152

    def wreg(tile, t, i=None):
        n = (tile * 18 + t) * 4
        k, b = ("v", WV + n) if n < 104 else ("a", n - 104)
        return f"{k}[{b}:{b + 3}]" if i is None else f"{k}{b + i}"

    a(f"""
    s_lshr_b32 s{sLAYS}, s{S_ROLE}, 4
    s_and_b32 s{S_ROLE}, s{S_ROLE}, 15
    s_lshl_b32 s{sK2}, s{S_ROLE}, 1
    s_lshr_b32 s{S_TMP}, s{S_WAVE}, 1
    s_add_u32 s{sK2}, s{sK2}, s{S_TMP}
    s_and_b32 s{sK3}, s{S_WAVE}, 1
    s_mul_i32 s{sK1}, s{sK2}, 36
    """)
    if AQLDW:
        a(f"s_cmp_eq_u32 s{sLAYS}, 0")
        a("s_cbranch_scc1 Laq_noord")
        dbg_wait(a, DB_LOADED, AQLDW, vT0, vT1, abort, "Laq_ord", 64)
        a.label("Laq_noord")
    srd(a, SRD_A, KA_WQKV, 576 * 3456)
    A_ = f"s[{SRD_A}:{SRD_A + 3}]"
    SLOT, NSL = 10240, 10
    ZERO = NSL * SLOT
    GA3, TRM, TRE, MSK, TX, CR, CW = 16, 19, 20, 21, 22, 23, 28
    sLB, sHD = sO1, sO2
    for j in range(3):
        a(f"""
        v_lshrrev_b32 v24, 4, v{vL16}
        v_add_u32 v24, {64 * j}, v24
        v_mul_u32_u24 v25, {(65536 + 17) // 18}, v24
        v_lshrrev_b32 v25, 16, v25
        v_mul_u32_u24 v26, 18, v25
        v_sub_u32 v24, v24, v26
        v_mul_u32_u24 v{GA3 + j}, 3456, v25
        v_mul_u32_u24 v25, {(65536 + 2) // 3}, v24
        v_lshrrev_b32 v25, 16, v25
        v_mul_u32_u24 v26, 3, v25
        v_sub_u32 v24, v24, v26
        v_lshl_add_u32 v{GA3 + j}, v24, 4, v{GA3 + j}
        v_cmp_le_u32 vcc, 3, v25
        v_cndmask_b32 v26, 0, 1, vcc
        v_mul_u32_u24 v27, 3, v26
        v_sub_u32 v25, v25, v27
        v_mul_u32_u24 v25, 1152, v25
        v_mul_u32_u24 v26, 36, v26
        v_add3_u32 v{GA3 + j}, v{GA3 + j}, v25, v26
        """)
    a(f"""
    s_mul_i32 s{sK1}, s{S_ROLE}, 72
    s_mul_i32 s{S_TMP}, s{S_WAVE}, {8 * 3456}
    s_add_u32 s{sK1}, s{sK1}, s{S_TMP}
    s_mul_i32 s{sLB}, s{S_WAVE}, 2304
    s_lshr_b32 s{sHD}, s{S_WAVE}, 1
    v_lshrrev_b32 v{vT0}, 2, v{vC}
    v_lshl_add_u32 v{vT0}, v{vG}, 3, v{vT0}
    v_and_b32 v{vT1}, 3, v{vC}
    v_mul_u32_u24 v{TRM}, 288, v{vT0}
    v_lshl_add_u32 v{TRM}, v{vT1}, 3, v{TRM}
    s_mul_i32 s{S_TMP}, s{sHD}, 144
    v_add_u32 v{TRM}, s{S_TMP}, v{TRM}
    v_lshlrev_b32 v{TRE}, 3, v{vT0}
    s_lshl_b32 s{S_TMP + 1}, s{sHD}, 9
    s_add_u32 s{S_TMP + 1}, s{S_TMP + 1}, 9216
    v_add_u32 v{TRE}, s{S_TMP + 1}, v{TRE}
    v_mov_b32 v{TX}, {ZERO}
    v_cmp_eq_u32 vcc, 0, v{vT1}
    v_cndmask_b32 v{TRE}, v{TX}, v{TRE}, vcc
    v_cndmask_b32 v{MSK}, 0, -1, vcc
    v_bfe_u32 v{vT0}, v{vL16}, 4, 5
    v_mul_u32_u24 v{CR}, 288, v{vT0}
    v_add_u32 v{CR}, s{S_TMP}, v{CR}
    v_lshlrev_b32 v{CW}, 3, v{vT0}
    v_add_u32 v{CW}, s{S_TMP + 1}, v{CW}
    v_mov_b32 v24, 0
    v_mov_b32 v25, 0
    v_mov_b32 v26, 0
    v_mov_b32 v27, 0
    v_mov_b32 v33, 0
    v_mov_b32 v{TX}, {ZERO}
    v_lshl_add_u32 v{TX}, v{vC}, 4, v{TX}
    ds_write_b128 v{TX}, v[24:27]
    """)

    def wdma(t):
        base = (t % NSL) * SLOT
        a(f"s_add_u32 s{S_TMP}, s{sK1}, {32 * t * 3456}")
        for j in range(3):
            a(f"s_add_u32 m0, s{sLB}, {base + j * 1024}")
            a("s_mov_b64 exec, 0xffff" if j == 2 else "s_nop 0")
            a(f"buffer_load_dwordx4 v{GA3 + j}, {A_}, s{S_TMP} offen lds")
        a("s_mov_b64 exec, -1")

    def pair(tile, t, hh):
        n = (tile * 18 + t) * 4 + 2 * hh
        k, b = ("v", WV + n) if n < 104 else ("a", n - 104)
        return f"{k}[{b}:{b + 1}]"
    for t in range(NSL - 1):
        wdma(t)
    a.force_wait(lg=0)
    issued = NSL - 1
    for t in range(18):
        a.force_wait(vm=3 * (issued - t - 1))
        a("s_barrier")
        if issued < 18:
            wdma(issued)
            issued += 1
        base = (t % NSL) * SLOT
        a(f"v_add_u32 v34, {base}, v{CR}")
        a(f"v_add_u32 v35, {base}, v{TRM}")
        a(f"ds_read_b32 v30, v34 offset:32")
        a(f"ds_read_b32 v31, v34 offset:{48 + 32}")
        a(f"ds_read_b32 v32, v34 offset:{96 + 32}")
        for tile, m in ((0, 0), (1, 1), (3, 2)):
            for hh in range(2):
                a(f"ds_read_b64_tr_b16 {pair(tile, t, hh)}, v35 offset:{m * 48 + hh * 4 * 288}")
        a(f"v_add_u32 v{TX}, {base}, v{CW}")
        a(f"ds_write_b64 v{TX}, v[30:31]")
        a(f"ds_write_b64 v{TX}, v[32:33] offset:256")
        a.wait(lg=0)
        for tile, off in ((2, 0), (4, 256)):
            a(f"v_and_b32 v{TX}, {base + off}, v{MSK}")
            a(f"v_add_u32 v{TX}, v{TX}, v{TRE}")
            for hh in range(2):
                a(f"ds_read_b64_tr_b16 {pair(tile, t, hh)}, v{TX} offset:{hh * 32}")
        a.wait(lg=0)
    a.force_wait(vm=0, lg=0)
    a("s_barrier")
    for i in range(4):
        a(f"v_mov_b32 v{RING + i}, 0x3f803f80")
    for t in range(18):
        for tile in range(5):
            w, o = wreg(tile, t), vr(RING, 4)
            a(MF(CS + 4 * tile, o if tile >= 3 else w, w if tile >= 3 else o, "0" if t == 0 else None))
    NEG = hex(f32bits(-1e30))
    a(f"""
    v_lshlrev_b32 v{vSTA}, 5, v{vC}
    s_lshl_b32 s{S_TMP}, s{sK3}, 4
    v_add_u32 v{vSTA}, s{S_TMP}, v{vSTA}
    v_mul_u32_u24 v{vT1}, 1536, v{vG}
    v_add_u32 v{vSTA}, v{vSTA}, v{vT1}
    s_lshl_b32 s{S_TMP}, s{S_WAVE}, 7
    s_add_u32 s{S_TMP}, s{S_TMP}, {2 * XBUF}
    v_lshl_add_u32 v{vLDS}, v{vC}, 3, s{S_TMP}
    v_lshl_add_u32 v{vLDS + 1}, v{vG}, 5, s{S_TMP}
    v_lshlrev_b32 v{vOUT}, 5, v{vC}
    s_lshl_b32 s{S_TMP}, s{sK3}, 4
    v_add_u32 v{vOUT}, s{S_TMP}, v{vOUT}
    s_lshr_b32 s{S_TMP}, s{sK2}, 2
    s_add_u32 s{S_TMP}, s{S_TMP}, 64
    s_lshl_b32 s{S_TMP}, s{S_TMP}, 9
    s_and_b32 s{S_TMP + 1}, s{sK2}, 3
    s_lshl_b32 s{S_TMP + 1}, s{S_TMP + 1}, 2
    s_add_u32 s{S_TMP}, s{S_TMP}, s{S_TMP + 1}
    v_add_u32 v{vOUT + 1}, s{S_TMP}, v{vOUT}
    v_lshrrev_b32 v{vT0}, 1, v{vG}
    v_lshl_add_u32 v{vOUT}, v{vT0}, 9, v{vOUT}
    v_and_b32 v{vT0}, 1, v{vG}
    v_lshl_add_u32 v{vOUT}, v{vT0}, 3, v{vOUT}
    s_lshl_b32 s{S_TMP}, s{sK2}, 10
    v_add_u32 v{vOUT}, s{S_TMP}, v{vOUT}
    s_lshl_b32 s{sK1}, s{S_ROLE}, 7
    s_lshl_b32 s{S_TMP}, s{S_WAVE}, 2
    s_add_u32 s{sK1}, s{sK1}, s{S_TMP}
    s_add_u32 s{sK1}, s{sK1}, {WS_FLAGS + FL_OA}
    s_mov_b32 s{sK4}, {hex(f32bits(18 ** -0.5 * 1.4426950408889634))}
    v_mov_b32 v{vT1}, {NEG}
    """)
    for i in range(4):
        a(f"v_lshl_add_u32 v{vT0}, v{vG}, 2, {i}")
        a(f"v_sub_u32 v{vT0}, v{vT0}, v{vC}")
        a(f"v_cmp_le_i32 vcc, 9, v{vT0}")
        a(f"v_cndmask_b32 v{BI + i}, v{vT1}, v{vZERO}, vcc")
        a(f"v_add_u32 v{vT0}, 7, v{vT0}")
        a(f"v_cmp_ge_u32 vcc, 7, v{vT0}")
        a(f"v_cndmask_b32 v{BI + 4 + i}, v{vT1}, v{vZERO}, vcc")
    a(f"v_and_b32 v{vSRC}, 0x200, v{vL16}")
    a(f"v_lshl_add_u32 v{vSRC}, v{vC}, 5, v{vSRC}")
    a(f"v_and_b32 v{vT0}, 1, v{vG}")
    a(f"v_lshl_add_u32 v{vSRC}, v{vT0}, 4, v{vSRC}")
    for r in (ST8, VA, VB):
        for i in range(4):
            a(f"v_mov_b32 v{r + i}, 0")
    for i in range(4):
        a(f"v_mov_b32 v{ST8 + 4 + i}, 0x3f803f80")
    a(f"v_mov_b32 v{QB + 3}, 0")
    a(f"v_mov_b32 v{KC + 3}, 0")

    def st_loads(srd_):
        pre = [f"s_mul_i32 s{sO3}, s{sNL}, {2 * ST_BYTES}", f"s_mul_i32 s{S_TMP + 1}, s{sNS}, {ST_SEG}",
               f"s_add_u32 s{sO3}, s{sO3}, s{S_TMP + 1}", f"s_add_u32 s{sO3}, s{sO3}, {WS_ST}"]
        ops = [[f"buffer_load_dwordx4 {vr(STR + 12 + 4 * i, 4)}, v{vSTA}, {srd_}, s{sO3} offen offset:{512 * i}"] for i in range(3)]
        ops[0] = pre + ops[0]
        return ops

    def compute(start, decide, vm):
        vm = list(vm)
        S0 = STR + 12
        a(f"v_lshlrev_b32 v{vXA}, 9, v{vG}")
        a(f"v_lshl_add_u32 v{vXA}, v{vC}, 4, v{vXA}")
        a(f"s_lshl_b32 s{S_TMP}, s{sK3}, 8")
        a(f"s_add_u32 s{S_TMP}, s{S_TMP}, s{sBUF}")
        a(f"v_add_u32 v{vXA}, s{S_TMP}, v{vXA}")
        S1, S2 = S0, S0 + 1
        sm = [f"v_add_f32 v{S0 + j}, v{S0 + j}, v{S0 + 4 * i + j}" for i in (1, 2) for j in range(4)]
        sm += [f"v_add_f32 v{S1}, v{S1}, v{S0 + 2}", f"v_add_f32 v{S2}, v{S2}, v{S0 + 3}"]
        for sw in (32, 16):
            sm += [f"v_mov_b32 v{S0 + 2}, v{S1}", f"v_mov_b32 v{S0 + 3}, v{S2}",
                   f"v_permlane{sw}_swap_b32 v{S1}, v{S0 + 2}", f"v_permlane{sw}_swap_b32 v{S2}, v{S0 + 3}",
                   f"v_add_f32 v{S1}, v{S1}, v{S0 + 2}", f"v_add_f32 v{S2}, v{S2}, v{S0 + 3}"]
        sm += [f"v_mul_f32 v{S1}, {hex(f32bits(1.0 / 576))}, v{S1}", f"v_mul_f32 v{S2}, {hex(f32bits(1.0 / 576))}, v{S2}",
               f"v_fma_f32 v{S2}, -v{S1}, v{S1}, v{S2}", f"v_max_f32 v{S2}, 0, v{S2}",
               f"v_add_f32 v{S2}, {hex(f32bits(1e-5))}, v{S2}", f"v_rsq_f32 v{LN}, v{S2}",
               f"v_mul_f32 v{LN + 1}, v{S1}, v{LN}",
               f"ds_write_b64 v{vLDS}, {vr(LN, 2)}",
               f"ds_read_b128 {vr(LN + 4, 4)}, v{vLDS + 1}", f"ds_read_b128 {vr(LN + 8, 4)}, v{vLDS + 1} offset:16"]
        def rd(n):
            return f"ds_read_b128 {vr(RG[n % NR], 4)}, v{vXA} offset:{(n % 18) * 2048}"
        q0, k0, ex, v0, vx = [ACC + 4 * i for i in range(5)]
        KP = ST8
        MX, T1 = vT0, vT1
        LQ, OX, OY, ON = ACC, ACC + 4, ACC + 8, ST8 + 4

        def fold(tile):
            ops = []
            for i in range(4):
                r = ACC + 4 * tile + i
                rs, mr = (LN + 4 + 2 * i, LN + 5 + 2 * i) if tile >= 3 else (LN, LN + 1)
                ops += [f"v_mul_f32 v{LN + 2}, v{mr}, v{CS + 4 * tile + i}", f"v_fma_f32 v{r}, v{r}, v{rs}, -v{LN + 2}"]
            return ops
        post = fold(0) + fold(2) + fold(1) + [
            f"v_cvt_pk_bf16_f32 v{QB}, v{q0}, v{q0 + 1}", f"v_cvt_pk_bf16_f32 v{QB + 1}, v{q0 + 2}, v{q0 + 3}",
            f"v_cvt_pk_bf16_f32 v{QB + 2}, v{ex}, v{ex + 1}",
            f"v_cvt_pk_bf16_f32 v{KC}, v{k0}, v{k0 + 1}", f"v_cvt_pk_bf16_f32 v{KC + 1}, v{k0 + 2}, v{k0 + 3}",
            f"v_cvt_pk_bf16_f32 v{KC + 2}, v{ex + 2}, v{ex + 3}",
            [f"s_cmp_eq_u32 s{sCS}, 0", f"s_cselect_b32 s{sO1}, {NEG}, 0"],
            None, MF(SP, vr(KP, 4), vr(QB, 4), "0"), None, MF(SP + 4, vr(KC, 4), vr(QB, 4), "0"), None, None]
        post += [f"v_mov_b32 v{KP + i}, v{KC + i}" for i in range(3)] + [None] * 3
        post += [f"v_fma_f32 v{SP + i}, v{SP + i}, s{sK4}, v{BI + i}" for i in range(8)]
        post += [f"v_add_f32 v{SP + i}, s{sO1}, v{SP + i}" for i in range(4)]
        post += [f"v_max3_f32 v{MX}, v{SP}, v{SP + 1}, v{SP + 2}", f"v_max3_f32 v{MX}, v{MX}, v{SP + 3}, v{SP + 4}",
                 f"v_max3_f32 v{MX}, v{MX}, v{SP + 5}, v{SP + 6}", f"v_max_f32 v{MX}, v{MX}, v{SP + 7}",
                 f"v_mov_b32 v{T1}, v{MX}", None, f"v_permlane32_swap_b32 v{MX}, v{T1}", f"v_max_f32 v{MX}, v{MX}, v{T1}",
                 f"v_mov_b32 v{T1}, v{MX}", None, f"v_permlane16_swap_b32 v{MX}, v{T1}", f"v_max_f32 v{MX}, v{MX}, v{T1}"]
        post += [f"v_sub_f32 v{SP + i}, v{SP + i}, v{MX}" for i in range(8)]
        post += [f"v_exp_f32 v{SP + i}, v{SP + i}" for i in range(8)]
        post += [f"v_cvt_pk_bf16_f32 v{PP + i}, v{SP + 2 * i}, v{SP + 2 * i + 1}" for i in range(4)]
        post += [None, MF(LQ, vr(ON, 4), vr(PP, 4), "0"),
                 [f"s_mul_i32 s{sO1}, s{sCO}, {X_SEG}", f"s_add_u32 s{sO1}, s{sO1}, {WS_OA}"]]
        seq(a, [rd(i) for i in range(NR - 1)])
        if PROF == 3:
            prof_begin(a)
        for n in range(36):
            t = n % 18
            if PROF == 3 and n == 18:
                prof_end(a, 3); prof_begin(a)
            if n + NR - 1 < 36:
                a(rd(n + NR - 1))
            x = vr(RG[n % NR], 4)
            for tile in ((0, 1, 2) if n < 18 else (3, 4)):
                w = wreg(tile, t)
                a(MF(ACC + 4 * tile, x if tile >= 3 else w, w if tile >= 3 else x, "0" if t == 0 else None))
                if n < 18 and sm:
                    a(sm.pop(0))
                if n >= 19:
                    for _ in range(3 if n >= 30 else 2):
                        if post:
                            seq(a, post.pop(0))
            if n == AQST:
                start()
            if n == 17:
                assert not sm
            if n == AQDEC:
                decide()
            elif n > AQDEC and vm:
                seq(a, vm.pop(0))
        assert not vm
        if PROF == 3:
            prof_end(a, 4); prof_begin(a)
        seq(a, post, f"v_rcp_f32 v{T1}, v{LQ}", fold(3),
            f"v_cvt_pk_bf16_f32 v{VA + 2}, v{v0}, v{v0 + 1}", f"v_cvt_pk_bf16_f32 v{VA + 3}, v{v0 + 2}, v{v0 + 3}",
            fold(4)[:2], MF(OX, vr(VA, 4), vr(PP, 4), "0"), fold(4)[2:],
            f"v_cvt_pk_bf16_f32 v{VB + 2}, v{vx}, v{vx + 1}", f"v_cvt_pk_bf16_f32 v{VB + 3}, v{vx + 2}, v{vx + 3}",
            f"v_mov_b32 v{VA}, v{VA + 2}", f"v_mov_b32 v{VA + 1}, v{VA + 3}",
            MF(OY, vr(VB, 4), vr(PP, 4), "0"),
            [f"v_mul_f32 v{OX + i}, v{T1}, v{OX + i}" for i in range(4)],
            f"v_cvt_pk_bf16_f32 v{OX}, v{OX}, v{OX + 1}", f"v_cvt_pk_bf16_f32 v{OX + 1}, v{OX + 2}, v{OX + 3}",
            f"buffer_store_dwordx2 {vr(OX, 2)}, v{vOUT}, {WS}, s{sO1} offen sc1",
            f"v_mov_b32 v{VB}, v{VB + 2}", f"v_mov_b32 v{VB + 1}, v{VB + 3}",
            f"v_mul_f32 v{OY}, v{T1}, v{OY}", f"v_mul_f32 v{OY + 1}, v{T1}, v{OY + 1}",
            f"v_cvt_pk_bf16_f32 v{OY}, v{OY}, v{OY + 1}",
            "s_mov_b64 exec, 0xffff",
            f"buffer_store_dword v{OY}, v{vOUT + 1}, {WS}, s{sO1} offen sc1",
            "s_mov_b64 exec, -1")
        if PROF == 3:
            prof_end(a, 5)

    def out_flag():
        a(f"s_mul_i32 s{sPEND}, s{sCO}, {FL_STRIDE}")
        a(f"s_add_u32 s{sPEND}, s{sPEND}, s{sK1}")

    seq_loop(a, "Laq", abort, done, WS_X, 2 * X_BYTES, FL_XA, st_loads, compute, out_flag, 2, sLAYS, vsrc=vSRC)


def seq_loop(a, name, abort, done, xbase, xlayer, flag_off, extra_loads, compute, out_flag, nst, laysel, prefetch=True,
             vsrc=None, pub2=None, slp=None):
    slp = SLP if slp is None else slp

    def dma_ops(srd_):
        ops = []
        for i in range(9):
            pre = []
            if i % 4 == 0:
                pre = [f"s_add_u32 m0, s{sOB}, {i * 1024}", f"s_add_u32 s{sO2}, s{sNX}, {i * 1024}"]
            ops.append(pre + [f"buffer_load_dwordx4 v{vL16 if vsrc is None else vsrc}, {srd_}, s{sO2} offen offset:{(i % 4) * 1024} lds"])
        return ops

    def publish():
        a(f"s_cmp_lg_u32 s{sPEND}, 0")
        a("s_cselect_b64 exec, 1, 0")
        if pub2 is None:
            a(f"buffer_store_dword v{vONE}, v{vZERO}, {WS}, s{sPEND} offen sc1")
        else:
            a(f"buffer_store_dwordx2 {vr(pub2, 2)}, v{vZERO}, {WS}, s{sPEND} offen sc1")
        a("s_mov_b64 exec, -1")
        a(f"s_mov_b32 s{sPEND}, 0")

    a(f"""
    s_mov_b32 s{sNL}, s{laysel}
    s_mov_b32 s{sCL}, s{laysel}
    s_mov_b32 s{sNS}, 0
    s_lshl_b32 s{sNO}, s{laysel}, 6
    s_mul_i32 s{sWQ}, s{S_WAVE}, 9216
    s_mov_b32 s{sBUF}, {XBUF}
    s_mov_b32 s{sOB}, s{sWQ}
    s_mov_b32 s{sPEND}, 0
    s_mov_b32 s{SRD_C}, s{SRD_WS}
    s_mov_b32 s{SRD_C + 1}, s{SRD_WS + 1}
    s_mov_b32 s{SRD_C + 2}, 0
    s_mov_b32 s{SRD_C + 3}, 0x00020000
    s_mul_i32 s{sNX}, s{laysel}, {xlayer}
    s_add_u32 s{sNX}, s{sNX}, s{sWQ}
    s_add_u32 s{sNX}, s{sNX}, {xbase}
    s_mul_i32 s{sNFL}, s{sNO}, {FL_STRIDE}
    s_add_u32 s{sNFL}, s{sNFL}, {WS_FLAGS + flag_off}
    """)
    dbg_wait(a, DB_POOL, N_POOL, vT0, vT1, abort, name + "_ini")
    trace(a, vT0, vT1)
    a(f"s_branch {name}_poll")
    head = name + "_item"
    a.label(head)
    a.restore(([], []))
    a.force_wait(vm=nst)
    a.label(name + "_go")
    a("s_barrier")
    a(f"""
    s_xor_b32 s{sBUF}, s{sBUF}, {XBUF}
    s_xor_b32 s{sOB}, s{sOB}, {XBUF}
    s_xor_b32 s{sSB}, s{sSB}, 0x2000
    s_xor_b32 s{sCSB}, s{sCSB}, 0x2000
    s_mov_b32 s{sCS}, s{sNS}
    s_mov_b32 s{sCO}, s{sNO}
    s_add_u32 s{sNS}, s{sNS}, 1
    s_add_u32 s{sNO}, s{sNO}, 1
    s_add_u32 s{sNX}, s{sNX}, {X_SEG}
    s_add_u32 s{sNFL}, s{sNFL}, {FL_STRIDE}
    s_mov_b32 s{sDEC}, 0
    """)
    a.vmq = [(frozenset(), "st")] * nst

    def start():
        a.force_wait(vm=0)
        a(f"buffer_load_dword v{vFLV}, v{vFLA}, {WS}, s{sNFL} offen sc1")
        publish()

    def decide():
        a.force_wait(vm=1)
        a(f"v_cmp_eq_u32 vcc, 0, v{vFLV}")
        a("s_cmp_eq_u64 vcc, 0")
        a(f"s_cselect_b32 s{sDEC}, 1, 0")
        a(f"s_cmp_lt_u32 s{sNS}, {NSEG}")
        a(f"s_cselect_b32 s{sDEC}, s{sDEC}, 0")
        a(f"s_cmp_lg_u32 s{sDEC}, 0")
        a(f"s_cselect_b32 s{SRD_C + 2}, {WS_BYTES}, 0")

    if prefetch:
        compute(start, decide, dma_ops(PFS) + extra_loads(PFS))
    else:
        compute(None, None, [])
    out_flag()
    trace_at(a, sCO, vT0, vZERO)
    trace5(a, sCS, 2, vT0, vZERO)
    if TRACE == 1:
        a.force_wait(vm=0)
        trace(a, vT0, vT1)
        a.force_wait(vm=0)
    if prefetch:
        a(f"s_cmp_lg_u32 s{sDEC}, 0")
        a(f"s_cbranch_scc1 {head}")
    a(f"buffer_load_dword v{vFLV}, v{vFLA}, {WS}, s{sNFL} offen sc1")
    a.force_wait(vm=0)
    a(f"s_cmp_ge_u32 s{sNS}, {NSEG}")
    a(f"s_cbranch_scc1 {name}_fin")
    a(f"v_cmp_eq_u32 vcc, 0, v{vFLV}")
    a(f"s_cbranch_vccnz {name}_pub")
    seq(a, dma_ops(WS), extra_loads(WS))
    publish()
    trace5(a, sCS, 3, vT0, vZERO)
    a.force_wait(vm=1)
    a(f"s_branch {name}_go")
    a.label(name + "_fin")
    a.restore(([], []))
    publish()
    a(f"s_branch {done}")
    a.label(name + "_pub")
    a.restore(([], []))
    publish()
    trace5(a, sCS, 3, vT0, vZERO)
    a.label(name + "_poll")
    a.restore(([], []))
    a(f"s_mov_b32 s{S_SPIN}, 0")
    L = name + "_pl"
    a.label(L)
    a(f"buffer_load_dword v{vFLV}, v{vFLA}, {WS}, s{sNFL} offen sc1")
    spin_check(a, abort)
    a(f"v_cmp_eq_u32 vcc, 0, v{vFLV}")
    a(f"s_cbranch_vccz {L}d")
    if slp:
        a(f"s_sleep {slp}")
    a(f"s_branch {L}")
    a.label(L + "d")
    trace5(a, sNS, 0, vT0, vZERO)
    seq(a, dma_ops(WS), extra_loads(WS))
    a.force_wait(vm=0)
    trace5(a, sNS, 1, vT0, vZERO)
    a(f"s_branch {name}_go")
```

```python
from pool import *

PD = int(os.environ.get("PD", "8"))
PST = int(os.environ.get("PST", "20"))
PDEC = int(os.environ.get("PDEC", "42"))
PPF = 3
PLDW = int(os.environ.get("PLDW", "1"))


def role_p2(a, abort, done):
    lane_setup(a, 18)
    vXA, vSTA, vCS0, vCS1, vLDS, vO, vTR, vGA = 9, 10, 11, 12, 14, 13, 210, 211
    vMB, PUB = 208, 212
    vLD2 = 15
    ACC = [16, 32]
    NRG = PD + PPF + 1
    RING = [48 + 4 * i for i in range(NRG)]
    assert RING[-1] + 4 <= 96
    STR, LN = 96, 116
    CS = [148, 164]
    TT = [180, 180]
    TTB = [180, 116 + 32]
    OUT = [196, 196]
    vL2 = 214

    def W(T, t):
        n = T * 36 + t
        return ar(4 * n, 4) if n < 64 else vr(224 + 4 * (n - 64), 4)

    sLAY, sM, sHD, sHALF = sLAYS, sK2, sK3, sO2
    a(f"""
    s_cmp_ge_u32 s{S_ROLE}, 48
    s_cselect_b32 s{sLAY}, 1, 0
    s_cselect_b32 s{S_TMP}, 48, 0
    s_sub_u32 s{S_ROLE}, s{S_ROLE}, s{S_TMP}
    s_lshr_b32 s{sM}, s{S_ROLE}, 4
    s_and_b32 s{sHD}, s{S_ROLE}, 15
    s_lshl_b32 s{sHD}, s{sHD}, 1
    s_lshr_b32 s{S_TMP}, s{S_WAVE}, 1
    s_add_u32 s{sHD}, s{sHD}, s{S_TMP}
    s_and_b32 s{sHALF}, s{S_WAVE}, 1
    s_lshl_b32 s{S_TMP}, s{sM}, 3
    s_add_u32 s{S_TMP}, s{S_TMP}, {KA_WQ}
    s_load_dwordx2 s[{SRD_A}:{SRD_A + 1}], s[0:1], s{S_TMP}
    s_mov_b32 s{SRD_A + 2}, {576 * 8192}
    s_mov_b32 s{SRD_A + 3}, 0x00020000
    s_lshl_b32 s{sK1}, s{sHD}, 8
    s_lshl_b32 s{S_TMP}, s{sHALF}, 7
    s_add_u32 s{sK1}, s{sK1}, s{S_TMP}
    """)
    if PLDW:
        a(f"s_cmp_eq_u32 s{sLAY}, 0")
        a("s_cbranch_scc1 Lp_noord")
        dbg_wait(a, DB_STEP0 if GATE0 & 2 else DB_LOADED, PLDW, vT0, vT1, abort, "Lp_ord", 64)
        a.label("Lp_noord")
    lane = vT0
    a(f"""
    v_lshrrev_b32 v{lane}, 4, v{vL16}
    v_lshrrev_b32 v{vGA}, 3, v{lane}
    v_lshlrev_b32 v{vGA}, 13, v{vGA}
    v_and_b32 v{vT1}, 7, v{lane}
    v_lshl_add_u32 v{vGA}, v{vT1}, 4, v{vGA}
    v_lshrrev_b32 v{vTR}, 1, v{vG}
    v_lshlrev_b32 v{vTR}, 3, v{vTR}
    v_lshrrev_b32 v{vT1}, 2, v{vC}
    v_add_u32 v{vTR}, v{vTR}, v{vT1}
    v_lshlrev_b32 v{vTR}, 7, v{vTR}
    s_lshl_b32 s{S_TMP}, s{S_WAVE}, 15
    v_add_u32 v{vTR}, s{S_TMP}, v{vTR}
    v_and_b32 v{vO}, 1, v{vG}
    v_and_b32 v{vT1}, 1, v{vC}
    v_lshlrev_b32 v{vT1}, 3, v{vT1}
    v_lshl_add_u32 v{vT1}, v{vO}, 4, v{vT1}
    v_bfe_u32 v{vXA}, v{vC}, 1, 1
    v_lshl_add_u32 v{vT1}, v{vXA}, 5, v{vT1}
    v_and_b32 v{vXA}, 3, v{vC}
    v_lshlrev_b32 v{vXA}, 3, v{vXA}
    v_lshl_add_u32 v{vO}, v{vO}, 5, v{vXA}
    s_cmp_eq_u32 s{sM}, 2
    s_cselect_b64 vcc, -1, 0
    v_cndmask_b32 v{vT1}, v{vT1}, v{vO}, vcc
    v_add_u32 v{vTR}, v{vTR}, v{vT1}
    """)
    a.force_wait(lg=0)
    a(f"s_and_b32 s{SRD_A + 1}, s{SRD_A + 1}, 0xffff")
    A_ = f"s[{SRD_A}:{SRD_A + 3}]"
    NSL = 32

    def dma(i):
        a(f"s_add_u32 m0, s{sO1}, {(i % NSL) * 1024}")
        a(f"s_add_u32 s{S_TMP}, s{sK1}, {8 * i * 8192}")
        a(f"buffer_load_dwordx4 v{vGA}, {A_}, s{S_TMP} offen lds", tag="wd")
    a(f"s_lshl_b32 s{sO1}, s{S_WAVE}, 15")
    for i in range(NSL):
        dma(i)
    for t in range(36):
        issued = min(72, NSL + 2 * t)
        a.force_wait(vm=issued - (2 * t + 2))
        for T in range(2):
            w = W(T, t)
            k, b = w[0], int(w[2:].split(":")[0])
            for hh in range(2):
                a(f"ds_read_b64_tr_b16 {k}[{b + 2 * hh}:{b + 2 * hh + 1}], v{vTR} offset:{(t % 16) * 2048 + T * 64 + hh * 512}")
        if issued < 72:
            a.force_wait(lg=0)
            dma(issued)
            dma(issued + 1)
    a.force_wait(vm=0, lg=0)
    a(f"""
    v_bfe_u32 v{vSTA}, v{vL16}, 4, 5
    v_lshrrev_b32 v{vT0}, 9, v{vL16}
    v_lshlrev_b32 v{vSTA}, 4, v{vSTA}
    v_mul_u32_u24 v{vT1}, 2560, v{vT0}
    v_add_u32 v{vSTA}, v{vSTA}, v{vT1}
    v_add_u32 v{vSTA}, {STB3}, v{vSTA}
    s_lshl_b32 s{sW1K}, s{S_WAVE}, 10
    v_bfe_u32 v{vT1}, v{vL16}, 8, 1
    v_lshlrev_b32 v{vO}, 10, v{vT1}
    v_lshl_add_u32 v{vO}, v{vC}, 4, v{vO}
    v_lshl_add_u32 v{vO}, v{vT0}, 8, v{vO}
    v_mov_b32 v{PUB}, 1
    v_mov_b32 v{PUB + 1}, 1
    s_mul_i32 s{sK4}, s{sM}, {QKV_M}
    s_lshl_b32 s{S_TMP}, s{sHD}, 13
    s_add_u32 s{sK4}, s{sK4}, s{S_TMP}
    s_lshl_b32 s{S_TMP}, s{sHALF}, 12
    s_add_u32 s{sK4}, s{sK4}, s{S_TMP}
    s_add_u32 s{sK4}, s{sK4}, {WS_QKV}
    s_lshl_b32 s{sK1}, s{sHD}, 9
    s_lshl_b32 s{S_TMP}, s{sM}, 7
    s_add_u32 s{sK1}, s{sK1}, s{S_TMP}
    s_lshl_b32 s{S_TMP}, s{sHALF}, 3
    s_add_u32 s{sK1}, s{sK1}, s{S_TMP}
    s_add_u32 s{sK1}, s{sK1}, {WS_FLAGS + FL_QKV}
    v_mov_b32 v{RING[0]}, 0x3f803f80
    v_mov_b32 v{RING[0] + 1}, 0x3f803f80
    v_mov_b32 v{RING[0] + 2}, 0x3f803f80
    v_mov_b32 v{RING[0] + 3}, 0x3f803f80
    s_lshl_b32 s{S_TMP}, s{S_WAVE}, 8
    s_add_u32 s{S_TMP}, s{S_TMP}, {3 * XBUF}
    v_bfe_u32 v{vT0}, v{vL16}, 4, 5
    v_lshl_add_u32 v{vLDS}, v{vT0}, 2, s{S_TMP}
    v_lshrrev_b32 v{vT0}, 9, v{vL16}
    v_lshl_add_u32 v{vL2}, v{vT0}, 4, s{S_TMP}
    s_cmp_eq_u32 s{sM}, 2
    s_cbranch_scc1 Lp_v
    """)
    for swap in (0, 1):
        nm = "LpV" if swap else "LpQ"
        if swap:
            a.label("Lp_v")
            a.restore(([], []))
        for T in range(2):
            for t in range(36):
                w, o = W(T, t), vr(RING[0], 4)
                a(MF32(ACC[T] if swap else CS[T], o if swap else w, w if swap else o, "0" if t == 0 else None))
        if swap:
            a(f"v_mov_b32 v{vCS0}, v{ACC[0]}")
            a(f"v_mov_b32 v{vCS1}, v{ACC[1]}")

        def epi_ops(T, swap=swap):
            ops = []
            acc = ACC[T]
            tt = TT[T]
            for k in range(2):
                regs = [0, 1, 2, 3, 8, 9, 10, 11] if swap else [0, 4, 1, 5, 2, 6, 3, 7]
                regs = [r + (4 if swap else 8) * k for r in regs]
                o = OUT[T] + 4 * k
                for i in range(4):
                    for r in regs[2 * i:2 * i + 2]:
                        if swap:
                            ops.append(f"v_mul_f32 v{tt + r}, v{(vCS0, vCS1)[T]}, v{LN + 16 + r}")
                            ops.append(f"v_fma_f32 v{acc + r}, v{acc + r}, v{LN + r}, -v{tt + r}")
                        else:
                            ops.append(f"v_mul_f32 v{tt + r}, v{LN + 1}, v{CS[T] + r}")
                            ops.append(f"v_fma_f32 v{acc + r}, v{acc + r}, v{LN}, -v{tt + r}")
                    ops.append(f"v_cvt_pk_bf16_f32 v{o + i}, v{acc + regs[2 * i]}, v{acc + regs[2 * i + 1]}")
                ops.append(("st", f"buffer_store_dwordx4 {vr(o, 4)}, v{vO}, {WS}, s{sO1} offen offset:{2048 * T + 512 * k} sc1"))
            return ops

        def compute(start, decide, vm, swap=swap):
            a(f"v_add_u32 v{vXA}, s{sBUF}, v{vL16}")
            a(f"v_add_u32 v{vT0}, s{sCSB}, v{vSTA}")

            def rd(t):
                return f"ds_read_b128 {vr(RING[t % NRG], 4)}, v{vXA} offset:{t * 1024}"
            for t in range(PPF):
                a(rd(t))
            st_rd = [f"ds_read_b128 {vr(STR + 4 * i, 4)}, v{vT0} offset:{512 * i}" for i in range(5)]
            sm = st_rd + [None] * 2 + stats_math(STR, LN, LN + 1)
            if swap:
                sm += [f"ds_write2_b32 v{vLDS}, v{LN}, v{LN + 1} offset0:0 offset1:32"]
                sm += [f"ds_read_b128 {vr(LN + 4 * i, 4)}, v{vL2} offset:{(i >> 2) * 128 + (i & 3) * 32}" for i in range(8)]
            sm += [f"s_mul_i32 s{sO1}, s{sCL}, {3 * QKV_M}", f"s_lshl_b32 s{S_TMP + 2}, s{sCS}, 18",
                   f"s_add_u32 s{sO1}, s{sO1}, s{S_TMP + 2}", f"s_add_u32 s{sO1}, s{sO1}, s{sK4}"]
            vm = list(vm)
            e0 = epi_ops(0)
            slots = []
            for u in range(36 + PD):
                if u < 36:
                    slots.append((0, u))
                if u >= PD:
                    slots.append((1, u - PD))
            last0 = slots.index((0, 35))
            for si, (T, t) in enumerate(slots):
                x, w = vr(RING[t % NRG], 4), W(T, t)
                a(MF32(ACC[T], x if swap else w, w if swap else x, "0" if t == 0 else None))
                if T == 0 and t + PPF < 36:
                    a(rd(t + PPF))
                k = 2
                if si == PST:
                    start(); k = 0
                elif si == PDEC:
                    decide(); k = 0
                elif si > PDEC and vm and si % 2 == 0:
                    seq(a, vm.pop(0)); k = 0
                while sm and k > 0:
                    seq(a, sm.pop(0)); k -= 1
                if si >= last0 + 3:
                    k = 5
                    while e0 and k > 0:
                        op = e0.pop(0)
                        if isinstance(op, tuple):
                            a(op[1], tag="st")
                        else:
                            a(op)
                        k -= 1
            assert not vm and not sm
            for op in e0 + epi_ops(1):
                if isinstance(op, tuple):
                    a(op[1], tag="st")
                else:
                    a(op)

        def out_flag():
            a(f"s_mul_i32 s{sPEND}, s{sCO}, {FL_STRIDE}")
            a(f"s_add_u32 s{sPEND}, s{sPEND}, s{sK1}")

        a(f"s_mov_b32 s{sSB}, {STB3}")
        a(f"s_mov_b32 s{sCSB}, 0x2000")
        seq_loop(a, nm, abort, done, WS_X + X_BYTES, 2 * X_BYTES, FL_XB,
                 lambda sr_: stats_dma(WS_ST + ST_BYTES, sr_), compute, out_flag, 4, sLAY, pub2=PUB, DBGW=10, nflags=18)
```

```python
from common import *
import os, struct

L_MEMA = 0
L_KX = 9216
ROWS = 288
L_QB = 17408
L_KB = L_QB + 8 * ROWS
L_OB = L_KB + 8 * ROWS
L_WO1 = 24576
L_W = 57344
LW_WAVE = 26624
assert L_OB + 8 * ROWS <= L_WO1 and L_W + 4 * LW_WAVE == 163840
PART_W = 2304

vL16, vIDX, vQW, vQR, vOR, vSPARE, vRLD, vRST, vL4, vLW = range(10)
vT0, vT1 = 10, 11
ACCQ, ACCK, ACCV = 12, 20, 28
VXA, VXB = 36, 40
Q = [44 + 4 * i for i in range(7)]
WR = [Q[3], Q[5]]
vSPARE2 = vRLD
WBASE = 72

sH = S_ROLE
sLAY = S_FREE
sSTEP = S_FREE + 1
sMEMR = S_FREE + 2
sMEMR8 = S_FREE + 3
sMEMW = S_FREE + 4
sMEMZ = S_FREE + 5
sPW = S_FREE + 6
sPH = S_FREE + 7
sKP = S_FREE + 8
sKF = S_FREE + 9
sVF = S_FREE + 10
sKM = S_FREE + 11
sFL = S_FREE + 12
sKMB = S_FREE + 13
sKPH = S_FREE + 34
sFMK = S_FREE + 46
sKPV = S_FREE + 24
sOFL = S_FREE + 35
sCEXP = S_FREE + 14
sMAXD = S_FREE + 22
sFAST = S_FREE + 23
sMASK = S_FREE + 18
sMLO = S_FREE + 20
sU = S_FREE + 16
sT = S_FREE + 25
sPR = sT
sJOBC = S_FREE + 30
sONES = S_FREE + 36
sM = S_FREE + 38
SRD_D = 80
S_STAMP = 80

MATS = "qkv"
D1 = [int(x) for x in os.environ.get("D1", "5,5,5").split(",")]
D2 = int(os.environ.get("D2", "2"))
R1LDW = int(os.environ.get("R1LDW", "16"))
WOD = int(os.environ.get("WOD", "3"))
NOPUB = int(os.environ.get("NOPUB", "0"))
NOKV = int(os.environ.get("NOKV", "0"))
PFD = int(os.environ.get("PFD", "1"))
RFREE = int(os.environ.get("RFREE", "0"))
TORD = [8, 0, 1, 2, 3, 4, 5, 6, 7]
WO_L = [(TORD[i >> 1], i & 1) for i in (0, 1, 5, 6, 10, 11, 15, 16)]


def f32bits(x):
    return struct.unpack("<I", struct.pack("<f", x))[0]


def build_frag_map():
    fm = {}
    regs = [("v", WBASE + 8 * i) for i in range(23)] + [("a", 8 * i) for i in range(32)]
    ri = 0
    for t in range(9):
        for m in MATS:
            for b in range(2):
                if m == "k" and b == 1:
                    fm[(m, b, t)] = ("l", "W", t)
                else:
                    fm[(m, b, t)] = regs[ri]; ri += 1
    n0 = n1 = 0
    for tau in range(9):
        for ks in range(2):
            if (tau, ks) in WO_L:
                if ks == 0:
                    fm[("o", tau, ks)] = ("l", "W", 9 + n0); n0 += 1
                else:
                    fm[("o", tau, ks)] = ("l", "O", n1); n1 += 1
            else:
                fm[("o", tau, ks)] = regs[ri]; ri += 1
    assert ri == 55 and n0 == 4 and n1 == 4
    return fm


FM = build_frag_map()


def opnd(loc, n=8, off=0):
    k, b = loc[0], loc[1]
    return (vr if k == "v" else ar)(b + off, n)


def lds_addr(loc, w):
    if loc[1] == "W":
        return vLW, loc[2] * 2048
    return vL16, L_WO1 + w * 8192 + loc[2] * 2048


def lw_read(dst, loc, w):
    r, off = lds_addr(loc, w)
    return [f"ds_read_b128 {vr(dst, 4)}, v{r} offset:{off}", f"ds_read_b128 {vr(dst + 4, 4)}, v{r} offset:{off + 1024}"]


def SM(acc, A, B):
    return f"v_smfmac_f32_16x16x64_bf16 {vr(acc, 4)}, {vr(A, 4)}, {B}, v{vIDX}"


def r_setup(a):
    LANE, C, G = 10, 60, 61
    WS = f"s[{SRD_WS}:{SRD_WS + 3}]"
    cexp = hex(f32bits(128 ** -0.5 * 1.4426950408889634))
    a(f"""
    v_and_b32 v{LANE}, 63, v0
    v_and_b32 v{C}, 15, v{LANE}
    v_lshrrev_b32 v{G}, 4, v{LANE}
    v_lshlrev_b32 v{vL16}, 4, v{LANE}
    v_lshlrev_b32 v{vL4}, 2, v{LANE}
    s_mul_i32 s{S_TMP}, s{S_WAVE}, {LW_WAVE}
    s_add_u32 s{S_TMP}, s{S_TMP}, {L_W}
    v_add_u32 v{vLW}, s{S_TMP}, v{vL16}
    s_mov_b32 s{sMAXD}, 0xfffffffe
    s_mov_b32 s{sCEXP}, {cexp}
    s_mov_b32 s{sCEXP + 1}, {cexp}
    s_mov_b32 s{sMASK}, 0x00ff00ff
    s_mov_b32 s{sMASK + 1}, 0x00ff00ff
    s_mov_b32 s{sMLO}, -1
    s_mov_b32 s{sMLO + 1}, 0
    s_mov_b32 s{sONES}, 0x3f803f80
    s_mov_b32 s{sONES + 1}, 0x3f803f80
    s_mov_b32 s{sPH}, 0
    v_lshrrev_b32 v63, 2, v{C}
    v_and_b32 v64, 1, v{C}
    v_lshl_add_u32 v62, v63, 1, v64
    v_bfe_u32 v65, v{C}, 1, 1
    v_mov_b32 v{vIDX}, 0x4444
    v_mov_b32 v63, 0xeeee
    v_cmp_eq_u32 vcc, 0, v65
    v_cndmask_b32 v{vIDX}, v63, v{vIDX}, vcc
    v_mul_u32_u24 v63, {2 * ROWS}, v{G}
    v_lshl_add_u32 v{vQW}, v{C}, 2, v63
    s_lshl_b32 s{S_TMP}, s{S_WAVE}, 6
    v_add_u32 v{vQW}, s{S_TMP}, v{vQW}
    v_mul_u32_u24 v63, {ROWS}, v62
    v_lshl_add_u32 v{vQR}, v{G}, 4, v63
    v_lshl_add_u32 v{vOR}, v{G}, 5, v63
    v_lshl_add_u32 v{vOR}, v65, 4, v{vOR}
    """)
    WP, GO, CH, UO, MB = sT, sT + 1, sT + 2, sT + 3, sT + 4
    M0A, M0B = 66, 67
    a(f"""
    s_lshr_b32 s{WP}, s{sH}, 3
    s_bfe_u32 s{GO}, s{sH}, 0x20001
    s_and_b32 s{CH}, s{sH}, 1
    s_cmp_lt_u32 s{S_WAVE}, 2
    s_cbranch_scc1 Lr_jab
    s_lshr_b32 s{WP}, s{sH}, 1
    s_and_b32 s{WP}, s{WP}, 3
    Lr_jab:
    s_cmp_lt_u32 s{sH}, 8
    s_cselect_b32 s{sJOBC}, 1, 0
    v_bfe_u32 v64, v{C}, 2, 1
    v_lshl_add_u32 v63, v64, 2, v{G}
    v_mul_u32_u24 v63, {PART_H}, v63
    v_lshrrev_b32 v65, 3, v{C}
    v_lshlrev_b32 v65, 2, v65
    v_and_b32 v64, 3, v{C}
    v_add_u32 v65, v65, v64
    v_lshl_add_u32 v{vRLD}, v65, 4, v63
    s_mul_i32 s{S_TMP}, s{WP}, {PART_W}
    s_lshl_b32 s{S_TMP + 1}, s{S_WAVE}, 10
    s_add_u32 s{S_TMP}, s{S_TMP}, s{S_TMP + 1}
    s_lshl_b32 s{S_TMP + 1}, s{CH}, 7
    s_add_u32 s{S_TMP}, s{S_TMP}, s{S_TMP + 1}
    s_lshl_b32 s{S_TMP + 1}, s{GO}, 8
    s_cmp_lt_u32 s{S_WAVE}, 2
    s_cselect_b32 s{S_TMP + 1}, s{S_TMP + 1}, 0
    s_add_u32 s{S_TMP}, s{S_TMP}, s{S_TMP + 1}
    v_add_u32 v{vRLD}, s{S_TMP}, v{vRLD}
    """)
    HI, RR, G1, G0 = 62, 63, 64, 65
    a(f"""
    v_bfe_u32 v{HI}, v{C}, 1, 2
    v_and_b32 v{RR}, 1, v{C}
    v_lshrrev_b32 v{G1}, 1, v{G}
    v_and_b32 v{G0}, 1, v{G}
    s_cmp_lt_u32 s{S_WAVE}, 2
    s_cbranch_scc0 Lr_jc
    s_lshl_b32 s{S_TMP}, s{S_WAVE}, 2
    v_add_u32 v68, s{S_TMP}, v{HI}
    v_lshlrev_b32 v{vRST}, 10, v68
    v_lshl_add_u32 v69, v{G0}, 1, v{RR}
    s_lshl_b32 s{S_TMP}, s{WP}, 4
    s_lshl_b32 s{S_TMP + 1}, s{GO}, 2
    s_add_u32 s{S_TMP}, s{S_TMP}, s{S_TMP + 1}
    v_add_u32 v69, s{S_TMP}, v69
    v_lshl_add_u32 v{vRST}, v69, 4, v{vRST}
    s_lshl_b32 s{S_TMP}, s{CH}, 1
    v_add_u32 v69, s{S_TMP}, v{G1}
    v_lshl_add_u32 v{vRST}, v69, 2, v{vRST}
    s_lshl_b32 s{S_TMP}, s{GO}, 1
    v_add_u32 v69, s{S_TMP}, v{RR}
    v_mul_u32_u24 v69, 576, v69
    v_lshl_add_u32 v69, v68, 4, v69
    v_lshl_add_u32 v69, v{G}, 1, v69
    s_mul_i32 s{S_TMP}, s{WP}, 144
    s_lshl_b32 s{S_TMP + 1}, s{CH}, 3
    s_add_u32 s{S_TMP}, s{S_TMP}, s{S_TMP + 1}
    v_add_u32 v69, s{S_TMP}, v69
    v_lshlrev_b32 v{M0A}, 1, v69
    v_add_u32 v{M0B}, 2, v{M0A}
    s_branch Lr_jd
    Lr_jc:
    s_lshl_b32 s{S_TMP}, s{CH}, 1
    v_add_u32 v68, s{S_TMP}, v{G1}
    v_lshlrev_b32 v69, 2, v68
    v_lshl_add_u32 v69, v{G0}, 1, v69
    v_add_u32 v69, v69, v{RR}
    s_lshl_b32 s{S_TMP}, s{WP}, 4
    v_add_u32 v69, s{S_TMP}, v69
    v_lshlrev_b32 v{vRST}, 4, v69
    v_lshl_add_u32 v{vRST}, v{HI}, 2, v{vRST}
    v_add_u32 v{vRST}, 8192, v{vRST}
    v_lshl_add_u32 v69, v68, 1, v{RR}
    v_mul_u32_u24 v69, 576, v69
    v_lshl_add_u32 v69, v{G0}, 3, v69
    v_add_u32 v69, v69, v{HI}
    s_mul_i32 s{S_TMP}, s{WP}, 144
    s_add_u32 s{S_TMP}, s{S_TMP}, 128
    v_add_u32 v69, s{S_TMP}, v69
    v_lshlrev_b32 v{M0A}, 1, v69
    v_add_u32 v{M0B}, 8, v{M0A}
    Lr_jd:
    """)
    a(f"""
    s_mul_i32 s{sU}, s{sLAY}, {RING_TEAM}
    s_add_u32 s{sU}, s{sU}, {WS_RING}
    s_lshl_b32 s{S_TMP + 1}, s{S_WAVE}, 11
    s_lshl_b32 s{S_TMP + 2}, s{S_WAVE}, 8
    s_add_u32 s{S_TMP + 2}, s{S_TMP + 2}, 8192
    s_mul_i32 s{S_TMP}, s{sH}, {PART_H}
    s_add_u32 s{S_TMP}, s{S_TMP}, s{sU}
    s_mul_i32 s{sPW}, s{S_WAVE}, {PART_W}
    s_add_u32 s{sPW}, s{sPW}, s{S_TMP}
    s_add_u32 s{sMEMZ}, s{sU}, {MEMB_OFF}
    s_xor_b32 s{sMEMW}, s{sMEMZ}, {MEMB_SLOT}
    s_add_u32 s{sMEMR}, s{sMEMZ}, s{S_TMP + 1}
    s_add_u32 s{sMEMR8}, s{sMEMZ}, s{S_TMP + 2}
    s_mul_i32 s{S_TMP}, s{sLAY}, {3 * QKV_M}
    s_lshl_b32 s{S_TMP + 2}, s{sH}, 13
    s_add_u32 s{S_TMP}, s{S_TMP}, s{S_TMP + 2}
    s_add_u32 s{sKP}, s{S_TMP}, {WS_QKV + QKV_M + PFD * 32 * 8192}
    s_add_u32 s{S_TMP}, s{S_TMP}, s{S_TMP + 1}
    s_add_u32 s{sKF}, s{S_TMP}, {WS_QKV + QKV_M}
    s_add_u32 s{sVF}, s{S_TMP}, {WS_QKV + 2 * QKV_M}
    s_mul_i32 s{S_TMP}, s{sLAY}, {KM_D * 32 * KM_UNIT}
    s_lshl_b32 s{S_TMP + 2}, s{sH}, 12
    s_add_u32 s{S_TMP}, s{S_TMP}, s{S_TMP + 2}
    s_lshl_b32 s{S_TMP + 2}, s{S_WAVE}, 9
    s_add_u32 s{S_TMP}, s{S_TMP}, s{S_TMP + 2}
    s_add_u32 s{sKMB}, s{S_TMP}, {WS_KM}
    s_mov_b32 s{sKM}, s{sKMB}
    s_mov_b32 s{sKPH}, 0
    s_mul_i32 s{S_TMP}, s{sLAY}, {NSEG * FL_STRIDE}
    s_lshr_b32 s{S_TMP + 2}, s{sH}, 2
    s_lshl_b32 s{S_TMP + 2}, s{S_TMP + 2}, 7
    s_add_u32 s{S_TMP}, s{S_TMP}, s{S_TMP + 2}
    s_and_b32 s{S_TMP + 2}, s{sH}, 3
    s_lshl_b32 s{S_TMP + 2}, s{S_TMP + 2}, 2
    s_add_u32 s{S_TMP}, s{S_TMP}, s{S_TMP + 2}
    s_add_u32 s{sOFL}, s{S_TMP}, {WS_FLAGS + FL_OF - (KM_D - 1) * FL_STRIDE}
    s_mov_b32 s{sFMK}, 0xff
    s_mov_b32 s{sFMK + 1}, 0
    s_mul_i32 s{S_TMP}, s{sLAY}, {NSEG * FL_STRIDE}
    s_lshl_b32 s{S_TMP + 2}, s{sH}, 9
    s_add_u32 s{S_TMP}, s{S_TMP}, s{S_TMP + 2}
    s_add_u32 s{sFL}, s{S_TMP}, {WS_FLAGS + FL_QKV}
    s_mov_b32 s{sSTEP}, 0
    """)
    srd(a, SRD_A, KA_MEM0, 9216)
    A_ = f"s[{SRD_A}:{SRD_A + 3}]"
    a(f"""
    s_cmp_eq_u32 s{S_WAVE}, 3
    s_cbranch_scc1 Lr_mem0_done
    s_cmp_lt_u32 s{S_WAVE}, 2
    s_cselect_b32 s{S_TMP}, 1, s{sJOBC}
    s_cmp_eq_u32 s{S_TMP}, 0
    s_cbranch_scc1 Lr_mem0_done
    s_mov_b64 exec, s[{sMASK}:{sMASK + 1}]
    buffer_load_ushort v64, v{M0A}, {A_}, 0 offen
    buffer_load_ushort v65, v{M0B}, {A_}, 0 offen
    v_lshl_or_b32 v64, v65, 16, v64
    v_min_u32 v64, s{sMAXD}, v64
    buffer_store_dword v64, v{vRST}, {WS}, s{sMEMZ} offen sc1
    v_mov_b32 v64, -1
    buffer_store_dword v64, v{vRST}, {WS}, s{sMEMW} offen sc1
    s_mov_b64 exec, -1
    Lr_mem0_done:
    v_mov_b32 v64, 1
    v_mov_b32 v65, 1
    v_mov_b32 v66, 1
    v_mov_b32 v67, 1
    s_xor_b32 s{S_TMP}, s{sPW}, {PART_SLOT}
    """)
    for sreg in (sPW, S_TMP):
        for i in range(2):
            a(f"buffer_store_dwordx4 v[64:67], v{vL16}, {WS}, s{sreg} offen offset:{1024 * i} sc1")
        a(f"buffer_store_dword v64, v{vL4}, {WS}, s{sreg} offen offset:2048 sc1")
    a(f"v_lshrrev_b32 v63, 1, v{vL16}")
    a(f"s_mov_b32 s{S_TMP}, s{sKMB}")
    for i in range(KM_D):
        a(f"buffer_store_dwordx2 v[64:65], v63, {WS}, s{S_TMP} offen offset:2048 sc1")
        a(f"s_mov_b64 exec, s[{sMLO}:{sMLO + 1}]")
        a(f"buffer_store_dwordx4 v[64:67], v{vL16}, {WS}, s{S_TMP} offen sc1")
        a(f"s_mov_b64 exec, -1")
        a(f"s_add_u32 s{S_TMP}, s{S_TMP}, {32 * KM_UNIT}")
    a(f"""
    s_cmp_lg_u32 s{S_WAVE}, 3
    s_cbranch_scc1 Lr_not_w3
    v_and_b32 v{vRST}, 12, v{vL4}
    v_and_b32 v63, 4, v{LANE}
    v_lshl_add_u32 v{vRST}, v63, 5, v{vRST}
    s_add_u32 s{S_TMP}, s{sFL}, {FL_STRIDE + 128}
    s_sub_u32 s{S_TMP}, s{S_TMP}, s{sOFL}
    v_add_u32 v{vRST}, s{S_TMP}, v{vRST}
    v_cmp_gt_u32 vcc, 8, v{LANE}
    v_cndmask_b32 v{vRST}, 0, v{vRST}, vcc
    Lr_not_w3:
    v_lshlrev_b32 v{vSPARE}, 3, v{vL16}
    s_add_u32 s{sKPV}, s{sKP}, {QKV_M}
    """)
    if R1LDW:
        a(f"s_cmp_eq_u32 s{sLAY}, 0")
        a("s_cbranch_scc1 Lr_noord")
        dbg_wait(a, DB_LOADED, R1LDW, 63, 64, "Lr_abort", "Lr_ord", 32)
        a.label("Lr_noord")
    load_weights(a, LANE, C, G)
    a(f"s_add_u32 s{S_TMP}, s{sLAY}, s{S_WAVE}")
    a(f"s_cmp_lg_u32 s{S_TMP}, 0")
    a("s_cbranch_scc1 Lr_nold")
    dbg_add(a, DB_LOADED, 63, 64)
    a.label("Lr_nold")
    for i in range(4):
        a(f"s_add_u32 s{sPR + i}, s{sU}, {i * 8 * PART_H}")


def load_weights(a, LANE, C, G):
    srd(a, SRD_A, KA_WQ, 576 * 8192)
    srd(a, SRD_B, KA_WK, 576 * 8192)
    srd(a, SRD_C, KA_WV, 576 * 8192)
    srd(a, SRD_D, KA_BWO, 4096 * 1152)
    SR = {"q": SRD_A, "k": SRD_B, "v": SRD_C}
    GA, GB, G8A, G8B, TR0, TR1, TRA, TRB, TRW = 62, 63, 64, 65, 66, 67, 68, 69, 70
    WA = 50
    sRow, sLB, sWo = sT, sT + 1, sT + 2
    a(f"""
    v_lshlrev_b32 v71, 1, v{G}
    v_xor_b32 v71, v71, v{C}
    v_lshlrev_b32 v71, 4, v71
    v_lshl_add_u32 v{GA}, v{G}, 13, v71
    v_xor_b32 v{GB}, 128, v{GA}
    v_lshrrev_b32 v{G8A}, 1, v{G}
    v_lshlrev_b32 v{G8A}, 3, v{G8A}
    v_and_b32 v{G8B}, 1, v{G}
    v_lshl_add_u32 v{G8A}, v{G8B}, 2, v{G8A}
    v_lshl_add_u32 v{G8A}, v{G8A}, 13, v71
    v_xor_b32 v{G8B}, 128, v{G8A}
    s_mul_i32 s{sRow}, s{S_WAVE}, {144 * 8192}
    s_lshl_b32 s{S_TMP}, s{sH}, 8
    s_add_u32 s{sRow}, s{sRow}, s{S_TMP}
    s_lshl_b32 s{sLB}, s{S_WAVE}, 12
    """)
    a(f"""
    v_lshrrev_b32 v71, 2, v{C}
    v_lshl_add_u32 v{TR0}, v{G}, 3, v71
    v_lshlrev_b32 v{TR0}, 8, v{TR0}
    v_bfe_u32 v{TR1}, v{C}, 1, 1
    s_lshl_b32 s{S_TMP}, s{S_WAVE}, 2
    v_add_u32 v{TR1}, s{S_TMP}, v{TR1}
    v_lshlrev_b32 v71, 1, v71
    v_xor_b32 v{TR1}, v{TR1}, v71
    v_and_b32 v71, 1, v{G}
    v_lshlrev_b32 v71, 3, v71
    v_xor_b32 v{TR1}, v{TR1}, v71
    v_and_b32 v71, 1, v{C}
    v_lshl_add_u32 v{TR0}, v71, 3, v{TR0}
    v_xor_b32 v71, 2, v{TR1}
    v_lshl_add_u32 v{TR1}, v71, 4, v{TR0}
    v_xor_b32 v71, 2, v71
    v_lshl_add_u32 v{TR0}, v71, 4, v{TR0}
    """)
    tiles = [(m, t) for t in range(9) for m in MATS]
    wo_regs = [FM[k] for k in FM if k[0] == "o" and FM[k][0] != "l"]
    park = {}
    for t in range(9):
        park[("k", 1, t)] = wo_regs[t]
    NT = len(tiles)

    def slot(i):
        return ((i + 3) % 10) * 16384

    def dma(i):
        m, t = tiles[i]
        S = f"s[{SR[m]}:{SR[m] + 3}]"
        for j in range(4):
            a(f"s_add_u32 m0, s{sLB}, {slot(i) + j * 1024}")
            if t < 8:
                a(f"s_add_u32 s{S_TMP}, s{sRow}, {(16 * t + 4 * j) * 8192}")
                g = GA if j < 2 else GB
            else:
                a(f"s_add_u32 s{S_TMP}, s{sRow}, {(128 + j) * 8192}")
                g = G8A if j < 2 else G8B
            a(f"buffer_load_dwordx4 v{g}, {S}, s{S_TMP} offen lds")

    stages = [(ks, hf, qq) for ks in range(2) for hf in range(2) for qq in range(2)]
    STG = 18432

    def wo_prep():
        for j in range(5):
            a(f"v_add_u32 v71, {64 * j}, v{LANE}")
            a(f"v_mul_u32_u24 v59, {(65536 + 71) // 72}, v71")
            a(f"v_lshrrev_b32 v59, 16, v59")
            a(f"v_mul_u32_u24 v60, 72, v59")
            a(f"v_sub_u32 v71, v71, v60")
            a(f"v_and_b32 v60, 1, v59")
            a(f"v_lshlrev_b32 v60, 4, v60")
            a(f"v_lshrrev_b32 v59, 1, v59")
            a(f"v_lshl_add_u32 v60, v59, 2, v60")
            a(f"v_mul_u32_u24 v60, 1152, v60")
            a(f"v_lshl_add_u32 v{WA + j}, v71, 4, v60")
        a(f"""
        s_lshr_b32 s{S_TMP}, s{S_WAVE}, 1
        s_lshl_b32 s{S_TMP}, s{S_TMP}, 3
        s_and_b32 s{S_TMP + 1}, s{S_WAVE}, 1
        s_lshl_b32 s{S_TMP + 1}, s{S_TMP + 1}, 1
        s_add_u32 s{S_TMP}, s{S_TMP}, s{S_TMP + 1}
        s_lshl_b32 s{S_TMP + 1}, s{sH}, 7
        s_add_u32 s{S_TMP}, s{S_TMP}, s{S_TMP + 1}
        s_mul_i32 s{sWo}, s{S_TMP}, 1152
        s_mul_i32 s{sT + 3}, s{S_WAVE}, {4 * 1152}
        """)

    def wo_dma(z):
        ks, hf, qq = stages[z]
        base = (z % 3) * STG
        W_ = f"s[{SRD_D}:{SRD_D + 3}]"
        a(f"s_add_u32 s{S_TMP}, s{sWo}, {(64 * ks + 32 * hf + qq) * 1152}")
        for j in range(5):
            a(f"s_add_u32 m0, s{sT + 3}, {base + j * 1024}")
            if j == 4:
                a(f"s_mov_b64 exec, s[{sMLO}:{sMLO + 1}]")
            else:
                a("s_nop 0")
            a(f"buffer_load_dwordx4 v{WA + j}, {W_}, s{S_TMP} offen lds")
        a("s_mov_b64 exec, -1")

    a(f"""
    v_lshrrev_b32 v71, 2, v{C}
    v_lshl_add_u32 v{TRW}, v{G}, 2, v71
    v_mul_u32_u24 v{TRW}, 1152, v{TRW}
    v_and_b32 v71, 3, v{C}
    v_lshl_add_u32 v{TRW}, v71, 3, v{TRW}
    s_mul_i32 s{S_TMP}, s{S_WAVE}, 288
    v_add_u32 v{TRW}, s{S_TMP}, v{TRW}
    """)
    wo_prep()
    vq = []
    issued = [0]
    done_at = {}

    def issue(kind, i):
        if kind == "t":
            dma(i); issued[0] += 4
        else:
            wo_dma(i); issued[0] += 5
        done_at[(kind, i)] = issued[0]

    for i in range(9):
        issue("t", i)
    nxt_t, nxt_z = 9, 0
    for i in range(NT):
        a.force_wait(vm=min(63, issued[0] - done_at[("t", i)]))
        a("s_barrier")
        if i == 0:
            a(f"s_cmp_lg_u32 s{S_WAVE}, 0")
            a("s_cbranch_scc1 Lr_noadd")
            a(f"s_lshl_b32 s{S_TMP}, s{sLAY}, 2")
            a(f"s_add_u32 s{S_TMP}, s{S_TMP}, {DB_TEAM}")
            dbg_add(a, f"s{S_TMP}", 48, 49)
            a.label("Lr_noadd")
        if i >= 1 and nxt_t < NT:
            assert slot(nxt_t) == slot(i - 1) or nxt_t == 9
            issue("t", nxt_t); nxt_t += 1
        elif i == 0:
            issue("t", nxt_t); nxt_t += 1
        elif i >= 21 and nxt_z < 3:
            issue("z", nxt_z); nxt_z += 1
        m, t = tiles[i]
        a(f"v_add_u32 v{TRA}, {slot(i)}, v{TR0}")
        a(f"v_add_u32 v{TRB}, {slot(i)}, v{TR1}")
        for b in range(2):
            loc = park.get((m, b, t), FM[(m, b, t)])
            for q in range(4):
                a(f"ds_read_b64_tr_b16 {opnd(loc, 2, 2 * q)}, v{(TRA, TRB)[b]} offset:{(32 * (q >> 1) + 4 * (q & 1)) * 256}")
        a.wait(lg=0)
    assert nxt_t == NT and nxt_z == 3
    a("s_barrier")
    for t in range(9):
        loc = park[("k", 1, t)]
        a(f"ds_write_b128 v{vLW}, {opnd(loc, 4)} offset:{t * 2048}")
        a(f"ds_write_b128 v{vLW}, {opnd(loc, 4, 4)} offset:{t * 2048 + 1024}")
    a.wait(lg=0)
    PK = 12
    for z in range(8):
        ks, hf, qq = stages[z]
        a.force_wait(vm=min(63, issued[0] - done_at[("z", z)]))
        a("s_barrier")
        if z >= 1 and nxt_z < 8:
            assert nxt_z % 3 == (z - 1) % 3
            issue("z", nxt_z); nxt_z += 1
        q = 2 * hf + qq
        np_ = 0
        for tau in range(9):
            loc = FM[("o", tau, ks)]
            if loc[0] == "l":
                loc = ("v", PK + 8 * np_); np_ += 1
            a(f"ds_read_b64_tr_b16 {opnd(loc, 2, 2 * q)}, v{TRW} offset:{(z % 3) * STG + 32 * tau}")
        a.wait(lg=0)
        if z == 3:
            np_ = 0
            for tau in range(9):
                loc = FM[("o", tau, 0)]
                if loc[0] == "l":
                    a(f"ds_write_b128 v{vLW}, {vr(PK + 8 * np_, 4)} offset:{loc[2] * 2048}")
                    a(f"ds_write_b128 v{vLW}, {vr(PK + 8 * np_ + 4, 4)} offset:{loc[2] * 2048 + 1024}")
                    np_ += 1
            a.wait(lg=0)
    a("s_barrier")
    a(f"s_lshl_b32 s{S_TMP}, s{S_WAVE}, 13")
    a(f"v_add_u32 v71, s{S_TMP}, v{vL16}")
    np_ = 0
    for tau in range(9):
        loc = FM[("o", tau, 1)]
        if loc[0] == "l":
            a(f"ds_write_b128 v71, {vr(PK + 8 * np_, 4)} offset:{L_WO1 + loc[2] * 2048}")
            a(f"ds_write_b128 v71, {vr(PK + 8 * np_ + 4, 4)} offset:{L_WO1 + loc[2] * 2048 + 1024}")
            np_ += 1
    a.force_wait(vm=0, lg=0)
    a("s_barrier")


def flag_wait_kv(a, name, soff_extra, abort):
    if RFREE:
        return
    L = a.newlabel(name)
    a(f"s_mov_b32 s{S_SPIN}, 0")
    a(f"s_add_u32 s{S_TMP}, s{sFL}, {soff_extra + 128}")
    a(f"v_and_b32 v{vT1}, 16, v{vL4}")
    a(f"v_lshlrev_b32 v{vT1}, 3, v{vT1}")
    a(f"v_and_or_b32 v{vT1}, v{vL4}, 12, v{vT1}")
    a.label(L)
    a(f"buffer_load_dword v{vT0}, v{vT1}, s[{SRD_WS}:{SRD_WS + 3}], s{S_TMP} offen sc1")
    spin_check(a, abort)
    a(f"v_cmp_eq_u32 vcc, 0, v{vT0}")
    a(f"s_cbranch_vccz {L}d")
    a("s_sleep 4")
    a(f"s_branch {L}")
    a.label(L + "d")


def r_loop(a, w, fast, abort, done, stamps=False):
    sc = "" if fast else " sc1"
    pfx = f"Lr{w}{'f' if fast else 's'}_"
    WS = f"s[{SRD_WS}:{SRD_WS + 3}]"
    NST = 10
    HK = (w == 3)
    order = [2 * w, 2 * w + 1] + [t for t in range(8) if t >> 1 != w] + [8]

    STSEL = [int(x) for x in os.environ.get("STSEL", "0,1,2,3,4,5,6,7,8,9,10").split(",")]

    def stamp(i):
        if i not in STSEL:
            return
        if stamps == 2 or (stamps and i == NST):
            a(f"s_memrealtime s[{S_STAMP + 2 * i}:{S_STAMP + 1 + 2 * i}]")
        elif stamps:
            a(f"s_memtime s[{S_STAMP + 2 * i}:{S_STAMP + 1 + 2 * i}]")

    def dump_stamps():
        if stamps:
            a.force_wait(lg=0)
            for i in range(NST + 1):
                a(f"v_writelane_b32 v{vT1}, s{S_STAMP + 2 * i}, {i}")
            a(f"v_writelane_b32 v{vT1}, s3, 11")
            a(f"v_writelane_b32 v{vT1}, s4, 12")
            a(f"s_lshl_b32 s{S_TMP}, s{sLAY}, 5")
            a(f"s_add_u32 s{S_TMP}, s{S_TMP}, s{sH}")
            a(f"s_lshl_b32 s{S_TMP}, s{S_TMP}, 6")
            a(f"s_add_u32 s{S_TMP}, s{S_TMP}, s{sSTEP}")
            a(f"s_lshl_b32 s{S_TMP}, s{S_TMP}, 8")
            a(f"s_add_u32 s{S_TMP}, s{S_TMP}, {WS_END + w * 64}")
            a(f"s_mov_b64 exec, 0x1fff")
            a(f"buffer_store_dword v{vT1}, v{vL4}, {WS}, s{S_TMP} offen")
            a(f"s_mov_b64 exec, -1")

    def zero(base, n):
        return [f"v_mov_b64 {vr(base + 2 * i, 2)}, 0" for i in range(n // 2)]

    def seq(*items):
        for it in items:
            if isinstance(it, (list, tuple)):
                seq(*it)
            elif callable(it):
                it()
            elif it:
                a(it)

    cont = {}

    def ld(dst, name, text):
        def f():
            a(text)
            cont[dst] = name
        return f

    def use(reg, name):
        assert cont.get(reg) == name, (w, reg, name, cont.get(reg))

    def M(i):
        return f"s[{sM + 2 * i}:{sM + 2 * i + 1}]"

    def poll(name, loads, checks, between=None, issued=0):
        n = len(loads)
        L = pfx + name
        if not issued:
            seq(loads)
        a(f"s_mov_b32 s{S_SPIN}, 0")
        for i in range(n):
            a(f"s_mov_b64 {M(i)}, 0")
        a.label(L)
        a.auto = False
        for i in range(n):
            a(f"s_mov_b64 exec, {M(i)}")
            a(loads[i])
        a("s_mov_b64 exec, -1")
        spin_check(a, abort)
        for i in range(n):
            a.force_wait(vm=2 * n - 1 - i)
            seq(checks[i])
            if between:
                seq(between[i])
            if i >= 2:
                a(f"s_or_b64 vcc, {M(0) if i == 2 else 'vcc'}, {M(i - 1)}")
        a(f"s_or_b64 vcc, vcc, {M(n - 1)}")
        a(f"s_cbranch_scc1 {L}")
        a.auto = True
        a.vmq = [(frozenset(), "pollx")] * n

    def chk4(q, i):
        return [f"v_max3_u32 v{vT1}, v{q}, v{q + 1}, v{q + 2}", f"v_max_u32 v{vT1}, v{vT1}, v{q + 3}",
                f"v_cmp_eq_u32 {M(i)}, -1, v{vT1}"]

    ACC = {"q": ACCQ, "k": ACCK, "v": ACCV}

    def A_read(dst, t):
        return ld(dst, ("A", t), f"ds_read_b128 {vr(dst, 4)}, v{vL16} offset:{L_MEMA + t * 1024}")

    def LW(buf, key):
        r = lw_read(buf, FM[key], w)
        return [ld(buf, ("W", key), r[0]), ld(buf + 4, ("W2", key), r[1])]

    def S(m, b, t, A, buf=None):
        def f():
            use(A, ("A", t))
            loc = FM[(m, b, t)]
            if loc[0] == "l":
                use(buf, ("W", (m, b, t))); use(buf + 4, ("W2", (m, b, t)))
                B = vr(buf, 8)
            else:
                B = opnd(loc)
            a(SM(ACC[m] + 4 * b, A, B))
        return f

    def qB(dst, j):
        return ld(dst, ("qB", j), f"ds_read_b128 {vr(dst, 4)}, v{vQR} offset:{L_QB + j * 64}")

    def kmA(dst, j):
        return ld(dst, ("km", j), f"ds_read_b128 {vr(dst, 4)}, v{vQR} offset:{L_KB + j * 64}")

    def KX(dst, j, tt):
        return ld(dst, ("KX", j, tt), f"ds_read_b128 {vr(dst, 4)}, v{vL16} offset:{L_KX + (j * 2 + tt) * 1024}")

    def MF(acc, A, B, first, ea=None, eb=None):
        def f():
            if ea is not None:
                use(A, ea)
            if eb is not None:
                use(B, eb)
            a(f"v_mfma_f32_16x16x32_bf16 {vr(acc, 4)}, {vr(A, 4)}, {vr(B, 4)}, {'0' if first else vr(acc, 4)}")
        return f

    def MF16(acc, A, B):
        return f"v_mfma_f32_16x16x16_bf16 {vr(acc, 4)}, {vr(A, 2)}, {vr(B, 2)}, {vr(acc, 4)}"

    def xe(acc):
        X, Y = acc, acc + 4
        return [f"v_add_f32 v{X}, v{X}, v{X + 2}", f"v_add_f32 v{Y}, v{Y}, v{Y + 2}",
                f"v_add_f32 v{X + 1}, v{X + 1}, v{X + 3}", f"v_add_f32 v{Y + 1}, v{Y + 1}, v{Y + 3}",
                f"v_cvt_pk_bf16_f32 v{X + 2}, v{X}, v{Y}",
                f"v_cvt_pk_bf16_f32 v{X + 3}, v{X + 1}, v{Y + 1}"]

    def kdma(i):
        if NOKV & 1:
            return None
        return lambda: a(f"buffer_load_dwordx4 v{vL16}, {WS}, s{sKF} offen offset:{1024 * i} lds", tag="kdma")

    tails = []

    def flag_sample():
        if not RFREE:
            a(f"buffer_load_dword v{vRLD}, v{vRST}, {WS}, s{sOFL} offen sc1")

    def flag_check_prefetch():
        if not RFREE:
            a(f"v_cmp_eq_u32 vcc, 0, v{vRLD}")
            a(f"s_and_b64 vcc, vcc, s[{sFMK}:{sFMK + 1}]")
            a(f"s_cbranch_scc1 {pfx}flbad")
            wn = list(a.win)

            def flbad():
                a.label(pfx + "flbad")
                a.win = wn
                a.restore(([], []))
                a(f"s_cmp_eq_u32 s{sSTEP}, {NSEG - 1}")
                a(f"s_cbranch_scc1 {pfx}flok")
                a(f"s_mov_b32 s{S_SPIN}, 0")
                a.label(pfx + "flp")
                a(f"buffer_load_dword v{vRLD}, v{vRST}, {WS}, s{sOFL} offen sc1")
                spin_check(a, abort)
                a(f"v_cmp_eq_u32 vcc, 0, v{vRLD}")
                a(f"s_and_b64 vcc, vcc, s[{sFMK}:{sFMK + 1}]")
                a(f"s_cbranch_scc1 {pfx}flp")
                a(f"s_branch {pfx}flok")
            tails.append(flbad)
            a.label(pfx + "flok")
        if NOKV & 2:
            return
        a.auto = False
        a(f"buffer_load_dword v{vRLD}, v{vSPARE}, {WS}, s{sKP} offen", tag="pf")
        a(f"buffer_load_dword v{vRLD}, v{vSPARE}, {WS}, s{sKPV} offen", tag="pf")
        a.auto = True

    AO0, AO1, A8 = Q[0], Q[1], vT0
    loads2 = [f"buffer_load_dwordx4 {vr(AO0, 4)}, v{vL16}, {WS}, s{sMEMR} offen sc1",
              f"buffer_load_dwordx4 {vr(AO1, 4)}, v{vL16}, {WS}, s{sMEMR} offen offset:1024 sc1",
              f"buffer_load_dword v{A8}, v{vL4}, {WS}, s{sMEMR8} offen sc1"]

    def pre_step():
        seq(LW(WR[0], ("k", 1, order[0])), LW(WR[1], ("k", 1, order[1])), zero(ACCQ, 24))

    if HK:
        flag_wait_kv(a, pfx + "fw", 0, abort)
    a("s_barrier")
    a(f"s_mov_b32 m0, {L_KX + w * 2048}")
    a("s_nop 0")
    seq(kdma(0), kdma(1))
    a(f"s_add_u32 s{sKF}, s{sKF}, {32 * 8192}")
    a.wait(vm=0)
    seq(loads2)
    pre_step()
    a.wait(lg=0)
    head = pfx + "step"
    a.label(head)
    head_cont = dict(cont)
    poll("p2", loads2, [chk4(AO0, 0), chk4(AO1, 1), [f"v_cmp_eq_u32 {M(2)}, -1, v{A8}"]], issued=1)
    cont[AO0] = ("A", order[0]); cont[AO1] = ("A", order[1])
    stamp(0)
    if stamps:
        a(f"s_mov_b32 s4, s{S_SPIN}")
    ring = [Q[0], Q[1], Q[2], VXA, VXB, Q[2], Q[0], Q[1], Q[2]]

    def Ap(p):
        return ring[p]

    def qk(p, which):
        t = order[p]
        m, b = which
        return S(m, b, t, Ap(p), WR[p & 1])
    def run(slots):
        for mf, fl in slots:
            seq(mf, fl)

    def lwh(p, half):
        return LW(WR[p & 1], ("k", 1, order[p]))[half]
    run([(qk(0, ("q", 0)), [f"ds_write_b128 v{vL16}, {vr(AO0, 4)} offset:{L_MEMA + order[0] * 1024}"]),
         (qk(0, ("q", 1)), [f"ds_write_b128 v{vL16}, {vr(AO1, 4)} offset:{L_MEMA + order[1] * 1024}"]),
         (qk(0, ("k", 0)), [f"ds_write_b32 v{vL4}, v{A8} offset:{L_MEMA + 8192 + w * 256}"]),
         (qk(0, ("k", 1)), [])])
    a.barrier(lg=0)
    seq(A_read(Ap(2), order[2]))
    fl = {4: A_read(Ap(3), order[3]), 5: lwh(2, 0), 6: lwh(2, 1), 7: A_read(Ap(4), order[4]),
          9: lwh(3, 0), 10: lwh(3, 1), 12: A_read(Ap(5), order[5]),
          16: f"buffer_load_dwordx4 {vr(VXA, 4)}, v{vL16}, {WS}, s{sVF} offen",
          20: f"buffer_load_dwordx4 {vr(VXB, 4)}, v{vL16}, {WS}, s{sVF} offen offset:1024",
          19: [lambda: a.wait_tag("pollx"), A_read(Ap(6), order[6])], 23: A_read(Ap(7), order[7]), 24: A_read(Ap(8), order[8])}
    for p in range(4, 9):
        fl[4 * p - 3] = lwh(p, 0)
        fl[4 * p - 2] = lwh(p, 1)
    tail = [(7, ("q", 0)), (7, ("q", 1)), (8, ("q", 0)), (8, ("q", 1)), (7, ("k", 0)), (7, ("k", 1)), (8, ("k", 0)), (8, ("k", 1))]
    spine = [(p, mb) for p in range(7) for mb in (("q", 0), ("q", 1), ("k", 0), ("k", 1))] + tail
    if NOKV & 4:
        fl[16] = fl[20] = None
    qe, ke = xe(ACCQ), xe(ACCK)
    SX, SMm, X4 = ACCQ, ACCK + 4, ACCK
    fl[33] = [KX(Q[5], 0, 0), qe[0]]
    fl[34] = [KX(Q[6], 0, 1), qe[1]]
    fl[35] = [KX(Q[3], 1, 0), qe[2], qe[3], qe[4], qe[5]]
    if HK:
        fl[8] = [fl.get(8), flag_sample]
    for sl in range(4, 36):
        p, mb = spine[sl]
        seq(qk(p, mb), fl.get(sl))
        if sl == 7:
            stamp(1)
    seq(f"ds_write_b32 v{vQW}, v{ACCQ + 2} offset:{L_QB}",
        f"ds_write_b32 v{vQW}, v{ACCQ + 3} offset:{L_QB + ROWS}")
    stamp(2)

    def V(p, A):
        return [S("v", 0, order[p], A), S("v", 1, order[p], A)]
    run([(V(8, Q[2])[0], [KX(Q[4], 1, 1), ke[0], ke[1], ke[2], ke[3]]),
         (V(8, Q[2])[1], [A_read(ACCQ, order[0]), ke[4], ke[5],
                          f"ds_write_b32 v{vQW}, v{ACCK + 2} offset:{L_KB}",
                          f"ds_write_b32 v{vQW}, v{ACCK + 3} offset:{L_KB + ROWS}"]),
         (V(7, Q[1])[0], [A_read(ACCQ + 4, order[1])]),
         (V(7, Q[1])[1], [A_read(ACCK, order[2])]),
         (V(6, Q[0])[0], [A_read(ACCK + 4, order[3])]),
         (V(6, Q[0])[1], [])])
    a.barrier(lg=3)
    stamp(3)
    ve = [f"v_add_f32 v{ACCV}, v{ACCV}, v{ACCV + 2}", f"v_add_f32 v{ACCV + 1}, v{ACCV + 1}, v{ACCV + 3}",
          f"v_add_f32 v{ACCV + 4}, v{ACCV + 4}, v{ACCV + 6}", f"v_add_f32 v{ACCV + 5}, v{ACCV + 5}, v{ACCV + 7}",
          f"v_cvt_pk_bf16_f32 v{ACCV + 2}, v{ACCV}, v{ACCV + 1}",
          f"v_cvt_pk_bf16_f32 v{ACCV + 3}, v{ACCV + 4}, v{ACCV + 5}"]
    seq(qB(Q[0], 0))
    run([(V(0, ACCQ)[0], [A_read(Q[2], order[4])]),
         (V(0, ACCQ)[1], [kmA(ACCQ, 0)]),
         (V(1, ACCQ + 4)[0], [A_read(Q[1], order[5])]),
         (V(1, ACCQ + 4)[1], []),
         (V(2, ACCK)[0], []),
         (V(2, ACCK)[1], [qB(ACCK, 1)]),
         (V(3, ACCK + 4)[0], []),
         (V(3, ACCK + 4)[1], []),
         (V(4, Q[2])[0], []),
         (V(4, Q[2])[1], [kmA(Q[2], 1)]),
         (V(5, Q[1])[0], []),
         (V(5, Q[1])[1], [qB(Q[1], 2)])])
    PBQ = ACCV + 4
    run([(MF(SMm, ACCQ, Q[0], True, ("km", 0), ("qB", 0)), [flag_check_prefetch] if HK else []),
         (MF(SX, Q[5], Q[0], True, ("KX", 0, 0), ("qB", 0)), [KX(Q[5], 2, 0)]),
         (MF(SX + 4, Q[6], Q[0], True, ("KX", 0, 1), ("qB", 0)), [KX(Q[6], 2, 1)]),
         (MF(SMm, Q[2], ACCK, False, ("km", 1), ("qB", 1)), [kmA(Q[0], 2), ve[0], ve[1]]),
         (MF(SX, Q[3], ACCK, False, ("KX", 1, 0), ("qB", 1)), [qB(Q[2], 3), ve[2], ve[3]]),
         (MF(SX + 4, Q[4], ACCK, False, ("KX", 1, 1), ("qB", 1)), [KX(Q[3], 3, 0), ve[4], ve[5]]),
         (MF(SMm, Q[0], Q[1], False, ("km", 2), ("qB", 2)),
          [kmA(ACCK, 3), f"v_lshrrev_b32 v{vT0}, 8, v{vL16}", f"v_mul_u32_u24 v{vT0}, {ROWS}, v{vT0}"]),
         (MF(SX, Q[5], Q[1], False, ("KX", 2, 0), ("qB", 2)),
          [KX(Q[4], 3, 1), f"v_and_b32 v{vT1}, 0xf0, v{vL16}", f"v_add_u32 v{vT0}, v{vT0}, v{vT1}"]),
         (MF(SX + 4, Q[6], Q[1], False, ("KX", 2, 1), ("qB", 2)),
          [f"ds_read_b128 {vr(PBQ, 4)}, v{vT0} offset:{L_KB + 2 * w * ROWS}", f"v_lshrrev_b32 v{vT1}, 1, v{vL16}",
           f"v_bfi_b32 v{ACCV + 2}, 1, s{sKPH}, v{ACCV + 2}"]),
         (MF(SMm, ACCK, Q[2], False, ("km", 3), ("qB", 3)),
          [f"buffer_store_dwordx2 {vr(ACCV + 2, 2)}, v{vT1}, {WS}, s{sKM} offen offset:2048 sc1" if not NOPUB else None,
           f"v_mov_b32 v{Q[1] + 1}, 0", f"v_mov_b32 v{Q[1] + 2}, 0"]),
         (MF(SX, Q[3], Q[2], False, ("KX", 3, 0), ("qB", 3)),
          [f"v_mov_b64 {vr(Q[5], 2)}, s[{sONES}:{sONES + 1}]", f"v_mov_b64 {vr(Q[5] + 2, 2)}, s[{sONES}:{sONES + 1}]"]),
         (MF(SX + 4, Q[4], Q[2], False, ("KX", 3, 1), ("qB", 3)),
          [f"v_bfi_b32 v{PBQ}, 1, s{sKPH}, v{PBQ}", f"s_mov_b64 exec, s[{sMLO}:{sMLO + 1}]",
           f"buffer_store_dwordx4 {vr(PBQ, 4)}, v{vL16}, {WS}, s{sKM} offen sc1" if not NOPUB else None,
           "s_mov_b64 exec, -1"])])
    stamp(4)
    MX, T1 = vT0, vT1
    MP = X4
    LQ = Q[6]
    P4 = Q[0]
    PB = Q[1]
    OX, OY = Q[2], Q[3]
    ONES = Q[5]
    WB = [Q[4], VXA]
    wo_buf = {k: WB[i % 2] for i, k in enumerate(WO_L)}

    def wo_rd(i):
        return LW(wo_buf[WO_L[i]], ("o",) + WO_L[i])

    pf = [f"v_pk_fma_f32 {vr(b, 2)}, {vr(b, 2)}, s[{sCEXP}:{sCEXP + 1}], {vr(MP, 2)} op_sel_hi:[1,1,0] neg_lo:[0,0,1] neg_hi:[0,0,1]"
          for b in (SMm, SX, SX + 2, SX + 4, SX + 6)]
    ex = [f"v_exp_f32 v{r}, v{r}" for r in [SMm, SMm + 1] + list(range(SX, SX + 8))]
    seq(f"v_max3_f32 v{MX}, v{SMm}, v{SMm + 1}, v{SX}",
        f"v_max3_f32 v{MX}, v{MX}, v{SX + 1}, v{SX + 2}",
        f"v_max3_f32 v{MX}, v{MX}, v{SX + 3}, v{SX + 4}",
        f"v_max3_f32 v{MX}, v{MX}, v{SX + 5}, v{SX + 6}",
        f"v_max_f32 v{MX}, v{MX}, v{SX + 7}",
        f"v_mov_b32 v{T1}, v{MX}",
        f"v_permlane32_swap_b32 v{MX}, v{T1}",
        f"v_max_f32 v{MX}, v{MX}, v{T1}",
        f"v_mov_b32 v{T1}, v{MX}",
        f"v_permlane16_swap_b32 v{MX}, v{T1}",
        f"v_max_f32 v{MX}, v{MX}, v{T1}",
        f"v_mul_f32 v{MP}, s{sCEXP}, v{MX}",
        pf[0], pf[1], ex[0], ex[1], pf[2], ex[2], ex[3], pf[3],
        f"v_cvt_pk_bf16_f32 v{PB}, v{SMm}, v{SMm + 1}", ex[4], pf[4],
        f"v_cvt_pk_bf16_f32 v{PB + 3}, v{SMm}, v{SMm + 1}", ex[5],
        f"v_cvt_pk_bf16_f32 v{P4}, v{SX}, v{SX + 1}", ex[6], ex[7],
        f"v_cvt_pk_bf16_f32 v{P4 + 1}, v{SX + 2}, v{SX + 3}", ex[8], ex[9],
        f"v_cvt_pk_bf16_f32 v{P4 + 2}, v{SX + 4}, v{SX + 5}",
        f"v_cvt_pk_bf16_f32 v{P4 + 3}, v{SX + 6}, v{SX + 7}",
        f"v_mfma_f32_16x16x16_bf16 {vr(LQ, 4)}, {vr(ONES, 2)}, {vr(PB, 2)}, 0",
        f"v_mfma_f32_16x16x16_bf16 {vr(OX, 4)}, {vr(ACCV + 2, 2)}, {vr(PB, 2)}, 0",
        f"v_mfma_f32_16x16x16_bf16 {vr(OY, 4)}, {vr(ACCV + 2, 2)}, {vr(PB + 2, 2)}, 0",
        MF(LQ, ONES, P4, False),
        MF(OX, VXA, P4, False), wo_rd(0)[0] if False else None,
        MF(OY, VXB, P4, False), wo_rd(1)[0], wo_rd(1)[1],
        wo_rd(0)[0],
        f"v_rcp_f32 v{MX}, v{LQ}")
    stamp(5)
    OP = ACCQ + 4
    for i in (0, 2):
        a(f"v_pk_mul_f32 {vr(OX + i, 2)}, {vr(OX + i, 2)}, {vr(MX, 2)} op_sel_hi:[1,0]")
        a(f"v_pk_mul_f32 {vr(OY + i, 2)}, {vr(OY + i, 2)}, {vr(MX, 2)} op_sel_hi:[1,0]")
        a(f"v_cvt_pk_bf16_f32 v{OP + i}, v{OX + i}, v{OY + i}")
        a(f"v_cvt_pk_bf16_f32 v{OP + i + 1}, v{OX + i + 1}, v{OY + i + 1}")
    a(f"ds_write_b128 v{vQR}, {vr(OP, 4)} offset:{L_OB + w * 64}")
    TA = [ACCQ, ACCK, ACCK + 4, ACCV + 4, Q[0], Q[1], Q[6], ACCQ + 4, ACCV]
    OA0, OA1 = Q[2], Q[3]
    seq(wo_rd(0)[1], zero(ACCQ, 4), zero(ACCK, 8), zero(ACCV + 4, 4), zero(Q[0], 8))
    a.barrier(lg=1)
    a(f"ds_read_b128 {vr(OA0, 4)}, v{vOR} offset:{L_OB}")
    a(f"ds_read_b128 {vr(OA1, 4)}, v{vOR} offset:{L_OB + 128}")
    seq(zero(Q[6], 4), zero(ACCV, 4), zero(OP, 4))
    last = pfx + "last"
    seq(f"s_cmp_eq_u32 s{sSTEP}, {NSEG - 1}", f"s_cbranch_scc1 {last}")
    stamp(6)
    ST = [TA[0], TA[4], TA[8]]

    def epi(tau):
        acc = TA[tau]
        dst = ST[tau // 4] + tau % 4
        ops = [f"v_add_f32 v{acc}, v{acc}, v{acc + 2}", f"v_add_f32 v{acc + 1}, v{acc + 1}, v{acc + 3}",
               f"v_cvt_pk_bf16_f32 v{dst}, v{acc}, v{acc + 1}"]
        if tau % 4 == 0:
            ops.append(f"v_bfi_b32 v{dst}, 1, s{sPH}, v{dst}")
        if tau in (3, 7):
            ops.append(f"buffer_store_dwordx4 {vr(ST[tau // 4], 4)}, v{vL16}, {WS}, s{sPW} offen offset:{1024 * (tau // 4)}{sc}")
        if tau == 8:
            ops.append(f"buffer_store_dword v{dst}, v{vL4}, {WS}, s{sPW} offen offset:2048{sc}")
        return ops

    nxt = 2
    fill = []
    pend = []
    for idx in range(18):
        tau, ks = TORD[idx >> 1], idx & 1
        k = ("o", tau, ks)
        if FM[k][0] == "l":
            buf = wo_buf[(tau, ks)]
            use(buf, ("W", k)); use(buf + 4, ("W2", k))
            B = vr(buf, 8)
        else:
            B = opnd(FM[k])
        a(SM(TA[tau], (OA0, OA1)[ks], B))
        if pend:
            seq(pend.pop(0))
        elif idx in (3, 8):
            seq(kdma(idx // 8))
        if FM[k][0] == "l" and nxt < len(WO_L):
            r = wo_rd(nxt)
            seq(r[0])
            pend.append(r[1])
            nxt += 1
        n = 0
        while fill and fill[0][0] <= idx and (n < 2 or not fill[0][1].startswith("v_")):
            n += fill[0][1].startswith("v_")
            a(fill.pop(0)[1])
        if ks == 1:
            fill += [(idx + WOD, t) for t in epi(tau)]
    for _, t in fill:
        a(t)
    stamp(7)
    tog = [f"s_xor_b32 s{r}, s{r}, {MEMB_SLOT}" for r in [sMEMR, sMEMR8]]

    if not HK:
        if w == 2:
            a(f"s_cmp_eq_u32 s{sJOBC}, 0")
            a(f"s_cbranch_scc1 {pfx}nojob")
        LD = [Q[2], Q[3], Q[4], Q[5]]
        SEL, D = VXA, VXB
        loads1 = [f"buffer_load_dwordx4 {vr(LD[i], 4)}, v{vRLD}, {WS}, s{sPR + i} offen sc1" for i in range(4)]
        if w < 2:
            checks = [[f"v_and_b32 v{vT1}, 1, v{LD[i]}", f"v_cmp_ne_u32 {M(i)}, s{sPH}, v{vT1}"] for i in range(4)]
        else:
            checks = [[f"v_xor_b32 v{vT0}, v{LD[i]}, v{LD[i] + 1}", f"v_xor_b32 v{vT1}, v{LD[i] + 2}, v{LD[i] + 3}",
                       f"v_or_b32 v{vT0}, v{vT0}, v{vT1}", f"v_xor_b32 v{vT1}, v{LD[i]}, v{LD[i] + 2}",
                       f"v_or_b32 v{vT0}, v{vT0}, v{vT1}", f"v_xor_b32 v{vT1}, s{sPH}, v{LD[i]}",
                       f"v_or_b32 v{vT0}, v{vT0}, v{vT1}", f"v_and_b32 v{vT0}, 1, v{vT0}",
                       f"v_cmp_ne_u32 {M(i)}, 0, v{vT0}"] for i in range(4)]
        betw = [[MF(D, LD[i], SEL, i == 0)] for i in range(4)]
        stamp(9)
        a(f"v_bfe_u32 v{vT0}, v{vL16}, 4, 4")
        a(f"v_mov_b32 v{vT1}, 0x3f80")
        a(f"v_mov_b32 v{D}, 0x3f800000")
        for d in range(4):
            a(f"v_cmp_eq_u32 vcc, {2 * d}, v{vT0}")
            a(f"v_cmp_eq_u32 s[{sU}:{sU + 1}], {2 * d + 1}, v{vT0}")
            a(f"v_cndmask_b32 v{SEL + d}, 0, v{vT1}, vcc")
            a(f"v_cndmask_b32 v{SEL + d}, v{SEL + d}, v{D}, s[{sU}:{sU + 1}]")
        if D1[w]:
            a(f"s_sleep {D1[w]}")
        poll("p1", loads1, checks, betw)
        stamp(8)
        if stamps:
            a(f"s_mov_b32 s3, s{S_SPIN}")
        seq(f"v_permlane16_swap_b32 v{D}, v{D + 2}", f"v_permlane16_swap_b32 v{D + 1}, v{D + 3}",
            f"s_mov_b64 exec, s[{sMASK}:{sMASK + 1}]",
            f"v_add_f32 v{D}, v{D}, v{D + 2}", f"v_add_f32 v{D + 1}, v{D + 1}, v{D + 3}",
            f"v_cvt_pk_bf16_f32 v{D}, v{D}, v{D + 1}", f"v_min_u32 v{D}, s{sMAXD}, v{D}",
            f"buffer_store_dword v{D}, v{vRST}, {WS}, s{sMEMW} offen{sc}",
            f"v_mov_b32 v{D + 1}, -1",
            f"buffer_store_dword v{D + 1}, v{vRST}, {WS}, s{sMEMZ} offen{sc}",
            f"s_mov_b64 exec, -1")
        if w == 2:
            a(f"s_branch {pfx}jobdone")
            a.label(pfx + "nojob")
            a.restore(([], []))
            a.label(pfx + "jobdone")
            a.vmq = [(frozenset(), "pollx")] * 4 + [(frozenset(), "st")] * 3
    adv = [f"s_add_u32 s{sSTEP}, s{sSTEP}, 1", f"s_bfe_u32 s{sPH}, s{sSTEP}, 0x10001",
           f"s_xor_b32 s{sPW}, s{sPW}, {PART_SLOT}"]
    adv += [f"s_xor_b32 s{r}, s{r}, {PART_SLOT}" for r in ([] if HK else [sPR + i for i in range(4)])]
    adv += [f"s_xor_b32 s{r}, s{r}, {MEMB_SLOT}" for r in ([] if HK else [sMEMW, sMEMZ])]
    adv += [f"s_and_b32 s{S_TMP}, s{sSTEP}, {KM_D - 1}", f"s_mul_i32 s{S_TMP}, s{S_TMP}, {32 * KM_UNIT}",
            f"s_add_u32 s{sKM}, s{sKMB}, s{S_TMP}", f"s_bfe_u32 s{sKPH}, s{sSTEP}, {0x10000 + KM_D.bit_length() - 1}",
            f"s_add_u32 s{sOFL}, s{sOFL}, {FL_STRIDE}"]
    if HK:
        adv += [f"s_cmp_ge_u32 s{sSTEP}, {KM_D - 1}", f"s_cselect_b64 s[{sFMK}:{sFMK + 1}], -1, s[{sFMK}:{sFMK + 1}]",
                f"s_add_u32 s{sKPV}, s{sKPV}, {32 * 8192}"]
    adv += [f"s_add_u32 s{sVF}, s{sVF}, {32 * 8192}",
            f"s_add_u32 s{sKF}, s{sKF}, {32 * 8192}", f"s_add_u32 s{sKP}, s{sKP}, {32 * 8192}",
            f"s_add_u32 s{sFL}, s{sFL}, {FL_STRIDE}"]
    seq(tog)
    a("s_barrier")
    if D2:
        a(f"s_sleep {D2}")
    seq(loads2, adv)
    if not HK:
        a.wait_tag("pollx")
    pre_step()
    a.wait(lg=0)
    if HK:
        trace(a, Q[2], Q[2] + 1, True)
    stamp(NST)
    dump_stamps()
    a.restore(([], []))
    a(f"s_branch {head}")
    for t in tails:
        t()
    a.restore(([], []))
    a.label(last)
    a.force_wait(vm=0, lg=0)
    if HK:
        trace(a, Q[2], Q[2] + 1, True)
    a(f"s_branch {done}")
```

```python
from pool import *


def MF16(acc, A, B):
    return f"v_mfma_f32_16x16x16_bf16 {vr(acc, 4)}, {vr(A, 2)}, {vr(B, 2)}, {vr(acc, 4)}"


def role_ta(a, abort, done):
    lane_setup(a, 12)
    vKM, vL8 = 9, 10
    BI, ON, PB, PX, LQ = 236, 16, 20, 24, 28
    SX, SMm = 32, 44
    KMf, VMf, O, OUT = 52, 68, 76, 108
    SET = [("v", 140), ("a", 0)]
    NEG = hex(f32bits(-1e30))
    sQO, sNQ, sRDY, sPN, sKPH, sKMB = sO1, sK3, sPF, sK1, sCL, sCS

    def publish():
        a(f"s_cmp_lg_u32 s{sPN}, 0")
        a("s_cselect_b64 exec, 1, 0")
        a(f"buffer_store_dword v{vONE}, v{vZERO}, {WS}, s{sPEND} offen sc1")
        a("s_mov_b64 exec, -1")
        a(f"s_add_u32 s{sPEND}, s{sPEND}, s{sPN}")
        a(f"s_mov_b32 s{sPN}, 0")

    def fr(st, m, i):
        k, b = SET[st]
        return f"{k}[{b + 32 * m + 4 * i}:{b + 32 * m + 4 * i + 3}]"

    a(f"""
    s_lshl_b32 s{S_TMP}, s{S_ROLE}, 2
    s_add_u32 s{S_TMP}, s{S_TMP}, s{S_WAVE}
    s_lshr_b32 s{sNL}, s{S_TMP}, 5
    s_and_b32 s{sK2}, s{S_TMP}, 31
    s_mov_b32 s{sNS}, 0
    s_mov_b32 s{sK4}, {hex(f32bits(128 ** -0.5 * 1.4426950408889634))}
    v_lshrrev_b32 v{vT0}, 2, v{vC}
    v_and_b32 v{vT1}, 1, v{vC}
    v_lshl_add_u32 v{vT0}, v{vT0}, 1, v{vT1}
    v_lshlrev_b32 v{vKM}, 8, v{vT0}
    v_lshl_add_u32 v{vKM}, v{vG}, 4, v{vKM}
    v_lshrrev_b32 v{vL8}, 1, v{vL16}
    v_mov_b32 v{vT1}, {NEG}
    v_mov_b32 v{PB + 1}, 0
    v_mov_b32 v{PB + 2}, 0
    s_mul_i32 s{sNFL}, s{sNL}, {NSEG * FL_STRIDE}
    s_lshl_b32 s{S_TMP}, s{sK2}, 9
    s_add_u32 s{sNFL}, s{sNFL}, s{S_TMP}
    s_add_u32 s{sNFL}, s{sNFL}, {WS_FLAGS + FL_QKV}
    s_mul_i32 s{sNQ}, s{sNL}, {3 * QKV_M}
    s_lshl_b32 s{S_TMP}, s{sK2}, 13
    s_add_u32 s{sNQ}, s{sNQ}, s{S_TMP}
    s_add_u32 s{sNQ}, s{sNQ}, {WS_QKV}
    s_lshl_b32 s{sO2}, s{sNL}, 11
    s_add_u32 s{sO2}, s{sO2}, s{sK2}
    s_lshl_b32 s{sO3}, s{sO2}, 13
    s_add_u32 s{sO3}, s{sO3}, {WS_OF}
    s_mul_i32 s{sKMB}, s{sNL}, {KM_D * 32}
    s_add_u32 s{sKMB}, s{sKMB}, s{sK2}
    s_lshl_b32 s{sKMB}, s{sKMB}, 12
    s_add_u32 s{sKMB}, s{sKMB}, {WS_KM}
    s_mul_i32 s{sPEND}, s{sNL}, {NSEG * FL_STRIDE}
    s_lshr_b32 s{S_TMP}, s{sK2}, 2
    s_lshl_b32 s{S_TMP}, s{S_TMP}, 7
    s_add_u32 s{sPEND}, s{sPEND}, s{S_TMP}
    s_lshl_b32 s{S_TMP}, s{S_WAVE}, 2
    s_add_u32 s{sPEND}, s{sPEND}, s{S_TMP}
    s_add_u32 s{sPEND}, s{sPEND}, {WS_FLAGS + FL_OF}
    s_mov_b32 s{SRD_C}, s{SRD_WS}
    s_mov_b32 s{SRD_C + 1}, s{SRD_WS + 1}
    s_mov_b32 s{SRD_C + 2}, 0
    s_mov_b32 s{SRD_C + 3}, 0x00020000
    s_mov_b32 s{sRDY}, 0
    s_mov_b32 s{sPN}, 0
    s_lshl_b32 s{sO2}, s{sNL}, 2
    s_add_u32 s{sO2}, s{sO2}, {DB_TEAM}
    """)
    for i in range(4):
        a(f"v_mov_b32 v{ON + i}, 0x3f803f80")
        a(f"v_lshl_add_u32 v{vT0}, v{vG}, 2, {i}")
        a(f"v_cmp_le_u32 vcc, v{vT0}, v{vC}")
        a(f"v_cndmask_b32 v{BI + i}, v{vT1}, v{vZERO}, vcc")

    def qkv_ops(st, srd_):
        ops = []
        for m in range(3):
            for i in range(8):
                pre = [f"s_add_u32 s{sQO}, s{sNQ}, {m * QKV_M + i * 1024}"] if i % 4 == 0 else []
                ops.append(pre + [f"buffer_load_dwordx4 {fr(st, m, i)}, v{vL16}, {srd_}, s{sQO} offen offset:{(i % 4) * 1024}"])
        return ops

    km_ops = ([f"buffer_load_dwordx4 {vr(KMf + 4 * j, 4)}, v{vKM}, {WS}, s{sO2} offen offset:{j * 64} sc1" for j in range(4)] +
              [f"buffer_load_dwordx2 {vr(VMf + 2 * j, 2)}, v{vL8}, {WS}, s{sO2} offen offset:{2048 + j * 512} sc1" for j in range(4)])

    def km_check():
        heads = [KMf + 4 * j for j in range(4)] + [VMf + 2 * j for j in range(4)]
        a(f"v_xor_b32 v{vT0}, s{sKPH}, v{heads[0]}")
        for r in heads[1:]:
            a(f"v_xor_b32 v{vT1}, s{sKPH}, v{r}")
            a(f"v_or_b32 v{vT0}, v{vT0}, v{vT1}")
        a(f"v_and_b32 v{vT0}, 1, v{vT0}")
        a(f"v_cmp_ne_u32 vcc, 0, v{vT0}")

    MX, T1 = vT0, vT1
    dbg_wait(a, DB_POOL, N_POOL, vT0, vT1, abort, "Lta_ini", 64)
    dbg_wait(a, f"s{sO2}", 32, vT0, vT1, abort, "Lta_team", 64)
    trace(a, vT0, vT1)
    for st in range(2):
        nm = f"Lta{st}"
        a.label(nm)
        a.restore(([], []))
        a(f"s_and_b32 s{S_TMP}, s{sNS}, {KM_D - 1}")
        a(f"s_mul_i32 s{S_TMP}, s{S_TMP}, {32 * KM_UNIT}")
        a(f"s_add_u32 s{sO2}, s{sKMB}, s{S_TMP}")
        a(f"s_bfe_u32 s{sKPH}, s{sNS}, {0x10000 + KM_D.bit_length() - 1}")
        a(f"s_cmp_eq_u32 s{sRDY}, 1")
        a(f"s_cbranch_scc1 {nm}_have")
        a.force_wait(vm=0)
        publish()
        flag_block(a, nm + "_f", abort)
        seq(a, qkv_ops(st, WS))
        a.label(nm + "_have")
        a.restore(([], []))
        a(f"s_add_u32 s{S_TMP}, s{sNFL}, {FL_STRIDE}")
        a(f"buffer_load_dword v{vFL1}, v{vFLA}, {WS}, s{S_TMP} offen sc1")
        seq(a, km_ops)
        a.force_wait(vm=9)
        publish()
        for j in range(4):
            for (tt, kt, d) in ((0, 0, 0), (1, 0, 4), (1, 1, 8)):
                a(MF(SX + d, fr(st, 1, 2 * j + kt), fr(st, 0, 2 * j + tt), "0" if j == 0 else None))
        a.force_wait(vm=1)
        a(f"""
        v_cmp_eq_u32 vcc, 0, v{vFL1}
        s_add_u32 s{sNQ}, s{sNQ}, {32 * 8192}
        s_add_u32 s{sNFL}, s{sNFL}, {FL_STRIDE}
        s_add_u32 s{sNS}, s{sNS}, 1
        s_cmp_eq_u64 vcc, 0
        s_cselect_b32 s{sRDY}, 1, 0
        s_cmp_lt_u32 s{sNS}, {NSEG}
        s_cselect_b32 s{sRDY}, s{sRDY}, 0
        s_cmp_eq_u32 s{sRDY}, 1
        s_cselect_b32 s{SRD_C + 2}, {WS_BYTES}, 0
        """)
        for d, diag in ((0, 1), (4, 0), (8, 1)):
            for i in range(4):
                r = SX + d + i
                a(f"v_fma_f32 v{r}, v{r}, s{sK4}, v{BI + i}" if diag else f"v_mul_f32 v{r}, s{sK4}, v{r}")
        km_check()
        a(f"s_cbranch_vccz {nm}_r")
        a(f"s_mov_b32 s{S_SPIN}, 0")
        a.label(nm + "_rp")
        a.restore(([], []))
        seq(a, km_ops)
        spin_check(a, abort)
        a.force_wait(vm=0)
        km_check()
        a(f"s_cbranch_vccz {nm}_r")
        a(f"s_sleep {TASLP}")
        a(f"s_branch {nm}_rp")
        a.label(nm + "_r")
        a.restore(([], []))
        nxt = qkv_ops(1 - st, PFS)
        seq(a, nxt.pop(0), nxt.pop(0))
        for j in range(4):
            for tt in range(2):
                a(MF(SMm + 4 * tt, vr(KMf + 4 * j, 4), fr(st, 0, 2 * j + tt), "0" if j == 0 else None))
        for tt in range(2):
            xs = list(range(SX, SX + 4)) if tt == 0 else list(range(SX + 4, SX + 12))
            ms = [SMm + 4 * tt, SMm + 4 * tt + 1]
            vals = xs + ms
            a(f"v_max3_f32 v{MX}, v{xs[0]}, v{xs[1]}, v{xs[2]}")
            a(f"v_max_f32 v{MX}, v{MX}, v{xs[3]}")
            for i in range(4, len(xs), 2):
                a(f"v_max3_f32 v{MX}, v{MX}, v{xs[i]}, v{xs[i + 1]}")
            for r in ms:
                a(f"v_mul_f32 v{r}, s{sK4}, v{r}")
            a(f"v_max3_f32 v{MX}, v{MX}, v{ms[0]}, v{ms[1]}")
            seq(a, f"v_mov_b32 v{T1}, v{MX}", nxt.pop(0), f"v_permlane32_swap_b32 v{MX}, v{T1}", f"v_max_f32 v{MX}, v{MX}, v{T1}",
                f"v_mov_b32 v{T1}, v{MX}", nxt.pop(0), f"v_permlane16_swap_b32 v{MX}, v{T1}", f"v_max_f32 v{MX}, v{MX}, v{T1}",
                [f"v_sub_f32 v{r}, v{r}, v{MX}" for r in vals], [f"v_exp_f32 v{r}, v{r}" for r in vals])
            for i in range(4):
                if 2 * i < len(xs):
                    a(f"v_cvt_pk_bf16_f32 v{PX + i}, v{xs[2 * i]}, v{xs[2 * i + 1]}")
                else:
                    a(f"v_mov_b32 v{PX + i}, 0")
            a(f"v_cvt_pk_bf16_f32 v{PB}, v{ms[0]}, v{ms[1]}")
            a(f"v_cvt_pk_bf16_f32 v{PB + 3}, v{ms[0]}, v{ms[1]}")
            a(MF(LQ, vr(ON, 4), vr(PX, 4), "0"))
            for t in range(8):
                a(MF(O + 4 * t, fr(st, 2, t), vr(PX, 4), "0"))
                if t & 1 and nxt:
                    seq(a, nxt.pop(0))
                if t == 5:
                    a(MF16(LQ, ON, PB))
            for t in range(8):
                a(MF16(O + 4 * t, VMf + 2 * (t >> 1), PB + 2 * (t & 1)))
                if t == 1:
                    a(f"v_rcp_f32 v{T1}, v{LQ}")
                if t >= 3 and t & 1:
                    norm(a, O, OUT, T1, (t - 3) >> 1, tt, sO3, nxt)
            norm(a, O, OUT, T1, 3, tt, sO3, nxt)
        seq(a, nxt)
        a(f"s_add_u32 s{sO3}, s{sO3}, {32 * 8192}")
        a(f"s_mov_b32 s{sPN}, {FL_STRIDE}")
        trace_at(a, sNS, vT0, vZERO)
        trace(a, vT0, vT1)
        a(f"s_cmp_ge_u32 s{sNS}, {NSEG}")
        a(f"s_cbranch_scc1 Lta_end")
        if st == 1:
            a("s_branch Lta0")
    a.label("Lta_end")
    a.force_wait(vm=0)
    flag_out(a, sPEND)
    a(f"s_branch {done}")


TASLP = int(os.environ.get("TASLP", "2"))


def norm(a, O, OUT, T1, j, tt, sO3, nxt):
    for i in range(4):
        x, y = O + 8 * j + i, O + 8 * j + 4 + i
        a(f"v_mul_f32 v{x}, v{T1}, v{x}")
        a(f"v_mul_f32 v{y}, v{T1}, v{y}")
        a(f"v_cvt_pk_bf16_f32 v{OUT + 16 * tt + 4 * j + i}, v{x}, v{y}")
    if j % 2 == 0:
        a(f"s_add_u32 s{S_TMP}, s{sO3}, {j * 2048}")
    a(f"buffer_store_dwordx4 {vr(OUT + 16 * tt + 4 * j, 4)}, v{vL16}, {WS}, s{S_TMP} offen offset:{(j % 2) * 2048 + tt * 1024} sc1")
    if nxt:
        seq(a, nxt.pop(0))


TW_S0 = int(os.environ.get("TW_S0", "30"))
TWPF = int(os.environ.get("TWPF", "1"))


def role_tw(a, abort, done, nt=os.environ.get("NT_W", "")):
    lane_setup(a, 32)
    vA0, vSEL, vRES, vROW, vSTO, vRED, vMBT, vRD2, OUTP = 9, 11, 12, 13, 14, 48, 49, 50, 52
    nst_ = 0
    ACC, RES, SS, RING, ZB = 16, 40, 44, 64, 128
    sSL = sK2
    TWLDW = int(os.environ.get("TWLDW", "1"))
    TWG = int(os.environ.get("TWG", "24"))
    if TWLDW:
        a(f"s_cmp_lt_u32 s{S_ROLE}, {TWG}")
        a("s_cbranch_scc1 Ltw_noord")
        dbg_wait(a, DB_LOADED, TWLDW, vT0, vT1, abort, "Ltw_ord", 64)
        a.label("Ltw_noord")
    srd(a, SRD_A, KA_BWO, 4096 * 1152)
    srd(a, SRD_B, KA_OUT, 2048 * 1152)
    A_ = f"s[{SRD_A}:{SRD_A + 3}]"
    OUTS = f"s[{SRD_B}:{SRD_B + 3}]"
    a(f"""
    s_mul_i32 s{S_TMP}, s{S_ROLE}, 43
    s_lshr_b32 s{sN0}, s{S_TMP}, 9
    s_mul_i32 s{S_TMP}, s{sN0}, 12
    s_sub_u32 s{sSL}, s{S_ROLE}, s{S_TMP}
    s_add_u32 s{sN1}, s{sN0}, {TW_S0}
    s_cmp_eq_u32 s{sN0}, 2
    s_cselect_b32 s{sN1}, 0, s{sN1}
    s_cselect_b32 s{sN0}, {NSEG}, s{sN0}
    s_mul_i32 s{sK1}, s{sSL}, 96
    s_mul_i32 s{S_TMP}, s{S_WAVE}, {1024 * 1152}
    s_add_u32 s{sK1}, s{sK1}, s{S_TMP}
    v_mul_u32_u24 v{vT0}, {4 * 1152}, v{vG}
    v_lshl_add_u32 v{vA0}, v{vC}, 2, v{vT0}
    v_add_u32 v{vA0 + 1}, {16 * 1152}, v{vA0}
    v_and_b32 v{vT1}, 14, v{vC}
    v_lshl_add_u32 v{vRES}, v{vT1}, 1, v{vT0}
    v_add_u32 v{vRES}, 64, v{vRES}
    v_add_u32 v{vROW}, {16 * 1152}, v{vRES}
    v_and_b32 v{vT0}, 1, v{vC}
    v_mov_b32 v{vSEL}, s{sSELX}
    v_mov_b32 v{vT1}, s{sSELY}
    v_cmp_eq_u32 vcc, 1, v{vT0}
    v_cndmask_b32 v{vSEL}, v{vSEL}, v{vT1}, vcc
    """)
    STG = 16
    n = 128
    D = 14
    for i in range(n + D):
        if i < n:
            kk, d = i >> 2, i & 3
            r = STG + 4 * (i % 28)
            a(f"s_add_u32 s{S_TMP}, s{sK1}, {(32 * kk + d) * 1152}")
            for q, ad in enumerate((vA0, vA0 + 1, vRES, vROW)):
                a(f"buffer_load_dword v{r + q}, v{ad}, {A_}, s{S_TMP} offen {nt}")
        j = i - D
        if j >= 0:
            kk, d = j >> 2, j & 3
            r = STG + 4 * (j % 28)
            a(f"v_perm_b32 v{vT0}, v{r + 1}, v{r}, s{sSELX}")
            a(f"v_perm_b32 v{vT1}, v{r + 1}, v{r}, s{sSELY}")
            a(f"v_perm_b32 v{ZB + 4 * kk + d}, v{r + 3}, v{r + 2}, v{vSEL}")
            a(f"v_accvgpr_write_b32 a{8 * kk + d}, v{vT0}")
            a(f"v_accvgpr_write_b32 a{8 * kk + 4 + d}, v{vT1}")
    a(f"""
    s_and_b32 s{sK3}, s{S_WAVE}, 1
    s_lshl_b32 s{S_TMP}, s{sK3}, 4
    v_add_u32 v{vT0}, s{S_TMP}, v{vC}
    v_lshlrev_b32 v{vSTO}, 4, v{vT0}
    v_mul_u32_u24 v{vROW}, 1152, v{vT0}
    s_mul_i32 s{S_TMP}, s{sSL}, 96
    v_add_u32 v{vROW}, s{S_TMP}, v{vROW}
    s_mul_i32 s{S_TMP}, s{sSL}, 3072
    v_add_u32 v{vRES}, s{S_TMP}, v{vSTO}
    s_lshl_b32 s{S_TMP}, s{sSL}, 9
    v_add_u32 v{vSTO}, s{S_TMP}, v{vSTO}
    s_lshl_b32 s{sK1}, s{sSL}, 7
    s_lshl_b32 s{S_TMP}, s{S_WAVE}, 2
    s_add_u32 s{sK1}, s{sK1}, s{S_TMP}
    s_add_u32 s{sK1}, s{sK1}, {WS_FLAGS + FL_XA + NSEG * FL_STRIDE}
    s_mul_i32 s{S_TMP}, s{S_WAVE}, 6144
    v_add_u32 v{vRED}, s{S_TMP}, v{vL16}
    v_mov_b32 v{vMBT}, 0x10000
    v_lshrrev_b32 v51, 4, v{vL16}
    v_min_u32 v51, 42, v51
    s_mul_i32 s{S_TMP}, s{sSL}, 43
    v_add_u32 v51, s{S_TMP}, v51
    v_lshlrev_b32 v51, 7, v51
    s_cmp_gt_u32 s{S_WAVE}, 1
    s_cbranch_scc1 Ltw_z
    """)
    for z in (0, 1):
        nm = "LtwZ" if z else "LtwX"
        if z:
            a.label("Ltw_z")
            a.restore(([], []))
            a(f"""
            v_lshrrev_b32 v{vT0}, 1, v{vG}
            v_lshl_add_u32 v{vRES}, v{vT0}, 9, v{vRES}
            v_and_b32 v{vT0}, 1, v{vG}
            v_lshl_add_u32 v{vRES}, v{vT0}, 3, v{vRES}
            v_add_u32 v{vRES}, 2048, v{vRES}
            v_lshl_add_u32 v{vROW}, v{vG}, 3, v{vROW}
            v_add_u32 v{vROW}, 64, v{vROW}
            v_add_u32 v{vSTO}, 8, v{vSTO}
            """)
        else:
            a(f"v_lshl_add_u32 v{vRES}, v{vG}, 9, v{vRES}")
            a(f"v_lshl_add_u32 v{vROW}, v{vG}, 4, v{vROW}")
        st = "dwordx2" if z else "dwordx4"
        nq = 1 if z else 2
        nv = 4 * nq
        R = ACC
        RDL = [ACC + 8, ACC + 12, ACC + 16, ACC + 20, 56, 60, RING + 60, OUTP]
        RD = lambda k: RDL[k]

        def step1():
            return [f"s_cmp_lt_u32 s{sN1}, {TW_S0 - 1}", f"s_cselect_b32 s{sLEFT}, 1, 3"]

        def addr_next():
            return [f"s_lshl_b32 s{sO1}, s{sNO}, 18", f"s_add_u32 s{sO1}, s{sO1}, s{sWQ}",
                    f"s_mul_i32 s{sNX}, s{sNL}, {2 * X_BYTES}", f"s_mul_i32 s{S_TMP}, s{sNS}, {X_SEG}",
                    f"s_add_u32 s{sNX}, s{sNX}, s{S_TMP}", f"s_add_u32 s{sNX}, s{sNX}, {WS_X + X_BYTES}"]

        def ld(i, srd_):
            if i % 4 == 0:
                a(f"s_add_u32 s{sO3}, s{sO1}, {i * 1024}")
            a(f"buffer_load_dwordx4 {vr(RING + 4 * (i % 16), 4)}, v{vL16}, {srd_}, s{sO3} offen offset:{(i % 4) * 1024}")

        def line_pf(srd_):
            if TWPF:
                a(f"buffer_load_dword v10, v51, {srd_}, s{sO1} offen")
                a.vmq.pop()

        def first_loads(srd_):
            line_pf(srd_)
            for i in range(15):
                ld(i, srd_)
            a(f"buffer_load_{st} {vr(RES, nv // 2)}, v{vRES}, {srd_}, s{sNX} offen")

        def w0(fn, lab):
            if not z:
                a(f"s_cmp_lg_u32 s{S_WAVE}, 0")
                a(f"s_cbranch_scc1 {lab}")
                sn = a.snap()
                fn()
                a.restore(sn)
                a.label(lab)

        def post():
            a(f"v_mov_b32 v{vT0}, s{sDEC}")
            a(f"ds_write_b32 v{vMBT}, v{vT0}")

        a(f"""
        s_lshl_b32 s{sWQ}, s{S_WAVE}, 16
        s_add_u32 s{sWQ}, s{sWQ}, {WS_OF}
        s_mov_b32 s{sPEND}, 0
        s_mov_b32 s{SRD_C}, s{SRD_WS}
        s_mov_b32 s{SRD_C + 1}, s{SRD_WS + 1}
        s_mov_b32 s{SRD_C + 2}, 0
        s_mov_b32 s{SRD_C + 3}, 0x00020000
        s_mul_i32 s{S_TMP}, s{sK3}, 3072
        v_add_u32 v{vRD2}, s{S_TMP}, v{vL16}
        """)
        a(f"ds_write2_b32 v{vMBT}, v{vZERO}, v{vZERO} offset0:0 offset1:1")
        a.wait(lg=0)
        dbg_wait(a, DB_POOL, N_POOL, vT0, vT1, abort, nm + "_ini")
        a.label(nm + "_idle")
        a.restore(([], []))
        w0(lambda: (poll2(a, nm + "_p", abort, FL_OF, 0), post(), a.wait(lg=0)), nm + "_nw0")
        a("s_barrier")
        a(f"ds_read_b32 v{vT1}, v{vMBT}")
        a(f"v_xor_b32 v{vMBT}, 4, v{vMBT}")
        a(f"v_readfirstlane_b32 s{sDEC}, v{vT1}")
        a(f"s_cmp_eq_u32 s{sDEC}, 0")
        a(f"s_cbranch_scc1 {abort}")
        seq(a, step1(), take(sDEC, 2, f"s{sLEFT}"), addr_next(), f"s_cmp_ge_u32 s{sNS}, {NSEG}", f"s_cbranch_scc1 {abort}")
        first_loads(WS)
        for _ in range(nst_):
            a.vmq.append((frozenset(), "st"))
        a.label(nm + "_item")
        trace(a, vT0, vT1, True) if TRACE == 1 else None
        a(f"s_mov_b32 s{sCL}, s{sNL}")
        a(f"s_mov_b32 s{sCS}, s{sNS}")
        a(f"s_mov_b32 s{sO2}, s{sNX}")
        a.vmq = a.vmq[:16]
        for i in range(64):
            kk, tt = i >> 1, i & 1
            ld((i + 15) % 64, WS if i + 15 < 64 else PFS)
            b = vr(RING + 4 * (i % 16), 4)
            c = "0" if kk == 0 else None
            a(MF(ACC + 12 * tt, ar(8 * kk, 4), b, c))
            a(MF(ACC + 12 * tt + 4, ar(8 * kk + 4, 4), b, c))
            a(MF(ACC + 12 * tt + 8, vr(ZB + 4 * kk, 4), b, c))
            if i == 17:
                a(f"s_cmp_lg_u32 s{sPEND}, 0")
                a("s_cselect_b64 exec, 1, 0")
                a(f"buffer_store_dword v{vONE}, v{vZERO}, {WS}, s{sPEND} offen sc1")
                a("s_mov_b64 exec, -1")
                a(f"s_mov_b32 s{sPEND}, 0")
            if i == 26:
                w0(lambda: (cand_addr(a, FL_OF), sample2(a)), nm + "_nw1")
            if i == 44:
                w0(lambda: (decide(a, 0), post(), a.force_wait(lg=0)), nm + "_nw2")
                a("s_barrier")
                a(f"ds_read_b32 v{vT1}, v{vMBT}")
                a(f"v_xor_b32 v{vMBT}, 4, v{vMBT}")
            if i == 47:
                a(f"v_readfirstlane_b32 s{sDEC}, v{vT1}")
                seq(a, step1(), take(sDEC, 2, f"s{sLEFT}"))
            if i == 48:
                seq(a, f"s_cmp_lt_u32 s{sNS}, {NSEG}", f"s_cselect_b32 s{sDEC}, s{sDEC}, 0")
                seq(a, addr_next(), f"s_cmp_lg_u32 s{sDEC}, 0", f"s_cselect_b32 s{SRD_C + 2}, {WS_BYTES}, 0")
                line_pf(PFS)
        a.nop(6)
        for q in range(6):
            a(f"ds_write_b128 v{vRED}, {vr(ACC + 4 * q, 4)} offset:{q * 1024}")
        a.force_wait(lg=0)
        a("s_barrier")
        for wv in range(4):
            for q in range(nq):
                a(f"ds_read_b128 {vr(RD(wv * nq + q), 4)}, v{vRD2} offset:{wv * 6144 + (2 if z else q) * 1024}")
        a(f"v_xor_b32 v{vRED}, 0x8000, v{vRED}")
        a(f"v_xor_b32 v{vRD2}, 0x8000, v{vRD2}")
        if z:
            for i in range(2):
                a(f"v_lshlrev_b32 v{R + 2 * i}, 16, v{RES + i}")
                a(f"v_and_b32 v{R + 2 * i + 1}, 0xffff0000, v{RES + i}")
        else:
            for i in range(4):
                a(f"v_lshlrev_b32 v{R + i}, 16, v{RES + i}")
                a(f"v_and_b32 v{R + 4 + i}, 0xffff0000, v{RES + i}")
        a(f"buffer_load_{st} {vr(RES, nv // 2)}, v{vRES}, {PFS}, s{sNX} offen")
        for wv in range(4):
            for i in range(nv):
                a(f"v_add_f32 v{R + i}, v{R + i}, v{RD(wv * nq + i // 4) + i % 4}")
        if z:
            a(f"v_cvt_pk_bf16_f32 v{OUTP}, v{R}, v{R + 1}")
            a(f"v_cvt_pk_bf16_f32 v{OUTP + 1}, v{R + 2}, v{R + 3}")
        else:
            for i in range(4):
                a(f"v_cvt_pk_bf16_f32 v{OUTP + i}, v{R + i}, v{R + 4 + i}")
        a(f"s_cmp_eq_u32 s{sCL}, 0")
        a(f"s_cbranch_scc1 {nm}_l0")
        win = list(a.win)
        sn = a.snap()
        a(f"s_mul_i32 s{S_TMP}, s{sCS}, {32 * 1152}")
        a(f"buffer_store_{st} {vr(OUTP, nv // 2)}, v{vROW}, {OUTS}, s{S_TMP} offen sc1")
        a(f"s_cmp_lg_u32 s{sDEC}, 0")
        a(f"s_cbranch_scc1 {nm}_item")
        a.label(nm + "_chk")
        a(f"s_min_u32 s{S_TMP}, s{sN0}, s{sN1}")
        a(f"s_cmp_lt_u32 s{S_TMP}, {NSEG}")
        a(f"s_cbranch_scc1 {nm}_idle")
        trace(a, vT0, vT1, True) if TRACE != 4 else None
        stamp_max(a, 7, vT0, vT1) if DBGT == 1 else None
        a(f"s_branch {done}")
        a.label(nm + "_l0")
        a.win = win
        a.restore(sn)
        a(f"s_add_u32 s{sO2}, s{sO2}, {X_BYTES}")
        a(f"buffer_store_{st} {vr(OUTP, nv // 2)}, v{vRES}, {WS}, s{sO2} offen sc1")
        a(f"v_add_f32 v{SS}, v{R}, v{R + 1}")
        a(f"v_mul_f32 v{SS + 1}, v{R}, v{R}")
        a(f"v_fmac_f32 v{SS + 1}, v{R + 1}, v{R + 1}")
        for i in range(2, nv):
            a(f"v_add_f32 v{SS}, v{SS}, v{R + i}")
            a(f"v_fmac_f32 v{SS + 1}, v{R + i}, v{R + i}")
        for sw in (32, 16):
            seq(a, f"v_mov_b32 v{SS + 2}, v{SS}", f"v_mov_b32 v{SS + 3}, v{SS + 1}",
                f"v_permlane{sw}_swap_b32 v{SS}, v{SS + 2}", f"v_permlane{sw}_swap_b32 v{SS + 1}, v{SS + 3}",
                f"v_add_f32 v{SS}, v{SS}, v{SS + 2}", f"v_add_f32 v{SS + 1}, v{SS + 1}, v{SS + 3}")
        a(f"""
        s_mul_i32 s{S_TMP}, s{sCS}, {ST_SEG}
        s_add_u32 s{S_TMP}, s{S_TMP}, {WS_ST + 2 * ST_BYTES}
        s_mov_b64 exec, 0xffff
        buffer_store_dwordx2 {vr(SS, 2)}, v{vSTO}, {WS}, s{S_TMP} offen sc1
        s_mov_b64 exec, -1
        s_mul_i32 s{sPEND}, s{sCS}, {FL_STRIDE}
        s_add_u32 s{sPEND}, s{sPEND}, s{sK1}
        """)
        trace_at(a, sCS, vT0, vZERO)
        a(f"s_cmp_lg_u32 s{sDEC}, 0")
        a(f"s_cbranch_scc1 {nm}_item")
        a.force_wait(vm=0)
        flag_out(a, sPEND)
        a(f"s_mov_b32 s{sPEND}, 0")
        a(f"s_branch {nm}_chk")
```

```python
import sys, os
from common import *
import role_r2 as R
import pool, pool2, role_t

MAIN = KNAME + "_kernel"
INIT = "init_kernel"
def kd(name, vgpr, acc, sgpr=102):
    return f""".p2align 6
.amdhsa_kernel {name}
  .amdhsa_next_free_vgpr {vgpr}
  .amdhsa_next_free_sgpr {sgpr}
  .amdhsa_accum_offset {acc}
  .amdhsa_group_segment_fixed_size 0
  .amdhsa_kernarg_size 104
  .amdhsa_user_sgpr_count 2
  .amdhsa_user_sgpr_kernarg_segment_ptr 1
  .amdhsa_system_sgpr_workgroup_id_x 1
.end_amdhsa_kernel
"""


def pool_init(a):
    WS = f"s[{SRD_WS}:{SRD_WS + 3}]"
    Q_ = 6
    srd(a, SRD_A, KA_X, 2048 * 1152)
    a(f"""
    v_lshlrev_b32 v7, 4, v0
    v_mov_b32 v12, 0
    v_mov_b32 v13, 0
    v_mov_b32 v14, 0
    v_mov_b32 v15, 0
    s_cmp_ge_u32 s{Q_}, 136
    s_cbranch_scc1 Li_nofl
    s_mul_i32 s41, s{Q_}, {FL_STRIDE}
    s_add_u32 s41, s41, {WS_FLAGS}
    s_sub_u32 s42, s{Q_}, 128
    s_lshl_b32 s42, s42, 12
    s_add_u32 s42, s42, {WS_ZERO}
    s_cmp_ge_u32 s{Q_}, 128
    s_cselect_b32 s41, s42, s41
    buffer_store_dwordx4 v[12:15], v7, {WS}, s41 offen sc1
    s_cbranch_scc1 Li_nofl
    """)
    for i in range(1, 6):
        a(f"s_add_u32 s41, s41, 4096")
        if i == 5:
            a("v_cmp_gt_u32 vcc, 128, v0")
            a("s_and_saveexec_b64 s[42:43], vcc")
            a("s_cbranch_execz Li_fl5")
        a(f"buffer_store_dwordx4 v[12:15], v7, {WS}, s41 offen sc1")
    a("Li_fl5:")
    a("s_mov_b64 exec, s[42:43]")
    a("Li_nofl:")
    a(f"""
    s_cmp_ge_u32 s{Q_}, 64
    s_cbranch_scc1 Li_rest
    s_mul_i32 s42, s{Q_}, {ST_SEG}
    s_add_u32 s42, s42, {WS_ST}
    s_add_u32 s43, s42, 2048
    buffer_store_dwordx4 v[12:15], v7, {WS}, s43 offen sc1
    s_branch Li_done
    Li_rest:
    s_sub_u32 s41, s{Q_}, 64
    s_lshr_b32 s42, s41, 6
    s_and_b32 s41, s41, 63
    s_mul_i32 s42, s42, {2 * ST_BYTES}
    s_mul_i32 s41, s41, {ST_SEG}
    s_add_u32 s41, s41, s42
    s_add_u32 s41, s41, {WS_ST + ST_BYTES + 9 * 512}
    v_cmp_gt_u32 vcc, 96, v0
    s_and_saveexec_b64 s[44:45], vcc
    s_cbranch_execz Li_rest2
    buffer_store_dwordx4 v[12:15], v7, {WS}, s41 offen sc1
    Li_rest2:
    s_mov_b64 exec, s[44:45]
    Li_done:
    """)
    a(f"""
    v_and_b32 v1, 31, v0
    v_lshrrev_b32 v2, 5, v0
    v_mul_u32_u24 v3, 1152, v1
    v_mul_u32_u24 v5, 144, v2
    v_add_u32 v3, v3, v5
    s_sub_u32 s47, s{Q_}, 128
    s_mul_i32 s41, s47, {32 * 1152}
    s_cmp_lt_u32 s{Q_}, 128
    s_cselect_b32 s41, 0x7f000000, s41
    """)
    for i in range(9):
        a(f"buffer_load_dwordx4 {vr(64 + 4 * i, 4)}, v3, s[{SRD_A}:{SRD_A + 3}], s41 offen offset:{16 * i}")
    a.force_wait(vm=9)
    a("s_barrier")
    a(f"s_cmp_lg_u32 s{S_WAVE}, 0")
    a("s_cbranch_scc1 Li_mid")
    dbg_add(a, DB_POOL, 2, 3)
    a.label("Li_mid")
    a(f"s_cmp_lt_u32 s{Q_}, 128")
    a("s_cbranch_scc1 Li_end")
    a.force_wait(vm=0)
    a(f"""
    v_and_b32 v1, 31, v0
    v_lshrrev_b32 v2, 5, v0
    v_mul_u32_u24 v4, {9 * 512}, v2
    v_lshl_add_u32 v4, v1, 4, v4
    s_mul_i32 s41, s47, {X_SEG}
    s_add_u32 s41, s41, {WS_X}
    s_mul_i32 s42, s47, {ST_SEG}
    s_add_u32 s42, s42, {WS_ST}
    v_mov_b32 v60, 0
    v_mov_b32 v61, 0
    """)
    for i in range(9):
        if i == 8:
            a("v_add_u32 v4, 4096, v4")
        a(f"buffer_store_dwordx4 {vr(64 + 4 * i, 4)}, v4, {WS}, s41 offen offset:{512 * (i % 8)} sc1")
    a("v_mov_b32 v62, 0x3f803f80")
    for r in range(64, 100):
        a(f"v_dot2c_f32_bf16 v60, v{r}, v62")
        a(f"v_dot2c_f32_bf16 v61, v{r}, v{r}")
    a.nop(4)
    a(f"""
    v_lshrrev_b32 v5, 1, v2
    v_lshlrev_b32 v5, 9, v5
    v_lshl_add_u32 v5, v1, 4, v5
    v_and_b32 v6, 1, v2
    v_lshl_add_u32 v5, v6, 3, v5
    buffer_store_dwordx2 v[60:61], v5, {WS}, s42 offen sc1
    """)
    a.force_wait(vm=0)
    dbg_wait(a, DB_POOL, N_POOL, 5, 6, "L_abort", "Li_pw", 2)
    a(f"""
    s_cmp_lg_u32 s{S_WAVE}, 0
    s_cbranch_scc1 Li_end
    v_lshrrev_b32 v5, 2, v0
    v_lshlrev_b32 v5, 7, v5
    v_and_b32 v6, 3, v0
    v_lshl_add_u32 v5, v6, 2, v5
    v_mov_b32 v6, 1
    s_mul_i32 s41, s47, {FL_STRIDE}
    s_mov_b32 exec_lo, -1
    s_mov_b32 exec_hi, 0xffff
    s_add_u32 s41, s41, {WS_FLAGS}
    buffer_store_dword v6, v5, {WS}, s41 offen offset:{FL_XA} sc1
    s_mov_b64 exec, -1
    """)
    if DBGT == 2:
        stamp_max(a, 14, 5, 6, (47, 0))
    a.label("Li_end")
    a.restore(([], []))


def gen_main(a, stamps=0, dbg_roles=None):
    WS = f"s[{SRD_WS}:{SRD_WS + 3}]"
    a.text(f".globl {MAIN}\n.p2align 8\n.type {MAIN},@function")
    a.label(MAIN)
    a.reset_window()
    sX, sTK = 3, 4
    DBG = f"s[{S_DBG}:{S_DBG + 1}]"
    a("s_cmp_ge_u32 s2, 256")
    a("s_cbranch_scc1 L_exit")
    srd(a, SRD_WS, KA_WS, WS_BYTES)
    a(f"""
    s_load_dwordx2 s[{S_DBG}:{S_DBG + 1}], s[0:1], {KA_DBG}
    v_lshrrev_b32 v1, 6, v0
    s_getreg_b32 s{sX}, hwreg(HW_REG_XCC_ID)
    v_readfirstlane_b32 s{S_WAVE}, v1
    s_and_b32 s{sX}, s{sX}, {6 if os.environ.get('FAKEX') else 7}
    s_and_b32 s{S_TMP}, s{sX}, 1
    s_lshl_b32 s{S_TMP}, s{S_TMP}, 7
    s_lshl_b32 s{S_TMP + 1}, s{sX}, 1
    s_and_b32 s{S_TMP + 1}, s{S_TMP + 1}, 12
    s_add_u32 s{S_TMP}, s{S_TMP}, s{S_TMP + 1}
    v_mov_b32 v2, 0
    v_mov_b32 v3, 1
    v_mov_b32 v4, s{S_TMP}
    s_mov_b32 s{R.sSTEP}, 0
    s_waitcnt lgkmcnt(0)
    s_cmp_lg_u32 s{S_WAVE}, 0
    s_cbranch_scc1 L_tk_wait
    s_mov_b64 exec, 1
    global_atomic_add v3, v4, v3, {DBG} sc0
    v_readfirstlane_b32 s{sTK}, v3
    s_cmp_lt_u32 s{sTK}, 32
    s_cbranch_scc1 L_tk_have
    """)
    a(f"""
    v_mov_b32 v3, 1
    v_mov_b32 v4, {DB_HOMELESS}
    global_atomic_add v3, v4, v3, {DBG} sc0
    v_readfirstlane_b32 s5, v3
    s_mov_b64 exec, 0xff
    v_and_b32 v4, 1, v0
    v_lshlrev_b32 v4, 7, v4
    v_lshlrev_b32 v5, 1, v0
    v_and_or_b32 v4, v5, 12, v4
    s_mov_b32 s{S_SPIN}, 0
    L_hl_poll:
    global_load_dword v5, v4, {DBG} sc1
    """)
    spin_check(a, "L_abort")
    a("s_mov_b32 s6, 0")
    for i in range(8):
        a(f"v_readlane_b32 s{40 + i}, v5, {i}")
        a(f"s_add_u32 s6, s6, s{40 + i}")
    a(f"""
    s_cmp_lt_u32 s6, 256
    s_cbranch_scc1 L_hl_poll
    s_mov_b32 s{sX}, 0
    s_mov_b32 s{sTK}, 0
    """)
    for i in range(7, -1, -1):
        a(f"""
        s_min_u32 s6, s{40 + i}, 32
        s_sub_u32 s7, 32, s6
        s_cmp_lt_u32 s5, s7
        s_cselect_b32 s{sX}, {i}, s{sX}
        s_add_u32 s6, s6, s5
        s_cmp_lt_u32 s5, s7
        s_cselect_b32 s{sTK}, s6, s{sTK}
        s_sub_u32 s5, s5, s7
        """)
    a(f"""
    L_tk_have:
    s_lshl_b32 s5, s{sX}, 8
    s_or_b32 s5, s5, s{sTK}
    v_mov_b32 v3, s5
    s_mov_b64 exec, 1
    ds_write_b32 v2, v3
    s_mov_b64 exec, -1
    L_tk_wait:
    """)
    a.force_wait(vm=0, lg=0)
    a("s_barrier")
    a("ds_read_b32 v3, v2")
    a(f"v_readfirstlane_b32 s5, v3")
    a(f"s_lshr_b32 s{sX}, s5, 8")
    a(f"s_and_b32 s{sTK}, s5, 255")
    a("s_barrier")
    trace_init(a)
    if DBGT:
        a("s_memrealtime s[6:7]")
        a.force_wait(lg=0)
        a("s_mov_b32 s5, s6")
    trace(a, 2, 3, True)
    en = dbg_roles or "RPWTAO"

    def tgt(ch, lab):
        return lab if ch in en else "L_exit"
    LAB = {"P": "L_role_p", "W": "L_role_tw", "T": "L_role_ta", "A": "L_role_aq", "O": "L_role_awo"}
    a(f"s_cmp_lt_u32 s{sX}, 2")
    a(f"s_cbranch_scc1 {tgt('R', 'L_role_r')}")
    a(f"s_sub_u32 s6, s{sX}, 2")
    a(f"s_lshl_b32 s6, s6, 5")
    a(f"s_add_u32 s6, s6, s{sTK}")
    pool_init(a)
    base = {k: 0 for k in LAB}
    for cls, lst in ROLE_MAP.items():
        a(f"s_cmp_lg_u32 s{sX}, {cls}")
        a(f"s_cbranch_scc1 L_cls{cls}_no")
        t0 = 0
        for ch, n in lst:
            a(f"s_add_u32 s{S_ROLE}, s{sTK}, {(base[ch] - t0) & 0xffffffff}")
            a(f"s_cmp_lt_u32 s{sTK}, {t0 + n}")
            a(f"s_cbranch_scc1 {tgt(ch, LAB[ch])}")
            base[ch] += n
            t0 += n
        a("s_endpgm")
        a.label(f"L_cls{cls}_no")
    assert base == {"P": 96, "W": 36, "T": 16, "A": 32, "O": 10}, base
    a(f"""
    L_exit:
    s_endpgm
    L_abort:
    """)
    a.force_wait(lg=0)
    a(f"""
    s_mov_b64 exec, -1
    v_mov_b32 v0, {DB_ABORT}
    s_lshl_b32 s5, s{sX}, 8
    s_or_b32 s5, s5, s{sTK}
    s_or_b32 s5, s5, 0x10000
    v_mov_b32 v1, s5
    global_store_dword v0, v1, s[{S_DBG}:{S_DBG + 1}]
    s_endpgm
    """)
    for ch, lab, fn in (("P", "L_role_p", pool.role_p if os.environ.get("PV1") else pool2.role_p2), ("O", "L_role_awo", pool.role_awo), ("A", "L_role_aq", pool.role_aq),
                        ("T", "L_role_ta", role_t.role_ta), ("W", "L_role_tw", role_t.role_tw)):
        if ch not in en:
            continue
        a.text(".p2align 6")
        a.label(lab)
        a.reset_window()
        fn(a, f"{lab}_abort", f"{lab}_exit")
        a.label(f"{lab}_abort")
        a("s_branch L_abort") if False else far_jump(a, "L_abort")
        a.label(f"{lab}_exit")
        a("s_endpgm")
    if "R" in en:
        a.text(".p2align 6")
        a.label("L_role_r")
        a.reset_window()
        a(f"s_mov_b32 s{R.sLAY}, s{sX}")
        a(f"s_mov_b32 s{R.sH}, s{sTK}")
        R.r_setup(a)
        a(f"""
        s_mov_b64 exec, 0xff
        v_lshlrev_b32 v12, 5, v{R.vL4}
        v_and_b32 v12, 128, v12
        v_lshrrev_b32 v13, 1, v{R.vL4}
        v_and_or_b32 v12, v13, 12, v12
        s_mov_b32 s{S_SPIN}, 0
        L_pure:
        global_load_dword v13, v12, {DBG} sc1
        """)
        spin_check(a, "Lr_abort")
        a("s_mov_b32 s6, 0")
        for i in range(8):
            a(f"v_readlane_b32 s7, v13, {i}")
            a(f"s_add_u32 s6, s6, s7")
        a(f"""
        v_readlane_b32 s7, v13, s{R.sLAY}
        s_cmp_ge_u32 s7, 32
        s_cselect_b32 s{R.sFAST}, {0 if os.environ.get('FAKEX') or os.environ.get('SLOW') else 1}, 0
        s_cselect_b32 s6, 256, s6
        s_cmp_lt_u32 s6, 256
        s_cbranch_scc1 L_pure
        s_mov_b64 exec, -1
        s_lshl_b32 s6, s{R.sLAY}, 2
        s_add_u32 s6, s6, {DB_TEAM}
        """)
        dbg_wait(a, "s6", 32, 12, 13, "Lr_abort", "L_team")
        dbg_wait(a, DB_POOL, N_POOL, 12, 13, "Lr_abort", "L_rpool")
        a("s_barrier")
        trace(a, 12, 13, True)
        stamp_max(a, 4, 12, 13, (R.sLAY, 0))
        for fast in (1, 0):
            if fast:
                a(f"s_cmp_eq_u32 s{R.sFAST}, 0")
                a("s_cbranch_scc1 L_slow")
            else:
                a.label("L_slow")
            for w in range(4):
                if w < 3:
                    a(f"s_cmp_lg_u32 s{S_WAVE}, {w}")
                    a(f"s_cbranch_scc1 L_w{w + 1}_{fast}")
                a.restore(([], []))
                R.r_loop(a, w, fast, "Lr_abort", "Lr_exit", stamps)
                if w < 3:
                    a.label(f"L_w{w + 1}_{fast}")
        a.label("Lr_abort")
        far_jump(a, "L_abort")
        a.label("Lr_exit")
        a("s_endpgm")


def far_jump(a, lab):
    a.force_wait(lg=0)
    a(f"""
    s_mov_b64 exec, -1
    v_mov_b32 v0, {DB_ABORT}
    s_lshl_b32 s5, s3, 8
    s_or_b32 s5, s5, s4
    s_or_b32 s5, s5, 0x10000
    v_mov_b32 v1, s5
    global_store_dword v0, v1, s[{S_DBG}:{S_DBG + 1}]
    s_endpgm
    """)


def build(stamps=0, dbg_roles=None):
    a = Asm()
    hdr = open(os.path.join(os.path.dirname(__file__), "..", KNAME + ".s.ref")).read().split("; Override launch")[0]
    a.text(hdr.rstrip())
    a.text("; @launch grid=(256,1,1) block=(256,1,1) lds=163840")
    a.text('.amdgcn_target "amdgcn-amd-amdhsa--gfx950"\n.text')
    gen_main(a, stamps, dbg_roles)
    a.text('.section .rodata,"a"')
    a.text(kd(MAIN, 512, 256))
    return a.render()


if __name__ == "__main__":
    out = sys.argv[1]
    open(out, "w").write(build(int(os.environ.get("STAMPS", "0")), os.environ.get("ROLES")))
```

```python
from asmlib import *

KNAME = "interleave_layers__sliding_local_dilated__memory_aug_recurrent_mem_tr__prompt"
NSEG = 64
KA_X, KA_WQKV, KA_WO, KA_BX, KA_MEM0, KA_WQ, KA_WK, KA_WV, KA_BWO, KA_SEG, KA_OUT, KA_DBG, KA_WS = [8 * i for i in range(13)]

WS_BYTES = 268435456
WS_FLAGS = 8 * 0x5800
FL_STRIDE = 0x5800
FL_XA, FL_OA, FL_XB, FL_OF, FL_QKV = 0, 1536, 3584, 4224, 5376
WS_ZERO = 0x2F0000
FLAGS_BYTES = 0x2F8000
WS_DUMMY = 0x300000
WS_RING = 0x400000
RING_TEAM = 0x100000
PART_SLOT = 0x80000
import os
PART_H = int(os.environ.get("PARTH", "12288"))
MEMB_OFF = 0xF0000
MEMB_SLOT = 0x4000
WS_X = 0x600000
X_BYTES = 0x240000
X_SEG = 36864
WS_ST = WS_X + 4 * X_BYTES
ST_SEG = 12 * 32 * 16
ST_BYTES = NSEG * ST_SEG
WS_OA = WS_ST + 4 * ST_BYTES
WS_AW = WS_OA + 2 * X_BYTES
WS_KM = 0x1A00000
KM_UNIT = 4096
KM_D = 8
WS_QKV = WS_KM + 2 * NSEG * 32 * KM_UNIT
QKV_M = NSEG * 32 * 8192
WS_OF = WS_QKV + 6 * QKV_M
WS_END = WS_OF + 2 * QKV_M
assert WS_AW + 32 * 90 * 1024 <= WS_KM
assert WS_END <= WS_BYTES, WS_END

SPIN_MAX = int(os.environ.get("SPIN_MAX", "100000"))

S_KARG = 0
S_WG = 2
SRD_WS = 8
S_DBG = 12
S_WAVE = 14
S_ROLE = 15
S_SPIN = 16
S_TMP = 17
SRD_A = 20
SRD_B = 24
SRD_C = 28
S_FREE = 32


def srd(a, base, ka_off, nbytes):
    a(f"s_load_dwordx2 s[{base}:{base + 1}], s[0:1], {ka_off}")
    a(f"s_mov_b32 s{base + 2}, {nbytes}")
    a(f"s_mov_b32 s{base + 3}, 0x00020000")
    a.force_wait(lg=0)
    a(f"s_and_b32 s{base + 1}, s{base + 1}, 0xffff")


def spin_check(a, abort_label):
    a(f"s_add_u32 s{S_SPIN}, s{S_SPIN}, 1")
    a(f"s_cmp_gt_u32 s{S_SPIN}, {SPIN_MAX}")
    a(f"s_cbranch_scc1 {abort_label}")


TRACE = int(os.environ.get("TRACE", "0"))
WS_TRACE = WS_END


def trace_init(a):
    if TRACE:
        a(f"s_lshl_b32 s5, s3, 5")
        a(f"s_add_u32 s5, s5, s4")
        a(f"s_lshl_b32 s5, s5, 2")
        a(f"s_add_u32 s5, s5, s{S_WAVE}")
        a(f"s_lshl_b32 s5, s5, 10")
        a(f"s_add_u32 s5, s5, {WS_TRACE}")


def trace(a, v0, v1, light=False):
    if TRACE in (1, 3) or (TRACE in (2, 4, 5) and light):
        a("s_memrealtime s[6:7]")
        a.force_wait(lg=0)
        a(f"v_mov_b32 v{v0}, s6")
        a(f"v_mov_b32 v{v1}, 0")
        a("s_mov_b64 exec, 1")
        a(f"buffer_store_dword v{v0}, v{v1}, s[{SRD_WS}:{SRD_WS + 3}], s5 offen")
        a("s_mov_b64 exec, -1")
        a("s_add_u32 s5, s5, 4")


PROF = int(os.environ.get("PROF", "0"))


def prof_begin(a):
    if PROF:
        a("s_memtime s[88:89]")
        a.force_wait(lg=0)


def prof_end(a, k):
    if PROF:
        a("s_memtime s[86:87]")
        a.force_wait(lg=0)
        a("s_sub_u32 s86, s86, s88")
        a(f"s_add_u32 s{90 + k}, s{90 + k}, s86")


def prof_init(a):
    if PROF:
        for k in range(8):
            a(f"s_mov_b32 s{90 + k}, 0")


def prof_dump(a, v0, v1):
    if PROF:
        a(f"s_lshl_b32 s5, s3, 5")
        a(f"s_add_u32 s5, s5, s4")
        a(f"s_lshl_b32 s5, s5, 2")
        a(f"s_add_u32 s5, s5, s{S_WAVE}")
        a(f"s_lshl_b32 s5, s5, 5")
        a(f"s_add_u32 s5, s5, {WS_TRACE}")
        for k in range(8):
            a(f"v_writelane_b32 v{v0}, s{90 + k}, {k}")
        a(f"v_mbcnt_lo_u32_b32 v{v1}, -1, 0")
        a(f"v_lshlrev_b32 v{v1}, 2, v{v1}")
        a("s_mov_b64 exec, 0xff")
        a(f"buffer_store_dword v{v0}, v{v1}, s[{SRD_WS}:{SRD_WS + 3}], s5 offen")
        a("s_mov_b64 exec, -1")


def wait_units(a, lab):
    a.label(lab)
    a("s_cmp_eq_u32 s6, 0")
    a(f"s_cbranch_scc1 {lab}_d")
    a("s_sleep 127")
    a("s_sub_u32 s6, s6, 1")
    a(f"s_branch {lab}")
    a.label(lab + "_d")


DB_TICKET = 0
DB_HOMELESS = 32
DB_ABORT = 60
DB_POOL = 160
DB_POOLA = 40
DB_LOADED = 48
ORDER = int(os.environ.get('ORDER', '0'))
DB_TEAM = 192
N_POOL = 192
SRD_DBG = 4


def dbg_add(a, off, v0, v1):
    a(f"v_mov_b32 v{v0}, {off}" if isinstance(off, int) else f"v_mov_b32 v{v0}, {off}")
    a(f"v_mov_b32 v{v1}, 1")
    a("s_mov_b64 exec, 1")
    a(f"global_atomic_add v{v0}, v{v1}, s[{S_DBG}:{S_DBG + 1}]")
    a("s_mov_b64 exec, -1")


def dbg_wait(a, off, target, v0, v1, abort, name, slp=8):
    a(f"s_cmp_lg_u32 s{S_WAVE}, 0")
    a(f"s_cbranch_scc1 {name}_d")
    a(f"v_mov_b32 v{v0}, {off}")
    a(f"s_mov_b32 s{S_SPIN}, 0")
    a.label(name)
    a(f"global_load_dword v{v1}, v{v0}, s[{S_DBG}:{S_DBG + 1}] sc1")
    spin_check(a, abort)
    a(f"v_cmp_gt_u32 vcc, {target}, v{v1}")
    a(f"s_cbranch_vccz {name}_d")
    a(f"s_sleep {slp}")
    a(f"s_branch {name}")
    a.label(name + "_d")
    a("s_barrier")


def trace_at(a, sidx, v0, vz):
    if TRACE == 4:
        a("s_memrealtime s[6:7]")
        a.force_wait(lg=0)
        a(f"s_lshl_b32 s7, s{sidx}, 2")
        a(f"s_add_u32 s7, s7, s5")
        a(f"v_mov_b32 v{v0}, s6")
        a("s_mov_b64 exec, 1")
        a(f"buffer_store_dword v{v0}, v{vz}, s[{SRD_WS}:{SRD_WS + 3}], s7 offen offset:12")
        a("s_mov_b64 exec, -1")


def trace5(a, sseg, k, v0, vz):
    if TRACE == 5:
        a("s_memrealtime s[6:7]")
        a.force_wait(lg=0)
        a(f"s_and_b32 s7, s{sseg}, 31")
        a(f"s_lshl_b32 s7, s7, 4")
        a(f"s_add_u32 s7, s7, s5")
        a(f"v_mov_b32 v{v0}, s6")
        a("s_mov_b64 exec, 1")
        a(f"buffer_store_dword v{v0}, v{vz}, s[{SRD_WS}:{SRD_WS + 3}], s7 offen offset:{16 + 4 * k}")
        a.vmq.pop()
        a("s_mov_b64 exec, -1")


DBGT = int(os.environ.get("DBGT", "0"))


def stamp_max(a, word, v0, v1, cond=None):
    if DBGT:
        L = a.newlabel("Lsm")
        if cond:
            a(f"s_cmp_lg_u32 s{cond[0]}, {cond[1]}")
            a(f"s_cbranch_scc1 {L}")
        sn = a.snap()
        a("s_memrealtime s[6:7]")
        a.force_wait(lg=0)
        a("s_sub_u32 s6, s6, s5")
        a(f"v_mov_b32 v{v0}, {word}" if isinstance(word, str) else f"v_mov_b32 v{v0}, {4 * word}")
        a(f"v_mov_b32 v{v1}, s6")
        a("s_mov_b64 exec, 1")
        a(f"global_atomic_umax v{v0}, v{v1}, s[{S_DBG}:{S_DBG + 1}]")
        a("s_mov_b64 exec, -1")
        a.restore(sn)
        a.label(L)


_MAPS = {0: {2: [("W", 24), ("P", 8)], 3: [("W", 12), ("P", 20)], 4: [("A", 16), ("O", 5), ("P", 11)],
             5: [("A", 16), ("O", 5), ("P", 11)], 6: [("T", 8), ("P", 23)], 7: [("T", 8), ("P", 23)]},
         1: {2: [("W", 12), ("P", 20)], 3: [("W", 12), ("P", 20)], 4: [("A", 16), ("O", 5), ("P", 11)],
             5: [("A", 16), ("O", 5), ("P", 11)], 6: [("T", 8), ("W", 12), ("P", 11)], 7: [("T", 8), ("P", 23)]}}
ROLE_MAP = _MAPS[int(os.environ.get("RMAP", "1"))]


def role_slots(ch):
    out = []
    for cls, lst in ROLE_MAP.items():
        t0 = 0
        for c, n in lst:
            if c == ch:
                out += [(cls, t0 + i) for i in range(n)]
            t0 += n
    return out
```

```python
from common import *
import struct, os

WS = f"s[{SRD_WS}:{SRD_WS + 3}]"
L0_AP = 16
L0_T = 16
SLP = int(os.environ.get("SLP", "4"))
AQLDW = int(os.environ.get("AQLDW", "1"))
EARLYF = int(os.environ.get("EARLYF", "0"))


def f32bits(x):
    return struct.unpack("<I", struct.pack("<f", x))[0]


sN0, sN1 = S_FREE, S_FREE + 1
sCL, sCS = S_FREE + 2, S_FREE + 3
sNL, sNS = S_FREE + 4, S_FREE + 5
sLEFT = S_FREE + 6
sPF = S_FREE + 7
sBUF = S_FREE + 8
sNX = S_FREE + 9
sNFL = S_FREE + 10
sPEND = S_FREE + 11
sSELX, sSELY = S_FREE + 12, S_FREE + 13
sO1, sO2, sO3 = S_FREE + 14, S_FREE + 15, S_FREE + 16
sK1, sK2, sK3, sK4 = S_FREE + 17, S_FREE + 18, S_FREE + 19, S_FREE + 20
sE = S_FREE + 22
sNO = S_FREE + 24
sCO = S_FREE + 25
sWQ = S_FREE + 26
sOB = S_FREE + 27
sF0, sF1, sDEC = S_FREE + 28, S_FREE + 29, S_FREE + 30
sLAYS = S_FREE + 31
sSB, sW1K = S_FREE + 34, S_FREE + 35
sX0, sX1 = S_FREE + 32, S_FREE + 33

vL16, vFLA, vFLV, vONE, vZERO, vT0, vT1, vC, vG = range(9)
XBUF = X_SEG


def seq(a, *items):
    for it in items:
        if isinstance(it, (list, tuple)):
            seq(a, *it)
        elif callable(it):
            it()
        elif it:
            a(it)


def MF(acc, A, B, C=None):
    return f"v_mfma_f32_16x16x32_bf16 {vr(acc, 4)}, {A}, {B}, {vr(acc, 4) if C is None else C}"


def lane_setup(a, nflags):
    a(f"""
    v_and_b32 v{vT0}, 63, v0
    v_lshlrev_b32 v{vL16}, 4, v{vT0}
    v_and_b32 v{vC}, 15, v{vT0}
    v_lshrrev_b32 v{vG}, 4, v{vT0}
    v_min_u32 v{vFLA}, {nflags - 1}, v{vT0}
    v_lshrrev_b32 v{vT1}, 2, v{vFLA}
    v_and_b32 v{vFLA}, 3, v{vFLA}
    v_lshlrev_b32 v{vFLA}, 2, v{vFLA}
    v_lshl_add_u32 v{vFLA}, v{vT1}, 7, v{vFLA}
    v_mov_b32 v{vONE}, 1
    v_mov_b32 v{vZERO}, 0
    s_mov_b32 s{sSELX}, 0x05040100
    s_mov_b32 s{sSELY}, 0x07060302
    """)


def pick_next(a, step, l0):
    a(f"""
    s_add_u32 s{S_TMP}, s{sN1}, {l0}
    s_min_u32 s{S_TMP}, s{S_TMP}, {NSEG}
    s_cmp_lt_u32 s{sN0}, s{S_TMP}
    s_cselect_b32 s{sNL}, 0, 1
    s_cselect_b32 s{sNS}, s{sN0}, s{sN1}
    s_cselect_b32 s{S_TMP}, {step}, 0
    s_cselect_b32 s{S_TMP + 1}, 0, {step}
    s_add_u32 s{sN0}, s{sN0}, s{S_TMP}
    s_add_u32 s{sN1}, s{sN1}, s{S_TMP + 1}
    s_lshl_b32 s{sNO}, s{sNL}, 6
    s_add_u32 s{sNO}, s{sNO}, s{sNS}
    """)


def flag_out(a, sreg):
    a("s_mov_b64 exec, 1")
    a(f"buffer_store_dword v{vONE}, v{vZERO}, {WS}, s{sreg} offen sc1")
    a("s_mov_b64 exec, -1")


def flag_block(a, name, abort):
    L = a.newlabel(name)
    a(f"s_mov_b32 s{S_SPIN}, 0")
    a.label(L)
    a(f"buffer_load_dword v{vFLV}, v{vFLA}, {WS}, s{sNFL} offen sc1")
    spin_check(a, abort)
    a(f"v_cmp_eq_u32 vcc, 0, v{vFLV}")
    Ld = a.newlabel(name + "d")
    a(f"s_cbranch_vccz {Ld}")
    a(f"s_sleep {SLP}")
    a(f"s_branch {L}")
    a.label(Ld)


PFS = f"s[{SRD_C}:{SRD_C + 3}]"


STB3 = 0x1C000
sCSB = S_FREE + 39
P3 = int(os.environ.get('P3', '0'))
MBOX = 2 * XBUF + 1024
vFL1 = 15


def cand_addr(a, flag_off):
    a(f"""
    s_mul_i32 s{sF0}, s{sN0}, {FL_STRIDE}
    s_add_u32 s{sF0}, s{sF0}, {WS_FLAGS + flag_off}
    s_cmp_lt_u32 s{sN0}, {NSEG}
    s_cselect_b32 s{sF0}, s{sF0}, {WS_ZERO}
    s_mul_i32 s{sF1}, s{sN1}, {FL_STRIDE}
    s_add_u32 s{sF1}, s{sF1}, {WS_FLAGS + flag_off + NSEG * FL_STRIDE}
    s_cmp_lt_u32 s{sN1}, {NSEG}
    s_cselect_b32 s{sF1}, s{sF1}, {WS_ZERO}
    """)


def sample2(a):
    a(f"buffer_load_dword v{vFLV}, v{vFLA}, {WS}, s{sF0} offen sc1")
    a(f"buffer_load_dword v{vFL1}, v{vFLA}, {WS}, s{sF1} offen sc1")


def decide(a, prio=1):
    a(f"v_cmp_eq_u32 vcc, 0, v{vFLV}")
    a(f"v_cmp_eq_u32 s[{sE}:{sE + 1}], 0, v{vFL1}")
    m = ["vcc", f"s[{sE}:{sE + 1}]"]
    a(f"s_cmp_eq_u64 {m[1 - prio]}, 0")
    a(f"s_cselect_b32 s{sDEC}, {2 - prio}, 0")
    a(f"s_cmp_eq_u64 {m[prio]}, 0")
    a(f"s_cselect_b32 s{sDEC}, {1 + prio}, s{sDEC}")


def take(dec, step, step1=None):
    return [f"s_cmp_eq_u32 s{dec}, 2",
            f"s_cselect_b32 s{sNL}, 1, 0",
            f"s_cselect_b32 s{sNS}, s{sN1}, s{sN0}",
            f"s_cselect_b32 s{S_TMP}, {step if step1 is None else step1}, 0",
            f"s_add_u32 s{sN1}, s{sN1}, s{S_TMP}",
            f"s_cmp_eq_u32 s{dec}, 1",
            f"s_cselect_b32 s{S_TMP}, {step}, 0",
            f"s_add_u32 s{sN0}, s{sN0}, s{S_TMP}",
            f"s_lshl_b32 s{sNO}, s{sNL}, 6",
            f"s_add_u32 s{sNO}, s{sNO}, s{sNS}"]


def poll2(a, name, abort, flag_off, prio=1):
    cand_addr(a, flag_off)
    L = a.newlabel(name)
    a(f"s_mov_b32 s{S_SPIN}, 0")
    a.label(L)
    sample2(a)
    spin_check(a, abort)
    decide(a, prio)
    a(f"s_cmp_lg_u32 s{sDEC}, 0")
    a(f"s_cbranch_scc1 {L}d")
    a(f"s_sleep {SLP}")
    a(f"s_branch {L}")
    a.label(L + "d")


def staged_loop(a, name, abort, done, xbase, xlayer, flag_off, extra_loads, compute, out_flag, nst, vMB, laysel=None, waited=False, epi=None, early=None, vsrc=None, pub2=None):
    crit = [f"s_cmp_eq_u32 s{sDEC}, 2", f"s_cselect_b32 s{sNX}, s{sX1}, s{sX0}",
            f"s_cmp_lg_u32 s{sDEC}, 0", f"s_cselect_b32 s{SRD_C + 2}, {WS_BYTES}, 0"]
    adv_x = [f"s_cmp_eq_u32 s{sDEC}, 2", f"s_cselect_b32 s{S_TMP}, {X_SEG}, 0", f"s_add_u32 s{sX1}, s{sX1}, s{S_TMP}",
             f"s_cmp_eq_u32 s{sDEC}, 1", f"s_cselect_b32 s{S_TMP}, {X_SEG}, 0", f"s_add_u32 s{sX0}, s{sX0}, s{S_TMP}"]

    def dma_ops(srd_):
        ops = []
        for i in range(9):
            pre = []
            if i % 4 == 0:
                pre = [f"s_add_u32 m0, s{sOB}, {i * 1024}", f"s_add_u32 s{sO2}, s{sNX}, {i * 1024}"]
            ops.append(pre + [f"buffer_load_dwordx4 v{vL16 if vsrc is None else vsrc}, {srd_}, s{sO2} offen offset:{(i % 4) * 1024} lds"])
        return ops

    def post():
        a(f"v_mov_b32 v{vT0}, s{sDEC}")
        a(f"ds_write_b32 v{vMB}, v{vT0}")
        a.wait(lg=0)

    def publish():
        a(f"s_cmp_lg_u32 s{sPEND}, 0")
        a("s_cselect_b64 exec, 1, 0")
        if pub2 is None:
            a(f"buffer_store_dword v{vONE}, v{vZERO}, {WS}, s{sPEND} offen sc1")
        else:
            a(f"buffer_store_dwordx2 {vr(pub2, 2)}, v{vZERO}, {WS}, s{sPEND} offen sc1")
        a("s_mov_b64 exec, -1")
        a(f"s_mov_b32 s{sPEND}, 0")

    def cur_from_next():
        a(f"s_mov_b32 s{sCL}, s{sNL}")
        a(f"s_mov_b32 s{sCS}, s{sNS}")
        a(f"s_mov_b32 s{sCO}, s{sNO}")

    def roll():
        Ls = a.newlabel(name + "_ns")
        a(f"s_cmp_lg_u32 s{S_WAVE}, 0")
        a(f"s_cbranch_scc1 {Ls}")
        sn = a.snap()
        cand_addr(a, flag_off)
        sample2(a)
        a.restore(sn)
        a.label(Ls)

    a(f"""
    s_mov_b32 s{sN0}, 0
    s_mov_b32 s{sN1}, 0
    s_mov_b32 s{sLEFT}, {2 * NSEG}
    s_mul_i32 s{sWQ}, s{S_WAVE}, 9216
    s_mov_b32 s{sBUF}, {XBUF}
    s_mov_b32 s{sOB}, s{sWQ}
    s_mov_b32 s{sPEND}, 0
    s_mov_b32 s{SRD_C}, s{SRD_WS}
    s_mov_b32 s{SRD_C + 1}, s{SRD_WS + 1}
    s_mov_b32 s{SRD_C + 2}, 0
    s_mov_b32 s{SRD_C + 3}, 0x00020000
    v_mov_b32 v{vMB}, {MBOX}
    s_add_u32 s{sX0}, s{sWQ}, {xbase}
    s_add_u32 s{sX1}, s{sWQ}, {xbase + xlayer}
    """)
    if laysel is not None:
        a(f"s_cmp_eq_u32 s{laysel}, 0")
        a(f"s_cselect_b32 s{sN0}, 0, {NSEG}")
        a(f"s_cselect_b32 s{sN1}, {NSEG}, 0")
        a(f"s_mov_b32 s{sLEFT}, {NSEG}")
    a(f"ds_write2_b32 v{vMB}, v{vZERO}, v{vZERO} offset0:0 offset1:1")
    a.wait(lg=0)
    if not waited:
        dbg_wait(a, DB_POOL, N_POOL, vT0, vT1, abort, name + "_ini")
    trace(a, vT0, vT1)
    prof_init(a)
    a(f"s_branch {name}_idle0")
    head = name + "_item"
    a.label(head)
    a.restore(([], []))
    prof_begin(a)
    a.force_wait(vm=nst)
    if EARLYF and (laysel is not None or EARLYF > 1):
        a(f"s_cmp_lt_u32 s{sPEND}, {NSEG * FL_STRIDE}")
        a(f"s_cbranch_scc1 {name}_defer")
        a.force_wait(vm=0)
        publish()
    a.label(name + "_defer")
    prof_end(a, 0)
    a(f"s_cmp_lg_u32 s{S_WAVE}, 0")
    a(f"s_cbranch_scc1 {name}_nw0")
    decide(a)
    post()
    a.label(name + "_nw0")
    prof_begin(a)
    a("s_barrier")
    prof_end(a, 1)
    a(f"ds_read_b32 v{vT1}, v{vMB}")
    a(f"""
    v_xor_b32 v{vMB}, 4, v{vMB}
    s_xor_b32 s{sBUF}, s{sBUF}, {XBUF}
    s_xor_b32 s{sOB}, s{sOB}, {XBUF}
    s_xor_b32 s{sSB}, s{sSB}, 0x2000
    s_xor_b32 s{sCSB}, s{sCSB}, 0x2000
    s_sub_u32 s{sLEFT}, s{sLEFT}, 1
    """)
    if epi:
        early()
        a(f"s_cmp_eq_u32 s{sPEND}, 0")
        a(f"s_cbranch_scc1 {name}_noepi")
        lg = list(a.lgq)
        epi()
        assert a.lgq == lg or not a.lgq
        a.lgq = lg
        a.label(name + "_noepi")
    a.vmq = [(frozenset(), "st")] * nst
    ex = extra_loads(PFS)
    tk = take(sDEC, 1)
    pre = ([f"v_readfirstlane_b32 s{sDEC}, v{vT1}"] + crit, [tk[:5], tk[5:], ex[0][:-1], adv_x[:3], adv_x[3:]] if os.environ.get('BSPLIT', '1') == '1' else [tk, ex[0][:-1], adv_x, [], []])
    ex[0] = ex[0][-1:]

    def mid():
        prof_begin(a) if PROF == 1 else None
        a.wait_tag("st")
        prof_end(a, 2) if PROF == 1 else None
        publish()

    compute(pre, dma_ops(PFS), ex, mid, roll)
    out_flag()
    trace_at(a, sCO, vT0, vZERO)
    if name.startswith("Lp"):
        stamp_max(a, 9, vT0, vT1, (sCO, 1)) if DBGT == 2 else None
    cur_from_next()
    if TRACE == 1:
        a.force_wait(vm=0)
        trace(a, vT0, vT1)
        a.force_wait(vm=0)
    a(f"s_min_u32 s{sDEC}, s{sDEC}, s{sLEFT}")
    a(f"s_cmp_lg_u32 s{sDEC}, 0")
    a(f"s_cbranch_scc1 {head}")
    roll()
    a.force_wait(vm=0)
    publish()
    a(f"s_cmp_eq_u32 s{sLEFT}, 0")
    a(f"s_cbranch_scc1 {name}_end")
    a(f"s_cmp_lg_u32 s{S_WAVE}, 0")
    a(f"s_cbranch_scc1 {name}_nw1")
    decide(a)
    a(f"s_cmp_lg_u32 s{sDEC}, 0")
    a(f"s_cbranch_scc1 {name}_got")
    a.label(name + "_idle0")
    a.restore(([], []))
    a(f"s_cmp_lg_u32 s{S_WAVE}, 0")
    a(f"s_cbranch_scc1 {name}_nw1")
    poll2(a, name + "_pl", abort, flag_off)
    a.label(name + "_got")
    post()
    a.label(name + "_nw1")
    a("s_barrier")
    a(f"ds_read_b32 v{vT1}, v{vMB}")
    a(f"v_xor_b32 v{vMB}, 4, v{vMB}")
    a(f"v_readfirstlane_b32 s{sDEC}, v{vT1}")
    a(f"s_cmp_eq_u32 s{sDEC}, 0")
    a(f"s_cbranch_scc1 {abort}")
    seq(a, crit, take(sDEC, 1), adv_x, dma_ops(WS), extra_loads(WS))
    cur_from_next()
    roll()
    a.force_wait(vm=0)
    if PROF:
        a("s_add_u32 s96, s96, 1000")
    a(f"s_branch {head}")
    a.label(name + "_end")
    prof_dump(a, vT0, vT1)
    a(f"s_branch {done}")


WB = 112


def MF32(acc, A, B, C=None):
    return f"v_mfma_f32_32x32x16_bf16 {vr(acc, 16)}, {A}, {B}, {vr(acc, 16) if C is None else C}"


def load_cols(a, srdb, vad, vsel, items, nt=os.environ.get("NT_P", "")):
    D = 28
    n = len(items)
    for i in range(n + D):
        if i < n:
            r = 16 + 2 * (i % 48)
            a(f"s_add_u32 s{S_TMP}, s{sK1}, {items[i][0]}")
            a(f"buffer_load_dword v{r}, v{vad}, s[{srdb}:{srdb + 3}], s{S_TMP} offen {nt}")
            a(f"buffer_load_dword v{r + 1}, v{vad + 1}, s[{srdb}:{srdb + 3}], s{S_TMP} offen {nt}")
        j = i - D
        if j >= 0:
            r = 16 + 2 * (j % 48)
            a(f"v_perm_b32 v{items[j][1]}, v{r + 1}, v{r}, v{vsel}")


def feat_of_row(a, dst, row, t1):
    a(f"""
    v_and_b32 v{dst}, 19, v{row}
    v_bfe_u32 v{t1}, v{row}, 2, 1
    v_lshl_add_u32 v{dst}, v{t1}, 3, v{dst}
    v_bfe_u32 v{t1}, v{row}, 3, 1
    v_lshl_add_u32 v{dst}, v{t1}, 2, v{dst}
    """)


def sel_of_parity(a, vsel, par, t1):
    a(f"""
    v_mov_b32 v{vsel}, s{sSELX}
    v_mov_b32 v{t1}, s{sSELY}
    v_cmp_eq_u32 vcc, 1, v{par}
    v_cndmask_b32 v{vsel}, v{vsel}, v{t1}, vcc
    """)


def gemm32(a, acc, swap, vXA, ring, pre, dma, extra, mid, roll, init=None, fill=None, issued=False):
    nr = len(ring)

    def rd(t):
        return f"ds_read_b128 {vr(ring[t % nr], 4)}, v{vXA} offset:{t * 1024}"
    if PROF == 2:
        a("s_memtime s[84:85]")
    if not issued:
        for t in range(nr - 1):
            a(rd(t))
    fill = list(fill or [])
    crit, blocks = pre
    blocks = list(blocks)
    vm = list(dma) + list(extra)
    for t in range(36):
        x, w = vr(ring[t % nr], 4), vr(WB + 4 * t, 4)
        a(MF32(acc, x if swap else w, w if swap else x, "0" if (t == 0 and not init) else None))
        if t + nr - 1 < 36:
            a(rd(t + nr - 1))
        k = 3 if t < 16 else 4
        if t == 1:
            seq(a, crit); k = 0
        elif t >= 2 and t % 2 == 1 and blocks:
            k = min(3, 5 - len(blocks[0]))
            seq(a, blocks.pop(0))
        elif t >= 2 and vm and (len(vm) > len(extra) or len(blocks) <= 2):
            assert len(vm) > len(extra) or len(blocks) <= 2
            seq(a, vm.pop(0)); k -= 2
        while fill and k > 0:
            seq(a, fill.pop(0)); k -= 1
        if t == 10:
            mid()
        if t == 16:
            roll()
    assert not vm and not fill and not blocks
    if PROF == 2:
        a("s_memtime s[86:87]")
        a.force_wait(lg=0)
        a("s_sub_u32 s86, s86, s84")
        a("s_add_u32 s97, s97, s86")


VMDENSE = int(os.environ.get("VMDENSE", "1"))
STB = 0x14000


def stats_dma(base, srd_):
    pre = [f"s_mul_i32 s{sO3}, s{sNL}, {2 * ST_BYTES}", f"s_mul_i32 s{S_TMP + 1}, s{sNS}, {ST_SEG}",
           f"s_add_u32 s{sO3}, s{sO3}, s{S_TMP + 1}", f"s_add_u32 s{sO3}, s{sO3}, {base + 4096}"]
    return [pre + [[f"s_add_u32 m0, s{sSB}, 4096", f"s_nop 0",
                    f"buffer_load_dwordx4 v{vL16}, {srd_}, s{sO3} offen lds"]],
            [f"s_add_u32 m0, s{sSB}, s{sW1K}", f"s_sub_u32 s{sO3}, s{sO3}, 4096", f"s_add_u32 s{sO3}, s{sO3}, s{sW1K}",
             f"buffer_load_dwordx4 v{vL16}, {srd_}, s{sO3} offen lds"]]


def stats_loads(base, STR, vaddr, srd_):
    pre = [f"s_mul_i32 s{sO3}, s{sNL}, {2 * ST_BYTES}", f"s_mul_i32 s{S_TMP + 1}, s{sNS}, {ST_SEG}",
           f"s_add_u32 s{sO3}, s{sO3}, s{S_TMP + 1}", f"s_add_u32 s{sO3}, s{sO3}, {base}"]
    ops = [[f"buffer_load_dwordx4 {vr(STR + 4 * i, 4)}, v{vaddr}, {srd_}, s{sO3} offen offset:{512 * i}"] for i in range(6)]
    ops[0] = pre + ops[0]
    return ops


def stats_math(STR, RS, MR):
    ops = []
    for i in range(1, 5):
        ops += [f"v_add_f32 v{STR + j}, v{STR + j}, v{STR + 4 * i + j}" for j in range(4)]
    S1, S2 = STR, STR + 1
    ops += [f"v_add_f32 v{S1}, v{S1}, v{STR + 2}", f"v_add_f32 v{S2}, v{S2}, v{STR + 3}",
            f"v_mov_b32 v{STR + 2}, v{S1}", f"v_mov_b32 v{STR + 3}, v{S2}",
            f"v_permlane32_swap_b32 v{S1}, v{STR + 2}", f"v_permlane32_swap_b32 v{S2}, v{STR + 3}",
            f"v_add_f32 v{S1}, v{S1}, v{STR + 2}", f"v_add_f32 v{S2}, v{S2}, v{STR + 3}",
            f"v_mul_f32 v{S1}, {hex(f32bits(1.0 / 576))}, v{S1}",
            f"v_mul_f32 v{S2}, {hex(f32bits(1.0 / 576))}, v{S2}",
            f"v_fma_f32 v{S2}, -v{S1}, v{S1}, v{S2}",
            f"v_max_f32 v{S2}, 0, v{S2}",
            f"v_add_f32 v{S2}, {hex(f32bits(1e-5))}, v{S2}",
            f"v_rsq_f32 v{RS}, v{S2}",
            f"v_mul_f32 v{MR}, v{S1}, v{RS}"]
    return ops


def role_p(a, abort, done):
    lane_setup(a, 18)
    vXA, vSTA, vCS, vA0, vLDS, vO = 9, 10, 11, 12, 12, 14
    vMB = 108
    ACC, RING, STR, LN = 16, 32, 56, 76
    TT = 96
    CS = 80
    a(f"""
    s_lshr_b32 s{sK2}, s{S_ROLE}, 5
    s_and_b32 s{sK3}, s{S_ROLE}, 31
    s_lshl_b32 s{S_TMP}, s{sK2}, 3
    s_add_u32 s{S_TMP}, s{S_TMP}, {KA_WQ}
    s_load_dwordx2 s[{SRD_A}:{SRD_A + 1}], s[0:1], s{S_TMP}
    s_mov_b32 s{SRD_A + 2}, {576 * 8192}
    s_mov_b32 s{SRD_A + 3}, 0x00020000
    s_lshl_b32 s{sK1}, s{sK3}, 8
    s_lshl_b32 s{S_TMP}, s{S_WAVE}, 6
    s_add_u32 s{sK1}, s{sK1}, s{S_TMP}
    v_bfe_u32 v{vSTA}, v{vL16}, 4, 5
    """)
    feat_of_row(a, vO, vSTA, vT0)
    a(f"""
    v_bfe_u32 v{vT0}, v{vL16}, 8, 1
    v_lshl_add_u32 v{vT1}, v{vC}, 1, v{vT0}
    s_cmp_eq_u32 s{sK2}, 2
    s_cselect_b64 vcc, -1, 0
    v_cndmask_b32 v{vO}, v{vO}, v{vT1}, vcc
    v_and_b32 v{vT0}, 1, v{vO}
    """)
    sel_of_parity(a, vCS, vT0, vT1)
    a(f"""
    v_and_b32 v{vO}, 30, v{vO}
    v_lshrrev_b32 v{vT0}, 9, v{vL16}
    v_lshlrev_b32 v{vA0}, 16, v{vT0}
    v_lshl_add_u32 v{vA0}, v{vO}, 1, v{vA0}
    v_add_u32 v{vA0 + 1}, 8192, v{vA0}
    v_lshlrev_b32 v{vSTA}, 4, v{vSTA}
    v_mul_u32_u24 v{vT1}, 2560, v{vT0}
    v_add_u32 v{vSTA}, v{vSTA}, v{vT1}
    v_add_u32 v{vSTA}, {STB3}, v{vSTA}
    s_lshl_b32 s{sW1K}, s{S_WAVE}, 10
    v_bfe_u32 v{vT1}, v{vL16}, 8, 1
    v_lshlrev_b32 v{vO}, 10, v{vT1}
    v_lshl_add_u32 v{vO}, v{vC}, 4, v{vO}
    v_lshl_add_u32 v{vO}, v{vT0}, 8, v{vO}
    """)
    a.force_wait(lg=0)
    a(f"s_and_b32 s{SRD_A + 1}, s{SRD_A + 1}, 0xffff")
    load_cols(a, SRD_A, vA0, vCS, [((16 * t + 2 * d) * 8192, WB + 4 * t + d) for t in range(36) for d in range(4)])
    a(f"""
    s_mul_i32 s{sK4}, s{sK2}, {QKV_M}
    s_lshl_b32 s{S_TMP}, s{sK3}, 13
    s_add_u32 s{sK4}, s{sK4}, s{S_TMP}
    s_lshl_b32 s{S_TMP}, s{S_WAVE}, 11
    s_add_u32 s{sK4}, s{sK4}, s{S_TMP}
    s_add_u32 s{sK4}, s{sK4}, {WS_QKV}
    s_lshl_b32 s{sK1}, s{sK3}, 9
    s_lshl_b32 s{S_TMP}, s{sK2}, 7
    s_add_u32 s{sK1}, s{sK1}, s{S_TMP}
    s_lshl_b32 s{S_TMP}, s{S_WAVE}, 2
    s_add_u32 s{sK1}, s{sK1}, s{S_TMP}
    s_add_u32 s{sK1}, s{sK1}, {WS_FLAGS + FL_QKV}
    v_mov_b32 v{RING}, 0x3f803f80
    v_mov_b32 v{RING + 1}, 0x3f803f80
    v_mov_b32 v{RING + 2}, 0x3f803f80
    v_mov_b32 v{RING + 3}, 0x3f803f80
    s_lshl_b32 s{S_TMP}, s{S_WAVE}, 8
    s_add_u32 s{S_TMP}, s{S_TMP}, {3 * XBUF}
    v_bfe_u32 v{vT0}, v{vL16}, 4, 5
    v_lshl_add_u32 v{vLDS}, v{vT0}, 2, s{S_TMP}
    v_lshrrev_b32 v{vT0}, 9, v{vL16}
    v_lshl_add_u32 v{vLDS + 1}, v{vT0}, 4, s{S_TMP}
    s_cmp_eq_u32 s{sK2}, 2
    s_cbranch_scc1 Lp_v
    """)
    for swap in (0, 1):
        nm = "LpV" if swap else "LpQ"
        if swap:
            a.label("Lp_v")
            a.restore(([], []))
        for t in range(36):
            w, o = vr(WB + 4 * t, 4), vr(RING, 4)
            a(MF32(ACC if swap else CS, o if swap else w, w if swap else o, "0" if t == 0 else None))
        if swap:
            a(f"v_mov_b32 v{vCS}, v{ACC}")

        def early():
            a(f"v_add_u32 v{vXA}, s{sBUF}, v{vL16}")
            a(f"v_add_u32 v{vT0}, s{sCSB}, v{vSTA}")
            for t in range(3):
                a(f"ds_read_b128 {vr(RING + 4 * t, 4)}, v{vXA} offset:{t * 1024}")
            for i in range(5):
                a(f"ds_read_b128 {vr(STR + 4 * i, 4)}, v{vT0} offset:{512 * i}")

        def compute(pre, dma, extra, mid, roll, swap=swap):
            early()
            sm = [None] * 3 + stats_math(STR, LN, LN + 1)
            if swap:
                sm += [f"ds_write2_b32 v{vLDS}, v{LN}, v{LN + 1} offset0:0 offset1:32"]
                sm += [f"ds_read_b128 {vr(LN + 4 * i, 4)}, v{vLDS + 1} offset:{(i >> 2) * 128 + (i & 3) * 32}" for i in range(8)]
                sm += [None] * 9 + [f"v_mul_f32 v{LN + 16 + i}, v{vCS}, v{LN + 16 + i}" for i in range(16)]
            else:
                sm += [f"v_mul_f32 v{TT + i}, v{LN + 1}, v{CS + i}" for i in range(16)]
            sm += [f"s_mul_i32 s{sO1}, s{sCL}, {3 * QKV_M}", f"s_lshl_b32 s{sK3}, s{sCS}, 18",
                   f"s_add_u32 s{sO1}, s{sO1}, s{sK3}", f"s_add_u32 s{sO1}, s{sO1}, s{sK4}"]
            gemm32(a, ACC, swap, vXA, [RING + 4 * i for i in range(4)], pre, dma, extra, mid, roll, fill=sm, issued=True)
            epi()

        def epi(swap=swap):
            for k in range(2):
                regs = [0, 1, 2, 3, 8, 9, 10, 11] if swap else list(range(8))
                regs = [r + (4 if swap else 8) * k for r in regs]
                for i in regs[::2]:
                    if swap:
                        a(f"v_pk_fma_f32 {vr(ACC + i, 2)}, {vr(ACC + i, 2)}, {vr(LN + i, 2)}, {vr(LN + 16 + i, 2)} neg_lo:[0,0,1] neg_hi:[0,0,1]")
                    else:
                        a(f"v_pk_fma_f32 {vr(ACC + i, 2)}, {vr(ACC + i, 2)}, {vr(LN, 2)}, {vr(TT + i, 2)} op_sel_hi:[1,0,1] neg_lo:[0,0,1] neg_hi:[0,0,1]")
                o = RING + 16 + 4 * k
                for i in range(4):
                    a(f"v_cvt_pk_bf16_f32 v{o + i}, v{ACC + regs[2 * i]}, v{ACC + regs[2 * i + 1]}")
                a(f"buffer_store_dwordx4 {vr(o, 4)}, v{vO}, {WS}, s{sO1} offen offset:{512 * k} sc1", tag="st")

        def out_flag():
            a(f"s_mul_i32 s{sPEND}, s{sCO}, {FL_STRIDE}")
            a(f"s_add_u32 s{sPEND}, s{sPEND}, s{sK1}")

        a(f"s_mov_b32 s{sSB}, {STB3}")
        a(f"s_mov_b32 s{sCSB}, 0x2000")
        staged_loop(a, nm, abort, done, WS_X + X_BYTES, 2 * X_BYTES, FL_XB,
                    lambda sr_: stats_dma(WS_ST + ST_BYTES, sr_), compute, out_flag, 2, vMB if swap else 78)


def role_awo(a, abort, done):
    lane_setup(a, 64)
    vXA, vSTO, vSEL, vA0, vRES = 9, 10, 11, 12, 14
    ACC, RING, RES, SS = 16, 32, 64, 72
    if AQLDW:
        a(f"s_cmp_lt_u32 s{S_ROLE}, 5")
        a("s_cbranch_scc1 Lawo_noord")
        dbg_wait(a, DB_LOADED, AQLDW, vT0, vT1, abort, "Lawo_ord", 64)
        a.label("Lawo_noord")
    srd(a, SRD_A, KA_WO, 576 * 1152)
    a(f"""
    s_cmp_ge_u32 s{S_ROLE}, 5
    s_cselect_b32 s{sLAYS}, 1, 0
    s_cselect_b32 s{S_TMP}, 5, 0
    s_sub_u32 s{S_ROLE}, s{S_ROLE}, s{S_TMP}
    s_lshl_b32 s{sK2}, s{S_ROLE}, 2
    s_add_u32 s{sK2}, s{sK2}, s{S_WAVE}
    s_min_u32 s{sK2}, s{sK2}, 17
    s_lshl_b32 s{sK1}, s{sK2}, 6
    v_bfe_u32 v{vSTO}, v{vL16}, 4, 5
    """)
    feat_of_row(a, vRES, vSTO, vT0)
    a(f"v_and_b32 v{vT0}, 1, v{vRES}")
    sel_of_parity(a, vSEL, vT0, vT1)
    a(f"""
    v_and_b32 v{vRES}, 30, v{vRES}
    v_lshlrev_b32 v{vRES}, 1, v{vRES}
    v_lshrrev_b32 v{vXA}, 9, v{vL16}
    v_mul_u32_u24 v{vT0}, {8 * 1152}, v{vXA}
    v_add_u32 v{vA0}, v{vT0}, v{vRES}
    v_add_u32 v{vA0 + 1}, 1152, v{vA0}
    """)
    load_cols(a, SRD_A, vA0, vSEL, [((18 * t + 2 * d) * 1152, WB + 4 * t + d) for t in range(32) for d in range(4)])
    a(f"""
    v_mul_u32_u24 v{vT0}, {72 * 1152}, v{vXA}
    v_add_u32 v{vA0}, v{vT0}, v{vRES}
    v_add_u32 v{vA0 + 1}, 1152, v{vA0}
    """)
    load_cols(a, SRD_A, vA0, vSEL, [((144 * t + 18 * d + 16) * 1152, WB + 128 + 4 * t + d) for t in range(4) for d in range(4)])
    a(f"""
    v_lshlrev_b32 v{vSTO}, 4, v{vSTO}
    v_lshl_add_u32 v{vRES}, v{vXA}, 9, v{vSTO}
    s_lshl_b32 s{S_TMP}, s{sK2}, 11
    v_add_u32 v{vRES}, s{S_TMP}, v{vRES}
    s_lshr_b32 s{S_TMP}, s{sK2}, 1
    s_lshl_b32 s{S_TMP}, s{S_TMP}, 9
    s_and_b32 s{S_TMP + 1}, s{sK2}, 1
    s_lshl_b32 s{S_TMP + 1}, s{S_TMP + 1}, 3
    s_add_u32 s{S_TMP}, s{S_TMP}, s{S_TMP + 1}
    v_add_u32 v{vSTO}, s{S_TMP}, v{vSTO}
    s_lshr_b32 s{sK1}, s{sK2}, 2
    s_lshl_b32 s{sK1}, s{sK1}, 7
    s_and_b32 s{S_TMP}, s{sK2}, 3
    s_lshl_b32 s{S_TMP}, s{S_TMP}, 2
    s_add_u32 s{sK1}, s{sK1}, s{S_TMP}
    s_add_u32 s{sK1}, s{sK1}, {WS_FLAGS + FL_XB}
    """)

    def res_loads(srd_):
        pre = [f"s_mul_i32 s{sO3}, s{sNL}, {2 * X_BYTES}", f"s_mul_i32 s{S_TMP + 1}, s{sNS}, {X_SEG}",
               f"s_add_u32 s{sO3}, s{sO3}, s{S_TMP + 1}", f"s_add_u32 s{sO3}, s{sO3}, {WS_X}"]
        ops = [[f"buffer_load_dwordx4 {vr(RES + 4 * k, 4)}, v{vRES}, {srd_}, s{sO3} offen offset:{1024 * k}"] for k in range(2)]
        ops[0] = pre + ops[0]
        return ops

    AOST = int(os.environ.get("AOST", "14"))
    AODEC = int(os.environ.get("AODEC", "32"))

    def compute(start, decide, vm):
        vm = list(vm)
        a(f"v_add_u32 v{vXA}, s{sBUF}, v{vL16}")
        nr = 8
        ring = [RING + 4 * i for i in range(nr)]

        def rd(t):
            return f"ds_read_b128 {vr(ring[t % nr], 4)}, v{vXA} offset:{t * 1024}"
        for t in range(nr - 1):
            a(rd(t))
        for i in range(8):
            a(f"v_lshlrev_b32 v{ACC + 2 * i}, 16, v{RES + i}")
            a(f"v_and_b32 v{ACC + 2 * i + 1}, 0xffff0000, v{RES + i}")
        fl = [f"s_mul_i32 s{sO1}, s{sCL}, {2 * X_BYTES}", f"s_mul_i32 s{sK3}, s{sCS}, {X_SEG}",
              f"s_add_u32 s{sO1}, s{sO1}, s{sK3}", f"s_add_u32 s{sO1}, s{sO1}, {WS_X + X_BYTES}",
              f"s_mul_i32 s{sK4}, s{sCL}, {2 * ST_BYTES}", f"s_mul_i32 s{sK3}, s{sCS}, {ST_SEG}",
              f"s_add_u32 s{sK4}, s{sK4}, s{sK3}", f"s_add_u32 s{sK4}, s{sK4}, {WS_ST + ST_BYTES}"]
        for t in range(36):
            a(MF32(ACC, vr(WB + 4 * t, 4), vr(ring[t % nr], 4), None))
            if t + nr - 1 < 36:
                a(rd(t + nr - 1))
            if fl:
                a(fl.pop(0))
            if t == AOST:
                start()
            if t == AODEC:
                decide()
            elif t > AODEC and vm:
                seq(a, vm.pop(0))
                if vm:
                    seq(a, vm.pop(0))
        seq(a, vm)
        for k in range(2):
            for i in range(4):
                a(f"v_cvt_pk_bf16_f32 v{RING + 4 * k + i}, v{ACC + 8 * k + 2 * i}, v{ACC + 8 * k + 2 * i + 1}")
            a(f"buffer_store_dwordx4 {vr(RING + 4 * k, 4)}, v{vRES}, {WS}, s{sO1} offen offset:{1024 * k} sc1")
        a(f"v_add_f32 v{SS}, v{ACC}, v{ACC + 1}")
        a(f"v_mul_f32 v{SS + 1}, v{ACC}, v{ACC}")
        a(f"v_fmac_f32 v{SS + 1}, v{ACC + 1}, v{ACC + 1}")
        for i in range(2, 16):
            a(f"v_add_f32 v{SS}, v{SS}, v{ACC + i}")
            a(f"v_fmac_f32 v{SS + 1}, v{ACC + i}, v{ACC + i}")
        seq(a, f"v_mov_b32 v{SS + 2}, v{SS}", f"v_mov_b32 v{SS + 3}, v{SS + 1}",
            f"v_permlane32_swap_b32 v{SS}, v{SS + 2}", f"v_permlane32_swap_b32 v{SS + 1}, v{SS + 3}",
            f"v_add_f32 v{SS}, v{SS}, v{SS + 2}", f"v_add_f32 v{SS + 1}, v{SS + 1}, v{SS + 3}",
            f"buffer_store_dwordx2 {vr(SS, 2)}, v{vSTO}, {WS}, s{sK4} offen sc1")

    def out_flag():
        a(f"s_mul_i32 s{sPEND}, s{sCO}, {FL_STRIDE}")
        a(f"s_add_u32 s{sPEND}, s{sPEND}, s{sK1}")

    seq_loop(a, "Lawo", abort, done, WS_OA, X_BYTES, FL_OA, res_loads, compute, out_flag, 3, sLAYS, slp=2, DBGW=11)


def role_aq(a, abort, done, nt=""):
    lane_setup(a, 48)
    vXA, vSTA, vLDS, vOUT = 9, 10, 11, 13
    ACC, CS, RING, STR = 16, 36, 56, 68
    LN, BI = 92, 72
    ST8 = 112
    QB, KC, VA, VB, SP, PP = 128, 132, 136, 140, 144, 68
    AQST = int(os.environ.get("AQST", "10"))
    AQDEC = int(os.environ.get("AQDEC", "22"))
    NR = int(os.environ.get("AQNR", "4"))
    RG = [RING, RING + 4, RING + 8, 104][:NR]
    vSRC = 111
    WV = 152

    def wreg(tile, t, i=None):
        n = (tile * 18 + t) * 4
        k, b = ("v", WV + n) if n < 104 else ("a", n - 104)
        return f"{k}[{b}:{b + 3}]" if i is None else f"{k}{b + i}"

    a(f"""
    s_lshr_b32 s{sLAYS}, s{S_ROLE}, 4
    s_and_b32 s{S_ROLE}, s{S_ROLE}, 15
    s_lshl_b32 s{sK2}, s{S_ROLE}, 1
    s_lshr_b32 s{S_TMP}, s{S_WAVE}, 1
    s_add_u32 s{sK2}, s{sK2}, s{S_TMP}
    s_and_b32 s{sK3}, s{S_WAVE}, 1
    s_mul_i32 s{sK1}, s{sK2}, 36
    """)
    if AQLDW:
        a(f"s_cmp_eq_u32 s{sLAYS}, 0")
        a("s_cbranch_scc1 Laq_noord")
        dbg_wait(a, DB_LOADED, AQLDW, vT0, vT1, abort, "Laq_ord", 64)
        a.label("Laq_noord")
    srd(a, SRD_A, KA_WQKV, 576 * 3456)
    A_ = f"s[{SRD_A}:{SRD_A + 3}]"
    SLOT, NSL = 10240, 10
    ZERO = NSL * SLOT
    GA3, TRM, TRE, MSK, TX, CR, CW = 16, 19, 20, 21, 22, 23, 28
    sLB, sHD = sO1, sO2
    for j in range(3):
        a(f"""
        v_lshrrev_b32 v24, 4, v{vL16}
        v_add_u32 v24, {64 * j}, v24
        v_mul_u32_u24 v25, {(65536 + 17) // 18}, v24
        v_lshrrev_b32 v25, 16, v25
        v_mul_u32_u24 v26, 18, v25
        v_sub_u32 v24, v24, v26
        v_mul_u32_u24 v{GA3 + j}, 3456, v25
        v_mul_u32_u24 v25, {(65536 + 2) // 3}, v24
        v_lshrrev_b32 v25, 16, v25
        v_mul_u32_u24 v26, 3, v25
        v_sub_u32 v24, v24, v26
        v_lshl_add_u32 v{GA3 + j}, v24, 4, v{GA3 + j}
        v_cmp_le_u32 vcc, 3, v25
        v_cndmask_b32 v26, 0, 1, vcc
        v_mul_u32_u24 v27, 3, v26
        v_sub_u32 v25, v25, v27
        v_mul_u32_u24 v25, 1152, v25
        v_mul_u32_u24 v26, 36, v26
        v_add3_u32 v{GA3 + j}, v{GA3 + j}, v25, v26
        """)
    a(f"""
    s_mul_i32 s{sK1}, s{S_ROLE}, 72
    s_mul_i32 s{S_TMP}, s{S_WAVE}, {8 * 3456}
    s_add_u32 s{sK1}, s{sK1}, s{S_TMP}
    s_mul_i32 s{sLB}, s{S_WAVE}, 2304
    s_lshr_b32 s{sHD}, s{S_WAVE}, 1
    v_lshrrev_b32 v{vT0}, 2, v{vC}
    v_lshl_add_u32 v{vT0}, v{vG}, 3, v{vT0}
    v_and_b32 v{vT1}, 3, v{vC}
    v_mul_u32_u24 v{TRM}, 288, v{vT0}
    v_lshl_add_u32 v{TRM}, v{vT1}, 3, v{TRM}
    s_mul_i32 s{S_TMP}, s{sHD}, 144
    v_add_u32 v{TRM}, s{S_TMP}, v{TRM}
    v_lshlrev_b32 v{TRE}, 3, v{vT0}
    s_lshl_b32 s{S_TMP + 1}, s{sHD}, 9
    s_add_u32 s{S_TMP + 1}, s{S_TMP + 1}, 9216
    v_add_u32 v{TRE}, s{S_TMP + 1}, v{TRE}
    v_mov_b32 v{TX}, {ZERO}
    v_cmp_eq_u32 vcc, 0, v{vT1}
    v_cndmask_b32 v{TRE}, v{TX}, v{TRE}, vcc
    v_cndmask_b32 v{MSK}, 0, -1, vcc
    v_bfe_u32 v{vT0}, v{vL16}, 4, 5
    v_mul_u32_u24 v{CR}, 288, v{vT0}
    v_add_u32 v{CR}, s{S_TMP}, v{CR}
    v_lshlrev_b32 v{CW}, 3, v{vT0}
    v_add_u32 v{CW}, s{S_TMP + 1}, v{CW}
    v_mov_b32 v24, 0
    v_mov_b32 v25, 0
    v_mov_b32 v26, 0
    v_mov_b32 v27, 0
    v_mov_b32 v33, 0
    v_mov_b32 v{TX}, {ZERO}
    v_lshl_add_u32 v{TX}, v{vC}, 4, v{TX}
    ds_write_b128 v{TX}, v[24:27]
    """)

    def wdma(t):
        base = (t % NSL) * SLOT
        a(f"s_add_u32 s{S_TMP}, s{sK1}, {32 * t * 3456}")
        for j in range(3):
            a(f"s_add_u32 m0, s{sLB}, {base + j * 1024}")
            a("s_mov_b64 exec, 0xffff" if j == 2 else "s_nop 0")
            a(f"buffer_load_dwordx4 v{GA3 + j}, {A_}, s{S_TMP} offen lds")
        a("s_mov_b64 exec, -1")

    def pair(tile, t, hh):
        n = (tile * 18 + t) * 4 + 2 * hh
        k, b = ("v", WV + n) if n < 104 else ("a", n - 104)
        return f"{k}[{b}:{b + 1}]"
    for t in range(NSL - 1):
        wdma(t)
    a.force_wait(lg=0)
    issued = NSL - 1
    for t in range(18):
        a.force_wait(vm=3 * (issued - t - 1))
        a("s_barrier")
        if issued < 18:
            wdma(issued)
            issued += 1
        base = (t % NSL) * SLOT
        a(f"v_add_u32 v34, {base}, v{CR}")
        a(f"v_add_u32 v35, {base}, v{TRM}")
        a(f"ds_read_b32 v30, v34 offset:32")
        a(f"ds_read_b32 v31, v34 offset:{48 + 32}")
        a(f"ds_read_b32 v32, v34 offset:{96 + 32}")
        for tile, m in ((0, 0), (1, 1), (3, 2)):
            for hh in range(2):
                a(f"ds_read_b64_tr_b16 {pair(tile, t, hh)}, v35 offset:{m * 48 + hh * 4 * 288}")
        a(f"v_add_u32 v{TX}, {base}, v{CW}")
        a(f"ds_write_b64 v{TX}, v[30:31]")
        a(f"ds_write_b64 v{TX}, v[32:33] offset:256")
        a.wait(lg=0)
        for tile, off in ((2, 0), (4, 256)):
            a(f"v_and_b32 v{TX}, {base + off}, v{MSK}")
            a(f"v_add_u32 v{TX}, v{TX}, v{TRE}")
            for hh in range(2):
                a(f"ds_read_b64_tr_b16 {pair(tile, t, hh)}, v{TX} offset:{hh * 32}")
        a.wait(lg=0)
    a.force_wait(vm=0, lg=0)
    a("s_barrier")
    for i in range(4):
        a(f"v_mov_b32 v{RING + i}, 0x3f803f80")
    for t in range(18):
        for tile in range(5):
            w, o = wreg(tile, t), vr(RING, 4)
            a(MF(CS + 4 * tile, o if tile >= 3 else w, w if tile >= 3 else o, "0" if t == 0 else None))
    NEG = hex(f32bits(-1e30))
    a(f"""
    v_lshlrev_b32 v{vSTA}, 5, v{vC}
    s_lshl_b32 s{S_TMP}, s{sK3}, 4
    v_add_u32 v{vSTA}, s{S_TMP}, v{vSTA}
    v_mul_u32_u24 v{vT1}, 1536, v{vG}
    v_add_u32 v{vSTA}, v{vSTA}, v{vT1}
    s_lshl_b32 s{S_TMP}, s{S_WAVE}, 7
    s_add_u32 s{S_TMP}, s{S_TMP}, {2 * XBUF}
    v_lshl_add_u32 v{vLDS}, v{vC}, 3, s{S_TMP}
    v_lshl_add_u32 v{vLDS + 1}, v{vG}, 5, s{S_TMP}
    v_lshlrev_b32 v{vOUT}, 5, v{vC}
    s_lshl_b32 s{S_TMP}, s{sK3}, 4
    v_add_u32 v{vOUT}, s{S_TMP}, v{vOUT}
    s_lshr_b32 s{S_TMP}, s{sK2}, 2
    s_add_u32 s{S_TMP}, s{S_TMP}, 64
    s_lshl_b32 s{S_TMP}, s{S_TMP}, 9
    s_and_b32 s{S_TMP + 1}, s{sK2}, 3
    s_lshl_b32 s{S_TMP + 1}, s{S_TMP + 1}, 2
    s_add_u32 s{S_TMP}, s{S_TMP}, s{S_TMP + 1}
    v_add_u32 v{vOUT + 1}, s{S_TMP}, v{vOUT}
    v_lshrrev_b32 v{vT0}, 1, v{vG}
    v_lshl_add_u32 v{vOUT}, v{vT0}, 9, v{vOUT}
    v_and_b32 v{vT0}, 1, v{vG}
    v_lshl_add_u32 v{vOUT}, v{vT0}, 3, v{vOUT}
    s_lshl_b32 s{S_TMP}, s{sK2}, 10
    v_add_u32 v{vOUT}, s{S_TMP}, v{vOUT}
    s_lshl_b32 s{sK1}, s{S_ROLE}, 7
    s_lshl_b32 s{S_TMP}, s{S_WAVE}, 2
    s_add_u32 s{sK1}, s{sK1}, s{S_TMP}
    s_add_u32 s{sK1}, s{sK1}, {WS_FLAGS + FL_OA}
    s_mov_b32 s{sK4}, {hex(f32bits(18 ** -0.5 * 1.4426950408889634))}
    v_mov_b32 v{vT1}, {NEG}
    """)
    for i in range(4):
        a(f"v_lshl_add_u32 v{vT0}, v{vG}, 2, {i}")
        a(f"v_sub_u32 v{vT0}, v{vT0}, v{vC}")
        a(f"v_cmp_le_i32 vcc, 9, v{vT0}")
        a(f"v_cndmask_b32 v{BI + i}, v{vT1}, v{vZERO}, vcc")
        a(f"v_add_u32 v{vT0}, 7, v{vT0}")
        a(f"v_cmp_ge_u32 vcc, 7, v{vT0}")
        a(f"v_cndmask_b32 v{BI + 4 + i}, v{vT1}, v{vZERO}, vcc")
    a(f"v_and_b32 v{vSRC}, 0x200, v{vL16}")
    a(f"v_lshl_add_u32 v{vSRC}, v{vC}, 5, v{vSRC}")
    a(f"v_and_b32 v{vT0}, 1, v{vG}")
    a(f"v_lshl_add_u32 v{vSRC}, v{vT0}, 4, v{vSRC}")
    for r in (ST8, VA, VB):
        for i in range(4):
            a(f"v_mov_b32 v{r + i}, 0")
    for i in range(4):
        a(f"v_mov_b32 v{ST8 + 4 + i}, 0x3f803f80")
    a(f"v_mov_b32 v{QB + 3}, 0")
    a(f"v_mov_b32 v{KC + 3}, 0")

    def st_loads(srd_):
        pre = [f"s_mul_i32 s{sO3}, s{sNL}, {2 * ST_BYTES}", f"s_mul_i32 s{S_TMP + 1}, s{sNS}, {ST_SEG}",
               f"s_add_u32 s{sO3}, s{sO3}, s{S_TMP + 1}", f"s_add_u32 s{sO3}, s{sO3}, {WS_ST}"]
        ops = [[f"buffer_load_dwordx4 {vr(STR + 12 + 4 * i, 4)}, v{vSTA}, {srd_}, s{sO3} offen offset:{512 * i}"] for i in range(3)]
        ops[0] = pre + ops[0]
        return ops

    def compute(start, decide, vm):
        vm = list(vm)
        S0 = STR + 12
        a(f"v_lshlrev_b32 v{vXA}, 9, v{vG}")
        a(f"v_lshl_add_u32 v{vXA}, v{vC}, 4, v{vXA}")
        a(f"s_lshl_b32 s{S_TMP}, s{sK3}, 8")
        a(f"s_add_u32 s{S_TMP}, s{S_TMP}, s{sBUF}")
        a(f"v_add_u32 v{vXA}, s{S_TMP}, v{vXA}")
        S1, S2 = S0, S0 + 1
        sm = [f"v_add_f32 v{S0 + j}, v{S0 + j}, v{S0 + 4 * i + j}" for i in (1, 2) for j in range(4)]
        sm += [f"v_add_f32 v{S1}, v{S1}, v{S0 + 2}", f"v_add_f32 v{S2}, v{S2}, v{S0 + 3}"]
        for sw in (32, 16):
            sm += [f"v_mov_b32 v{S0 + 2}, v{S1}", f"v_mov_b32 v{S0 + 3}, v{S2}",
                   f"v_permlane{sw}_swap_b32 v{S1}, v{S0 + 2}", f"v_permlane{sw}_swap_b32 v{S2}, v{S0 + 3}",
                   f"v_add_f32 v{S1}, v{S1}, v{S0 + 2}", f"v_add_f32 v{S2}, v{S2}, v{S0 + 3}"]
        sm += [f"v_mul_f32 v{S1}, {hex(f32bits(1.0 / 576))}, v{S1}", f"v_mul_f32 v{S2}, {hex(f32bits(1.0 / 576))}, v{S2}",
               f"v_fma_f32 v{S2}, -v{S1}, v{S1}, v{S2}", f"v_max_f32 v{S2}, 0, v{S2}",
               f"v_add_f32 v{S2}, {hex(f32bits(1e-5))}, v{S2}", f"v_rsq_f32 v{LN}, v{S2}",
               f"v_mul_f32 v{LN + 1}, v{S1}, v{LN}",
               f"ds_write_b64 v{vLDS}, {vr(LN, 2)}",
               f"ds_read_b128 {vr(LN + 4, 4)}, v{vLDS + 1}", f"ds_read_b128 {vr(LN + 8, 4)}, v{vLDS + 1} offset:16"]
        def rd(n):
            return f"ds_read_b128 {vr(RG[n % NR], 4)}, v{vXA} offset:{(n % 18) * 2048}"
        q0, k0, ex, v0, vx = [ACC + 4 * i for i in range(5)]
        KP = ST8
        MX, T1 = vT0, vT1
        LQ, OX, OY, ON = ACC, ACC + 4, ACC + 8, ST8 + 4

        def fold(tile):
            ops = []
            for i in range(4):
                r = ACC + 4 * tile + i
                rs, mr = (LN + 4 + 2 * i, LN + 5 + 2 * i) if tile >= 3 else (LN, LN + 1)
                ops += [f"v_mul_f32 v{LN + 2}, v{mr}, v{CS + 4 * tile + i}", f"v_fma_f32 v{r}, v{r}, v{rs}, -v{LN + 2}"]
            return ops
        post = fold(0) + fold(2) + fold(1) + [
            f"v_cvt_pk_bf16_f32 v{QB}, v{q0}, v{q0 + 1}", f"v_cvt_pk_bf16_f32 v{QB + 1}, v{q0 + 2}, v{q0 + 3}",
            f"v_cvt_pk_bf16_f32 v{QB + 2}, v{ex}, v{ex + 1}",
            f"v_cvt_pk_bf16_f32 v{KC}, v{k0}, v{k0 + 1}", f"v_cvt_pk_bf16_f32 v{KC + 1}, v{k0 + 2}, v{k0 + 3}",
            f"v_cvt_pk_bf16_f32 v{KC + 2}, v{ex + 2}, v{ex + 3}",
            [f"s_cmp_eq_u32 s{sCS}, 0", f"s_cselect_b32 s{sO1}, {NEG}, 0"],
            None, MF(SP, vr(KP, 4), vr(QB, 4), "0"), None, MF(SP + 4, vr(KC, 4), vr(QB, 4), "0"), None, None]
        post += [f"v_mov_b32 v{KP + i}, v{KC + i}" for i in range(3)] + [None] * 3
        post += [f"v_fma_f32 v{SP + i}, v{SP + i}, s{sK4}, v{BI + i}" for i in range(8)]
        post += [f"v_add_f32 v{SP + i}, s{sO1}, v{SP + i}" for i in range(4)]
        post += [f"v_max3_f32 v{MX}, v{SP}, v{SP + 1}, v{SP + 2}", f"v_max3_f32 v{MX}, v{MX}, v{SP + 3}, v{SP + 4}",
                 f"v_max3_f32 v{MX}, v{MX}, v{SP + 5}, v{SP + 6}", f"v_max_f32 v{MX}, v{MX}, v{SP + 7}",
                 f"v_mov_b32 v{T1}, v{MX}", None, f"v_permlane32_swap_b32 v{MX}, v{T1}", f"v_max_f32 v{MX}, v{MX}, v{T1}",
                 f"v_mov_b32 v{T1}, v{MX}", None, f"v_permlane16_swap_b32 v{MX}, v{T1}", f"v_max_f32 v{MX}, v{MX}, v{T1}"]
        post += [f"v_sub_f32 v{SP + i}, v{SP + i}, v{MX}" for i in range(8)]
        post += [f"v_exp_f32 v{SP + i}, v{SP + i}" for i in range(8)]
        post += [f"v_cvt_pk_bf16_f32 v{PP + i}, v{SP + 2 * i}, v{SP + 2 * i + 1}" for i in range(4)]
        post += [None, MF(LQ, vr(ON, 4), vr(PP, 4), "0"),
                 [f"s_mul_i32 s{sO1}, s{sCO}, {X_SEG}", f"s_add_u32 s{sO1}, s{sO1}, {WS_OA}"]]
        seq(a, [rd(i) for i in range(NR - 1)])
        if PROF == 3:
            prof_begin(a)
        for n in range(36):
            t = n % 18
            if PROF == 3 and n == 18:
                prof_end(a, 3); prof_begin(a)
            if n + NR - 1 < 36:
                a(rd(n + NR - 1))
            x = vr(RG[n % NR], 4)
            for tile in ((0, 1, 2) if n < 18 else (3, 4)):
                w = wreg(tile, t)
                a(MF(ACC + 4 * tile, x if tile >= 3 else w, w if tile >= 3 else x, "0" if t == 0 else None))
                if n < 18 and sm:
                    a(sm.pop(0))
                if n >= 19:
                    for _ in range(3 if n >= 30 else 2):
                        if post:
                            seq(a, post.pop(0))
            if n == AQST:
                start()
            if n == 17:
                assert not sm
            if n == AQDEC:
                decide()
            elif n > AQDEC and vm:
                seq(a, vm.pop(0))
        assert not vm
        if PROF == 3:
            prof_end(a, 4); prof_begin(a)
        seq(a, post, f"v_rcp_f32 v{T1}, v{LQ}", fold(3),
            f"v_cvt_pk_bf16_f32 v{VA + 2}, v{v0}, v{v0 + 1}", f"v_cvt_pk_bf16_f32 v{VA + 3}, v{v0 + 2}, v{v0 + 3}",
            fold(4)[:2], MF(OX, vr(VA, 4), vr(PP, 4), "0"), fold(4)[2:],
            f"v_cvt_pk_bf16_f32 v{VB + 2}, v{vx}, v{vx + 1}", f"v_cvt_pk_bf16_f32 v{VB + 3}, v{vx + 2}, v{vx + 3}",
            f"v_mov_b32 v{VA}, v{VA + 2}", f"v_mov_b32 v{VA + 1}, v{VA + 3}",
            MF(OY, vr(VB, 4), vr(PP, 4), "0"),
            [f"v_mul_f32 v{OX + i}, v{T1}, v{OX + i}" for i in range(4)],
            f"v_cvt_pk_bf16_f32 v{OX}, v{OX}, v{OX + 1}", f"v_cvt_pk_bf16_f32 v{OX + 1}, v{OX + 2}, v{OX + 3}",
            f"buffer_store_dwordx2 {vr(OX, 2)}, v{vOUT}, {WS}, s{sO1} offen sc1",
            f"v_mov_b32 v{VB}, v{VB + 2}", f"v_mov_b32 v{VB + 1}, v{VB + 3}",
            f"v_mul_f32 v{OY}, v{T1}, v{OY}", f"v_mul_f32 v{OY + 1}, v{T1}, v{OY + 1}",
            f"v_cvt_pk_bf16_f32 v{OY}, v{OY}, v{OY + 1}",
            "s_mov_b64 exec, 0xffff",
            f"buffer_store_dword v{OY}, v{vOUT + 1}, {WS}, s{sO1} offen sc1",
            "s_mov_b64 exec, -1")
        if PROF == 3:
            prof_end(a, 5)

    def out_flag():
        a(f"s_mul_i32 s{sPEND}, s{sCO}, {FL_STRIDE}")
        a(f"s_add_u32 s{sPEND}, s{sPEND}, s{sK1}")

    seq_loop(a, "Laq", abort, done, WS_X, 2 * X_BYTES, FL_XA, st_loads, compute, out_flag, 2, sLAYS, vsrc=vSRC, DBGW=9)


def seq_loop(a, name, abort, done, xbase, xlayer, flag_off, extra_loads, compute, out_flag, nst, laysel, prefetch=True,
             vsrc=None, pub2=None, slp=None, DBGW=None):
    slp = SLP if slp is None else slp

    def dma_ops(srd_):
        ops = []
        for i in range(9):
            pre = []
            if i % 4 == 0:
                pre = [f"s_add_u32 m0, s{sOB}, {i * 1024}", f"s_add_u32 s{sO2}, s{sNX}, {i * 1024}"]
            ops.append(pre + [f"buffer_load_dwordx4 v{vL16 if vsrc is None else vsrc}, {srd_}, s{sO2} offen offset:{(i % 4) * 1024} lds"])
        return ops

    def publish():
        a(f"s_cmp_lg_u32 s{sPEND}, 0")
        a("s_cselect_b64 exec, 1, 0")
        if pub2 is None:
            a(f"buffer_store_dword v{vONE}, v{vZERO}, {WS}, s{sPEND} offen sc1")
        else:
            a(f"buffer_store_dwordx2 {vr(pub2, 2)}, v{vZERO}, {WS}, s{sPEND} offen sc1")
        a("s_mov_b64 exec, -1")
        a(f"s_mov_b32 s{sPEND}, 0")

    a(f"""
    s_mov_b32 s{sNL}, s{laysel}
    s_mov_b32 s{sCL}, s{laysel}
    s_mov_b32 s{sNS}, 0
    s_lshl_b32 s{sNO}, s{laysel}, 6
    s_mul_i32 s{sWQ}, s{S_WAVE}, 9216
    s_mov_b32 s{sBUF}, {XBUF}
    s_mov_b32 s{sOB}, s{sWQ}
    s_mov_b32 s{sPEND}, 0
    s_mov_b32 s{SRD_C}, s{SRD_WS}
    s_mov_b32 s{SRD_C + 1}, s{SRD_WS + 1}
    s_mov_b32 s{SRD_C + 2}, 0
    s_mov_b32 s{SRD_C + 3}, 0x00020000
    s_mul_i32 s{sNX}, s{laysel}, {xlayer}
    s_add_u32 s{sNX}, s{sNX}, s{sWQ}
    s_add_u32 s{sNX}, s{sNX}, {xbase}
    s_mul_i32 s{sNFL}, s{sNO}, {FL_STRIDE}
    s_add_u32 s{sNFL}, s{sNFL}, {WS_FLAGS + flag_off}
    """)
    dbg_wait(a, DB_POOL, N_POOL, vT0, vT1, abort, name + "_ini")
    trace(a, vT0, vT1)
    a(f"s_branch {name}_poll")
    head = name + "_item"
    a.label(head)
    a.restore(([], []))
    a.force_wait(vm=nst)
    a.label(name + "_go")
    a("s_barrier")
    a(f"""
    s_xor_b32 s{sBUF}, s{sBUF}, {XBUF}
    s_xor_b32 s{sOB}, s{sOB}, {XBUF}
    s_xor_b32 s{sSB}, s{sSB}, 0x2000
    s_xor_b32 s{sCSB}, s{sCSB}, 0x2000
    s_mov_b32 s{sCS}, s{sNS}
    s_mov_b32 s{sCO}, s{sNO}
    s_add_u32 s{sNS}, s{sNS}, 1
    s_add_u32 s{sNO}, s{sNO}, 1
    s_add_u32 s{sNX}, s{sNX}, {X_SEG}
    s_add_u32 s{sNFL}, s{sNFL}, {FL_STRIDE}
    s_mov_b32 s{sDEC}, 0
    """)
    a.vmq = [(frozenset(), "st")] * nst

    def start():
        a.force_wait(vm=0)
        a(f"buffer_load_dword v{vFLV}, v{vFLA}, {WS}, s{sNFL} offen sc1")
        publish()

    def decide():
        a.force_wait(vm=1)
        a(f"v_cmp_eq_u32 vcc, 0, v{vFLV}")
        a("s_cmp_eq_u64 vcc, 0")
        a(f"s_cselect_b32 s{sDEC}, 1, 0")
        a(f"s_cmp_lt_u32 s{sNS}, {NSEG}")
        a(f"s_cselect_b32 s{sDEC}, s{sDEC}, 0")
        a(f"s_cmp_lg_u32 s{sDEC}, 0")
        a(f"s_cselect_b32 s{SRD_C + 2}, {WS_BYTES}, 0")

    if prefetch:
        compute(start, decide, dma_ops(PFS) + extra_loads(PFS))
    else:
        compute(None, None, [])
    out_flag()
    trace_at(a, sCO, vT0, vZERO)
    trace5(a, sCS, 2, vT0, vZERO)
    if DBGW is not None:
        stamp_max(a, DBGW, vT0, vT1, (sCO, 0))
    if TRACE == 1:
        a.force_wait(vm=0)
        trace(a, vT0, vT1)
        a.force_wait(vm=0)
    if prefetch:
        a(f"s_cmp_lg_u32 s{sDEC}, 0")
        a(f"s_cbranch_scc1 {head}")
    a(f"buffer_load_dword v{vFLV}, v{vFLA}, {WS}, s{sNFL} offen sc1")
    a.force_wait(vm=0)
    a(f"s_cmp_ge_u32 s{sNS}, {NSEG}")
    a(f"s_cbranch_scc1 {name}_fin")
    a(f"v_cmp_eq_u32 vcc, 0, v{vFLV}")
    a(f"s_cbranch_vccnz {name}_pub")
    seq(a, dma_ops(WS), extra_loads(WS))
    publish()
    trace5(a, sCS, 3, vT0, vZERO)
    a.force_wait(vm=1)
    a(f"s_branch {name}_go")
    a.label(name + "_fin")
    a.restore(([], []))
    publish()
    a(f"s_branch {done}")
    a.label(name + "_pub")
    a.restore(([], []))
    publish()
    trace5(a, sCS, 3, vT0, vZERO)
    a.label(name + "_poll")
    a.restore(([], []))
    a(f"s_mov_b32 s{S_SPIN}, 0")
    L = name + "_pl"
    a.label(L)
    a(f"buffer_load_dword v{vFLV}, v{vFLA}, {WS}, s{sNFL} offen sc1")
    spin_check(a, abort)
    a(f"v_cmp_eq_u32 vcc, 0, v{vFLV}")
    a(f"s_cbranch_vccz {L}d")
    if slp:
        a(f"s_sleep {slp}")
    a(f"s_branch {L}")
    a.label(L + "d")
    trace5(a, sNS, 0, vT0, vZERO)
    seq(a, dma_ops(WS), extra_loads(WS))
    a.force_wait(vm=0)
    trace5(a, sNS, 1, vT0, vZERO)
    a(f"s_branch {name}_go")
```

```python
from common import *
import os, struct

L_MEMA = 0
L_KX = 9216
ROWS = 288
L_QB = 17408
L_KB = L_QB + 8 * ROWS
L_OB = L_KB + 8 * ROWS
L_WO1 = 24576
L_W = 57344
LW_WAVE = 26624
assert L_OB + 8 * ROWS <= L_WO1 and L_W + 4 * LW_WAVE == 163840
PART_W = 2304

vL16, vIDX, vQW, vQR, vOR, vSPARE, vRLD, vRST, vL4, vLW = range(10)
vT0, vT1 = 10, 11
ACCQ, ACCK, ACCV = 12, 20, 28
VXA, VXB = 36, 40
Q = [44 + 4 * i for i in range(7)]
WR = [Q[3], Q[5]]
vSPARE2 = vRLD
WBASE = 72

sH = S_ROLE
sLAY = S_FREE
sSTEP = S_FREE + 1
sMEMR = S_FREE + 2
sMEMR8 = S_FREE + 3
sMEMW = S_FREE + 4
sMEMZ = S_FREE + 5
sPW = S_FREE + 6
sPH = S_FREE + 7
sKP = S_FREE + 8
sKF = S_FREE + 9
sVF = S_FREE + 10
sKM = S_FREE + 11
sFL = S_FREE + 12
sKMB = S_FREE + 13
sKPH = S_FREE + 34
sFMK = S_FREE + 46
sKPV = S_FREE + 24
sOFL = S_FREE + 35
sCEXP = S_FREE + 14
sMAXD = S_FREE + 22
sFAST = S_FREE + 23
sMASK = S_FREE + 18
sMLO = S_FREE + 20
sU = S_FREE + 16
sT = S_FREE + 25
sPR = sT
sJOBC = S_FREE + 30
sONES = S_FREE + 36
sM = S_FREE + 38
SRD_D = 80
S_STAMP = 80

MATS = "qkv"
D1 = [int(x) for x in os.environ.get("D1", "5,5,5").split(",")]
D2 = int(os.environ.get("D2", "2"))
R1LDW = int(os.environ.get("R1LDW", "16"))
WOD = int(os.environ.get("WOD", "3"))
NOPUB = int(os.environ.get("NOPUB", "0"))
NOKV = int(os.environ.get("NOKV", "0"))
PFD = int(os.environ.get("PFD", "1"))
RFREE = int(os.environ.get("RFREE", "0"))
TORD = [8, 0, 1, 2, 3, 4, 5, 6, 7]
WO_L = [(TORD[i >> 1], i & 1) for i in (0, 1, 5, 6, 10, 11, 15, 16)]


def f32bits(x):
    return struct.unpack("<I", struct.pack("<f", x))[0]


def build_frag_map():
    fm = {}
    regs = [("v", WBASE + 8 * i) for i in range(23)] + [("a", 8 * i) for i in range(32)]
    ri = 0
    for t in range(9):
        for m in MATS:
            for b in range(2):
                if m == "k" and b == 1:
                    fm[(m, b, t)] = ("l", "W", t)
                else:
                    fm[(m, b, t)] = regs[ri]; ri += 1
    n0 = n1 = 0
    for tau in range(9):
        for ks in range(2):
            if (tau, ks) in WO_L:
                if ks == 0:
                    fm[("o", tau, ks)] = ("l", "W", 9 + n0); n0 += 1
                else:
                    fm[("o", tau, ks)] = ("l", "O", n1); n1 += 1
            else:
                fm[("o", tau, ks)] = regs[ri]; ri += 1
    assert ri == 55 and n0 == 4 and n1 == 4
    return fm


FM = build_frag_map()


def opnd(loc, n=8, off=0):
    k, b = loc[0], loc[1]
    return (vr if k == "v" else ar)(b + off, n)


def lds_addr(loc, w):
    if loc[1] == "W":
        return vLW, loc[2] * 2048
    return vL16, L_WO1 + w * 8192 + loc[2] * 2048


def lw_read(dst, loc, w):
    r, off = lds_addr(loc, w)
    return [f"ds_read_b128 {vr(dst, 4)}, v{r} offset:{off}", f"ds_read_b128 {vr(dst + 4, 4)}, v{r} offset:{off + 1024}"]


def SM(acc, A, B):
    return f"v_smfmac_f32_16x16x64_bf16 {vr(acc, 4)}, {vr(A, 4)}, {B}, v{vIDX}"


def r_setup(a):
    LANE, C, G = 10, 60, 61
    WS = f"s[{SRD_WS}:{SRD_WS + 3}]"
    cexp = hex(f32bits(128 ** -0.5 * 1.4426950408889634))
    a(f"""
    v_and_b32 v{LANE}, 63, v0
    v_and_b32 v{C}, 15, v{LANE}
    v_lshrrev_b32 v{G}, 4, v{LANE}
    v_lshlrev_b32 v{vL16}, 4, v{LANE}
    v_lshlrev_b32 v{vL4}, 2, v{LANE}
    s_mul_i32 s{S_TMP}, s{S_WAVE}, {LW_WAVE}
    s_add_u32 s{S_TMP}, s{S_TMP}, {L_W}
    v_add_u32 v{vLW}, s{S_TMP}, v{vL16}
    s_mov_b32 s{sMAXD}, 0xfffffffe
    s_mov_b32 s{sCEXP}, {cexp}
    s_mov_b32 s{sCEXP + 1}, {cexp}
    s_mov_b32 s{sMASK}, 0x00ff00ff
    s_mov_b32 s{sMASK + 1}, 0x00ff00ff
    s_mov_b32 s{sMLO}, -1
    s_mov_b32 s{sMLO + 1}, 0
    s_mov_b32 s{sONES}, 0x3f803f80
    s_mov_b32 s{sONES + 1}, 0x3f803f80
    s_mov_b32 s{sPH}, 0
    v_lshrrev_b32 v63, 2, v{C}
    v_and_b32 v64, 1, v{C}
    v_lshl_add_u32 v62, v63, 1, v64
    v_bfe_u32 v65, v{C}, 1, 1
    v_mov_b32 v{vIDX}, 0x4444
    v_mov_b32 v63, 0xeeee
    v_cmp_eq_u32 vcc, 0, v65
    v_cndmask_b32 v{vIDX}, v63, v{vIDX}, vcc
    v_mul_u32_u24 v63, {2 * ROWS}, v{G}
    v_lshl_add_u32 v{vQW}, v{C}, 2, v63
    s_lshl_b32 s{S_TMP}, s{S_WAVE}, 6
    v_add_u32 v{vQW}, s{S_TMP}, v{vQW}
    v_mul_u32_u24 v63, {ROWS}, v62
    v_lshl_add_u32 v{vQR}, v{G}, 4, v63
    v_lshl_add_u32 v{vOR}, v{G}, 5, v63
    v_lshl_add_u32 v{vOR}, v65, 4, v{vOR}
    """)
    WP, GO, CH, UO, MB = sT, sT + 1, sT + 2, sT + 3, sT + 4
    M0A, M0B = 66, 67
    a(f"""
    s_lshr_b32 s{WP}, s{sH}, 3
    s_bfe_u32 s{GO}, s{sH}, 0x20001
    s_and_b32 s{CH}, s{sH}, 1
    s_cmp_lt_u32 s{S_WAVE}, 2
    s_cbranch_scc1 Lr_jab
    s_lshr_b32 s{WP}, s{sH}, 1
    s_and_b32 s{WP}, s{WP}, 3
    Lr_jab:
    s_cmp_lt_u32 s{sH}, 8
    s_cselect_b32 s{sJOBC}, 1, 0
    v_bfe_u32 v64, v{C}, 2, 1
    v_lshl_add_u32 v63, v64, 2, v{G}
    v_mul_u32_u24 v63, {PART_H}, v63
    v_lshrrev_b32 v65, 3, v{C}
    v_lshlrev_b32 v65, 2, v65
    v_and_b32 v64, 3, v{C}
    v_add_u32 v65, v65, v64
    v_lshl_add_u32 v{vRLD}, v65, 4, v63
    s_mul_i32 s{S_TMP}, s{WP}, {PART_W}
    s_lshl_b32 s{S_TMP + 1}, s{S_WAVE}, 10
    s_add_u32 s{S_TMP}, s{S_TMP}, s{S_TMP + 1}
    s_lshl_b32 s{S_TMP + 1}, s{CH}, 7
    s_add_u32 s{S_TMP}, s{S_TMP}, s{S_TMP + 1}
    s_lshl_b32 s{S_TMP + 1}, s{GO}, 8
    s_cmp_lt_u32 s{S_WAVE}, 2
    s_cselect_b32 s{S_TMP + 1}, s{S_TMP + 1}, 0
    s_add_u32 s{S_TMP}, s{S_TMP}, s{S_TMP + 1}
    v_add_u32 v{vRLD}, s{S_TMP}, v{vRLD}
    """)
    HI, RR, G1, G0 = 62, 63, 64, 65
    a(f"""
    v_bfe_u32 v{HI}, v{C}, 1, 2
    v_and_b32 v{RR}, 1, v{C}
    v_lshrrev_b32 v{G1}, 1, v{G}
    v_and_b32 v{G0}, 1, v{G}
    s_cmp_lt_u32 s{S_WAVE}, 2
    s_cbranch_scc0 Lr_jc
    s_lshl_b32 s{S_TMP}, s{S_WAVE}, 2
    v_add_u32 v68, s{S_TMP}, v{HI}
    v_lshlrev_b32 v{vRST}, 10, v68
    v_lshl_add_u32 v69, v{G0}, 1, v{RR}
    s_lshl_b32 s{S_TMP}, s{WP}, 4
    s_lshl_b32 s{S_TMP + 1}, s{GO}, 2
    s_add_u32 s{S_TMP}, s{S_TMP}, s{S_TMP + 1}
    v_add_u32 v69, s{S_TMP}, v69
    v_lshl_add_u32 v{vRST}, v69, 4, v{vRST}
    s_lshl_b32 s{S_TMP}, s{CH}, 1
    v_add_u32 v69, s{S_TMP}, v{G1}
    v_lshl_add_u32 v{vRST}, v69, 2, v{vRST}
    s_lshl_b32 s{S_TMP}, s{GO}, 1
    v_add_u32 v69, s{S_TMP}, v{RR}
    v_mul_u32_u24 v69, 576, v69
    v_lshl_add_u32 v69, v68, 4, v69
    v_lshl_add_u32 v69, v{G}, 1, v69
    s_mul_i32 s{S_TMP}, s{WP}, 144
    s_lshl_b32 s{S_TMP + 1}, s{CH}, 3
    s_add_u32 s{S_TMP}, s{S_TMP}, s{S_TMP + 1}
    v_add_u32 v69, s{S_TMP}, v69
    v_lshlrev_b32 v{M0A}, 1, v69
    v_add_u32 v{M0B}, 2, v{M0A}
    s_branch Lr_jd
    Lr_jc:
    s_lshl_b32 s{S_TMP}, s{CH}, 1
    v_add_u32 v68, s{S_TMP}, v{G1}
    v_lshlrev_b32 v69, 2, v68
    v_lshl_add_u32 v69, v{G0}, 1, v69
    v_add_u32 v69, v69, v{RR}
    s_lshl_b32 s{S_TMP}, s{WP}, 4
    v_add_u32 v69, s{S_TMP}, v69
    v_lshlrev_b32 v{vRST}, 4, v69
    v_lshl_add_u32 v{vRST}, v{HI}, 2, v{vRST}
    v_add_u32 v{vRST}, 8192, v{vRST}
    v_lshl_add_u32 v69, v68, 1, v{RR}
    v_mul_u32_u24 v69, 576, v69
    v_lshl_add_u32 v69, v{G0}, 3, v69
    v_add_u32 v69, v69, v{HI}
    s_mul_i32 s{S_TMP}, s{WP}, 144
    s_add_u32 s{S_TMP}, s{S_TMP}, 128
    v_add_u32 v69, s{S_TMP}, v69
    v_lshlrev_b32 v{M0A}, 1, v69
    v_add_u32 v{M0B}, 8, v{M0A}
    Lr_jd:
    """)
    a(f"""
    s_mul_i32 s{sU}, s{sLAY}, {RING_TEAM}
    s_add_u32 s{sU}, s{sU}, {WS_RING}
    s_lshl_b32 s{S_TMP + 1}, s{S_WAVE}, 11
    s_lshl_b32 s{S_TMP + 2}, s{S_WAVE}, 8
    s_add_u32 s{S_TMP + 2}, s{S_TMP + 2}, 8192
    s_mul_i32 s{S_TMP}, s{sH}, {PART_H}
    s_add_u32 s{S_TMP}, s{S_TMP}, s{sU}
    s_mul_i32 s{sPW}, s{S_WAVE}, {PART_W}
    s_add_u32 s{sPW}, s{sPW}, s{S_TMP}
    s_add_u32 s{sMEMZ}, s{sU}, {MEMB_OFF}
    s_xor_b32 s{sMEMW}, s{sMEMZ}, {MEMB_SLOT}
    s_add_u32 s{sMEMR}, s{sMEMZ}, s{S_TMP + 1}
    s_add_u32 s{sMEMR8}, s{sMEMZ}, s{S_TMP + 2}
    s_mul_i32 s{S_TMP}, s{sLAY}, {3 * QKV_M}
    s_lshl_b32 s{S_TMP + 2}, s{sH}, 13
    s_add_u32 s{S_TMP}, s{S_TMP}, s{S_TMP + 2}
    s_add_u32 s{sKP}, s{S_TMP}, {WS_QKV + QKV_M + PFD * 32 * 8192}
    s_add_u32 s{S_TMP}, s{S_TMP}, s{S_TMP + 1}
    s_add_u32 s{sKF}, s{S_TMP}, {WS_QKV + QKV_M}
    s_add_u32 s{sVF}, s{S_TMP}, {WS_QKV + 2 * QKV_M}
    s_mul_i32 s{S_TMP}, s{sLAY}, {KM_D * 32 * KM_UNIT}
    s_lshl_b32 s{S_TMP + 2}, s{sH}, 12
    s_add_u32 s{S_TMP}, s{S_TMP}, s{S_TMP + 2}
    s_lshl_b32 s{S_TMP + 2}, s{S_WAVE}, 9
    s_add_u32 s{S_TMP}, s{S_TMP}, s{S_TMP + 2}
    s_add_u32 s{sKMB}, s{S_TMP}, {WS_KM}
    s_mov_b32 s{sKM}, s{sKMB}
    s_mov_b32 s{sKPH}, 0
    s_mul_i32 s{S_TMP}, s{sLAY}, {NSEG * FL_STRIDE}
    s_lshr_b32 s{S_TMP + 2}, s{sH}, 2
    s_lshl_b32 s{S_TMP + 2}, s{S_TMP + 2}, 7
    s_add_u32 s{S_TMP}, s{S_TMP}, s{S_TMP + 2}
    s_and_b32 s{S_TMP + 2}, s{sH}, 3
    s_lshl_b32 s{S_TMP + 2}, s{S_TMP + 2}, 2
    s_add_u32 s{S_TMP}, s{S_TMP}, s{S_TMP + 2}
    s_add_u32 s{sOFL}, s{S_TMP}, {WS_FLAGS + FL_OF - (KM_D - 1) * FL_STRIDE}
    s_mov_b32 s{sFMK}, 0xff
    s_mov_b32 s{sFMK + 1}, 0
    s_mul_i32 s{S_TMP}, s{sLAY}, {NSEG * FL_STRIDE}
    s_lshl_b32 s{S_TMP + 2}, s{sH}, 9
    s_add_u32 s{S_TMP}, s{S_TMP}, s{S_TMP + 2}
    s_add_u32 s{sFL}, s{S_TMP}, {WS_FLAGS + FL_QKV}
    s_mov_b32 s{sSTEP}, 0
    """)
    srd(a, SRD_A, KA_MEM0, 9216)
    A_ = f"s[{SRD_A}:{SRD_A + 3}]"
    a(f"""
    s_cmp_eq_u32 s{S_WAVE}, 3
    s_cbranch_scc1 Lr_mem0_done
    s_cmp_lt_u32 s{S_WAVE}, 2
    s_cselect_b32 s{S_TMP}, 1, s{sJOBC}
    s_cmp_eq_u32 s{S_TMP}, 0
    s_cbranch_scc1 Lr_mem0_done
    s_mov_b64 exec, s[{sMASK}:{sMASK + 1}]
    buffer_load_ushort v64, v{M0A}, {A_}, 0 offen
    buffer_load_ushort v65, v{M0B}, {A_}, 0 offen
    v_lshl_or_b32 v64, v65, 16, v64
    v_min_u32 v64, s{sMAXD}, v64
    buffer_store_dword v64, v{vRST}, {WS}, s{sMEMZ} offen sc1
    v_mov_b32 v64, -1
    buffer_store_dword v64, v{vRST}, {WS}, s{sMEMW} offen sc1
    s_mov_b64 exec, -1
    Lr_mem0_done:
    v_mov_b32 v64, 1
    v_mov_b32 v65, 1
    v_mov_b32 v66, 1
    v_mov_b32 v67, 1
    s_xor_b32 s{S_TMP}, s{sPW}, {PART_SLOT}
    """)
    for sreg in (sPW, S_TMP):
        for i in range(2):
            a(f"buffer_store_dwordx4 v[64:67], v{vL16}, {WS}, s{sreg} offen offset:{1024 * i} sc1")
        a(f"buffer_store_dword v64, v{vL4}, {WS}, s{sreg} offen offset:2048 sc1")
    a(f"v_lshrrev_b32 v63, 1, v{vL16}")
    a(f"s_mov_b32 s{S_TMP}, s{sKMB}")
    for i in range(KM_D):
        a(f"buffer_store_dwordx2 v[64:65], v63, {WS}, s{S_TMP} offen offset:2048 sc1")
        a(f"s_mov_b64 exec, s[{sMLO}:{sMLO + 1}]")
        a(f"buffer_store_dwordx4 v[64:67], v{vL16}, {WS}, s{S_TMP} offen sc1")
        a(f"s_mov_b64 exec, -1")
        a(f"s_add_u32 s{S_TMP}, s{S_TMP}, {32 * KM_UNIT}")
    a(f"""
    s_cmp_lg_u32 s{S_WAVE}, 3
    s_cbranch_scc1 Lr_not_w3
    v_and_b32 v{vRST}, 12, v{vL4}
    v_and_b32 v63, 4, v{LANE}
    v_lshl_add_u32 v{vRST}, v63, 5, v{vRST}
    s_add_u32 s{S_TMP}, s{sFL}, {FL_STRIDE + 128}
    s_sub_u32 s{S_TMP}, s{S_TMP}, s{sOFL}
    v_add_u32 v{vRST}, s{S_TMP}, v{vRST}
    v_cmp_gt_u32 vcc, 8, v{LANE}
    v_cndmask_b32 v{vRST}, 0, v{vRST}, vcc
    Lr_not_w3:
    v_lshlrev_b32 v{vSPARE}, 3, v{vL16}
    s_add_u32 s{sKPV}, s{sKP}, {QKV_M}
    """)
    if R1LDW:
        a(f"s_cmp_eq_u32 s{sLAY}, 0")
        a("s_cbranch_scc1 Lr_noord")
        dbg_wait(a, DB_LOADED, R1LDW, 63, 64, "Lr_abort", "Lr_ord", 32)
        a.label("Lr_noord")
    load_weights(a, LANE, C, G)
    a(f"s_add_u32 s{S_TMP}, s{sLAY}, s{S_WAVE}")
    a(f"s_cmp_lg_u32 s{S_TMP}, 0")
    a("s_cbranch_scc1 Lr_nold")
    dbg_add(a, DB_LOADED, 63, 64)
    a.label("Lr_nold")
    for i in range(4):
        a(f"s_add_u32 s{sPR + i}, s{sU}, {i * 8 * PART_H}")


def load_weights(a, LANE, C, G):
    srd(a, SRD_A, KA_WQ, 576 * 8192)
    srd(a, SRD_B, KA_WK, 576 * 8192)
    srd(a, SRD_C, KA_WV, 576 * 8192)
    srd(a, SRD_D, KA_BWO, 4096 * 1152)
    SR = {"q": SRD_A, "k": SRD_B, "v": SRD_C}
    GA, GB, G8A, G8B, TR0, TR1, TRA, TRB, TRW = 62, 63, 64, 65, 66, 67, 68, 69, 70
    WA = 50
    sRow, sLB, sWo = sT, sT + 1, sT + 2
    a(f"""
    v_lshlrev_b32 v71, 1, v{G}
    v_xor_b32 v71, v71, v{C}
    v_lshlrev_b32 v71, 4, v71
    v_lshl_add_u32 v{GA}, v{G}, 13, v71
    v_xor_b32 v{GB}, 128, v{GA}
    v_lshrrev_b32 v{G8A}, 1, v{G}
    v_lshlrev_b32 v{G8A}, 3, v{G8A}
    v_and_b32 v{G8B}, 1, v{G}
    v_lshl_add_u32 v{G8A}, v{G8B}, 2, v{G8A}
    v_lshl_add_u32 v{G8A}, v{G8A}, 13, v71
    v_xor_b32 v{G8B}, 128, v{G8A}
    s_mul_i32 s{sRow}, s{S_WAVE}, {144 * 8192}
    s_lshl_b32 s{S_TMP}, s{sH}, 8
    s_add_u32 s{sRow}, s{sRow}, s{S_TMP}
    s_lshl_b32 s{sLB}, s{S_WAVE}, 12
    """)
    a(f"""
    v_lshrrev_b32 v71, 2, v{C}
    v_lshl_add_u32 v{TR0}, v{G}, 3, v71
    v_lshlrev_b32 v{TR0}, 8, v{TR0}
    v_bfe_u32 v{TR1}, v{C}, 1, 1
    s_lshl_b32 s{S_TMP}, s{S_WAVE}, 2
    v_add_u32 v{TR1}, s{S_TMP}, v{TR1}
    v_lshlrev_b32 v71, 1, v71
    v_xor_b32 v{TR1}, v{TR1}, v71
    v_and_b32 v71, 1, v{G}
    v_lshlrev_b32 v71, 3, v71
    v_xor_b32 v{TR1}, v{TR1}, v71
    v_and_b32 v71, 1, v{C}
    v_lshl_add_u32 v{TR0}, v71, 3, v{TR0}
    v_xor_b32 v71, 2, v{TR1}
    v_lshl_add_u32 v{TR1}, v71, 4, v{TR0}
    v_xor_b32 v71, 2, v71
    v_lshl_add_u32 v{TR0}, v71, 4, v{TR0}
    """)
    tiles = [(m, t) for t in range(9) for m in MATS]
    wo_regs = [FM[k] for k in FM if k[0] == "o" and FM[k][0] != "l"]
    park = {}
    for t in range(9):
        park[("k", 1, t)] = wo_regs[t]
    NT = len(tiles)

    def slot(i):
        return ((i + 3) % 10) * 16384

    def dma(i):
        m, t = tiles[i]
        S = f"s[{SR[m]}:{SR[m] + 3}]"
        for j in range(4):
            a(f"s_add_u32 m0, s{sLB}, {slot(i) + j * 1024}")
            if t < 8:
                a(f"s_add_u32 s{S_TMP}, s{sRow}, {(16 * t + 4 * j) * 8192}")
                g = GA if j < 2 else GB
            else:
                a(f"s_add_u32 s{S_TMP}, s{sRow}, {(128 + j) * 8192}")
                g = G8A if j < 2 else G8B
            a(f"buffer_load_dwordx4 v{g}, {S}, s{S_TMP} offen lds")

    stages = [(ks, hf, qq) for ks in range(2) for hf in range(2) for qq in range(2)]
    STG = 18432

    def wo_prep():
        for j in range(5):
            a(f"v_add_u32 v71, {64 * j}, v{LANE}")
            a(f"v_mul_u32_u24 v59, {(65536 + 71) // 72}, v71")
            a(f"v_lshrrev_b32 v59, 16, v59")
            a(f"v_mul_u32_u24 v60, 72, v59")
            a(f"v_sub_u32 v71, v71, v60")
            a(f"v_and_b32 v60, 1, v59")
            a(f"v_lshlrev_b32 v60, 4, v60")
            a(f"v_lshrrev_b32 v59, 1, v59")
            a(f"v_lshl_add_u32 v60, v59, 2, v60")
            a(f"v_mul_u32_u24 v60, 1152, v60")
            a(f"v_lshl_add_u32 v{WA + j}, v71, 4, v60")
        a(f"""
        s_lshr_b32 s{S_TMP}, s{S_WAVE}, 1
        s_lshl_b32 s{S_TMP}, s{S_TMP}, 3
        s_and_b32 s{S_TMP + 1}, s{S_WAVE}, 1
        s_lshl_b32 s{S_TMP + 1}, s{S_TMP + 1}, 1
        s_add_u32 s{S_TMP}, s{S_TMP}, s{S_TMP + 1}
        s_lshl_b32 s{S_TMP + 1}, s{sH}, 7
        s_add_u32 s{S_TMP}, s{S_TMP}, s{S_TMP + 1}
        s_mul_i32 s{sWo}, s{S_TMP}, 1152
        s_mul_i32 s{sT + 3}, s{S_WAVE}, {4 * 1152}
        """)

    def wo_dma(z):
        ks, hf, qq = stages[z]
        base = (z % 3) * STG
        W_ = f"s[{SRD_D}:{SRD_D + 3}]"
        a(f"s_add_u32 s{S_TMP}, s{sWo}, {(64 * ks + 32 * hf + qq) * 1152}")
        for j in range(5):
            a(f"s_add_u32 m0, s{sT + 3}, {base + j * 1024}")
            if j == 4:
                a(f"s_mov_b64 exec, s[{sMLO}:{sMLO + 1}]")
            else:
                a("s_nop 0")
            a(f"buffer_load_dwordx4 v{WA + j}, {W_}, s{S_TMP} offen lds")
        a("s_mov_b64 exec, -1")

    a(f"""
    v_lshrrev_b32 v71, 2, v{C}
    v_lshl_add_u32 v{TRW}, v{G}, 2, v71
    v_mul_u32_u24 v{TRW}, 1152, v{TRW}
    v_and_b32 v71, 3, v{C}
    v_lshl_add_u32 v{TRW}, v71, 3, v{TRW}
    s_mul_i32 s{S_TMP}, s{S_WAVE}, 288
    v_add_u32 v{TRW}, s{S_TMP}, v{TRW}
    """)
    wo_prep()
    vq = []
    issued = [0]
    done_at = {}

    def issue(kind, i):
        if kind == "t":
            dma(i); issued[0] += 4
        else:
            wo_dma(i); issued[0] += 5
        done_at[(kind, i)] = issued[0]

    for i in range(9):
        issue("t", i)
    nxt_t, nxt_z = 9, 0
    for i in range(NT):
        a.force_wait(vm=min(63, issued[0] - done_at[("t", i)]))
        a("s_barrier")
        if i == 0:
            a(f"s_cmp_lg_u32 s{S_WAVE}, 0")
            a("s_cbranch_scc1 Lr_noadd")
            a(f"s_lshl_b32 s{S_TMP}, s{sLAY}, 2")
            a(f"s_add_u32 s{S_TMP}, s{S_TMP}, {DB_TEAM}")
            dbg_add(a, f"s{S_TMP}", 48, 49)
            a.label("Lr_noadd")
        if i >= 1 and nxt_t < NT:
            assert slot(nxt_t) == slot(i - 1) or nxt_t == 9
            issue("t", nxt_t); nxt_t += 1
        elif i == 0:
            issue("t", nxt_t); nxt_t += 1
        elif i >= 21 and nxt_z < 3:
            issue("z", nxt_z); nxt_z += 1
        m, t = tiles[i]
        a(f"v_add_u32 v{TRA}, {slot(i)}, v{TR0}")
        a(f"v_add_u32 v{TRB}, {slot(i)}, v{TR1}")
        for b in range(2):
            loc = park.get((m, b, t), FM[(m, b, t)])
            for q in range(4):
                a(f"ds_read_b64_tr_b16 {opnd(loc, 2, 2 * q)}, v{(TRA, TRB)[b]} offset:{(32 * (q >> 1) + 4 * (q & 1)) * 256}")
        a.wait(lg=0)
    assert nxt_t == NT and nxt_z == 3
    a("s_barrier")
    for t in range(9):
        loc = park[("k", 1, t)]
        a(f"ds_write_b128 v{vLW}, {opnd(loc, 4)} offset:{t * 2048}")
        a(f"ds_write_b128 v{vLW}, {opnd(loc, 4, 4)} offset:{t * 2048 + 1024}")
    a.wait(lg=0)
    PK = 12
    for z in range(8):
        ks, hf, qq = stages[z]
        a.force_wait(vm=min(63, issued[0] - done_at[("z", z)]))
        a("s_barrier")
        if z >= 1 and nxt_z < 8:
            assert nxt_z % 3 == (z - 1) % 3
            issue("z", nxt_z); nxt_z += 1
        q = 2 * hf + qq
        np_ = 0
        for tau in range(9):
            loc = FM[("o", tau, ks)]
            if loc[0] == "l":
                loc = ("v", PK + 8 * np_); np_ += 1
            a(f"ds_read_b64_tr_b16 {opnd(loc, 2, 2 * q)}, v{TRW} offset:{(z % 3) * STG + 32 * tau}")
        a.wait(lg=0)
        if z == 3:
            np_ = 0
            for tau in range(9):
                loc = FM[("o", tau, 0)]
                if loc[0] == "l":
                    a(f"ds_write_b128 v{vLW}, {vr(PK + 8 * np_, 4)} offset:{loc[2] * 2048}")
                    a(f"ds_write_b128 v{vLW}, {vr(PK + 8 * np_ + 4, 4)} offset:{loc[2] * 2048 + 1024}")
                    np_ += 1
            a.wait(lg=0)
    a("s_barrier")
    a(f"s_lshl_b32 s{S_TMP}, s{S_WAVE}, 13")
    a(f"v_add_u32 v71, s{S_TMP}, v{vL16}")
    np_ = 0
    for tau in range(9):
        loc = FM[("o", tau, 1)]
        if loc[0] == "l":
            a(f"ds_write_b128 v71, {vr(PK + 8 * np_, 4)} offset:{L_WO1 + loc[2] * 2048}")
            a(f"ds_write_b128 v71, {vr(PK + 8 * np_ + 4, 4)} offset:{L_WO1 + loc[2] * 2048 + 1024}")
            np_ += 1
    a.force_wait(vm=0, lg=0)
    a("s_barrier")


def flag_wait_kv(a, name, soff_extra, abort):
    if RFREE:
        return
    L = a.newlabel(name)
    a(f"s_mov_b32 s{S_SPIN}, 0")
    a(f"s_add_u32 s{S_TMP}, s{sFL}, {soff_extra + 128}")
    a(f"v_and_b32 v{vT1}, 16, v{vL4}")
    a(f"v_lshlrev_b32 v{vT1}, 3, v{vT1}")
    a(f"v_and_or_b32 v{vT1}, v{vL4}, 12, v{vT1}")
    a.label(L)
    a(f"buffer_load_dword v{vT0}, v{vT1}, s[{SRD_WS}:{SRD_WS + 3}], s{S_TMP} offen sc1")
    spin_check(a, abort)
    a(f"v_cmp_eq_u32 vcc, 0, v{vT0}")
    a(f"s_cbranch_vccz {L}d")
    a("s_sleep 4")
    a(f"s_branch {L}")
    a.label(L + "d")


def r_loop(a, w, fast, abort, done, stamps=False):
    sc = "" if fast else " sc1"
    pfx = f"Lr{w}{'f' if fast else 's'}_"
    WS = f"s[{SRD_WS}:{SRD_WS + 3}]"
    NST = 10
    HK = (w == 3)
    order = [2 * w, 2 * w + 1] + [t for t in range(8) if t >> 1 != w] + [8]

    STSEL = [int(x) for x in os.environ.get("STSEL", "0,1,2,3,4,5,6,7,8,9,10").split(",")]

    def stamp(i):
        if i not in STSEL:
            return
        if stamps == 2 or (stamps and i == NST):
            a(f"s_memrealtime s[{S_STAMP + 2 * i}:{S_STAMP + 1 + 2 * i}]")
        elif stamps:
            a(f"s_memtime s[{S_STAMP + 2 * i}:{S_STAMP + 1 + 2 * i}]")

    def dump_stamps():
        if stamps:
            a.force_wait(lg=0)
            for i in range(NST + 1):
                a(f"v_writelane_b32 v{vT1}, s{S_STAMP + 2 * i}, {i}")
            a(f"v_writelane_b32 v{vT1}, s3, 11")
            a(f"v_writelane_b32 v{vT1}, s4, 12")
            a(f"s_lshl_b32 s{S_TMP}, s{sLAY}, 5")
            a(f"s_add_u32 s{S_TMP}, s{S_TMP}, s{sH}")
            a(f"s_lshl_b32 s{S_TMP}, s{S_TMP}, 6")
            a(f"s_add_u32 s{S_TMP}, s{S_TMP}, s{sSTEP}")
            a(f"s_lshl_b32 s{S_TMP}, s{S_TMP}, 8")
            a(f"s_add_u32 s{S_TMP}, s{S_TMP}, {WS_END + w * 64}")
            a(f"s_mov_b64 exec, 0x1fff")
            a(f"buffer_store_dword v{vT1}, v{vL4}, {WS}, s{S_TMP} offen")
            a(f"s_mov_b64 exec, -1")

    def zero(base, n):
        return [f"v_mov_b64 {vr(base + 2 * i, 2)}, 0" for i in range(n // 2)]

    def seq(*items):
        for it in items:
            if isinstance(it, (list, tuple)):
                seq(*it)
            elif callable(it):
                it()
            elif it:
                a(it)

    cont = {}

    def ld(dst, name, text):
        def f():
            a(text)
            cont[dst] = name
        return f

    def use(reg, name):
        assert cont.get(reg) == name, (w, reg, name, cont.get(reg))

    def M(i):
        return f"s[{sM + 2 * i}:{sM + 2 * i + 1}]"

    def poll(name, loads, checks, between=None, issued=0):
        n = len(loads)
        L = pfx + name
        if not issued:
            seq(loads)
        a(f"s_mov_b32 s{S_SPIN}, 0")
        for i in range(n):
            a(f"s_mov_b64 {M(i)}, 0")
        a.label(L)
        a.auto = False
        for i in range(n):
            a(f"s_mov_b64 exec, {M(i)}")
            a(loads[i])
        a("s_mov_b64 exec, -1")
        spin_check(a, abort)
        for i in range(n):
            a.force_wait(vm=2 * n - 1 - i)
            seq(checks[i])
            if between:
                seq(between[i])
            if i >= 2:
                a(f"s_or_b64 vcc, {M(0) if i == 2 else 'vcc'}, {M(i - 1)}")
        a(f"s_or_b64 vcc, vcc, {M(n - 1)}")
        a(f"s_cbranch_scc1 {L}")
        a.auto = True
        a.vmq = [(frozenset(), "pollx")] * n

    def chk4(q, i):
        return [f"v_max3_u32 v{vT1}, v{q}, v{q + 1}, v{q + 2}", f"v_max_u32 v{vT1}, v{vT1}, v{q + 3}",
                f"v_cmp_eq_u32 {M(i)}, -1, v{vT1}"]

    ACC = {"q": ACCQ, "k": ACCK, "v": ACCV}

    def A_read(dst, t):
        return ld(dst, ("A", t), f"ds_read_b128 {vr(dst, 4)}, v{vL16} offset:{L_MEMA + t * 1024}")

    def LW(buf, key):
        r = lw_read(buf, FM[key], w)
        return [ld(buf, ("W", key), r[0]), ld(buf + 4, ("W2", key), r[1])]

    def S(m, b, t, A, buf=None):
        def f():
            use(A, ("A", t))
            loc = FM[(m, b, t)]
            if loc[0] == "l":
                use(buf, ("W", (m, b, t))); use(buf + 4, ("W2", (m, b, t)))
                B = vr(buf, 8)
            else:
                B = opnd(loc)
            a(SM(ACC[m] + 4 * b, A, B))
        return f

    def qB(dst, j):
        return ld(dst, ("qB", j), f"ds_read_b128 {vr(dst, 4)}, v{vQR} offset:{L_QB + j * 64}")

    def kmA(dst, j):
        return ld(dst, ("km", j), f"ds_read_b128 {vr(dst, 4)}, v{vQR} offset:{L_KB + j * 64}")

    def KX(dst, j, tt):
        return ld(dst, ("KX", j, tt), f"ds_read_b128 {vr(dst, 4)}, v{vL16} offset:{L_KX + (j * 2 + tt) * 1024}")

    def MF(acc, A, B, first, ea=None, eb=None):
        def f():
            if ea is not None:
                use(A, ea)
            if eb is not None:
                use(B, eb)
            a(f"v_mfma_f32_16x16x32_bf16 {vr(acc, 4)}, {vr(A, 4)}, {vr(B, 4)}, {'0' if first else vr(acc, 4)}")
        return f

    def MF16(acc, A, B):
        return f"v_mfma_f32_16x16x16_bf16 {vr(acc, 4)}, {vr(A, 2)}, {vr(B, 2)}, {vr(acc, 4)}"

    def xe(acc):
        X, Y = acc, acc + 4
        return [f"v_add_f32 v{X}, v{X}, v{X + 2}", f"v_add_f32 v{Y}, v{Y}, v{Y + 2}",
                f"v_add_f32 v{X + 1}, v{X + 1}, v{X + 3}", f"v_add_f32 v{Y + 1}, v{Y + 1}, v{Y + 3}",
                f"v_cvt_pk_bf16_f32 v{X + 2}, v{X}, v{Y}",
                f"v_cvt_pk_bf16_f32 v{X + 3}, v{X + 1}, v{Y + 1}"]

    def kdma(i):
        if NOKV & 1:
            return None
        return lambda: a(f"buffer_load_dwordx4 v{vL16}, {WS}, s{sKF} offen offset:{1024 * i} lds", tag="kdma")

    tails = []

    def flag_sample():
        if not RFREE:
            a(f"buffer_load_dword v{vRLD}, v{vRST}, {WS}, s{sOFL} offen sc1")

    def flag_check_prefetch():
        if not RFREE:
            a(f"v_cmp_eq_u32 vcc, 0, v{vRLD}")
            a(f"s_and_b64 vcc, vcc, s[{sFMK}:{sFMK + 1}]")
            a(f"s_cbranch_scc1 {pfx}flbad")
            wn = list(a.win)

            def flbad():
                a.label(pfx + "flbad")
                a.win = wn
                a.restore(([], []))
                a(f"s_cmp_eq_u32 s{sSTEP}, {NSEG - 1}")
                a(f"s_cbranch_scc1 {pfx}flok")
                a(f"s_mov_b32 s{S_SPIN}, 0")
                a.label(pfx + "flp")
                a(f"buffer_load_dword v{vRLD}, v{vRST}, {WS}, s{sOFL} offen sc1")
                spin_check(a, abort)
                a(f"v_cmp_eq_u32 vcc, 0, v{vRLD}")
                a(f"s_and_b64 vcc, vcc, s[{sFMK}:{sFMK + 1}]")
                a(f"s_cbranch_scc1 {pfx}flp")
                a(f"s_branch {pfx}flok")
            tails.append(flbad)
            a.label(pfx + "flok")
        if NOKV & 2:
            return
        a.auto = False
        a(f"buffer_load_dword v{vRLD}, v{vSPARE}, {WS}, s{sKP} offen", tag="pf")
        a(f"buffer_load_dword v{vRLD}, v{vSPARE}, {WS}, s{sKPV} offen", tag="pf")
        a.auto = True

    AO0, AO1, A8 = Q[0], Q[1], vT0
    loads2 = [f"buffer_load_dwordx4 {vr(AO0, 4)}, v{vL16}, {WS}, s{sMEMR} offen sc1",
              f"buffer_load_dwordx4 {vr(AO1, 4)}, v{vL16}, {WS}, s{sMEMR} offen offset:1024 sc1",
              f"buffer_load_dword v{A8}, v{vL4}, {WS}, s{sMEMR8} offen sc1"]

    def pre_step():
        seq(LW(WR[0], ("k", 1, order[0])), LW(WR[1], ("k", 1, order[1])), zero(ACCQ, 24))

    if HK:
        flag_wait_kv(a, pfx + "fw", 0, abort)
    a("s_barrier")
    a(f"s_mov_b32 m0, {L_KX + w * 2048}")
    a("s_nop 0")
    seq(kdma(0), kdma(1))
    a(f"s_add_u32 s{sKF}, s{sKF}, {32 * 8192}")
    a.wait(vm=0)
    seq(loads2)
    pre_step()
    a.wait(lg=0)
    head = pfx + "step"
    a.label(head)
    head_cont = dict(cont)
    poll("p2", loads2, [chk4(AO0, 0), chk4(AO1, 1), [f"v_cmp_eq_u32 {M(2)}, -1, v{A8}"]], issued=1)
    cont[AO0] = ("A", order[0]); cont[AO1] = ("A", order[1])
    stamp(0)
    if stamps:
        a(f"s_mov_b32 s4, s{S_SPIN}")
    ring = [Q[0], Q[1], Q[2], VXA, VXB, Q[2], Q[0], Q[1], Q[2]]

    def Ap(p):
        return ring[p]

    def qk(p, which):
        t = order[p]
        m, b = which
        return S(m, b, t, Ap(p), WR[p & 1])
    def run(slots):
        for mf, fl in slots:
            seq(mf, fl)

    def lwh(p, half):
        return LW(WR[p & 1], ("k", 1, order[p]))[half]
    run([(qk(0, ("q", 0)), [f"ds_write_b128 v{vL16}, {vr(AO0, 4)} offset:{L_MEMA + order[0] * 1024}"]),
         (qk(0, ("q", 1)), [f"ds_write_b128 v{vL16}, {vr(AO1, 4)} offset:{L_MEMA + order[1] * 1024}"]),
         (qk(0, ("k", 0)), [f"ds_write_b32 v{vL4}, v{A8} offset:{L_MEMA + 8192 + w * 256}"]),
         (qk(0, ("k", 1)), [])])
    a.barrier(lg=0)
    seq(A_read(Ap(2), order[2]))
    fl = {4: A_read(Ap(3), order[3]), 5: lwh(2, 0), 6: lwh(2, 1), 7: A_read(Ap(4), order[4]),
          9: lwh(3, 0), 10: lwh(3, 1), 12: A_read(Ap(5), order[5]),
          16: f"buffer_load_dwordx4 {vr(VXA, 4)}, v{vL16}, {WS}, s{sVF} offen",
          20: f"buffer_load_dwordx4 {vr(VXB, 4)}, v{vL16}, {WS}, s{sVF} offen offset:1024",
          19: [lambda: a.wait_tag("pollx"), A_read(Ap(6), order[6])], 23: A_read(Ap(7), order[7]), 24: A_read(Ap(8), order[8])}
    for p in range(4, 9):
        fl[4 * p - 3] = lwh(p, 0)
        fl[4 * p - 2] = lwh(p, 1)
    tail = [(7, ("q", 0)), (7, ("q", 1)), (8, ("q", 0)), (8, ("q", 1)), (7, ("k", 0)), (7, ("k", 1)), (8, ("k", 0)), (8, ("k", 1))]
    spine = [(p, mb) for p in range(7) for mb in (("q", 0), ("q", 1), ("k", 0), ("k", 1))] + tail
    if NOKV & 4:
        fl[16] = fl[20] = None
    qe, ke = xe(ACCQ), xe(ACCK)
    SX, SMm, X4 = ACCQ, ACCK + 4, ACCK
    fl[33] = [KX(Q[5], 0, 0), qe[0]]
    fl[34] = [KX(Q[6], 0, 1), qe[1]]
    fl[35] = [KX(Q[3], 1, 0), qe[2], qe[3], qe[4], qe[5]]
    if HK:
        fl[8] = [fl.get(8), flag_sample]
    for sl in range(4, 36):
        p, mb = spine[sl]
        seq(qk(p, mb), fl.get(sl))
        if sl == 7:
            stamp(1)
    seq(f"ds_write_b32 v{vQW}, v{ACCQ + 2} offset:{L_QB}",
        f"ds_write_b32 v{vQW}, v{ACCQ + 3} offset:{L_QB + ROWS}")
    stamp(2)

    def V(p, A):
        return [S("v", 0, order[p], A), S("v", 1, order[p], A)]
    run([(V(8, Q[2])[0], [KX(Q[4], 1, 1), ke[0], ke[1], ke[2], ke[3]]),
         (V(8, Q[2])[1], [A_read(ACCQ, order[0]), ke[4], ke[5],
                          f"ds_write_b32 v{vQW}, v{ACCK + 2} offset:{L_KB}",
                          f"ds_write_b32 v{vQW}, v{ACCK + 3} offset:{L_KB + ROWS}"]),
         (V(7, Q[1])[0], [A_read(ACCQ + 4, order[1])]),
         (V(7, Q[1])[1], [A_read(ACCK, order[2])]),
         (V(6, Q[0])[0], [A_read(ACCK + 4, order[3])]),
         (V(6, Q[0])[1], [])])
    a.barrier(lg=3)
    stamp(3)
    ve = [f"v_add_f32 v{ACCV}, v{ACCV}, v{ACCV + 2}", f"v_add_f32 v{ACCV + 1}, v{ACCV + 1}, v{ACCV + 3}",
          f"v_add_f32 v{ACCV + 4}, v{ACCV + 4}, v{ACCV + 6}", f"v_add_f32 v{ACCV + 5}, v{ACCV + 5}, v{ACCV + 7}",
          f"v_cvt_pk_bf16_f32 v{ACCV + 2}, v{ACCV}, v{ACCV + 1}",
          f"v_cvt_pk_bf16_f32 v{ACCV + 3}, v{ACCV + 4}, v{ACCV + 5}"]
    seq(qB(Q[0], 0))
    run([(V(0, ACCQ)[0], [A_read(Q[2], order[4])]),
         (V(0, ACCQ)[1], [kmA(ACCQ, 0)]),
         (V(1, ACCQ + 4)[0], [A_read(Q[1], order[5])]),
         (V(1, ACCQ + 4)[1], []),
         (V(2, ACCK)[0], []),
         (V(2, ACCK)[1], [qB(ACCK, 1)]),
         (V(3, ACCK + 4)[0], []),
         (V(3, ACCK + 4)[1], []),
         (V(4, Q[2])[0], []),
         (V(4, Q[2])[1], [kmA(Q[2], 1)]),
         (V(5, Q[1])[0], []),
         (V(5, Q[1])[1], [qB(Q[1], 2)])])
    PBQ = ACCV + 4
    run([(MF(SMm, ACCQ, Q[0], True, ("km", 0), ("qB", 0)), [flag_check_prefetch] if HK else []),
         (MF(SX, Q[5], Q[0], True, ("KX", 0, 0), ("qB", 0)), [KX(Q[5], 2, 0)]),
         (MF(SX + 4, Q[6], Q[0], True, ("KX", 0, 1), ("qB", 0)), [KX(Q[6], 2, 1)]),
         (MF(SMm, Q[2], ACCK, False, ("km", 1), ("qB", 1)), [kmA(Q[0], 2), ve[0], ve[1]]),
         (MF(SX, Q[3], ACCK, False, ("KX", 1, 0), ("qB", 1)), [qB(Q[2], 3), ve[2], ve[3]]),
         (MF(SX + 4, Q[4], ACCK, False, ("KX", 1, 1), ("qB", 1)), [KX(Q[3], 3, 0), ve[4], ve[5]]),
         (MF(SMm, Q[0], Q[1], False, ("km", 2), ("qB", 2)),
          [kmA(ACCK, 3), f"v_lshrrev_b32 v{vT0}, 8, v{vL16}", f"v_mul_u32_u24 v{vT0}, {ROWS}, v{vT0}"]),
         (MF(SX, Q[5], Q[1], False, ("KX", 2, 0), ("qB", 2)),
          [KX(Q[4], 3, 1), f"v_and_b32 v{vT1}, 0xf0, v{vL16}", f"v_add_u32 v{vT0}, v{vT0}, v{vT1}"]),
         (MF(SX + 4, Q[6], Q[1], False, ("KX", 2, 1), ("qB", 2)),
          [f"ds_read_b128 {vr(PBQ, 4)}, v{vT0} offset:{L_KB + 2 * w * ROWS}", f"v_lshrrev_b32 v{vT1}, 1, v{vL16}",
           f"v_bfi_b32 v{ACCV + 2}, 1, s{sKPH}, v{ACCV + 2}"]),
         (MF(SMm, ACCK, Q[2], False, ("km", 3), ("qB", 3)),
          [f"buffer_store_dwordx2 {vr(ACCV + 2, 2)}, v{vT1}, {WS}, s{sKM} offen offset:2048 sc1" if not NOPUB else None,
           f"v_mov_b32 v{Q[1] + 1}, 0", f"v_mov_b32 v{Q[1] + 2}, 0"]),
         (MF(SX, Q[3], Q[2], False, ("KX", 3, 0), ("qB", 3)),
          [f"v_mov_b64 {vr(Q[5], 2)}, s[{sONES}:{sONES + 1}]", f"v_mov_b64 {vr(Q[5] + 2, 2)}, s[{sONES}:{sONES + 1}]"]),
         (MF(SX + 4, Q[4], Q[2], False, ("KX", 3, 1), ("qB", 3)),
          [f"v_bfi_b32 v{PBQ}, 1, s{sKPH}, v{PBQ}", f"s_mov_b64 exec, s[{sMLO}:{sMLO + 1}]",
           f"buffer_store_dwordx4 {vr(PBQ, 4)}, v{vL16}, {WS}, s{sKM} offen sc1" if not NOPUB else None,
           "s_mov_b64 exec, -1"])])
    stamp(4)
    MX, T1 = vT0, vT1
    MP = X4
    LQ = Q[6]
    P4 = Q[0]
    PB = Q[1]
    OX, OY = Q[2], Q[3]
    ONES = Q[5]
    WB = [Q[4], VXA]
    wo_buf = {k: WB[i % 2] for i, k in enumerate(WO_L)}

    def wo_rd(i):
        return LW(wo_buf[WO_L[i]], ("o",) + WO_L[i])

    pf = [f"v_pk_fma_f32 {vr(b, 2)}, {vr(b, 2)}, s[{sCEXP}:{sCEXP + 1}], {vr(MP, 2)} op_sel_hi:[1,1,0] neg_lo:[0,0,1] neg_hi:[0,0,1]"
          for b in (SMm, SX, SX + 2, SX + 4, SX + 6)]
    ex = [f"v_exp_f32 v{r}, v{r}" for r in [SMm, SMm + 1] + list(range(SX, SX + 8))]
    seq(f"v_max3_f32 v{MX}, v{SMm}, v{SMm + 1}, v{SX}",
        f"v_max3_f32 v{MX}, v{MX}, v{SX + 1}, v{SX + 2}",
        f"v_max3_f32 v{MX}, v{MX}, v{SX + 3}, v{SX + 4}",
        f"v_max3_f32 v{MX}, v{MX}, v{SX + 5}, v{SX + 6}",
        f"v_max_f32 v{MX}, v{MX}, v{SX + 7}",
        f"v_mov_b32 v{T1}, v{MX}",
        f"v_permlane32_swap_b32 v{MX}, v{T1}",
        f"v_max_f32 v{MX}, v{MX}, v{T1}",
        f"v_mov_b32 v{T1}, v{MX}",
        f"v_permlane16_swap_b32 v{MX}, v{T1}",
        f"v_max_f32 v{MX}, v{MX}, v{T1}",
        f"v_mul_f32 v{MP}, s{sCEXP}, v{MX}",
        pf[0], pf[1], ex[0], ex[1], pf[2], ex[2], ex[3], pf[3],
        f"v_cvt_pk_bf16_f32 v{PB}, v{SMm}, v{SMm + 1}", ex[4], pf[4],
        f"v_cvt_pk_bf16_f32 v{PB + 3}, v{SMm}, v{SMm + 1}", ex[5],
        f"v_cvt_pk_bf16_f32 v{P4}, v{SX}, v{SX + 1}", ex[6], ex[7],
        f"v_cvt_pk_bf16_f32 v{P4 + 1}, v{SX + 2}, v{SX + 3}", ex[8], ex[9],
        f"v_cvt_pk_bf16_f32 v{P4 + 2}, v{SX + 4}, v{SX + 5}",
        f"v_cvt_pk_bf16_f32 v{P4 + 3}, v{SX + 6}, v{SX + 7}",
        f"v_mfma_f32_16x16x16_bf16 {vr(LQ, 4)}, {vr(ONES, 2)}, {vr(PB, 2)}, 0",
        f"v_mfma_f32_16x16x16_bf16 {vr(OX, 4)}, {vr(ACCV + 2, 2)}, {vr(PB, 2)}, 0",
        f"v_mfma_f32_16x16x16_bf16 {vr(OY, 4)}, {vr(ACCV + 2, 2)}, {vr(PB + 2, 2)}, 0",
        MF(LQ, ONES, P4, False),
        MF(OX, VXA, P4, False), wo_rd(0)[0] if False else None,
        MF(OY, VXB, P4, False), wo_rd(1)[0], wo_rd(1)[1],
        wo_rd(0)[0],
        f"v_rcp_f32 v{MX}, v{LQ}")
    stamp(5)
    OP = ACCQ + 4
    for i in (0, 2):
        a(f"v_pk_mul_f32 {vr(OX + i, 2)}, {vr(OX + i, 2)}, {vr(MX, 2)} op_sel_hi:[1,0]")
        a(f"v_pk_mul_f32 {vr(OY + i, 2)}, {vr(OY + i, 2)}, {vr(MX, 2)} op_sel_hi:[1,0]")
        a(f"v_cvt_pk_bf16_f32 v{OP + i}, v{OX + i}, v{OY + i}")
        a(f"v_cvt_pk_bf16_f32 v{OP + i + 1}, v{OX + i + 1}, v{OY + i + 1}")
    a(f"ds_write_b128 v{vQR}, {vr(OP, 4)} offset:{L_OB + w * 64}")
    TA = [ACCQ, ACCK, ACCK + 4, ACCV + 4, Q[0], Q[1], Q[6], ACCQ + 4, ACCV]
    OA0, OA1 = Q[2], Q[3]
    seq(wo_rd(0)[1], zero(ACCQ, 4), zero(ACCK, 8), zero(ACCV + 4, 4), zero(Q[0], 8))
    a.barrier(lg=1)
    a(f"ds_read_b128 {vr(OA0, 4)}, v{vOR} offset:{L_OB}")
    a(f"ds_read_b128 {vr(OA1, 4)}, v{vOR} offset:{L_OB + 128}")
    seq(zero(Q[6], 4), zero(ACCV, 4), zero(OP, 4))
    last = pfx + "last"
    seq(f"s_cmp_eq_u32 s{sSTEP}, {NSEG - 1}", f"s_cbranch_scc1 {last}")
    stamp(6)
    ST = [TA[0], TA[4], TA[8]]

    def epi(tau):
        acc = TA[tau]
        dst = ST[tau // 4] + tau % 4
        ops = [f"v_add_f32 v{acc}, v{acc}, v{acc + 2}", f"v_add_f32 v{acc + 1}, v{acc + 1}, v{acc + 3}",
               f"v_cvt_pk_bf16_f32 v{dst}, v{acc}, v{acc + 1}"]
        if tau % 4 == 0:
            ops.append(f"v_bfi_b32 v{dst}, 1, s{sPH}, v{dst}")
        if tau in (3, 7):
            ops.append(f"buffer_store_dwordx4 {vr(ST[tau // 4], 4)}, v{vL16}, {WS}, s{sPW} offen offset:{1024 * (tau // 4)}{sc}")
        if tau == 8:
            ops.append(f"buffer_store_dword v{dst}, v{vL4}, {WS}, s{sPW} offen offset:2048{sc}")
        return ops

    nxt = 2
    fill = []
    pend = []
    for idx in range(18):
        tau, ks = TORD[idx >> 1], idx & 1
        k = ("o", tau, ks)
        if FM[k][0] == "l":
            buf = wo_buf[(tau, ks)]
            use(buf, ("W", k)); use(buf + 4, ("W2", k))
            B = vr(buf, 8)
        else:
            B = opnd(FM[k])
        a(SM(TA[tau], (OA0, OA1)[ks], B))
        if pend:
            seq(pend.pop(0))
        elif idx in (3, 8):
            seq(kdma(idx // 8))
        if FM[k][0] == "l" and nxt < len(WO_L):
            r = wo_rd(nxt)
            seq(r[0])
            pend.append(r[1])
            nxt += 1
        n = 0
        while fill and fill[0][0] <= idx and (n < 2 or not fill[0][1].startswith("v_")):
            n += fill[0][1].startswith("v_")
            a(fill.pop(0)[1])
        if ks == 1:
            fill += [(idx + WOD, t) for t in epi(tau)]
    for _, t in fill:
        a(t)
    stamp(7)
    tog = [f"s_xor_b32 s{r}, s{r}, {MEMB_SLOT}" for r in [sMEMR, sMEMR8]]

    if not HK:
        if w == 2:
            a(f"s_cmp_eq_u32 s{sJOBC}, 0")
            a(f"s_cbranch_scc1 {pfx}nojob")
        LD = [Q[2], Q[3], Q[4], Q[5]]
        SEL, D = VXA, VXB
        loads1 = [f"buffer_load_dwordx4 {vr(LD[i], 4)}, v{vRLD}, {WS}, s{sPR + i} offen sc1" for i in range(4)]
        if w < 2:
            checks = [[f"v_and_b32 v{vT1}, 1, v{LD[i]}", f"v_cmp_ne_u32 {M(i)}, s{sPH}, v{vT1}"] for i in range(4)]
        else:
            checks = [[f"v_xor_b32 v{vT0}, v{LD[i]}, v{LD[i] + 1}", f"v_xor_b32 v{vT1}, v{LD[i] + 2}, v{LD[i] + 3}",
                       f"v_or_b32 v{vT0}, v{vT0}, v{vT1}", f"v_xor_b32 v{vT1}, v{LD[i]}, v{LD[i] + 2}",
                       f"v_or_b32 v{vT0}, v{vT0}, v{vT1}", f"v_xor_b32 v{vT1}, s{sPH}, v{LD[i]}",
                       f"v_or_b32 v{vT0}, v{vT0}, v{vT1}", f"v_and_b32 v{vT0}, 1, v{vT0}",
                       f"v_cmp_ne_u32 {M(i)}, 0, v{vT0}"] for i in range(4)]
        betw = [[MF(D, LD[i], SEL, i == 0)] for i in range(4)]
        stamp(9)
        a(f"v_bfe_u32 v{vT0}, v{vL16}, 4, 4")
        a(f"v_mov_b32 v{vT1}, 0x3f80")
        a(f"v_mov_b32 v{D}, 0x3f800000")
        for d in range(4):
            a(f"v_cmp_eq_u32 vcc, {2 * d}, v{vT0}")
            a(f"v_cmp_eq_u32 s[{sU}:{sU + 1}], {2 * d + 1}, v{vT0}")
            a(f"v_cndmask_b32 v{SEL + d}, 0, v{vT1}, vcc")
            a(f"v_cndmask_b32 v{SEL + d}, v{SEL + d}, v{D}, s[{sU}:{sU + 1}]")
        if D1[w]:
            a(f"s_sleep {D1[w]}")
        poll("p1", loads1, checks, betw)
        stamp(8)
        if stamps:
            a(f"s_mov_b32 s3, s{S_SPIN}")
        seq(f"v_permlane16_swap_b32 v{D}, v{D + 2}", f"v_permlane16_swap_b32 v{D + 1}, v{D + 3}",
            f"s_mov_b64 exec, s[{sMASK}:{sMASK + 1}]",
            f"v_add_f32 v{D}, v{D}, v{D + 2}", f"v_add_f32 v{D + 1}, v{D + 1}, v{D + 3}",
            f"v_cvt_pk_bf16_f32 v{D}, v{D}, v{D + 1}", f"v_min_u32 v{D}, s{sMAXD}, v{D}",
            f"buffer_store_dword v{D}, v{vRST}, {WS}, s{sMEMW} offen{sc}",
            f"v_mov_b32 v{D + 1}, -1",
            f"buffer_store_dword v{D + 1}, v{vRST}, {WS}, s{sMEMZ} offen{sc}",
            f"s_mov_b64 exec, -1")
        if w == 2:
            a(f"s_branch {pfx}jobdone")
            a.label(pfx + "nojob")
            a.restore(([], []))
            a.label(pfx + "jobdone")
            a.vmq = [(frozenset(), "pollx")] * 4 + [(frozenset(), "st")] * 3
    adv = [f"s_add_u32 s{sSTEP}, s{sSTEP}, 1", f"s_bfe_u32 s{sPH}, s{sSTEP}, 0x10001",
           f"s_xor_b32 s{sPW}, s{sPW}, {PART_SLOT}"]
    adv += [f"s_xor_b32 s{r}, s{r}, {PART_SLOT}" for r in ([] if HK else [sPR + i for i in range(4)])]
    adv += [f"s_xor_b32 s{r}, s{r}, {MEMB_SLOT}" for r in ([] if HK else [sMEMW, sMEMZ])]
    adv += [f"s_and_b32 s{S_TMP}, s{sSTEP}, {KM_D - 1}", f"s_mul_i32 s{S_TMP}, s{S_TMP}, {32 * KM_UNIT}",
            f"s_add_u32 s{sKM}, s{sKMB}, s{S_TMP}", f"s_bfe_u32 s{sKPH}, s{sSTEP}, {0x10000 + KM_D.bit_length() - 1}",
            f"s_add_u32 s{sOFL}, s{sOFL}, {FL_STRIDE}"]
    if HK:
        adv += [f"s_cmp_ge_u32 s{sSTEP}, {KM_D - 1}", f"s_cselect_b64 s[{sFMK}:{sFMK + 1}], -1, s[{sFMK}:{sFMK + 1}]",
                f"s_add_u32 s{sKPV}, s{sKPV}, {32 * 8192}"]
    adv += [f"s_add_u32 s{sVF}, s{sVF}, {32 * 8192}",
            f"s_add_u32 s{sKF}, s{sKF}, {32 * 8192}", f"s_add_u32 s{sKP}, s{sKP}, {32 * 8192}",
            f"s_add_u32 s{sFL}, s{sFL}, {FL_STRIDE}"]
    seq(tog)
    a("s_barrier")
    if D2:
        a(f"s_sleep {D2}")
    seq(loads2, adv)
    if not HK:
        a.wait_tag("pollx")
    pre_step()
    a.wait(lg=0)
    if HK:
        trace(a, Q[2], Q[2] + 1, True)
        if DBGT == 1:
            a.force_wait(lg=0)
            for k, (wd, st) in enumerate(((5, 1), (13, 63))):
                a(f"s_lshl_b32 s{S_TMP}, s{sLAY}, 2")
                a(f"s_add_u32 s{S_TMP + 1}, s{S_TMP}, {4 * wd}")
                stamp_max(a, f"s{S_TMP + 1}", Q[2], Q[2] + 1, (sSTEP, st))
    stamp(NST)
    dump_stamps()
    a.restore(([], []))
    a(f"s_branch {head}")
    for t in tails:
        t()
    a.restore(([], []))
    a.label(last)
    a.force_wait(vm=0, lg=0)
    if HK:
        trace(a, Q[2], Q[2] + 1, True)
    a(f"s_branch {done}")
```

```python
from common import *
import struct, os

WS = f"s[{SRD_WS}:{SRD_WS + 3}]"
L0_AP = 16
L0_T = 16
SLP = int(os.environ.get("SLP", "4"))
AQLDW = int(os.environ.get("AQLDW", "1"))
EARLYF = int(os.environ.get("EARLYF", "0"))


def f32bits(x):
    return struct.unpack("<I", struct.pack("<f", x))[0]


sN0, sN1 = S_FREE, S_FREE + 1
sCL, sCS = S_FREE + 2, S_FREE + 3
sNL, sNS = S_FREE + 4, S_FREE + 5
sLEFT = S_FREE + 6
sPF = S_FREE + 7
sBUF = S_FREE + 8
sNX = S_FREE + 9
sNFL = S_FREE + 10
sPEND = S_FREE + 11
sSELX, sSELY = S_FREE + 12, S_FREE + 13
sO1, sO2, sO3 = S_FREE + 14, S_FREE + 15, S_FREE + 16
sK1, sK2, sK3, sK4 = S_FREE + 17, S_FREE + 18, S_FREE + 19, S_FREE + 20
sE = S_FREE + 22
sNO = S_FREE + 24
sCO = S_FREE + 25
sWQ = S_FREE + 26
sOB = S_FREE + 27
sF0, sF1, sDEC = S_FREE + 28, S_FREE + 29, S_FREE + 30
sLAYS = S_FREE + 31
sSB, sW1K = S_FREE + 34, S_FREE + 35
sX0, sX1 = S_FREE + 32, S_FREE + 33

vL16, vFLA, vFLV, vONE, vZERO, vT0, vT1, vC, vG = range(9)
XBUF = X_SEG


def seq(a, *items):
    for it in items:
        if isinstance(it, (list, tuple)):
            seq(a, *it)
        elif callable(it):
            it()
        elif it:
            a(it)


def MF(acc, A, B, C=None):
    return f"v_mfma_f32_16x16x32_bf16 {vr(acc, 4)}, {A}, {B}, {vr(acc, 4) if C is None else C}"


def lane_setup(a, nflags):
    a(f"""
    v_and_b32 v{vT0}, 63, v0
    v_lshlrev_b32 v{vL16}, 4, v{vT0}
    v_and_b32 v{vC}, 15, v{vT0}
    v_lshrrev_b32 v{vG}, 4, v{vT0}
    v_min_u32 v{vFLA}, {nflags - 1}, v{vT0}
    v_lshrrev_b32 v{vT1}, 2, v{vFLA}
    v_and_b32 v{vFLA}, 3, v{vFLA}
    v_lshlrev_b32 v{vFLA}, 2, v{vFLA}
    v_lshl_add_u32 v{vFLA}, v{vT1}, 7, v{vFLA}
    v_mov_b32 v{vONE}, 1
    v_mov_b32 v{vZERO}, 0
    s_mov_b32 s{sSELX}, 0x05040100
    s_mov_b32 s{sSELY}, 0x07060302
    """)


def pick_next(a, step, l0):
    a(f"""
    s_add_u32 s{S_TMP}, s{sN1}, {l0}
    s_min_u32 s{S_TMP}, s{S_TMP}, {NSEG}
    s_cmp_lt_u32 s{sN0}, s{S_TMP}
    s_cselect_b32 s{sNL}, 0, 1
    s_cselect_b32 s{sNS}, s{sN0}, s{sN1}
    s_cselect_b32 s{S_TMP}, {step}, 0
    s_cselect_b32 s{S_TMP + 1}, 0, {step}
    s_add_u32 s{sN0}, s{sN0}, s{S_TMP}
    s_add_u32 s{sN1}, s{sN1}, s{S_TMP + 1}
    s_lshl_b32 s{sNO}, s{sNL}, 6
    s_add_u32 s{sNO}, s{sNO}, s{sNS}
    """)


def flag_out(a, sreg):
    a("s_mov_b64 exec, 1")
    a(f"buffer_store_dword v{vONE}, v{vZERO}, {WS}, s{sreg} offen sc1")
    a("s_mov_b64 exec, -1")


def flag_block(a, name, abort):
    L = a.newlabel(name)
    a(f"s_mov_b32 s{S_SPIN}, 0")
    a.label(L)
    a(f"buffer_load_dword v{vFLV}, v{vFLA}, {WS}, s{sNFL} offen sc1")
    spin_check(a, abort)
    a(f"v_cmp_eq_u32 vcc, 0, v{vFLV}")
    Ld = a.newlabel(name + "d")
    a(f"s_cbranch_vccz {Ld}")
    a(f"s_sleep {SLP}")
    a(f"s_branch {L}")
    a.label(Ld)


PFS = f"s[{SRD_C}:{SRD_C + 3}]"


STB3 = 0x1C000
sCSB = S_FREE + 39
P3 = int(os.environ.get('P3', '0'))
MBOX = 2 * XBUF + 1024
vFL1 = 15


def cand_addr(a, flag_off):
    a(f"""
    s_mul_i32 s{sF0}, s{sN0}, {FL_STRIDE}
    s_add_u32 s{sF0}, s{sF0}, {WS_FLAGS + flag_off}
    s_cmp_lt_u32 s{sN0}, {NSEG}
    s_cselect_b32 s{sF0}, s{sF0}, {WS_ZERO}
    s_mul_i32 s{sF1}, s{sN1}, {FL_STRIDE}
    s_add_u32 s{sF1}, s{sF1}, {WS_FLAGS + flag_off + NSEG * FL_STRIDE}
    s_cmp_lt_u32 s{sN1}, {NSEG}
    s_cselect_b32 s{sF1}, s{sF1}, {WS_ZERO}
    """)


def sample2(a):
    a(f"buffer_load_dword v{vFLV}, v{vFLA}, {WS}, s{sF0} offen sc1")
    a(f"buffer_load_dword v{vFL1}, v{vFLA}, {WS}, s{sF1} offen sc1")


def decide(a, prio=1):
    a(f"v_cmp_eq_u32 vcc, 0, v{vFLV}")
    a(f"v_cmp_eq_u32 s[{sE}:{sE + 1}], 0, v{vFL1}")
    m = ["vcc", f"s[{sE}:{sE + 1}]"]
    a(f"s_cmp_eq_u64 {m[1 - prio]}, 0")
    a(f"s_cselect_b32 s{sDEC}, {2 - prio}, 0")
    a(f"s_cmp_eq_u64 {m[prio]}, 0")
    a(f"s_cselect_b32 s{sDEC}, {1 + prio}, s{sDEC}")


def take(dec, step, step1=None):
    return [f"s_cmp_eq_u32 s{dec}, 2",
            f"s_cselect_b32 s{sNL}, 1, 0",
            f"s_cselect_b32 s{sNS}, s{sN1}, s{sN0}",
            f"s_cselect_b32 s{S_TMP}, {step if step1 is None else step1}, 0",
            f"s_add_u32 s{sN1}, s{sN1}, s{S_TMP}",
            f"s_cmp_eq_u32 s{dec}, 1",
            f"s_cselect_b32 s{S_TMP}, {step}, 0",
            f"s_add_u32 s{sN0}, s{sN0}, s{S_TMP}",
            f"s_lshl_b32 s{sNO}, s{sNL}, 6",
            f"s_add_u32 s{sNO}, s{sNO}, s{sNS}"]


def poll2(a, name, abort, flag_off, prio=1):
    cand_addr(a, flag_off)
    L = a.newlabel(name)
    a(f"s_mov_b32 s{S_SPIN}, 0")
    a.label(L)
    sample2(a)
    spin_check(a, abort)
    decide(a, prio)
    a(f"s_cmp_lg_u32 s{sDEC}, 0")
    a(f"s_cbranch_scc1 {L}d")
    a(f"s_sleep {SLP}")
    a(f"s_branch {L}")
    a.label(L + "d")


def staged_loop(a, name, abort, done, xbase, xlayer, flag_off, extra_loads, compute, out_flag, nst, vMB, laysel=None, waited=False, epi=None, early=None, vsrc=None, pub2=None):
    crit = [f"s_cmp_eq_u32 s{sDEC}, 2", f"s_cselect_b32 s{sNX}, s{sX1}, s{sX0}",
            f"s_cmp_lg_u32 s{sDEC}, 0", f"s_cselect_b32 s{SRD_C + 2}, {WS_BYTES}, 0"]
    adv_x = [f"s_cmp_eq_u32 s{sDEC}, 2", f"s_cselect_b32 s{S_TMP}, {X_SEG}, 0", f"s_add_u32 s{sX1}, s{sX1}, s{S_TMP}",
             f"s_cmp_eq_u32 s{sDEC}, 1", f"s_cselect_b32 s{S_TMP}, {X_SEG}, 0", f"s_add_u32 s{sX0}, s{sX0}, s{S_TMP}"]

    def dma_ops(srd_):
        ops = []
        for i in range(9):
            pre = []
            if i % 4 == 0:
                pre = [f"s_add_u32 m0, s{sOB}, {i * 1024}", f"s_add_u32 s{sO2}, s{sNX}, {i * 1024}"]
            ops.append(pre + [f"buffer_load_dwordx4 v{vL16 if vsrc is None else vsrc}, {srd_}, s{sO2} offen offset:{(i % 4) * 1024} lds"])
        return ops

    def post():
        a(f"v_mov_b32 v{vT0}, s{sDEC}")
        a(f"ds_write_b32 v{vMB}, v{vT0}")
        a.wait(lg=0)

    def publish():
        a(f"s_cmp_lg_u32 s{sPEND}, 0")
        a("s_cselect_b64 exec, 1, 0")
        if pub2 is None:
            a(f"buffer_store_dword v{vONE}, v{vZERO}, {WS}, s{sPEND} offen sc1")
        else:
            a(f"buffer_store_dwordx2 {vr(pub2, 2)}, v{vZERO}, {WS}, s{sPEND} offen sc1")
        a("s_mov_b64 exec, -1")
        a(f"s_mov_b32 s{sPEND}, 0")

    def cur_from_next():
        a(f"s_mov_b32 s{sCL}, s{sNL}")
        a(f"s_mov_b32 s{sCS}, s{sNS}")
        a(f"s_mov_b32 s{sCO}, s{sNO}")

    def roll():
        Ls = a.newlabel(name + "_ns")
        a(f"s_cmp_lg_u32 s{S_WAVE}, 0")
        a(f"s_cbranch_scc1 {Ls}")
        sn = a.snap()
        cand_addr(a, flag_off)
        sample2(a)
        a.restore(sn)
        a.label(Ls)

    a(f"""
    s_mov_b32 s{sN0}, 0
    s_mov_b32 s{sN1}, 0
    s_mov_b32 s{sLEFT}, {2 * NSEG}
    s_mul_i32 s{sWQ}, s{S_WAVE}, 9216
    s_mov_b32 s{sBUF}, {XBUF}
    s_mov_b32 s{sOB}, s{sWQ}
    s_mov_b32 s{sPEND}, 0
    s_mov_b32 s{SRD_C}, s{SRD_WS}
    s_mov_b32 s{SRD_C + 1}, s{SRD_WS + 1}
    s_mov_b32 s{SRD_C + 2}, 0
    s_mov_b32 s{SRD_C + 3}, 0x00020000
    v_mov_b32 v{vMB}, {MBOX}
    s_add_u32 s{sX0}, s{sWQ}, {xbase}
    s_add_u32 s{sX1}, s{sWQ}, {xbase + xlayer}
    """)
    if laysel is not None:
        a(f"s_cmp_eq_u32 s{laysel}, 0")
        a(f"s_cselect_b32 s{sN0}, 0, {NSEG}")
        a(f"s_cselect_b32 s{sN1}, {NSEG}, 0")
        a(f"s_mov_b32 s{sLEFT}, {NSEG}")
    a(f"ds_write2_b32 v{vMB}, v{vZERO}, v{vZERO} offset0:0 offset1:1")
    a.wait(lg=0)
    if not waited:
        dbg_wait(a, DB_POOL, N_POOL, vT0, vT1, abort, name + "_ini")
    trace(a, vT0, vT1)
    prof_init(a)
    a(f"s_branch {name}_idle0")
    head = name + "_item"
    a.label(head)
    a.restore(([], []))
    prof_begin(a)
    a.force_wait(vm=nst)
    if EARLYF and (laysel is not None or EARLYF > 1):
        a(f"s_cmp_lt_u32 s{sPEND}, {NSEG * FL_STRIDE}")
        a(f"s_cbranch_scc1 {name}_defer")
        a.force_wait(vm=0)
        publish()
    a.label(name + "_defer")
    prof_end(a, 0)
    a(f"s_cmp_lg_u32 s{S_WAVE}, 0")
    a(f"s_cbranch_scc1 {name}_nw0")
    decide(a)
    post()
    a.label(name + "_nw0")
    prof_begin(a)
    a("s_barrier")
    prof_end(a, 1)
    a(f"ds_read_b32 v{vT1}, v{vMB}")
    a(f"""
    v_xor_b32 v{vMB}, 4, v{vMB}
    s_xor_b32 s{sBUF}, s{sBUF}, {XBUF}
    s_xor_b32 s{sOB}, s{sOB}, {XBUF}
    s_xor_b32 s{sSB}, s{sSB}, 0x2000
    s_xor_b32 s{sCSB}, s{sCSB}, 0x2000
    s_sub_u32 s{sLEFT}, s{sLEFT}, 1
    """)
    if epi:
        early()
        a(f"s_cmp_eq_u32 s{sPEND}, 0")
        a(f"s_cbranch_scc1 {name}_noepi")
        lg = list(a.lgq)
        epi()
        assert a.lgq == lg or not a.lgq
        a.lgq = lg
        a.label(name + "_noepi")
    a.vmq = [(frozenset(), "st")] * nst
    ex = extra_loads(PFS)
    tk = take(sDEC, 1)
    pre = ([f"v_readfirstlane_b32 s{sDEC}, v{vT1}"] + crit, [tk[:5], tk[5:], ex[0][:-1], adv_x[:3], adv_x[3:]] if os.environ.get('BSPLIT', '1') == '1' else [tk, ex[0][:-1], adv_x, [], []])
    ex[0] = ex[0][-1:]

    def mid():
        prof_begin(a) if PROF == 1 else None
        a.wait_tag("st")
        prof_end(a, 2) if PROF == 1 else None
        publish()

    compute(pre, dma_ops(PFS), ex, mid, roll)
    out_flag()
    trace_at(a, sCO, vT0, vZERO)
    if name.startswith("Lp"):
        stamp_max(a, 9, vT0, vT1, (sCO, 1)) if DBGT == 2 else None
    cur_from_next()
    if TRACE == 1:
        a.force_wait(vm=0)
        trace(a, vT0, vT1)
        a.force_wait(vm=0)
    a(f"s_min_u32 s{sDEC}, s{sDEC}, s{sLEFT}")
    a(f"s_cmp_lg_u32 s{sDEC}, 0")
    a(f"s_cbranch_scc1 {head}")
    roll()
    a.force_wait(vm=0)
    publish()
    a(f"s_cmp_eq_u32 s{sLEFT}, 0")
    a(f"s_cbranch_scc1 {name}_end")
    a(f"s_cmp_lg_u32 s{S_WAVE}, 0")
    a(f"s_cbranch_scc1 {name}_nw1")
    decide(a)
    a(f"s_cmp_lg_u32 s{sDEC}, 0")
    a(f"s_cbranch_scc1 {name}_got")
    a.label(name + "_idle0")
    a.restore(([], []))
    a(f"s_cmp_lg_u32 s{S_WAVE}, 0")
    a(f"s_cbranch_scc1 {name}_nw1")
    poll2(a, name + "_pl", abort, flag_off)
    a.label(name + "_got")
    post()
    a.label(name + "_nw1")
    a("s_barrier")
    a(f"ds_read_b32 v{vT1}, v{vMB}")
    a(f"v_xor_b32 v{vMB}, 4, v{vMB}")
    a(f"v_readfirstlane_b32 s{sDEC}, v{vT1}")
    a(f"s_cmp_eq_u32 s{sDEC}, 0")
    a(f"s_cbranch_scc1 {abort}")
    seq(a, crit, take(sDEC, 1), adv_x, dma_ops(WS), extra_loads(WS))
    cur_from_next()
    roll()
    a.force_wait(vm=0)
    if PROF:
        a("s_add_u32 s96, s96, 1000")
    a(f"s_branch {head}")
    a.label(name + "_end")
    prof_dump(a, vT0, vT1)
    a(f"s_branch {done}")


WB = 112


def MF32(acc, A, B, C=None):
    return f"v_mfma_f32_32x32x16_bf16 {vr(acc, 16)}, {A}, {B}, {vr(acc, 16) if C is None else C}"


def load_cols(a, srdb, vad, vsel, items, nt=os.environ.get("NT_P", "")):
    D = 28
    n = len(items)
    for i in range(n + D):
        if i < n:
            r = 16 + 2 * (i % 48)
            a(f"s_add_u32 s{S_TMP}, s{sK1}, {items[i][0]}")
            a(f"buffer_load_dword v{r}, v{vad}, s[{srdb}:{srdb + 3}], s{S_TMP} offen {nt}")
            a(f"buffer_load_dword v{r + 1}, v{vad + 1}, s[{srdb}:{srdb + 3}], s{S_TMP} offen {nt}")
        j = i - D
        if j >= 0:
            r = 16 + 2 * (j % 48)
            a(f"v_perm_b32 v{items[j][1]}, v{r + 1}, v{r}, v{vsel}")


def feat_of_row(a, dst, row, t1):
    a(f"""
    v_and_b32 v{dst}, 19, v{row}
    v_bfe_u32 v{t1}, v{row}, 2, 1
    v_lshl_add_u32 v{dst}, v{t1}, 3, v{dst}
    v_bfe_u32 v{t1}, v{row}, 3, 1
    v_lshl_add_u32 v{dst}, v{t1}, 2, v{dst}
    """)


def sel_of_parity(a, vsel, par, t1):
    a(f"""
    v_mov_b32 v{vsel}, s{sSELX}
    v_mov_b32 v{t1}, s{sSELY}
    v_cmp_eq_u32 vcc, 1, v{par}
    v_cndmask_b32 v{vsel}, v{vsel}, v{t1}, vcc
    """)


def gemm32(a, acc, swap, vXA, ring, pre, dma, extra, mid, roll, init=None, fill=None, issued=False):
    nr = len(ring)

    def rd(t):
        return f"ds_read_b128 {vr(ring[t % nr], 4)}, v{vXA} offset:{t * 1024}"
    if PROF == 2:
        a("s_memtime s[84:85]")
    if not issued:
        for t in range(nr - 1):
            a(rd(t))
    fill = list(fill or [])
    crit, blocks = pre
    blocks = list(blocks)
    vm = list(dma) + list(extra)
    for t in range(36):
        x, w = vr(ring[t % nr], 4), vr(WB + 4 * t, 4)
        a(MF32(acc, x if swap else w, w if swap else x, "0" if (t == 0 and not init) else None))
        if t + nr - 1 < 36:
            a(rd(t + nr - 1))
        k = 3 if t < 16 else 4
        if t == 1:
            seq(a, crit); k = 0
        elif t >= 2 and t % 2 == 1 and blocks:
            k = min(3, 5 - len(blocks[0]))
            seq(a, blocks.pop(0))
        elif t >= 2 and vm and (len(vm) > len(extra) or len(blocks) <= 2):
            assert len(vm) > len(extra) or len(blocks) <= 2
            seq(a, vm.pop(0)); k -= 2
        while fill and k > 0:
            seq(a, fill.pop(0)); k -= 1
        if t == 10:
            mid()
        if t == 16:
            roll()
    assert not vm and not fill and not blocks
    if PROF == 2:
        a("s_memtime s[86:87]")
        a.force_wait(lg=0)
        a("s_sub_u32 s86, s86, s84")
        a("s_add_u32 s97, s97, s86")


VMDENSE = int(os.environ.get("VMDENSE", "1"))
STB = 0x14000


def stats_dma(base, srd_):
    pre = [f"s_mul_i32 s{sO3}, s{sNL}, {2 * ST_BYTES}", f"s_mul_i32 s{S_TMP + 1}, s{sNS}, {ST_SEG}",
           f"s_add_u32 s{sO3}, s{sO3}, s{S_TMP + 1}", f"s_add_u32 s{sO3}, s{sO3}, {base + 4096}"]
    return [pre + [[f"s_add_u32 m0, s{sSB}, 4096", f"s_nop 0",
                    f"buffer_load_dwordx4 v{vL16}, {srd_}, s{sO3} offen lds"]],
            [f"s_add_u32 m0, s{sSB}, s{sW1K}", f"s_sub_u32 s{sO3}, s{sO3}, 4096", f"s_add_u32 s{sO3}, s{sO3}, s{sW1K}",
             f"buffer_load_dwordx4 v{vL16}, {srd_}, s{sO3} offen lds"]]


def stats_loads(base, STR, vaddr, srd_):
    pre = [f"s_mul_i32 s{sO3}, s{sNL}, {2 * ST_BYTES}", f"s_mul_i32 s{S_TMP + 1}, s{sNS}, {ST_SEG}",
           f"s_add_u32 s{sO3}, s{sO3}, s{S_TMP + 1}", f"s_add_u32 s{sO3}, s{sO3}, {base}"]
    ops = [[f"buffer_load_dwordx4 {vr(STR + 4 * i, 4)}, v{vaddr}, {srd_}, s{sO3} offen offset:{512 * i}"] for i in range(6)]
    ops[0] = pre + ops[0]
    return ops


def stats_math(STR, RS, MR):
    ops = []
    for i in range(1, 5):
        ops += [f"v_add_f32 v{STR + j}, v{STR + j}, v{STR + 4 * i + j}" for j in range(4)]
    S1, S2 = STR, STR + 1
    ops += [f"v_add_f32 v{S1}, v{S1}, v{STR + 2}", f"v_add_f32 v{S2}, v{S2}, v{STR + 3}",
            f"v_mov_b32 v{STR + 2}, v{S1}", f"v_mov_b32 v{STR + 3}, v{S2}",
            f"v_permlane32_swap_b32 v{S1}, v{STR + 2}", f"v_permlane32_swap_b32 v{S2}, v{STR + 3}",
            f"v_add_f32 v{S1}, v{S1}, v{STR + 2}", f"v_add_f32 v{S2}, v{S2}, v{STR + 3}",
            f"v_mul_f32 v{S1}, {hex(f32bits(1.0 / 576))}, v{S1}",
            f"v_mul_f32 v{S2}, {hex(f32bits(1.0 / 576))}, v{S2}",
            f"v_fma_f32 v{S2}, -v{S1}, v{S1}, v{S2}",
            f"v_max_f32 v{S2}, 0, v{S2}",
            f"v_add_f32 v{S2}, {hex(f32bits(1e-5))}, v{S2}",
            f"v_rsq_f32 v{RS}, v{S2}",
            f"v_mul_f32 v{MR}, v{S1}, v{RS}"]
    return ops


def role_p(a, abort, done):
    lane_setup(a, 18)
    vXA, vSTA, vCS, vA0, vLDS, vO = 9, 10, 11, 12, 12, 14
    vMB = 108
    ACC, RING, STR, LN = 16, 32, 56, 76
    TT = 96
    CS = 80
    a(f"""
    s_lshr_b32 s{sK2}, s{S_ROLE}, 5
    s_and_b32 s{sK3}, s{S_ROLE}, 31
    s_lshl_b32 s{S_TMP}, s{sK2}, 3
    s_add_u32 s{S_TMP}, s{S_TMP}, {KA_WQ}
    s_load_dwordx2 s[{SRD_A}:{SRD_A + 1}], s[0:1], s{S_TMP}
    s_mov_b32 s{SRD_A + 2}, {576 * 8192}
    s_mov_b32 s{SRD_A + 3}, 0x00020000
    s_lshl_b32 s{sK1}, s{sK3}, 8
    s_lshl_b32 s{S_TMP}, s{S_WAVE}, 6
    s_add_u32 s{sK1}, s{sK1}, s{S_TMP}
    v_bfe_u32 v{vSTA}, v{vL16}, 4, 5
    """)
    feat_of_row(a, vO, vSTA, vT0)
    a(f"""
    v_bfe_u32 v{vT0}, v{vL16}, 8, 1
    v_lshl_add_u32 v{vT1}, v{vC}, 1, v{vT0}
    s_cmp_eq_u32 s{sK2}, 2
    s_cselect_b64 vcc, -1, 0
    v_cndmask_b32 v{vO}, v{vO}, v{vT1}, vcc
    v_and_b32 v{vT0}, 1, v{vO}
    """)
    sel_of_parity(a, vCS, vT0, vT1)
    a(f"""
    v_and_b32 v{vO}, 30, v{vO}
    v_lshrrev_b32 v{vT0}, 9, v{vL16}
    v_lshlrev_b32 v{vA0}, 16, v{vT0}
    v_lshl_add_u32 v{vA0}, v{vO}, 1, v{vA0}
    v_add_u32 v{vA0 + 1}, 8192, v{vA0}
    v_lshlrev_b32 v{vSTA}, 4, v{vSTA}
    v_mul_u32_u24 v{vT1}, 2560, v{vT0}
    v_add_u32 v{vSTA}, v{vSTA}, v{vT1}
    v_add_u32 v{vSTA}, {STB3}, v{vSTA}
    s_lshl_b32 s{sW1K}, s{S_WAVE}, 10
    v_bfe_u32 v{vT1}, v{vL16}, 8, 1
    v_lshlrev_b32 v{vO}, 10, v{vT1}
    v_lshl_add_u32 v{vO}, v{vC}, 4, v{vO}
    v_lshl_add_u32 v{vO}, v{vT0}, 8, v{vO}
    """)
    a.force_wait(lg=0)
    a(f"s_and_b32 s{SRD_A + 1}, s{SRD_A + 1}, 0xffff")
    load_cols(a, SRD_A, vA0, vCS, [((16 * t + 2 * d) * 8192, WB + 4 * t + d) for t in range(36) for d in range(4)])
    a(f"""
    s_mul_i32 s{sK4}, s{sK2}, {QKV_M}
    s_lshl_b32 s{S_TMP}, s{sK3}, 13
    s_add_u32 s{sK4}, s{sK4}, s{S_TMP}
    s_lshl_b32 s{S_TMP}, s{S_WAVE}, 11
    s_add_u32 s{sK4}, s{sK4}, s{S_TMP}
    s_add_u32 s{sK4}, s{sK4}, {WS_QKV}
    s_lshl_b32 s{sK1}, s{sK3}, 9
    s_lshl_b32 s{S_TMP}, s{sK2}, 7
    s_add_u32 s{sK1}, s{sK1}, s{S_TMP}
    s_lshl_b32 s{S_TMP}, s{S_WAVE}, 2
    s_add_u32 s{sK1}, s{sK1}, s{S_TMP}
    s_add_u32 s{sK1}, s{sK1}, {WS_FLAGS + FL_QKV}
    v_mov_b32 v{RING}, 0x3f803f80
    v_mov_b32 v{RING + 1}, 0x3f803f80
    v_mov_b32 v{RING + 2}, 0x3f803f80
    v_mov_b32 v{RING + 3}, 0x3f803f80
    s_lshl_b32 s{S_TMP}, s{S_WAVE}, 8
    s_add_u32 s{S_TMP}, s{S_TMP}, {3 * XBUF}
    v_bfe_u32 v{vT0}, v{vL16}, 4, 5
    v_lshl_add_u32 v{vLDS}, v{vT0}, 2, s{S_TMP}
    v_lshrrev_b32 v{vT0}, 9, v{vL16}
    v_lshl_add_u32 v{vLDS + 1}, v{vT0}, 4, s{S_TMP}
    s_cmp_eq_u32 s{sK2}, 2
    s_cbranch_scc1 Lp_v
    """)
    for swap in (0, 1):
        nm = "LpV" if swap else "LpQ"
        if swap:
            a.label("Lp_v")
            a.restore(([], []))
        for t in range(36):
            w, o = vr(WB + 4 * t, 4), vr(RING, 4)
            a(MF32(ACC if swap else CS, o if swap else w, w if swap else o, "0" if t == 0 else None))
        if swap:
            a(f"v_mov_b32 v{vCS}, v{ACC}")

        def early():
            a(f"v_add_u32 v{vXA}, s{sBUF}, v{vL16}")
            a(f"v_add_u32 v{vT0}, s{sCSB}, v{vSTA}")
            for t in range(3):
                a(f"ds_read_b128 {vr(RING + 4 * t, 4)}, v{vXA} offset:{t * 1024}")
            for i in range(5):
                a(f"ds_read_b128 {vr(STR + 4 * i, 4)}, v{vT0} offset:{512 * i}")

        def compute(pre, dma, extra, mid, roll, swap=swap):
            early()
            sm = [None] * 3 + stats_math(STR, LN, LN + 1)
            if swap:
                sm += [f"ds_write2_b32 v{vLDS}, v{LN}, v{LN + 1} offset0:0 offset1:32"]
                sm += [f"ds_read_b128 {vr(LN + 4 * i, 4)}, v{vLDS + 1} offset:{(i >> 2) * 128 + (i & 3) * 32}" for i in range(8)]
                sm += [None] * 9 + [f"v_mul_f32 v{LN + 16 + i}, v{vCS}, v{LN + 16 + i}" for i in range(16)]
            else:
                sm += [f"v_mul_f32 v{TT + i}, v{LN + 1}, v{CS + i}" for i in range(16)]
            sm += [f"s_mul_i32 s{sO1}, s{sCL}, {3 * QKV_M}", f"s_lshl_b32 s{sK3}, s{sCS}, 18",
                   f"s_add_u32 s{sO1}, s{sO1}, s{sK3}", f"s_add_u32 s{sO1}, s{sO1}, s{sK4}"]
            gemm32(a, ACC, swap, vXA, [RING + 4 * i for i in range(4)], pre, dma, extra, mid, roll, fill=sm, issued=True)
            epi()

        def epi(swap=swap):
            for k in range(2):
                regs = [0, 1, 2, 3, 8, 9, 10, 11] if swap else list(range(8))
                regs = [r + (4 if swap else 8) * k for r in regs]
                for i in regs[::2]:
                    if swap:
                        a(f"v_pk_fma_f32 {vr(ACC + i, 2)}, {vr(ACC + i, 2)}, {vr(LN + i, 2)}, {vr(LN + 16 + i, 2)} neg_lo:[0,0,1] neg_hi:[0,0,1]")
                    else:
                        a(f"v_pk_fma_f32 {vr(ACC + i, 2)}, {vr(ACC + i, 2)}, {vr(LN, 2)}, {vr(TT + i, 2)} op_sel_hi:[1,0,1] neg_lo:[0,0,1] neg_hi:[0,0,1]")
                o = RING + 16 + 4 * k
                for i in range(4):
                    a(f"v_cvt_pk_bf16_f32 v{o + i}, v{ACC + regs[2 * i]}, v{ACC + regs[2 * i + 1]}")
                a(f"buffer_store_dwordx4 {vr(o, 4)}, v{vO}, {WS}, s{sO1} offen offset:{512 * k} sc1", tag="st")

        def out_flag():
            a(f"s_mul_i32 s{sPEND}, s{sCO}, {FL_STRIDE}")
            a(f"s_add_u32 s{sPEND}, s{sPEND}, s{sK1}")

        a(f"s_mov_b32 s{sSB}, {STB3}")
        a(f"s_mov_b32 s{sCSB}, 0x2000")
        staged_loop(a, nm, abort, done, WS_X + X_BYTES, 2 * X_BYTES, FL_XB,
                    lambda sr_: stats_dma(WS_ST + ST_BYTES, sr_), compute, out_flag, 2, vMB if swap else 78)


def role_awo(a, abort, done):
    lane_setup(a, 64)
    vXA, vSTO, vSEL, vA0, vRES = 9, 10, 11, 12, 14
    ACC, RING, RES, SS = 16, 32, 64, 72
    if AQLDW:
        a(f"s_cmp_lt_u32 s{S_ROLE}, 5")
        a("s_cbranch_scc1 Lawo_noord")
        dbg_wait(a, DB_LOADED, AQLDW, vT0, vT1, abort, "Lawo_ord", 64)
        a.label("Lawo_noord")
    srd(a, SRD_A, KA_WO, 576 * 1152)
    a(f"""
    s_cmp_ge_u32 s{S_ROLE}, 5
    s_cselect_b32 s{sLAYS}, 1, 0
    s_cselect_b32 s{S_TMP}, 5, 0
    s_sub_u32 s{S_ROLE}, s{S_ROLE}, s{S_TMP}
    s_lshl_b32 s{sK2}, s{S_ROLE}, 2
    s_add_u32 s{sK2}, s{sK2}, s{S_WAVE}
    s_min_u32 s{sK2}, s{sK2}, 17
    s_lshl_b32 s{sK1}, s{sK2}, 6
    v_bfe_u32 v{vSTO}, v{vL16}, 4, 5
    """)
    feat_of_row(a, vRES, vSTO, vT0)
    a(f"v_and_b32 v{vT0}, 1, v{vRES}")
    sel_of_parity(a, vSEL, vT0, vT1)
    a(f"""
    v_and_b32 v{vRES}, 30, v{vRES}
    v_lshlrev_b32 v{vRES}, 1, v{vRES}
    v_lshrrev_b32 v{vXA}, 9, v{vL16}
    v_mul_u32_u24 v{vT0}, {8 * 1152}, v{vXA}
    v_add_u32 v{vA0}, v{vT0}, v{vRES}
    v_add_u32 v{vA0 + 1}, 1152, v{vA0}
    """)
    load_cols(a, SRD_A, vA0, vSEL, [((18 * t + 2 * d) * 1152, WB + 4 * t + d) for t in range(32) for d in range(4)])
    a(f"""
    v_mul_u32_u24 v{vT0}, {72 * 1152}, v{vXA}
    v_add_u32 v{vA0}, v{vT0}, v{vRES}
    v_add_u32 v{vA0 + 1}, 1152, v{vA0}
    """)
    load_cols(a, SRD_A, vA0, vSEL, [((144 * t + 18 * d + 16) * 1152, WB + 128 + 4 * t + d) for t in range(4) for d in range(4)])
    a(f"""
    v_lshlrev_b32 v{vSTO}, 4, v{vSTO}
    v_lshl_add_u32 v{vRES}, v{vXA}, 9, v{vSTO}
    s_lshl_b32 s{S_TMP}, s{sK2}, 11
    v_add_u32 v{vRES}, s{S_TMP}, v{vRES}
    s_lshr_b32 s{S_TMP}, s{sK2}, 1
    s_lshl_b32 s{S_TMP}, s{S_TMP}, 9
    s_and_b32 s{S_TMP + 1}, s{sK2}, 1
    s_lshl_b32 s{S_TMP + 1}, s{S_TMP + 1}, 3
    s_add_u32 s{S_TMP}, s{S_TMP}, s{S_TMP + 1}
    v_add_u32 v{vSTO}, s{S_TMP}, v{vSTO}
    s_lshr_b32 s{sK1}, s{sK2}, 2
    s_lshl_b32 s{sK1}, s{sK1}, 7
    s_and_b32 s{S_TMP}, s{sK2}, 3
    s_lshl_b32 s{S_TMP}, s{S_TMP}, 2
    s_add_u32 s{sK1}, s{sK1}, s{S_TMP}
    s_add_u32 s{sK1}, s{sK1}, {WS_FLAGS + FL_XB}
    """)

    def res_loads(srd_):
        pre = [f"s_mul_i32 s{sO3}, s{sNL}, {2 * X_BYTES}", f"s_mul_i32 s{S_TMP + 1}, s{sNS}, {X_SEG}",
               f"s_add_u32 s{sO3}, s{sO3}, s{S_TMP + 1}", f"s_add_u32 s{sO3}, s{sO3}, {WS_X}"]
        ops = [[f"buffer_load_dwordx4 {vr(RES + 4 * k, 4)}, v{vRES}, {srd_}, s{sO3} offen offset:{1024 * k}"] for k in range(2)]
        ops[0] = pre + ops[0]
        return ops

    AOST = int(os.environ.get("AOST", "14"))
    AODEC = int(os.environ.get("AODEC", "32"))

    def compute(start, decide, vm):
        vm = list(vm)
        a(f"v_add_u32 v{vXA}, s{sBUF}, v{vL16}")
        nr = 8
        ring = [RING + 4 * i for i in range(nr)]

        def rd(t):
            return f"ds_read_b128 {vr(ring[t % nr], 4)}, v{vXA} offset:{t * 1024}"
        for t in range(nr - 1):
            a(rd(t))
        for i in range(8):
            a(f"v_lshlrev_b32 v{ACC + 2 * i}, 16, v{RES + i}")
            a(f"v_and_b32 v{ACC + 2 * i + 1}, 0xffff0000, v{RES + i}")
        fl = [f"s_mul_i32 s{sO1}, s{sCL}, {2 * X_BYTES}", f"s_mul_i32 s{sK3}, s{sCS}, {X_SEG}",
              f"s_add_u32 s{sO1}, s{sO1}, s{sK3}", f"s_add_u32 s{sO1}, s{sO1}, {WS_X + X_BYTES}",
              f"s_mul_i32 s{sK4}, s{sCL}, {2 * ST_BYTES}", f"s_mul_i32 s{sK3}, s{sCS}, {ST_SEG}",
              f"s_add_u32 s{sK4}, s{sK4}, s{sK3}", f"s_add_u32 s{sK4}, s{sK4}, {WS_ST + ST_BYTES}"]
        for t in range(36):
            a(MF32(ACC, vr(WB + 4 * t, 4), vr(ring[t % nr], 4), None))
            if t + nr - 1 < 36:
                a(rd(t + nr - 1))
            if fl:
                a(fl.pop(0))
            if t == AOST:
                start()
            if t == AODEC:
                decide()
            elif t > AODEC and vm:
                seq(a, vm.pop(0))
                if vm:
                    seq(a, vm.pop(0))
        seq(a, vm)
        for k in range(2):
            for i in range(4):
                a(f"v_cvt_pk_bf16_f32 v{RING + 4 * k + i}, v{ACC + 8 * k + 2 * i}, v{ACC + 8 * k + 2 * i + 1}")
            a(f"buffer_store_dwordx4 {vr(RING + 4 * k, 4)}, v{vRES}, {WS}, s{sO1} offen offset:{1024 * k} sc1")
        a(f"v_add_f32 v{SS}, v{ACC}, v{ACC + 1}")
        a(f"v_mul_f32 v{SS + 1}, v{ACC}, v{ACC}")
        a(f"v_fmac_f32 v{SS + 1}, v{ACC + 1}, v{ACC + 1}")
        for i in range(2, 16):
            a(f"v_add_f32 v{SS}, v{SS}, v{ACC + i}")
            a(f"v_fmac_f32 v{SS + 1}, v{ACC + i}, v{ACC + i}")
        seq(a, f"v_mov_b32 v{SS + 2}, v{SS}", f"v_mov_b32 v{SS + 3}, v{SS + 1}",
            f"v_permlane32_swap_b32 v{SS}, v{SS + 2}", f"v_permlane32_swap_b32 v{SS + 1}, v{SS + 3}",
            f"v_add_f32 v{SS}, v{SS}, v{SS + 2}", f"v_add_f32 v{SS + 1}, v{SS + 1}, v{SS + 3}",
            f"buffer_store_dwordx2 {vr(SS, 2)}, v{vSTO}, {WS}, s{sK4} offen sc1")

    def out_flag():
        a(f"s_mul_i32 s{sPEND}, s{sCO}, {FL_STRIDE}")
        a(f"s_add_u32 s{sPEND}, s{sPEND}, s{sK1}")

    seq_loop(a, "Lawo", abort, done, WS_OA, X_BYTES, FL_OA, res_loads, compute, out_flag, 3, sLAYS, slp=2, DBGW=11)


def role_aq(a, abort, done, nt=""):
    lane_setup(a, 48)
    vXA, vSTA, vLDS, vOUT = 9, 10, 11, 13
    ACC, CS, RING, STR = 16, 36, 56, 68
    LN, BI = 92, 72
    ST8 = 112
    QB, KC, VA, VB, SP, PP = 128, 132, 136, 140, 144, 68
    AQST = int(os.environ.get("AQST", "10"))
    AQDEC = int(os.environ.get("AQDEC", "22"))
    NR = int(os.environ.get("AQNR", "4"))
    RG = [RING, RING + 4, RING + 8, 104][:NR]
    vSRC = 111
    WV = 152

    def wreg(tile, t, i=None):
        n = (tile * 18 + t) * 4
        k, b = ("v", WV + n) if n < 104 else ("a", n - 104)
        return f"{k}[{b}:{b + 3}]" if i is None else f"{k}{b + i}"

    a(f"""
    s_lshr_b32 s{sLAYS}, s{S_ROLE}, 4
    s_and_b32 s{S_ROLE}, s{S_ROLE}, 15
    s_lshl_b32 s{sK2}, s{S_ROLE}, 1
    s_lshr_b32 s{S_TMP}, s{S_WAVE}, 1
    s_add_u32 s{sK2}, s{sK2}, s{S_TMP}
    s_and_b32 s{sK3}, s{S_WAVE}, 1
    s_mul_i32 s{sK1}, s{sK2}, 36
    """)
    if AQLDW:
        a(f"s_cmp_eq_u32 s{sLAYS}, 0")
        a("s_cbranch_scc1 Laq_noord")
        dbg_wait(a, DB_LOADED, AQLDW, vT0, vT1, abort, "Laq_ord", 64)
        a.label("Laq_noord")
    srd(a, SRD_A, KA_WQKV, 576 * 3456)
    A_ = f"s[{SRD_A}:{SRD_A + 3}]"
    SLOT, NSL = 10240, 10
    ZERO = NSL * SLOT
    GA3, TRM, TRE, MSK, TX, CR, CW = 16, 19, 20, 21, 22, 23, 28
    sLB, sHD = sO1, sO2
    for j in range(3):
        a(f"""
        v_lshrrev_b32 v24, 4, v{vL16}
        v_add_u32 v24, {64 * j}, v24
        v_mul_u32_u24 v25, {(65536 + 17) // 18}, v24
        v_lshrrev_b32 v25, 16, v25
        v_mul_u32_u24 v26, 18, v25
        v_sub_u32 v24, v24, v26
        v_mul_u32_u24 v{GA3 + j}, 3456, v25
        v_mul_u32_u24 v25, {(65536 + 2) // 3}, v24
        v_lshrrev_b32 v25, 16, v25
        v_mul_u32_u24 v26, 3, v25
        v_sub_u32 v24, v24, v26
        v_lshl_add_u32 v{GA3 + j}, v24, 4, v{GA3 + j}
        v_cmp_le_u32 vcc, 3, v25
        v_cndmask_b32 v26, 0, 1, vcc
        v_mul_u32_u24 v27, 3, v26
        v_sub_u32 v25, v25, v27
        v_mul_u32_u24 v25, 1152, v25
        v_mul_u32_u24 v26, 36, v26
        v_add3_u32 v{GA3 + j}, v{GA3 + j}, v25, v26
        """)
    a(f"""
    s_mul_i32 s{sK1}, s{S_ROLE}, 72
    s_mul_i32 s{S_TMP}, s{S_WAVE}, {8 * 3456}
    s_add_u32 s{sK1}, s{sK1}, s{S_TMP}
    s_mul_i32 s{sLB}, s{S_WAVE}, 2304
    s_lshr_b32 s{sHD}, s{S_WAVE}, 1
    v_lshrrev_b32 v{vT0}, 2, v{vC}
    v_lshl_add_u32 v{vT0}, v{vG}, 3, v{vT0}
    v_and_b32 v{vT1}, 3, v{vC}
    v_mul_u32_u24 v{TRM}, 288, v{vT0}
    v_lshl_add_u32 v{TRM}, v{vT1}, 3, v{TRM}
    s_mul_i32 s{S_TMP}, s{sHD}, 144
    v_add_u32 v{TRM}, s{S_TMP}, v{TRM}
    v_lshlrev_b32 v{TRE}, 3, v{vT0}
    s_lshl_b32 s{S_TMP + 1}, s{sHD}, 9
    s_add_u32 s{S_TMP + 1}, s{S_TMP + 1}, 9216
    v_add_u32 v{TRE}, s{S_TMP + 1}, v{TRE}
    v_mov_b32 v{TX}, {ZERO}
    v_cmp_eq_u32 vcc, 0, v{vT1}
    v_cndmask_b32 v{TRE}, v{TX}, v{TRE}, vcc
    v_cndmask_b32 v{MSK}, 0, -1, vcc
    v_bfe_u32 v{vT0}, v{vL16}, 4, 5
    v_mul_u32_u24 v{CR}, 288, v{vT0}
    v_add_u32 v{CR}, s{S_TMP}, v{CR}
    v_lshlrev_b32 v{CW}, 3, v{vT0}
    v_add_u32 v{CW}, s{S_TMP + 1}, v{CW}
    v_mov_b32 v24, 0
    v_mov_b32 v25, 0
    v_mov_b32 v26, 0
    v_mov_b32 v27, 0
    v_mov_b32 v33, 0
    v_mov_b32 v{TX}, {ZERO}
    v_lshl_add_u32 v{TX}, v{vC}, 4, v{TX}
    ds_write_b128 v{TX}, v[24:27]
    """)

    def wdma(t):
        base = (t % NSL) * SLOT
        a(f"s_add_u32 s{S_TMP}, s{sK1}, {32 * t * 3456}")
        for j in range(3):
            a(f"s_add_u32 m0, s{sLB}, {base + j * 1024}")
            a("s_mov_b64 exec, 0xffff" if j == 2 else "s_nop 0")
            a(f"buffer_load_dwordx4 v{GA3 + j}, {A_}, s{S_TMP} offen lds")
        a("s_mov_b64 exec, -1")

    def pair(tile, t, hh):
        n = (tile * 18 + t) * 4 + 2 * hh
        k, b = ("v", WV + n) if n < 104 else ("a", n - 104)
        return f"{k}[{b}:{b + 1}]"
    for t in range(NSL - 1):
        wdma(t)
    a.force_wait(lg=0)
    issued = NSL - 1
    for t in range(18):
        a.force_wait(vm=3 * (issued - t - 1))
        a("s_barrier")
        if issued < 18:
            wdma(issued)
            issued += 1
        base = (t % NSL) * SLOT
        a(f"v_add_u32 v34, {base}, v{CR}")
        a(f"v_add_u32 v35, {base}, v{TRM}")
        a(f"ds_read_b32 v30, v34 offset:32")
        a(f"ds_read_b32 v31, v34 offset:{48 + 32}")
        a(f"ds_read_b32 v32, v34 offset:{96 + 32}")
        for tile, m in ((0, 0), (1, 1), (3, 2)):
            for hh in range(2):
                a(f"ds_read_b64_tr_b16 {pair(tile, t, hh)}, v35 offset:{m * 48 + hh * 4 * 288}")
        a(f"v_add_u32 v{TX}, {base}, v{CW}")
        a(f"ds_write_b64 v{TX}, v[30:31]")
        a(f"ds_write_b64 v{TX}, v[32:33] offset:256")
        a.wait(lg=0)
        for tile, off in ((2, 0), (4, 256)):
            a(f"v_and_b32 v{TX}, {base + off}, v{MSK}")
            a(f"v_add_u32 v{TX}, v{TX}, v{TRE}")
            for hh in range(2):
                a(f"ds_read_b64_tr_b16 {pair(tile, t, hh)}, v{TX} offset:{hh * 32}")
        a.wait(lg=0)
    a.force_wait(vm=0, lg=0)
    a("s_barrier")
    for i in range(4):
        a(f"v_mov_b32 v{RING + i}, 0x3f803f80")
    for t in range(18):
        for tile in range(5):
            w, o = wreg(tile, t), vr(RING, 4)
            a(MF(CS + 4 * tile, o if tile >= 3 else w, w if tile >= 3 else o, "0" if t == 0 else None))
    NEG = hex(f32bits(-1e30))
    a(f"""
    v_lshlrev_b32 v{vSTA}, 5, v{vC}
    s_lshl_b32 s{S_TMP}, s{sK3}, 4
    v_add_u32 v{vSTA}, s{S_TMP}, v{vSTA}
    v_mul_u32_u24 v{vT1}, 1536, v{vG}
    v_add_u32 v{vSTA}, v{vSTA}, v{vT1}
    s_lshl_b32 s{S_TMP}, s{S_WAVE}, 7
    s_add_u32 s{S_TMP}, s{S_TMP}, {2 * XBUF}
    v_lshl_add_u32 v{vLDS}, v{vC}, 3, s{S_TMP}
    v_lshl_add_u32 v{vLDS + 1}, v{vG}, 5, s{S_TMP}
    v_lshlrev_b32 v{vOUT}, 5, v{vC}
    s_lshl_b32 s{S_TMP}, s{sK3}, 4
    v_add_u32 v{vOUT}, s{S_TMP}, v{vOUT}
    s_lshr_b32 s{S_TMP}, s{sK2}, 2
    s_add_u32 s{S_TMP}, s{S_TMP}, 64
    s_lshl_b32 s{S_TMP}, s{S_TMP}, 9
    s_and_b32 s{S_TMP + 1}, s{sK2}, 3
    s_lshl_b32 s{S_TMP + 1}, s{S_TMP + 1}, 2
    s_add_u32 s{S_TMP}, s{S_TMP}, s{S_TMP + 1}
    v_add_u32 v{vOUT + 1}, s{S_TMP}, v{vOUT}
    v_lshrrev_b32 v{vT0}, 1, v{vG}
    v_lshl_add_u32 v{vOUT}, v{vT0}, 9, v{vOUT}
    v_and_b32 v{vT0}, 1, v{vG}
    v_lshl_add_u32 v{vOUT}, v{vT0}, 3, v{vOUT}
    s_lshl_b32 s{S_TMP}, s{sK2}, 10
    v_add_u32 v{vOUT}, s{S_TMP}, v{vOUT}
    s_lshl_b32 s{sK1}, s{S_ROLE}, 7
    s_lshl_b32 s{S_TMP}, s{S_WAVE}, 2
    s_add_u32 s{sK1}, s{sK1}, s{S_TMP}
    s_add_u32 s{sK1}, s{sK1}, {WS_FLAGS + FL_OA}
    s_mov_b32 s{sK4}, {hex(f32bits(18 ** -0.5 * 1.4426950408889634))}
    v_mov_b32 v{vT1}, {NEG}
    """)
    for i in range(4):
        a(f"v_lshl_add_u32 v{vT0}, v{vG}, 2, {i}")
        a(f"v_sub_u32 v{vT0}, v{vT0}, v{vC}")
        a(f"v_cmp_le_i32 vcc, 9, v{vT0}")
        a(f"v_cndmask_b32 v{BI + i}, v{vT1}, v{vZERO}, vcc")
        a(f"v_add_u32 v{vT0}, 7, v{vT0}")
        a(f"v_cmp_ge_u32 vcc, 7, v{vT0}")
        a(f"v_cndmask_b32 v{BI + 4 + i}, v{vT1}, v{vZERO}, vcc")
    a(f"v_and_b32 v{vSRC}, 0x200, v{vL16}")
    a(f"v_lshl_add_u32 v{vSRC}, v{vC}, 5, v{vSRC}")
    a(f"v_and_b32 v{vT0}, 1, v{vG}")
    a(f"v_lshl_add_u32 v{vSRC}, v{vT0}, 4, v{vSRC}")
    for r in (ST8, VA, VB):
        for i in range(4):
            a(f"v_mov_b32 v{r + i}, 0")
    for i in range(4):
        a(f"v_mov_b32 v{ST8 + 4 + i}, 0x3f803f80")
    a(f"v_mov_b32 v{QB + 3}, 0")
    a(f"v_mov_b32 v{KC + 3}, 0")

    def st_loads(srd_):
        pre = [f"s_mul_i32 s{sO3}, s{sNL}, {2 * ST_BYTES}", f"s_mul_i32 s{S_TMP + 1}, s{sNS}, {ST_SEG}",
               f"s_add_u32 s{sO3}, s{sO3}, s{S_TMP + 1}", f"s_add_u32 s{sO3}, s{sO3}, {WS_ST}"]
        ops = [[f"buffer_load_dwordx4 {vr(STR + 12 + 4 * i, 4)}, v{vSTA}, {srd_}, s{sO3} offen offset:{512 * i}"] for i in range(3)]
        ops[0] = pre + ops[0]
        return ops

    def compute(start, decide, vm):
        vm = list(vm)
        S0 = STR + 12
        a(f"v_lshlrev_b32 v{vXA}, 9, v{vG}")
        a(f"v_lshl_add_u32 v{vXA}, v{vC}, 4, v{vXA}")
        a(f"s_lshl_b32 s{S_TMP}, s{sK3}, 8")
        a(f"s_add_u32 s{S_TMP}, s{S_TMP}, s{sBUF}")
        a(f"v_add_u32 v{vXA}, s{S_TMP}, v{vXA}")
        S1, S2 = S0, S0 + 1
        sm = [f"v_add_f32 v{S0 + j}, v{S0 + j}, v{S0 + 4 * i + j}" for i in (1, 2) for j in range(4)]
        sm += [f"v_add_f32 v{S1}, v{S1}, v{S0 + 2}", f"v_add_f32 v{S2}, v{S2}, v{S0 + 3}"]
        for sw in (32, 16):
            sm += [f"v_mov_b32 v{S0 + 2}, v{S1}", f"v_mov_b32 v{S0 + 3}, v{S2}",
                   f"v_permlane{sw}_swap_b32 v{S1}, v{S0 + 2}", f"v_permlane{sw}_swap_b32 v{S2}, v{S0 + 3}",
                   f"v_add_f32 v{S1}, v{S1}, v{S0 + 2}", f"v_add_f32 v{S2}, v{S2}, v{S0 + 3}"]
        sm += [f"v_mul_f32 v{S1}, {hex(f32bits(1.0 / 576))}, v{S1}", f"v_mul_f32 v{S2}, {hex(f32bits(1.0 / 576))}, v{S2}",
               f"v_fma_f32 v{S2}, -v{S1}, v{S1}, v{S2}", f"v_max_f32 v{S2}, 0, v{S2}",
               f"v_add_f32 v{S2}, {hex(f32bits(1e-5))}, v{S2}", f"v_rsq_f32 v{LN}, v{S2}",
               f"v_mul_f32 v{LN + 1}, v{S1}, v{LN}",
               f"ds_write_b64 v{vLDS}, {vr(LN, 2)}",
               f"ds_read_b128 {vr(LN + 4, 4)}, v{vLDS + 1}", f"ds_read_b128 {vr(LN + 8, 4)}, v{vLDS + 1} offset:16"]
        def rd(n):
            return f"ds_read_b128 {vr(RG[n % NR], 4)}, v{vXA} offset:{(n % 18) * 2048}"
        q0, k0, ex, v0, vx = [ACC + 4 * i for i in range(5)]
        KP = ST8
        MX, T1 = vT0, vT1
        LQ, OX, OY, ON = ACC, ACC + 4, ACC + 8, ST8 + 4

        def fold(tile):
            ops = []
            for i in range(4):
                r = ACC + 4 * tile + i
                rs, mr = (LN + 4 + 2 * i, LN + 5 + 2 * i) if tile >= 3 else (LN, LN + 1)
                ops += [f"v_mul_f32 v{LN + 2}, v{mr}, v{CS + 4 * tile + i}", f"v_fma_f32 v{r}, v{r}, v{rs}, -v{LN + 2}"]
            return ops
        post = fold(0) + fold(2) + fold(1) + [
            f"v_cvt_pk_bf16_f32 v{QB}, v{q0}, v{q0 + 1}", f"v_cvt_pk_bf16_f32 v{QB + 1}, v{q0 + 2}, v{q0 + 3}",
            f"v_cvt_pk_bf16_f32 v{QB + 2}, v{ex}, v{ex + 1}",
            f"v_cvt_pk_bf16_f32 v{KC}, v{k0}, v{k0 + 1}", f"v_cvt_pk_bf16_f32 v{KC + 1}, v{k0 + 2}, v{k0 + 3}",
            f"v_cvt_pk_bf16_f32 v{KC + 2}, v{ex + 2}, v{ex + 3}",
            [f"s_cmp_eq_u32 s{sCS}, 0", f"s_cselect_b32 s{sO1}, {NEG}, 0"],
            None, MF(SP, vr(KP, 4), vr(QB, 4), "0"), None, MF(SP + 4, vr(KC, 4), vr(QB, 4), "0"), None, None]
        post += [f"v_mov_b32 v{KP + i}, v{KC + i}" for i in range(3)] + [None] * 3
        post += [f"v_fma_f32 v{SP + i}, v{SP + i}, s{sK4}, v{BI + i}" for i in range(8)]
        post += [f"v_add_f32 v{SP + i}, s{sO1}, v{SP + i}" for i in range(4)]
        post += [f"v_max3_f32 v{MX}, v{SP}, v{SP + 1}, v{SP + 2}", f"v_max3_f32 v{MX}, v{MX}, v{SP + 3}, v{SP + 4}",
                 f"v_max3_f32 v{MX}, v{MX}, v{SP + 5}, v{SP + 6}", f"v_max_f32 v{MX}, v{MX}, v{SP + 7}",
                 f"v_mov_b32 v{T1}, v{MX}", None, f"v_permlane32_swap_b32 v{MX}, v{T1}", f"v_max_f32 v{MX}, v{MX}, v{T1}",
                 f"v_mov_b32 v{T1}, v{MX}", None, f"v_permlane16_swap_b32 v{MX}, v{T1}", f"v_max_f32 v{MX}, v{MX}, v{T1}"]
        post += [f"v_sub_f32 v{SP + i}, v{SP + i}, v{MX}" for i in range(8)]
        post += [f"v_exp_f32 v{SP + i}, v{SP + i}" for i in range(8)]
        post += [f"v_cvt_pk_bf16_f32 v{PP + i}, v{SP + 2 * i}, v{SP + 2 * i + 1}" for i in range(4)]
        post += [None, MF(LQ, vr(ON, 4), vr(PP, 4), "0"),
                 [f"s_mul_i32 s{sO1}, s{sCO}, {X_SEG}", f"s_add_u32 s{sO1}, s{sO1}, {WS_OA}"]]
        seq(a, [rd(i) for i in range(NR - 1)])
        if PROF == 3:
            prof_begin(a)
        for n in range(36):
            t = n % 18
            if PROF == 3 and n == 18:
                prof_end(a, 3); prof_begin(a)
            if n + NR - 1 < 36:
                a(rd(n + NR - 1))
            x = vr(RG[n % NR], 4)
            for tile in ((0, 1, 2) if n < 18 else (3, 4)):
                w = wreg(tile, t)
                a(MF(ACC + 4 * tile, x if tile >= 3 else w, w if tile >= 3 else x, "0" if t == 0 else None))
                if n < 18 and sm:
                    a(sm.pop(0))
                if n >= 19:
                    for _ in range(3 if n >= 30 else 2):
                        if post:
                            seq(a, post.pop(0))
            if n == AQST:
                start()
            if n == 17:
                assert not sm
            if n == AQDEC:
                decide()
            elif n > AQDEC and vm:
                seq(a, vm.pop(0))
        assert not vm
        if PROF == 3:
            prof_end(a, 4); prof_begin(a)
        seq(a, post, f"v_rcp_f32 v{T1}, v{LQ}", fold(3),
            f"v_cvt_pk_bf16_f32 v{VA + 2}, v{v0}, v{v0 + 1}", f"v_cvt_pk_bf16_f32 v{VA + 3}, v{v0 + 2}, v{v0 + 3}",
            fold(4)[:2], MF(OX, vr(VA, 4), vr(PP, 4), "0"), fold(4)[2:],
            f"v_cvt_pk_bf16_f32 v{VB + 2}, v{vx}, v{vx + 1}", f"v_cvt_pk_bf16_f32 v{VB + 3}, v{vx + 2}, v{vx + 3}",
            f"v_mov_b32 v{VA}, v{VA + 2}", f"v_mov_b32 v{VA + 1}, v{VA + 3}",
            MF(OY, vr(VB, 4), vr(PP, 4), "0"),
            [f"v_mul_f32 v{OX + i}, v{T1}, v{OX + i}" for i in range(4)],
            f"v_cvt_pk_bf16_f32 v{OX}, v{OX}, v{OX + 1}", f"v_cvt_pk_bf16_f32 v{OX + 1}, v{OX + 2}, v{OX + 3}",
            f"buffer_store_dwordx2 {vr(OX, 2)}, v{vOUT}, {WS}, s{sO1} offen sc1",
            f"v_mov_b32 v{VB}, v{VB + 2}", f"v_mov_b32 v{VB + 1}, v{VB + 3}",
            f"v_mul_f32 v{OY}, v{T1}, v{OY}", f"v_mul_f32 v{OY + 1}, v{T1}, v{OY + 1}",
            f"v_cvt_pk_bf16_f32 v{OY}, v{OY}, v{OY + 1}",
            "s_mov_b64 exec, 0xffff",
            f"buffer_store_dword v{OY}, v{vOUT + 1}, {WS}, s{sO1} offen sc1",
            "s_mov_b64 exec, -1")
        if PROF == 3:
            prof_end(a, 5)

    def out_flag():
        a(f"s_mul_i32 s{sPEND}, s{sCO}, {FL_STRIDE}")
        a(f"s_add_u32 s{sPEND}, s{sPEND}, s{sK1}")

    seq_loop(a, "Laq", abort, done, WS_X, 2 * X_BYTES, FL_XA, st_loads, compute, out_flag, 2, sLAYS, vsrc=vSRC, DBGW=9)


def seq_loop(a, name, abort, done, xbase, xlayer, flag_off, extra_loads, compute, out_flag, nst, laysel, prefetch=True,
             vsrc=None, pub2=None, slp=None, DBGW=None):
    slp = SLP if slp is None else slp

    def dma_ops(srd_):
        ops = []
        for i in range(9):
            pre = []
            if i % 4 == 0:
                pre = [f"s_add_u32 m0, s{sOB}, {i * 1024}", f"s_add_u32 s{sO2}, s{sNX}, {i * 1024}"]
            ops.append(pre + [f"buffer_load_dwordx4 v{vL16 if vsrc is None else vsrc}, {srd_}, s{sO2} offen offset:{(i % 4) * 1024} lds"])
        return ops

    def publish():
        a(f"s_cmp_lg_u32 s{sPEND}, 0")
        a("s_cselect_b64 exec, 1, 0")
        if pub2 is None:
            a(f"buffer_store_dword v{vONE}, v{vZERO}, {WS}, s{sPEND} offen sc1")
        else:
            a(f"buffer_store_dwordx2 {vr(pub2, 2)}, v{vZERO}, {WS}, s{sPEND} offen sc1")
        a("s_mov_b64 exec, -1")
        a(f"s_mov_b32 s{sPEND}, 0")

    a(f"""
    s_mov_b32 s{sNL}, s{laysel}
    s_mov_b32 s{sCL}, s{laysel}
    s_mov_b32 s{sNS}, 0
    s_lshl_b32 s{sNO}, s{laysel}, 6
    s_mul_i32 s{sWQ}, s{S_WAVE}, 9216
    s_mov_b32 s{sBUF}, {XBUF}
    s_mov_b32 s{sOB}, s{sWQ}
    s_mov_b32 s{sPEND}, 0
    s_mov_b32 s{SRD_C}, s{SRD_WS}
    s_mov_b32 s{SRD_C + 1}, s{SRD_WS + 1}
    s_mov_b32 s{SRD_C + 2}, 0
    s_mov_b32 s{SRD_C + 3}, 0x00020000
    s_mul_i32 s{sNX}, s{laysel}, {xlayer}
    s_add_u32 s{sNX}, s{sNX}, s{sWQ}
    s_add_u32 s{sNX}, s{sNX}, {xbase}
    s_mul_i32 s{sNFL}, s{sNO}, {FL_STRIDE}
    s_add_u32 s{sNFL}, s{sNFL}, {WS_FLAGS + flag_off}
    """)
    if DBGT == 2 and DBGW is not None:
        stamp_max(a, 5 + (DBGW - 9), vT0, vT1, (laysel, 0))
    dbg_wait(a, DB_POOL, N_POOL, vT0, vT1, abort, name + "_ini")
    if DBGT == 2 and DBGW is not None:
        stamp_max(a, 13, vT0, vT1, (laysel, 0))
    trace(a, vT0, vT1)
    a(f"s_branch {name}_poll")
    head = name + "_item"
    a.label(head)
    a.restore(([], []))
    a.force_wait(vm=nst)
    a.label(name + "_go")
    a("s_barrier")
    a(f"""
    s_xor_b32 s{sBUF}, s{sBUF}, {XBUF}
    s_xor_b32 s{sOB}, s{sOB}, {XBUF}
    s_xor_b32 s{sSB}, s{sSB}, 0x2000
    s_xor_b32 s{sCSB}, s{sCSB}, 0x2000
    s_mov_b32 s{sCS}, s{sNS}
    s_mov_b32 s{sCO}, s{sNO}
    s_add_u32 s{sNS}, s{sNS}, 1
    s_add_u32 s{sNO}, s{sNO}, 1
    s_add_u32 s{sNX}, s{sNX}, {X_SEG}
    s_add_u32 s{sNFL}, s{sNFL}, {FL_STRIDE}
    s_mov_b32 s{sDEC}, 0
    """)
    a.vmq = [(frozenset(), "st")] * nst

    def start():
        a.force_wait(vm=0)
        a(f"buffer_load_dword v{vFLV}, v{vFLA}, {WS}, s{sNFL} offen sc1")
        publish()

    def decide():
        a.force_wait(vm=1)
        a(f"v_cmp_eq_u32 vcc, 0, v{vFLV}")
        a("s_cmp_eq_u64 vcc, 0")
        a(f"s_cselect_b32 s{sDEC}, 1, 0")
        a(f"s_cmp_lt_u32 s{sNS}, {NSEG}")
        a(f"s_cselect_b32 s{sDEC}, s{sDEC}, 0")
        a(f"s_cmp_lg_u32 s{sDEC}, 0")
        a(f"s_cselect_b32 s{SRD_C + 2}, {WS_BYTES}, 0")

    if prefetch:
        compute(start, decide, dma_ops(PFS) + extra_loads(PFS))
    else:
        compute(None, None, [])
    out_flag()
    trace_at(a, sCO, vT0, vZERO)
    trace5(a, sCS, 2, vT0, vZERO)
    if DBGW is not None:
        stamp_max(a, DBGW, vT0, vT1, (sCO, 0))
    if TRACE == 1:
        a.force_wait(vm=0)
        trace(a, vT0, vT1)
        a.force_wait(vm=0)
    if prefetch:
        a(f"s_cmp_lg_u32 s{sDEC}, 0")
        a(f"s_cbranch_scc1 {head}")
    a(f"buffer_load_dword v{vFLV}, v{vFLA}, {WS}, s{sNFL} offen sc1")
    a.force_wait(vm=0)
    a(f"s_cmp_ge_u32 s{sNS}, {NSEG}")
    a(f"s_cbranch_scc1 {name}_fin")
    a(f"v_cmp_eq_u32 vcc, 0, v{vFLV}")
    a(f"s_cbranch_vccnz {name}_pub")
    seq(a, dma_ops(WS), extra_loads(WS))
    publish()
    trace5(a, sCS, 3, vT0, vZERO)
    a.force_wait(vm=1)
    a(f"s_branch {name}_go")
    a.label(name + "_fin")
    a.restore(([], []))
    publish()
    a(f"s_branch {done}")
    a.label(name + "_pub")
    a.restore(([], []))
    publish()
    trace5(a, sCS, 3, vT0, vZERO)
    a.label(name + "_poll")
    a.restore(([], []))
    a(f"s_mov_b32 s{S_SPIN}, 0")
    L = name + "_pl"
    a.label(L)
    a(f"buffer_load_dword v{vFLV}, v{vFLA}, {WS}, s{sNFL} offen sc1")
    spin_check(a, abort)
    a(f"v_cmp_eq_u32 vcc, 0, v{vFLV}")
    a(f"s_cbranch_vccz {L}d")
    if slp:
        a(f"s_sleep {slp}")
    a(f"s_branch {L}")
    a.label(L + "d")
    trace5(a, sNS, 0, vT0, vZERO)
    seq(a, dma_ops(WS), extra_loads(WS))
    a.force_wait(vm=0)
    trace5(a, sNS, 1, vT0, vZERO)
    a(f"s_branch {name}_go")
```

```python
from asmlib import *

KNAME = "interleave_layers__sliding_local_dilated__memory_aug_recurrent_mem_tr__prompt"
NSEG = 64
KA_X, KA_WQKV, KA_WO, KA_BX, KA_MEM0, KA_WQ, KA_WK, KA_WV, KA_BWO, KA_SEG, KA_OUT, KA_DBG, KA_WS = [8 * i for i in range(13)]

WS_BYTES = 268435456
WS_FLAGS = 8 * 0x5800
FL_STRIDE = 0x5800
FL_XA, FL_OA, FL_XB, FL_OF, FL_QKV = 0, 1536, 3584, 4224, 5376
WS_ZERO = 0x2F0000
FLAGS_BYTES = 0x2F8000
WS_DUMMY = 0x300000
WS_RING = 0x400000
RING_TEAM = 0x100000
PART_SLOT = 0x80000
import os
PART_H = int(os.environ.get("PARTH", "12288"))
MEMB_OFF = 0xF0000
MEMB_SLOT = 0x4000
WS_X = 0x600000
X_BYTES = 0x240000
X_SEG = 36864
WS_ST = WS_X + 4 * X_BYTES
ST_SEG = 12 * 32 * 16
ST_BYTES = NSEG * ST_SEG
WS_OA = WS_ST + 4 * ST_BYTES
WS_AW = WS_OA + 2 * X_BYTES
WS_KM = 0x1A00000
KM_UNIT = 4096
KM_D = 8
WS_QKV = WS_KM + 2 * NSEG * 32 * KM_UNIT
QKV_M = NSEG * 32 * 8192
WS_OF = WS_QKV + 6 * QKV_M
WS_END = WS_OF + 2 * QKV_M
assert WS_AW + 32 * 90 * 1024 <= WS_KM
assert WS_END <= WS_BYTES, WS_END

SPIN_MAX = int(os.environ.get("SPIN_MAX", "100000"))

S_KARG = 0
S_WG = 2
SRD_WS = 8
S_DBG = 12
S_WAVE = 14
S_ROLE = 15
S_SPIN = 16
S_TMP = 17
SRD_A = 20
SRD_B = 24
SRD_C = 28
S_FREE = 32


def srd(a, base, ka_off, nbytes):
    a(f"s_load_dwordx2 s[{base}:{base + 1}], s[0:1], {ka_off}")
    a(f"s_mov_b32 s{base + 2}, {nbytes}")
    a(f"s_mov_b32 s{base + 3}, 0x00020000")
    a.force_wait(lg=0)
    a(f"s_and_b32 s{base + 1}, s{base + 1}, 0xffff")


def spin_check(a, abort_label):
    a(f"s_add_u32 s{S_SPIN}, s{S_SPIN}, 1")
    a(f"s_cmp_gt_u32 s{S_SPIN}, {SPIN_MAX}")
    a(f"s_cbranch_scc1 {abort_label}")


TRACE = int(os.environ.get("TRACE", "0"))
WS_TRACE = WS_END


def trace_init(a):
    if TRACE:
        a(f"s_lshl_b32 s5, s3, 5")
        a(f"s_add_u32 s5, s5, s4")
        a(f"s_lshl_b32 s5, s5, 2")
        a(f"s_add_u32 s5, s5, s{S_WAVE}")
        a(f"s_lshl_b32 s5, s5, 10")
        a(f"s_add_u32 s5, s5, {WS_TRACE}")


def trace(a, v0, v1, light=False):
    if TRACE in (1, 3, 6) or (TRACE in (2, 4, 5) and light):
        a("s_memrealtime s[6:7]")
        a.force_wait(lg=0)
        a(f"v_mov_b32 v{v0}, s6")
        a(f"v_mov_b32 v{v1}, 0")
        a("s_mov_b64 exec, 1")
        a(f"buffer_store_dword v{v0}, v{v1}, s[{SRD_WS}:{SRD_WS + 3}], s5 offen")
        a("s_mov_b64 exec, -1")
        a("s_add_u32 s5, s5, 4")


PROF = int(os.environ.get("PROF", "0"))


def prof_begin(a):
    if PROF:
        a("s_memtime s[88:89]")
        a.force_wait(lg=0)


def prof_end(a, k):
    if PROF:
        a("s_memtime s[86:87]")
        a.force_wait(lg=0)
        a("s_sub_u32 s86, s86, s88")
        a(f"s_add_u32 s{90 + k}, s{90 + k}, s86")


def prof_init(a):
    if PROF:
        for k in range(8):
            a(f"s_mov_b32 s{90 + k}, 0")


def prof_dump(a, v0, v1):
    if PROF:
        a(f"s_lshl_b32 s5, s3, 5")
        a(f"s_add_u32 s5, s5, s4")
        a(f"s_lshl_b32 s5, s5, 2")
        a(f"s_add_u32 s5, s5, s{S_WAVE}")
        a(f"s_lshl_b32 s5, s5, 5")
        a(f"s_add_u32 s5, s5, {WS_TRACE}")
        for k in range(8):
            a(f"v_writelane_b32 v{v0}, s{90 + k}, {k}")
        a(f"v_mbcnt_lo_u32_b32 v{v1}, -1, 0")
        a(f"v_lshlrev_b32 v{v1}, 2, v{v1}")
        a("s_mov_b64 exec, 0xff")
        a(f"buffer_store_dword v{v0}, v{v1}, s[{SRD_WS}:{SRD_WS + 3}], s5 offen")
        a("s_mov_b64 exec, -1")


def wait_units(a, lab):
    a.label(lab)
    a("s_cmp_eq_u32 s6, 0")
    a(f"s_cbranch_scc1 {lab}_d")
    a("s_sleep 127")
    a("s_sub_u32 s6, s6, 1")
    a(f"s_branch {lab}")
    a.label(lab + "_d")


DB_TICKET = 0
DB_HOMELESS = 32
DB_ABORT = 60
DB_POOL = 160
DB_POOLA = 40
DB_LOADED = 48
ORDER = int(os.environ.get('ORDER', '0'))
DB_TEAM = 192
N_POOL = 123
SRD_DBG = 4


def dbg_add(a, off, v0, v1):
    a(f"v_mov_b32 v{v0}, {off}" if isinstance(off, int) else f"v_mov_b32 v{v0}, {off}")
    a(f"v_mov_b32 v{v1}, 1")
    a("s_mov_b64 exec, 1")
    a(f"global_atomic_add v{v0}, v{v1}, s[{S_DBG}:{S_DBG + 1}]")
    a("s_mov_b64 exec, -1")


def dbg_wait(a, off, target, v0, v1, abort, name, slp=8):
    a(f"s_cmp_lg_u32 s{S_WAVE}, 0")
    a(f"s_cbranch_scc1 {name}_d")
    a(f"v_mov_b32 v{v0}, {off}")
    a(f"s_mov_b32 s{S_SPIN}, 0")
    a.label(name)
    a(f"global_load_dword v{v1}, v{v0}, s[{S_DBG}:{S_DBG + 1}] sc1")
    spin_check(a, abort)
    a(f"v_cmp_gt_u32 vcc, {target}, v{v1}")
    a(f"s_cbranch_vccz {name}_d")
    a(f"s_sleep {slp}")
    a(f"s_branch {name}")
    a.label(name + "_d")
    a("s_barrier")


def trace_at(a, sidx, v0, vz):
    if TRACE == 4:
        a("s_memrealtime s[6:7]")
        a.force_wait(lg=0)
        a(f"s_lshl_b32 s7, s{sidx}, 2")
        a(f"s_add_u32 s7, s7, s5")
        a(f"v_mov_b32 v{v0}, s6")
        a("s_mov_b64 exec, 1")
        a(f"buffer_store_dword v{v0}, v{vz}, s[{SRD_WS}:{SRD_WS + 3}], s7 offen offset:12")
        a("s_mov_b64 exec, -1")


def trace5(a, sseg, k, v0, vz):
    if TRACE == 5:
        a("s_memrealtime s[6:7]")
        a.force_wait(lg=0)
        a(f"s_and_b32 s7, s{sseg}, 31")
        a(f"s_lshl_b32 s7, s7, 4")
        a(f"s_add_u32 s7, s7, s5")
        a(f"v_mov_b32 v{v0}, s6")
        a("s_mov_b64 exec, 1")
        a(f"buffer_store_dword v{v0}, v{vz}, s[{SRD_WS}:{SRD_WS + 3}], s7 offen offset:{16 + 4 * k}")
        a.vmq.pop()
        a("s_mov_b64 exec, -1")


DBGT = int(os.environ.get("DBGT", "0"))


def stamp_max(a, word, v0, v1, cond=None):
    if DBGT:
        L = a.newlabel("Lsm")
        if cond:
            a(f"s_cmp_lg_u32 s{cond[0]}, {cond[1]}")
            a(f"s_cbranch_scc1 {L}")
        sn = a.snap()
        a("s_memrealtime s[6:7]")
        a.force_wait(lg=0)
        a("s_sub_u32 s6, s6, s5")
        a(f"v_mov_b32 v{v0}, {word}" if isinstance(word, str) else f"v_mov_b32 v{v0}, {4 * word}")
        a(f"v_mov_b32 v{v1}, s6")
        a("s_mov_b64 exec, 1")
        a(f"global_atomic_umax v{v0}, v{v1}, s[{S_DBG}:{S_DBG + 1}]")
        a("s_mov_b64 exec, -1")
        a.restore(sn)
        a.label(L)


_MAPS = {0: {2: [("W", 24), ("P", 8)], 3: [("W", 12), ("P", 20)], 4: [("A", 16), ("O", 5), ("P", 11)],
             5: [("A", 16), ("O", 5), ("P", 11)], 6: [("T", 8), ("P", 23)], 7: [("T", 8), ("P", 23)]},
         1: {2: [("W", 12), ("P", 20)], 3: [("W", 12), ("P", 20)], 4: [("A", 16), ("O", 5), ("P", 11)],
             5: [("A", 16), ("O", 5), ("P", 11)], 6: [("T", 8), ("W", 12), ("P", 11)], 7: [("T", 8), ("P", 23)]},
         2: {2: [("P", 32)], 3: [("P", 32)], 4: [("A", 16), ("O", 5), ("P", 11)],
             5: [("A", 16), ("O", 5), ("P", 11)], 6: [("T", 8), ("W", 24)], 7: [("T", 8), ("W", 12), ("P", 10)]}}
ROLE_MAP = _MAPS[int(os.environ.get("RMAP", "2"))]
FASTH = int(os.environ.get("FASTH", "1")) and int(os.environ.get("RMAP", "2")) == 2


def class_pure(a, scls, sfast, v0, v1, abort, name):
    DBG = f"s[{S_DBG}:{S_DBG + 1}]"
    a(f"""
    v_mbcnt_lo_u32_b32 v{v0}, -1, 0
    v_mbcnt_hi_u32_b32 v{v0}, -1, v{v0}
    v_and_b32 v{v1}, 1, v{v0}
    v_lshlrev_b32 v{v1}, 7, v{v1}
    v_lshlrev_b32 v{v0}, 1, v{v0}
    v_and_or_b32 v{v0}, v{v0}, 12, v{v1}
    s_mov_b32 s{S_SPIN}, 0
    """)
    a.label(name)
    a(f"global_load_dword v{v1}, v{v0}, {DBG} sc1")
    spin_check(a, abort)
    a("s_mov_b32 s6, 0")
    for i in range(8):
        a(f"v_readlane_b32 s7, v{v1}, {i}")
        a(f"s_add_u32 s6, s6, s7")
    a(f"""
    v_readlane_b32 s7, v{v1}, s{scls}
    s_cmp_ge_u32 s7, 32
    s_cselect_b32 s{sfast}, {0 if os.environ.get('FAKEX') or os.environ.get('SLOW') or not FASTH else 1}, 0
    s_cselect_b32 s6, 256, s6
    s_cmp_lt_u32 s6, 256
    s_cbranch_scc1 {name}
    """)


def role_slots(ch):
    out = []
    for cls, lst in ROLE_MAP.items():
        t0 = 0
        for c, n in lst:
            if c == ch:
                out += [(cls, t0 + i) for i in range(n)]
            t0 += n
    return out
```

```python
from common import *
import struct, os

WS = f"s[{SRD_WS}:{SRD_WS + 3}]"
L0_AP = 16
L0_T = 16
SLP = int(os.environ.get("SLP", "4"))
AQLDW = int(os.environ.get("AQLDW", "1"))
EARLYF = int(os.environ.get("EARLYF", "0"))


def f32bits(x):
    return struct.unpack("<I", struct.pack("<f", x))[0]


sN0, sN1 = S_FREE, S_FREE + 1
sCL, sCS = S_FREE + 2, S_FREE + 3
sNL, sNS = S_FREE + 4, S_FREE + 5
sLEFT = S_FREE + 6
sPF = S_FREE + 7
sBUF = S_FREE + 8
sNX = S_FREE + 9
sNFL = S_FREE + 10
sPEND = S_FREE + 11
sSELX, sSELY = S_FREE + 12, S_FREE + 13
sO1, sO2, sO3 = S_FREE + 14, S_FREE + 15, S_FREE + 16
sK1, sK2, sK3, sK4 = S_FREE + 17, S_FREE + 18, S_FREE + 19, S_FREE + 20
sE = S_FREE + 22
sNO = S_FREE + 24
sCO = S_FREE + 25
sWQ = S_FREE + 26
sOB = S_FREE + 27
sF0, sF1, sDEC = S_FREE + 28, S_FREE + 29, S_FREE + 30
sLAYS = S_FREE + 31
sSB, sW1K = S_FREE + 34, S_FREE + 35
sX0, sX1 = S_FREE + 32, S_FREE + 33

vL16, vFLA, vFLV, vONE, vZERO, vT0, vT1, vC, vG = range(9)
XBUF = X_SEG


def seq(a, *items):
    for it in items:
        if isinstance(it, (list, tuple)):
            seq(a, *it)
        elif callable(it):
            it()
        elif it:
            a(it)


def MF(acc, A, B, C=None):
    return f"v_mfma_f32_16x16x32_bf16 {vr(acc, 4)}, {A}, {B}, {vr(acc, 4) if C is None else C}"


def lane_setup(a, nflags):
    a(f"""
    v_and_b32 v{vT0}, 63, v0
    v_lshlrev_b32 v{vL16}, 4, v{vT0}
    v_and_b32 v{vC}, 15, v{vT0}
    v_lshrrev_b32 v{vG}, 4, v{vT0}
    v_min_u32 v{vFLA}, {nflags - 1}, v{vT0}
    v_lshrrev_b32 v{vT1}, 2, v{vFLA}
    v_and_b32 v{vFLA}, 3, v{vFLA}
    v_lshlrev_b32 v{vFLA}, 2, v{vFLA}
    v_lshl_add_u32 v{vFLA}, v{vT1}, 7, v{vFLA}
    v_mov_b32 v{vONE}, 1
    v_mov_b32 v{vZERO}, 0
    s_mov_b32 s{sSELX}, 0x05040100
    s_mov_b32 s{sSELY}, 0x07060302
    """)


def pick_next(a, step, l0):
    a(f"""
    s_add_u32 s{S_TMP}, s{sN1}, {l0}
    s_min_u32 s{S_TMP}, s{S_TMP}, {NSEG}
    s_cmp_lt_u32 s{sN0}, s{S_TMP}
    s_cselect_b32 s{sNL}, 0, 1
    s_cselect_b32 s{sNS}, s{sN0}, s{sN1}
    s_cselect_b32 s{S_TMP}, {step}, 0
    s_cselect_b32 s{S_TMP + 1}, 0, {step}
    s_add_u32 s{sN0}, s{sN0}, s{S_TMP}
    s_add_u32 s{sN1}, s{sN1}, s{S_TMP + 1}
    s_lshl_b32 s{sNO}, s{sNL}, 6
    s_add_u32 s{sNO}, s{sNO}, s{sNS}
    """)


def flag_out(a, sreg):
    a("s_mov_b64 exec, 1")
    a(f"buffer_store_dword v{vONE}, v{vZERO}, {WS}, s{sreg} offen sc1")
    a("s_mov_b64 exec, -1")


def flag_block(a, name, abort):
    L = a.newlabel(name)
    a(f"s_mov_b32 s{S_SPIN}, 0")
    a.label(L)
    a(f"buffer_load_dword v{vFLV}, v{vFLA}, {WS}, s{sNFL} offen sc1")
    spin_check(a, abort)
    a(f"v_cmp_eq_u32 vcc, 0, v{vFLV}")
    Ld = a.newlabel(name + "d")
    a(f"s_cbranch_vccz {Ld}")
    a(f"s_sleep {SLP}")
    a(f"s_branch {L}")
    a.label(Ld)


PFS = f"s[{SRD_C}:{SRD_C + 3}]"


STB3 = 0x1C000
sCSB = S_FREE + 39
P3 = int(os.environ.get('P3', '0'))
MBOX = 2 * XBUF + 1024
vFL1 = 15


def cand_addr(a, flag_off):
    a(f"""
    s_mul_i32 s{sF0}, s{sN0}, {FL_STRIDE}
    s_add_u32 s{sF0}, s{sF0}, {WS_FLAGS + flag_off}
    s_cmp_lt_u32 s{sN0}, {NSEG}
    s_cselect_b32 s{sF0}, s{sF0}, {WS_ZERO}
    s_mul_i32 s{sF1}, s{sN1}, {FL_STRIDE}
    s_add_u32 s{sF1}, s{sF1}, {WS_FLAGS + flag_off + NSEG * FL_STRIDE}
    s_cmp_lt_u32 s{sN1}, {NSEG}
    s_cselect_b32 s{sF1}, s{sF1}, {WS_ZERO}
    """)


def sample2(a):
    a(f"buffer_load_dword v{vFLV}, v{vFLA}, {WS}, s{sF0} offen sc1")
    a(f"buffer_load_dword v{vFL1}, v{vFLA}, {WS}, s{sF1} offen sc1")


def decide(a, prio=1):
    a(f"v_cmp_eq_u32 vcc, 0, v{vFLV}")
    a(f"v_cmp_eq_u32 s[{sE}:{sE + 1}], 0, v{vFL1}")
    m = ["vcc", f"s[{sE}:{sE + 1}]"]
    a(f"s_cmp_eq_u64 {m[1 - prio]}, 0")
    a(f"s_cselect_b32 s{sDEC}, {2 - prio}, 0")
    a(f"s_cmp_eq_u64 {m[prio]}, 0")
    a(f"s_cselect_b32 s{sDEC}, {1 + prio}, s{sDEC}")


def take(dec, step, step1=None):
    return [f"s_cmp_eq_u32 s{dec}, 2",
            f"s_cselect_b32 s{sNL}, 1, 0",
            f"s_cselect_b32 s{sNS}, s{sN1}, s{sN0}",
            f"s_cselect_b32 s{S_TMP}, {step if step1 is None else step1}, 0",
            f"s_add_u32 s{sN1}, s{sN1}, s{S_TMP}",
            f"s_cmp_eq_u32 s{dec}, 1",
            f"s_cselect_b32 s{S_TMP}, {step}, 0",
            f"s_add_u32 s{sN0}, s{sN0}, s{S_TMP}",
            f"s_lshl_b32 s{sNO}, s{sNL}, 6",
            f"s_add_u32 s{sNO}, s{sNO}, s{sNS}"]


def poll2(a, name, abort, flag_off, prio=1):
    cand_addr(a, flag_off)
    L = a.newlabel(name)
    a(f"s_mov_b32 s{S_SPIN}, 0")
    a.label(L)
    sample2(a)
    spin_check(a, abort)
    decide(a, prio)
    a(f"s_cmp_lg_u32 s{sDEC}, 0")
    a(f"s_cbranch_scc1 {L}d")
    a(f"s_sleep {SLP}")
    a(f"s_branch {L}")
    a.label(L + "d")


def staged_loop(a, name, abort, done, xbase, xlayer, flag_off, extra_loads, compute, out_flag, nst, vMB, laysel=None, waited=False, epi=None, early=None, vsrc=None, pub2=None):
    crit = [f"s_cmp_eq_u32 s{sDEC}, 2", f"s_cselect_b32 s{sNX}, s{sX1}, s{sX0}",
            f"s_cmp_lg_u32 s{sDEC}, 0", f"s_cselect_b32 s{SRD_C + 2}, {WS_BYTES}, 0"]
    adv_x = [f"s_cmp_eq_u32 s{sDEC}, 2", f"s_cselect_b32 s{S_TMP}, {X_SEG}, 0", f"s_add_u32 s{sX1}, s{sX1}, s{S_TMP}",
             f"s_cmp_eq_u32 s{sDEC}, 1", f"s_cselect_b32 s{S_TMP}, {X_SEG}, 0", f"s_add_u32 s{sX0}, s{sX0}, s{S_TMP}"]

    def dma_ops(srd_):
        ops = []
        for i in range(9):
            pre = []
            if i % 4 == 0:
                pre = [f"s_add_u32 m0, s{sOB}, {i * 1024}", f"s_add_u32 s{sO2}, s{sNX}, {i * 1024}"]
            ops.append(pre + [f"buffer_load_dwordx4 v{vL16 if vsrc is None else vsrc}, {srd_}, s{sO2} offen offset:{(i % 4) * 1024} lds"])
        return ops

    def post():
        a(f"v_mov_b32 v{vT0}, s{sDEC}")
        a(f"ds_write_b32 v{vMB}, v{vT0}")
        a.wait(lg=0)

    def publish():
        a(f"s_cmp_lg_u32 s{sPEND}, 0")
        a("s_cselect_b64 exec, 1, 0")
        if pub2 is None:
            a(f"buffer_store_dword v{vONE}, v{vZERO}, {WS}, s{sPEND} offen sc1")
        else:
            a(f"buffer_store_dwordx2 {vr(pub2, 2)}, v{vZERO}, {WS}, s{sPEND} offen sc1")
        a("s_mov_b64 exec, -1")
        a(f"s_mov_b32 s{sPEND}, 0")

    def cur_from_next():
        a(f"s_mov_b32 s{sCL}, s{sNL}")
        a(f"s_mov_b32 s{sCS}, s{sNS}")
        a(f"s_mov_b32 s{sCO}, s{sNO}")

    def roll():
        Ls = a.newlabel(name + "_ns")
        a(f"s_cmp_lg_u32 s{S_WAVE}, 0")
        a(f"s_cbranch_scc1 {Ls}")
        sn = a.snap()
        cand_addr(a, flag_off)
        sample2(a)
        a.restore(sn)
        a.label(Ls)

    a(f"""
    s_mov_b32 s{sN0}, 0
    s_mov_b32 s{sN1}, 0
    s_mov_b32 s{sLEFT}, {2 * NSEG}
    s_mul_i32 s{sWQ}, s{S_WAVE}, 9216
    s_mov_b32 s{sBUF}, {XBUF}
    s_mov_b32 s{sOB}, s{sWQ}
    s_mov_b32 s{sPEND}, 0
    s_mov_b32 s{SRD_C}, s{SRD_WS}
    s_mov_b32 s{SRD_C + 1}, s{SRD_WS + 1}
    s_mov_b32 s{SRD_C + 2}, 0
    s_mov_b32 s{SRD_C + 3}, 0x00020000
    v_mov_b32 v{vMB}, {MBOX}
    s_add_u32 s{sX0}, s{sWQ}, {xbase}
    s_add_u32 s{sX1}, s{sWQ}, {xbase + xlayer}
    """)
    if laysel is not None:
        a(f"s_cmp_eq_u32 s{laysel}, 0")
        a(f"s_cselect_b32 s{sN0}, 0, {NSEG}")
        a(f"s_cselect_b32 s{sN1}, {NSEG}, 0")
        a(f"s_mov_b32 s{sLEFT}, {NSEG}")
    a(f"ds_write2_b32 v{vMB}, v{vZERO}, v{vZERO} offset0:0 offset1:1")
    a.wait(lg=0)
    if not waited:
        dbg_wait(a, DB_POOL, N_POOL, vT0, vT1, abort, name + "_ini")
    trace(a, vT0, vT1)
    prof_init(a)
    a(f"s_branch {name}_idle0")
    head = name + "_item"
    a.label(head)
    a.restore(([], []))
    prof_begin(a)
    a.force_wait(vm=nst)
    if EARLYF and (laysel is not None or EARLYF > 1):
        a(f"s_cmp_lt_u32 s{sPEND}, {NSEG * FL_STRIDE}")
        a(f"s_cbranch_scc1 {name}_defer")
        a.force_wait(vm=0)
        publish()
    a.label(name + "_defer")
    prof_end(a, 0)
    a(f"s_cmp_lg_u32 s{S_WAVE}, 0")
    a(f"s_cbranch_scc1 {name}_nw0")
    decide(a)
    post()
    a.label(name + "_nw0")
    prof_begin(a)
    a("s_barrier")
    prof_end(a, 1)
    a(f"ds_read_b32 v{vT1}, v{vMB}")
    a(f"""
    v_xor_b32 v{vMB}, 4, v{vMB}
    s_xor_b32 s{sBUF}, s{sBUF}, {XBUF}
    s_xor_b32 s{sOB}, s{sOB}, {XBUF}
    s_xor_b32 s{sSB}, s{sSB}, 0x2000
    s_xor_b32 s{sCSB}, s{sCSB}, 0x2000
    s_sub_u32 s{sLEFT}, s{sLEFT}, 1
    """)
    if epi:
        early()
        a(f"s_cmp_eq_u32 s{sPEND}, 0")
        a(f"s_cbranch_scc1 {name}_noepi")
        lg = list(a.lgq)
        epi()
        assert a.lgq == lg or not a.lgq
        a.lgq = lg
        a.label(name + "_noepi")
    a.vmq = [(frozenset(), "st")] * nst
    ex = extra_loads(PFS)
    tk = take(sDEC, 1)
    pre = ([f"v_readfirstlane_b32 s{sDEC}, v{vT1}"] + crit, [tk[:5], tk[5:], ex[0][:-1], adv_x[:3], adv_x[3:]] if os.environ.get('BSPLIT', '1') == '1' else [tk, ex[0][:-1], adv_x, [], []])
    ex[0] = ex[0][-1:]

    def mid():
        prof_begin(a) if PROF == 1 else None
        a.wait_tag("st")
        prof_end(a, 2) if PROF == 1 else None
        publish()

    compute(pre, dma_ops(PFS), ex, mid, roll)
    out_flag()
    trace_at(a, sCO, vT0, vZERO)
    if name.startswith("Lp"):
        stamp_max(a, 9, vT0, vT1, (sCO, 1)) if DBGT == 2 else None
    cur_from_next()
    if TRACE == 1:
        a.force_wait(vm=0)
        trace(a, vT0, vT1)
        a.force_wait(vm=0)
    a(f"s_min_u32 s{sDEC}, s{sDEC}, s{sLEFT}")
    a(f"s_cmp_lg_u32 s{sDEC}, 0")
    a(f"s_cbranch_scc1 {head}")
    roll()
    a.force_wait(vm=0)
    publish()
    a(f"s_cmp_eq_u32 s{sLEFT}, 0")
    a(f"s_cbranch_scc1 {name}_end")
    a(f"s_cmp_lg_u32 s{S_WAVE}, 0")
    a(f"s_cbranch_scc1 {name}_nw1")
    decide(a)
    a(f"s_cmp_lg_u32 s{sDEC}, 0")
    a(f"s_cbranch_scc1 {name}_got")
    a.label(name + "_idle0")
    a.restore(([], []))
    a(f"s_cmp_lg_u32 s{S_WAVE}, 0")
    a(f"s_cbranch_scc1 {name}_nw1")
    poll2(a, name + "_pl", abort, flag_off)
    a.label(name + "_got")
    post()
    a.label(name + "_nw1")
    a("s_barrier")
    a(f"ds_read_b32 v{vT1}, v{vMB}")
    a(f"v_xor_b32 v{vMB}, 4, v{vMB}")
    a(f"v_readfirstlane_b32 s{sDEC}, v{vT1}")
    a(f"s_cmp_eq_u32 s{sDEC}, 0")
    a(f"s_cbranch_scc1 {abort}")
    seq(a, crit, take(sDEC, 1), adv_x, dma_ops(WS), extra_loads(WS))
    cur_from_next()
    roll()
    a.force_wait(vm=0)
    if PROF:
        a("s_add_u32 s96, s96, 1000")
    a(f"s_branch {head}")
    a.label(name + "_end")
    prof_dump(a, vT0, vT1)
    a(f"s_branch {done}")


WB = 112


def MF32(acc, A, B, C=None):
    return f"v_mfma_f32_32x32x16_bf16 {vr(acc, 16)}, {A}, {B}, {vr(acc, 16) if C is None else C}"


def load_cols(a, srdb, vad, vsel, items, nt=os.environ.get("NT_P", "")):
    D = 28
    n = len(items)
    for i in range(n + D):
        if i < n:
            r = 16 + 2 * (i % 48)
            a(f"s_add_u32 s{S_TMP}, s{sK1}, {items[i][0]}")
            a(f"buffer_load_dword v{r}, v{vad}, s[{srdb}:{srdb + 3}], s{S_TMP} offen {nt}")
            a(f"buffer_load_dword v{r + 1}, v{vad + 1}, s[{srdb}:{srdb + 3}], s{S_TMP} offen {nt}")
        j = i - D
        if j >= 0:
            r = 16 + 2 * (j % 48)
            a(f"v_perm_b32 v{items[j][1]}, v{r + 1}, v{r}, v{vsel}")


def feat_of_row(a, dst, row, t1):
    a(f"""
    v_and_b32 v{dst}, 19, v{row}
    v_bfe_u32 v{t1}, v{row}, 2, 1
    v_lshl_add_u32 v{dst}, v{t1}, 3, v{dst}
    v_bfe_u32 v{t1}, v{row}, 3, 1
    v_lshl_add_u32 v{dst}, v{t1}, 2, v{dst}
    """)


def sel_of_parity(a, vsel, par, t1):
    a(f"""
    v_mov_b32 v{vsel}, s{sSELX}
    v_mov_b32 v{t1}, s{sSELY}
    v_cmp_eq_u32 vcc, 1, v{par}
    v_cndmask_b32 v{vsel}, v{vsel}, v{t1}, vcc
    """)


def gemm32(a, acc, swap, vXA, ring, pre, dma, extra, mid, roll, init=None, fill=None, issued=False):
    nr = len(ring)

    def rd(t):
        return f"ds_read_b128 {vr(ring[t % nr], 4)}, v{vXA} offset:{t * 1024}"
    if PROF == 2:
        a("s_memtime s[84:85]")
    if not issued:
        for t in range(nr - 1):
            a(rd(t))
    fill = list(fill or [])
    crit, blocks = pre
    blocks = list(blocks)
    vm = list(dma) + list(extra)
    for t in range(36):
        x, w = vr(ring[t % nr], 4), vr(WB + 4 * t, 4)
        a(MF32(acc, x if swap else w, w if swap else x, "0" if (t == 0 and not init) else None))
        if t + nr - 1 < 36:
            a(rd(t + nr - 1))
        k = 3 if t < 16 else 4
        if t == 1:
            seq(a, crit); k = 0
        elif t >= 2 and t % 2 == 1 and blocks:
            k = min(3, 5 - len(blocks[0]))
            seq(a, blocks.pop(0))
        elif t >= 2 and vm and (len(vm) > len(extra) or len(blocks) <= 2):
            assert len(vm) > len(extra) or len(blocks) <= 2
            seq(a, vm.pop(0)); k -= 2
        while fill and k > 0:
            seq(a, fill.pop(0)); k -= 1
        if t == 10:
            mid()
        if t == 16:
            roll()
    assert not vm and not fill and not blocks
    if PROF == 2:
        a("s_memtime s[86:87]")
        a.force_wait(lg=0)
        a("s_sub_u32 s86, s86, s84")
        a("s_add_u32 s97, s97, s86")


VMDENSE = int(os.environ.get("VMDENSE", "1"))
STB = 0x14000


def stats_dma(base, srd_):
    pre = [f"s_mul_i32 s{sO3}, s{sNL}, {2 * ST_BYTES}", f"s_mul_i32 s{S_TMP + 1}, s{sNS}, {ST_SEG}",
           f"s_add_u32 s{sO3}, s{sO3}, s{S_TMP + 1}", f"s_add_u32 s{sO3}, s{sO3}, {base + 4096}"]
    return [pre + [[f"s_add_u32 m0, s{sSB}, 4096", f"s_nop 0",
                    f"buffer_load_dwordx4 v{vL16}, {srd_}, s{sO3} offen lds"]],
            [f"s_add_u32 m0, s{sSB}, s{sW1K}", f"s_sub_u32 s{sO3}, s{sO3}, 4096", f"s_add_u32 s{sO3}, s{sO3}, s{sW1K}",
             f"buffer_load_dwordx4 v{vL16}, {srd_}, s{sO3} offen lds"]]


def stats_loads(base, STR, vaddr, srd_):
    pre = [f"s_mul_i32 s{sO3}, s{sNL}, {2 * ST_BYTES}", f"s_mul_i32 s{S_TMP + 1}, s{sNS}, {ST_SEG}",
           f"s_add_u32 s{sO3}, s{sO3}, s{S_TMP + 1}", f"s_add_u32 s{sO3}, s{sO3}, {base}"]
    ops = [[f"buffer_load_dwordx4 {vr(STR + 4 * i, 4)}, v{vaddr}, {srd_}, s{sO3} offen offset:{512 * i}"] for i in range(6)]
    ops[0] = pre + ops[0]
    return ops


def stats_math(STR, RS, MR):
    ops = []
    for i in range(1, 5):
        ops += [f"v_add_f32 v{STR + j}, v{STR + j}, v{STR + 4 * i + j}" for j in range(4)]
    S1, S2 = STR, STR + 1
    ops += [f"v_add_f32 v{S1}, v{S1}, v{STR + 2}", f"v_add_f32 v{S2}, v{S2}, v{STR + 3}",
            f"v_mov_b32 v{STR + 2}, v{S1}", f"v_mov_b32 v{STR + 3}, v{S2}",
            f"v_permlane32_swap_b32 v{S1}, v{STR + 2}", f"v_permlane32_swap_b32 v{S2}, v{STR + 3}",
            f"v_add_f32 v{S1}, v{S1}, v{STR + 2}", f"v_add_f32 v{S2}, v{S2}, v{STR + 3}",
            f"v_mul_f32 v{S1}, {hex(f32bits(1.0 / 576))}, v{S1}",
            f"v_mul_f32 v{S2}, {hex(f32bits(1.0 / 576))}, v{S2}",
            f"v_fma_f32 v{S2}, -v{S1}, v{S1}, v{S2}",
            f"v_max_f32 v{S2}, 0, v{S2}",
            f"v_add_f32 v{S2}, {hex(f32bits(1e-5))}, v{S2}",
            f"v_rsq_f32 v{RS}, v{S2}",
            f"v_mul_f32 v{MR}, v{S1}, v{RS}"]
    return ops


def role_p(a, abort, done):
    lane_setup(a, 18)
    vXA, vSTA, vCS, vA0, vLDS, vO = 9, 10, 11, 12, 12, 14
    vMB = 108
    ACC, RING, STR, LN = 16, 32, 56, 76
    TT = 96
    CS = 80
    a(f"""
    s_lshr_b32 s{sK2}, s{S_ROLE}, 5
    s_and_b32 s{sK3}, s{S_ROLE}, 31
    s_lshl_b32 s{S_TMP}, s{sK2}, 3
    s_add_u32 s{S_TMP}, s{S_TMP}, {KA_WQ}
    s_load_dwordx2 s[{SRD_A}:{SRD_A + 1}], s[0:1], s{S_TMP}
    s_mov_b32 s{SRD_A + 2}, {576 * 8192}
    s_mov_b32 s{SRD_A + 3}, 0x00020000
    s_lshl_b32 s{sK1}, s{sK3}, 8
    s_lshl_b32 s{S_TMP}, s{S_WAVE}, 6
    s_add_u32 s{sK1}, s{sK1}, s{S_TMP}
    v_bfe_u32 v{vSTA}, v{vL16}, 4, 5
    """)
    feat_of_row(a, vO, vSTA, vT0)
    a(f"""
    v_bfe_u32 v{vT0}, v{vL16}, 8, 1
    v_lshl_add_u32 v{vT1}, v{vC}, 1, v{vT0}
    s_cmp_eq_u32 s{sK2}, 2
    s_cselect_b64 vcc, -1, 0
    v_cndmask_b32 v{vO}, v{vO}, v{vT1}, vcc
    v_and_b32 v{vT0}, 1, v{vO}
    """)
    sel_of_parity(a, vCS, vT0, vT1)
    a(f"""
    v_and_b32 v{vO}, 30, v{vO}
    v_lshrrev_b32 v{vT0}, 9, v{vL16}
    v_lshlrev_b32 v{vA0}, 16, v{vT0}
    v_lshl_add_u32 v{vA0}, v{vO}, 1, v{vA0}
    v_add_u32 v{vA0 + 1}, 8192, v{vA0}
    v_lshlrev_b32 v{vSTA}, 4, v{vSTA}
    v_mul_u32_u24 v{vT1}, 2560, v{vT0}
    v_add_u32 v{vSTA}, v{vSTA}, v{vT1}
    v_add_u32 v{vSTA}, {STB3}, v{vSTA}
    s_lshl_b32 s{sW1K}, s{S_WAVE}, 10
    v_bfe_u32 v{vT1}, v{vL16}, 8, 1
    v_lshlrev_b32 v{vO}, 10, v{vT1}
    v_lshl_add_u32 v{vO}, v{vC}, 4, v{vO}
    v_lshl_add_u32 v{vO}, v{vT0}, 8, v{vO}
    """)
    a.force_wait(lg=0)
    a(f"s_and_b32 s{SRD_A + 1}, s{SRD_A + 1}, 0xffff")
    load_cols(a, SRD_A, vA0, vCS, [((16 * t + 2 * d) * 8192, WB + 4 * t + d) for t in range(36) for d in range(4)])
    a(f"""
    s_mul_i32 s{sK4}, s{sK2}, {QKV_M}
    s_lshl_b32 s{S_TMP}, s{sK3}, 13
    s_add_u32 s{sK4}, s{sK4}, s{S_TMP}
    s_lshl_b32 s{S_TMP}, s{S_WAVE}, 11
    s_add_u32 s{sK4}, s{sK4}, s{S_TMP}
    s_add_u32 s{sK4}, s{sK4}, {WS_QKV}
    s_lshl_b32 s{sK1}, s{sK3}, 9
    s_lshl_b32 s{S_TMP}, s{sK2}, 7
    s_add_u32 s{sK1}, s{sK1}, s{S_TMP}
    s_lshl_b32 s{S_TMP}, s{S_WAVE}, 2
    s_add_u32 s{sK1}, s{sK1}, s{S_TMP}
    s_add_u32 s{sK1}, s{sK1}, {WS_FLAGS + FL_QKV}
    v_mov_b32 v{RING}, 0x3f803f80
    v_mov_b32 v{RING + 1}, 0x3f803f80
    v_mov_b32 v{RING + 2}, 0x3f803f80
    v_mov_b32 v{RING + 3}, 0x3f803f80
    s_lshl_b32 s{S_TMP}, s{S_WAVE}, 8
    s_add_u32 s{S_TMP}, s{S_TMP}, {3 * XBUF}
    v_bfe_u32 v{vT0}, v{vL16}, 4, 5
    v_lshl_add_u32 v{vLDS}, v{vT0}, 2, s{S_TMP}
    v_lshrrev_b32 v{vT0}, 9, v{vL16}
    v_lshl_add_u32 v{vLDS + 1}, v{vT0}, 4, s{S_TMP}
    s_cmp_eq_u32 s{sK2}, 2
    s_cbranch_scc1 Lp_v
    """)
    for swap in (0, 1):
        nm = "LpV" if swap else "LpQ"
        if swap:
            a.label("Lp_v")
            a.restore(([], []))
        for t in range(36):
            w, o = vr(WB + 4 * t, 4), vr(RING, 4)
            a(MF32(ACC if swap else CS, o if swap else w, w if swap else o, "0" if t == 0 else None))
        if swap:
            a(f"v_mov_b32 v{vCS}, v{ACC}")

        def early():
            a(f"v_add_u32 v{vXA}, s{sBUF}, v{vL16}")
            a(f"v_add_u32 v{vT0}, s{sCSB}, v{vSTA}")
            for t in range(3):
                a(f"ds_read_b128 {vr(RING + 4 * t, 4)}, v{vXA} offset:{t * 1024}")
            for i in range(5):
                a(f"ds_read_b128 {vr(STR + 4 * i, 4)}, v{vT0} offset:{512 * i}")

        def compute(pre, dma, extra, mid, roll, swap=swap):
            early()
            sm = [None] * 3 + stats_math(STR, LN, LN + 1)
            if swap:
                sm += [f"ds_write2_b32 v{vLDS}, v{LN}, v{LN + 1} offset0:0 offset1:32"]
                sm += [f"ds_read_b128 {vr(LN + 4 * i, 4)}, v{vLDS + 1} offset:{(i >> 2) * 128 + (i & 3) * 32}" for i in range(8)]
                sm += [None] * 9 + [f"v_mul_f32 v{LN + 16 + i}, v{vCS}, v{LN + 16 + i}" for i in range(16)]
            else:
                sm += [f"v_mul_f32 v{TT + i}, v{LN + 1}, v{CS + i}" for i in range(16)]
            sm += [f"s_mul_i32 s{sO1}, s{sCL}, {3 * QKV_M}", f"s_lshl_b32 s{sK3}, s{sCS}, 18",
                   f"s_add_u32 s{sO1}, s{sO1}, s{sK3}", f"s_add_u32 s{sO1}, s{sO1}, s{sK4}"]
            gemm32(a, ACC, swap, vXA, [RING + 4 * i for i in range(4)], pre, dma, extra, mid, roll, fill=sm, issued=True)
            epi()

        def epi(swap=swap):
            for k in range(2):
                regs = [0, 1, 2, 3, 8, 9, 10, 11] if swap else list(range(8))
                regs = [r + (4 if swap else 8) * k for r in regs]
                for i in regs[::2]:
                    if swap:
                        a(f"v_pk_fma_f32 {vr(ACC + i, 2)}, {vr(ACC + i, 2)}, {vr(LN + i, 2)}, {vr(LN + 16 + i, 2)} neg_lo:[0,0,1] neg_hi:[0,0,1]")
                    else:
                        a(f"v_pk_fma_f32 {vr(ACC + i, 2)}, {vr(ACC + i, 2)}, {vr(LN, 2)}, {vr(TT + i, 2)} op_sel_hi:[1,0,1] neg_lo:[0,0,1] neg_hi:[0,0,1]")
                o = RING + 16 + 4 * k
                for i in range(4):
                    a(f"v_cvt_pk_bf16_f32 v{o + i}, v{ACC + regs[2 * i]}, v{ACC + regs[2 * i + 1]}")
                a(f"buffer_store_dwordx4 {vr(o, 4)}, v{vO}, {WS}, s{sO1} offen offset:{512 * k} sc1", tag="st")

        def out_flag():
            a(f"s_mul_i32 s{sPEND}, s{sCO}, {FL_STRIDE}")
            a(f"s_add_u32 s{sPEND}, s{sPEND}, s{sK1}")

        a(f"s_mov_b32 s{sSB}, {STB3}")
        a(f"s_mov_b32 s{sCSB}, 0x2000")
        staged_loop(a, nm, abort, done, WS_X + X_BYTES, 2 * X_BYTES, FL_XB,
                    lambda sr_: stats_dma(WS_ST + ST_BYTES, sr_), compute, out_flag, 2, vMB if swap else 78)


def role_awo(a, abort, done):
    lane_setup(a, 64)
    vXA, vSTO, vSEL, vA0, vRES = 9, 10, 11, 12, 14
    ACC, RING, RES, SS = 16, 32, 64, 72
    if AQLDW:
        a(f"s_cmp_lt_u32 s{S_ROLE}, 5")
        a("s_cbranch_scc1 Lawo_noord")
        dbg_wait(a, DB_LOADED, AQLDW, vT0, vT1, abort, "Lawo_ord", 64)
        a.label("Lawo_noord")
    srd(a, SRD_A, KA_WO, 576 * 1152)
    a(f"""
    s_cmp_ge_u32 s{S_ROLE}, 5
    s_cselect_b32 s{sLAYS}, 1, 0
    s_cselect_b32 s{S_TMP}, 5, 0
    s_sub_u32 s{S_ROLE}, s{S_ROLE}, s{S_TMP}
    s_lshl_b32 s{sK2}, s{S_ROLE}, 2
    s_add_u32 s{sK2}, s{sK2}, s{S_WAVE}
    s_min_u32 s{sK2}, s{sK2}, 17
    s_lshl_b32 s{sK1}, s{sK2}, 6
    v_bfe_u32 v{vSTO}, v{vL16}, 4, 5
    """)
    feat_of_row(a, vRES, vSTO, vT0)
    a(f"v_and_b32 v{vT0}, 1, v{vRES}")
    sel_of_parity(a, vSEL, vT0, vT1)
    a(f"""
    v_and_b32 v{vRES}, 30, v{vRES}
    v_lshlrev_b32 v{vRES}, 1, v{vRES}
    v_lshrrev_b32 v{vXA}, 9, v{vL16}
    v_mul_u32_u24 v{vT0}, {8 * 1152}, v{vXA}
    v_add_u32 v{vA0}, v{vT0}, v{vRES}
    v_add_u32 v{vA0 + 1}, 1152, v{vA0}
    """)
    load_cols(a, SRD_A, vA0, vSEL, [((18 * t + 2 * (t & 1) + 2 * d) * 1152, WB + 4 * t + d) for t in range(32) for d in range(4)])
    a(f"""
    v_mul_u32_u24 v{vT0}, {72 * 1152}, v{vXA}
    v_add_u32 v{vA0}, v{vT0}, v{vRES}
    v_add_u32 v{vA0 + 1}, 1152, v{vA0}
    """)
    load_cols(a, SRD_A, vA0, vSEL, [((144 * t + 18 * d + (0 if d & 1 else 16)) * 1152, WB + 128 + 4 * t + d) for t in range(4) for d in range(4)])
    a(f"""
    v_lshlrev_b32 v{vSTO}, 4, v{vSTO}
    v_lshl_add_u32 v{vRES}, v{vXA}, 9, v{vSTO}
    s_lshl_b32 s{S_TMP}, s{sK2}, 11
    v_add_u32 v{vRES}, s{S_TMP}, v{vRES}
    s_lshr_b32 s{S_TMP}, s{sK2}, 1
    s_lshl_b32 s{S_TMP}, s{S_TMP}, 9
    s_and_b32 s{S_TMP + 1}, s{sK2}, 1
    s_lshl_b32 s{S_TMP + 1}, s{S_TMP + 1}, 3
    s_add_u32 s{S_TMP}, s{S_TMP}, s{S_TMP + 1}
    v_add_u32 v{vSTO}, s{S_TMP}, v{vSTO}
    s_lshr_b32 s{sK1}, s{sK2}, 2
    s_lshl_b32 s{sK1}, s{sK1}, 7
    s_and_b32 s{S_TMP}, s{sK2}, 3
    s_lshl_b32 s{S_TMP}, s{S_TMP}, 2
    s_add_u32 s{sK1}, s{sK1}, s{S_TMP}
    s_add_u32 s{sK1}, s{sK1}, {WS_FLAGS + FL_XB}
    """)

    def res_loads(srd_):
        pre = [f"s_mul_i32 s{sO3}, s{sNL}, {2 * X_BYTES}", f"s_mul_i32 s{S_TMP + 1}, s{sNS}, {X_SEG}",
               f"s_add_u32 s{sO3}, s{sO3}, s{S_TMP + 1}", f"s_add_u32 s{sO3}, s{sO3}, {WS_X}"]
        ops = [[f"buffer_load_dwordx4 {vr(RES + 4 * k, 4)}, v{vRES}, {srd_}, s{sO3} offen offset:{1024 * k}"] for k in range(2)]
        ops[0] = pre + ops[0]
        return ops

    AOST = int(os.environ.get("AOST", "14"))
    AODEC = int(os.environ.get("AODEC", "32"))

    def compute(start, decide, vm):
        vm = list(vm)
        a(f"v_add_u32 v{vXA}, s{sBUF}, v{vL16}")
        nr = 8
        ring = [RING + 4 * i for i in range(nr)]

        def rd(t):
            return f"ds_read_b128 {vr(ring[t % nr], 4)}, v{vXA} offset:{t * 1024}"
        for t in range(nr - 1):
            a(rd(t))
        for i in range(8):
            a(f"v_lshlrev_b32 v{ACC + 2 * i}, 16, v{RES + i}")
            a(f"v_and_b32 v{ACC + 2 * i + 1}, 0xffff0000, v{RES + i}")
        fl = [f"s_mul_i32 s{sO1}, s{sCL}, {2 * X_BYTES}", f"s_mul_i32 s{sK3}, s{sCS}, {X_SEG}",
              f"s_add_u32 s{sO1}, s{sO1}, s{sK3}", f"s_add_u32 s{sO1}, s{sO1}, {WS_X + X_BYTES}",
              f"s_mul_i32 s{sK4}, s{sCL}, {2 * ST_BYTES}", f"s_mul_i32 s{sK3}, s{sCS}, {ST_SEG}",
              f"s_add_u32 s{sK4}, s{sK4}, s{sK3}", f"s_add_u32 s{sK4}, s{sK4}, {WS_ST + ST_BYTES}"]
        for t in range(36):
            a(MF32(ACC, vr(WB + 4 * t, 4), vr(ring[t % nr], 4), None))
            if t + nr - 1 < 36:
                a(rd(t + nr - 1))
            if fl:
                a(fl.pop(0))
            if t == AOST:
                start()
            if t == AODEC:
                decide()
            elif t > AODEC and vm:
                seq(a, vm.pop(0))
                if vm:
                    seq(a, vm.pop(0))
        seq(a, vm)
        for k in range(2):
            for i in range(4):
                a(f"v_cvt_pk_bf16_f32 v{RING + 4 * k + i}, v{ACC + 8 * k + 2 * i}, v{ACC + 8 * k + 2 * i + 1}")
            a(f"buffer_store_dwordx4 {vr(RING + 4 * k, 4)}, v{vRES}, {WS}, s{sO1} offen offset:{1024 * k} sc1")
        a(f"v_add_f32 v{SS}, v{ACC}, v{ACC + 1}")
        a(f"v_mul_f32 v{SS + 1}, v{ACC}, v{ACC}")
        a(f"v_fmac_f32 v{SS + 1}, v{ACC + 1}, v{ACC + 1}")
        for i in range(2, 16):
            a(f"v_add_f32 v{SS}, v{SS}, v{ACC + i}")
            a(f"v_fmac_f32 v{SS + 1}, v{ACC + i}, v{ACC + i}")
        seq(a, f"v_mov_b32 v{SS + 2}, v{SS}", f"v_mov_b32 v{SS + 3}, v{SS + 1}",
            f"v_permlane32_swap_b32 v{SS}, v{SS + 2}", f"v_permlane32_swap_b32 v{SS + 1}, v{SS + 3}",
            f"v_add_f32 v{SS}, v{SS}, v{SS + 2}", f"v_add_f32 v{SS + 1}, v{SS + 1}, v{SS + 3}",
            f"buffer_store_dwordx2 {vr(SS, 2)}, v{vSTO}, {WS}, s{sK4} offen sc1")

    def out_flag():
        a(f"s_mul_i32 s{sPEND}, s{sCO}, {FL_STRIDE}")
        a(f"s_add_u32 s{sPEND}, s{sPEND}, s{sK1}")

    seq_loop(a, "Lawo", abort, done, WS_OA, X_BYTES, FL_OA, res_loads, compute, out_flag, 3, sLAYS, slp=2, DBGW=11)


def role_aq(a, abort, done, nt=""):
    lane_setup(a, 48)
    vXA, vSTA, vLDS, vOUT = 9, 10, 11, 13
    ACC, CS, RING, STR = 16, 36, 56, 68
    LN, BI = 92, 72
    ST8 = 112
    QB, KC, VA, VB, SP, PP = 128, 132, 136, 140, 144, 68
    AQST = int(os.environ.get("AQST", "10"))
    AQDEC = int(os.environ.get("AQDEC", "22"))
    NR = int(os.environ.get("AQNR", "4"))
    RG = [RING, RING + 4, RING + 8, 104][:NR]
    vSRC = 111
    WV = 152

    def wreg(tile, t, i=None):
        n = (tile * 18 + t) * 4
        k, b = ("v", WV + n) if n < 104 else ("a", n - 104)
        return f"{k}[{b}:{b + 3}]" if i is None else f"{k}{b + i}"

    a(f"""
    s_lshr_b32 s{sLAYS}, s{S_ROLE}, 4
    s_and_b32 s{S_ROLE}, s{S_ROLE}, 15
    s_lshl_b32 s{sK2}, s{S_ROLE}, 1
    s_lshr_b32 s{S_TMP}, s{S_WAVE}, 1
    s_add_u32 s{sK2}, s{sK2}, s{S_TMP}
    s_and_b32 s{sK3}, s{S_WAVE}, 1
    s_mul_i32 s{sK1}, s{sK2}, 36
    """)
    if AQLDW:
        a(f"s_cmp_eq_u32 s{sLAYS}, 0")
        a("s_cbranch_scc1 Laq_noord")
        dbg_wait(a, DB_LOADED, AQLDW, vT0, vT1, abort, "Laq_ord", 64)
        a.label("Laq_noord")
    srd(a, SRD_A, KA_WQKV, 576 * 3456)
    A_ = f"s[{SRD_A}:{SRD_A + 3}]"
    SLOT, ROWB, MB_ = 7680, 240, 80
    EXA = 18 * SLOT
    ZERO = EXA + 18 * 1024
    GA2, TRM, TRE, MSK, TX, CR, CWR = 16, 19, 20, 21, 22, 23, 28
    sLB, sHD, sDL = sO1, sO2, sO3
    for j in range(2):
        a(f"""
        v_lshrrev_b32 v24, 4, v{vL16}
        v_add_u32 v24, {64 * j}, v24
        v_mul_u32_u24 v25, {(65536 + 14) // 15}, v24
        v_lshrrev_b32 v25, 16, v25
        v_mul_u32_u24 v26, 15, v25
        v_sub_u32 v24, v24, v26
        v_mul_u32_u24 v{GA2 + j}, 3456, v25
        v_mul_u32_u24 v25, {(65536 + 4) // 5}, v24
        v_lshrrev_b32 v25, 16, v25
        v_mul_u32_u24 v26, 5, v25
        v_sub_u32 v24, v24, v26
        v_mul_u32_u24 v25, 1152, v25
        v_lshlrev_b32 v24, 4, v24
        v_add3_u32 v{GA2 + j}, v{GA2 + j}, v24, v25
        """)
    a(f"""
    s_mul_i32 s{sK1}, s{S_ROLE}, 72
    s_and_b32 s{sDL}, s{sK1}, 15
    s_and_b32 s{sK1}, s{sK1}, -16
    s_mul_i32 s{S_TMP}, s{S_WAVE}, {8 * 3456}
    s_add_u32 s{sK1}, s{sK1}, s{S_TMP}
    s_mul_i32 s{sLB}, s{S_WAVE}, {8 * ROWB}
    s_mov_b32 s{sE}, -1
    s_mov_b32 s{sE + 1}, 0x00ffffff
    """)
    def wdma(t):
        a(f"s_add_u32 s{S_TMP}, s{sK1}, {32 * t * 3456}")
        a(f"s_add_u32 m0, s{sLB}, {t * SLOT}")
        a("s_nop 0")
        a(f"buffer_load_dwordx4 v{GA2}, {A_}, s{S_TMP} offen lds")
        a(f"s_add_u32 m0, s{sLB}, {t * SLOT + 1024}")
        a(f"s_mov_b64 exec, s[{sE}:{sE + 1}]")
        a(f"buffer_load_dwordx4 v{GA2 + 1}, {A_}, s{S_TMP} offen lds")
        a("s_mov_b64 exec, -1")
    for t in range(12):
        wdma(t)
    a(f"""
    s_lshr_b32 s{sHD}, s{S_WAVE}, 1
    s_mul_i32 s{S_TMP}, s{sHD}, 40
    s_add_u32 s{S_TMP}, s{S_TMP}, s{sDL}
    s_mul_i32 s{S_TMP + 1}, s{sHD}, 4
    s_add_u32 s{S_TMP + 1}, s{S_TMP + 1}, s{sDL}
    s_add_u32 s{S_TMP + 1}, s{S_TMP + 1}, 32
    s_lshl_b32 s{S_TMP + 2}, s{sHD}, 4
    s_add_u32 s{S_TMP + 2}, s{S_TMP + 2}, {EXA}
    v_lshrrev_b32 v{vT0}, 2, v{vC}
    v_lshl_add_u32 v{vT0}, v{vG}, 3, v{vT0}
    v_and_b32 v{vT1}, 3, v{vC}
    v_mul_u32_u24 v{TRM}, {ROWB}, v{vT0}
    v_add_u32 v{TRM}, s{S_TMP}, v{TRM}
    v_lshl_add_u32 v{TRM}, v{vT1}, 3, v{TRM}
    v_lshlrev_b32 v{TRE}, 5, v{vT0}
    v_add_u32 v{TRE}, s{S_TMP + 2}, v{TRE}
    v_mov_b32 v{TX}, {ZERO}
    v_cmp_eq_u32 vcc, 0, v{vT1}
    v_cndmask_b32 v{TRE}, v{TX}, v{TRE}, vcc
    v_cndmask_b32 v{MSK}, 0, -1, vcc
    v_bfe_u32 v{vT0}, v{vL16}, 4, 5
    v_mul_u32_u24 v{CR}, {ROWB}, v{vT0}
    v_add_u32 v{CR}, s{S_TMP + 1}, v{CR}
    v_lshlrev_b32 v{CWR}, 5, v{vT0}
    v_add_u32 v{CWR}, s{S_TMP + 2}, v{CWR}
    v_mov_b32 v24, 0
    v_mov_b32 v25, 0
    v_mov_b32 v26, 0
    v_mov_b32 v27, 0
    v_lshlrev_b32 v{TX}, 4, v{vC}
    v_add_u32 v{TX}, {ZERO}, v{TX}
    ds_write_b128 v{TX}, v[24:27]
    """)

    def pair(tile, t, hh):
        n = (tile * 18 + t) * 4 + 2 * hh
        k, b = ("v", WV + n) if n < 104 else ("a", n - 104)
        return f"{k}[{b}:{b + 1}]"
    EB = 56

    def batch(ts):
        regs = {t: (EB + 8 * i, EB + 8 * i + 2, EB + 8 * i + 4) for i, t in enumerate(ts)}
        for t in ts:
            e, x, ad = regs[t]
            a(f"v_add_u32 v{ad}, {t * SLOT}, v{CR}")
            a(f"v_mov_b32 v{x + 1}, 0")
            a(f"ds_read_b32 v{e}, v{ad}")
            a(f"ds_read_b32 v{e + 1}, v{ad} offset:{MB_}")
            a(f"ds_read_b32 v{x}, v{ad} offset:{2 * MB_}")
        for t in ts:
            e, x, ad = regs[t]
            a(f"v_add_u32 v{ad + 1}, {t * SLOT}, v{TRM}")
            for hh in range(2):
                for tile, m in ((0, 0), (1, 1), (3, 2)):
                    a(f"ds_read_b64_tr_b16 {pair(tile, t, hh)}, v{ad + 1} offset:{m * MB_ + hh * 4 * ROWB}")
        for t in ts:
            e, x, ad = regs[t]
            a(f"ds_write_b64 v{CWR}, {vr(e, 2)} offset:{t * 1024}")
            a(f"ds_write_b64 v{CWR}, {vr(x, 2)} offset:{t * 1024 + 8}")
        a.wait(lg=0)
        for t in ts:
            e, x, ad = regs[t]
            for tile, off, q in ((2, 0, e), (4, 8, e + 1)):
                a(f"v_and_b32 v{q}, {t * 1024 + off}, v{MSK}")
                a(f"v_add_u32 v{q}, v{q}, v{TRE}")
                for hh in range(2):
                    a(f"ds_read_b64_tr_b16 {pair(tile, t, hh)}, v{q} offset:{hh * 128}")
        a.wait(lg=0)
    for i in range(4):
        a(f"v_mov_b32 v{104 + i}, 0x3f803f80")

    def csum(ts):
        for t in ts:
            for tile in range(5):
                w, o = wreg(tile, t), vr(104, 4)
                a(MF(CS + 4 * tile, o if tile >= 3 else w, w if tile >= 3 else o, "0" if t == 0 else None))
    a.force_wait(vm=2 * 6, lg=0)
    a("s_barrier")
    batch(list(range(0, 6)))
    for t in range(12, 18):
        wdma(t)
    csum(range(0, 6))
    a.force_wait(vm=2 * 6)
    a("s_barrier")
    batch(list(range(6, 12)))
    csum(range(6, 12))
    a.force_wait(vm=0)
    a("s_barrier")
    batch(list(range(12, 18)))
    csum(range(12, 18))
    a("s_barrier")
    NEG = hex(f32bits(-1e30))
    a(f"""
    v_lshlrev_b32 v{vSTA}, 5, v{vC}
    s_lshl_b32 s{S_TMP}, s{sK3}, 4
    v_add_u32 v{vSTA}, s{S_TMP}, v{vSTA}
    v_mul_u32_u24 v{vT1}, 1536, v{vG}
    v_add_u32 v{vSTA}, v{vSTA}, v{vT1}
    s_lshl_b32 s{S_TMP}, s{S_WAVE}, 7
    s_add_u32 s{S_TMP}, s{S_TMP}, {2 * XBUF}
    v_lshl_add_u32 v{vLDS}, v{vC}, 3, s{S_TMP}
    v_lshl_add_u32 v{vLDS + 1}, v{vG}, 5, s{S_TMP}
    v_lshlrev_b32 v{vOUT}, 5, v{vC}
    s_lshl_b32 s{S_TMP}, s{sK3}, 4
    v_add_u32 v{vOUT}, s{S_TMP}, v{vOUT}
    s_lshr_b32 s{S_TMP}, s{sK2}, 2
    s_add_u32 s{S_TMP}, s{S_TMP}, 64
    s_lshl_b32 s{S_TMP}, s{S_TMP}, 9
    s_and_b32 s{S_TMP + 1}, s{sK2}, 3
    s_lshl_b32 s{S_TMP + 1}, s{S_TMP + 1}, 2
    s_add_u32 s{S_TMP}, s{S_TMP}, s{S_TMP + 1}
    v_add_u32 v{vOUT + 1}, s{S_TMP}, v{vOUT}
    v_lshrrev_b32 v{vT0}, 1, v{vG}
    v_lshl_add_u32 v{vOUT}, v{vT0}, 9, v{vOUT}
    v_and_b32 v{vT0}, 1, v{vG}
    v_lshl_add_u32 v{vOUT}, v{vT0}, 3, v{vOUT}
    s_lshl_b32 s{S_TMP}, s{sK2}, 10
    v_add_u32 v{vOUT}, s{S_TMP}, v{vOUT}
    s_lshl_b32 s{sK1}, s{S_ROLE}, 7
    s_lshl_b32 s{S_TMP}, s{S_WAVE}, 2
    s_add_u32 s{sK1}, s{sK1}, s{S_TMP}
    s_add_u32 s{sK1}, s{sK1}, {WS_FLAGS + FL_OA}
    s_mov_b32 s{sK4}, {hex(f32bits(18 ** -0.5 * 1.4426950408889634))}
    v_mov_b32 v{vT1}, {NEG}
    """)
    for i in range(4):
        a(f"v_lshl_add_u32 v{vT0}, v{vG}, 2, {i}")
        a(f"v_sub_u32 v{vT0}, v{vT0}, v{vC}")
        a(f"v_cmp_le_i32 vcc, 9, v{vT0}")
        a(f"v_cndmask_b32 v{BI + i}, v{vT1}, v{vZERO}, vcc")
        a(f"v_add_u32 v{vT0}, 7, v{vT0}")
        a(f"v_cmp_ge_u32 vcc, 7, v{vT0}")
        a(f"v_cndmask_b32 v{BI + 4 + i}, v{vT1}, v{vZERO}, vcc")
    a(f"v_and_b32 v{vSRC}, 0x200, v{vL16}")
    a(f"v_lshl_add_u32 v{vSRC}, v{vC}, 5, v{vSRC}")
    a(f"v_and_b32 v{vT0}, 1, v{vG}")
    a(f"v_lshl_add_u32 v{vSRC}, v{vT0}, 4, v{vSRC}")
    for r in (ST8, VA, VB):
        for i in range(4):
            a(f"v_mov_b32 v{r + i}, 0")
    for i in range(4):
        a(f"v_mov_b32 v{ST8 + 4 + i}, 0x3f803f80")
    a(f"v_mov_b32 v{QB + 3}, 0")
    a(f"v_mov_b32 v{KC + 3}, 0")

    def st_loads(srd_):
        pre = [f"s_mul_i32 s{sO3}, s{sNL}, {2 * ST_BYTES}", f"s_mul_i32 s{S_TMP + 1}, s{sNS}, {ST_SEG}",
               f"s_add_u32 s{sO3}, s{sO3}, s{S_TMP + 1}", f"s_add_u32 s{sO3}, s{sO3}, {WS_ST}"]
        ops = [[f"buffer_load_dwordx4 {vr(STR + 12 + 4 * i, 4)}, v{vSTA}, {srd_}, s{sO3} offen offset:{512 * i}"] for i in range(3)]
        ops[0] = pre + ops[0]
        return ops

    def compute(start, decide, vm, osc):
        vm = list(vm)
        S0 = STR + 12
        a(f"v_lshlrev_b32 v{vXA}, 9, v{vG}")
        a(f"v_lshl_add_u32 v{vXA}, v{vC}, 4, v{vXA}")
        a(f"s_lshl_b32 s{S_TMP}, s{sK3}, 8")
        a(f"s_add_u32 s{S_TMP}, s{S_TMP}, s{sBUF}")
        a(f"v_add_u32 v{vXA}, s{S_TMP}, v{vXA}")
        S1, S2 = S0, S0 + 1
        sm = [f"v_add_f32 v{S0 + j}, v{S0 + j}, v{S0 + 4 * i + j}" for i in (1, 2) for j in range(4)]
        sm += [f"v_add_f32 v{S1}, v{S1}, v{S0 + 2}", f"v_add_f32 v{S2}, v{S2}, v{S0 + 3}"]
        for sw in (32, 16):
            sm += [f"v_mov_b32 v{S0 + 2}, v{S1}", f"v_mov_b32 v{S0 + 3}, v{S2}",
                   f"v_permlane{sw}_swap_b32 v{S1}, v{S0 + 2}", f"v_permlane{sw}_swap_b32 v{S2}, v{S0 + 3}",
                   f"v_add_f32 v{S1}, v{S1}, v{S0 + 2}", f"v_add_f32 v{S2}, v{S2}, v{S0 + 3}"]
        sm += [f"v_mul_f32 v{S1}, {hex(f32bits(1.0 / 576))}, v{S1}", f"v_mul_f32 v{S2}, {hex(f32bits(1.0 / 576))}, v{S2}",
               f"v_fma_f32 v{S2}, -v{S1}, v{S1}, v{S2}", f"v_max_f32 v{S2}, 0, v{S2}",
               f"v_add_f32 v{S2}, {hex(f32bits(1e-5))}, v{S2}", f"v_rsq_f32 v{LN}, v{S2}",
               f"v_mul_f32 v{LN + 1}, v{S1}, v{LN}",
               f"ds_write_b64 v{vLDS}, {vr(LN, 2)}",
               f"ds_read_b128 {vr(LN + 4, 4)}, v{vLDS + 1}", f"ds_read_b128 {vr(LN + 8, 4)}, v{vLDS + 1} offset:16"]
        def rd(n):
            return f"ds_read_b128 {vr(RG[n % NR], 4)}, v{vXA} offset:{(n % 18) * 2048}"
        q0, k0, ex, v0, vx = [ACC + 4 * i for i in range(5)]
        KP = ST8
        MX, T1 = vT0, vT1
        LQ, OX, OY, ON = ACC, ACC + 4, ACC + 8, ST8 + 4

        def fold(tile):
            ops = []
            for i in range(4):
                r = ACC + 4 * tile + i
                rs, mr = (LN + 4 + 2 * i, LN + 5 + 2 * i) if tile >= 3 else (LN, LN + 1)
                ops += [f"v_mul_f32 v{LN + 2}, v{mr}, v{CS + 4 * tile + i}", f"v_fma_f32 v{r}, v{r}, v{rs}, -v{LN + 2}"]
            return ops
        post = fold(0) + fold(2) + fold(1) + [
            f"v_cvt_pk_bf16_f32 v{QB}, v{q0}, v{q0 + 1}", f"v_cvt_pk_bf16_f32 v{QB + 1}, v{q0 + 2}, v{q0 + 3}",
            f"v_cvt_pk_bf16_f32 v{QB + 2}, v{ex}, v{ex + 1}",
            f"v_cvt_pk_bf16_f32 v{KC}, v{k0}, v{k0 + 1}", f"v_cvt_pk_bf16_f32 v{KC + 1}, v{k0 + 2}, v{k0 + 3}",
            f"v_cvt_pk_bf16_f32 v{KC + 2}, v{ex + 2}, v{ex + 3}",
            [f"s_cmp_eq_u32 s{sCS}, 0", f"s_cselect_b32 s{sO1}, {NEG}, 0"],
            None, MF(SP, vr(KP, 4), vr(QB, 4), "0"), None, MF(SP + 4, vr(KC, 4), vr(QB, 4), "0"), None, None]
        post += [f"v_mov_b32 v{KP + i}, v{KC + i}" for i in range(3)] + [None] * 3
        post += [f"v_fma_f32 v{SP + i}, v{SP + i}, s{sK4}, v{BI + i}" for i in range(8)]
        post += [f"v_add_f32 v{SP + i}, s{sO1}, v{SP + i}" for i in range(4)]
        post += [f"v_max3_f32 v{MX}, v{SP}, v{SP + 1}, v{SP + 2}", f"v_max3_f32 v{MX}, v{MX}, v{SP + 3}, v{SP + 4}",
                 f"v_max3_f32 v{MX}, v{MX}, v{SP + 5}, v{SP + 6}", f"v_max_f32 v{MX}, v{MX}, v{SP + 7}",
                 f"v_mov_b32 v{T1}, v{MX}", None, f"v_permlane32_swap_b32 v{MX}, v{T1}", f"v_max_f32 v{MX}, v{MX}, v{T1}",
                 f"v_mov_b32 v{T1}, v{MX}", None, f"v_permlane16_swap_b32 v{MX}, v{T1}", f"v_max_f32 v{MX}, v{MX}, v{T1}"]
        post += [f"v_sub_f32 v{SP + i}, v{SP + i}, v{MX}" for i in range(8)]
        post += [f"v_exp_f32 v{SP + i}, v{SP + i}" for i in range(8)]
        post += [f"v_cvt_pk_bf16_f32 v{PP + i}, v{SP + 2 * i}, v{SP + 2 * i + 1}" for i in range(4)]
        post += [None, MF(LQ, vr(ON, 4), vr(PP, 4), "0"),
                 [f"s_mul_i32 s{sO1}, s{sCO}, {X_SEG}", f"s_add_u32 s{sO1}, s{sO1}, {WS_OA}"]]
        seq(a, [rd(i) for i in range(NR - 1)])
        if PROF == 3:
            prof_begin(a)
        for n in range(36):
            t = n % 18
            if PROF == 3 and n == 18:
                prof_end(a, 3); prof_begin(a)
            if n + NR - 1 < 36:
                a(rd(n + NR - 1))
            x = vr(RG[n % NR], 4)
            for tile in ((0, 1, 2) if n < 18 else (3, 4)):
                w = wreg(tile, t)
                a(MF(ACC + 4 * tile, x if tile >= 3 else w, w if tile >= 3 else x, "0" if t == 0 else None))
                if n < 18 and sm:
                    a(sm.pop(0))
                if n >= 19:
                    for _ in range(3 if n >= 30 else 2):
                        if post:
                            seq(a, post.pop(0))
            if n == AQST:
                start()
            if n == 17:
                assert not sm
            if n == AQDEC:
                decide()
            elif n > AQDEC and vm:
                seq(a, vm.pop(0))
        assert not vm
        if PROF == 3:
            prof_end(a, 4); prof_begin(a)
        seq(a, post, f"v_rcp_f32 v{T1}, v{LQ}", fold(3),
            f"v_cvt_pk_bf16_f32 v{VA + 2}, v{v0}, v{v0 + 1}", f"v_cvt_pk_bf16_f32 v{VA + 3}, v{v0 + 2}, v{v0 + 3}",
            fold(4)[:2], MF(OX, vr(VA, 4), vr(PP, 4), "0"), fold(4)[2:],
            f"v_cvt_pk_bf16_f32 v{VB + 2}, v{vx}, v{vx + 1}", f"v_cvt_pk_bf16_f32 v{VB + 3}, v{vx + 2}, v{vx + 3}",
            f"v_mov_b32 v{VA}, v{VA + 2}", f"v_mov_b32 v{VA + 1}, v{VA + 3}",
            MF(OY, vr(VB, 4), vr(PP, 4), "0"),
            [f"v_mul_f32 v{OX + i}, v{T1}, v{OX + i}" for i in range(4)],
            f"v_cvt_pk_bf16_f32 v{OX}, v{OX}, v{OX + 1}", f"v_cvt_pk_bf16_f32 v{OX + 1}, v{OX + 2}, v{OX + 3}",
            f"buffer_store_dwordx2 {vr(OX, 2)}, v{vOUT}, {WS}, s{sO1} offen{osc}",
            f"v_mov_b32 v{VB}, v{VB + 2}", f"v_mov_b32 v{VB + 1}, v{VB + 3}",
            f"v_mul_f32 v{OY}, v{T1}, v{OY}", f"v_mul_f32 v{OY + 1}, v{T1}, v{OY + 1}",
            f"v_cvt_pk_bf16_f32 v{OY}, v{OY}, v{OY + 1}",
            "s_mov_b64 exec, 0xffff",
            f"buffer_store_dword v{OY}, v{vOUT + 1}, {WS}, s{sO1} offen{osc}",
            "s_mov_b64 exec, -1")
        if PROF == 3:
            prof_end(a, 5)

    def out_flag():
        a(f"s_mul_i32 s{sPEND}, s{sCO}, {FL_STRIDE}")
        a(f"s_add_u32 s{sPEND}, s{sPEND}, s{sK1}")

    class_pure(a, 3, sF1, 24, 25, abort, "Laq_pure")
    a(f"s_cmp_eq_u32 s{sF1}, 0")
    a("s_cbranch_scc1 Laq_slow")
    for nm, osc in (("Laqf", ""), ("Laq", " sc1")):
        if osc:
            a.label("Laq_slow")
            a.restore(([], []))
        seq_loop(a, nm, abort, done, WS_X, 2 * X_BYTES, FL_XA, st_loads, lambda s_, d_, v_, osc=osc: compute(s_, d_, v_, osc),
                 out_flag, 2, sLAYS, vsrc=vSRC, DBGW=9, osc=osc)


def seq_loop(a, name, abort, done, xbase, xlayer, flag_off, extra_loads, compute, out_flag, nst, laysel, prefetch=True,
             vsrc=None, pub2=None, slp=None, DBGW=None, osc=" sc1"):
    slp = SLP if slp is None else slp

    def dma_ops(srd_):
        ops = []
        for i in range(9):
            pre = []
            if i % 4 == 0:
                pre = [f"s_add_u32 m0, s{sOB}, {i * 1024}", f"s_add_u32 s{sO2}, s{sNX}, {i * 1024}"]
            ops.append(pre + [f"buffer_load_dwordx4 v{vL16 if vsrc is None else vsrc}, {srd_}, s{sO2} offen offset:{(i % 4) * 1024} lds"])
        return ops

    def publish():
        a(f"s_cmp_lg_u32 s{sPEND}, 0")
        a("s_cselect_b64 exec, 1, 0")
        if pub2 is None:
            a(f"buffer_store_dword v{vONE}, v{vZERO}, {WS}, s{sPEND} offen{osc}")
        else:
            a(f"buffer_store_dwordx2 {vr(pub2, 2)}, v{vZERO}, {WS}, s{sPEND} offen sc1")
        a("s_mov_b64 exec, -1")
        a(f"s_mov_b32 s{sPEND}, 0")

    a(f"""
    s_mov_b32 s{sNL}, s{laysel}
    s_mov_b32 s{sCL}, s{laysel}
    s_mov_b32 s{sNS}, 0
    s_lshl_b32 s{sNO}, s{laysel}, 6
    s_mul_i32 s{sWQ}, s{S_WAVE}, 9216
    s_mov_b32 s{sBUF}, {XBUF}
    s_mov_b32 s{sOB}, s{sWQ}
    s_mov_b32 s{sPEND}, 0
    s_mov_b32 s{SRD_C}, s{SRD_WS}
    s_mov_b32 s{SRD_C + 1}, s{SRD_WS + 1}
    s_mov_b32 s{SRD_C + 2}, 0
    s_mov_b32 s{SRD_C + 3}, 0x00020000
    s_mul_i32 s{sNX}, s{laysel}, {xlayer}
    s_add_u32 s{sNX}, s{sNX}, s{sWQ}
    s_add_u32 s{sNX}, s{sNX}, {xbase}
    s_mul_i32 s{sNFL}, s{sNO}, {FL_STRIDE}
    s_add_u32 s{sNFL}, s{sNFL}, {WS_FLAGS + flag_off}
    """)
    if DBGT == 2 and DBGW is not None:
        stamp_max(a, 5 + (DBGW - 9), vT0, vT1, (laysel, 0))
    dbg_wait(a, DB_POOL, N_POOL, vT0, vT1, abort, name + "_ini")
    if DBGT == 2 and DBGW is not None:
        stamp_max(a, 13, vT0, vT1, (laysel, 0))
    trace(a, vT0, vT1)
    a(f"s_branch {name}_poll")
    head = name + "_item"
    a.label(head)
    a.restore(([], []))
    a.force_wait(vm=nst)
    a.label(name + "_go")
    a("s_barrier")
    a(f"""
    s_xor_b32 s{sBUF}, s{sBUF}, {XBUF}
    s_xor_b32 s{sOB}, s{sOB}, {XBUF}
    s_xor_b32 s{sSB}, s{sSB}, 0x2000
    s_xor_b32 s{sCSB}, s{sCSB}, 0x2000
    s_mov_b32 s{sCS}, s{sNS}
    s_mov_b32 s{sCO}, s{sNO}
    s_add_u32 s{sNS}, s{sNS}, 1
    s_add_u32 s{sNO}, s{sNO}, 1
    s_add_u32 s{sNX}, s{sNX}, {X_SEG}
    s_add_u32 s{sNFL}, s{sNFL}, {FL_STRIDE}
    s_mov_b32 s{sDEC}, 0
    """)
    a.vmq = [(frozenset(), "st")] * nst

    def start():
        a.force_wait(vm=0)
        a(f"buffer_load_dword v{vFLV}, v{vFLA}, {WS}, s{sNFL} offen sc1")
        publish()

    def decide():
        a.force_wait(vm=1)
        a(f"v_cmp_eq_u32 vcc, 0, v{vFLV}")
        a("s_cmp_eq_u64 vcc, 0")
        a(f"s_cselect_b32 s{sDEC}, 1, 0")
        a(f"s_cmp_lt_u32 s{sNS}, {NSEG}")
        a(f"s_cselect_b32 s{sDEC}, s{sDEC}, 0")
        a(f"s_cmp_lg_u32 s{sDEC}, 0")
        a(f"s_cselect_b32 s{SRD_C + 2}, {WS_BYTES}, 0")

    if prefetch:
        compute(start, decide, dma_ops(PFS) + extra_loads(PFS))
    else:
        compute(None, None, [])
    out_flag()
    trace_at(a, sCO, vT0, vZERO)
    trace5(a, sCS, 2, vT0, vZERO)
    if DBGW is not None:
        stamp_max(a, DBGW, vT0, vT1, (sCO, 0))
    if TRACE == 1:
        a.force_wait(vm=0)
        trace(a, vT0, vT1)
        a.force_wait(vm=0)
    if prefetch:
        a(f"s_cmp_lg_u32 s{sDEC}, 0")
        a(f"s_cbranch_scc1 {head}")
    a(f"buffer_load_dword v{vFLV}, v{vFLA}, {WS}, s{sNFL} offen sc1")
    a.force_wait(vm=0)
    a(f"s_cmp_ge_u32 s{sNS}, {NSEG}")
    a(f"s_cbranch_scc1 {name}_fin")
    a(f"v_cmp_eq_u32 vcc, 0, v{vFLV}")
    a(f"s_cbranch_vccnz {name}_pub")
    seq(a, dma_ops(WS), extra_loads(WS))
    publish()
    trace5(a, sCS, 3, vT0, vZERO)
    a.force_wait(vm=1)
    a(f"s_branch {name}_go")
    a.label(name + "_fin")
    a.restore(([], []))
    publish()
    a(f"s_branch {done}")
    a.label(name + "_pub")
    a.restore(([], []))
    publish()
    trace5(a, sCS, 3, vT0, vZERO)
    a.label(name + "_poll")
    a.restore(([], []))
    a(f"s_mov_b32 s{S_SPIN}, 0")
    L = name + "_pl"
    a.label(L)
    a(f"buffer_load_dword v{vFLV}, v{vFLA}, {WS}, s{sNFL} offen sc1")
    spin_check(a, abort)
    a(f"v_cmp_eq_u32 vcc, 0, v{vFLV}")
    a(f"s_cbranch_vccz {L}d")
    if slp:
        a(f"s_sleep {slp}")
    a(f"s_branch {L}")
    a.label(L + "d")
    trace5(a, sNS, 0, vT0, vZERO)
    seq(a, dma_ops(WS), extra_loads(WS))
    a.force_wait(vm=0)
    trace5(a, sNS, 1, vT0, vZERO)
    a(f"s_branch {name}_go")
```

```python
from common import *
import os, struct

L_MEMA = 0
L_KX = 9216
ROWS = 288
L_QB = 17408
L_KB = L_QB + 8 * ROWS
L_OB = L_KB + 8 * ROWS
L_WO1 = 24576
L_W = 57344
LW_WAVE = 26624
assert L_OB + 8 * ROWS <= L_WO1 and L_W + 4 * LW_WAVE == 163840
PART_W = 2304

vL16, vIDX, vQW, vQR, vOR, vSPARE, vRLD, vRST, vL4, vLW = range(10)
vT0, vT1 = 10, 11
ACCQ, ACCK, ACCV = 12, 20, 28
VXA, VXB = 36, 40
Q = [44 + 4 * i for i in range(7)]
WR = [Q[3], Q[5]]
vSPARE2 = vRLD
WBASE = 72

sH = S_ROLE
sLAY = S_FREE
sSTEP = S_FREE + 1
sMEMR = S_FREE + 2
sMEMR8 = S_FREE + 3
sMEMW = S_FREE + 4
sMEMZ = S_FREE + 5
sPW = S_FREE + 6
sPH = S_FREE + 7
sKP = S_FREE + 8
sKF = S_FREE + 9
sVF = S_FREE + 10
sKM = S_FREE + 11
sFL = S_FREE + 12
sKMB = S_FREE + 13
sKPH = S_FREE + 34
sFMK = S_FREE + 46
sKPV = S_FREE + 24
sOFL = S_FREE + 35
sCEXP = S_FREE + 14
sMAXD = S_FREE + 22
sFAST = S_FREE + 23
sMASK = S_FREE + 18
sMLO = S_FREE + 20
sU = S_FREE + 16
sT = S_FREE + 25
sPR = sT
sJOBC = S_FREE + 30
sONES = S_FREE + 36
sM = S_FREE + 38
SRD_D = 80
S_STAMP = 80

MATS = "qkv"
D1 = [int(x) for x in os.environ.get("D1", "5,5,5").split(",")]
D2 = int(os.environ.get("D2", "2"))
R1LDW = int(os.environ.get("R1LDW", "16"))
WOD = int(os.environ.get("WOD", "3"))
NOPUB = int(os.environ.get("NOPUB", "0"))
NOKV = int(os.environ.get("NOKV", "0"))
PFD = int(os.environ.get("PFD", "1"))
RFREE = int(os.environ.get("RFREE", "0"))
TORD = [8, 0, 1, 2, 3, 4, 5, 6, 7]
WO_L = [(TORD[i >> 1], i & 1) for i in (0, 1, 5, 6, 10, 11, 15, 16)]


def f32bits(x):
    return struct.unpack("<I", struct.pack("<f", x))[0]


def build_frag_map():
    fm = {}
    regs = [("v", WBASE + 8 * i) for i in range(23)] + [("a", 8 * i) for i in range(32)]
    ri = 0
    for t in range(9):
        for m in MATS:
            for b in range(2):
                if m == "k" and b == 1:
                    fm[(m, b, t)] = ("l", "W", t)
                else:
                    fm[(m, b, t)] = regs[ri]; ri += 1
    n0 = n1 = 0
    for tau in range(9):
        for ks in range(2):
            if (tau, ks) in WO_L:
                if ks == 0:
                    fm[("o", tau, ks)] = ("l", "W", 9 + n0); n0 += 1
                else:
                    fm[("o", tau, ks)] = ("l", "O", n1); n1 += 1
            else:
                fm[("o", tau, ks)] = regs[ri]; ri += 1
    assert ri == 55 and n0 == 4 and n1 == 4
    return fm


FM = build_frag_map()


def opnd(loc, n=8, off=0):
    k, b = loc[0], loc[1]
    return (vr if k == "v" else ar)(b + off, n)


def lds_addr(loc, w):
    if loc[1] == "W":
        return vLW, loc[2] * 2048
    return vL16, L_WO1 + w * 8192 + loc[2] * 2048


def lw_read(dst, loc, w):
    r, off = lds_addr(loc, w)
    return [f"ds_read_b128 {vr(dst, 4)}, v{r} offset:{off}", f"ds_read_b128 {vr(dst + 4, 4)}, v{r} offset:{off + 1024}"]


def SM(acc, A, B):
    return f"v_smfmac_f32_16x16x64_bf16 {vr(acc, 4)}, {vr(A, 4)}, {B}, v{vIDX}"


def r_setup(a):
    LANE, C, G = 10, 60, 61
    WS = f"s[{SRD_WS}:{SRD_WS + 3}]"
    cexp = hex(f32bits(128 ** -0.5 * 1.4426950408889634))
    a(f"""
    v_and_b32 v{LANE}, 63, v0
    v_and_b32 v{C}, 15, v{LANE}
    v_lshrrev_b32 v{G}, 4, v{LANE}
    v_lshlrev_b32 v{vL16}, 4, v{LANE}
    v_lshlrev_b32 v{vL4}, 2, v{LANE}
    s_mul_i32 s{S_TMP}, s{S_WAVE}, {LW_WAVE}
    s_add_u32 s{S_TMP}, s{S_TMP}, {L_W}
    v_add_u32 v{vLW}, s{S_TMP}, v{vL16}
    s_mov_b32 s{sMAXD}, 0xfffffffe
    s_mov_b32 s{sCEXP}, {cexp}
    s_mov_b32 s{sCEXP + 1}, {cexp}
    s_mov_b32 s{sMASK}, 0x00ff00ff
    s_mov_b32 s{sMASK + 1}, 0x00ff00ff
    s_mov_b32 s{sMLO}, -1
    s_mov_b32 s{sMLO + 1}, 0
    s_mov_b32 s{sONES}, 0x3f803f80
    s_mov_b32 s{sONES + 1}, 0x3f803f80
    s_mov_b32 s{sPH}, 0
    v_lshrrev_b32 v63, 2, v{C}
    v_and_b32 v64, 1, v{C}
    v_lshl_add_u32 v62, v63, 1, v64
    v_bfe_u32 v65, v{C}, 1, 1
    v_mov_b32 v{vIDX}, 0x4444
    v_mov_b32 v63, 0xeeee
    v_cmp_eq_u32 vcc, 0, v65
    v_cndmask_b32 v{vIDX}, v63, v{vIDX}, vcc
    v_mul_u32_u24 v63, {2 * ROWS}, v{G}
    v_lshl_add_u32 v{vQW}, v{C}, 2, v63
    s_lshl_b32 s{S_TMP}, s{S_WAVE}, 6
    v_add_u32 v{vQW}, s{S_TMP}, v{vQW}
    v_mul_u32_u24 v63, {ROWS}, v62
    v_lshl_add_u32 v{vQR}, v{G}, 4, v63
    v_lshl_add_u32 v{vOR}, v{G}, 5, v63
    v_lshl_add_u32 v{vOR}, v65, 4, v{vOR}
    """)
    def between():
        a(f"v_and_b32 v12, 15, v{LANE}")
        a(f"v_lshrrev_b32 v13, 4, v{LANE}")
        WP, GO, CH = 84, 85, 86
        C, G = 12, 13
        M0A, M0B = 14, 15
        a(f"""
        s_lshr_b32 s{WP}, s{sH}, 3
        s_bfe_u32 s{GO}, s{sH}, 0x20001
        s_and_b32 s{CH}, s{sH}, 1
        s_cmp_lt_u32 s{S_WAVE}, 2
        s_cbranch_scc1 Lr_jab
        s_lshr_b32 s{WP}, s{sH}, 1
        s_and_b32 s{WP}, s{WP}, 3
        Lr_jab:
        s_cmp_lt_u32 s{sH}, 8
        s_cselect_b32 s{sJOBC}, 1, 0
        v_bfe_u32 v20, v{C}, 2, 1
        v_lshl_add_u32 v17, v20, 2, v{G}
        v_mul_u32_u24 v17, {PART_H}, v17
        v_lshrrev_b32 v21, 3, v{C}
        v_lshlrev_b32 v21, 2, v21
        v_and_b32 v20, 3, v{C}
        v_add_u32 v21, v21, v20
        v_lshl_add_u32 v{vRLD}, v21, 4, v17
        s_mul_i32 s{S_TMP}, s{WP}, {PART_W}
        s_lshl_b32 s{S_TMP + 1}, s{S_WAVE}, 10
        s_add_u32 s{S_TMP}, s{S_TMP}, s{S_TMP + 1}
        s_lshl_b32 s{S_TMP + 1}, s{CH}, 7
        s_add_u32 s{S_TMP}, s{S_TMP}, s{S_TMP + 1}
        s_lshl_b32 s{S_TMP + 1}, s{GO}, 8
        s_cmp_lt_u32 s{S_WAVE}, 2
        s_cselect_b32 s{S_TMP + 1}, s{S_TMP + 1}, 0
        s_add_u32 s{S_TMP}, s{S_TMP}, s{S_TMP + 1}
        v_add_u32 v{vRLD}, s{S_TMP}, v{vRLD}
        """)
        HI, RR, G1, G0 = 24, 25, 26, 27
        a(f"""
        v_bfe_u32 v{HI}, v{C}, 1, 2
        v_and_b32 v{RR}, 1, v{C}
        v_lshrrev_b32 v{G1}, 1, v{G}
        v_and_b32 v{G0}, 1, v{G}
        s_cmp_lt_u32 s{S_WAVE}, 2
        s_cbranch_scc0 Lr_jc
        s_lshl_b32 s{S_TMP}, s{S_WAVE}, 2
        v_add_u32 v18, s{S_TMP}, v{HI}
        v_lshlrev_b32 v{vRST}, 10, v18
        v_lshl_add_u32 v19, v{G0}, 1, v{RR}
        s_lshl_b32 s{S_TMP}, s{WP}, 4
        s_lshl_b32 s{S_TMP + 1}, s{GO}, 2
        s_add_u32 s{S_TMP}, s{S_TMP}, s{S_TMP + 1}
        v_add_u32 v19, s{S_TMP}, v19
        v_lshl_add_u32 v{vRST}, v19, 4, v{vRST}
        s_lshl_b32 s{S_TMP}, s{CH}, 1
        v_add_u32 v19, s{S_TMP}, v{G1}
        v_lshl_add_u32 v{vRST}, v19, 2, v{vRST}
        s_lshl_b32 s{S_TMP}, s{GO}, 1
        v_add_u32 v19, s{S_TMP}, v{RR}
        v_mul_u32_u24 v19, 576, v19
        v_lshl_add_u32 v19, v18, 4, v19
        v_lshl_add_u32 v19, v{G}, 1, v19
        s_mul_i32 s{S_TMP}, s{WP}, 144
        s_lshl_b32 s{S_TMP + 1}, s{CH}, 3
        s_add_u32 s{S_TMP}, s{S_TMP}, s{S_TMP + 1}
        v_add_u32 v19, s{S_TMP}, v19
        v_lshlrev_b32 v{M0A}, 1, v19
        v_add_u32 v{M0B}, 2, v{M0A}
        s_branch Lr_jd
        Lr_jc:
        s_lshl_b32 s{S_TMP}, s{CH}, 1
        v_add_u32 v18, s{S_TMP}, v{G1}
        v_lshlrev_b32 v19, 2, v18
        v_lshl_add_u32 v19, v{G0}, 1, v19
        v_add_u32 v19, v19, v{RR}
        s_lshl_b32 s{S_TMP}, s{WP}, 4
        v_add_u32 v19, s{S_TMP}, v19
        v_lshlrev_b32 v{vRST}, 4, v19
        v_lshl_add_u32 v{vRST}, v{HI}, 2, v{vRST}
        v_add_u32 v{vRST}, 8192, v{vRST}
        v_lshl_add_u32 v19, v18, 1, v{RR}
        v_mul_u32_u24 v19, 576, v19
        v_lshl_add_u32 v19, v{G0}, 3, v19
        v_add_u32 v19, v19, v{HI}
        s_mul_i32 s{S_TMP}, s{WP}, 144
        s_add_u32 s{S_TMP}, s{S_TMP}, 128
        v_add_u32 v19, s{S_TMP}, v19
        v_lshlrev_b32 v{M0A}, 1, v19
        v_add_u32 v{M0B}, 8, v{M0A}
        Lr_jd:
        """)
        a(f"""
        s_mul_i32 s{sU}, s{sLAY}, {RING_TEAM}
        s_add_u32 s{sU}, s{sU}, {WS_RING}
        s_lshl_b32 s{S_TMP + 1}, s{S_WAVE}, 11
        s_lshl_b32 s{S_TMP + 2}, s{S_WAVE}, 8
        s_add_u32 s{S_TMP + 2}, s{S_TMP + 2}, 8192
        s_mul_i32 s{S_TMP}, s{sH}, {PART_H}
        s_add_u32 s{S_TMP}, s{S_TMP}, s{sU}
        s_mul_i32 s{sPW}, s{S_WAVE}, {PART_W}
        s_add_u32 s{sPW}, s{sPW}, s{S_TMP}
        s_add_u32 s{sMEMZ}, s{sU}, {MEMB_OFF}
        s_xor_b32 s{sMEMW}, s{sMEMZ}, {MEMB_SLOT}
        s_add_u32 s{sMEMR}, s{sMEMZ}, s{S_TMP + 1}
        s_add_u32 s{sMEMR8}, s{sMEMZ}, s{S_TMP + 2}
        s_mul_i32 s{S_TMP}, s{sLAY}, {3 * QKV_M}
        s_lshl_b32 s{S_TMP + 2}, s{sH}, 13
        s_add_u32 s{S_TMP}, s{S_TMP}, s{S_TMP + 2}
        s_add_u32 s{sKP}, s{S_TMP}, {WS_QKV + QKV_M + PFD * 32 * 8192}
        s_add_u32 s{S_TMP}, s{S_TMP}, s{S_TMP + 1}
        s_add_u32 s{sKF}, s{S_TMP}, {WS_QKV + QKV_M}
        s_add_u32 s{sVF}, s{S_TMP}, {WS_QKV + 2 * QKV_M}
        s_mul_i32 s{S_TMP}, s{sLAY}, {KM_D * 32 * KM_UNIT}
        s_lshl_b32 s{S_TMP + 2}, s{sH}, 12
        s_add_u32 s{S_TMP}, s{S_TMP}, s{S_TMP + 2}
        s_lshl_b32 s{S_TMP + 2}, s{S_WAVE}, 9
        s_add_u32 s{S_TMP}, s{S_TMP}, s{S_TMP + 2}
        s_add_u32 s{sKMB}, s{S_TMP}, {WS_KM}
        s_mov_b32 s{sKM}, s{sKMB}
        s_mov_b32 s{sKPH}, 0
        s_mul_i32 s{S_TMP}, s{sLAY}, {NSEG * FL_STRIDE}
        s_lshr_b32 s{S_TMP + 2}, s{sH}, 2
        s_lshl_b32 s{S_TMP + 2}, s{S_TMP + 2}, 7
        s_add_u32 s{S_TMP}, s{S_TMP}, s{S_TMP + 2}
        s_and_b32 s{S_TMP + 2}, s{sH}, 3
        s_lshl_b32 s{S_TMP + 2}, s{S_TMP + 2}, 2
        s_add_u32 s{S_TMP}, s{S_TMP}, s{S_TMP + 2}
        s_add_u32 s{sOFL}, s{S_TMP}, {WS_FLAGS + FL_OF - (KM_D - 1) * FL_STRIDE}
        s_cmp_eq_u32 s{sLAY}, 0
        s_cselect_b32 s{sOFL}, {WS_FLAGS + FL_XA + (NSEG - (KM_D - 1)) * FL_STRIDE}, s{sOFL}
        s_mov_b32 s{sFMK}, 0xff
        s_mov_b32 s{sFMK + 1}, 0
        s_mul_i32 s{S_TMP}, s{sLAY}, {NSEG * FL_STRIDE}
        s_lshl_b32 s{S_TMP + 2}, s{sH}, 9
        s_add_u32 s{S_TMP}, s{S_TMP}, s{S_TMP + 2}
        s_add_u32 s{sFL}, s{S_TMP}, {WS_FLAGS + FL_QKV}
        s_mov_b32 s{sSTEP}, 0
        """)
        srd(a, 88, KA_MEM0, 9216)
        A_ = "s[88:91]"
        a(f"""
        s_cmp_eq_u32 s{S_WAVE}, 3
        s_cbranch_scc1 Lr_mem0_done
        s_cmp_lt_u32 s{S_WAVE}, 2
        s_cselect_b32 s{S_TMP}, 1, s{sJOBC}
        s_cmp_eq_u32 s{S_TMP}, 0
        s_cbranch_scc1 Lr_mem0_done
        s_mov_b64 exec, s[{sMASK}:{sMASK + 1}]
        buffer_load_ushort v20, v{M0A}, {A_}, 0 offen
        buffer_load_ushort v21, v{M0B}, {A_}, 0 offen
        v_lshl_or_b32 v20, v21, 16, v20
        v_min_u32 v20, s{sMAXD}, v20
        buffer_store_dword v20, v{vRST}, {WS}, s{sMEMZ} offen sc1
        v_mov_b32 v20, -1
        buffer_store_dword v20, v{vRST}, {WS}, s{sMEMW} offen sc1
        s_mov_b64 exec, -1
        Lr_mem0_done:
        v_mov_b32 v20, 1
        v_mov_b32 v21, 1
        v_mov_b32 v22, 1
        v_mov_b32 v23, 1
        s_xor_b32 s{S_TMP}, s{sPW}, {PART_SLOT}
        """)
        for sreg in (sPW, S_TMP):
            for i in range(2):
                a(f"buffer_store_dwordx4 v[20:23], v{vL16}, {WS}, s{sreg} offen offset:{1024 * i} sc1")
            a(f"buffer_store_dword v20, v{vL4}, {WS}, s{sreg} offen offset:2048 sc1")
        a(f"v_lshrrev_b32 v17, 1, v{vL16}")
        a(f"s_mov_b32 s{S_TMP}, s{sKMB}")
        for i in range(KM_D):
            a(f"buffer_store_dwordx2 v[20:21], v17, {WS}, s{S_TMP} offen offset:2048 sc1")
            a(f"s_mov_b64 exec, s[{sMLO}:{sMLO + 1}]")
            a(f"buffer_store_dwordx4 v[20:23], v{vL16}, {WS}, s{S_TMP} offen sc1")
            a(f"s_mov_b64 exec, -1")
            a(f"s_add_u32 s{S_TMP}, s{S_TMP}, {32 * KM_UNIT}")
        a(f"""
        s_cmp_lg_u32 s{S_WAVE}, 3
        s_cbranch_scc1 Lr_not_w3
        v_and_b32 v{vRST}, 12, v{vL4}
        v_and_b32 v17, 4, v{LANE}
        v_lshl_add_u32 v{vRST}, v17, 5, v{vRST}
        s_add_u32 s{S_TMP}, s{sFL}, {FL_STRIDE + 128}
        s_min_u32 s{S_TMP + 1}, s{S_TMP}, s{sOFL}
        s_sub_u32 s{S_TMP}, s{S_TMP}, s{S_TMP + 1}
        v_add_u32 v{vRST}, s{S_TMP}, v{vRST}
        s_sub_u32 s{S_TMP}, s{sOFL}, s{S_TMP + 1}
        v_mov_b32 v17, s{S_TMP}
        v_cmp_gt_u32 vcc, 8, v{LANE}
        v_cndmask_b32 v{vRST}, v17, v{vRST}, vcc
        s_mov_b32 s{sOFL}, s{S_TMP + 1}
        Lr_not_w3:
        v_lshlrev_b32 v{vSPARE}, 3, v{vL16}
        s_add_u32 s{sKPV}, s{sKP}, {QKV_M}
        """)
    if R1LDW:
        a(f"s_cmp_eq_u32 s{sLAY}, 0")
        a("s_cbranch_scc1 Lr_noord")
        dbg_wait(a, DB_LOADED, R1LDW, 63, 64, "Lr_abort", "Lr_ord", 32)
        a.label("Lr_noord")
    load_weights(a, LANE, C, G, between)
    a(f"s_add_u32 s{S_TMP}, s{sLAY}, s{S_WAVE}")
    a(f"s_cmp_lg_u32 s{S_TMP}, 0")
    a("s_cbranch_scc1 Lr_nold")
    dbg_add(a, DB_LOADED, 63, 64)
    a.label("Lr_nold")
    for i in range(4):
        a(f"s_add_u32 s{sPR + i}, s{sU}, {i * 8 * PART_H}")


def load_weights(a, LANE, C, G, between):
    srd(a, SRD_A, KA_WQ, 576 * 8192)
    srd(a, SRD_B, KA_WK, 576 * 8192)
    srd(a, SRD_C, KA_WV, 576 * 8192)
    srd(a, SRD_D, KA_BWO, 4096 * 1152)
    SR = {"q": SRD_A, "k": SRD_B, "v": SRD_C}
    GA, GB, G8A, G8B, TR0, TR1, TRA, TRB, TRW = 62, 63, 64, 65, 66, 67, 68, 69, 70
    WA = 50
    sRow, sLB, sWo = sT, sT + 1, sT + 2
    a(f"""
    v_lshlrev_b32 v71, 1, v{G}
    v_xor_b32 v71, v71, v{C}
    v_lshlrev_b32 v71, 4, v71
    v_lshl_add_u32 v{GA}, v{G}, 13, v71
    v_xor_b32 v{GB}, 128, v{GA}
    v_lshrrev_b32 v{G8A}, 1, v{G}
    v_lshlrev_b32 v{G8A}, 3, v{G8A}
    v_and_b32 v{G8B}, 1, v{G}
    v_lshl_add_u32 v{G8A}, v{G8B}, 2, v{G8A}
    v_lshl_add_u32 v{G8A}, v{G8A}, 13, v71
    v_xor_b32 v{G8B}, 128, v{G8A}
    s_mul_i32 s{sRow}, s{S_WAVE}, {144 * 8192}
    s_lshl_b32 s{S_TMP}, s{sH}, 8
    s_add_u32 s{sRow}, s{sRow}, s{S_TMP}
    s_lshl_b32 s{sLB}, s{S_WAVE}, 12
    """)
    a(f"""
    v_lshrrev_b32 v71, 2, v{C}
    v_lshl_add_u32 v{TR0}, v{G}, 3, v71
    v_lshlrev_b32 v{TR0}, 8, v{TR0}
    v_bfe_u32 v{TR1}, v{C}, 1, 1
    s_lshl_b32 s{S_TMP}, s{S_WAVE}, 2
    v_add_u32 v{TR1}, s{S_TMP}, v{TR1}
    v_lshlrev_b32 v71, 1, v71
    v_xor_b32 v{TR1}, v{TR1}, v71
    v_and_b32 v71, 1, v{G}
    v_lshlrev_b32 v71, 3, v71
    v_xor_b32 v{TR1}, v{TR1}, v71
    v_and_b32 v71, 1, v{C}
    v_lshl_add_u32 v{TR0}, v71, 3, v{TR0}
    v_xor_b32 v71, 2, v{TR1}
    v_lshl_add_u32 v{TR1}, v71, 4, v{TR0}
    v_xor_b32 v71, 2, v71
    v_lshl_add_u32 v{TR0}, v71, 4, v{TR0}
    """)
    tiles = [(m, t) for t in range(9) for m in MATS]
    wo_regs = [FM[k] for k in FM if k[0] == "o" and FM[k][0] != "l"]
    park = {}
    for t in range(9):
        park[("k", 1, t)] = wo_regs[t]
    NT = len(tiles)

    def slot(i):
        return ((i + 3) % 10) * 16384

    def dma(i):
        m, t = tiles[i]
        S = f"s[{SR[m]}:{SR[m] + 3}]"
        for j in range(4):
            a(f"s_add_u32 m0, s{sLB}, {slot(i) + j * 1024}")
            if t < 8:
                a(f"s_add_u32 s{S_TMP}, s{sRow}, {(16 * t + 4 * j) * 8192}")
                g = GA if j < 2 else GB
            else:
                a(f"s_add_u32 s{S_TMP}, s{sRow}, {(128 + j) * 8192}")
                g = G8A if j < 2 else G8B
            a(f"buffer_load_dwordx4 v{g}, {S}, s{S_TMP} offen lds")

    stages = [(ks, hf, qq) for ks in range(2) for hf in range(2) for qq in range(2)]
    STG = 18432

    def wo_prep():
        for j in range(5):
            a(f"v_add_u32 v71, {64 * j}, v{LANE}")
            a(f"v_mul_u32_u24 v59, {(65536 + 71) // 72}, v71")
            a(f"v_lshrrev_b32 v59, 16, v59")
            a(f"v_mul_u32_u24 v60, 72, v59")
            a(f"v_sub_u32 v71, v71, v60")
            a(f"v_and_b32 v60, 1, v59")
            a(f"v_lshlrev_b32 v60, 4, v60")
            a(f"v_lshrrev_b32 v59, 1, v59")
            a(f"v_lshl_add_u32 v60, v59, 2, v60")
            a(f"v_mul_u32_u24 v60, 1152, v60")
            a(f"v_lshl_add_u32 v{WA + j}, v71, 4, v60")
        a(f"""
        s_lshr_b32 s{S_TMP}, s{S_WAVE}, 1
        s_lshl_b32 s{S_TMP}, s{S_TMP}, 3
        s_and_b32 s{S_TMP + 1}, s{S_WAVE}, 1
        s_lshl_b32 s{S_TMP + 1}, s{S_TMP + 1}, 1
        s_add_u32 s{S_TMP}, s{S_TMP}, s{S_TMP + 1}
        s_lshl_b32 s{S_TMP + 1}, s{sH}, 7
        s_add_u32 s{S_TMP}, s{S_TMP}, s{S_TMP + 1}
        s_mul_i32 s{sWo}, s{S_TMP}, 1152
        s_mul_i32 s{sT + 3}, s{S_WAVE}, {4 * 1152}
        """)

    def wo_dma(z):
        ks, hf, qq = stages[z]
        base = (z % 3) * STG
        W_ = f"s[{SRD_D}:{SRD_D + 3}]"
        a(f"s_add_u32 s{S_TMP}, s{sWo}, {(64 * ks + 32 * hf + qq) * 1152}")
        for j in range(5):
            a(f"s_add_u32 m0, s{sT + 3}, {base + j * 1024}")
            if j == 4:
                a(f"s_mov_b64 exec, s[{sMLO}:{sMLO + 1}]")
            else:
                a("s_nop 0")
            a(f"buffer_load_dwordx4 v{WA + j}, {W_}, s{S_TMP} offen lds")
        a("s_mov_b64 exec, -1")

    a(f"""
    v_lshrrev_b32 v71, 2, v{C}
    v_lshl_add_u32 v{TRW}, v{G}, 2, v71
    v_mul_u32_u24 v{TRW}, 1152, v{TRW}
    v_and_b32 v71, 3, v{C}
    v_lshl_add_u32 v{TRW}, v71, 3, v{TRW}
    s_mul_i32 s{S_TMP}, s{S_WAVE}, 288
    v_add_u32 v{TRW}, s{S_TMP}, v{TRW}
    """)
    wo_prep()
    vq = []
    issued = [0]
    done_at = {}

    def issue(kind, i):
        if kind == "t":
            dma(i); issued[0] += 4
        else:
            wo_dma(i); issued[0] += 5
        done_at[(kind, i)] = issued[0]

    for i in range(9):
        issue("t", i)
    between()
    nxt_t, nxt_z = 9, 0
    for i in range(NT):
        a.force_wait(vm=min(63, issued[0] - done_at[("t", i)]))
        a("s_barrier")
        if i == 0:
            a(f"s_cmp_lg_u32 s{S_WAVE}, 0")
            a("s_cbranch_scc1 Lr_noadd")
            a(f"s_lshl_b32 s{S_TMP}, s{sLAY}, 2")
            a(f"s_add_u32 s{S_TMP}, s{S_TMP}, {DB_TEAM}")
            dbg_add(a, f"s{S_TMP}", 48, 49)
            a.label("Lr_noadd")
        if i >= 1 and nxt_t < NT:
            assert slot(nxt_t) == slot(i - 1) or nxt_t == 9
            issue("t", nxt_t); nxt_t += 1
        elif i == 0:
            issue("t", nxt_t); nxt_t += 1
        elif i >= 21 and nxt_z < 3:
            issue("z", nxt_z); nxt_z += 1
        m, t = tiles[i]
        a(f"v_add_u32 v{TRA}, {slot(i)}, v{TR0}")
        a(f"v_add_u32 v{TRB}, {slot(i)}, v{TR1}")
        for b in range(2):
            loc = park.get((m, b, t), FM[(m, b, t)])
            for q in range(4):
                a(f"ds_read_b64_tr_b16 {opnd(loc, 2, 2 * q)}, v{(TRA, TRB)[b]} offset:{(32 * (q >> 1) + 4 * (q & 1)) * 256}")
        a.wait(lg=0)
    assert nxt_t == NT and nxt_z == 3
    a("s_barrier")
    for t in range(9):
        loc = park[("k", 1, t)]
        a(f"ds_write_b128 v{vLW}, {opnd(loc, 4)} offset:{t * 2048}")
        a(f"ds_write_b128 v{vLW}, {opnd(loc, 4, 4)} offset:{t * 2048 + 1024}")
    a.wait(lg=0)
    PK = 12
    for z in range(8):
        ks, hf, qq = stages[z]
        a.force_wait(vm=min(63, issued[0] - done_at[("z", z)]))
        a("s_barrier")
        if z >= 1 and nxt_z < 8:
            assert nxt_z % 3 == (z - 1) % 3
            issue("z", nxt_z); nxt_z += 1
        q = 2 * hf + qq
        np_ = 0
        for tau in range(9):
            loc = FM[("o", tau, ks)]
            if loc[0] == "l":
                loc = ("v", PK + 8 * np_); np_ += 1
            a(f"ds_read_b64_tr_b16 {opnd(loc, 2, 2 * q)}, v{TRW} offset:{(z % 3) * STG + 32 * tau}")
        a.wait(lg=0)
        if z == 3:
            np_ = 0
            for tau in range(9):
                loc = FM[("o", tau, 0)]
                if loc[0] == "l":
                    a(f"ds_write_b128 v{vLW}, {vr(PK + 8 * np_, 4)} offset:{loc[2] * 2048}")
                    a(f"ds_write_b128 v{vLW}, {vr(PK + 8 * np_ + 4, 4)} offset:{loc[2] * 2048 + 1024}")
                    np_ += 1
            a.wait(lg=0)
    a("s_barrier")
    a(f"s_lshl_b32 s{S_TMP}, s{S_WAVE}, 13")
    a(f"v_add_u32 v71, s{S_TMP}, v{vL16}")
    np_ = 0
    for tau in range(9):
        loc = FM[("o", tau, 1)]
        if loc[0] == "l":
            a(f"ds_write_b128 v71, {vr(PK + 8 * np_, 4)} offset:{L_WO1 + loc[2] * 2048}")
            a(f"ds_write_b128 v71, {vr(PK + 8 * np_ + 4, 4)} offset:{L_WO1 + loc[2] * 2048 + 1024}")
            np_ += 1
    a.force_wait(vm=0, lg=0)
    a("s_barrier")


def flag_wait_kv(a, name, soff_extra, abort):
    if RFREE:
        return
    L = a.newlabel(name)
    a(f"s_mov_b32 s{S_SPIN}, 0")
    a(f"s_add_u32 s{S_TMP}, s{sFL}, {soff_extra + 128}")
    a(f"v_and_b32 v{vT1}, 16, v{vL4}")
    a(f"v_lshlrev_b32 v{vT1}, 3, v{vT1}")
    a(f"v_and_or_b32 v{vT1}, v{vL4}, 12, v{vT1}")
    a.label(L)
    a(f"buffer_load_dword v{vT0}, v{vT1}, s[{SRD_WS}:{SRD_WS + 3}], s{S_TMP} offen sc1")
    spin_check(a, abort)
    a(f"v_cmp_eq_u32 vcc, 0, v{vT0}")
    a(f"s_cbranch_vccz {L}d")
    a("s_sleep 4")
    a(f"s_branch {L}")
    a.label(L + "d")


def r_loop(a, w, fast, abort, done, stamps=False):
    sc = "" if fast else " sc1"
    pfx = f"Lr{w}{'f' if fast else 's'}_"
    WS = f"s[{SRD_WS}:{SRD_WS + 3}]"
    NST = 10
    HK = (w == 3)
    order = [2 * w, 2 * w + 1] + [t for t in range(8) if t >> 1 != w] + [8]

    STSEL = [int(x) for x in os.environ.get("STSEL", "0,1,2,3,4,5,6,7,8,9,10").split(",")]

    def stamp(i):
        if i not in STSEL:
            return
        if stamps == 2 or (stamps and i == NST):
            a(f"s_memrealtime s[{S_STAMP + 2 * i}:{S_STAMP + 1 + 2 * i}]")
        elif stamps:
            a(f"s_memtime s[{S_STAMP + 2 * i}:{S_STAMP + 1 + 2 * i}]")

    def dump_stamps():
        if stamps:
            a.force_wait(lg=0)
            for i in range(NST + 1):
                a(f"v_writelane_b32 v{vT1}, s{S_STAMP + 2 * i}, {i}")
            a(f"v_writelane_b32 v{vT1}, s3, 11")
            a(f"v_writelane_b32 v{vT1}, s4, 12")
            a(f"s_lshl_b32 s{S_TMP}, s{sLAY}, 5")
            a(f"s_add_u32 s{S_TMP}, s{S_TMP}, s{sH}")
            a(f"s_lshl_b32 s{S_TMP}, s{S_TMP}, 6")
            a(f"s_add_u32 s{S_TMP}, s{S_TMP}, s{sSTEP}")
            a(f"s_lshl_b32 s{S_TMP}, s{S_TMP}, 8")
            a(f"s_add_u32 s{S_TMP}, s{S_TMP}, {WS_END + w * 64}")
            a(f"s_mov_b64 exec, 0x1fff")
            a(f"buffer_store_dword v{vT1}, v{vL4}, {WS}, s{S_TMP} offen")
            a(f"s_mov_b64 exec, -1")

    def zero(base, n):
        return [f"v_mov_b64 {vr(base + 2 * i, 2)}, 0" for i in range(n // 2)]

    def seq(*items):
        for it in items:
            if isinstance(it, (list, tuple)):
                seq(*it)
            elif callable(it):
                it()
            elif it:
                a(it)

    cont = {}

    def ld(dst, name, text):
        def f():
            a(text)
            cont[dst] = name
        return f

    def use(reg, name):
        assert cont.get(reg) == name, (w, reg, name, cont.get(reg))

    def M(i):
        return f"s[{sM + 2 * i}:{sM + 2 * i + 1}]"

    def poll(name, loads, checks, between=None, issued=0):
        n = len(loads)
        L = pfx + name
        if not issued:
            seq(loads)
        a(f"s_mov_b32 s{S_SPIN}, 0")
        for i in range(n):
            a(f"s_mov_b64 {M(i)}, 0")
        a.label(L)
        a.auto = False
        for i in range(n):
            a(f"s_mov_b64 exec, {M(i)}")
            a(loads[i])
        a("s_mov_b64 exec, -1")
        spin_check(a, abort)
        for i in range(n):
            a.force_wait(vm=2 * n - 1 - i)
            seq(checks[i])
            if between:
                seq(between[i])
            if i >= 2:
                a(f"s_or_b64 vcc, {M(0) if i == 2 else 'vcc'}, {M(i - 1)}")
        a(f"s_or_b64 vcc, vcc, {M(n - 1)}")
        a(f"s_cbranch_scc1 {L}")
        a.auto = True
        a.vmq = [(frozenset(), "pollx")] * n

    def chk4(q, i):
        return [f"v_max3_u32 v{vT1}, v{q}, v{q + 1}, v{q + 2}", f"v_max_u32 v{vT1}, v{vT1}, v{q + 3}",
                f"v_cmp_eq_u32 {M(i)}, -1, v{vT1}"]

    ACC = {"q": ACCQ, "k": ACCK, "v": ACCV}

    def A_read(dst, t):
        return ld(dst, ("A", t), f"ds_read_b128 {vr(dst, 4)}, v{vL16} offset:{L_MEMA + t * 1024}")

    def LW(buf, key):
        r = lw_read(buf, FM[key], w)
        return [ld(buf, ("W", key), r[0]), ld(buf + 4, ("W2", key), r[1])]

    def S(m, b, t, A, buf=None):
        def f():
            use(A, ("A", t))
            loc = FM[(m, b, t)]
            if loc[0] == "l":
                use(buf, ("W", (m, b, t))); use(buf + 4, ("W2", (m, b, t)))
                B = vr(buf, 8)
            else:
                B = opnd(loc)
            a(SM(ACC[m] + 4 * b, A, B))
        return f

    def qB(dst, j):
        return ld(dst, ("qB", j), f"ds_read_b128 {vr(dst, 4)}, v{vQR} offset:{L_QB + j * 64}")

    def kmA(dst, j):
        return ld(dst, ("km", j), f"ds_read_b128 {vr(dst, 4)}, v{vQR} offset:{L_KB + j * 64}")

    def KX(dst, j, tt):
        return ld(dst, ("KX", j, tt), f"ds_read_b128 {vr(dst, 4)}, v{vL16} offset:{L_KX + (j * 2 + tt) * 1024}")

    def MF(acc, A, B, first, ea=None, eb=None):
        def f():
            if ea is not None:
                use(A, ea)
            if eb is not None:
                use(B, eb)
            a(f"v_mfma_f32_16x16x32_bf16 {vr(acc, 4)}, {vr(A, 4)}, {vr(B, 4)}, {'0' if first else vr(acc, 4)}")
        return f

    def MF16(acc, A, B):
        return f"v_mfma_f32_16x16x16_bf16 {vr(acc, 4)}, {vr(A, 2)}, {vr(B, 2)}, {vr(acc, 4)}"

    def xe(acc):
        X, Y = acc, acc + 4
        return [f"v_add_f32 v{X}, v{X}, v{X + 2}", f"v_add_f32 v{Y}, v{Y}, v{Y + 2}",
                f"v_add_f32 v{X + 1}, v{X + 1}, v{X + 3}", f"v_add_f32 v{Y + 1}, v{Y + 1}, v{Y + 3}",
                f"v_cvt_pk_bf16_f32 v{X + 2}, v{X}, v{Y}",
                f"v_cvt_pk_bf16_f32 v{X + 3}, v{X + 1}, v{Y + 1}"]

    def kdma(i):
        if NOKV & 1:
            return None
        return lambda: a(f"buffer_load_dwordx4 v{vL16}, {WS}, s{sKF} offen offset:{1024 * i} lds", tag="kdma")

    tails = []

    def flag_sample():
        if not RFREE:
            a(f"buffer_load_dword v{vRLD}, v{vRST}, {WS}, s{sOFL} offen sc1")

    def flag_check_prefetch():
        if not RFREE:
            a(f"v_cmp_eq_u32 vcc, 0, v{vRLD}")
            a(f"s_and_b64 vcc, vcc, s[{sFMK}:{sFMK + 1}]")
            a(f"s_cbranch_scc1 {pfx}flbad")
            wn = list(a.win)

            def flbad():
                a.label(pfx + "flbad")
                a.win = wn
                a.restore(([], []))
                a(f"s_cmp_eq_u32 s{sSTEP}, {NSEG - 1}")
                a(f"s_cbranch_scc1 {pfx}flok")
                a(f"s_mov_b32 s{S_SPIN}, 0")
                a.label(pfx + "flp")
                a(f"buffer_load_dword v{vRLD}, v{vRST}, {WS}, s{sOFL} offen sc1")
                spin_check(a, abort)
                a(f"v_cmp_eq_u32 vcc, 0, v{vRLD}")
                a(f"s_and_b64 vcc, vcc, s[{sFMK}:{sFMK + 1}]")
                a(f"s_cbranch_scc1 {pfx}flp")
                a(f"s_branch {pfx}flok")
            tails.append(flbad)
            a.label(pfx + "flok")
        if NOKV & 2:
            return
        a.auto = False
        a(f"buffer_load_dword v{vRLD}, v{vSPARE}, {WS}, s{sKP} offen", tag="pf")
        a(f"buffer_load_dword v{vRLD}, v{vSPARE}, {WS}, s{sKPV} offen", tag="pf")
        a.auto = True

    AO0, AO1, A8 = Q[0], Q[1], vT0
    loads2 = [f"buffer_load_dwordx4 {vr(AO0, 4)}, v{vL16}, {WS}, s{sMEMR} offen sc1",
              f"buffer_load_dwordx4 {vr(AO1, 4)}, v{vL16}, {WS}, s{sMEMR} offen offset:1024 sc1",
              f"buffer_load_dword v{A8}, v{vL4}, {WS}, s{sMEMR8} offen sc1"]

    def pre_step():
        seq(LW(WR[0], ("k", 1, order[0])), LW(WR[1], ("k", 1, order[1])), zero(ACCQ, 24))

    if HK:
        flag_wait_kv(a, pfx + "fw", 0, abort)
    a("s_barrier")
    a(f"s_mov_b32 m0, {L_KX + w * 2048}")
    a("s_nop 0")
    seq(kdma(0), kdma(1))
    a(f"s_add_u32 s{sKF}, s{sKF}, {32 * 8192}")
    a.wait(vm=0)
    seq(loads2)
    pre_step()
    a.wait(lg=0)
    head = pfx + "step"
    a.label(head)
    head_cont = dict(cont)
    poll("p2", loads2, [chk4(AO0, 0), chk4(AO1, 1), [f"v_cmp_eq_u32 {M(2)}, -1, v{A8}"]], issued=1)
    cont[AO0] = ("A", order[0]); cont[AO1] = ("A", order[1])
    stamp(0)
    if stamps:
        a(f"s_mov_b32 s4, s{S_SPIN}")
    ring = [Q[0], Q[1], Q[2], VXA, VXB, Q[2], Q[0], Q[1], Q[2]]

    def Ap(p):
        return ring[p]

    def qk(p, which):
        t = order[p]
        m, b = which
        return S(m, b, t, Ap(p), WR[p & 1])
    def run(slots):
        for mf, fl in slots:
            seq(mf, fl)

    def lwh(p, half):
        return LW(WR[p & 1], ("k", 1, order[p]))[half]
    run([(qk(0, ("q", 0)), [f"ds_write_b128 v{vL16}, {vr(AO0, 4)} offset:{L_MEMA + order[0] * 1024}"]),
         (qk(0, ("q", 1)), [f"ds_write_b128 v{vL16}, {vr(AO1, 4)} offset:{L_MEMA + order[1] * 1024}"]),
         (qk(0, ("k", 0)), [f"ds_write_b32 v{vL4}, v{A8} offset:{L_MEMA + 8192 + w * 256}"]),
         (qk(0, ("k", 1)), [])])
    a.barrier(lg=0)
    seq(A_read(Ap(2), order[2]))
    fl = {4: A_read(Ap(3), order[3]), 5: lwh(2, 0), 6: lwh(2, 1), 7: A_read(Ap(4), order[4]),
          9: lwh(3, 0), 10: lwh(3, 1), 12: A_read(Ap(5), order[5]),
          16: f"buffer_load_dwordx4 {vr(VXA, 4)}, v{vL16}, {WS}, s{sVF} offen",
          20: f"buffer_load_dwordx4 {vr(VXB, 4)}, v{vL16}, {WS}, s{sVF} offen offset:1024",
          19: [lambda: a.wait_tag("pollx"), A_read(Ap(6), order[6])], 23: A_read(Ap(7), order[7]), 24: A_read(Ap(8), order[8])}
    for p in range(4, 9):
        fl[4 * p - 3] = lwh(p, 0)
        fl[4 * p - 2] = lwh(p, 1)
    tail = [(7, ("q", 0)), (7, ("q", 1)), (8, ("q", 0)), (8, ("q", 1)), (7, ("k", 0)), (7, ("k", 1)), (8, ("k", 0)), (8, ("k", 1))]
    spine = [(p, mb) for p in range(7) for mb in (("q", 0), ("q", 1), ("k", 0), ("k", 1))] + tail
    if NOKV & 4:
        fl[16] = fl[20] = None
    qe, ke = xe(ACCQ), xe(ACCK)
    SX, SMm, X4 = ACCQ, ACCK + 4, ACCK
    fl[33] = [KX(Q[5], 0, 0), qe[0]]
    fl[34] = [KX(Q[6], 0, 1), qe[1]]
    fl[35] = [KX(Q[3], 1, 0), qe[2], qe[3], qe[4], qe[5]]
    if HK:
        fl[8] = [fl.get(8), flag_sample]
    for sl in range(4, 36):
        p, mb = spine[sl]
        seq(qk(p, mb), fl.get(sl))
        if sl == 7:
            stamp(1)
    seq(f"ds_write_b32 v{vQW}, v{ACCQ + 2} offset:{L_QB}",
        f"ds_write_b32 v{vQW}, v{ACCQ + 3} offset:{L_QB + ROWS}")
    stamp(2)

    def V(p, A):
        return [S("v", 0, order[p], A), S("v", 1, order[p], A)]
    run([(V(8, Q[2])[0], [KX(Q[4], 1, 1), ke[0], ke[1], ke[2], ke[3]]),
         (V(8, Q[2])[1], [A_read(ACCQ, order[0]), ke[4], ke[5],
                          f"ds_write_b32 v{vQW}, v{ACCK + 2} offset:{L_KB}",
                          f"ds_write_b32 v{vQW}, v{ACCK + 3} offset:{L_KB + ROWS}"]),
         (V(7, Q[1])[0], [A_read(ACCQ + 4, order[1])]),
         (V(7, Q[1])[1], [A_read(ACCK, order[2])]),
         (V(6, Q[0])[0], [A_read(ACCK + 4, order[3])]),
         (V(6, Q[0])[1], [])])
    a.barrier(lg=3)
    stamp(3)
    ve = [f"v_add_f32 v{ACCV}, v{ACCV}, v{ACCV + 2}", f"v_add_f32 v{ACCV + 1}, v{ACCV + 1}, v{ACCV + 3}",
          f"v_add_f32 v{ACCV + 4}, v{ACCV + 4}, v{ACCV + 6}", f"v_add_f32 v{ACCV + 5}, v{ACCV + 5}, v{ACCV + 7}",
          f"v_cvt_pk_bf16_f32 v{ACCV + 2}, v{ACCV}, v{ACCV + 1}",
          f"v_cvt_pk_bf16_f32 v{ACCV + 3}, v{ACCV + 4}, v{ACCV + 5}"]
    seq(qB(Q[0], 0))
    run([(V(0, ACCQ)[0], [A_read(Q[2], order[4])]),
         (V(0, ACCQ)[1], [kmA(ACCQ, 0)]),
         (V(1, ACCQ + 4)[0], [A_read(Q[1], order[5])]),
         (V(1, ACCQ + 4)[1], []),
         (V(2, ACCK)[0], []),
         (V(2, ACCK)[1], [qB(ACCK, 1)]),
         (V(3, ACCK + 4)[0], []),
         (V(3, ACCK + 4)[1], []),
         (V(4, Q[2])[0], []),
         (V(4, Q[2])[1], [kmA(Q[2], 1)]),
         (V(5, Q[1])[0], []),
         (V(5, Q[1])[1], [qB(Q[1], 2)])])
    PBQ = ACCV + 4
    run([(MF(SMm, ACCQ, Q[0], True, ("km", 0), ("qB", 0)), [flag_check_prefetch] if HK else []),
         (MF(SX, Q[5], Q[0], True, ("KX", 0, 0), ("qB", 0)), [KX(Q[5], 2, 0)]),
         (MF(SX + 4, Q[6], Q[0], True, ("KX", 0, 1), ("qB", 0)), [KX(Q[6], 2, 1)]),
         (MF(SMm, Q[2], ACCK, False, ("km", 1), ("qB", 1)), [kmA(Q[0], 2), ve[0], ve[1]]),
         (MF(SX, Q[3], ACCK, False, ("KX", 1, 0), ("qB", 1)), [qB(Q[2], 3), ve[2], ve[3]]),
         (MF(SX + 4, Q[4], ACCK, False, ("KX", 1, 1), ("qB", 1)), [KX(Q[3], 3, 0), ve[4], ve[5]]),
         (MF(SMm, Q[0], Q[1], False, ("km", 2), ("qB", 2)),
          [kmA(ACCK, 3), f"v_lshrrev_b32 v{vT0}, 8, v{vL16}", f"v_mul_u32_u24 v{vT0}, {ROWS}, v{vT0}"]),
         (MF(SX, Q[5], Q[1], False, ("KX", 2, 0), ("qB", 2)),
          [KX(Q[4], 3, 1), f"v_and_b32 v{vT1}, 0xf0, v{vL16}", f"v_add_u32 v{vT0}, v{vT0}, v{vT1}"]),
         (MF(SX + 4, Q[6], Q[1], False, ("KX", 2, 1), ("qB", 2)),
          [f"ds_read_b128 {vr(PBQ, 4)}, v{vT0} offset:{L_KB + 2 * w * ROWS}", f"v_lshrrev_b32 v{vT1}, 1, v{vL16}",
           f"v_bfi_b32 v{ACCV + 2}, 1, s{sKPH}, v{ACCV + 2}"]),
         (MF(SMm, ACCK, Q[2], False, ("km", 3), ("qB", 3)),
          [f"buffer_store_dwordx2 {vr(ACCV + 2, 2)}, v{vT1}, {WS}, s{sKM} offen offset:2048 sc1" if not NOPUB else None,
           f"v_mov_b32 v{Q[1] + 1}, 0", f"v_mov_b32 v{Q[1] + 2}, 0"]),
         (MF(SX, Q[3], Q[2], False, ("KX", 3, 0), ("qB", 3)),
          [f"v_mov_b64 {vr(Q[5], 2)}, s[{sONES}:{sONES + 1}]", f"v_mov_b64 {vr(Q[5] + 2, 2)}, s[{sONES}:{sONES + 1}]"]),
         (MF(SX + 4, Q[4], Q[2], False, ("KX", 3, 1), ("qB", 3)),
          [f"v_bfi_b32 v{PBQ}, 1, s{sKPH}, v{PBQ}", f"s_mov_b64 exec, s[{sMLO}:{sMLO + 1}]",
           f"buffer_store_dwordx4 {vr(PBQ, 4)}, v{vL16}, {WS}, s{sKM} offen sc1" if not NOPUB else None,
           "s_mov_b64 exec, -1"])])
    stamp(4)
    MX, T1 = vT0, vT1
    MP = X4
    LQ = Q[6]
    P4 = Q[0]
    PB = Q[1]
    OX, OY = Q[2], Q[3]
    ONES = Q[5]
    WB = [Q[4], VXA]
    wo_buf = {k: WB[i % 2] for i, k in enumerate(WO_L)}

    def wo_rd(i):
        return LW(wo_buf[WO_L[i]], ("o",) + WO_L[i])

    pf = [f"v_pk_fma_f32 {vr(b, 2)}, {vr(b, 2)}, s[{sCEXP}:{sCEXP + 1}], {vr(MP, 2)} op_sel_hi:[1,1,0] neg_lo:[0,0,1] neg_hi:[0,0,1]"
          for b in (SMm, SX, SX + 2, SX + 4, SX + 6)]
    ex = [f"v_exp_f32 v{r}, v{r}" for r in [SMm, SMm + 1] + list(range(SX, SX + 8))]
    seq(f"v_max3_f32 v{MX}, v{SMm}, v{SMm + 1}, v{SX}",
        f"v_max3_f32 v{MX}, v{MX}, v{SX + 1}, v{SX + 2}",
        f"v_max3_f32 v{MX}, v{MX}, v{SX + 3}, v{SX + 4}",
        f"v_max3_f32 v{MX}, v{MX}, v{SX + 5}, v{SX + 6}",
        f"v_max_f32 v{MX}, v{MX}, v{SX + 7}",
        f"v_mov_b32 v{T1}, v{MX}",
        f"v_permlane32_swap_b32 v{MX}, v{T1}",
        f"v_max_f32 v{MX}, v{MX}, v{T1}",
        f"v_mov_b32 v{T1}, v{MX}",
        f"v_permlane16_swap_b32 v{MX}, v{T1}",
        f"v_max_f32 v{MX}, v{MX}, v{T1}",
        f"v_mul_f32 v{MP}, s{sCEXP}, v{MX}",
        pf[0], pf[1], ex[0], ex[1], pf[2], ex[2], ex[3], pf[3],
        f"v_cvt_pk_bf16_f32 v{PB}, v{SMm}, v{SMm + 1}", ex[4], pf[4],
        f"v_cvt_pk_bf16_f32 v{PB + 3}, v{SMm}, v{SMm + 1}", ex[5],
        f"v_cvt_pk_bf16_f32 v{P4}, v{SX}, v{SX + 1}", ex[6], ex[7],
        f"v_cvt_pk_bf16_f32 v{P4 + 1}, v{SX + 2}, v{SX + 3}", ex[8], ex[9],
        f"v_cvt_pk_bf16_f32 v{P4 + 2}, v{SX + 4}, v{SX + 5}",
        f"v_cvt_pk_bf16_f32 v{P4 + 3}, v{SX + 6}, v{SX + 7}",
        f"v_mfma_f32_16x16x16_bf16 {vr(LQ, 4)}, {vr(ONES, 2)}, {vr(PB, 2)}, 0",
        f"v_mfma_f32_16x16x16_bf16 {vr(OX, 4)}, {vr(ACCV + 2, 2)}, {vr(PB, 2)}, 0",
        f"v_mfma_f32_16x16x16_bf16 {vr(OY, 4)}, {vr(ACCV + 2, 2)}, {vr(PB + 2, 2)}, 0",
        MF(LQ, ONES, P4, False),
        MF(OX, VXA, P4, False), wo_rd(0)[0] if False else None,
        MF(OY, VXB, P4, False), wo_rd(1)[0], wo_rd(1)[1],
        wo_rd(0)[0],
        f"v_rcp_f32 v{MX}, v{LQ}")
    stamp(5)
    OP = ACCQ + 4
    for i in (0, 2):
        a(f"v_pk_mul_f32 {vr(OX + i, 2)}, {vr(OX + i, 2)}, {vr(MX, 2)} op_sel_hi:[1,0]")
        a(f"v_pk_mul_f32 {vr(OY + i, 2)}, {vr(OY + i, 2)}, {vr(MX, 2)} op_sel_hi:[1,0]")
        a(f"v_cvt_pk_bf16_f32 v{OP + i}, v{OX + i}, v{OY + i}")
        a(f"v_cvt_pk_bf16_f32 v{OP + i + 1}, v{OX + i + 1}, v{OY + i + 1}")
    a(f"ds_write_b128 v{vQR}, {vr(OP, 4)} offset:{L_OB + w * 64}")
    TA = [ACCQ, ACCK, ACCK + 4, ACCV + 4, Q[0], Q[1], Q[6], ACCQ + 4, ACCV]
    OA0, OA1 = Q[2], Q[3]
    seq(wo_rd(0)[1], zero(ACCQ, 4), zero(ACCK, 8), zero(ACCV + 4, 4), zero(Q[0], 8))
    a.barrier(lg=1)
    a(f"ds_read_b128 {vr(OA0, 4)}, v{vOR} offset:{L_OB}")
    a(f"ds_read_b128 {vr(OA1, 4)}, v{vOR} offset:{L_OB + 128}")
    seq(zero(Q[6], 4), zero(ACCV, 4), zero(OP, 4))
    last = pfx + "last"
    seq(f"s_cmp_eq_u32 s{sSTEP}, {NSEG - 1}", f"s_cbranch_scc1 {last}")
    stamp(6)
    ST = [TA[0], TA[4], TA[8]]

    def epi(tau):
        acc = TA[tau]
        dst = ST[tau // 4] + tau % 4
        ops = [f"v_add_f32 v{acc}, v{acc}, v{acc + 2}", f"v_add_f32 v{acc + 1}, v{acc + 1}, v{acc + 3}",
               f"v_cvt_pk_bf16_f32 v{dst}, v{acc}, v{acc + 1}"]
        if tau % 4 == 0:
            ops.append(f"v_bfi_b32 v{dst}, 1, s{sPH}, v{dst}")
        if tau in (3, 7):
            ops.append(f"buffer_store_dwordx4 {vr(ST[tau // 4], 4)}, v{vL16}, {WS}, s{sPW} offen offset:{1024 * (tau // 4)}{sc}")
        if tau == 8:
            ops.append(f"buffer_store_dword v{dst}, v{vL4}, {WS}, s{sPW} offen offset:2048{sc}")
        return ops

    nxt = 2
    fill = []
    pend = []
    for idx in range(18):
        tau, ks = TORD[idx >> 1], idx & 1
        k = ("o", tau, ks)
        if FM[k][0] == "l":
            buf = wo_buf[(tau, ks)]
            use(buf, ("W", k)); use(buf + 4, ("W2", k))
            B = vr(buf, 8)
        else:
            B = opnd(FM[k])
        a(SM(TA[tau], (OA0, OA1)[ks], B))
        if pend:
            seq(pend.pop(0))
        elif idx in (3, 8):
            seq(kdma(idx // 8))
        if FM[k][0] == "l" and nxt < len(WO_L):
            r = wo_rd(nxt)
            seq(r[0])
            pend.append(r[1])
            nxt += 1
        n = 0
        while fill and fill[0][0] <= idx and (n < 2 or not fill[0][1].startswith("v_")):
            n += fill[0][1].startswith("v_")
            a(fill.pop(0)[1])
        if ks == 1:
            fill += [(idx + WOD, t) for t in epi(tau)]
    for _, t in fill:
        a(t)
    stamp(7)
    tog = [f"s_xor_b32 s{r}, s{r}, {MEMB_SLOT}" for r in [sMEMR, sMEMR8]]

    if not HK:
        if w == 2:
            a(f"s_cmp_eq_u32 s{sJOBC}, 0")
            a(f"s_cbranch_scc1 {pfx}nojob")
        LD = [Q[2], Q[3], Q[4], Q[5]]
        SEL, D = VXA, VXB
        loads1 = [f"buffer_load_dwordx4 {vr(LD[i], 4)}, v{vRLD}, {WS}, s{sPR + i} offen sc1" for i in range(4)]
        if w < 2:
            checks = [[f"v_and_b32 v{vT1}, 1, v{LD[i]}", f"v_cmp_ne_u32 {M(i)}, s{sPH}, v{vT1}"] for i in range(4)]
        else:
            checks = [[f"v_xor_b32 v{vT0}, v{LD[i]}, v{LD[i] + 1}", f"v_xor_b32 v{vT1}, v{LD[i] + 2}, v{LD[i] + 3}",
                       f"v_or_b32 v{vT0}, v{vT0}, v{vT1}", f"v_xor_b32 v{vT1}, v{LD[i]}, v{LD[i] + 2}",
                       f"v_or_b32 v{vT0}, v{vT0}, v{vT1}", f"v_xor_b32 v{vT1}, s{sPH}, v{LD[i]}",
                       f"v_or_b32 v{vT0}, v{vT0}, v{vT1}", f"v_and_b32 v{vT0}, 1, v{vT0}",
                       f"v_cmp_ne_u32 {M(i)}, 0, v{vT0}"] for i in range(4)]
        betw = [[MF(D, LD[i], SEL, i == 0)] for i in range(4)]
        stamp(9)
        a(f"v_bfe_u32 v{vT0}, v{vL16}, 4, 4")
        a(f"v_mov_b32 v{vT1}, 0x3f80")
        a(f"v_mov_b32 v{D}, 0x3f800000")
        for d in range(4):
            a(f"v_cmp_eq_u32 vcc, {2 * d}, v{vT0}")
            a(f"v_cmp_eq_u32 s[{sU}:{sU + 1}], {2 * d + 1}, v{vT0}")
            a(f"v_cndmask_b32 v{SEL + d}, 0, v{vT1}, vcc")
            a(f"v_cndmask_b32 v{SEL + d}, v{SEL + d}, v{D}, s[{sU}:{sU + 1}]")
        if D1[w]:
            a(f"s_sleep {D1[w]}")
        poll("p1", loads1, checks, betw)
        stamp(8)
        if stamps:
            a(f"s_mov_b32 s3, s{S_SPIN}")
        seq(f"v_permlane16_swap_b32 v{D}, v{D + 2}", f"v_permlane16_swap_b32 v{D + 1}, v{D + 3}",
            f"s_mov_b64 exec, s[{sMASK}:{sMASK + 1}]",
            f"v_add_f32 v{D}, v{D}, v{D + 2}", f"v_add_f32 v{D + 1}, v{D + 1}, v{D + 3}",
            f"v_cvt_pk_bf16_f32 v{D}, v{D}, v{D + 1}", f"v_min_u32 v{D}, s{sMAXD}, v{D}",
            f"buffer_store_dword v{D}, v{vRST}, {WS}, s{sMEMW} offen{sc}",
            f"v_mov_b32 v{D + 1}, -1",
            f"buffer_store_dword v{D + 1}, v{vRST}, {WS}, s{sMEMZ} offen{sc}",
            f"s_mov_b64 exec, -1")
        if w == 2:
            a(f"s_branch {pfx}jobdone")
            a.label(pfx + "nojob")
            a.restore(([], []))
            a.label(pfx + "jobdone")
            a.vmq = [(frozenset(), "pollx")] * 4 + [(frozenset(), "st")] * 3
    adv = [f"s_add_u32 s{sSTEP}, s{sSTEP}, 1", f"s_bfe_u32 s{sPH}, s{sSTEP}, 0x10001",
           f"s_xor_b32 s{sPW}, s{sPW}, {PART_SLOT}"]
    adv += [f"s_xor_b32 s{r}, s{r}, {PART_SLOT}" for r in ([] if HK else [sPR + i for i in range(4)])]
    adv += [f"s_xor_b32 s{r}, s{r}, {MEMB_SLOT}" for r in ([] if HK else [sMEMW, sMEMZ])]
    adv += [f"s_and_b32 s{S_TMP}, s{sSTEP}, {KM_D - 1}", f"s_mul_i32 s{S_TMP}, s{S_TMP}, {32 * KM_UNIT}",
            f"s_add_u32 s{sKM}, s{sKMB}, s{S_TMP}", f"s_bfe_u32 s{sKPH}, s{sSTEP}, {0x10000 + KM_D.bit_length() - 1}",
            f"s_add_u32 s{sOFL}, s{sOFL}, {FL_STRIDE}"]
    if HK:
        adv += [f"s_cmp_ge_u32 s{sSTEP}, {KM_D - 1}", f"s_cselect_b64 s[{sFMK}:{sFMK + 1}], -1, s[{sFMK}:{sFMK + 1}]",
                f"s_add_u32 s{sKPV}, s{sKPV}, {32 * 8192}"]
    adv += [f"s_add_u32 s{sVF}, s{sVF}, {32 * 8192}",
            f"s_add_u32 s{sKF}, s{sKF}, {32 * 8192}", f"s_add_u32 s{sKP}, s{sKP}, {32 * 8192}",
            f"s_add_u32 s{sFL}, s{sFL}, {FL_STRIDE}"]
    seq(tog)
    a("s_barrier")
    if D2:
        a(f"s_sleep {D2}")
    seq(loads2, adv)
    if not HK:
        a.wait_tag("pollx")
    pre_step()
    a.wait(lg=0)
    if HK:
        trace(a, Q[2], Q[2] + 1, True)
        if DBGT == 1:
            a.force_wait(lg=0)
            for k, (wd, st) in enumerate(((5, 1), (13, 63))):
                a(f"s_lshl_b32 s{S_TMP}, s{sLAY}, 2")
                a(f"s_add_u32 s{S_TMP + 1}, s{S_TMP}, {4 * wd}")
                stamp_max(a, f"s{S_TMP + 1}", Q[2], Q[2] + 1, (sSTEP, st))
    stamp(NST)
    dump_stamps()
    a.restore(([], []))
    a(f"s_branch {head}")
    for t in tails:
        t()
    a.restore(([], []))
    a.label(last)
    a.force_wait(vm=0, lg=0)
    if HK:
        trace(a, Q[2], Q[2] + 1, True)
    a(f"s_branch {done}")
```

```python
from pool import *


def MF16(acc, A, B):
    return f"v_mfma_f32_16x16x16_bf16 {vr(acc, 4)}, {vr(A, 2)}, {vr(B, 2)}, {vr(acc, 4)}"


def role_ta(a, abort, done):
    lane_setup(a, 12)
    vKM, vL8 = 9, 10
    BI, ON, PB, PX, LQ = 236, 16, 20, 24, 28
    SX, SMm = 32, 44
    KMf, VMf, O, OUT = 52, 68, 76, 108
    SET = [("v", 140), ("a", 0)]
    NEG = hex(f32bits(-1e30))
    sQO, sNQ, sRDY, sPN, sKPH, sKMB = sO1, sK3, sPF, sK1, sCL, sCS

    OSC = [" sc1"]

    def publish():
        a(f"s_cmp_lg_u32 s{sPN}, 0")
        a("s_cselect_b64 exec, 1, 0")
        a(f"buffer_store_dword v{vONE}, v{vZERO}, {WS}, s{sPEND} offen{OSC[0]}")
        a("s_mov_b64 exec, -1")
        a(f"s_add_u32 s{sPEND}, s{sPEND}, s{sPN}")
        a(f"s_mov_b32 s{sPN}, 0")

    def fr(st, m, i):
        k, b = SET[st]
        return f"{k}[{b + 32 * m + 4 * i}:{b + 32 * m + 4 * i + 3}]"

    a(f"""
    s_lshl_b32 s{S_TMP}, s{S_ROLE}, 2
    s_add_u32 s{S_TMP}, s{S_TMP}, s{S_WAVE}
    s_lshr_b32 s{sNL}, s{S_TMP}, 5
    s_and_b32 s{sK2}, s{S_TMP}, 31
    s_mov_b32 s{sNS}, 0
    s_mov_b32 s{sK4}, {hex(f32bits(128 ** -0.5 * 1.4426950408889634))}
    v_lshrrev_b32 v{vT0}, 2, v{vC}
    v_and_b32 v{vT1}, 1, v{vC}
    v_lshl_add_u32 v{vT0}, v{vT0}, 1, v{vT1}
    v_lshlrev_b32 v{vKM}, 8, v{vT0}
    v_lshl_add_u32 v{vKM}, v{vG}, 4, v{vKM}
    v_lshrrev_b32 v{vL8}, 1, v{vL16}
    v_mov_b32 v{vT1}, {NEG}
    v_mov_b32 v{PB + 1}, 0
    v_mov_b32 v{PB + 2}, 0
    s_mul_i32 s{sNFL}, s{sNL}, {NSEG * FL_STRIDE}
    s_lshl_b32 s{S_TMP}, s{sK2}, 9
    s_add_u32 s{sNFL}, s{sNFL}, s{S_TMP}
    s_add_u32 s{sNFL}, s{sNFL}, {WS_FLAGS + FL_QKV}
    s_mul_i32 s{sNQ}, s{sNL}, {3 * QKV_M}
    s_lshl_b32 s{S_TMP}, s{sK2}, 13
    s_add_u32 s{sNQ}, s{sNQ}, s{S_TMP}
    s_add_u32 s{sNQ}, s{sNQ}, {WS_QKV}
    s_lshl_b32 s{sO2}, s{sNL}, 11
    s_add_u32 s{sO2}, s{sO2}, s{sK2}
    s_lshl_b32 s{sO3}, s{sO2}, 13
    s_add_u32 s{sO3}, s{sO3}, {WS_OF}
    s_mul_i32 s{sKMB}, s{sNL}, {KM_D * 32}
    s_add_u32 s{sKMB}, s{sKMB}, s{sK2}
    s_lshl_b32 s{sKMB}, s{sKMB}, 12
    s_add_u32 s{sKMB}, s{sKMB}, {WS_KM}
    s_mul_i32 s{sPEND}, s{sNL}, {NSEG * FL_STRIDE}
    s_lshr_b32 s{S_TMP}, s{sK2}, 2
    s_lshl_b32 s{S_TMP}, s{S_TMP}, 7
    s_add_u32 s{sPEND}, s{sPEND}, s{S_TMP}
    s_lshl_b32 s{S_TMP}, s{S_WAVE}, 2
    s_add_u32 s{sPEND}, s{sPEND}, s{S_TMP}
    s_add_u32 s{sPEND}, s{sPEND}, {WS_FLAGS + FL_OF}
    s_mov_b32 s{SRD_C}, s{SRD_WS}
    s_mov_b32 s{SRD_C + 1}, s{SRD_WS + 1}
    s_mov_b32 s{SRD_C + 2}, 0
    s_mov_b32 s{SRD_C + 3}, 0x00020000
    s_mov_b32 s{sRDY}, 0
    s_mov_b32 s{sPN}, 0
    s_lshl_b32 s{sO2}, s{sNL}, 2
    s_add_u32 s{sO2}, s{sO2}, {DB_TEAM}
    """)
    for i in range(4):
        a(f"v_mov_b32 v{ON + i}, 0x3f803f80")
        a(f"v_lshl_add_u32 v{vT0}, v{vG}, 2, {i}")
        a(f"v_cmp_le_u32 vcc, v{vT0}, v{vC}")
        a(f"v_cndmask_b32 v{BI + i}, v{vT1}, v{vZERO}, vcc")

    def qkv_ops(st, srd_):
        ops = []
        for m in range(3):
            for i in range(8):
                pre = [f"s_add_u32 s{sQO}, s{sNQ}, {m * QKV_M + i * 1024}"] if i % 4 == 0 else []
                ops.append(pre + [f"buffer_load_dwordx4 {fr(st, m, i)}, v{vL16}, {srd_}, s{sQO} offen offset:{(i % 4) * 1024}"])
        return ops

    km_ops = ([f"buffer_load_dwordx4 {vr(KMf + 4 * j, 4)}, v{vKM}, {WS}, s{sO2} offen offset:{j * 64} sc1" for j in range(4)] +
              [f"buffer_load_dwordx2 {vr(VMf + 2 * j, 2)}, v{vL8}, {WS}, s{sO2} offen offset:{2048 + j * 512} sc1" for j in range(4)])

    def km_check():
        heads = [KMf + 4 * j for j in range(4)] + [VMf + 2 * j for j in range(4)]
        a(f"v_xor_b32 v{vT0}, s{sKPH}, v{heads[0]}")
        for r in heads[1:]:
            a(f"v_xor_b32 v{vT1}, s{sKPH}, v{r}")
            a(f"v_or_b32 v{vT0}, v{vT0}, v{vT1}")
        a(f"v_and_b32 v{vT0}, 1, v{vT0}")
        a(f"v_cmp_ne_u32 vcc, 0, v{vT0}")

    MX, T1 = vT0, vT1
    dbg_wait(a, DB_POOL, N_POOL, vT0, vT1, abort, "Lta_ini", 64)
    dbg_wait(a, f"s{sO2}", 32, vT0, vT1, abort, "Lta_team", 64)
    trace(a, vT0, vT1)
    class_pure(a, 3, sF1, vT0, vT1, abort, "Lta_pure")
    a(f"s_cmp_lg_u32 s{sNL}, 0")
    a(f"s_cselect_b32 s{sF1}, 0, s{sF1}")
    a(f"s_cmp_eq_u32 s{sF1}, 0")
    a("s_cbranch_scc1 LtaS0")
    for osc, st in (("", 0), ("", 1), (" sc1", 0), (" sc1", 1)):
        pre = "LtaS" if osc else "LtaF"
        nm = f"{pre}{st}"
        a.label(nm)
        a.restore(([], []))
        OSC[0] = osc
        a(f"s_and_b32 s{S_TMP}, s{sNS}, {KM_D - 1}")
        a(f"s_mul_i32 s{S_TMP}, s{S_TMP}, {32 * KM_UNIT}")
        a(f"s_add_u32 s{sO2}, s{sKMB}, s{S_TMP}")
        a(f"s_bfe_u32 s{sKPH}, s{sNS}, {0x10000 + KM_D.bit_length() - 1}")
        a(f"s_cmp_eq_u32 s{sRDY}, 1")
        a(f"s_cbranch_scc1 {nm}_have")
        a.force_wait(vm=0)
        publish()
        flag_block(a, nm + "_f", abort)
        seq(a, qkv_ops(st, WS))
        a.label(nm + "_have")
        a.restore(([], []))
        a(f"s_add_u32 s{S_TMP}, s{sNFL}, {FL_STRIDE}")
        a(f"buffer_load_dword v{vFL1}, v{vFLA}, {WS}, s{S_TMP} offen sc1")
        seq(a, km_ops)
        a.force_wait(vm=9)
        publish()
        for j in range(4):
            for (tt, kt, d) in ((0, 0, 0), (1, 0, 4), (1, 1, 8)):
                a(MF(SX + d, fr(st, 1, 2 * j + kt), fr(st, 0, 2 * j + tt), "0" if j == 0 else None))
        a.force_wait(vm=1)
        a(f"""
        v_cmp_eq_u32 vcc, 0, v{vFL1}
        s_add_u32 s{sNQ}, s{sNQ}, {32 * 8192}
        s_add_u32 s{sNFL}, s{sNFL}, {FL_STRIDE}
        s_add_u32 s{sNS}, s{sNS}, 1
        s_cmp_eq_u64 vcc, 0
        s_cselect_b32 s{sRDY}, 1, 0
        s_cmp_lt_u32 s{sNS}, {NSEG}
        s_cselect_b32 s{sRDY}, s{sRDY}, 0
        s_cmp_eq_u32 s{sRDY}, 1
        s_cselect_b32 s{SRD_C + 2}, {WS_BYTES}, 0
        """)
        for d, diag in ((0, 1), (4, 0), (8, 1)):
            for i in range(4):
                r = SX + d + i
                a(f"v_fma_f32 v{r}, v{r}, s{sK4}, v{BI + i}" if diag else f"v_mul_f32 v{r}, s{sK4}, v{r}")
        km_check()
        a(f"s_cbranch_vccz {nm}_r")
        a(f"s_mov_b32 s{S_SPIN}, 0")
        a.label(nm + "_rp")
        a.restore(([], []))
        seq(a, km_ops)
        spin_check(a, abort)
        a.force_wait(vm=0)
        km_check()
        a(f"s_cbranch_vccz {nm}_r")
        a(f"s_sleep {TASLP}")
        a(f"s_branch {nm}_rp")
        a.label(nm + "_r")
        a.restore(([], []))
        nxt = qkv_ops(1 - st, PFS)
        seq(a, nxt.pop(0), nxt.pop(0))
        for j in range(4):
            for tt in range(2):
                a(MF(SMm + 4 * tt, vr(KMf + 4 * j, 4), fr(st, 0, 2 * j + tt), "0" if j == 0 else None))
        for tt in range(2):
            xs = list(range(SX, SX + 4)) if tt == 0 else list(range(SX + 4, SX + 12))
            ms = [SMm + 4 * tt, SMm + 4 * tt + 1]
            vals = xs + ms
            a(f"v_max3_f32 v{MX}, v{xs[0]}, v{xs[1]}, v{xs[2]}")
            a(f"v_max_f32 v{MX}, v{MX}, v{xs[3]}")
            for i in range(4, len(xs), 2):
                a(f"v_max3_f32 v{MX}, v{MX}, v{xs[i]}, v{xs[i + 1]}")
            for r in ms:
                a(f"v_mul_f32 v{r}, s{sK4}, v{r}")
            a(f"v_max3_f32 v{MX}, v{MX}, v{ms[0]}, v{ms[1]}")
            seq(a, f"v_mov_b32 v{T1}, v{MX}", nxt.pop(0), f"v_permlane32_swap_b32 v{MX}, v{T1}", f"v_max_f32 v{MX}, v{MX}, v{T1}",
                f"v_mov_b32 v{T1}, v{MX}", nxt.pop(0), f"v_permlane16_swap_b32 v{MX}, v{T1}", f"v_max_f32 v{MX}, v{MX}, v{T1}",
                [f"v_sub_f32 v{r}, v{r}, v{MX}" for r in vals], [f"v_exp_f32 v{r}, v{r}" for r in vals])
            for i in range(4):
                if 2 * i < len(xs):
                    a(f"v_cvt_pk_bf16_f32 v{PX + i}, v{xs[2 * i]}, v{xs[2 * i + 1]}")
                else:
                    a(f"v_mov_b32 v{PX + i}, 0")
            a(f"v_cvt_pk_bf16_f32 v{PB}, v{ms[0]}, v{ms[1]}")
            a(f"v_cvt_pk_bf16_f32 v{PB + 3}, v{ms[0]}, v{ms[1]}")
            a(MF(LQ, vr(ON, 4), vr(PX, 4), "0"))
            for t in range(8):
                a(MF(O + 4 * t, fr(st, 2, t), vr(PX, 4), "0"))
                if t & 1 and nxt:
                    seq(a, nxt.pop(0))
                if t == 5:
                    a(MF16(LQ, ON, PB))
            for t in range(8):
                a(MF16(O + 4 * t, VMf + 2 * (t >> 1), PB + 2 * (t & 1)))
                if t == 1:
                    a(f"v_rcp_f32 v{T1}, v{LQ}")
                if t >= 3 and t & 1:
                    norm(a, O, OUT, T1, (t - 3) >> 1, tt, sO3, nxt, osc)
            norm(a, O, OUT, T1, 3, tt, sO3, nxt, osc)
        seq(a, nxt)
        a(f"s_add_u32 s{sO3}, s{sO3}, {32 * 8192}")
        a(f"s_mov_b32 s{sPN}, {FL_STRIDE}")
        trace_at(a, sNS, vT0, vZERO)
        trace(a, vT0, vT1)
        a(f"s_cmp_ge_u32 s{sNS}, {NSEG}")
        a(f"s_cbranch_scc1 {pre}_end")
        if st == 1:
            a(f"s_branch {pre}0")
            a.label(f"{pre}_end")
            a.restore(([], []))
            a.force_wait(vm=0)
            publish()
            a(f"s_branch {done}")


TASLP = int(os.environ.get("TASLP", "2"))


def norm(a, O, OUT, T1, j, tt, sO3, nxt, osc=" sc1"):
    for i in range(4):
        x, y = O + 8 * j + i, O + 8 * j + 4 + i
        a(f"v_mul_f32 v{x}, v{T1}, v{x}")
        a(f"v_mul_f32 v{y}, v{T1}, v{y}")
        a(f"v_cvt_pk_bf16_f32 v{OUT + 16 * tt + 4 * j + i}, v{x}, v{y}")
    if j % 2 == 0:
        a(f"s_add_u32 s{S_TMP}, s{sO3}, {j * 2048}")
    a(f"buffer_store_dwordx4 {vr(OUT + 16 * tt + 4 * j, 4)}, v{vL16}, {WS}, s{S_TMP} offen offset:{(j % 2) * 2048 + tt * 1024}{osc}")
    if nxt:
        seq(a, nxt.pop(0))


TW_S0 = int(os.environ.get("TW_S0", "34"))
TWPF = int(os.environ.get("TWPF", "1"))
OUTSC = os.environ.get("OUTSC", "")
TWLD = {"": "", "nt": " nt", "sc1": " sc1", "sc0": " sc0"}[os.environ.get("TWLD", "")]


def role_tw(a, abort, done, nt=os.environ.get("NT_W", "")):
    lane_setup(a, 32)
    vA0, vSEL, vRES, vROW, vSTO, vRED, vMBT, vRD2, OUTP = 9, 11, 12, 13, 14, 48, 49, 50, 52
    nst_ = 0
    ACC, RES, SS, RING, ZB = 16, 40, 44, 64, 128
    sSL = sK2
    TWLDW = int(os.environ.get("TWLDW", "1"))
    TWG = int(os.environ.get("TWG", "24"))
    if TWLDW:
        a(f"s_cmp_lt_u32 s{S_ROLE}, {TWG}")
        a("s_cbranch_scc1 Ltw_noord")
        dbg_wait(a, DB_LOADED, TWLDW, vT0, vT1, abort, "Ltw_ord", 64)
        a.label("Ltw_noord")
    srd(a, SRD_A, KA_BWO, 4096 * 1152)
    srd(a, SRD_B, KA_OUT, 2048 * 1152)
    A_ = f"s[{SRD_A}:{SRD_A + 3}]"
    OUTS = f"s[{SRD_B}:{SRD_B + 3}]"
    a(f"""
    s_mul_i32 s{S_TMP}, s{S_ROLE}, 43
    s_lshr_b32 s{sN0}, s{S_TMP}, 9
    s_mul_i32 s{S_TMP}, s{sN0}, 12
    s_sub_u32 s{sSL}, s{S_ROLE}, s{S_TMP}
    s_add_u32 s{sN1}, s{sN0}, {TW_S0}
    s_cmp_eq_u32 s{sN0}, 2
    s_cselect_b32 s{sN1}, 0, s{sN1}
    s_cselect_b32 s{sN0}, {NSEG}, s{sN0}
    s_mul_i32 s{sK1}, s{sSL}, 96
    s_mul_i32 s{S_TMP}, s{S_WAVE}, {1024 * 1152}
    s_add_u32 s{sK1}, s{sK1}, s{S_TMP}
    v_mul_u32_u24 v{vT0}, {4 * 1152}, v{vG}
    v_lshl_add_u32 v{vA0}, v{vC}, 2, v{vT0}
    v_add_u32 v{vA0 + 1}, {16 * 1152}, v{vA0}
    v_and_b32 v{vT1}, 14, v{vC}
    v_lshl_add_u32 v{vRES}, v{vT1}, 1, v{vT0}
    v_add_u32 v{vRES}, 64, v{vRES}
    v_add_u32 v{vROW}, {16 * 1152}, v{vRES}
    v_and_b32 v{vT0}, 1, v{vC}
    v_mov_b32 v{vSEL}, s{sSELX}
    v_mov_b32 v{vT1}, s{sSELY}
    v_cmp_eq_u32 vcc, 1, v{vT0}
    v_cndmask_b32 v{vSEL}, v{vSEL}, v{vT1}, vcc
    """)
    STG = 16
    n = 128
    D = 14
    for i in range(n + D):
        if i < n:
            kk, d = i >> 2, i & 3
            r = STG + 4 * (i % 28)
            a(f"s_add_u32 s{S_TMP}, s{sK1}, {(32 * kk + d) * 1152}")
            for q, ad in enumerate((vA0, vA0 + 1, vRES, vROW)):
                a(f"buffer_load_dword v{r + q}, v{ad}, {A_}, s{S_TMP} offen {nt}")
        j = i - D
        if j >= 0:
            kk, d = j >> 2, j & 3
            r = STG + 4 * (j % 28)
            a(f"v_perm_b32 v{vT0}, v{r + 1}, v{r}, s{sSELX}")
            a(f"v_perm_b32 v{vT1}, v{r + 1}, v{r}, s{sSELY}")
            a(f"v_perm_b32 v{ZB + 4 * kk + d}, v{r + 3}, v{r + 2}, v{vSEL}")
            a(f"v_accvgpr_write_b32 a{8 * kk + d}, v{vT0}")
            a(f"v_accvgpr_write_b32 a{8 * kk + 4 + d}, v{vT1}")
    a(f"""
    s_and_b32 s{sK3}, s{S_WAVE}, 1
    s_lshl_b32 s{S_TMP}, s{sK3}, 4
    v_add_u32 v{vT0}, s{S_TMP}, v{vC}
    v_lshlrev_b32 v{vSTO}, 4, v{vT0}
    v_mul_u32_u24 v{vROW}, 1152, v{vT0}
    s_mul_i32 s{S_TMP}, s{sSL}, 96
    v_add_u32 v{vROW}, s{S_TMP}, v{vROW}
    s_mul_i32 s{S_TMP}, s{sSL}, 3072
    v_add_u32 v{vRES}, s{S_TMP}, v{vSTO}
    s_lshl_b32 s{S_TMP}, s{sSL}, 9
    v_add_u32 v{vSTO}, s{S_TMP}, v{vSTO}
    s_lshl_b32 s{sK1}, s{sSL}, 7
    s_lshl_b32 s{S_TMP}, s{S_WAVE}, 2
    s_add_u32 s{sK1}, s{sK1}, s{S_TMP}
    s_add_u32 s{sK1}, s{sK1}, {WS_FLAGS + FL_XA + NSEG * FL_STRIDE}
    s_mul_i32 s{S_TMP}, s{S_WAVE}, 6144
    v_add_u32 v{vRED}, s{S_TMP}, v{vL16}
    v_mov_b32 v{vMBT}, 0x10000
    v_lshrrev_b32 v51, 4, v{vL16}
    v_min_u32 v51, 42, v51
    s_mul_i32 s{S_TMP}, s{sSL}, 43
    v_add_u32 v51, s{S_TMP}, v51
    v_lshlrev_b32 v51, 7, v51
    s_cmp_gt_u32 s{S_WAVE}, 1
    s_cbranch_scc1 Ltw_z
    """)
    for z in (0, 1):
        nm = "LtwZ" if z else "LtwX"
        if z:
            a.label("Ltw_z")
            a.restore(([], []))
            a(f"""
            v_lshrrev_b32 v{vT0}, 1, v{vG}
            v_lshl_add_u32 v{vRES}, v{vT0}, 9, v{vRES}
            v_and_b32 v{vT0}, 1, v{vG}
            v_lshl_add_u32 v{vRES}, v{vT0}, 3, v{vRES}
            v_add_u32 v{vRES}, 2048, v{vRES}
            v_lshl_add_u32 v{vROW}, v{vG}, 3, v{vROW}
            v_add_u32 v{vROW}, 64, v{vROW}
            v_add_u32 v{vSTO}, 8, v{vSTO}
            """)
        else:
            a(f"v_lshl_add_u32 v{vRES}, v{vG}, 9, v{vRES}")
            a(f"v_lshl_add_u32 v{vROW}, v{vG}, 4, v{vROW}")
        st = "dwordx2" if z else "dwordx4"
        nq = 1 if z else 2
        nv = 4 * nq
        R = ACC
        RDL = [ACC + 8, ACC + 12, ACC + 16, ACC + 20, 56, 60, RING + 60, OUTP]
        RD = lambda k: RDL[k]

        def step1():
            return [f"s_cmp_lt_u32 s{sN1}, {TW_S0 - 1}", f"s_cselect_b32 s{sLEFT}, 1, 3"]

        def addr_next():
            return [f"s_lshl_b32 s{sO1}, s{sNO}, 18", f"s_add_u32 s{sO1}, s{sO1}, s{sWQ}",
                    f"s_mul_i32 s{sNX}, s{sNL}, {2 * X_BYTES}", f"s_mul_i32 s{S_TMP}, s{sNS}, {X_SEG}",
                    f"s_add_u32 s{sNX}, s{sNX}, s{S_TMP}", f"s_add_u32 s{sNX}, s{sNX}, {WS_X + X_BYTES}"]

        def ld(i, srd_):
            if i % 4 == 0:
                a(f"s_add_u32 s{sO3}, s{sO1}, {i * 1024}")
            a(f"buffer_load_dwordx4 {vr(RING + 4 * (i % 16), 4)}, v{vL16}, {srd_}, s{sO3} offen offset:{(i % 4) * 1024}{TWLD}")

        def line_pf(srd_):
            if TWPF:
                a(f"buffer_load_dword v10, v51, {srd_}, s{sO1} offen")
                a.vmq.pop()

        def first_loads(srd_):
            line_pf(srd_)
            for i in range(15):
                ld(i, srd_)
            a(f"buffer_load_{st} {vr(RES, nv // 2)}, v{vRES}, {srd_}, s{sNX} offen")

        def w0(fn, lab):
            if not z:
                a(f"s_cmp_lg_u32 s{S_WAVE}, 0")
                a(f"s_cbranch_scc1 {lab}")
                sn = a.snap()
                fn()
                a.restore(sn)
                a.label(lab)

        def post():
            a(f"v_mov_b32 v{vT0}, s{sDEC}")
            a(f"ds_write_b32 v{vMBT}, v{vT0}")

        a(f"""
        s_lshl_b32 s{sWQ}, s{S_WAVE}, 16
        s_add_u32 s{sWQ}, s{sWQ}, {WS_OF}
        s_mov_b32 s{sPEND}, 0
        s_mov_b32 s{SRD_C}, s{SRD_WS}
        s_mov_b32 s{SRD_C + 1}, s{SRD_WS + 1}
        s_mov_b32 s{SRD_C + 2}, 0
        s_mov_b32 s{SRD_C + 3}, 0x00020000
        s_mul_i32 s{S_TMP}, s{sK3}, 3072
        v_add_u32 v{vRD2}, s{S_TMP}, v{vL16}
        """)
        a(f"ds_write2_b32 v{vMBT}, v{vZERO}, v{vZERO} offset0:0 offset1:1")
        a.wait(lg=0)
        dbg_wait(a, DB_POOL, N_POOL, vT0, vT1, abort, nm + "_ini")
        a.label(nm + "_idle")
        a.restore(([], []))
        w0(lambda: (poll2(a, nm + "_p", abort, FL_OF, 0), post(), a.wait(lg=0)), nm + "_nw0")
        a("s_barrier")
        a(f"ds_read_b32 v{vT1}, v{vMBT}")
        a(f"v_xor_b32 v{vMBT}, 4, v{vMBT}")
        a(f"v_readfirstlane_b32 s{sDEC}, v{vT1}")
        a(f"s_cmp_eq_u32 s{sDEC}, 0")
        a(f"s_cbranch_scc1 {abort}")
        seq(a, step1(), take(sDEC, 2, f"s{sLEFT}"), addr_next(), f"s_cmp_ge_u32 s{sNS}, {NSEG}", f"s_cbranch_scc1 {abort}")
        first_loads(WS)
        for _ in range(nst_):
            a.vmq.append((frozenset(), "st"))
        a.label(nm + "_item")
        trace(a, vT0, vT1, True) if TRACE == 1 else None
        a(f"s_mov_b32 s{sCL}, s{sNL}")
        a(f"s_mov_b32 s{sCS}, s{sNS}")
        a(f"s_mov_b32 s{sO2}, s{sNX}")
        a.vmq = a.vmq[:16]
        for i in range(64):
            kk, tt = i >> 1, i & 1
            ld((i + 15) % 64, WS if i + 15 < 64 else PFS)
            b = vr(RING + 4 * (i % 16), 4)
            c = "0" if kk == 0 else None
            a(MF(ACC + 12 * tt, ar(8 * kk, 4), b, c))
            a(MF(ACC + 12 * tt + 4, ar(8 * kk + 4, 4), b, c))
            a(MF(ACC + 12 * tt + 8, vr(ZB + 4 * kk, 4), b, c))
            if i == 17:
                a(f"s_cmp_lg_u32 s{sPEND}, 0")
                a("s_cselect_b64 exec, 1, 0")
                a(f"buffer_store_dword v{vONE}, v{vZERO}, {WS}, s{sPEND} offen sc1")
                a("s_mov_b64 exec, -1")
                a(f"s_mov_b32 s{sPEND}, 0")
            if i == 26:
                w0(lambda: (cand_addr(a, FL_OF), sample2(a)), nm + "_nw1")
            if i == 44:
                w0(lambda: (decide(a, 0), post(), a.force_wait(lg=0)), nm + "_nw2")
                a("s_barrier")
                a(f"ds_read_b32 v{vT1}, v{vMBT}")
                a(f"v_xor_b32 v{vMBT}, 4, v{vMBT}")
            if i == 47:
                a(f"v_readfirstlane_b32 s{sDEC}, v{vT1}")
                seq(a, step1(), take(sDEC, 2, f"s{sLEFT}"))
            if i == 48:
                seq(a, f"s_cmp_lt_u32 s{sNS}, {NSEG}", f"s_cselect_b32 s{sDEC}, s{sDEC}, 0")
                seq(a, addr_next(), f"s_cmp_lg_u32 s{sDEC}, 0", f"s_cselect_b32 s{SRD_C + 2}, {WS_BYTES}, 0")
                line_pf(PFS)
        a.nop(6)
        for q in range(6):
            a(f"ds_write_b128 v{vRED}, {vr(ACC + 4 * q, 4)} offset:{q * 1024}")
        a.force_wait(lg=0)
        a("s_barrier")
        for wv in range(4):
            for q in range(nq):
                a(f"ds_read_b128 {vr(RD(wv * nq + q), 4)}, v{vRD2} offset:{wv * 6144 + (2 if z else q) * 1024}")
        a(f"v_xor_b32 v{vRED}, 0x8000, v{vRED}")
        a(f"v_xor_b32 v{vRD2}, 0x8000, v{vRD2}")
        if z:
            for i in range(2):
                a(f"v_lshlrev_b32 v{R + 2 * i}, 16, v{RES + i}")
                a(f"v_and_b32 v{R + 2 * i + 1}, 0xffff0000, v{RES + i}")
        else:
            for i in range(4):
                a(f"v_lshlrev_b32 v{R + i}, 16, v{RES + i}")
                a(f"v_and_b32 v{R + 4 + i}, 0xffff0000, v{RES + i}")
        a(f"buffer_load_{st} {vr(RES, nv // 2)}, v{vRES}, {PFS}, s{sNX} offen")
        for wv in range(4):
            for i in range(nv):
                a(f"v_add_f32 v{R + i}, v{R + i}, v{RD(wv * nq + i // 4) + i % 4}")
        if z:
            a(f"v_cvt_pk_bf16_f32 v{OUTP}, v{R}, v{R + 1}")
            a(f"v_cvt_pk_bf16_f32 v{OUTP + 1}, v{R + 2}, v{R + 3}")
        else:
            for i in range(4):
                a(f"v_cvt_pk_bf16_f32 v{OUTP + i}, v{R + i}, v{R + 4 + i}")
        a(f"s_cmp_eq_u32 s{sCL}, 0")
        a(f"s_cbranch_scc1 {nm}_l0")
        win = list(a.win)
        sn = a.snap()
        a(f"s_mul_i32 s{S_TMP}, s{sCS}, {32 * 1152}")
        a(f"buffer_store_{st} {vr(OUTP, nv // 2)}, v{vROW}, {OUTS}, s{S_TMP} offen{OUTSC}")
        a(f"s_cmp_lg_u32 s{sDEC}, 0")
        a(f"s_cbranch_scc1 {nm}_item")
        a.label(nm + "_chk")
        a(f"s_min_u32 s{S_TMP}, s{sN0}, s{sN1}")
        a(f"s_cmp_lt_u32 s{S_TMP}, {NSEG}")
        a(f"s_cbranch_scc1 {nm}_idle")
        trace(a, vT0, vT1, True) if TRACE != 4 else None
        stamp_max(a, 7, vT0, vT1) if DBGT == 1 else None
        a(f"s_branch {done}")
        a.label(nm + "_l0")
        a.win = win
        a.restore(sn)
        a(f"s_add_u32 s{sO2}, s{sO2}, {X_BYTES}")
        a(f"buffer_store_{st} {vr(OUTP, nv // 2)}, v{vRES}, {WS}, s{sO2} offen sc1")
        a(f"v_add_f32 v{SS}, v{R}, v{R + 1}")
        a(f"v_mul_f32 v{SS + 1}, v{R}, v{R}")
        a(f"v_fmac_f32 v{SS + 1}, v{R + 1}, v{R + 1}")
        for i in range(2, nv):
            a(f"v_add_f32 v{SS}, v{SS}, v{R + i}")
            a(f"v_fmac_f32 v{SS + 1}, v{R + i}, v{R + i}")
        for sw in (32, 16):
            seq(a, f"v_mov_b32 v{SS + 2}, v{SS}", f"v_mov_b32 v{SS + 3}, v{SS + 1}",
                f"v_permlane{sw}_swap_b32 v{SS}, v{SS + 2}", f"v_permlane{sw}_swap_b32 v{SS + 1}, v{SS + 3}",
                f"v_add_f32 v{SS}, v{SS}, v{SS + 2}", f"v_add_f32 v{SS + 1}, v{SS + 1}, v{SS + 3}")
        a(f"""
        s_mul_i32 s{S_TMP}, s{sCS}, {ST_SEG}
        s_add_u32 s{S_TMP}, s{S_TMP}, {WS_ST + 2 * ST_BYTES}
        s_mov_b64 exec, 0xffff
        buffer_store_dwordx2 {vr(SS, 2)}, v{vSTO}, {WS}, s{S_TMP} offen sc1
        s_mov_b64 exec, -1
        s_mul_i32 s{sPEND}, s{sCS}, {FL_STRIDE}
        s_add_u32 s{sPEND}, s{sPEND}, s{sK1}
        """)
        trace_at(a, sCS, vT0, vZERO)
        a(f"s_cmp_lg_u32 s{sDEC}, 0")
        a(f"s_cbranch_scc1 {nm}_item")
        a.force_wait(vm=0)
        flag_out(a, sPEND)
        a(f"s_mov_b32 s{sPEND}, 0")
        a(f"s_branch {nm}_chk")
```

```python
import sys, os
from common import *
import role_r2 as R
import pool, pool2, role_t

MAIN = KNAME + "_kernel"
INIT = "init_kernel"
def kd(name, vgpr, acc, sgpr=102):
    return f""".p2align 6
.amdhsa_kernel {name}
  .amdhsa_next_free_vgpr {vgpr}
  .amdhsa_next_free_sgpr {sgpr}
  .amdhsa_accum_offset {acc}
  .amdhsa_group_segment_fixed_size 0
  .amdhsa_kernarg_size 104
  .amdhsa_user_sgpr_count 2
  .amdhsa_user_sgpr_kernarg_segment_ptr 1
  .amdhsa_system_sgpr_workgroup_id_x 1
.end_amdhsa_kernel
"""


N_INIT = 123


def pool_init(a):
    WS = f"s[{SRD_WS}:{SRD_WS + 3}]"
    Q_ = 6
    XQ = N_INIT - 64
    srd(a, SRD_A, KA_X, 2048 * 1152)
    a(f"""
    v_lshlrev_b32 v7, 4, v0
    v_mov_b32 v12, 0
    v_mov_b32 v13, 0
    v_mov_b32 v14, 0
    v_mov_b32 v15, 0
    s_mov_b32 s46, s{Q_}
    Li_loop:
    """)
    a(f"""
    s_cmp_ge_u32 s46, 136
    s_cbranch_scc1 Li_nofl
    s_mul_i32 s41, s46, {FL_STRIDE}
    s_add_u32 s41, s41, {WS_FLAGS}
    s_sub_u32 s42, s46, 128
    s_lshl_b32 s42, s42, 12
    s_add_u32 s42, s42, {WS_ZERO}
    s_cmp_ge_u32 s46, 128
    s_cselect_b32 s41, s42, s41
    buffer_store_dwordx4 v[12:15], v7, {WS}, s41 offen sc1
    s_cbranch_scc1 Li_nofl
    """)
    for i in range(1, 6):
        a(f"s_add_u32 s41, s41, 4096")
        if i == 5:
            a("v_cmp_gt_u32 vcc, 128, v0")
            a("s_and_saveexec_b64 s[42:43], vcc")
            a("s_cbranch_execz Li_fl5")
        a(f"buffer_store_dwordx4 v[12:15], v7, {WS}, s41 offen sc1")
    a("Li_fl5:")
    a("s_mov_b64 exec, s[42:43]")
    a("Li_nofl:")
    a(f"""
    s_cmp_ge_u32 s46, 64
    s_cbranch_scc1 Li_rest
    s_mul_i32 s42, s46, {ST_SEG}
    s_add_u32 s42, s42, {WS_ST}
    s_add_u32 s43, s42, 2048
    buffer_store_dwordx4 v[12:15], v7, {WS}, s43 offen sc1
    s_branch Li_done
    Li_rest:
    s_cmp_ge_u32 s46, 192
    s_cbranch_scc1 Li_done
    s_sub_u32 s41, s46, 64
    s_lshr_b32 s42, s41, 6
    s_and_b32 s41, s41, 63
    s_mul_i32 s42, s42, {2 * ST_BYTES}
    s_mul_i32 s41, s41, {ST_SEG}
    s_add_u32 s41, s41, s42
    s_add_u32 s41, s41, {WS_ST + ST_BYTES + 9 * 512}
    v_cmp_gt_u32 vcc, 96, v0
    s_and_saveexec_b64 s[44:45], vcc
    s_cbranch_execz Li_rest2
    buffer_store_dwordx4 v[12:15], v7, {WS}, s41 offen sc1
    Li_rest2:
    s_mov_b64 exec, s[44:45]
    Li_done:
    s_add_u32 s46, s46, {N_INIT}
    s_cmp_lt_u32 s46, 192
    s_cbranch_scc1 Li_loop
    """)
    a(f"""
    v_and_b32 v1, 31, v0
    v_lshrrev_b32 v2, 5, v0
    v_mul_u32_u24 v3, 1152, v1
    v_mul_u32_u24 v5, 144, v2
    v_add_u32 v3, v3, v5
    s_sub_u32 s47, s{Q_}, {XQ}
    s_mul_i32 s41, s47, {32 * 1152}
    s_cmp_lt_u32 s{Q_}, {XQ}
    s_cselect_b32 s41, 0x7f000000, s41
    """)
    for i in range(9):
        a(f"buffer_load_dwordx4 {vr(64 + 4 * i, 4)}, v3, s[{SRD_A}:{SRD_A + 3}], s41 offen offset:{16 * i}")
    a.force_wait(vm=9)
    a("s_barrier")
    a(f"s_cmp_lg_u32 s{S_WAVE}, 0")
    a("s_cbranch_scc1 Li_mid")
    dbg_add(a, DB_POOL, 2, 3)
    a.label("Li_mid")
    a(f"s_cmp_lt_u32 s{Q_}, {XQ}")
    a("s_cbranch_scc1 Li_end")
    a.force_wait(vm=0)
    a(f"""
    v_and_b32 v1, 31, v0
    v_lshrrev_b32 v2, 5, v0
    v_mul_u32_u24 v4, {9 * 512}, v2
    v_lshl_add_u32 v4, v1, 4, v4
    s_mul_i32 s41, s47, {X_SEG}
    s_add_u32 s41, s41, {WS_X}
    s_mul_i32 s42, s47, {ST_SEG}
    s_add_u32 s42, s42, {WS_ST}
    v_mov_b32 v60, 0
    v_mov_b32 v61, 0
    """)
    for i in range(9):
        if i == 8:
            a("v_add_u32 v4, 4096, v4")
        a(f"buffer_store_dwordx4 {vr(64 + 4 * i, 4)}, v4, {WS}, s41 offen offset:{512 * (i % 8)} sc1")
    a("v_mov_b32 v62, 0x3f803f80")
    for r in range(64, 100):
        a(f"v_dot2c_f32_bf16 v60, v{r}, v62")
        a(f"v_dot2c_f32_bf16 v61, v{r}, v{r}")
    a.nop(4)
    a(f"""
    v_lshrrev_b32 v5, 1, v2
    v_lshlrev_b32 v5, 9, v5
    v_lshl_add_u32 v5, v1, 4, v5
    v_and_b32 v6, 1, v2
    v_lshl_add_u32 v5, v6, 3, v5
    buffer_store_dwordx2 v[60:61], v5, {WS}, s42 offen sc1
    """)
    a.force_wait(vm=0)
    dbg_wait(a, DB_POOL, N_POOL, 5, 6, "L_abort", "Li_pw", 2)
    a(f"""
    s_cmp_lg_u32 s{S_WAVE}, 0
    s_cbranch_scc1 Li_end
    v_lshrrev_b32 v5, 2, v0
    v_lshlrev_b32 v5, 7, v5
    v_and_b32 v6, 3, v0
    v_lshl_add_u32 v5, v6, 2, v5
    v_mov_b32 v6, 1
    s_mul_i32 s41, s47, {FL_STRIDE}
    s_mov_b32 exec_lo, -1
    s_mov_b32 exec_hi, 0xffff
    s_add_u32 s41, s41, {WS_FLAGS}
    buffer_store_dword v6, v5, {WS}, s41 offen offset:{FL_XA} sc1
    s_mov_b64 exec, -1
    """)
    if DBGT == 2:
        stamp_max(a, 14, 5, 6, (47, 0))
    a.label("Li_end")
    a.restore(([], []))


def init_index(a, sX, sTK):
    idx = {"P": 0, "W": 0, "T": 0, "A": 0, "O": 0}
    crit = {"P": 48, "A": 16, "O": 5, "W": 0, "T": 0}
    q = 0
    for cls, lst in ROLE_MAP.items():
        a(f"s_cmp_lg_u32 s{sX}, {cls}")
        a(f"s_cbranch_scc1 L_ii{cls}_no")
        runs, t0 = [], 0
        for ch, n in lst:
            for i in range(n):
                c = idx[ch] < crit[ch]
                idx[ch] += 1
                if runs and runs[-1][2] == c:
                    runs[-1][1] += 1
                else:
                    runs.append([t0 + i, t0 + i + 1, c])
            t0 += n
        if t0 < 32:
            if runs[-1][2]:
                runs.append([t0, 32, False])
            else:
                runs[-1][1] = 32
        for a0, a1, c in runs:
            a(f"s_cmp_lt_u32 s{sTK}, {a1}")
            if c:
                a("s_cbranch_scc1 L_noinit")
            else:
                a(f"s_add_u32 s6, s{sTK}, {(q - a0) & 0xffffffff}")
                a(f"s_cmp_lt_u32 s{sTK}, {a1}")
                a("s_cbranch_scc1 L_doinit")
                q += a1 - a0
        a.label(f"L_ii{cls}_no")
    assert q == N_INIT, q
    a("s_endpgm")


def gen_main(a, stamps=0, dbg_roles=None):
    WS = f"s[{SRD_WS}:{SRD_WS + 3}]"
    a.text(f".globl {MAIN}\n.p2align 8\n.type {MAIN},@function")
    a.label(MAIN)
    a.reset_window()
    sX, sTK = 3, 4
    DBG = f"s[{S_DBG}:{S_DBG + 1}]"
    a("s_cmp_ge_u32 s2, 256")
    a("s_cbranch_scc1 L_exit")
    srd(a, SRD_WS, KA_WS, WS_BYTES)
    a(f"""
    s_load_dwordx2 s[{S_DBG}:{S_DBG + 1}], s[0:1], {KA_DBG}
    v_lshrrev_b32 v1, 6, v0
    s_getreg_b32 s{sX}, hwreg(HW_REG_XCC_ID)
    v_readfirstlane_b32 s{S_WAVE}, v1
    s_and_b32 s{sX}, s{sX}, {6 if os.environ.get('FAKEX') else 7}
    s_and_b32 s{S_TMP}, s{sX}, 1
    s_lshl_b32 s{S_TMP}, s{S_TMP}, 7
    s_lshl_b32 s{S_TMP + 1}, s{sX}, 1
    s_and_b32 s{S_TMP + 1}, s{S_TMP + 1}, 12
    s_add_u32 s{S_TMP}, s{S_TMP}, s{S_TMP + 1}
    v_mov_b32 v2, 0
    v_mov_b32 v3, 1
    v_mov_b32 v4, s{S_TMP}
    s_mov_b32 s{R.sSTEP}, 0
    s_waitcnt lgkmcnt(0)
    s_cmp_lg_u32 s{S_WAVE}, 0
    s_cbranch_scc1 L_tk_wait
    s_mov_b64 exec, 1
    global_atomic_add v3, v4, v3, {DBG} sc0
    v_readfirstlane_b32 s{sTK}, v3
    s_cmp_lt_u32 s{sTK}, 32
    s_cbranch_scc1 L_tk_have
    """)
    a(f"""
    v_mov_b32 v3, 1
    v_mov_b32 v4, {DB_HOMELESS}
    global_atomic_add v3, v4, v3, {DBG} sc0
    v_readfirstlane_b32 s5, v3
    s_mov_b64 exec, 0xff
    v_and_b32 v4, 1, v0
    v_lshlrev_b32 v4, 7, v4
    v_lshlrev_b32 v5, 1, v0
    v_and_or_b32 v4, v5, 12, v4
    s_mov_b32 s{S_SPIN}, 0
    L_hl_poll:
    global_load_dword v5, v4, {DBG} sc1
    """)
    spin_check(a, "L_abort")
    a("s_mov_b32 s6, 0")
    for i in range(8):
        a(f"v_readlane_b32 s{40 + i}, v5, {i}")
        a(f"s_add_u32 s6, s6, s{40 + i}")
    a(f"""
    s_cmp_lt_u32 s6, 256
    s_cbranch_scc1 L_hl_poll
    s_mov_b32 s{sX}, 0
    s_mov_b32 s{sTK}, 0
    """)
    for i in range(7, -1, -1):
        a(f"""
        s_min_u32 s6, s{40 + i}, 32
        s_sub_u32 s7, 32, s6
        s_cmp_lt_u32 s5, s7
        s_cselect_b32 s{sX}, {i}, s{sX}
        s_add_u32 s6, s6, s5
        s_cmp_lt_u32 s5, s7
        s_cselect_b32 s{sTK}, s6, s{sTK}
        s_sub_u32 s5, s5, s7
        """)
    a(f"""
    L_tk_have:
    s_lshl_b32 s5, s{sX}, 8
    s_or_b32 s5, s5, s{sTK}
    v_mov_b32 v3, s5
    s_mov_b64 exec, 1
    ds_write_b32 v2, v3
    s_mov_b64 exec, -1
    L_tk_wait:
    """)
    a.force_wait(vm=0, lg=0)
    a("s_barrier")
    a("ds_read_b32 v3, v2")
    a(f"v_readfirstlane_b32 s5, v3")
    a(f"s_lshr_b32 s{sX}, s5, 8")
    a(f"s_and_b32 s{sTK}, s5, 255")
    a("s_barrier")
    trace_init(a)
    if DBGT:
        a("s_memrealtime s[6:7]")
        a.force_wait(lg=0)
        a("s_mov_b32 s5, s6")
    trace(a, 2, 3, True)
    en = dbg_roles or "RPWTAO"

    def tgt(ch, lab):
        return lab if ch in en else "L_exit"
    LAB = {"P": "L_role_p", "W": "L_role_tw", "T": "L_role_ta", "A": "L_role_aq", "O": "L_role_awo"}
    a(f"s_cmp_lt_u32 s{sX}, 2")
    a(f"s_cbranch_scc1 {tgt('R', 'L_role_r')}")
    init_index(a, sX, sTK)
    a.label("L_doinit")
    pool_init(a)
    a.label("L_noinit")
    base = {k: 0 for k in LAB}
    for cls, lst in ROLE_MAP.items():
        a(f"s_cmp_lg_u32 s{sX}, {cls}")
        a(f"s_cbranch_scc1 L_cls{cls}_no")
        t0 = 0
        for ch, n in lst:
            a(f"s_add_u32 s{S_ROLE}, s{sTK}, {(base[ch] - t0) & 0xffffffff}")
            a(f"s_cmp_lt_u32 s{sTK}, {t0 + n}")
            a(f"s_cbranch_scc1 {tgt(ch, LAB[ch])}")
            base[ch] += n
            t0 += n
        a("s_endpgm")
        a.label(f"L_cls{cls}_no")
    assert base == {"P": 96, "W": 36, "T": 16, "A": 32, "O": 10}, base
    a(f"""
    L_exit:
    s_endpgm
    L_abort:
    """)
    a.force_wait(lg=0)
    a(f"""
    s_mov_b64 exec, -1
    v_mov_b32 v0, {DB_ABORT}
    s_lshl_b32 s5, s{sX}, 8
    s_or_b32 s5, s5, s{sTK}
    s_or_b32 s5, s5, 0x10000
    v_mov_b32 v1, s5
    global_store_dword v0, v1, s[{S_DBG}:{S_DBG + 1}]
    s_endpgm
    """)
    for ch, lab, fn in (("P", "L_role_p", pool.role_p if os.environ.get("PV1") else pool2.role_p2), ("O", "L_role_awo", pool.role_awo), ("A", "L_role_aq", pool.role_aq),
                        ("T", "L_role_ta", role_t.role_ta), ("W", "L_role_tw", role_t.role_tw)):
        if ch not in en:
            continue
        a.text(".p2align 6")
        a.label(lab)
        a.reset_window()
        fn(a, f"{lab}_abort", f"{lab}_exit")
        a.label(f"{lab}_abort")
        a("s_branch L_abort") if False else far_jump(a, "L_abort")
        a.label(f"{lab}_exit")
        a("s_endpgm")
    if "R" in en:
        a.text(".p2align 6")
        a.label("L_role_r")
        a.reset_window()
        a(f"s_mov_b32 s{R.sLAY}, s{sX}")
        a(f"s_mov_b32 s{R.sH}, s{sTK}")
        R.r_setup(a)
        a(f"""
        s_mov_b64 exec, 0xff
        v_lshlrev_b32 v12, 5, v{R.vL4}
        v_and_b32 v12, 128, v12
        v_lshrrev_b32 v13, 1, v{R.vL4}
        v_and_or_b32 v12, v13, 12, v12
        s_mov_b32 s{S_SPIN}, 0
        L_pure:
        global_load_dword v13, v12, {DBG} sc1
        """)
        spin_check(a, "Lr_abort")
        a("s_mov_b32 s6, 0")
        for i in range(8):
            a(f"v_readlane_b32 s7, v13, {i}")
            a(f"s_add_u32 s6, s6, s7")
        a(f"""
        v_readlane_b32 s7, v13, s{R.sLAY}
        s_cmp_ge_u32 s7, 32
        s_cselect_b32 s{R.sFAST}, {0 if os.environ.get('FAKEX') or os.environ.get('SLOW') else 1}, 0
        s_cselect_b32 s6, 256, s6
        s_cmp_lt_u32 s6, 256
        s_cbranch_scc1 L_pure
        s_mov_b64 exec, -1
        s_lshl_b32 s6, s{R.sLAY}, 2
        s_add_u32 s6, s6, {DB_TEAM}
        """)
        dbg_wait(a, "s6", 32, 12, 13, "Lr_abort", "L_team")
        dbg_wait(a, DB_POOL, N_POOL, 12, 13, "Lr_abort", "L_rpool")
        a("s_barrier")
        trace(a, 12, 13, True)
        stamp_max(a, 4, 12, 13, (R.sLAY, 0))
        for fast in (1, 0):
            if fast:
                a(f"s_cmp_eq_u32 s{R.sFAST}, 0")
                a("s_cbranch_scc1 L_slow")
            else:
                a.label("L_slow")
            for w in range(4):
                if w < 3:
                    a(f"s_cmp_lg_u32 s{S_WAVE}, {w}")
                    a(f"s_cbranch_scc1 L_w{w + 1}_{fast}")
                a.restore(([], []))
                R.r_loop(a, w, fast, "Lr_abort", "Lr_exit", stamps)
                if w < 3:
                    a.label(f"L_w{w + 1}_{fast}")
        a.label("Lr_abort")
        far_jump(a, "L_abort")
        a.label("Lr_exit")
        a("s_endpgm")


def far_jump(a, lab):
    a.force_wait(lg=0)
    a(f"""
    s_mov_b64 exec, -1
    v_mov_b32 v0, {DB_ABORT}
    s_lshl_b32 s5, s3, 8
    s_or_b32 s5, s5, s4
    s_or_b32 s5, s5, 0x10000
    v_mov_b32 v1, s5
    global_store_dword v0, v1, s[{S_DBG}:{S_DBG + 1}]
    s_endpgm
    """)


def build(stamps=0, dbg_roles=None):
    a = Asm()
    hdr = open(os.path.join(os.path.dirname(__file__), "..", KNAME + ".s.ref")).read().split("; Override launch")[0]
    a.text(hdr.rstrip())
    a.text("; @launch grid=(256,1,1) block=(256,1,1) lds=163840")
    a.text('.amdgcn_target "amdgcn-amd-amdhsa--gfx950"\n.text')
    gen_main(a, stamps, dbg_roles)
    a.text('.section .rodata,"a"')
    a.text(kd(MAIN, 512, 256))
    return a.render()


if __name__ == "__main__":
    out = sys.argv[1]
    open(out, "w").write(build(int(os.environ.get("STAMPS", "0")), os.environ.get("ROLES")))
```

```python
from common import *
import os, struct

L_MEMA = 0
L_KX = 9216
ROWS = 288
L_QB = 17408
L_KB = L_QB + 8 * ROWS
L_OB = L_KB + 8 * ROWS
L_WO1 = 24576
L_W = 57344
LW_WAVE = 26624
assert L_OB + 8 * ROWS <= L_WO1 and L_W + 4 * LW_WAVE == 163840
PART_W = 2304

vL16, vIDX, vQW, vQR, vOR, vSPARE, vRLD, vRST, vL4, vLW = range(10)
vT0, vT1 = 10, 11
ACCQ, ACCK, ACCV = 12, 20, 28
VXA, VXB = 36, 40
Q = [44 + 4 * i for i in range(7)]
WR = [Q[3], Q[5]]
vSPARE2 = vRLD
WBASE = 72

sH = S_ROLE
sLAY = S_FREE
sSTEP = S_FREE + 1
sMEMR = S_FREE + 2
sMEMR8 = S_FREE + 3
sMEMW = S_FREE + 4
sMEMZ = S_FREE + 5
sPW = S_FREE + 6
sPH = S_FREE + 7
sKP = S_FREE + 8
sKF = S_FREE + 9
sVF = S_FREE + 10
sKM = S_FREE + 11
sFL = S_FREE + 12
sKMB = S_FREE + 13
sKPH = S_FREE + 34
sFMK = S_FREE + 46
sKPV = S_FREE + 24
sOFL = S_FREE + 35
sCEXP = S_FREE + 14
sMAXD = S_FREE + 22
sFAST = S_FREE + 23
sMASK = S_FREE + 18
sMLO = S_FREE + 20
sU = S_FREE + 16
sT = S_FREE + 25
sPR = sT
sJOBC = S_FREE + 30
sONES = S_FREE + 36
sM = S_FREE + 38
SRD_D = 80
S_STAMP = 80

MATS = "qkv"
D1 = [int(x) for x in os.environ.get("D1", "5,5,5").split(",")]
D2 = int(os.environ.get("D2", "2"))
R1LDW = int(os.environ.get("R1LDW", "16"))
WOD = int(os.environ.get("WOD", "3"))
RNT = " nt" if os.environ.get("RNT") else ""
RNTO = " nt" if os.environ.get("RNTO") else ""
NOPUB = int(os.environ.get("NOPUB", "0"))
NOKV = int(os.environ.get("NOKV", "0"))
PFD = int(os.environ.get("PFD", "1"))
RFREE = int(os.environ.get("RFREE", "0"))
TORD = [8, 0, 1, 2, 3, 4, 5, 6, 7]
WO_L = [(TORD[i >> 1], i & 1) for i in (0, 1, 5, 6, 10, 11, 15, 16)]


def f32bits(x):
    return struct.unpack("<I", struct.pack("<f", x))[0]


def build_frag_map():
    fm = {}
    regs = [("v", WBASE + 8 * i) for i in range(23)] + [("a", 8 * i) for i in range(32)]
    ri = 0
    for t in range(9):
        for m in MATS:
            for b in range(2):
                if m == "k" and b == 1:
                    fm[(m, b, t)] = ("l", "W", t)
                else:
                    fm[(m, b, t)] = regs[ri]; ri += 1
    n0 = n1 = 0
    for tau in range(9):
        for ks in range(2):
            if (tau, ks) in WO_L:
                if ks == 0:
                    fm[("o", tau, ks)] = ("l", "W", 9 + n0); n0 += 1
                else:
                    fm[("o", tau, ks)] = ("l", "O", n1); n1 += 1
            else:
                fm[("o", tau, ks)] = regs[ri]; ri += 1
    assert ri == 55 and n0 == 4 and n1 == 4
    return fm


FM = build_frag_map()


def opnd(loc, n=8, off=0):
    k, b = loc[0], loc[1]
    return (vr if k == "v" else ar)(b + off, n)


def lds_addr(loc, w):
    if loc[1] == "W":
        return vLW, loc[2] * 2048
    return vL16, L_WO1 + w * 8192 + loc[2] * 2048


def lw_read(dst, loc, w):
    r, off = lds_addr(loc, w)
    return [f"ds_read_b128 {vr(dst, 4)}, v{r} offset:{off}", f"ds_read_b128 {vr(dst + 4, 4)}, v{r} offset:{off + 1024}"]


def SM(acc, A, B):
    return f"v_smfmac_f32_16x16x64_bf16 {vr(acc, 4)}, {vr(A, 4)}, {B}, v{vIDX}"


def r_setup(a):
    LANE, C, G = 10, 60, 61
    WS = f"s[{SRD_WS}:{SRD_WS + 3}]"
    cexp = hex(f32bits(128 ** -0.5 * 1.4426950408889634))
    a(f"""
    v_and_b32 v{LANE}, 63, v0
    v_and_b32 v{C}, 15, v{LANE}
    v_lshrrev_b32 v{G}, 4, v{LANE}
    v_lshlrev_b32 v{vL16}, 4, v{LANE}
    v_lshlrev_b32 v{vL4}, 2, v{LANE}
    s_mul_i32 s{S_TMP}, s{S_WAVE}, {LW_WAVE}
    s_add_u32 s{S_TMP}, s{S_TMP}, {L_W}
    v_add_u32 v{vLW}, s{S_TMP}, v{vL16}
    s_mov_b32 s{sMAXD}, 0xfffffffe
    s_mov_b32 s{sCEXP}, {cexp}
    s_mov_b32 s{sCEXP + 1}, {cexp}
    s_mov_b32 s{sMASK}, 0x00ff00ff
    s_mov_b32 s{sMASK + 1}, 0x00ff00ff
    s_mov_b32 s{sMLO}, -1
    s_mov_b32 s{sMLO + 1}, 0
    s_mov_b32 s{sONES}, 0x3f803f80
    s_mov_b32 s{sONES + 1}, 0x3f803f80
    s_mov_b32 s{sPH}, 0
    v_lshrrev_b32 v63, 2, v{C}
    v_and_b32 v64, 1, v{C}
    v_lshl_add_u32 v62, v63, 1, v64
    v_bfe_u32 v65, v{C}, 1, 1
    v_mov_b32 v{vIDX}, 0x4444
    v_mov_b32 v63, 0xeeee
    v_cmp_eq_u32 vcc, 0, v65
    v_cndmask_b32 v{vIDX}, v63, v{vIDX}, vcc
    v_mul_u32_u24 v63, {2 * ROWS}, v{G}
    v_lshl_add_u32 v{vQW}, v{C}, 2, v63
    s_lshl_b32 s{S_TMP}, s{S_WAVE}, 6
    v_add_u32 v{vQW}, s{S_TMP}, v{vQW}
    v_mul_u32_u24 v63, {ROWS}, v62
    v_lshl_add_u32 v{vQR}, v{G}, 4, v63
    v_lshl_add_u32 v{vOR}, v{G}, 5, v63
    v_lshl_add_u32 v{vOR}, v65, 4, v{vOR}
    """)
    def between():
        a(f"v_and_b32 v12, 15, v{LANE}")
        a(f"v_lshrrev_b32 v13, 4, v{LANE}")
        WP, GO, CH = 84, 85, 86
        C, G = 12, 13
        M0A, M0B = 14, 15
        a(f"""
        s_lshr_b32 s{WP}, s{sH}, 3
        s_bfe_u32 s{GO}, s{sH}, 0x20001
        s_and_b32 s{CH}, s{sH}, 1
        s_cmp_lt_u32 s{S_WAVE}, 2
        s_cbranch_scc1 Lr_jab
        s_lshr_b32 s{WP}, s{sH}, 1
        s_and_b32 s{WP}, s{WP}, 3
        Lr_jab:
        s_cmp_lt_u32 s{sH}, 8
        s_cselect_b32 s{sJOBC}, 1, 0
        v_bfe_u32 v20, v{C}, 2, 1
        v_lshl_add_u32 v17, v20, 2, v{G}
        v_mul_u32_u24 v17, {PART_H}, v17
        v_lshrrev_b32 v21, 3, v{C}
        v_lshlrev_b32 v21, 2, v21
        v_and_b32 v20, 3, v{C}
        v_add_u32 v21, v21, v20
        v_lshl_add_u32 v{vRLD}, v21, 4, v17
        s_mul_i32 s{S_TMP}, s{WP}, {PART_W}
        s_lshl_b32 s{S_TMP + 1}, s{S_WAVE}, 10
        s_add_u32 s{S_TMP}, s{S_TMP}, s{S_TMP + 1}
        s_lshl_b32 s{S_TMP + 1}, s{CH}, 7
        s_add_u32 s{S_TMP}, s{S_TMP}, s{S_TMP + 1}
        s_lshl_b32 s{S_TMP + 1}, s{GO}, 8
        s_cmp_lt_u32 s{S_WAVE}, 2
        s_cselect_b32 s{S_TMP + 1}, s{S_TMP + 1}, 0
        s_add_u32 s{S_TMP}, s{S_TMP}, s{S_TMP + 1}
        v_add_u32 v{vRLD}, s{S_TMP}, v{vRLD}
        """)
        HI, RR, G1, G0 = 24, 25, 26, 27
        a(f"""
        v_bfe_u32 v{HI}, v{C}, 1, 2
        v_and_b32 v{RR}, 1, v{C}
        v_lshrrev_b32 v{G1}, 1, v{G}
        v_and_b32 v{G0}, 1, v{G}
        s_cmp_lt_u32 s{S_WAVE}, 2
        s_cbranch_scc0 Lr_jc
        s_lshl_b32 s{S_TMP}, s{S_WAVE}, 2
        v_add_u32 v18, s{S_TMP}, v{HI}
        v_lshlrev_b32 v{vRST}, 10, v18
        v_lshl_add_u32 v19, v{G0}, 1, v{RR}
        s_lshl_b32 s{S_TMP}, s{WP}, 4
        s_lshl_b32 s{S_TMP + 1}, s{GO}, 2
        s_add_u32 s{S_TMP}, s{S_TMP}, s{S_TMP + 1}
        v_add_u32 v19, s{S_TMP}, v19
        v_lshl_add_u32 v{vRST}, v19, 4, v{vRST}
        s_lshl_b32 s{S_TMP}, s{CH}, 1
        v_add_u32 v19, s{S_TMP}, v{G1}
        v_lshl_add_u32 v{vRST}, v19, 2, v{vRST}
        s_lshl_b32 s{S_TMP}, s{GO}, 1
        v_add_u32 v19, s{S_TMP}, v{RR}
        v_mul_u32_u24 v19, 576, v19
        v_lshl_add_u32 v19, v18, 4, v19
        v_lshl_add_u32 v19, v{G}, 1, v19
        s_mul_i32 s{S_TMP}, s{WP}, 144
        s_lshl_b32 s{S_TMP + 1}, s{CH}, 3
        s_add_u32 s{S_TMP}, s{S_TMP}, s{S_TMP + 1}
        v_add_u32 v19, s{S_TMP}, v19
        v_lshlrev_b32 v{M0A}, 1, v19
        v_add_u32 v{M0B}, 2, v{M0A}
        s_branch Lr_jd
        Lr_jc:
        s_lshl_b32 s{S_TMP}, s{CH}, 1
        v_add_u32 v18, s{S_TMP}, v{G1}
        v_lshlrev_b32 v19, 2, v18
        v_lshl_add_u32 v19, v{G0}, 1, v19
        v_add_u32 v19, v19, v{RR}
        s_lshl_b32 s{S_TMP}, s{WP}, 4
        v_add_u32 v19, s{S_TMP}, v19
        v_lshlrev_b32 v{vRST}, 4, v19
        v_lshl_add_u32 v{vRST}, v{HI}, 2, v{vRST}
        v_add_u32 v{vRST}, 8192, v{vRST}
        v_lshl_add_u32 v19, v18, 1, v{RR}
        v_mul_u32_u24 v19, 576, v19
        v_lshl_add_u32 v19, v{G0}, 3, v19
        v_add_u32 v19, v19, v{HI}
        s_mul_i32 s{S_TMP}, s{WP}, 144
        s_add_u32 s{S_TMP}, s{S_TMP}, 128
        v_add_u32 v19, s{S_TMP}, v19
        v_lshlrev_b32 v{M0A}, 1, v19
        v_add_u32 v{M0B}, 8, v{M0A}
        Lr_jd:
        """)
        a(f"""
        s_mul_i32 s{sU}, s{sLAY}, {RING_TEAM}
        s_add_u32 s{sU}, s{sU}, {WS_RING}
        s_lshl_b32 s{S_TMP + 1}, s{S_WAVE}, 11
        s_lshl_b32 s{S_TMP + 2}, s{S_WAVE}, 8
        s_add_u32 s{S_TMP + 2}, s{S_TMP + 2}, 8192
        s_mul_i32 s{S_TMP}, s{sH}, {PART_H}
        s_add_u32 s{S_TMP}, s{S_TMP}, s{sU}
        s_mul_i32 s{sPW}, s{S_WAVE}, {PART_W}
        s_add_u32 s{sPW}, s{sPW}, s{S_TMP}
        s_add_u32 s{sMEMZ}, s{sU}, {MEMB_OFF}
        s_xor_b32 s{sMEMW}, s{sMEMZ}, {MEMB_SLOT}
        s_add_u32 s{sMEMR}, s{sMEMZ}, s{S_TMP + 1}
        s_add_u32 s{sMEMR8}, s{sMEMZ}, s{S_TMP + 2}
        s_mul_i32 s{S_TMP}, s{sLAY}, {3 * QKV_M}
        s_lshl_b32 s{S_TMP + 2}, s{sH}, 13
        s_add_u32 s{S_TMP}, s{S_TMP}, s{S_TMP + 2}
        s_add_u32 s{sKP}, s{S_TMP}, {WS_QKV + QKV_M + PFD * 32 * 8192}
        s_add_u32 s{S_TMP}, s{S_TMP}, s{S_TMP + 1}
        s_add_u32 s{sKF}, s{S_TMP}, {WS_QKV + QKV_M}
        s_add_u32 s{sVF}, s{S_TMP}, {WS_QKV + 2 * QKV_M}
        s_mul_i32 s{S_TMP}, s{sLAY}, {KM_D * 32 * KM_UNIT}
        s_lshl_b32 s{S_TMP + 2}, s{sH}, 12
        s_add_u32 s{S_TMP}, s{S_TMP}, s{S_TMP + 2}
        s_lshl_b32 s{S_TMP + 2}, s{S_WAVE}, 9
        s_add_u32 s{S_TMP}, s{S_TMP}, s{S_TMP + 2}
        s_add_u32 s{sKMB}, s{S_TMP}, {WS_KM}
        s_mov_b32 s{sKM}, s{sKMB}
        s_mov_b32 s{sKPH}, 0
        s_mul_i32 s{S_TMP}, s{sLAY}, {NSEG * FL_STRIDE}
        s_lshr_b32 s{S_TMP + 2}, s{sH}, 2
        s_lshl_b32 s{S_TMP + 2}, s{S_TMP + 2}, 7
        s_add_u32 s{S_TMP}, s{S_TMP}, s{S_TMP + 2}
        s_and_b32 s{S_TMP + 2}, s{sH}, 3
        s_lshl_b32 s{S_TMP + 2}, s{S_TMP + 2}, 2
        s_add_u32 s{S_TMP}, s{S_TMP}, s{S_TMP + 2}
        s_add_u32 s{sOFL}, s{S_TMP}, {WS_FLAGS + FL_OF - (KM_D - 1) * FL_STRIDE}
        s_cmp_eq_u32 s{sLAY}, 0
        s_cselect_b32 s{sOFL}, {WS_FLAGS + FL_XA + (NSEG - (KM_D - 1)) * FL_STRIDE}, s{sOFL}
        s_mov_b32 s{sFMK}, 0xff
        s_mov_b32 s{sFMK + 1}, 0
        s_mul_i32 s{S_TMP}, s{sLAY}, {NSEG * FL_STRIDE}
        s_lshl_b32 s{S_TMP + 2}, s{sH}, 9
        s_add_u32 s{S_TMP}, s{S_TMP}, s{S_TMP + 2}
        s_add_u32 s{sFL}, s{S_TMP}, {WS_FLAGS + FL_QKV}
        s_mov_b32 s{sSTEP}, 0
        """)
        srd(a, 88, KA_MEM0, 9216)
        A_ = "s[88:91]"
        a(f"""
        s_cmp_eq_u32 s{S_WAVE}, 3
        s_cbranch_scc1 Lr_mem0_done
        s_cmp_lt_u32 s{S_WAVE}, 2
        s_cselect_b32 s{S_TMP}, 1, s{sJOBC}
        s_cmp_eq_u32 s{S_TMP}, 0
        s_cbranch_scc1 Lr_mem0_done
        s_mov_b64 exec, s[{sMASK}:{sMASK + 1}]
        buffer_load_ushort v20, v{M0A}, {A_}, 0 offen
        buffer_load_ushort v21, v{M0B}, {A_}, 0 offen
        v_lshl_or_b32 v20, v21, 16, v20
        v_min_u32 v20, s{sMAXD}, v20
        buffer_store_dword v20, v{vRST}, {WS}, s{sMEMZ} offen sc1
        v_mov_b32 v20, -1
        buffer_store_dword v20, v{vRST}, {WS}, s{sMEMW} offen sc1
        s_mov_b64 exec, -1
        Lr_mem0_done:
        v_mov_b32 v20, 1
        v_mov_b32 v21, 1
        v_mov_b32 v22, 1
        v_mov_b32 v23, 1
        s_xor_b32 s{S_TMP}, s{sPW}, {PART_SLOT}
        """)
        for sreg in (sPW, S_TMP):
            for i in range(2):
                a(f"buffer_store_dwordx4 v[20:23], v{vL16}, {WS}, s{sreg} offen offset:{1024 * i} sc1")
            a(f"buffer_store_dword v20, v{vL4}, {WS}, s{sreg} offen offset:2048 sc1")
        a(f"v_lshrrev_b32 v17, 1, v{vL16}")
        a(f"s_mov_b32 s{S_TMP}, s{sKMB}")
        for i in range(KM_D):
            a(f"buffer_store_dwordx2 v[20:21], v17, {WS}, s{S_TMP} offen offset:2048 sc1")
            a(f"s_mov_b64 exec, s[{sMLO}:{sMLO + 1}]")
            a(f"buffer_store_dwordx4 v[20:23], v{vL16}, {WS}, s{S_TMP} offen sc1")
            a(f"s_mov_b64 exec, -1")
            a(f"s_add_u32 s{S_TMP}, s{S_TMP}, {32 * KM_UNIT}")
        a(f"""
        s_cmp_lg_u32 s{S_WAVE}, 3
        s_cbranch_scc1 Lr_not_w3
        v_and_b32 v{vRST}, 12, v{vL4}
        v_and_b32 v17, 4, v{LANE}
        v_lshl_add_u32 v{vRST}, v17, 5, v{vRST}
        s_add_u32 s{S_TMP}, s{sFL}, {FL_STRIDE + 128}
        s_min_u32 s{S_TMP + 1}, s{S_TMP}, s{sOFL}
        s_sub_u32 s{S_TMP}, s{S_TMP}, s{S_TMP + 1}
        v_add_u32 v{vRST}, s{S_TMP}, v{vRST}
        s_sub_u32 s{S_TMP}, s{sOFL}, s{S_TMP + 1}
        v_mov_b32 v17, s{S_TMP}
        v_cmp_gt_u32 vcc, 8, v{LANE}
        v_cndmask_b32 v{vRST}, v17, v{vRST}, vcc
        s_mov_b32 s{sOFL}, s{S_TMP + 1}
        Lr_not_w3:
        v_lshlrev_b32 v{vSPARE}, 3, v{vL16}
        s_add_u32 s{sKPV}, s{sKP}, {QKV_M}
        """)
    if R1LDW:
        a(f"s_cmp_eq_u32 s{sLAY}, 0")
        a("s_cbranch_scc1 Lr_noord")
        dbg_wait(a, DB_LOADED, R1LDW, 63, 64, "Lr_abort", "Lr_ord", 32)
        a.label("Lr_noord")
    load_weights(a, LANE, C, G, between)
    a(f"s_add_u32 s{S_TMP}, s{sLAY}, s{S_WAVE}")
    a(f"s_cmp_lg_u32 s{S_TMP}, 0")
    a("s_cbranch_scc1 Lr_nold")
    dbg_add(a, DB_LOADED, 63, 64)
    a.label("Lr_nold")
    for i in range(4):
        a(f"s_add_u32 s{sPR + i}, s{sU}, {i * 8 * PART_H}")


def load_weights(a, LANE, C, G, between):
    srd(a, SRD_A, KA_WQ, 576 * 8192)
    srd(a, SRD_B, KA_WK, 576 * 8192)
    srd(a, SRD_C, KA_WV, 576 * 8192)
    srd(a, SRD_D, KA_BWO, 4096 * 1152)
    SR = {"q": SRD_A, "k": SRD_B, "v": SRD_C}
    GA, GB, G8A, G8B, TR0, TR1, TRA, TRB, TRW = 62, 63, 64, 65, 66, 67, 68, 69, 70
    WA = 50
    sRow, sLB, sWo = sT, sT + 1, sT + 2
    a(f"""
    v_lshlrev_b32 v71, 1, v{G}
    v_xor_b32 v71, v71, v{C}
    v_lshlrev_b32 v71, 4, v71
    v_lshl_add_u32 v{GA}, v{G}, 13, v71
    v_xor_b32 v{GB}, 128, v{GA}
    v_lshrrev_b32 v{G8A}, 1, v{G}
    v_lshlrev_b32 v{G8A}, 3, v{G8A}
    v_and_b32 v{G8B}, 1, v{G}
    v_lshl_add_u32 v{G8A}, v{G8B}, 2, v{G8A}
    v_lshl_add_u32 v{G8A}, v{G8A}, 13, v71
    v_xor_b32 v{G8B}, 128, v{G8A}
    s_mul_i32 s{sRow}, s{S_WAVE}, {144 * 8192}
    s_lshl_b32 s{S_TMP}, s{sH}, 8
    s_add_u32 s{sRow}, s{sRow}, s{S_TMP}
    s_lshl_b32 s{sLB}, s{S_WAVE}, 12
    """)
    a(f"""
    v_lshrrev_b32 v71, 2, v{C}
    v_lshl_add_u32 v{TR0}, v{G}, 3, v71
    v_lshlrev_b32 v{TR0}, 8, v{TR0}
    v_bfe_u32 v{TR1}, v{C}, 1, 1
    s_lshl_b32 s{S_TMP}, s{S_WAVE}, 2
    v_add_u32 v{TR1}, s{S_TMP}, v{TR1}
    v_lshlrev_b32 v71, 1, v71
    v_xor_b32 v{TR1}, v{TR1}, v71
    v_and_b32 v71, 1, v{G}
    v_lshlrev_b32 v71, 3, v71
    v_xor_b32 v{TR1}, v{TR1}, v71
    v_and_b32 v71, 1, v{C}
    v_lshl_add_u32 v{TR0}, v71, 3, v{TR0}
    v_xor_b32 v71, 2, v{TR1}
    v_lshl_add_u32 v{TR1}, v71, 4, v{TR0}
    v_xor_b32 v71, 2, v71
    v_lshl_add_u32 v{TR0}, v71, 4, v{TR0}
    """)
    tiles = [(m, t) for t in range(9) for m in MATS]
    wo_regs = [FM[k] for k in FM if k[0] == "o" and FM[k][0] != "l"]
    park = {}
    for t in range(9):
        park[("k", 1, t)] = wo_regs[t]
    NT = len(tiles)

    def slot(i):
        return ((i + 3) % 10) * 16384

    def dma(i):
        m, t = tiles[i]
        S = f"s[{SR[m]}:{SR[m] + 3}]"
        for j in range(4):
            a(f"s_add_u32 m0, s{sLB}, {slot(i) + j * 1024}")
            if t < 8:
                a(f"s_add_u32 s{S_TMP}, s{sRow}, {(16 * t + 4 * j) * 8192}")
                g = GA if j < 2 else GB
            else:
                a(f"s_add_u32 s{S_TMP}, s{sRow}, {(128 + j) * 8192}")
                g = G8A if j < 2 else G8B
            a(f"buffer_load_dwordx4 v{g}, {S}, s{S_TMP} offen{RNT} lds")

    stages = [(ks, hf, qq) for ks in range(2) for hf in range(2) for qq in range(2)]
    STG = 18432

    def wo_prep():
        for j in range(5):
            a(f"v_add_u32 v71, {64 * j}, v{LANE}")
            a(f"v_mul_u32_u24 v59, {(65536 + 71) // 72}, v71")
            a(f"v_lshrrev_b32 v59, 16, v59")
            a(f"v_mul_u32_u24 v60, 72, v59")
            a(f"v_sub_u32 v71, v71, v60")
            a(f"v_and_b32 v60, 1, v59")
            a(f"v_lshlrev_b32 v60, 4, v60")
            a(f"v_lshrrev_b32 v59, 1, v59")
            a(f"v_lshl_add_u32 v60, v59, 2, v60")
            a(f"v_mul_u32_u24 v60, 1152, v60")
            a(f"v_lshl_add_u32 v{WA + j}, v71, 4, v60")
        a(f"""
        s_lshr_b32 s{S_TMP}, s{S_WAVE}, 1
        s_lshl_b32 s{S_TMP}, s{S_TMP}, 3
        s_and_b32 s{S_TMP + 1}, s{S_WAVE}, 1
        s_lshl_b32 s{S_TMP + 1}, s{S_TMP + 1}, 1
        s_add_u32 s{S_TMP}, s{S_TMP}, s{S_TMP + 1}
        s_lshl_b32 s{S_TMP + 1}, s{sH}, 7
        s_add_u32 s{S_TMP}, s{S_TMP}, s{S_TMP + 1}
        s_mul_i32 s{sWo}, s{S_TMP}, 1152
        s_mul_i32 s{sT + 3}, s{S_WAVE}, {4 * 1152}
        """)

    def wo_dma(z):
        ks, hf, qq = stages[z]
        base = (z % 3) * STG
        W_ = f"s[{SRD_D}:{SRD_D + 3}]"
        a(f"s_add_u32 s{S_TMP}, s{sWo}, {(64 * ks + 32 * hf + qq) * 1152}")
        for j in range(5):
            a(f"s_add_u32 m0, s{sT + 3}, {base + j * 1024}")
            if j == 4:
                a(f"s_mov_b64 exec, s[{sMLO}:{sMLO + 1}]")
            else:
                a("s_nop 0")
            a(f"buffer_load_dwordx4 v{WA + j}, {W_}, s{S_TMP} offen{RNTO} lds")
        a("s_mov_b64 exec, -1")

    a(f"""
    v_lshrrev_b32 v71, 2, v{C}
    v_lshl_add_u32 v{TRW}, v{G}, 2, v71
    v_mul_u32_u24 v{TRW}, 1152, v{TRW}
    v_and_b32 v71, 3, v{C}
    v_lshl_add_u32 v{TRW}, v71, 3, v{TRW}
    s_mul_i32 s{S_TMP}, s{S_WAVE}, 288
    v_add_u32 v{TRW}, s{S_TMP}, v{TRW}
    """)
    wo_prep()
    vq = []
    issued = [0]
    done_at = {}

    def issue(kind, i):
        if kind == "t":
            dma(i); issued[0] += 4
        else:
            wo_dma(i); issued[0] += 5
        done_at[(kind, i)] = issued[0]

    for i in range(9):
        issue("t", i)
    between()
    nxt_t, nxt_z = 9, 0
    for i in range(NT):
        a.force_wait(vm=min(63, issued[0] - done_at[("t", i)]))
        a("s_barrier")
        if i == 0:
            a(f"s_cmp_lg_u32 s{S_WAVE}, 0")
            a("s_cbranch_scc1 Lr_noadd")
            a(f"s_lshl_b32 s{S_TMP}, s{sLAY}, 2")
            a(f"s_add_u32 s{S_TMP}, s{S_TMP}, {DB_TEAM}")
            dbg_add(a, f"s{S_TMP}", 48, 49)
            a.label("Lr_noadd")
        if i >= 1 and nxt_t < NT:
            assert slot(nxt_t) == slot(i - 1) or nxt_t == 9
            issue("t", nxt_t); nxt_t += 1
        elif i == 0:
            issue("t", nxt_t); nxt_t += 1
        elif i >= 21 and nxt_z < 3:
            issue("z", nxt_z); nxt_z += 1
        m, t = tiles[i]
        a(f"v_add_u32 v{TRA}, {slot(i)}, v{TR0}")
        a(f"v_add_u32 v{TRB}, {slot(i)}, v{TR1}")
        for b in range(2):
            loc = park.get((m, b, t), FM[(m, b, t)])
            for q in range(4):
                a(f"ds_read_b64_tr_b16 {opnd(loc, 2, 2 * q)}, v{(TRA, TRB)[b]} offset:{(32 * (q >> 1) + 4 * (q & 1)) * 256}")
        a.wait(lg=0)
    assert nxt_t == NT and nxt_z == 3
    a("s_barrier")
    for t in range(9):
        loc = park[("k", 1, t)]
        a(f"ds_write_b128 v{vLW}, {opnd(loc, 4)} offset:{t * 2048}")
        a(f"ds_write_b128 v{vLW}, {opnd(loc, 4, 4)} offset:{t * 2048 + 1024}")
    a.wait(lg=0)
    PK = 12
    for z in range(8):
        ks, hf, qq = stages[z]
        a.force_wait(vm=min(63, issued[0] - done_at[("z", z)]))
        a("s_barrier")
        if z >= 1 and nxt_z < 8:
            assert nxt_z % 3 == (z - 1) % 3
            issue("z", nxt_z); nxt_z += 1
        q = 2 * hf + qq
        np_ = 0
        for tau in range(9):
            loc = FM[("o", tau, ks)]
            if loc[0] == "l":
                loc = ("v", PK + 8 * np_); np_ += 1
            a(f"ds_read_b64_tr_b16 {opnd(loc, 2, 2 * q)}, v{TRW} offset:{(z % 3) * STG + 32 * tau}")
        a.wait(lg=0)
        if z == 3:
            np_ = 0
            for tau in range(9):
                loc = FM[("o", tau, 0)]
                if loc[0] == "l":
                    a(f"ds_write_b128 v{vLW}, {vr(PK + 8 * np_, 4)} offset:{loc[2] * 2048}")
                    a(f"ds_write_b128 v{vLW}, {vr(PK + 8 * np_ + 4, 4)} offset:{loc[2] * 2048 + 1024}")
                    np_ += 1
            a.wait(lg=0)
    a("s_barrier")
    a(f"s_lshl_b32 s{S_TMP}, s{S_WAVE}, 13")
    a(f"v_add_u32 v71, s{S_TMP}, v{vL16}")
    np_ = 0
    for tau in range(9):
        loc = FM[("o", tau, 1)]
        if loc[0] == "l":
            a(f"ds_write_b128 v71, {vr(PK + 8 * np_, 4)} offset:{L_WO1 + loc[2] * 2048}")
            a(f"ds_write_b128 v71, {vr(PK + 8 * np_ + 4, 4)} offset:{L_WO1 + loc[2] * 2048 + 1024}")
            np_ += 1
    a.force_wait(vm=0, lg=0)
    a("s_barrier")


def flag_wait_kv(a, name, soff_extra, abort):
    if RFREE:
        return
    L = a.newlabel(name)
    a(f"s_mov_b32 s{S_SPIN}, 0")
    a(f"s_add_u32 s{S_TMP}, s{sFL}, {soff_extra + 128}")
    a(f"v_and_b32 v{vT1}, 16, v{vL4}")
    a(f"v_lshlrev_b32 v{vT1}, 3, v{vT1}")
    a(f"v_and_or_b32 v{vT1}, v{vL4}, 12, v{vT1}")
    a.label(L)
    a(f"buffer_load_dword v{vT0}, v{vT1}, s[{SRD_WS}:{SRD_WS + 3}], s{S_TMP} offen sc1")
    spin_check(a, abort)
    a(f"v_cmp_eq_u32 vcc, 0, v{vT0}")
    a(f"s_cbranch_vccz {L}d")
    a("s_sleep 4")
    a(f"s_branch {L}")
    a.label(L + "d")


def r_loop(a, w, fast, abort, done, stamps=False):
    sc = "" if fast else " sc1"
    pfx = f"Lr{w}{'f' if fast else 's'}_"
    WS = f"s[{SRD_WS}:{SRD_WS + 3}]"
    NST = 10
    HK = (w == 3)
    order = [2 * w, 2 * w + 1] + [t for t in range(8) if t >> 1 != w] + [8]

    STSEL = [int(x) for x in os.environ.get("STSEL", "0,1,2,3,4,5,6,7,8,9,10").split(",")]

    def stamp(i):
        if i not in STSEL:
            return
        if stamps == 2 or (stamps and i == NST):
            a(f"s_memrealtime s[{S_STAMP + 2 * i}:{S_STAMP + 1 + 2 * i}]")
        elif stamps:
            a(f"s_memtime s[{S_STAMP + 2 * i}:{S_STAMP + 1 + 2 * i}]")

    def dump_stamps():
        if stamps:
            a.force_wait(lg=0)
            for i in range(NST + 1):
                a(f"v_writelane_b32 v{vT1}, s{S_STAMP + 2 * i}, {i}")
            a(f"v_writelane_b32 v{vT1}, s3, 11")
            a(f"v_writelane_b32 v{vT1}, s4, 12")
            a(f"s_lshl_b32 s{S_TMP}, s{sLAY}, 5")
            a(f"s_add_u32 s{S_TMP}, s{S_TMP}, s{sH}")
            a(f"s_lshl_b32 s{S_TMP}, s{S_TMP}, 6")
            a(f"s_add_u32 s{S_TMP}, s{S_TMP}, s{sSTEP}")
            a(f"s_lshl_b32 s{S_TMP}, s{S_TMP}, 8")
            a(f"s_add_u32 s{S_TMP}, s{S_TMP}, {WS_END + w * 64}")
            a(f"s_mov_b64 exec, 0x1fff")
            a(f"buffer_store_dword v{vT1}, v{vL4}, {WS}, s{S_TMP} offen")
            a(f"s_mov_b64 exec, -1")

    def zero(base, n):
        return [f"v_mov_b64 {vr(base + 2 * i, 2)}, 0" for i in range(n // 2)]

    def seq(*items):
        for it in items:
            if isinstance(it, (list, tuple)):
                seq(*it)
            elif callable(it):
                it()
            elif it:
                a(it)

    cont = {}

    def ld(dst, name, text):
        def f():
            a(text)
            cont[dst] = name
        return f

    def use(reg, name):
        assert cont.get(reg) == name, (w, reg, name, cont.get(reg))

    def M(i):
        return f"s[{sM + 2 * i}:{sM + 2 * i + 1}]"

    def poll(name, loads, checks, between=None, issued=0):
        n = len(loads)
        L = pfx + name
        if not issued:
            seq(loads)
        a(f"s_mov_b32 s{S_SPIN}, 0")
        for i in range(n):
            a(f"s_mov_b64 {M(i)}, 0")
        a.label(L)
        a.auto = False
        for i in range(n):
            a(f"s_mov_b64 exec, {M(i)}")
            a(loads[i])
        a("s_mov_b64 exec, -1")
        spin_check(a, abort)
        for i in range(n):
            a.force_wait(vm=2 * n - 1 - i)
            seq(checks[i])
            if between:
                seq(between[i])
            if i >= 2:
                a(f"s_or_b64 vcc, {M(0) if i == 2 else 'vcc'}, {M(i - 1)}")
        a(f"s_or_b64 vcc, vcc, {M(n - 1)}")
        a(f"s_cbranch_scc1 {L}")
        a.auto = True
        a.vmq = [(frozenset(), "pollx")] * n

    def chk4(q, i):
        return [f"v_max3_u32 v{vT1}, v{q}, v{q + 1}, v{q + 2}", f"v_max_u32 v{vT1}, v{vT1}, v{q + 3}",
                f"v_cmp_eq_u32 {M(i)}, -1, v{vT1}"]

    ACC = {"q": ACCQ, "k": ACCK, "v": ACCV}

    def A_read(dst, t):
        return ld(dst, ("A", t), f"ds_read_b128 {vr(dst, 4)}, v{vL16} offset:{L_MEMA + t * 1024}")

    def LW(buf, key):
        r = lw_read(buf, FM[key], w)
        return [ld(buf, ("W", key), r[0]), ld(buf + 4, ("W2", key), r[1])]

    def S(m, b, t, A, buf=None):
        def f():
            use(A, ("A", t))
            loc = FM[(m, b, t)]
            if loc[0] == "l":
                use(buf, ("W", (m, b, t))); use(buf + 4, ("W2", (m, b, t)))
                B = vr(buf, 8)
            else:
                B = opnd(loc)
            a(SM(ACC[m] + 4 * b, A, B))
        return f

    def qB(dst, j):
        return ld(dst, ("qB", j), f"ds_read_b128 {vr(dst, 4)}, v{vQR} offset:{L_QB + j * 64}")

    def kmA(dst, j):
        return ld(dst, ("km", j), f"ds_read_b128 {vr(dst, 4)}, v{vQR} offset:{L_KB + j * 64}")

    def KX(dst, j, tt):
        return ld(dst, ("KX", j, tt), f"ds_read_b128 {vr(dst, 4)}, v{vL16} offset:{L_KX + (j * 2 + tt) * 1024}")

    def MF(acc, A, B, first, ea=None, eb=None):
        def f():
            if ea is not None:
                use(A, ea)
            if eb is not None:
                use(B, eb)
            a(f"v_mfma_f32_16x16x32_bf16 {vr(acc, 4)}, {vr(A, 4)}, {vr(B, 4)}, {'0' if first else vr(acc, 4)}")
        return f

    def MF16(acc, A, B):
        return f"v_mfma_f32_16x16x16_bf16 {vr(acc, 4)}, {vr(A, 2)}, {vr(B, 2)}, {vr(acc, 4)}"

    def xe(acc):
        X, Y = acc, acc + 4
        return [f"v_add_f32 v{X}, v{X}, v{X + 2}", f"v_add_f32 v{Y}, v{Y}, v{Y + 2}",
                f"v_add_f32 v{X + 1}, v{X + 1}, v{X + 3}", f"v_add_f32 v{Y + 1}, v{Y + 1}, v{Y + 3}",
                f"v_cvt_pk_bf16_f32 v{X + 2}, v{X}, v{Y}",
                f"v_cvt_pk_bf16_f32 v{X + 3}, v{X + 1}, v{Y + 1}"]

    def kdma(i):
        if NOKV & 1:
            return None
        return lambda: a(f"buffer_load_dwordx4 v{vL16}, {WS}, s{sKF} offen offset:{1024 * i} lds", tag="kdma")

    tails = []

    def flag_sample():
        if not RFREE:
            a(f"buffer_load_dword v{vRLD}, v{vRST}, {WS}, s{sOFL} offen sc1")

    def flag_check_prefetch():
        if not RFREE:
            a(f"v_cmp_eq_u32 vcc, 0, v{vRLD}")
            a(f"s_and_b64 vcc, vcc, s[{sFMK}:{sFMK + 1}]")
            a(f"s_cbranch_scc1 {pfx}flbad")
            wn = list(a.win)

            def flbad():
                a.label(pfx + "flbad")
                a.win = wn
                a.restore(([], []))
                a(f"s_cmp_eq_u32 s{sSTEP}, {NSEG - 1}")
                a(f"s_cbranch_scc1 {pfx}flok")
                a(f"s_mov_b32 s{S_SPIN}, 0")
                a.label(pfx + "flp")
                a(f"buffer_load_dword v{vRLD}, v{vRST}, {WS}, s{sOFL} offen sc1")
                spin_check(a, abort)
                a(f"v_cmp_eq_u32 vcc, 0, v{vRLD}")
                a(f"s_and_b64 vcc, vcc, s[{sFMK}:{sFMK + 1}]")
                a(f"s_cbranch_scc1 {pfx}flp")
                a(f"s_branch {pfx}flok")
            tails.append(flbad)
            a.label(pfx + "flok")
        if NOKV & 2:
            return
        a.auto = False
        a(f"buffer_load_dword v{vRLD}, v{vSPARE}, {WS}, s{sKP} offen", tag="pf")
        a(f"buffer_load_dword v{vRLD}, v{vSPARE}, {WS}, s{sKPV} offen", tag="pf")
        a.auto = True

    AO0, AO1, A8 = Q[0], Q[1], vT0
    loads2 = [f"buffer_load_dwordx4 {vr(AO0, 4)}, v{vL16}, {WS}, s{sMEMR} offen sc1",
              f"buffer_load_dwordx4 {vr(AO1, 4)}, v{vL16}, {WS}, s{sMEMR} offen offset:1024 sc1",
              f"buffer_load_dword v{A8}, v{vL4}, {WS}, s{sMEMR8} offen sc1"]

    def pre_step():
        seq(LW(WR[0], ("k", 1, order[0])), LW(WR[1], ("k", 1, order[1])), zero(ACCQ, 24))

    if HK:
        flag_wait_kv(a, pfx + "fw", 0, abort)
    a("s_barrier")
    a(f"s_mov_b32 m0, {L_KX + w * 2048}")
    a("s_nop 0")
    seq(kdma(0), kdma(1))
    a(f"s_add_u32 s{sKF}, s{sKF}, {32 * 8192}")
    a.wait(vm=0)
    seq(loads2)
    pre_step()
    a.wait(lg=0)
    head = pfx + "step"
    a.label(head)
    head_cont = dict(cont)
    poll("p2", loads2, [chk4(AO0, 0), chk4(AO1, 1), [f"v_cmp_eq_u32 {M(2)}, -1, v{A8}"]], issued=1)
    cont[AO0] = ("A", order[0]); cont[AO1] = ("A", order[1])
    stamp(0)
    if stamps:
        a(f"s_mov_b32 s4, s{S_SPIN}")
    ring = [Q[0], Q[1], Q[2], VXA, VXB, Q[2], Q[0], Q[1], Q[2]]

    def Ap(p):
        return ring[p]

    def qk(p, which):
        t = order[p]
        m, b = which
        return S(m, b, t, Ap(p), WR[p & 1])
    def run(slots):
        for mf, fl in slots:
            seq(mf, fl)

    def lwh(p, half):
        return LW(WR[p & 1], ("k", 1, order[p]))[half]
    run([(qk(0, ("q", 0)), [f"ds_write_b128 v{vL16}, {vr(AO0, 4)} offset:{L_MEMA + order[0] * 1024}"]),
         (qk(0, ("q", 1)), [f"ds_write_b128 v{vL16}, {vr(AO1, 4)} offset:{L_MEMA + order[1] * 1024}"]),
         (qk(0, ("k", 0)), [f"ds_write_b32 v{vL4}, v{A8} offset:{L_MEMA + 8192 + w * 256}"]),
         (qk(0, ("k", 1)), [])])
    a.barrier(lg=0)
    seq(A_read(Ap(2), order[2]))
    fl = {4: A_read(Ap(3), order[3]), 5: lwh(2, 0), 6: lwh(2, 1), 7: A_read(Ap(4), order[4]),
          9: lwh(3, 0), 10: lwh(3, 1), 12: A_read(Ap(5), order[5]),
          16: f"buffer_load_dwordx4 {vr(VXA, 4)}, v{vL16}, {WS}, s{sVF} offen",
          20: f"buffer_load_dwordx4 {vr(VXB, 4)}, v{vL16}, {WS}, s{sVF} offen offset:1024",
          19: [lambda: a.wait_tag("pollx"), A_read(Ap(6), order[6])], 23: A_read(Ap(7), order[7]), 24: A_read(Ap(8), order[8])}
    for p in range(4, 9):
        fl[4 * p - 3] = lwh(p, 0)
        fl[4 * p - 2] = lwh(p, 1)
    tail = [(7, ("q", 0)), (7, ("q", 1)), (8, ("q", 0)), (8, ("q", 1)), (7, ("k", 0)), (7, ("k", 1)), (8, ("k", 0)), (8, ("k", 1))]
    spine = [(p, mb) for p in range(7) for mb in (("q", 0), ("q", 1), ("k", 0), ("k", 1))] + tail
    if NOKV & 4:
        fl[16] = fl[20] = None
    qe, ke = xe(ACCQ), xe(ACCK)
    SX, SMm, X4 = ACCQ, ACCK + 4, ACCK
    fl[33] = [KX(Q[5], 0, 0), qe[0]]
    fl[34] = [KX(Q[6], 0, 1), qe[1]]
    fl[35] = [KX(Q[3], 1, 0), qe[2], qe[3], qe[4], qe[5]]
    if HK:
        fl[8] = [fl.get(8), flag_sample]
    for sl in range(4, 36):
        p, mb = spine[sl]
        seq(qk(p, mb), fl.get(sl))
        if sl == 7:
            stamp(1)
    seq(f"ds_write_b32 v{vQW}, v{ACCQ + 2} offset:{L_QB}",
        f"ds_write_b32 v{vQW}, v{ACCQ + 3} offset:{L_QB + ROWS}")
    stamp(2)

    def V(p, A):
        return [S("v", 0, order[p], A), S("v", 1, order[p], A)]
    run([(V(8, Q[2])[0], [KX(Q[4], 1, 1), ke[0], ke[1], ke[2], ke[3]]),
         (V(8, Q[2])[1], [A_read(ACCQ, order[0]), ke[4], ke[5],
                          f"ds_write_b32 v{vQW}, v{ACCK + 2} offset:{L_KB}",
                          f"ds_write_b32 v{vQW}, v{ACCK + 3} offset:{L_KB + ROWS}"]),
         (V(7, Q[1])[0], [A_read(ACCQ + 4, order[1])]),
         (V(7, Q[1])[1], [A_read(ACCK, order[2])]),
         (V(6, Q[0])[0], [A_read(ACCK + 4, order[3])]),
         (V(6, Q[0])[1], [])])
    a.barrier(lg=3)
    stamp(3)
    ve = [f"v_add_f32 v{ACCV}, v{ACCV}, v{ACCV + 2}", f"v_add_f32 v{ACCV + 1}, v{ACCV + 1}, v{ACCV + 3}",
          f"v_add_f32 v{ACCV + 4}, v{ACCV + 4}, v{ACCV + 6}", f"v_add_f32 v{ACCV + 5}, v{ACCV + 5}, v{ACCV + 7}",
          f"v_cvt_pk_bf16_f32 v{ACCV + 2}, v{ACCV}, v{ACCV + 1}",
          f"v_cvt_pk_bf16_f32 v{ACCV + 3}, v{ACCV + 4}, v{ACCV + 5}"]
    seq(qB(Q[0], 0))
    run([(V(0, ACCQ)[0], [A_read(Q[2], order[4])]),
         (V(0, ACCQ)[1], [kmA(ACCQ, 0)]),
         (V(1, ACCQ + 4)[0], [A_read(Q[1], order[5])]),
         (V(1, ACCQ + 4)[1], []),
         (V(2, ACCK)[0], []),
         (V(2, ACCK)[1], [qB(ACCK, 1)]),
         (V(3, ACCK + 4)[0], []),
         (V(3, ACCK + 4)[1], []),
         (V(4, Q[2])[0], []),
         (V(4, Q[2])[1], [kmA(Q[2], 1)]),
         (V(5, Q[1])[0], []),
         (V(5, Q[1])[1], [qB(Q[1], 2)])])
    PBQ = ACCV + 4
    run([(MF(SMm, ACCQ, Q[0], True, ("km", 0), ("qB", 0)), [flag_check_prefetch] if HK else []),
         (MF(SX, Q[5], Q[0], True, ("KX", 0, 0), ("qB", 0)), [KX(Q[5], 2, 0)]),
         (MF(SX + 4, Q[6], Q[0], True, ("KX", 0, 1), ("qB", 0)), [KX(Q[6], 2, 1)]),
         (MF(SMm, Q[2], ACCK, False, ("km", 1), ("qB", 1)), [kmA(Q[0], 2), ve[0], ve[1]]),
         (MF(SX, Q[3], ACCK, False, ("KX", 1, 0), ("qB", 1)), [qB(Q[2], 3), ve[2], ve[3]]),
         (MF(SX + 4, Q[4], ACCK, False, ("KX", 1, 1), ("qB", 1)), [KX(Q[3], 3, 0), ve[4], ve[5]]),
         (MF(SMm, Q[0], Q[1], False, ("km", 2), ("qB", 2)),
          [kmA(ACCK, 3), f"v_lshrrev_b32 v{vT0}, 8, v{vL16}", f"v_mul_u32_u24 v{vT0}, {ROWS}, v{vT0}"]),
         (MF(SX, Q[5], Q[1], False, ("KX", 2, 0), ("qB", 2)),
          [KX(Q[4], 3, 1), f"v_and_b32 v{vT1}, 0xf0, v{vL16}", f"v_add_u32 v{vT0}, v{vT0}, v{vT1}"]),
         (MF(SX + 4, Q[6], Q[1], False, ("KX", 2, 1), ("qB", 2)),
          [f"ds_read_b128 {vr(PBQ, 4)}, v{vT0} offset:{L_KB + 2 * w * ROWS}", f"v_lshrrev_b32 v{vT1}, 1, v{vL16}",
           f"v_bfi_b32 v{ACCV + 2}, 1, s{sKPH}, v{ACCV + 2}"]),
         (MF(SMm, ACCK, Q[2], False, ("km", 3), ("qB", 3)),
          [f"buffer_store_dwordx2 {vr(ACCV + 2, 2)}, v{vT1}, {WS}, s{sKM} offen offset:2048 sc1" if not NOPUB else None,
           f"v_mov_b32 v{Q[1] + 1}, 0", f"v_mov_b32 v{Q[1] + 2}, 0"]),
         (MF(SX, Q[3], Q[2], False, ("KX", 3, 0), ("qB", 3)),
          [f"v_mov_b64 {vr(Q[5], 2)}, s[{sONES}:{sONES + 1}]", f"v_mov_b64 {vr(Q[5] + 2, 2)}, s[{sONES}:{sONES + 1}]"]),
         (MF(SX + 4, Q[4], Q[2], False, ("KX", 3, 1), ("qB", 3)),
          [f"v_bfi_b32 v{PBQ}, 1, s{sKPH}, v{PBQ}", f"s_mov_b64 exec, s[{sMLO}:{sMLO + 1}]",
           f"buffer_store_dwordx4 {vr(PBQ, 4)}, v{vL16}, {WS}, s{sKM} offen sc1" if not NOPUB else None,
           "s_mov_b64 exec, -1"])])
    stamp(4)
    MX, T1 = vT0, vT1
    MP = X4
    LQ = Q[6]
    P4 = Q[0]
    PB = Q[1]
    OX, OY = Q[2], Q[3]
    ONES = Q[5]
    WB = [Q[4], VXA]
    wo_buf = {k: WB[i % 2] for i, k in enumerate(WO_L)}

    def wo_rd(i):
        return LW(wo_buf[WO_L[i]], ("o",) + WO_L[i])

    pf = [f"v_pk_fma_f32 {vr(b, 2)}, {vr(b, 2)}, s[{sCEXP}:{sCEXP + 1}], {vr(MP, 2)} op_sel_hi:[1,1,0] neg_lo:[0,0,1] neg_hi:[0,0,1]"
          for b in (SMm, SX, SX + 2, SX + 4, SX + 6)]
    ex = [f"v_exp_f32 v{r}, v{r}" for r in [SMm, SMm + 1] + list(range(SX, SX + 8))]
    seq(f"v_max3_f32 v{MX}, v{SMm}, v{SMm + 1}, v{SX}",
        f"v_max3_f32 v{MX}, v{MX}, v{SX + 1}, v{SX + 2}",
        f"v_max3_f32 v{MX}, v{MX}, v{SX + 3}, v{SX + 4}",
        f"v_max3_f32 v{MX}, v{MX}, v{SX + 5}, v{SX + 6}",
        f"v_max_f32 v{MX}, v{MX}, v{SX + 7}",
        f"v_mov_b32 v{T1}, v{MX}",
        f"v_permlane32_swap_b32 v{MX}, v{T1}",
        f"v_max_f32 v{MX}, v{MX}, v{T1}",
        f"v_mov_b32 v{T1}, v{MX}",
        f"v_permlane16_swap_b32 v{MX}, v{T1}",
        f"v_max_f32 v{MX}, v{MX}, v{T1}",
        f"v_mul_f32 v{MP}, s{sCEXP}, v{MX}",
        pf[0], pf[1], ex[0], ex[1], pf[2], ex[2], ex[3], pf[3],
        f"v_cvt_pk_bf16_f32 v{PB}, v{SMm}, v{SMm + 1}", ex[4], pf[4],
        f"v_cvt_pk_bf16_f32 v{PB + 3}, v{SMm}, v{SMm + 1}", ex[5],
        f"v_cvt_pk_bf16_f32 v{P4}, v{SX}, v{SX + 1}", ex[6], ex[7],
        f"v_cvt_pk_bf16_f32 v{P4 + 1}, v{SX + 2}, v{SX + 3}", ex[8], ex[9],
        f"v_cvt_pk_bf16_f32 v{P4 + 2}, v{SX + 4}, v{SX + 5}",
        f"v_cvt_pk_bf16_f32 v{P4 + 3}, v{SX + 6}, v{SX + 7}",
        f"v_mfma_f32_16x16x16_bf16 {vr(LQ, 4)}, {vr(ONES, 2)}, {vr(PB, 2)}, 0",
        f"v_mfma_f32_16x16x16_bf16 {vr(OX, 4)}, {vr(ACCV + 2, 2)}, {vr(PB, 2)}, 0",
        f"v_mfma_f32_16x16x16_bf16 {vr(OY, 4)}, {vr(ACCV + 2, 2)}, {vr(PB + 2, 2)}, 0",
        MF(LQ, ONES, P4, False),
        MF(OX, VXA, P4, False), wo_rd(0)[0] if False else None,
        MF(OY, VXB, P4, False), wo_rd(1)[0], wo_rd(1)[1],
        wo_rd(0)[0],
        f"v_rcp_f32 v{MX}, v{LQ}")
    stamp(5)
    OP = ACCQ + 4
    for i in (0, 2):
        a(f"v_pk_mul_f32 {vr(OX + i, 2)}, {vr(OX + i, 2)}, {vr(MX, 2)} op_sel_hi:[1,0]")
        a(f"v_pk_mul_f32 {vr(OY + i, 2)}, {vr(OY + i, 2)}, {vr(MX, 2)} op_sel_hi:[1,0]")
        a(f"v_cvt_pk_bf16_f32 v{OP + i}, v{OX + i}, v{OY + i}")
        a(f"v_cvt_pk_bf16_f32 v{OP + i + 1}, v{OX + i + 1}, v{OY + i + 1}")
    a(f"ds_write_b128 v{vQR}, {vr(OP, 4)} offset:{L_OB + w * 64}")
    TA = [ACCQ, ACCK, ACCK + 4, ACCV + 4, Q[0], Q[1], Q[6], ACCQ + 4, ACCV]
    OA0, OA1 = Q[2], Q[3]
    seq(wo_rd(0)[1], zero(ACCQ, 4), zero(ACCK, 8), zero(ACCV + 4, 4), zero(Q[0], 8))
    a.barrier(lg=1)
    a(f"ds_read_b128 {vr(OA0, 4)}, v{vOR} offset:{L_OB}")
    a(f"ds_read_b128 {vr(OA1, 4)}, v{vOR} offset:{L_OB + 128}")
    seq(zero(Q[6], 4), zero(ACCV, 4), zero(OP, 4))
    last = pfx + "last"
    seq(f"s_cmp_eq_u32 s{sSTEP}, {NSEG - 1}", f"s_cbranch_scc1 {last}")
    stamp(6)
    ST = [TA[0], TA[4], TA[8]]

    def epi(tau):
        acc = TA[tau]
        dst = ST[tau // 4] + tau % 4
        ops = [f"v_add_f32 v{acc}, v{acc}, v{acc + 2}", f"v_add_f32 v{acc + 1}, v{acc + 1}, v{acc + 3}",
               f"v_cvt_pk_bf16_f32 v{dst}, v{acc}, v{acc + 1}"]
        if tau % 4 == 0:
            ops.append(f"v_bfi_b32 v{dst}, 1, s{sPH}, v{dst}")
        if tau in (3, 7):
            ops.append(f"buffer_store_dwordx4 {vr(ST[tau // 4], 4)}, v{vL16}, {WS}, s{sPW} offen offset:{1024 * (tau // 4)}{sc}")
        if tau == 8:
            ops.append(f"buffer_store_dword v{dst}, v{vL4}, {WS}, s{sPW} offen offset:2048{sc}")
        return ops

    nxt = 2
    fill = []
    pend = []
    for idx in range(18):
        tau, ks = TORD[idx >> 1], idx & 1
        k = ("o", tau, ks)
        if FM[k][0] == "l":
            buf = wo_buf[(tau, ks)]
            use(buf, ("W", k)); use(buf + 4, ("W2", k))
            B = vr(buf, 8)
        else:
            B = opnd(FM[k])
        a(SM(TA[tau], (OA0, OA1)[ks], B))
        if pend:
            seq(pend.pop(0))
        elif idx in (3, 8):
            seq(kdma(idx // 8))
        if FM[k][0] == "l" and nxt < len(WO_L):
            r = wo_rd(nxt)
            seq(r[0])
            pend.append(r[1])
            nxt += 1
        n = 0
        while fill and fill[0][0] <= idx and (n < 2 or not fill[0][1].startswith("v_")):
            n += fill[0][1].startswith("v_")
            a(fill.pop(0)[1])
        if ks == 1:
            fill += [(idx + WOD, t) for t in epi(tau)]
    for _, t in fill:
        a(t)
    stamp(7)
    tog = [f"s_xor_b32 s{r}, s{r}, {MEMB_SLOT}" for r in [sMEMR, sMEMR8]]

    if not HK:
        if w == 2:
            a(f"s_cmp_eq_u32 s{sJOBC}, 0")
            a(f"s_cbranch_scc1 {pfx}nojob")
        LD = [Q[2], Q[3], Q[4], Q[5]]
        SEL, D = VXA, VXB
        loads1 = [f"buffer_load_dwordx4 {vr(LD[i], 4)}, v{vRLD}, {WS}, s{sPR + i} offen sc1" for i in range(4)]
        if w < 2:
            checks = [[f"v_and_b32 v{vT1}, 1, v{LD[i]}", f"v_cmp_ne_u32 {M(i)}, s{sPH}, v{vT1}"] for i in range(4)]
        else:
            checks = [[f"v_xor_b32 v{vT0}, v{LD[i]}, v{LD[i] + 1}", f"v_xor_b32 v{vT1}, v{LD[i] + 2}, v{LD[i] + 3}",
                       f"v_or_b32 v{vT0}, v{vT0}, v{vT1}", f"v_xor_b32 v{vT1}, v{LD[i]}, v{LD[i] + 2}",
                       f"v_or_b32 v{vT0}, v{vT0}, v{vT1}", f"v_xor_b32 v{vT1}, s{sPH}, v{LD[i]}",
                       f"v_or_b32 v{vT0}, v{vT0}, v{vT1}", f"v_and_b32 v{vT0}, 1, v{vT0}",
                       f"v_cmp_ne_u32 {M(i)}, 0, v{vT0}"] for i in range(4)]
        betw = [[MF(D, LD[i], SEL, i == 0)] for i in range(4)]
        stamp(9)
        a(f"v_bfe_u32 v{vT0}, v{vL16}, 4, 4")
        a(f"v_mov_b32 v{vT1}, 0x3f80")
        a(f"v_mov_b32 v{D}, 0x3f800000")
        for d in range(4):
            a(f"v_cmp_eq_u32 vcc, {2 * d}, v{vT0}")
            a(f"v_cmp_eq_u32 s[{sU}:{sU + 1}], {2 * d + 1}, v{vT0}")
            a(f"v_cndmask_b32 v{SEL + d}, 0, v{vT1}, vcc")
            a(f"v_cndmask_b32 v{SEL + d}, v{SEL + d}, v{D}, s[{sU}:{sU + 1}]")
        if D1[w]:
            a(f"s_sleep {D1[w]}")
        poll("p1", loads1, checks, betw)
        stamp(8)
        if stamps:
            a(f"s_mov_b32 s3, s{S_SPIN}")
        seq(f"v_permlane16_swap_b32 v{D}, v{D + 2}", f"v_permlane16_swap_b32 v{D + 1}, v{D + 3}",
            f"s_mov_b64 exec, s[{sMASK}:{sMASK + 1}]",
            f"v_add_f32 v{D}, v{D}, v{D + 2}", f"v_add_f32 v{D + 1}, v{D + 1}, v{D + 3}",
            f"v_cvt_pk_bf16_f32 v{D}, v{D}, v{D + 1}", f"v_min_u32 v{D}, s{sMAXD}, v{D}",
            f"buffer_store_dword v{D}, v{vRST}, {WS}, s{sMEMW} offen{sc}",
            f"v_mov_b32 v{D + 1}, -1",
            f"buffer_store_dword v{D + 1}, v{vRST}, {WS}, s{sMEMZ} offen{sc}",
            f"s_mov_b64 exec, -1")
        if w == 2:
            a(f"s_branch {pfx}jobdone")
            a.label(pfx + "nojob")
            a.restore(([], []))
            a.label(pfx + "jobdone")
            a.vmq = [(frozenset(), "pollx")] * 4 + [(frozenset(), "st")] * 3
    adv = [f"s_add_u32 s{sSTEP}, s{sSTEP}, 1", f"s_bfe_u32 s{sPH}, s{sSTEP}, 0x10001",
           f"s_xor_b32 s{sPW}, s{sPW}, {PART_SLOT}"]
    adv += [f"s_xor_b32 s{r}, s{r}, {PART_SLOT}" for r in ([] if HK else [sPR + i for i in range(4)])]
    adv += [f"s_xor_b32 s{r}, s{r}, {MEMB_SLOT}" for r in ([] if HK else [sMEMW, sMEMZ])]
    adv += [f"s_and_b32 s{S_TMP}, s{sSTEP}, {KM_D - 1}", f"s_mul_i32 s{S_TMP}, s{S_TMP}, {32 * KM_UNIT}",
            f"s_add_u32 s{sKM}, s{sKMB}, s{S_TMP}", f"s_bfe_u32 s{sKPH}, s{sSTEP}, {0x10000 + KM_D.bit_length() - 1}",
            f"s_add_u32 s{sOFL}, s{sOFL}, {FL_STRIDE}"]
    if HK:
        adv += [f"s_cmp_ge_u32 s{sSTEP}, {KM_D - 1}", f"s_cselect_b64 s[{sFMK}:{sFMK + 1}], -1, s[{sFMK}:{sFMK + 1}]",
                f"s_add_u32 s{sKPV}, s{sKPV}, {32 * 8192}"]
    adv += [f"s_add_u32 s{sVF}, s{sVF}, {32 * 8192}",
            f"s_add_u32 s{sKF}, s{sKF}, {32 * 8192}", f"s_add_u32 s{sKP}, s{sKP}, {32 * 8192}",
            f"s_add_u32 s{sFL}, s{sFL}, {FL_STRIDE}"]
    seq(tog)
    a("s_barrier")
    if D2:
        a(f"s_sleep {D2}")
    seq(loads2, adv)
    if not HK:
        a.wait_tag("pollx")
    pre_step()
    a.wait(lg=0)
    if HK:
        trace(a, Q[2], Q[2] + 1, True)
        if DBGT == 1:
            a.force_wait(lg=0)
            for k, (wd, st) in enumerate(((5, 1), (13, 63))):
                a(f"s_lshl_b32 s{S_TMP}, s{sLAY}, 2")
                a(f"s_add_u32 s{S_TMP + 1}, s{S_TMP}, {4 * wd}")
                stamp_max(a, f"s{S_TMP + 1}", Q[2], Q[2] + 1, (sSTEP, st))
    stamp(NST)
    dump_stamps()
    a.restore(([], []))
    a(f"s_branch {head}")
    for t in tails:
        t()
    a.restore(([], []))
    a.label(last)
    a.force_wait(vm=0, lg=0)
    if HK:
        trace(a, Q[2], Q[2] + 1, True)
    a(f"s_branch {done}")
```

```python
from common import *
import os, struct

L_MEMA = 0
L_KX = 9216
ROWS = 288
L_QB = 17408
L_KB = L_QB + 8 * ROWS
L_OB = L_KB + 8 * ROWS
L_WO1 = 24576
L_W = 57344
LW_WAVE = 26624
assert L_OB + 8 * ROWS <= L_WO1 and L_W + 4 * LW_WAVE == 163840
PART_W = 2304

vL16, vIDX, vQW, vQR, vOR, vSPARE, vRLD, vRST, vL4, vLW = range(10)
vT0, vT1 = 10, 11
ACCQ, ACCK, ACCV = 12, 20, 28
VXA, VXB = 36, 40
Q = [44 + 4 * i for i in range(7)]
WR = [Q[3], Q[5]]
vSPARE2 = vRLD
WBASE = 72

sH = S_ROLE
sLAY = S_FREE
sSTEP = S_FREE + 1
sMEMR = S_FREE + 2
sMEMR8 = S_FREE + 3
sMEMW = S_FREE + 4
sMEMZ = S_FREE + 5
sPW = S_FREE + 6
sPH = S_FREE + 7
sKP = S_FREE + 8
sKF = S_FREE + 9
sVF = S_FREE + 10
sKM = S_FREE + 11
sFL = S_FREE + 12
sKMB = S_FREE + 13
sKPH = S_FREE + 34
sFMK = S_FREE + 46
sKPV = S_FREE + 24
sOFL = S_FREE + 35
sCEXP = S_FREE + 14
sMAXD = S_FREE + 22
sFAST = S_FREE + 23
sMASK = S_FREE + 18
sMLO = S_FREE + 20
sU = S_FREE + 16
sT = S_FREE + 25
sPR = sT
sJOBC = S_FREE + 30
sONES = S_FREE + 36
sM = S_FREE + 38
SRD_D = 80
S_STAMP = 80

MATS = "qkv"
D1 = [int(x) for x in os.environ.get("D1", "5,5,5").split(",")]
D2 = int(os.environ.get("D2", "2"))
R1LDW = int(os.environ.get("R1LDW", "16"))
WOD = int(os.environ.get("WOD", "3"))
RNT = " nt" if os.environ.get("RNT") else ""
RNTO = " nt" if os.environ.get("RNTO") else ""
NOPUB = int(os.environ.get("NOPUB", "0"))
NOKV = int(os.environ.get("NOKV", "0"))
PFD = int(os.environ.get("PFD", "1"))
RFREE = int(os.environ.get("RFREE", "0"))
TORD = [8, 0, 1, 2, 3, 4, 5, 6, 7]
WO_L = [(TORD[i >> 1], i & 1) for i in (0, 1, 5, 6, 10, 11, 15, 16)]


def f32bits(x):
    return struct.unpack("<I", struct.pack("<f", x))[0]


def build_frag_map():
    fm = {}
    regs = [("v", WBASE + 8 * i) for i in range(23)] + [("a", 8 * i) for i in range(32)]
    ri = 0
    for t in range(9):
        for m in MATS:
            for b in range(2):
                if m == "k" and b == 1:
                    fm[(m, b, t)] = ("l", "W", t)
                else:
                    fm[(m, b, t)] = regs[ri]; ri += 1
    n0 = n1 = 0
    for tau in range(9):
        for ks in range(2):
            if (tau, ks) in WO_L:
                if ks == 0:
                    fm[("o", tau, ks)] = ("l", "W", 9 + n0); n0 += 1
                else:
                    fm[("o", tau, ks)] = ("l", "O", n1); n1 += 1
            else:
                fm[("o", tau, ks)] = regs[ri]; ri += 1
    assert ri == 55 and n0 == 4 and n1 == 4
    return fm


FM = build_frag_map()


def opnd(loc, n=8, off=0):
    k, b = loc[0], loc[1]
    return (vr if k == "v" else ar)(b + off, n)


def lds_addr(loc, w):
    if loc[1] == "W":
        return vLW, loc[2] * 2048
    return vL16, L_WO1 + w * 8192 + loc[2] * 2048


def lw_read(dst, loc, w):
    r, off = lds_addr(loc, w)
    return [f"ds_read_b128 {vr(dst, 4)}, v{r} offset:{off}", f"ds_read_b128 {vr(dst + 4, 4)}, v{r} offset:{off + 1024}"]


def SM(acc, A, B):
    return f"v_smfmac_f32_16x16x64_bf16 {vr(acc, 4)}, {vr(A, 4)}, {B}, v{vIDX}"


def r_setup(a):
    LANE, C, G = 10, 60, 61
    WS = f"s[{SRD_WS}:{SRD_WS + 3}]"
    cexp = hex(f32bits(128 ** -0.5 * 1.4426950408889634))
    a(f"""
    v_and_b32 v{LANE}, 63, v0
    v_and_b32 v{C}, 15, v{LANE}
    v_lshrrev_b32 v{G}, 4, v{LANE}
    v_lshlrev_b32 v{vL16}, 4, v{LANE}
    v_lshlrev_b32 v{vL4}, 2, v{LANE}
    s_mul_i32 s{S_TMP}, s{S_WAVE}, {LW_WAVE}
    s_add_u32 s{S_TMP}, s{S_TMP}, {L_W}
    v_add_u32 v{vLW}, s{S_TMP}, v{vL16}
    s_mov_b32 s{sMAXD}, 0xfffffffe
    s_mov_b32 s{sCEXP}, {cexp}
    s_mov_b32 s{sCEXP + 1}, {cexp}
    s_mov_b32 s{sMASK}, 0x00ff00ff
    s_mov_b32 s{sMASK + 1}, 0x00ff00ff
    s_mov_b32 s{sMLO}, -1
    s_mov_b32 s{sMLO + 1}, 0
    s_mov_b32 s{sONES}, 0x3f803f80
    s_mov_b32 s{sONES + 1}, 0x3f803f80
    s_mov_b32 s{sPH}, 0
    v_lshrrev_b32 v63, 2, v{C}
    v_and_b32 v64, 1, v{C}
    v_lshl_add_u32 v62, v63, 1, v64
    v_bfe_u32 v65, v{C}, 1, 1
    v_mov_b32 v{vIDX}, 0x4444
    v_mov_b32 v63, 0xeeee
    v_cmp_eq_u32 vcc, 0, v65
    v_cndmask_b32 v{vIDX}, v63, v{vIDX}, vcc
    v_mul_u32_u24 v63, {2 * ROWS}, v{G}
    v_lshl_add_u32 v{vQW}, v{C}, 2, v63
    s_lshl_b32 s{S_TMP}, s{S_WAVE}, 6
    v_add_u32 v{vQW}, s{S_TMP}, v{vQW}
    v_mul_u32_u24 v63, {ROWS}, v62
    v_lshl_add_u32 v{vQR}, v{G}, 4, v63
    v_lshl_add_u32 v{vOR}, v{G}, 5, v63
    v_lshl_add_u32 v{vOR}, v65, 4, v{vOR}
    """)
    def between():
        a(f"v_and_b32 v12, 15, v{LANE}")
        a(f"v_lshrrev_b32 v13, 4, v{LANE}")
        WP, GO, CH = 84, 85, 86
        C, G = 12, 13
        M0A, M0B = 14, 15
        a(f"""
        s_lshr_b32 s{WP}, s{sH}, 3
        s_bfe_u32 s{GO}, s{sH}, 0x20001
        s_and_b32 s{CH}, s{sH}, 1
        s_cmp_lt_u32 s{S_WAVE}, 2
        s_cbranch_scc1 Lr_jab
        s_lshr_b32 s{WP}, s{sH}, 1
        s_and_b32 s{WP}, s{WP}, 3
        Lr_jab:
        s_cmp_lt_u32 s{sH}, 8
        s_cselect_b32 s{sJOBC}, 1, 0
        v_bfe_u32 v20, v{C}, 2, 1
        v_lshl_add_u32 v17, v20, 2, v{G}
        v_mul_u32_u24 v17, {PART_H}, v17
        v_lshrrev_b32 v21, 3, v{C}
        v_lshlrev_b32 v21, 2, v21
        v_and_b32 v20, 3, v{C}
        v_add_u32 v21, v21, v20
        v_lshl_add_u32 v{vRLD}, v21, 4, v17
        s_mul_i32 s{S_TMP}, s{WP}, {PART_W}
        s_lshl_b32 s{S_TMP + 1}, s{S_WAVE}, 10
        s_add_u32 s{S_TMP}, s{S_TMP}, s{S_TMP + 1}
        s_lshl_b32 s{S_TMP + 1}, s{CH}, 7
        s_add_u32 s{S_TMP}, s{S_TMP}, s{S_TMP + 1}
        s_lshl_b32 s{S_TMP + 1}, s{GO}, 8
        s_cmp_lt_u32 s{S_WAVE}, 2
        s_cselect_b32 s{S_TMP + 1}, s{S_TMP + 1}, 0
        s_add_u32 s{S_TMP}, s{S_TMP}, s{S_TMP + 1}
        v_add_u32 v{vRLD}, s{S_TMP}, v{vRLD}
        """)
        HI, RR, G1, G0 = 24, 25, 26, 27
        a(f"""
        v_bfe_u32 v{HI}, v{C}, 1, 2
        v_and_b32 v{RR}, 1, v{C}
        v_lshrrev_b32 v{G1}, 1, v{G}
        v_and_b32 v{G0}, 1, v{G}
        s_cmp_lt_u32 s{S_WAVE}, 2
        s_cbranch_scc0 Lr_jc
        s_lshl_b32 s{S_TMP}, s{S_WAVE}, 2
        v_add_u32 v18, s{S_TMP}, v{HI}
        v_lshlrev_b32 v{vRST}, 10, v18
        v_lshl_add_u32 v19, v{G0}, 1, v{RR}
        s_lshl_b32 s{S_TMP}, s{WP}, 4
        s_lshl_b32 s{S_TMP + 1}, s{GO}, 2
        s_add_u32 s{S_TMP}, s{S_TMP}, s{S_TMP + 1}
        v_add_u32 v19, s{S_TMP}, v19
        v_lshl_add_u32 v{vRST}, v19, 4, v{vRST}
        s_lshl_b32 s{S_TMP}, s{CH}, 1
        v_add_u32 v19, s{S_TMP}, v{G1}
        v_lshl_add_u32 v{vRST}, v19, 2, v{vRST}
        s_lshl_b32 s{S_TMP}, s{GO}, 1
        v_add_u32 v19, s{S_TMP}, v{RR}
        v_mul_u32_u24 v19, 576, v19
        v_lshl_add_u32 v19, v18, 4, v19
        v_lshl_add_u32 v19, v{G}, 1, v19
        s_mul_i32 s{S_TMP}, s{WP}, 144
        s_lshl_b32 s{S_TMP + 1}, s{CH}, 3
        s_add_u32 s{S_TMP}, s{S_TMP}, s{S_TMP + 1}
        v_add_u32 v19, s{S_TMP}, v19
        v_lshlrev_b32 v{M0A}, 1, v19
        v_add_u32 v{M0B}, 2, v{M0A}
        s_branch Lr_jd
        Lr_jc:
        s_lshl_b32 s{S_TMP}, s{CH}, 1
        v_add_u32 v18, s{S_TMP}, v{G1}
        v_lshlrev_b32 v19, 2, v18
        v_lshl_add_u32 v19, v{G0}, 1, v19
        v_add_u32 v19, v19, v{RR}
        s_lshl_b32 s{S_TMP}, s{WP}, 4
        v_add_u32 v19, s{S_TMP}, v19
        v_lshlrev_b32 v{vRST}, 4, v19
        v_lshl_add_u32 v{vRST}, v{HI}, 2, v{vRST}
        v_add_u32 v{vRST}, 8192, v{vRST}
        v_lshl_add_u32 v19, v18, 1, v{RR}
        v_mul_u32_u24 v19, 576, v19
        v_lshl_add_u32 v19, v{G0}, 3, v19
        v_add_u32 v19, v19, v{HI}
        s_mul_i32 s{S_TMP}, s{WP}, 144
        s_add_u32 s{S_TMP}, s{S_TMP}, 128
        v_add_u32 v19, s{S_TMP}, v19
        v_lshlrev_b32 v{M0A}, 1, v19
        v_add_u32 v{M0B}, 8, v{M0A}
        Lr_jd:
        """)
        a(f"""
        s_mul_i32 s{sU}, s{sLAY}, {RING_TEAM}
        s_add_u32 s{sU}, s{sU}, {WS_RING}
        s_lshl_b32 s{S_TMP + 1}, s{S_WAVE}, 11
        s_lshl_b32 s{S_TMP + 2}, s{S_WAVE}, 8
        s_add_u32 s{S_TMP + 2}, s{S_TMP + 2}, 8192
        s_mul_i32 s{S_TMP}, s{sH}, {PART_H}
        s_add_u32 s{S_TMP}, s{S_TMP}, s{sU}
        s_mul_i32 s{sPW}, s{S_WAVE}, {PART_W}
        s_add_u32 s{sPW}, s{sPW}, s{S_TMP}
        s_add_u32 s{sMEMZ}, s{sU}, {MEMB_OFF}
        s_xor_b32 s{sMEMW}, s{sMEMZ}, {MEMB_SLOT}
        s_add_u32 s{sMEMR}, s{sMEMZ}, s{S_TMP + 1}
        s_add_u32 s{sMEMR8}, s{sMEMZ}, s{S_TMP + 2}
        s_mul_i32 s{S_TMP}, s{sLAY}, {3 * QKV_M}
        s_lshl_b32 s{S_TMP + 2}, s{sH}, 13
        s_add_u32 s{S_TMP}, s{S_TMP}, s{S_TMP + 2}
        s_add_u32 s{sKP}, s{S_TMP}, {WS_QKV + QKV_M + PFD * 32 * 8192}
        s_add_u32 s{S_TMP}, s{S_TMP}, s{S_TMP + 1}
        s_add_u32 s{sKF}, s{S_TMP}, {WS_QKV + QKV_M}
        s_add_u32 s{sVF}, s{S_TMP}, {WS_QKV + 2 * QKV_M}
        s_mul_i32 s{S_TMP}, s{sLAY}, {KM_D * 32 * KM_UNIT}
        s_lshl_b32 s{S_TMP + 2}, s{sH}, 12
        s_add_u32 s{S_TMP}, s{S_TMP}, s{S_TMP + 2}
        s_lshl_b32 s{S_TMP + 2}, s{S_WAVE}, 9
        s_add_u32 s{S_TMP}, s{S_TMP}, s{S_TMP + 2}
        s_add_u32 s{sKMB}, s{S_TMP}, {WS_KM}
        s_mov_b32 s{sKM}, s{sKMB}
        s_mov_b32 s{sKPH}, 0
        s_mov_b32 s{sOFL}, {WS_FLAGS + FL_XA + (NSEG - (KM_D - 1)) * FL_STRIDE}
        s_mov_b32 s{sFMK}, 0xff
        s_mov_b32 s{sFMK + 1}, 0
        s_mul_i32 s{S_TMP}, s{sLAY}, {NSEG * FL_STRIDE}
        s_lshl_b32 s{S_TMP + 2}, s{sH}, 9
        s_add_u32 s{S_TMP}, s{S_TMP}, s{S_TMP + 2}
        s_add_u32 s{sFL}, s{S_TMP}, {WS_FLAGS + FL_QKV}
        s_mov_b32 s{sSTEP}, 0
        """)
        srd(a, 88, KA_MEM0, 9216)
        A_ = "s[88:91]"
        a(f"""
        s_cmp_eq_u32 s{S_WAVE}, 3
        s_cbranch_scc1 Lr_mem0_done
        s_cmp_lt_u32 s{S_WAVE}, 2
        s_cselect_b32 s{S_TMP}, 1, s{sJOBC}
        s_cmp_eq_u32 s{S_TMP}, 0
        s_cbranch_scc1 Lr_mem0_done
        s_mov_b64 exec, s[{sMASK}:{sMASK + 1}]
        buffer_load_ushort v20, v{M0A}, {A_}, 0 offen
        buffer_load_ushort v21, v{M0B}, {A_}, 0 offen
        v_lshl_or_b32 v20, v21, 16, v20
        v_min_u32 v20, s{sMAXD}, v20
        buffer_store_dword v20, v{vRST}, {WS}, s{sMEMZ} offen sc1
        v_mov_b32 v20, -1
        buffer_store_dword v20, v{vRST}, {WS}, s{sMEMW} offen sc1
        s_mov_b64 exec, -1
        Lr_mem0_done:
        v_mov_b32 v20, 1
        v_mov_b32 v21, 1
        v_mov_b32 v22, 1
        v_mov_b32 v23, 1
        s_xor_b32 s{S_TMP}, s{sPW}, {PART_SLOT}
        """)
        for sreg in (sPW, S_TMP):
            for i in range(2):
                a(f"buffer_store_dwordx4 v[20:23], v{vL16}, {WS}, s{sreg} offen offset:{1024 * i} sc1")
            a(f"buffer_store_dword v20, v{vL4}, {WS}, s{sreg} offen offset:2048 sc1")
        a(f"v_lshrrev_b32 v17, 1, v{vL16}")
        a(f"s_mov_b32 s{S_TMP}, s{sKMB}")
        for i in range(KM_D):
            a(f"buffer_store_dwordx2 v[20:21], v17, {WS}, s{S_TMP} offen offset:2048 sc1")
            a(f"s_mov_b64 exec, s[{sMLO}:{sMLO + 1}]")
            a(f"buffer_store_dwordx4 v[20:23], v{vL16}, {WS}, s{S_TMP} offen sc1")
            a(f"s_mov_b64 exec, -1")
            a(f"s_add_u32 s{S_TMP}, s{S_TMP}, {32 * KM_UNIT}")
        a(f"""
        s_cmp_lg_u32 s{S_WAVE}, 3
        s_cbranch_scc1 Lr_not_w3
        v_and_b32 v{vRST}, 12, v{vL4}
        v_and_b32 v17, 4, v{LANE}
        v_lshl_add_u32 v{vRST}, v17, 5, v{vRST}
        s_add_u32 s{S_TMP}, s{sFL}, {(384 - (KM_D - 1 - 3) * FL_STRIDE) & 0xffffffff}
        s_cmp_eq_u32 s{sLAY}, 0
        s_cselect_b32 s{sOFL}, s{sOFL}, s{S_TMP}
        s_add_u32 s{S_TMP}, s{sFL}, {FL_STRIDE + 128}
        s_min_u32 s{S_TMP + 1}, s{S_TMP}, s{sOFL}
        s_sub_u32 s{S_TMP}, s{S_TMP}, s{S_TMP + 1}
        v_add_u32 v{vRST}, s{S_TMP}, v{vRST}
        s_sub_u32 s{S_TMP}, s{sOFL}, s{S_TMP + 1}
        v_mov_b32 v17, s{S_TMP}
        v_cmp_gt_u32 vcc, 8, v{LANE}
        v_cndmask_b32 v{vRST}, v17, v{vRST}, vcc
        s_mov_b32 s{sOFL}, s{S_TMP + 1}
        Lr_not_w3:
        v_lshlrev_b32 v{vSPARE}, 3, v{vL16}
        s_add_u32 s{sKPV}, s{sKP}, {QKV_M}
        """)
    if R1LDW:
        a(f"s_cmp_eq_u32 s{sLAY}, 0")
        a("s_cbranch_scc1 Lr_noord")
        dbg_wait(a, DB_LOADED, R1LDW, 63, 64, "Lr_abort", "Lr_ord", 32)
        a.label("Lr_noord")
    load_weights(a, LANE, C, G, between)
    a(f"s_add_u32 s{S_TMP}, s{sLAY}, s{S_WAVE}")
    a(f"s_cmp_lg_u32 s{S_TMP}, 0")
    a("s_cbranch_scc1 Lr_nold")
    dbg_add(a, DB_LOADED, 63, 64)
    a.label("Lr_nold")
    for i in range(4):
        a(f"s_add_u32 s{sPR + i}, s{sU}, {i * 8 * PART_H}")


def load_weights(a, LANE, C, G, between):
    srd(a, SRD_A, KA_WQ, 576 * 8192)
    srd(a, SRD_B, KA_WK, 576 * 8192)
    srd(a, SRD_C, KA_WV, 576 * 8192)
    srd(a, SRD_D, KA_BWO, 4096 * 1152)
    SR = {"q": SRD_A, "k": SRD_B, "v": SRD_C}
    GA, GB, G8A, G8B, TR0, TR1, TRA, TRB, TRW = 62, 63, 64, 65, 66, 67, 68, 69, 70
    WA = 50
    sRow, sLB, sWo = sT, sT + 1, sT + 2
    a(f"""
    v_lshlrev_b32 v71, 1, v{G}
    v_xor_b32 v71, v71, v{C}
    v_lshlrev_b32 v71, 4, v71
    v_lshl_add_u32 v{GA}, v{G}, 13, v71
    v_xor_b32 v{GB}, 128, v{GA}
    v_lshrrev_b32 v{G8A}, 1, v{G}
    v_lshlrev_b32 v{G8A}, 3, v{G8A}
    v_and_b32 v{G8B}, 1, v{G}
    v_lshl_add_u32 v{G8A}, v{G8B}, 2, v{G8A}
    v_lshl_add_u32 v{G8A}, v{G8A}, 13, v71
    v_xor_b32 v{G8B}, 128, v{G8A}
    s_mul_i32 s{sRow}, s{S_WAVE}, {144 * 8192}
    s_lshl_b32 s{S_TMP}, s{sH}, 8
    s_add_u32 s{sRow}, s{sRow}, s{S_TMP}
    s_lshl_b32 s{sLB}, s{S_WAVE}, 12
    """)
    a(f"""
    v_lshrrev_b32 v71, 2, v{C}
    v_lshl_add_u32 v{TR0}, v{G}, 3, v71
    v_lshlrev_b32 v{TR0}, 8, v{TR0}
    v_bfe_u32 v{TR1}, v{C}, 1, 1
    s_lshl_b32 s{S_TMP}, s{S_WAVE}, 2
    v_add_u32 v{TR1}, s{S_TMP}, v{TR1}
    v_lshlrev_b32 v71, 1, v71
    v_xor_b32 v{TR1}, v{TR1}, v71
    v_and_b32 v71, 1, v{G}
    v_lshlrev_b32 v71, 3, v71
    v_xor_b32 v{TR1}, v{TR1}, v71
    v_and_b32 v71, 1, v{C}
    v_lshl_add_u32 v{TR0}, v71, 3, v{TR0}
    v_xor_b32 v71, 2, v{TR1}
    v_lshl_add_u32 v{TR1}, v71, 4, v{TR0}
    v_xor_b32 v71, 2, v71
    v_lshl_add_u32 v{TR0}, v71, 4, v{TR0}
    """)
    tiles = [(m, t) for t in range(9) for m in MATS]
    wo_regs = [FM[k] for k in FM if k[0] == "o" and FM[k][0] != "l"]
    park = {}
    for t in range(9):
        park[("k", 1, t)] = wo_regs[t]
    NT = len(tiles)

    def slot(i):
        return ((i + 3) % 10) * 16384

    def dma(i):
        m, t = tiles[i]
        S = f"s[{SR[m]}:{SR[m] + 3}]"
        for j in range(4):
            a(f"s_add_u32 m0, s{sLB}, {slot(i) + j * 1024}")
            if t < 8:
                a(f"s_add_u32 s{S_TMP}, s{sRow}, {(16 * t + 4 * j) * 8192}")
                g = GA if j < 2 else GB
            else:
                a(f"s_add_u32 s{S_TMP}, s{sRow}, {(128 + j) * 8192}")
                g = G8A if j < 2 else G8B
            a(f"buffer_load_dwordx4 v{g}, {S}, s{S_TMP} offen{RNT} lds")

    stages = [(ks, hf, qq) for ks in range(2) for hf in range(2) for qq in range(2)]
    STG = 18432

    def wo_prep():
        for j in range(5):
            a(f"v_add_u32 v71, {64 * j}, v{LANE}")
            a(f"v_mul_u32_u24 v59, {(65536 + 71) // 72}, v71")
            a(f"v_lshrrev_b32 v59, 16, v59")
            a(f"v_mul_u32_u24 v60, 72, v59")
            a(f"v_sub_u32 v71, v71, v60")
            a(f"v_and_b32 v60, 1, v59")
            a(f"v_lshlrev_b32 v60, 4, v60")
            a(f"v_lshrrev_b32 v59, 1, v59")
            a(f"v_lshl_add_u32 v60, v59, 2, v60")
            a(f"v_mul_u32_u24 v60, 1152, v60")
            a(f"v_lshl_add_u32 v{WA + j}, v71, 4, v60")
        a(f"""
        s_lshr_b32 s{S_TMP}, s{S_WAVE}, 1
        s_lshl_b32 s{S_TMP}, s{S_TMP}, 3
        s_and_b32 s{S_TMP + 1}, s{S_WAVE}, 1
        s_lshl_b32 s{S_TMP + 1}, s{S_TMP + 1}, 1
        s_add_u32 s{S_TMP}, s{S_TMP}, s{S_TMP + 1}
        s_lshl_b32 s{S_TMP + 1}, s{sH}, 7
        s_add_u32 s{S_TMP}, s{S_TMP}, s{S_TMP + 1}
        s_mul_i32 s{sWo}, s{S_TMP}, 1152
        s_mul_i32 s{sT + 3}, s{S_WAVE}, {4 * 1152}
        """)

    def wo_dma(z):
        ks, hf, qq = stages[z]
        base = (z % 3) * STG
        W_ = f"s[{SRD_D}:{SRD_D + 3}]"
        a(f"s_add_u32 s{S_TMP}, s{sWo}, {(64 * ks + 32 * hf + qq) * 1152}")
        for j in range(5):
            a(f"s_add_u32 m0, s{sT + 3}, {base + j * 1024}")
            if j == 4:
                a(f"s_mov_b64 exec, s[{sMLO}:{sMLO + 1}]")
            else:
                a("s_nop 0")
            a(f"buffer_load_dwordx4 v{WA + j}, {W_}, s{S_TMP} offen{RNTO} lds")
        a("s_mov_b64 exec, -1")

    a(f"""
    v_lshrrev_b32 v71, 2, v{C}
    v_lshl_add_u32 v{TRW}, v{G}, 2, v71
    v_mul_u32_u24 v{TRW}, 1152, v{TRW}
    v_and_b32 v71, 3, v{C}
    v_lshl_add_u32 v{TRW}, v71, 3, v{TRW}
    s_mul_i32 s{S_TMP}, s{S_WAVE}, 288
    v_add_u32 v{TRW}, s{S_TMP}, v{TRW}
    """)
    wo_prep()
    vq = []
    issued = [0]
    done_at = {}

    def issue(kind, i):
        if kind == "t":
            dma(i); issued[0] += 4
        else:
            wo_dma(i); issued[0] += 5
        done_at[(kind, i)] = issued[0]

    for i in range(9):
        issue("t", i)
    between()
    nxt_t, nxt_z = 9, 0
    for i in range(NT):
        a.force_wait(vm=min(63, issued[0] - done_at[("t", i)]))
        a("s_barrier")
        if i == 0:
            a(f"s_cmp_lg_u32 s{S_WAVE}, 0")
            a("s_cbranch_scc1 Lr_noadd")
            a(f"s_lshl_b32 s{S_TMP}, s{sLAY}, 2")
            a(f"s_add_u32 s{S_TMP}, s{S_TMP}, {DB_TEAM}")
            dbg_add(a, f"s{S_TMP}", 48, 49)
            a.label("Lr_noadd")
        if i >= 1 and nxt_t < NT:
            assert slot(nxt_t) == slot(i - 1) or nxt_t == 9
            issue("t", nxt_t); nxt_t += 1
        elif i == 0:
            issue("t", nxt_t); nxt_t += 1
        elif i >= 21 and nxt_z < 3:
            issue("z", nxt_z); nxt_z += 1
        m, t = tiles[i]
        a(f"v_add_u32 v{TRA}, {slot(i)}, v{TR0}")
        a(f"v_add_u32 v{TRB}, {slot(i)}, v{TR1}")
        for b in range(2):
            loc = park.get((m, b, t), FM[(m, b, t)])
            for q in range(4):
                a(f"ds_read_b64_tr_b16 {opnd(loc, 2, 2 * q)}, v{(TRA, TRB)[b]} offset:{(32 * (q >> 1) + 4 * (q & 1)) * 256}")
        a.wait(lg=0)
    assert nxt_t == NT and nxt_z == 3
    a("s_barrier")
    for t in range(9):
        loc = park[("k", 1, t)]
        a(f"ds_write_b128 v{vLW}, {opnd(loc, 4)} offset:{t * 2048}")
        a(f"ds_write_b128 v{vLW}, {opnd(loc, 4, 4)} offset:{t * 2048 + 1024}")
    a.wait(lg=0)
    PK = 12
    for z in range(8):
        ks, hf, qq = stages[z]
        a.force_wait(vm=min(63, issued[0] - done_at[("z", z)]))
        a("s_barrier")
        if z >= 1 and nxt_z < 8:
            assert nxt_z % 3 == (z - 1) % 3
            issue("z", nxt_z); nxt_z += 1
        q = 2 * hf + qq
        np_ = 0
        for tau in range(9):
            loc = FM[("o", tau, ks)]
            if loc[0] == "l":
                loc = ("v", PK + 8 * np_); np_ += 1
            a(f"ds_read_b64_tr_b16 {opnd(loc, 2, 2 * q)}, v{TRW} offset:{(z % 3) * STG + 32 * tau}")
        a.wait(lg=0)
        if z == 3:
            np_ = 0
            for tau in range(9):
                loc = FM[("o", tau, 0)]
                if loc[0] == "l":
                    a(f"ds_write_b128 v{vLW}, {vr(PK + 8 * np_, 4)} offset:{loc[2] * 2048}")
                    a(f"ds_write_b128 v{vLW}, {vr(PK + 8 * np_ + 4, 4)} offset:{loc[2] * 2048 + 1024}")
                    np_ += 1
            a.wait(lg=0)
    a("s_barrier")
    a(f"s_lshl_b32 s{S_TMP}, s{S_WAVE}, 13")
    a(f"v_add_u32 v71, s{S_TMP}, v{vL16}")
    np_ = 0
    for tau in range(9):
        loc = FM[("o", tau, 1)]
        if loc[0] == "l":
            a(f"ds_write_b128 v71, {vr(PK + 8 * np_, 4)} offset:{L_WO1 + loc[2] * 2048}")
            a(f"ds_write_b128 v71, {vr(PK + 8 * np_ + 4, 4)} offset:{L_WO1 + loc[2] * 2048 + 1024}")
            np_ += 1
    a.force_wait(vm=0, lg=0)
    a("s_barrier")


def flag_wait_kv(a, name, soff_extra, abort):
    if RFREE:
        return
    L = a.newlabel(name)
    a(f"s_mov_b32 s{S_SPIN}, 0")
    a(f"s_add_u32 s{S_TMP}, s{sFL}, {soff_extra + 128}")
    a(f"v_and_b32 v{vT1}, 16, v{vL4}")
    a(f"v_lshlrev_b32 v{vT1}, 3, v{vT1}")
    a(f"v_and_or_b32 v{vT1}, v{vL4}, 12, v{vT1}")
    a.label(L)
    a(f"buffer_load_dword v{vT0}, v{vT1}, s[{SRD_WS}:{SRD_WS + 3}], s{S_TMP} offen sc1")
    spin_check(a, abort)
    a(f"v_cmp_eq_u32 vcc, 0, v{vT0}")
    a(f"s_cbranch_vccz {L}d")
    a("s_sleep 4")
    a(f"s_branch {L}")
    a.label(L + "d")


def r_loop(a, w, fast, abort, done, stamps=False):
    sc = "" if fast else " sc1"
    pfx = f"Lr{w}{'f' if fast else 's'}_"
    WS = f"s[{SRD_WS}:{SRD_WS + 3}]"
    NST = 10
    HK = (w == 3)
    order = [2 * w, 2 * w + 1] + [t for t in range(8) if t >> 1 != w] + [8]

    STSEL = [int(x) for x in os.environ.get("STSEL", "0,1,2,3,4,5,6,7,8,9,10").split(",")]

    def stamp(i):
        if i not in STSEL:
            return
        if stamps == 2 or (stamps and i == NST):
            a(f"s_memrealtime s[{S_STAMP + 2 * i}:{S_STAMP + 1 + 2 * i}]")
        elif stamps:
            a(f"s_memtime s[{S_STAMP + 2 * i}:{S_STAMP + 1 + 2 * i}]")

    def dump_stamps():
        if stamps:
            a.force_wait(lg=0)
            for i in range(NST + 1):
                a(f"v_writelane_b32 v{vT1}, s{S_STAMP + 2 * i}, {i}")
            a(f"v_writelane_b32 v{vT1}, s3, 11")
            a(f"v_writelane_b32 v{vT1}, s4, 12")
            a(f"s_lshl_b32 s{S_TMP}, s{sLAY}, 5")
            a(f"s_add_u32 s{S_TMP}, s{S_TMP}, s{sH}")
            a(f"s_lshl_b32 s{S_TMP}, s{S_TMP}, 6")
            a(f"s_add_u32 s{S_TMP}, s{S_TMP}, s{sSTEP}")
            a(f"s_lshl_b32 s{S_TMP}, s{S_TMP}, 8")
            a(f"s_add_u32 s{S_TMP}, s{S_TMP}, {WS_END + w * 64}")
            a(f"s_mov_b64 exec, 0x1fff")
            a(f"buffer_store_dword v{vT1}, v{vL4}, {WS}, s{S_TMP} offen")
            a(f"s_mov_b64 exec, -1")

    def zero(base, n):
        return [f"v_mov_b64 {vr(base + 2 * i, 2)}, 0" for i in range(n // 2)]

    def seq(*items):
        for it in items:
            if isinstance(it, (list, tuple)):
                seq(*it)
            elif callable(it):
                it()
            elif it:
                a(it)

    cont = {}

    def ld(dst, name, text):
        def f():
            a(text)
            cont[dst] = name
        return f

    def use(reg, name):
        assert cont.get(reg) == name, (w, reg, name, cont.get(reg))

    def M(i):
        return f"s[{sM + 2 * i}:{sM + 2 * i + 1}]"

    def poll(name, loads, checks, between=None, issued=0):
        n = len(loads)
        L = pfx + name
        if not issued:
            seq(loads)
        a(f"s_mov_b32 s{S_SPIN}, 0")
        for i in range(n):
            a(f"s_mov_b64 {M(i)}, 0")
        a.label(L)
        a.auto = False
        for i in range(n):
            a(f"s_mov_b64 exec, {M(i)}")
            a(loads[i])
        a("s_mov_b64 exec, -1")
        spin_check(a, abort)
        for i in range(n):
            a.force_wait(vm=2 * n - 1 - i)
            seq(checks[i])
            if between:
                seq(between[i])
            if i >= 2:
                a(f"s_or_b64 vcc, {M(0) if i == 2 else 'vcc'}, {M(i - 1)}")
        a(f"s_or_b64 vcc, vcc, {M(n - 1)}")
        a(f"s_cbranch_scc1 {L}")
        a.auto = True
        a.vmq = [(frozenset(), "pollx")] * n

    def chk4(q, i):
        return [f"v_max3_u32 v{vT1}, v{q}, v{q + 1}, v{q + 2}", f"v_max_u32 v{vT1}, v{vT1}, v{q + 3}",
                f"v_cmp_eq_u32 {M(i)}, -1, v{vT1}"]

    ACC = {"q": ACCQ, "k": ACCK, "v": ACCV}

    def A_read(dst, t):
        return ld(dst, ("A", t), f"ds_read_b128 {vr(dst, 4)}, v{vL16} offset:{L_MEMA + t * 1024}")

    def LW(buf, key):
        r = lw_read(buf, FM[key], w)
        return [ld(buf, ("W", key), r[0]), ld(buf + 4, ("W2", key), r[1])]

    def S(m, b, t, A, buf=None):
        def f():
            use(A, ("A", t))
            loc = FM[(m, b, t)]
            if loc[0] == "l":
                use(buf, ("W", (m, b, t))); use(buf + 4, ("W2", (m, b, t)))
                B = vr(buf, 8)
            else:
                B = opnd(loc)
            a(SM(ACC[m] + 4 * b, A, B))
        return f

    def qB(dst, j):
        return ld(dst, ("qB", j), f"ds_read_b128 {vr(dst, 4)}, v{vQR} offset:{L_QB + j * 64}")

    def kmA(dst, j):
        return ld(dst, ("km", j), f"ds_read_b128 {vr(dst, 4)}, v{vQR} offset:{L_KB + j * 64}")

    def KX(dst, j, tt):
        return ld(dst, ("KX", j, tt), f"ds_read_b128 {vr(dst, 4)}, v{vL16} offset:{L_KX + (j * 2 + tt) * 1024}")

    def MF(acc, A, B, first, ea=None, eb=None):
        def f():
            if ea is not None:
                use(A, ea)
            if eb is not None:
                use(B, eb)
            a(f"v_mfma_f32_16x16x32_bf16 {vr(acc, 4)}, {vr(A, 4)}, {vr(B, 4)}, {'0' if first else vr(acc, 4)}")
        return f

    def MF16(acc, A, B):
        return f"v_mfma_f32_16x16x16_bf16 {vr(acc, 4)}, {vr(A, 2)}, {vr(B, 2)}, {vr(acc, 4)}"

    def xe(acc):
        X, Y = acc, acc + 4
        return [f"v_add_f32 v{X}, v{X}, v{X + 2}", f"v_add_f32 v{Y}, v{Y}, v{Y + 2}",
                f"v_add_f32 v{X + 1}, v{X + 1}, v{X + 3}", f"v_add_f32 v{Y + 1}, v{Y + 1}, v{Y + 3}",
                f"v_cvt_pk_bf16_f32 v{X + 2}, v{X}, v{Y}",
                f"v_cvt_pk_bf16_f32 v{X + 3}, v{X + 1}, v{Y + 1}"]

    def kdma(i):
        if NOKV & 1:
            return None
        return lambda: a(f"buffer_load_dwordx4 v{vL16}, {WS}, s{sKF} offen offset:{1024 * i} lds", tag="kdma")

    tails = []

    def flag_sample():
        if not RFREE:
            a(f"buffer_load_dword v{vRLD}, v{vRST}, {WS}, s{sOFL} offen sc1")

    def flag_check_prefetch():
        if not RFREE:
            a(f"v_cmp_eq_u32 vcc, 0, v{vRLD}")
            a(f"s_and_b64 vcc, vcc, s[{sFMK}:{sFMK + 1}]")
            a(f"s_cbranch_scc1 {pfx}flbad")
            wn = list(a.win)

            def flbad():
                a.label(pfx + "flbad")
                a.win = wn
                a.restore(([], []))
                a(f"s_cmp_eq_u32 s{sSTEP}, {NSEG - 1}")
                a(f"s_cbranch_scc1 {pfx}flok")
                a(f"s_mov_b32 s{S_SPIN}, 0")
                a.label(pfx + "flp")
                a(f"buffer_load_dword v{vRLD}, v{vRST}, {WS}, s{sOFL} offen sc1")
                spin_check(a, abort)
                a(f"v_cmp_eq_u32 vcc, 0, v{vRLD}")
                a(f"s_and_b64 vcc, vcc, s[{sFMK}:{sFMK + 1}]")
                a(f"s_cbranch_scc1 {pfx}flp")
                a(f"s_branch {pfx}flok")
            tails.append(flbad)
            a.label(pfx + "flok")
        if NOKV & 2:
            return
        a.auto = False
        a(f"buffer_load_dword v{vRLD}, v{vSPARE}, {WS}, s{sKP} offen", tag="pf")
        a(f"buffer_load_dword v{vRLD}, v{vSPARE}, {WS}, s{sKPV} offen", tag="pf")
        a.auto = True

    AO0, AO1, A8 = Q[0], Q[1], vT0
    loads2 = [f"buffer_load_dwordx4 {vr(AO0, 4)}, v{vL16}, {WS}, s{sMEMR} offen sc1",
              f"buffer_load_dwordx4 {vr(AO1, 4)}, v{vL16}, {WS}, s{sMEMR} offen offset:1024 sc1",
              f"buffer_load_dword v{A8}, v{vL4}, {WS}, s{sMEMR8} offen sc1"]

    def pre_step():
        seq(LW(WR[0], ("k", 1, order[0])), LW(WR[1], ("k", 1, order[1])), zero(ACCQ, 24))

    if HK:
        flag_wait_kv(a, pfx + "fw", 0, abort)
    a("s_barrier")
    a(f"s_mov_b32 m0, {L_KX + w * 2048}")
    a("s_nop 0")
    seq(kdma(0), kdma(1))
    a(f"s_add_u32 s{sKF}, s{sKF}, {32 * 8192}")
    a.wait(vm=0)
    seq(loads2)
    pre_step()
    a.wait(lg=0)
    head = pfx + "step"
    a.label(head)
    head_cont = dict(cont)
    poll("p2", loads2, [chk4(AO0, 0), chk4(AO1, 1), [f"v_cmp_eq_u32 {M(2)}, -1, v{A8}"]], issued=1)
    cont[AO0] = ("A", order[0]); cont[AO1] = ("A", order[1])
    stamp(0)
    if stamps:
        a(f"s_mov_b32 s4, s{S_SPIN}")
    ring = [Q[0], Q[1], Q[2], VXA, VXB, Q[2], Q[0], Q[1], Q[2]]

    def Ap(p):
        return ring[p]

    def qk(p, which):
        t = order[p]
        m, b = which
        return S(m, b, t, Ap(p), WR[p & 1])
    def run(slots):
        for mf, fl in slots:
            seq(mf, fl)

    def lwh(p, half):
        return LW(WR[p & 1], ("k", 1, order[p]))[half]
    run([(qk(0, ("q", 0)), [f"ds_write_b128 v{vL16}, {vr(AO0, 4)} offset:{L_MEMA + order[0] * 1024}"]),
         (qk(0, ("q", 1)), [f"ds_write_b128 v{vL16}, {vr(AO1, 4)} offset:{L_MEMA + order[1] * 1024}"]),
         (qk(0, ("k", 0)), [f"ds_write_b32 v{vL4}, v{A8} offset:{L_MEMA + 8192 + w * 256}"]),
         (qk(0, ("k", 1)), [])])
    a.barrier(lg=0)
    seq(A_read(Ap(2), order[2]))
    fl = {4: A_read(Ap(3), order[3]), 5: lwh(2, 0), 6: lwh(2, 1), 7: A_read(Ap(4), order[4]),
          9: lwh(3, 0), 10: lwh(3, 1), 12: A_read(Ap(5), order[5]),
          16: f"buffer_load_dwordx4 {vr(VXA, 4)}, v{vL16}, {WS}, s{sVF} offen",
          20: f"buffer_load_dwordx4 {vr(VXB, 4)}, v{vL16}, {WS}, s{sVF} offen offset:1024",
          19: [lambda: a.wait_tag("pollx"), A_read(Ap(6), order[6])], 23: A_read(Ap(7), order[7]), 24: A_read(Ap(8), order[8])}
    for p in range(4, 9):
        fl[4 * p - 3] = lwh(p, 0)
        fl[4 * p - 2] = lwh(p, 1)
    tail = [(7, ("q", 0)), (7, ("q", 1)), (8, ("q", 0)), (8, ("q", 1)), (7, ("k", 0)), (7, ("k", 1)), (8, ("k", 0)), (8, ("k", 1))]
    spine = [(p, mb) for p in range(7) for mb in (("q", 0), ("q", 1), ("k", 0), ("k", 1))] + tail
    if NOKV & 4:
        fl[16] = fl[20] = None
    qe, ke = xe(ACCQ), xe(ACCK)
    SX, SMm, X4 = ACCQ, ACCK + 4, ACCK
    fl[33] = [KX(Q[5], 0, 0), qe[0]]
    fl[34] = [KX(Q[6], 0, 1), qe[1]]
    fl[35] = [KX(Q[3], 1, 0), qe[2], qe[3], qe[4], qe[5]]
    if HK:
        fl[8] = [fl.get(8), flag_sample]
    for sl in range(4, 36):
        p, mb = spine[sl]
        seq(qk(p, mb), fl.get(sl))
        if sl == 7:
            stamp(1)
    seq(f"ds_write_b32 v{vQW}, v{ACCQ + 2} offset:{L_QB}",
        f"ds_write_b32 v{vQW}, v{ACCQ + 3} offset:{L_QB + ROWS}")
    stamp(2)

    def V(p, A):
        return [S("v", 0, order[p], A), S("v", 1, order[p], A)]
    run([(V(8, Q[2])[0], [KX(Q[4], 1, 1), ke[0], ke[1], ke[2], ke[3]]),
         (V(8, Q[2])[1], [A_read(ACCQ, order[0]), ke[4], ke[5],
                          f"ds_write_b32 v{vQW}, v{ACCK + 2} offset:{L_KB}",
                          f"ds_write_b32 v{vQW}, v{ACCK + 3} offset:{L_KB + ROWS}"]),
         (V(7, Q[1])[0], [A_read(ACCQ + 4, order[1])]),
         (V(7, Q[1])[1], [A_read(ACCK, order[2])]),
         (V(6, Q[0])[0], [A_read(ACCK + 4, order[3])]),
         (V(6, Q[0])[1], [])])
    a.barrier(lg=3)
    stamp(3)
    ve = [f"v_add_f32 v{ACCV}, v{ACCV}, v{ACCV + 2}", f"v_add_f32 v{ACCV + 1}, v{ACCV + 1}, v{ACCV + 3}",
          f"v_add_f32 v{ACCV + 4}, v{ACCV + 4}, v{ACCV + 6}", f"v_add_f32 v{ACCV + 5}, v{ACCV + 5}, v{ACCV + 7}",
          f"v_cvt_pk_bf16_f32 v{ACCV + 2}, v{ACCV}, v{ACCV + 1}",
          f"v_cvt_pk_bf16_f32 v{ACCV + 3}, v{ACCV + 4}, v{ACCV + 5}"]
    seq(qB(Q[0], 0))
    run([(V(0, ACCQ)[0], [A_read(Q[2], order[4])]),
         (V(0, ACCQ)[1], [kmA(ACCQ, 0)]),
         (V(1, ACCQ + 4)[0], [A_read(Q[1], order[5])]),
         (V(1, ACCQ + 4)[1], []),
         (V(2, ACCK)[0], []),
         (V(2, ACCK)[1], [qB(ACCK, 1)]),
         (V(3, ACCK + 4)[0], []),
         (V(3, ACCK + 4)[1], []),
         (V(4, Q[2])[0], []),
         (V(4, Q[2])[1], [kmA(Q[2], 1)]),
         (V(5, Q[1])[0], []),
         (V(5, Q[1])[1], [qB(Q[1], 2)])])
    PBQ = ACCV + 4
    run([(MF(SMm, ACCQ, Q[0], True, ("km", 0), ("qB", 0)), [flag_check_prefetch] if HK else []),
         (MF(SX, Q[5], Q[0], True, ("KX", 0, 0), ("qB", 0)), [KX(Q[5], 2, 0)]),
         (MF(SX + 4, Q[6], Q[0], True, ("KX", 0, 1), ("qB", 0)), [KX(Q[6], 2, 1)]),
         (MF(SMm, Q[2], ACCK, False, ("km", 1), ("qB", 1)), [kmA(Q[0], 2), ve[0], ve[1]]),
         (MF(SX, Q[3], ACCK, False, ("KX", 1, 0), ("qB", 1)), [qB(Q[2], 3), ve[2], ve[3]]),
         (MF(SX + 4, Q[4], ACCK, False, ("KX", 1, 1), ("qB", 1)), [KX(Q[3], 3, 0), ve[4], ve[5]]),
         (MF(SMm, Q[0], Q[1], False, ("km", 2), ("qB", 2)),
          [kmA(ACCK, 3), f"v_lshrrev_b32 v{vT0}, 8, v{vL16}", f"v_mul_u32_u24 v{vT0}, {ROWS}, v{vT0}"]),
         (MF(SX, Q[5], Q[1], False, ("KX", 2, 0), ("qB", 2)),
          [KX(Q[4], 3, 1), f"v_and_b32 v{vT1}, 0xf0, v{vL16}", f"v_add_u32 v{vT0}, v{vT0}, v{vT1}"]),
         (MF(SX + 4, Q[6], Q[1], False, ("KX", 2, 1), ("qB", 2)),
          [f"ds_read_b128 {vr(PBQ, 4)}, v{vT0} offset:{L_KB + 2 * w * ROWS}", f"v_lshrrev_b32 v{vT1}, 1, v{vL16}",
           f"v_bfi_b32 v{ACCV + 2}, 1, s{sKPH}, v{ACCV + 2}"]),
         (MF(SMm, ACCK, Q[2], False, ("km", 3), ("qB", 3)),
          [f"buffer_store_dwordx2 {vr(ACCV + 2, 2)}, v{vT1}, {WS}, s{sKM} offen offset:2048 sc1" if not NOPUB else None,
           f"v_mov_b32 v{Q[1] + 1}, 0", f"v_mov_b32 v{Q[1] + 2}, 0"]),
         (MF(SX, Q[3], Q[2], False, ("KX", 3, 0), ("qB", 3)),
          [f"v_mov_b64 {vr(Q[5], 2)}, s[{sONES}:{sONES + 1}]", f"v_mov_b64 {vr(Q[5] + 2, 2)}, s[{sONES}:{sONES + 1}]"]),
         (MF(SX + 4, Q[4], Q[2], False, ("KX", 3, 1), ("qB", 3)),
          [f"v_bfi_b32 v{PBQ}, 1, s{sKPH}, v{PBQ}", f"s_mov_b64 exec, s[{sMLO}:{sMLO + 1}]",
           f"buffer_store_dwordx4 {vr(PBQ, 4)}, v{vL16}, {WS}, s{sKM} offen sc1" if not NOPUB else None,
           "s_mov_b64 exec, -1"])])
    stamp(4)
    MX, T1 = vT0, vT1
    MP = X4
    LQ = Q[6]
    P4 = Q[0]
    PB = Q[1]
    OX, OY = Q[2], Q[3]
    ONES = Q[5]
    WB = [Q[4], VXA]
    wo_buf = {k: WB[i % 2] for i, k in enumerate(WO_L)}

    def wo_rd(i):
        return LW(wo_buf[WO_L[i]], ("o",) + WO_L[i])

    pf = [f"v_pk_fma_f32 {vr(b, 2)}, {vr(b, 2)}, s[{sCEXP}:{sCEXP + 1}], {vr(MP, 2)} op_sel_hi:[1,1,0] neg_lo:[0,0,1] neg_hi:[0,0,1]"
          for b in (SMm, SX, SX + 2, SX + 4, SX + 6)]
    ex = [f"v_exp_f32 v{r}, v{r}" for r in [SMm, SMm + 1] + list(range(SX, SX + 8))]
    seq(f"v_max3_f32 v{MX}, v{SMm}, v{SMm + 1}, v{SX}",
        f"v_max3_f32 v{MX}, v{MX}, v{SX + 1}, v{SX + 2}",
        f"v_max3_f32 v{MX}, v{MX}, v{SX + 3}, v{SX + 4}",
        f"v_max3_f32 v{MX}, v{MX}, v{SX + 5}, v{SX + 6}",
        f"v_max_f32 v{MX}, v{MX}, v{SX + 7}",
        f"v_mov_b32 v{T1}, v{MX}",
        f"v_permlane32_swap_b32 v{MX}, v{T1}",
        f"v_max_f32 v{MX}, v{MX}, v{T1}",
        f"v_mov_b32 v{T1}, v{MX}",
        f"v_permlane16_swap_b32 v{MX}, v{T1}",
        f"v_max_f32 v{MX}, v{MX}, v{T1}",
        f"v_mul_f32 v{MP}, s{sCEXP}, v{MX}",
        pf[0], pf[1], ex[0], ex[1], pf[2], ex[2], ex[3], pf[3],
        f"v_cvt_pk_bf16_f32 v{PB}, v{SMm}, v{SMm + 1}", ex[4], pf[4],
        f"v_cvt_pk_bf16_f32 v{PB + 3}, v{SMm}, v{SMm + 1}", ex[5],
        f"v_cvt_pk_bf16_f32 v{P4}, v{SX}, v{SX + 1}", ex[6], ex[7],
        f"v_cvt_pk_bf16_f32 v{P4 + 1}, v{SX + 2}, v{SX + 3}", ex[8], ex[9],
        f"v_cvt_pk_bf16_f32 v{P4 + 2}, v{SX + 4}, v{SX + 5}",
        f"v_cvt_pk_bf16_f32 v{P4 + 3}, v{SX + 6}, v{SX + 7}",
        f"v_mfma_f32_16x16x16_bf16 {vr(LQ, 4)}, {vr(ONES, 2)}, {vr(PB, 2)}, 0",
        f"v_mfma_f32_16x16x16_bf16 {vr(OX, 4)}, {vr(ACCV + 2, 2)}, {vr(PB, 2)}, 0",
        f"v_mfma_f32_16x16x16_bf16 {vr(OY, 4)}, {vr(ACCV + 2, 2)}, {vr(PB + 2, 2)}, 0",
        MF(LQ, ONES, P4, False),
        MF(OX, VXA, P4, False), wo_rd(0)[0] if False else None,
        MF(OY, VXB, P4, False), wo_rd(1)[0], wo_rd(1)[1],
        wo_rd(0)[0],
        f"v_rcp_f32 v{MX}, v{LQ}")
    stamp(5)
    OP = ACCQ + 4
    for i in (0, 2):
        a(f"v_pk_mul_f32 {vr(OX + i, 2)}, {vr(OX + i, 2)}, {vr(MX, 2)} op_sel_hi:[1,0]")
        a(f"v_pk_mul_f32 {vr(OY + i, 2)}, {vr(OY + i, 2)}, {vr(MX, 2)} op_sel_hi:[1,0]")
        a(f"v_cvt_pk_bf16_f32 v{OP + i}, v{OX + i}, v{OY + i}")
        a(f"v_cvt_pk_bf16_f32 v{OP + i + 1}, v{OX + i + 1}, v{OY + i + 1}")
    a(f"ds_write_b128 v{vQR}, {vr(OP, 4)} offset:{L_OB + w * 64}")
    TA = [ACCQ, ACCK, ACCK + 4, ACCV + 4, Q[0], Q[1], Q[6], ACCQ + 4, ACCV]
    OA0, OA1 = Q[2], Q[3]
    seq(wo_rd(0)[1], zero(ACCQ, 4), zero(ACCK, 8), zero(ACCV + 4, 4), zero(Q[0], 8))
    a.barrier(lg=1)
    a(f"ds_read_b128 {vr(OA0, 4)}, v{vOR} offset:{L_OB}")
    a(f"ds_read_b128 {vr(OA1, 4)}, v{vOR} offset:{L_OB + 128}")
    seq(zero(Q[6], 4), zero(ACCV, 4), zero(OP, 4))
    last = pfx + "last"
    seq(f"s_cmp_eq_u32 s{sSTEP}, {NSEG - 1}", f"s_cbranch_scc1 {last}")
    stamp(6)
    ST = [TA[0], TA[4], TA[8]]

    def epi(tau):
        acc = TA[tau]
        dst = ST[tau // 4] + tau % 4
        ops = [f"v_add_f32 v{acc}, v{acc}, v{acc + 2}", f"v_add_f32 v{acc + 1}, v{acc + 1}, v{acc + 3}",
               f"v_cvt_pk_bf16_f32 v{dst}, v{acc}, v{acc + 1}"]
        if tau % 4 == 0:
            ops.append(f"v_bfi_b32 v{dst}, 1, s{sPH}, v{dst}")
        if tau in (3, 7):
            ops.append(f"buffer_store_dwordx4 {vr(ST[tau // 4], 4)}, v{vL16}, {WS}, s{sPW} offen offset:{1024 * (tau // 4)}{sc}")
        if tau == 8:
            ops.append(f"buffer_store_dword v{dst}, v{vL4}, {WS}, s{sPW} offen offset:2048{sc}")
        return ops

    nxt = 2
    fill = []
    pend = []
    for idx in range(18):
        tau, ks = TORD[idx >> 1], idx & 1
        k = ("o", tau, ks)
        if FM[k][0] == "l":
            buf = wo_buf[(tau, ks)]
            use(buf, ("W", k)); use(buf + 4, ("W2", k))
            B = vr(buf, 8)
        else:
            B = opnd(FM[k])
        a(SM(TA[tau], (OA0, OA1)[ks], B))
        if pend:
            seq(pend.pop(0))
        elif idx in (3, 8):
            seq(kdma(idx // 8))
        if FM[k][0] == "l" and nxt < len(WO_L):
            r = wo_rd(nxt)
            seq(r[0])
            pend.append(r[1])
            nxt += 1
        n = 0
        while fill and fill[0][0] <= idx and (n < 2 or not fill[0][1].startswith("v_")):
            n += fill[0][1].startswith("v_")
            a(fill.pop(0)[1])
        if ks == 1:
            fill += [(idx + WOD, t) for t in epi(tau)]
    for _, t in fill:
        a(t)
    stamp(7)
    tog = [f"s_xor_b32 s{r}, s{r}, {MEMB_SLOT}" for r in [sMEMR, sMEMR8]]

    if not HK:
        if w == 2:
            a(f"s_cmp_eq_u32 s{sJOBC}, 0")
            a(f"s_cbranch_scc1 {pfx}nojob")
        LD = [Q[2], Q[3], Q[4], Q[5]]
        SEL, D = VXA, VXB
        loads1 = [f"buffer_load_dwordx4 {vr(LD[i], 4)}, v{vRLD}, {WS}, s{sPR + i} offen sc1" for i in range(4)]
        if w < 2:
            checks = [[f"v_and_b32 v{vT1}, 1, v{LD[i]}", f"v_cmp_ne_u32 {M(i)}, s{sPH}, v{vT1}"] for i in range(4)]
        else:
            checks = [[f"v_xor_b32 v{vT0}, v{LD[i]}, v{LD[i] + 1}", f"v_xor_b32 v{vT1}, v{LD[i] + 2}, v{LD[i] + 3}",
                       f"v_or_b32 v{vT0}, v{vT0}, v{vT1}", f"v_xor_b32 v{vT1}, v{LD[i]}, v{LD[i] + 2}",
                       f"v_or_b32 v{vT0}, v{vT0}, v{vT1}", f"v_xor_b32 v{vT1}, s{sPH}, v{LD[i]}",
                       f"v_or_b32 v{vT0}, v{vT0}, v{vT1}", f"v_and_b32 v{vT0}, 1, v{vT0}",
                       f"v_cmp_ne_u32 {M(i)}, 0, v{vT0}"] for i in range(4)]
        betw = [[MF(D, LD[i], SEL, i == 0)] for i in range(4)]
        stamp(9)
        a(f"v_bfe_u32 v{vT0}, v{vL16}, 4, 4")
        a(f"v_mov_b32 v{vT1}, 0x3f80")
        a(f"v_mov_b32 v{D}, 0x3f800000")
        for d in range(4):
            a(f"v_cmp_eq_u32 vcc, {2 * d}, v{vT0}")
            a(f"v_cmp_eq_u32 s[{sU}:{sU + 1}], {2 * d + 1}, v{vT0}")
            a(f"v_cndmask_b32 v{SEL + d}, 0, v{vT1}, vcc")
            a(f"v_cndmask_b32 v{SEL + d}, v{SEL + d}, v{D}, s[{sU}:{sU + 1}]")
        if D1[w]:
            a(f"s_sleep {D1[w]}")
        poll("p1", loads1, checks, betw)
        stamp(8)
        if stamps:
            a(f"s_mov_b32 s3, s{S_SPIN}")
        seq(f"v_permlane16_swap_b32 v{D}, v{D + 2}", f"v_permlane16_swap_b32 v{D + 1}, v{D + 3}",
            f"s_mov_b64 exec, s[{sMASK}:{sMASK + 1}]",
            f"v_add_f32 v{D}, v{D}, v{D + 2}", f"v_add_f32 v{D + 1}, v{D + 1}, v{D + 3}",
            f"v_cvt_pk_bf16_f32 v{D}, v{D}, v{D + 1}", f"v_min_u32 v{D}, s{sMAXD}, v{D}",
            f"buffer_store_dword v{D}, v{vRST}, {WS}, s{sMEMW} offen{sc}",
            f"v_mov_b32 v{D + 1}, -1",
            f"buffer_store_dword v{D + 1}, v{vRST}, {WS}, s{sMEMZ} offen{sc}",
            f"s_mov_b64 exec, -1")
        if w == 2:
            a(f"s_branch {pfx}jobdone")
            a.label(pfx + "nojob")
            a.restore(([], []))
            a.label(pfx + "jobdone")
            a.vmq = [(frozenset(), "pollx")] * 4 + [(frozenset(), "st")] * 3
    adv = [f"s_add_u32 s{sSTEP}, s{sSTEP}, 1", f"s_bfe_u32 s{sPH}, s{sSTEP}, 0x10001",
           f"s_xor_b32 s{sPW}, s{sPW}, {PART_SLOT}"]
    adv += [f"s_xor_b32 s{r}, s{r}, {PART_SLOT}" for r in ([] if HK else [sPR + i for i in range(4)])]
    adv += [f"s_xor_b32 s{r}, s{r}, {MEMB_SLOT}" for r in ([] if HK else [sMEMW, sMEMZ])]
    adv += [f"s_and_b32 s{S_TMP}, s{sSTEP}, {KM_D - 1}", f"s_mul_i32 s{S_TMP}, s{S_TMP}, {32 * KM_UNIT}",
            f"s_add_u32 s{sKM}, s{sKMB}, s{S_TMP}", f"s_bfe_u32 s{sKPH}, s{sSTEP}, {0x10000 + KM_D.bit_length() - 1}",
            f"s_add_u32 s{sOFL}, s{sOFL}, {FL_STRIDE}"]
    if HK:
        adv += [f"s_and_b32 s{S_TMP}, s{sSTEP}, 3", f"s_cmp_eq_u32 s{S_TMP}, 3", f"s_cselect_b32 s{S_TMP}, 1, 0",
                f"s_cmp_eq_u32 s{sLAY}, 0", f"s_cselect_b32 s{S_TMP}, 1, s{S_TMP}",
                f"s_cmp_ge_u32 s{sSTEP}, {KM_D - 1}", f"s_cselect_b32 s{S_TMP}, s{S_TMP}, 0",
                f"s_cmp_lg_u32 s{S_TMP}, 0", f"s_cselect_b64 s[{sFMK}:{sFMK + 1}], -1, 0xff",
                f"s_add_u32 s{sKPV}, s{sKPV}, {32 * 8192}"]
    adv += [f"s_add_u32 s{sVF}, s{sVF}, {32 * 8192}",
            f"s_add_u32 s{sKF}, s{sKF}, {32 * 8192}", f"s_add_u32 s{sKP}, s{sKP}, {32 * 8192}",
            f"s_add_u32 s{sFL}, s{sFL}, {FL_STRIDE}"]
    seq(tog)
    a("s_barrier")
    if D2:
        a(f"s_sleep {D2}")
    seq(loads2, adv)
    if not HK:
        a.wait_tag("pollx")
    pre_step()
    a.wait(lg=0)
    if HK:
        trace(a, Q[2], Q[2] + 1, True)
        if DBGT == 1:
            a.force_wait(lg=0)
            for k, (wd, st) in enumerate(((5, 1), (13, 63))):
                a(f"s_lshl_b32 s{S_TMP}, s{sLAY}, 2")
                a(f"s_add_u32 s{S_TMP + 1}, s{S_TMP}, {4 * wd}")
                stamp_max(a, f"s{S_TMP + 1}", Q[2], Q[2] + 1, (sSTEP, st))
    stamp(NST)
    dump_stamps()
    a.restore(([], []))
    a(f"s_branch {head}")
    for t in tails:
        t()
    a.restore(([], []))
    a.label(last)
    a.force_wait(vm=0, lg=0)
    if HK:
        trace(a, Q[2], Q[2] + 1, True)
    a(f"s_branch {done}")
```

```python
from pool import *


def MF16(acc, A, B):
    return f"v_mfma_f32_16x16x16_bf16 {vr(acc, 4)}, {vr(A, 2)}, {vr(B, 2)}, {vr(acc, 4)}"


def role_ta(a, abort, done):
    lane_setup(a, 12)
    vKM, vL8 = 9, 10
    BI, ON, PB, PX, LQ = 236, 16, 20, 24, 28
    SX, SMm = 32, 44
    KMf, VMf, O, OUT = 52, 68, 76, 108
    SET = [("v", 140), ("a", 0)]
    NEG = hex(f32bits(-1e30))
    sQO, sNQ, sRDY, sPN, sKPH, sKMB = sO1, sK3, sPF, sK1, sCL, sCS

    OSC = [" sc1"]
    sPM = sO3 + 0 if False else sSB

    def publish():
        a(f"s_and_b32 s{S_TMP}, s{sPN}, s{sPM}")
        a("s_cselect_b64 exec, 1, 0")
        a(f"buffer_store_dword v{vONE}, v{vZERO}, {WS}, s{sPEND} offen")
        a(f"s_andn2_b32 s{S_TMP}, s{sPN}, s{sPM}")
        a("s_cselect_b64 exec, 1, 0")
        a(f"buffer_store_dword v{vONE}, v{vZERO}, {WS}, s{sPEND} offen sc1")
        a("s_mov_b64 exec, -1")
        a(f"s_add_u32 s{sPEND}, s{sPEND}, s{sPN}")
        a(f"s_mov_b32 s{sPN}, 0")

    def fr(st, m, i):
        k, b = SET[st]
        return f"{k}[{b + 32 * m + 4 * i}:{b + 32 * m + 4 * i + 3}]"

    a(f"""
    s_lshl_b32 s{S_TMP}, s{S_ROLE}, 2
    s_add_u32 s{S_TMP}, s{S_TMP}, s{S_WAVE}
    s_lshr_b32 s{sNL}, s{S_TMP}, 5
    s_and_b32 s{sK2}, s{S_TMP}, 31
    s_mov_b32 s{sNS}, 0
    s_mov_b32 s{sK4}, {hex(f32bits(128 ** -0.5 * 1.4426950408889634))}
    v_lshrrev_b32 v{vT0}, 2, v{vC}
    v_and_b32 v{vT1}, 1, v{vC}
    v_lshl_add_u32 v{vT0}, v{vT0}, 1, v{vT1}
    v_lshlrev_b32 v{vKM}, 8, v{vT0}
    v_lshl_add_u32 v{vKM}, v{vG}, 4, v{vKM}
    v_lshrrev_b32 v{vL8}, 1, v{vL16}
    v_mov_b32 v{vT1}, {NEG}
    v_mov_b32 v{PB + 1}, 0
    v_mov_b32 v{PB + 2}, 0
    s_mul_i32 s{sNFL}, s{sNL}, {NSEG * FL_STRIDE}
    s_lshl_b32 s{S_TMP}, s{sK2}, 9
    s_add_u32 s{sNFL}, s{sNFL}, s{S_TMP}
    s_add_u32 s{sNFL}, s{sNFL}, {WS_FLAGS + FL_QKV}
    s_mul_i32 s{sNQ}, s{sNL}, {3 * QKV_M}
    s_lshl_b32 s{S_TMP}, s{sK2}, 13
    s_add_u32 s{sNQ}, s{sNQ}, s{S_TMP}
    s_add_u32 s{sNQ}, s{sNQ}, {WS_QKV}
    s_lshl_b32 s{sO2}, s{sNL}, 11
    s_add_u32 s{sO2}, s{sO2}, s{sK2}
    s_lshl_b32 s{sO3}, s{sO2}, 13
    s_add_u32 s{sO3}, s{sO3}, {WS_OF}
    s_mul_i32 s{sKMB}, s{sNL}, {KM_D * 32}
    s_add_u32 s{sKMB}, s{sKMB}, s{sK2}
    s_lshl_b32 s{sKMB}, s{sKMB}, 12
    s_add_u32 s{sKMB}, s{sKMB}, {WS_KM}
    s_mul_i32 s{sPEND}, s{sNL}, {NSEG * FL_STRIDE}
    s_lshr_b32 s{S_TMP}, s{sK2}, 2
    s_lshl_b32 s{S_TMP}, s{S_TMP}, 7
    s_add_u32 s{sPEND}, s{sPEND}, s{S_TMP}
    s_lshl_b32 s{S_TMP}, s{S_WAVE}, 2
    s_add_u32 s{sPEND}, s{sPEND}, s{S_TMP}
    s_add_u32 s{sPEND}, s{sPEND}, {WS_FLAGS + FL_OF}
    s_mov_b32 s{SRD_C}, s{SRD_WS}
    s_mov_b32 s{SRD_C + 1}, s{SRD_WS + 1}
    s_mov_b32 s{SRD_C + 2}, 0
    s_mov_b32 s{SRD_C + 3}, 0x00020000
    s_mov_b32 s{sRDY}, 0
    s_mov_b32 s{sPN}, 0
    s_mov_b32 s{sSB}, 0
    s_lshl_b32 s{sO2}, s{sNL}, 2
    s_add_u32 s{sO2}, s{sO2}, {DB_TEAM}
    """)
    for i in range(4):
        a(f"v_mov_b32 v{ON + i}, 0x3f803f80")
        a(f"v_lshl_add_u32 v{vT0}, v{vG}, 2, {i}")
        a(f"v_cmp_le_u32 vcc, v{vT0}, v{vC}")
        a(f"v_cndmask_b32 v{BI + i}, v{vT1}, v{vZERO}, vcc")

    def qkv_ops(st, srd_):
        ops = []
        for m in range(3):
            for i in range(8):
                pre = [f"s_add_u32 s{sQO}, s{sNQ}, {m * QKV_M + i * 1024}"] if i % 4 == 0 else []
                ops.append(pre + [f"buffer_load_dwordx4 {fr(st, m, i)}, v{vL16}, {srd_}, s{sQO} offen offset:{(i % 4) * 1024}"])
        return ops

    km_ops = ([f"buffer_load_dwordx4 {vr(KMf + 4 * j, 4)}, v{vKM}, {WS}, s{sO2} offen offset:{j * 64} sc1" for j in range(4)] +
              [f"buffer_load_dwordx2 {vr(VMf + 2 * j, 2)}, v{vL8}, {WS}, s{sO2} offen offset:{2048 + j * 512} sc1" for j in range(4)])

    def km_check():
        heads = [KMf + 4 * j for j in range(4)] + [VMf + 2 * j for j in range(4)]
        a(f"v_xor_b32 v{vT0}, s{sKPH}, v{heads[0]}")
        for r in heads[1:]:
            a(f"v_xor_b32 v{vT1}, s{sKPH}, v{r}")
            a(f"v_or_b32 v{vT0}, v{vT0}, v{vT1}")
        a(f"v_and_b32 v{vT0}, 1, v{vT0}")
        a(f"v_cmp_ne_u32 vcc, 0, v{vT0}")

    MX, T1 = vT0, vT1
    dbg_wait(a, DB_POOL, N_POOL, vT0, vT1, abort, "Lta_ini", 64)
    dbg_wait(a, f"s{sO2}", 32, vT0, vT1, abort, "Lta_team", 64)
    trace(a, vT0, vT1)
    class_pure(a, 3, sF1, vT0, vT1, abort, "Lta_pure")

    def pick(st, here):
        a(f"""
        s_sub_u32 s{S_TMP}, s{sNS}, {TW_S0 - 1}
        s_mul_i32 s{S_TMP + 1}, s{S_TMP}, 43
        s_lshr_b32 s{S_TMP + 1}, s{S_TMP + 1}, 7
        s_mul_i32 s{S_TMP + 1}, s{S_TMP + 1}, 3
        s_cmp_eq_u32 s{S_TMP + 1}, s{S_TMP}
        s_cselect_b32 s{S_TMP + 1}, 1, 0
        s_cmp_lt_u32 s{sNS}, {TW_S0}
        s_cselect_b32 s{S_TMP + 1}, 1, s{S_TMP + 1}
        s_cmp_eq_u32 s{sNL}, 0
        s_cselect_b32 s{S_TMP + 1}, 1, s{S_TMP + 1}
        s_and_b32 s{S_TMP + 1}, s{S_TMP + 1}, s{sF1}
        """)
        if here == "F":
            a(f"s_cbranch_scc0 LtaS{st}_in")
        else:
            a(f"s_cbranch_scc1 LtaF{st}_in")
    for osc, st in (("", 0), ("", 1), (" sc1", 0), (" sc1", 1)):
        pre = "LtaS" if osc else "LtaF"
        nm = f"{pre}{st}"
        a.label(nm)
        a.restore(([], []))
        pick(st, pre[-1])
        a.label(nm + "_in")
        OSC[0] = osc
        a(f"s_and_b32 s{S_TMP}, s{sNS}, {KM_D - 1}")
        a(f"s_mul_i32 s{S_TMP}, s{S_TMP}, {32 * KM_UNIT}")
        a(f"s_add_u32 s{sO2}, s{sKMB}, s{S_TMP}")
        a(f"s_bfe_u32 s{sKPH}, s{sNS}, {0x10000 + KM_D.bit_length() - 1}")
        a(f"s_cmp_eq_u32 s{sRDY}, 1")
        a(f"s_cbranch_scc1 {nm}_have")
        a.force_wait(vm=0)
        publish()
        flag_block(a, nm + "_f", abort)
        seq(a, qkv_ops(st, WS))
        a.label(nm + "_have")
        a.restore(([], []))
        a(f"s_add_u32 s{S_TMP}, s{sNFL}, {FL_STRIDE}")
        a(f"buffer_load_dword v{vFL1}, v{vFLA}, {WS}, s{S_TMP} offen sc1")
        seq(a, km_ops)
        a.force_wait(vm=9)
        publish()
        for j in range(4):
            for (tt, kt, d) in ((0, 0, 0), (1, 0, 4), (1, 1, 8)):
                a(MF(SX + d, fr(st, 1, 2 * j + kt), fr(st, 0, 2 * j + tt), "0" if j == 0 else None))
        a.force_wait(vm=2)
        a(f"""
        v_cmp_eq_u32 vcc, 0, v{vFL1}
        s_add_u32 s{sNQ}, s{sNQ}, {32 * 8192}
        s_add_u32 s{sNFL}, s{sNFL}, {FL_STRIDE}
        s_add_u32 s{sNS}, s{sNS}, 1
        s_cmp_eq_u64 vcc, 0
        s_cselect_b32 s{sRDY}, 1, 0
        s_cmp_lt_u32 s{sNS}, {NSEG}
        s_cselect_b32 s{sRDY}, s{sRDY}, 0
        s_cmp_eq_u32 s{sRDY}, 1
        s_cselect_b32 s{SRD_C + 2}, {WS_BYTES}, 0
        """)
        for d, diag in ((0, 1), (4, 0), (8, 1)):
            for i in range(4):
                r = SX + d + i
                a(f"v_fma_f32 v{r}, v{r}, s{sK4}, v{BI + i}" if diag else f"v_mul_f32 v{r}, s{sK4}, v{r}")
        km_check()
        a(f"s_cbranch_vccz {nm}_r")
        a(f"s_mov_b32 s{S_SPIN}, 0")
        a.label(nm + "_rp")
        a.restore(([], []))
        seq(a, km_ops)
        spin_check(a, abort)
        a.force_wait(vm=0)
        km_check()
        a(f"s_cbranch_vccz {nm}_r")
        a(f"s_sleep {TASLP}")
        a(f"s_branch {nm}_rp")
        a.label(nm + "_r")
        a.restore(([], []))
        a(f"s_and_b32 s{S_TMP}, s{sNS}, 3")
        a(f"s_cmp_eq_u32 s{S_TMP}, 0")
        a(f"s_cselect_b32 s{S_TMP}, s{sNL}, 0")
        a(f"s_cmp_lg_u32 s{S_TMP}, 0")
        a("s_cselect_b64 exec, 1, 0")
        a(f"s_sub_u32 s{S_TMP}, s{sNFL}, {FL_STRIDE}")
        a(f"buffer_store_dword v{vONE}, v{vZERO}, {WS}, s{S_TMP} offen offset:384 sc1")
        a("s_mov_b64 exec, -1")
        nxt = qkv_ops(1 - st, PFS)
        seq(a, nxt.pop(0), nxt.pop(0))
        for j in range(4):
            for tt in range(2):
                a(MF(SMm + 4 * tt, vr(KMf + 4 * j, 4), fr(st, 0, 2 * j + tt), "0" if j == 0 else None))
        for tt in range(2):
            xs = list(range(SX, SX + 4)) if tt == 0 else list(range(SX + 4, SX + 12))
            ms = [SMm + 4 * tt, SMm + 4 * tt + 1]
            vals = xs + ms
            a(f"v_max3_f32 v{MX}, v{xs[0]}, v{xs[1]}, v{xs[2]}")
            a(f"v_max_f32 v{MX}, v{MX}, v{xs[3]}")
            for i in range(4, len(xs), 2):
                a(f"v_max3_f32 v{MX}, v{MX}, v{xs[i]}, v{xs[i + 1]}")
            for r in ms:
                a(f"v_mul_f32 v{r}, s{sK4}, v{r}")
            a(f"v_max3_f32 v{MX}, v{MX}, v{ms[0]}, v{ms[1]}")
            seq(a, f"v_mov_b32 v{T1}, v{MX}", nxt.pop(0), f"v_permlane32_swap_b32 v{MX}, v{T1}", f"v_max_f32 v{MX}, v{MX}, v{T1}",
                f"v_mov_b32 v{T1}, v{MX}", nxt.pop(0), f"v_permlane16_swap_b32 v{MX}, v{T1}", f"v_max_f32 v{MX}, v{MX}, v{T1}",
                [f"v_sub_f32 v{r}, v{r}, v{MX}" for r in vals], [f"v_exp_f32 v{r}, v{r}" for r in vals])
            for i in range(4):
                if 2 * i < len(xs):
                    a(f"v_cvt_pk_bf16_f32 v{PX + i}, v{xs[2 * i]}, v{xs[2 * i + 1]}")
                else:
                    a(f"v_mov_b32 v{PX + i}, 0")
            a(f"v_cvt_pk_bf16_f32 v{PB}, v{ms[0]}, v{ms[1]}")
            a(f"v_cvt_pk_bf16_f32 v{PB + 3}, v{ms[0]}, v{ms[1]}")
            a(MF(LQ, vr(ON, 4), vr(PX, 4), "0"))
            for t in range(8):
                a(MF(O + 4 * t, fr(st, 2, t), vr(PX, 4), "0"))
                if t & 1 and nxt:
                    seq(a, nxt.pop(0))
                if t == 5:
                    a(MF16(LQ, ON, PB))
            for t in range(8):
                a(MF16(O + 4 * t, VMf + 2 * (t >> 1), PB + 2 * (t & 1)))
                if t == 1:
                    a(f"v_rcp_f32 v{T1}, v{LQ}")
                if t >= 3 and t & 1:
                    norm(a, O, OUT, T1, (t - 3) >> 1, tt, sO3, nxt, osc)
            norm(a, O, OUT, T1, 3, tt, sO3, nxt, osc)
        seq(a, nxt)
        a(f"s_add_u32 s{sO3}, s{sO3}, {32 * 8192}")
        a(f"s_mov_b32 s{sPN}, {FL_STRIDE}")
        a(f"s_mov_b32 s{sPM}, {0 if osc else -1}")
        trace_at(a, sNS, vT0, vZERO)
        trace(a, vT0, vT1)
        a(f"s_cmp_ge_u32 s{sNS}, {NSEG}")
        a(f"s_cbranch_scc1 {pre}_end")
        if st == 1:
            a(f"s_branch {pre}0")
            a.label(f"{pre}_end")
            a.restore(([], []))
            a.force_wait(vm=0)
            publish()
            a(f"s_branch {done}")


TASLP = int(os.environ.get("TASLP", "2"))


def norm(a, O, OUT, T1, j, tt, sO3, nxt, osc=" sc1"):
    for i in range(4):
        x, y = O + 8 * j + i, O + 8 * j + 4 + i
        a(f"v_mul_f32 v{x}, v{T1}, v{x}")
        a(f"v_mul_f32 v{y}, v{T1}, v{y}")
        a(f"v_cvt_pk_bf16_f32 v{OUT + 16 * tt + 4 * j + i}, v{x}, v{y}")
    if j % 2 == 0:
        a(f"s_add_u32 s{S_TMP}, s{sO3}, {j * 2048}")
    a(f"buffer_store_dwordx4 {vr(OUT + 16 * tt + 4 * j, 4)}, v{vL16}, {WS}, s{S_TMP} offen offset:{(j % 2) * 2048 + tt * 1024}{osc}")
    if nxt:
        seq(a, nxt.pop(0))


TWX = int(os.environ.get("TWX", "1"))
TW_S0 = int(os.environ.get("TW_S0", "34"))
TWPF = int(os.environ.get("TWPF", "1"))
OUTSC = os.environ.get("OUTSC", "")
TWLD = {"": "", "nt": " nt", "sc1": " sc1", "sc0": " sc0"}[os.environ.get("TWLD", "")]


def role_tw(a, abort, done, nt=os.environ.get("NT_W", "")):
    lane_setup(a, 32)
    vA0, vSEL, vRES, vROW, vSTO, vRED, vMBT, vRD2, OUTP = 9, 11, 12, 13, 14, 48, 49, 50, 52
    nst_ = 0
    ACC, RES, SS, RING, ZB = 16, 40, 44, 64, 128
    sSL = sK2
    TWLDW = int(os.environ.get("TWLDW", "1"))
    TWG = int(os.environ.get("TWG", "24"))
    if TWLDW:
        a(f"s_cmp_lt_u32 s{S_ROLE}, {TWG}")
        a("s_cbranch_scc1 Ltw_noord")
        dbg_wait(a, DB_STEP0 if GATE0 & 4 else DB_LOADED, TWLDW, vT0, vT1, abort, "Ltw_ord", 64)
        a.label("Ltw_noord")
    srd(a, SRD_A, KA_BWO, 4096 * 1152)
    srd(a, SRD_B, KA_OUT, 2048 * 1152)
    A_ = f"s[{SRD_A}:{SRD_A + 3}]"
    OUTS = f"s[{SRD_B}:{SRD_B + 3}]"
    a(f"""
    s_mul_i32 s{S_TMP}, s{S_ROLE}, 43
    s_lshr_b32 s{sN0}, s{S_TMP}, 9
    s_mul_i32 s{S_TMP}, s{sN0}, 12
    s_sub_u32 s{sSL}, s{S_ROLE}, s{S_TMP}
    s_add_u32 s{sN1}, s{sN0}, {(TW_S0 - (3 if TWX else 0)) & 0xffffffff}
    s_cmp_eq_u32 s{sN0}, 2
    s_cselect_b32 s{sN1}, 0, s{sN1}
    s_cmp_lt_u32 s{sN0}, 2
    s_cselect_b32 s{sN1}, {f"{NSEG}" if TWX else f"s{sN1}"}, s{sN1}
    s_cselect_b32 s{sN0}, s{sN0}, {NSEG}
    s_mul_i32 s{sK1}, s{sSL}, 96
    s_mul_i32 s{S_TMP}, s{S_WAVE}, {1024 * 1152}
    s_add_u32 s{sK1}, s{sK1}, s{S_TMP}
    v_mul_u32_u24 v{vT0}, {4 * 1152}, v{vG}
    v_lshl_add_u32 v{vA0}, v{vC}, 2, v{vT0}
    v_add_u32 v{vA0 + 1}, {16 * 1152}, v{vA0}
    v_and_b32 v{vT1}, 14, v{vC}
    v_lshl_add_u32 v{vRES}, v{vT1}, 1, v{vT0}
    v_add_u32 v{vRES}, 64, v{vRES}
    v_add_u32 v{vROW}, {16 * 1152}, v{vRES}
    v_and_b32 v{vT0}, 1, v{vC}
    v_mov_b32 v{vSEL}, s{sSELX}
    v_mov_b32 v{vT1}, s{sSELY}
    v_cmp_eq_u32 vcc, 1, v{vT0}
    v_cndmask_b32 v{vSEL}, v{vSEL}, v{vT1}, vcc
    """)
    STG = 16
    n = 128
    D = 14
    for i in range(n + D):
        if i < n:
            kk, d = i >> 2, i & 3
            r = STG + 4 * (i % 28)
            a(f"s_add_u32 s{S_TMP}, s{sK1}, {(32 * kk + d) * 1152}")
            for q, ad in enumerate((vA0, vA0 + 1, vRES, vROW)):
                a(f"buffer_load_dword v{r + q}, v{ad}, {A_}, s{S_TMP} offen {nt}")
        j = i - D
        if j >= 0:
            kk, d = j >> 2, j & 3
            r = STG + 4 * (j % 28)
            a(f"v_perm_b32 v{vT0}, v{r + 1}, v{r}, s{sSELX}")
            a(f"v_perm_b32 v{vT1}, v{r + 1}, v{r}, s{sSELY}")
            a(f"v_perm_b32 v{ZB + 4 * kk + d}, v{r + 3}, v{r + 2}, v{vSEL}")
            a(f"v_accvgpr_write_b32 a{8 * kk + d}, v{vT0}")
            a(f"v_accvgpr_write_b32 a{8 * kk + 4 + d}, v{vT1}")
    a(f"""
    s_and_b32 s{sK3}, s{S_WAVE}, 1
    s_lshl_b32 s{S_TMP}, s{sK3}, 4
    v_add_u32 v{vT0}, s{S_TMP}, v{vC}
    v_lshlrev_b32 v{vSTO}, 4, v{vT0}
    v_mul_u32_u24 v{vROW}, 1152, v{vT0}
    s_mul_i32 s{S_TMP}, s{sSL}, 96
    v_add_u32 v{vROW}, s{S_TMP}, v{vROW}
    s_mul_i32 s{S_TMP}, s{sSL}, 3072
    v_add_u32 v{vRES}, s{S_TMP}, v{vSTO}
    s_lshl_b32 s{S_TMP}, s{sSL}, 9
    v_add_u32 v{vSTO}, s{S_TMP}, v{vSTO}
    s_lshl_b32 s{sK1}, s{sSL}, 7
    s_lshl_b32 s{S_TMP}, s{S_WAVE}, 2
    s_add_u32 s{sK1}, s{sK1}, s{S_TMP}
    s_add_u32 s{sK1}, s{sK1}, {WS_FLAGS + FL_XA + NSEG * FL_STRIDE}
    s_mul_i32 s{S_TMP}, s{S_WAVE}, 6144
    v_add_u32 v{vRED}, s{S_TMP}, v{vL16}
    v_mov_b32 v{vMBT}, 0x10000
    v_lshrrev_b32 v51, 4, v{vL16}
    v_min_u32 v51, 42, v51
    s_mul_i32 s{S_TMP}, s{sSL}, 43
    v_add_u32 v51, s{S_TMP}, v51
    v_lshlrev_b32 v51, 7, v51
    s_cmp_gt_u32 s{S_WAVE}, 1
    s_cbranch_scc1 Ltw_z
    """)
    for z in (0, 1):
        nm = "LtwZ" if z else "LtwX"
        if z:
            a.label("Ltw_z")
            a.restore(([], []))
            a(f"""
            v_lshrrev_b32 v{vT0}, 1, v{vG}
            v_lshl_add_u32 v{vRES}, v{vT0}, 9, v{vRES}
            v_and_b32 v{vT0}, 1, v{vG}
            v_lshl_add_u32 v{vRES}, v{vT0}, 3, v{vRES}
            v_add_u32 v{vRES}, 2048, v{vRES}
            v_lshl_add_u32 v{vROW}, v{vG}, 3, v{vROW}
            v_add_u32 v{vROW}, 64, v{vROW}
            v_add_u32 v{vSTO}, 8, v{vSTO}
            """)
        else:
            a(f"v_lshl_add_u32 v{vRES}, v{vG}, 9, v{vRES}")
            a(f"v_lshl_add_u32 v{vROW}, v{vG}, 4, v{vROW}")
        st = "dwordx2" if z else "dwordx4"
        nq = 1 if z else 2
        nv = 4 * nq
        R = ACC
        RDL = [ACC + 8, ACC + 12, ACC + 16, ACC + 20, 56, 60, RING + 60, OUTP]
        RD = lambda k: RDL[k]

        def step1():
            return [f"s_cmp_lt_u32 s{sN1}, {TW_S0 - 1}", f"s_cselect_b32 s{sLEFT}, 1, 3"]

        def addr_next():
            return [f"s_lshl_b32 s{sO1}, s{sNO}, 18", f"s_add_u32 s{sO1}, s{sO1}, s{sWQ}",
                    f"s_mul_i32 s{sNX}, s{sNL}, {2 * X_BYTES}", f"s_mul_i32 s{S_TMP}, s{sNS}, {X_SEG}",
                    f"s_add_u32 s{sNX}, s{sNX}, s{S_TMP}", f"s_add_u32 s{sNX}, s{sNX}, {WS_X + X_BYTES}"]

        def ld(i, srd_):
            if i % 4 == 0:
                a(f"s_add_u32 s{sO3}, s{sO1}, {i * 1024}")
            a(f"buffer_load_dwordx4 {vr(RING + 4 * (i % 16), 4)}, v{vL16}, {srd_}, s{sO3} offen offset:{(i % 4) * 1024}{TWLD}")

        def line_pf(srd_):
            if TWPF:
                a(f"buffer_load_dword v10, v51, {srd_}, s{sO1} offen")
                a.vmq.pop()

        def first_loads(srd_):
            line_pf(srd_)
            for i in range(15):
                ld(i, srd_)
            a(f"buffer_load_{st} {vr(RES, nv // 2)}, v{vRES}, {srd_}, s{sNX} offen")

        def w0(fn, lab):
            if not z:
                a(f"s_cmp_lg_u32 s{S_WAVE}, 0")
                a(f"s_cbranch_scc1 {lab}")
                sn = a.snap()
                fn()
                a.restore(sn)
                a.label(lab)

        def post():
            a(f"v_mov_b32 v{vT0}, s{sDEC}")
            a(f"ds_write_b32 v{vMBT}, v{vT0}")

        a(f"""
        s_lshl_b32 s{sWQ}, s{S_WAVE}, 16
        s_add_u32 s{sWQ}, s{sWQ}, {WS_OF}
        s_mov_b32 s{sPEND}, 0
        s_mov_b32 s{SRD_C}, s{SRD_WS}
        s_mov_b32 s{SRD_C + 1}, s{SRD_WS + 1}
        s_mov_b32 s{SRD_C + 2}, 0
        s_mov_b32 s{SRD_C + 3}, 0x00020000
        s_mul_i32 s{S_TMP}, s{sK3}, 3072
        v_add_u32 v{vRD2}, s{S_TMP}, v{vL16}
        """)
        a(f"ds_write2_b32 v{vMBT}, v{vZERO}, v{vZERO} offset0:0 offset1:1")
        a.wait(lg=0)
        dbg_wait(a, DB_POOL, N_POOL, vT0, vT1, abort, nm + "_ini")
        a.label(nm + "_idle")
        a.restore(([], []))
        w0(lambda: (poll2(a, nm + "_p", abort, FL_OF, 0), post(), a.wait(lg=0)), nm + "_nw0")
        a("s_barrier")
        a(f"ds_read_b32 v{vT1}, v{vMBT}")
        a(f"v_xor_b32 v{vMBT}, 4, v{vMBT}")
        a(f"v_readfirstlane_b32 s{sDEC}, v{vT1}")
        a(f"s_cmp_eq_u32 s{sDEC}, 0")
        a(f"s_cbranch_scc1 {abort}")
        seq(a, step1(), take(sDEC, 2, f"s{sLEFT}"), addr_next(), f"s_cmp_ge_u32 s{sNS}, {NSEG}", f"s_cbranch_scc1 {abort}")
        first_loads(WS)
        for _ in range(nst_):
            a.vmq.append((frozenset(), "st"))
        a.label(nm + "_item")
        trace(a, vT0, vT1, True) if TRACE == 1 else None
        a(f"s_mov_b32 s{sCL}, s{sNL}")
        a(f"s_mov_b32 s{sCS}, s{sNS}")
        a(f"s_mov_b32 s{sO2}, s{sNX}")
        a.vmq = a.vmq[:16]
        for i in range(64):
            kk, tt = i >> 1, i & 1
            ld((i + 15) % 64, WS if i + 15 < 64 else PFS)
            b = vr(RING + 4 * (i % 16), 4)
            c = "0" if kk == 0 else None
            a(MF(ACC + 12 * tt, ar(8 * kk, 4), b, c))
            a(MF(ACC + 12 * tt + 4, ar(8 * kk + 4, 4), b, c))
            a(MF(ACC + 12 * tt + 8, vr(ZB + 4 * kk, 4), b, c))
            if i == 17:
                a(f"s_cmp_lg_u32 s{sPEND}, 0")
                a("s_cselect_b64 exec, 1, 0")
                a(f"buffer_store_dword v{vONE}, v{vZERO}, {WS}, s{sPEND} offen sc1")
                a("s_mov_b64 exec, -1")
                a(f"s_mov_b32 s{sPEND}, 0")
            if i == 26:
                w0(lambda: (cand_addr(a, FL_OF), sample2(a)), nm + "_nw1")
            if i == 44:
                w0(lambda: (decide(a, 0), post(), a.force_wait(lg=0)), nm + "_nw2")
                a("s_barrier")
                a(f"ds_read_b32 v{vT1}, v{vMBT}")
                a(f"v_xor_b32 v{vMBT}, 4, v{vMBT}")
            if i == 47:
                a(f"v_readfirstlane_b32 s{sDEC}, v{vT1}")
                seq(a, step1(), take(sDEC, 2, f"s{sLEFT}"))
            if i == 48:
                seq(a, f"s_cmp_lt_u32 s{sNS}, {NSEG}", f"s_cselect_b32 s{sDEC}, s{sDEC}, 0")
                seq(a, addr_next(), f"s_cmp_lg_u32 s{sDEC}, 0", f"s_cselect_b32 s{SRD_C + 2}, {WS_BYTES}, 0")
                line_pf(PFS)
        a.nop(6)
        for q in range(6):
            a(f"ds_write_b128 v{vRED}, {vr(ACC + 4 * q, 4)} offset:{q * 1024}")
        a.force_wait(lg=0)
        a("s_barrier")
        for wv in range(4):
            for q in range(nq):
                a(f"ds_read_b128 {vr(RD(wv * nq + q), 4)}, v{vRD2} offset:{wv * 6144 + (2 if z else q) * 1024}")
        a(f"v_xor_b32 v{vRED}, 0x8000, v{vRED}")
        a(f"v_xor_b32 v{vRD2}, 0x8000, v{vRD2}")
        if z:
            for i in range(2):
                a(f"v_lshlrev_b32 v{R + 2 * i}, 16, v{RES + i}")
                a(f"v_and_b32 v{R + 2 * i + 1}, 0xffff0000, v{RES + i}")
        else:
            for i in range(4):
                a(f"v_lshlrev_b32 v{R + i}, 16, v{RES + i}")
                a(f"v_and_b32 v{R + 4 + i}, 0xffff0000, v{RES + i}")
        a(f"buffer_load_{st} {vr(RES, nv // 2)}, v{vRES}, {PFS}, s{sNX} offen")
        for wv in range(4):
            for i in range(nv):
                a(f"v_add_f32 v{R + i}, v{R + i}, v{RD(wv * nq + i // 4) + i % 4}")
        if z:
            a(f"v_cvt_pk_bf16_f32 v{OUTP}, v{R}, v{R + 1}")
            a(f"v_cvt_pk_bf16_f32 v{OUTP + 1}, v{R + 2}, v{R + 3}")
        else:
            for i in range(4):
                a(f"v_cvt_pk_bf16_f32 v{OUTP + i}, v{R + i}, v{R + 4 + i}")
        a(f"s_cmp_eq_u32 s{sCL}, 0")
        a(f"s_cbranch_scc1 {nm}_l0")
        win = list(a.win)
        sn = a.snap()
        a(f"s_mul_i32 s{S_TMP}, s{sCS}, {32 * 1152}")
        a(f"buffer_store_{st} {vr(OUTP, nv // 2)}, v{vROW}, {OUTS}, s{S_TMP} offen{OUTSC}")
        a(f"s_cmp_lg_u32 s{sDEC}, 0")
        a(f"s_cbranch_scc1 {nm}_item")
        a.label(nm + "_chk")
        a(f"s_min_u32 s{S_TMP}, s{sN0}, s{sN1}")
        a(f"s_cmp_lt_u32 s{S_TMP}, {NSEG}")
        a(f"s_cbranch_scc1 {nm}_idle")
        trace(a, vT0, vT1, True) if TRACE != 4 else None
        stamp_max(a, 7, vT0, vT1) if DBGT == 1 else None
        a(f"s_branch {done}")
        a.label(nm + "_l0")
        a.win = win
        a.restore(sn)
        a(f"s_add_u32 s{sO2}, s{sO2}, {X_BYTES}")
        a(f"buffer_store_{st} {vr(OUTP, nv // 2)}, v{vRES}, {WS}, s{sO2} offen sc1")
        a(f"v_add_f32 v{SS}, v{R}, v{R + 1}")
        a(f"v_mul_f32 v{SS + 1}, v{R}, v{R}")
        a(f"v_fmac_f32 v{SS + 1}, v{R + 1}, v{R + 1}")
        for i in range(2, nv):
            a(f"v_add_f32 v{SS}, v{SS}, v{R + i}")
            a(f"v_fmac_f32 v{SS + 1}, v{R + i}, v{R + i}")
        for sw in (32, 16):
            seq(a, f"v_mov_b32 v{SS + 2}, v{SS}", f"v_mov_b32 v{SS + 3}, v{SS + 1}",
                f"v_permlane{sw}_swap_b32 v{SS}, v{SS + 2}", f"v_permlane{sw}_swap_b32 v{SS + 1}, v{SS + 3}",
                f"v_add_f32 v{SS}, v{SS}, v{SS + 2}", f"v_add_f32 v{SS + 1}, v{SS + 1}, v{SS + 3}")
        a(f"""
        s_mul_i32 s{S_TMP}, s{sCS}, {ST_SEG}
        s_add_u32 s{S_TMP}, s{S_TMP}, {WS_ST + 2 * ST_BYTES}
        s_mov_b64 exec, 0xffff
        buffer_store_dwordx2 {vr(SS, 2)}, v{vSTO}, {WS}, s{S_TMP} offen sc1
        s_mov_b64 exec, -1
        s_mul_i32 s{sPEND}, s{sCS}, {FL_STRIDE}
        s_add_u32 s{sPEND}, s{sPEND}, s{sK1}
        """)
        trace_at(a, sCS, vT0, vZERO)
        a(f"s_cmp_lg_u32 s{sDEC}, 0")
        a(f"s_cbranch_scc1 {nm}_item")
        a.force_wait(vm=0)
        flag_out(a, sPEND)
        a(f"s_mov_b32 s{sPEND}, 0")
        a(f"s_branch {nm}_chk")
```

```python
from pool import *

WS_TWX = 0x340000
TWX_CU = 12288
TW_D = int(os.environ.get("TW_D", "18"))
TWSLP = int(os.environ.get("TWSLP", "2"))


def role_tw2(a, abort, done):
    lane_setup(a, 4)
    vRES, vROW, vSTO, vRED, vRD, vMX, vTR = 9, 10, 11, 12, 13, 14, 15
    ACC, RING, NR = 16, 64, 4
    RCV, RESR, OUTP, SS = 96, 108, 114, 120
    GA = 96
    sBLK, sKH, sGRP, sS0, sS1, sN, sPH, sOB_, sFLB, sMXW, sMXR, sIT = sK2, sK3, sK4, sN0, sN1, sLEFT, sPF, sBUF, sK1, sNX, sNFL, sO2

    def W(j, kk):
        n = kk * 6 + j
        return ar(4 * n, 4) if n < 64 else vr(128 + 4 * (n - 64), 4)

    def Wp(j, kk, hh):
        n = kk * 6 + j
        k, b = ("a", 4 * n) if n < 64 else ("v", 128 + 4 * (n - 64))
        return f"{k}[{b + 2 * hh}:{b + 2 * hh + 1}]"

    a(f"""
    s_mul_i32 s{S_TMP}, s{S_ROLE}, 43
    s_lshr_b32 s{sGRP}, s{S_TMP}, 9
    s_mul_i32 s{S_TMP}, s{sGRP}, 12
    s_sub_u32 s{S_TMP}, s{S_ROLE}, s{S_TMP}
    s_lshr_b32 s{sBLK}, s{S_TMP}, 1
    s_and_b32 s{sKH}, s{S_TMP}, 1
    s_lshl_b32 s{sFLB}, s{S_TMP}, 7
    """)
    TWLDW = int(os.environ.get("TWLDW", "1"))
    TWG = int(os.environ.get("TWG", "24"))
    if TWLDW:
        a(f"s_cmp_lt_u32 s{S_ROLE}, {TWG}")
        a("s_cbranch_scc1 Ltw_noord")
        dbg_wait(a, DB_LOADED, TWLDW, vT0, vT1, abort, "Ltw_ord", 64)
        a.label("Ltw_noord")
    srd(a, SRD_A, KA_BWO, 4096 * 1152)
    srd(a, SRD_B, KA_OUT, 2048 * 1152)
    A_ = f"s[{SRD_A}:{SRD_A + 3}]"
    OUTS = f"s[{SRD_B}:{SRD_B + 3}]"
    SLOT, NSL = 6144, 6
    for i in range(6):
        a(f"""
        v_lshrrev_b32 v{vT0}, 4, v{vL16}
        v_add_u32 v{vT0}, {64 * i}, v{vT0}
        v_mul_u32_u24 v{vT1}, {(65536 + 11) // 12}, v{vT0}
        v_lshrrev_b32 v{vT1}, 16, v{vT1}
        v_mul_u32_u24 v110, 12, v{vT1}
        v_sub_u32 v{vT0}, v{vT0}, v110
        v_and_b32 v110, 1, v{vT1}
        v_lshlrev_b32 v110, 4, v110
        v_lshrrev_b32 v111, 3, v{vT1}
        v_lshl_add_u32 v110, v111, 2, v110
        v_bfe_u32 v111, v{vT1}, 1, 2
        v_add_u32 v110, v110, v111
        v_mul_u32_u24 v110, 1152, v110
        v_lshl_add_u32 v{GA + i}, v{vT0}, 4, v110
        """)
    sWB, sLB = sO1, sO3
    a(f"""
    s_lshl_b32 s{S_TMP}, s{sKH}, 2
    s_add_u32 s{S_TMP}, s{S_TMP}, s{S_WAVE}
    s_mul_i32 s{sWB}, s{S_TMP}, {512 * 1152}
    s_mul_i32 s{S_TMP}, s{sBLK}, 192
    s_add_u32 s{sWB}, s{sWB}, s{S_TMP}
    s_mul_i32 s{sLB}, s{S_WAVE}, {NSL * SLOT}
    v_lshrrev_b32 v{vT0}, 2, v{vC}
    v_lshl_add_u32 v{vT0}, v{vG}, 3, v{vT0}
    v_mul_u32_u24 v{vTR}, 192, v{vT0}
    v_and_b32 v{vT0}, 3, v{vC}
    v_lshl_add_u32 v{vTR}, v{vT0}, 3, v{vTR}
    v_add_u32 v{vTR}, s{sLB}, v{vTR}
    """)

    def wdma(kk):
        a(f"s_add_u32 s{S_TMP}, s{sWB}, {32 * kk * 1152}")
        for i in range(6):
            a(f"s_add_u32 m0, s{sLB}, {(kk % NSL) * SLOT + i * 1024}")
            a("s_nop 0")
            a(f"buffer_load_dwordx4 v{GA + i}, {A_}, s{S_TMP} offen lds")
    for kk in range(NSL):
        wdma(kk)
    for kk in range(16):
        issued = min(16, NSL + kk)
        a.force_wait(vm=6 * (issued - kk - 1))
        for j in range(6):
            for hh in range(2):
                a(f"ds_read_b64_tr_b16 {Wp(j, kk, hh)}, v{vTR} offset:{(kk % NSL) * SLOT + hh * 4 * 192 + j * 32}")
        if issued < 16:
            a.force_wait(lg=0)
            wdma(issued)
    a.force_wait(vm=0, lg=0)
    sW2 = S_TMP + 2
    a(f"""
    s_and_b32 s{sW2}, s{S_WAVE}, 1
    s_lshl_b32 s{S_TMP}, s{sKH}, 4
    v_add_u32 v{vT0}, s{S_TMP}, v{vC}
    v_lshlrev_b32 v{vSTO}, 4, v{vT0}
    v_mul_u32_u24 v{vROW}, 1152, v{vT0}
    v_lshl_add_u32 v{vROW}, v{vG}, 3, v{vROW}
    s_mul_i32 s{S_TMP}, s{sBLK}, 192
    s_mul_i32 s{S_TMP + 1}, s{sW2}, 96
    s_add_u32 s{S_TMP}, s{S_TMP}, s{S_TMP + 1}
    v_add_u32 v{vROW}, s{S_TMP}, v{vROW}
    v_lshrrev_b32 v{vT0}, 1, v{vG}
    v_lshl_add_u32 v{vRES}, v{vT0}, 9, v{vSTO}
    v_and_b32 v{vT0}, 1, v{vG}
    v_lshl_add_u32 v{vRES}, v{vT0}, 3, v{vRES}
    s_mul_i32 s{S_TMP}, s{sBLK}, {12 * 512}
    s_mul_i32 s{S_TMP + 1}, s{sW2}, {6 * 512}
    s_add_u32 s{S_TMP}, s{S_TMP}, s{S_TMP + 1}
    v_add_u32 v{vRES}, s{S_TMP}, v{vRES}
    s_lshl_b32 s{S_TMP}, s{sBLK}, 9
    s_lshl_b32 s{S_TMP + 1}, s{sW2}, 3
    s_add_u32 s{S_TMP}, s{S_TMP}, s{S_TMP + 1}
    v_add_u32 v{vSTO}, s{S_TMP}, v{vSTO}
    s_lshl_b32 s{sOB_}, s{S_WAVE}, 15
    v_add_u32 v{vRED}, s{sOB_}, v{vL16}
    s_cmp_lt_u32 s{S_WAVE}, 2
    s_cselect_b32 s{S_TMP}, 1, 0
    s_xor_b32 s{S_TMP}, s{S_TMP}, s{sKH}
    s_mul_i32 s{S_TMP}, s{S_TMP}, 6144
    s_mul_i32 s{S_TMP + 1}, s{sW2}, 3072
    s_add_u32 s{S_TMP}, s{S_TMP}, s{S_TMP + 1}
    v_add_u32 v{vRD}, s{S_TMP}, v{vL16}
    v_add_u32 v{vRD + 2}, 65536, v{vRD}
    s_mul_i32 s{S_TMP}, s{sW2}, 3072
    v_add_u32 v{vMX}, s{S_TMP}, v{vL16}
    s_mul_i32 s{sMXR}, s{S_ROLE}, {TWX_CU}
    s_add_u32 s{sMXR}, s{sMXR}, {WS_TWX}
    s_xor_b32 s{S_TMP}, s{S_ROLE}, 1
    s_mul_i32 s{sMXW}, s{S_TMP}, {TWX_CU}
    s_add_u32 s{sMXW}, s{sMXW}, {WS_TWX}
    s_lshl_b32 s{S_TMP}, s{S_WAVE}, 2
    s_add_u32 s{sFLB}, s{sFLB}, s{S_TMP}
    s_add_u32 s{sFLB}, s{sFLB}, {WS_FLAGS + FL_XA + NSEG * FL_STRIDE}
    s_mov_b32 s{sS0}, s{sGRP}
    s_mov_b32 s{sS1}, s{sGRP}
    s_mov_b32 s{sN}, 0
    s_lshl_b32 s{sIT}, s{sKH}, 2
    s_add_u32 s{sIT}, s{sIT}, s{S_WAVE}
    """)
    dbg_wait(a, DB_POOL, N_POOL, vT0, vT1, abort, "Ltw_ini")
    trace(a, vT0, vT1)
    a.label("Ltw_next")
    a.restore(([], []))
    a(f"""
    s_add_u32 s{S_TMP}, s{sS1}, {TW_D}
    s_cmp_lt_u32 s{S_TMP}, s{sS0}
    s_cselect_b32 s{sCL}, 1, 0
    s_cmp_ge_u32 s{sS0}, {NSEG}
    s_cselect_b32 s{sCL}, 1, s{sCL}
    s_cmp_ge_u32 s{sS1}, {NSEG}
    s_cselect_b32 s{sCL}, 0, s{sCL}
    s_cmp_eq_u32 s{sCL}, 1
    s_cselect_b32 s{sCS}, s{sS1}, s{sS0}
    s_cselect_b32 s{S_TMP}, 3, 0
    s_add_u32 s{sS1}, s{sS1}, s{S_TMP}
    s_xor_b32 s{S_TMP}, s{S_TMP}, 3
    s_add_u32 s{sS0}, s{sS0}, s{S_TMP}
    s_cmp_ge_u32 s{sCS}, {NSEG}
    s_cbranch_scc1 Ltw_end
    s_lshl_b32 s{sCO}, s{sCL}, 6
    s_add_u32 s{sCO}, s{sCO}, s{sCS}
    s_mul_i32 s{sF0}, s{sCO}, {FL_STRIDE}
    s_lshl_b32 s{S_TMP}, s{sIT}, 7
    s_add_u32 s{sF0}, s{sF0}, s{S_TMP}
    s_add_u32 s{sF0}, s{sF0}, {WS_FLAGS + FL_OF}
    s_lshl_b32 s{sO1}, s{sCO}, 18
    s_lshl_b32 s{S_TMP}, s{sIT}, 15
    s_add_u32 s{sO1}, s{sO1}, s{S_TMP}
    s_add_u32 s{sO1}, s{sO1}, {WS_OF}
    s_mul_i32 s{sF1}, s{sCL}, {2 * X_BYTES}
    s_mul_i32 s{S_TMP}, s{sCS}, {X_SEG}
    s_add_u32 s{sF1}, s{sF1}, s{S_TMP}
    s_add_u32 s{sF1}, s{sF1}, {WS_X + X_BYTES}
    s_mov_b32 s{S_SPIN}, 0
    """)
    a.label("Ltw_poll")
    a(f"buffer_load_dword v{vFLV}, v{vFLA}, {WS}, s{sF0} offen sc1")
    spin_check(a, abort)
    a(f"v_cmp_eq_u32 vcc, 0, v{vFLV}")
    a("s_cbranch_vccz Ltw_go")
    if TWSLP:
        a(f"s_sleep {TWSLP}")
    a("s_branch Ltw_poll")
    a.label("Ltw_go")

    for i in range(32):
        if i % 4 == 0:
            a(f"s_add_u32 m0, s{sOB_}, {i * 1024}")
            a(f"s_add_u32 s{sO3}, s{sO1}, {i * 1024}")
        a(f"buffer_load_dwordx4 v{vL16}, {WS}, s{sO3} offen offset:{(i % 4) * 1024} lds")
    for j in range(3):
        a(f"buffer_load_dwordx2 {vr(RESR + 2 * j, 2)}, v{vRES}, {WS}, s{sF1} offen offset:{j * 1024}")

    def rd(i):
        a.force_wait(vm=3 + 31 - i)
        a(f"ds_read_b128 {vr(RING + 4 * (i % NR), 4)}, v{vRED} offset:{i * 1024}")
    for i in range(NR - 1):
        rd(i)
    for i in range(32):
        kk, tt = i >> 1, i & 1
        if i + NR - 1 < 32:
            rd(i + NR - 1)
        b = vr(RING + 4 * (i % NR), 4)
        for j in range(6):
            a(MF(ACC + 4 * (6 * tt + j), W(j, kk), b, "0" if kk == 0 else None))
    a.nop(4)
    for q in range(12):
        a(f"ds_write_b128 v{vRED}, {vr(ACC + 4 * q, 4)} offset:{q * 1024}")
    a(f"""
    s_and_b32 s{S_TMP}, s{sN}, 1
    s_mul_i32 s{S_TMP}, s{S_TMP}, 6144
    s_add_u32 s{sF0}, s{sMXW}, s{S_TMP}
    s_add_u32 s{sDEC}, s{sMXR}, s{S_TMP}
    s_bfe_u32 s{sPH}, s{sN}, 0x10001
    s_add_u32 s{sN}, s{sN}, 1
    """)
    a.force_wait(lg=0)
    a("s_barrier")
    for j in range(3):
        for wv in range(4):
            a(f"ds_read_b128 {vr(ACC + 16 * j + 4 * wv, 4)}, v{vRD + (wv >> 1) * 2} offset:{(wv & 1) * 32768 + j * 1024}")
    a.force_wait(lg=0)
    a("s_barrier")
    a(f"s_cmp_gt_u32 s{S_WAVE}, 1")
    a("s_cbranch_scc1 Ltw_fin")
    sn = a.snap()

    def sums():
        for j in range(3):
            T = ACC + 16 * j
            for r in range(4):
                a(f"v_add_f32 v{T + r}, v{T + r}, v{T + 4 + r}")
                a(f"v_add_f32 v{T + 8 + r}, v{T + 8 + r}, v{T + 12 + r}")
            for r in range(4):
                a(f"v_add_f32 v{T + r}, v{T + r}, v{T + 8 + r}")
    sums()
    for j in range(3):
        T = ACC + 16 * j
        a(f"v_bfi_b32 v{T}, 1, s{sPH}, v{T}")
        a(f"buffer_store_dwordx4 {vr(T, 4)}, v{vMX}, {WS}, s{sF0} offen offset:{j * 1024} sc1")
    a(f"""
    s_cmp_eq_u32 s{sCL}, 1
    s_cbranch_scc1 Ltw_next
    s_mul_i32 s{S_TMP}, s{sCS}, {FL_STRIDE}
    s_add_u32 s{S_TMP}, s{S_TMP}, s{sFLB}
    """)
    flag_out(a, S_TMP)
    a("s_branch Ltw_next")
    a.label("Ltw_fin")
    a.restore(sn)
    rcv = [f"buffer_load_dwordx4 {vr(RCV + 4 * j, 4)}, v{vMX}, {WS}, s{sDEC} offen offset:{j * 1024} sc1" for j in range(3)]
    seq(a, rcv)
    sums()
    a(f"s_mov_b32 s{S_SPIN}, 0")
    a.label("Ltw_rp")
    a.force_wait(vm=0)
    a(f"v_xor_b32 v{vT0}, s{sPH}, v{RCV}")
    a(f"v_xor_b32 v{vT1}, s{sPH}, v{RCV + 4}")
    a(f"v_or_b32 v{vT0}, v{vT0}, v{vT1}")
    a(f"v_xor_b32 v{vT1}, s{sPH}, v{RCV + 8}")
    a(f"v_or_b32 v{vT0}, v{vT0}, v{vT1}")
    a(f"v_and_b32 v{vT0}, 1, v{vT0}")
    a(f"v_cmp_ne_u32 vcc, 0, v{vT0}")
    a("s_cbranch_vccz Ltw_rd")
    spin_check(a, abort)
    seq(a, rcv)
    a("s_branch Ltw_rp")
    a.label("Ltw_rd")
    a.restore(([], []))
    for j in range(3):
        T = ACC + 16 * j
        for r in range(4):
            a(f"v_add_f32 v{T + r}, v{T + r}, v{RCV + 4 * j + r}")
        a(f"v_lshlrev_b32 v{T + 4}, 16, v{RESR + 2 * j}")
        a(f"v_and_b32 v{T + 5}, 0xffff0000, v{RESR + 2 * j}")
        a(f"v_lshlrev_b32 v{T + 6}, 16, v{RESR + 2 * j + 1}")
        a(f"v_and_b32 v{T + 7}, 0xffff0000, v{RESR + 2 * j + 1}")
        for r in range(4):
            a(f"v_add_f32 v{T + r}, v{T + r}, v{T + 4 + r}")
        a(f"v_cvt_pk_bf16_f32 v{OUTP + 2 * j}, v{T}, v{T + 1}")
        a(f"v_cvt_pk_bf16_f32 v{OUTP + 2 * j + 1}, v{T + 2}, v{T + 3}")
    a(f"s_cmp_eq_u32 s{sCL}, 0")
    a("s_cbranch_scc1 Ltw_l0")
    sn = a.snap()
    a(f"s_mul_i32 s{S_TMP}, s{sCS}, {32 * 1152}")
    for j in range(3):
        a(f"buffer_store_dwordx2 {vr(OUTP + 2 * j, 2)}, v{vROW}, {OUTS}, s{S_TMP} offen offset:{j * 32} sc1")
    trace_at(a, sCO, vT0, vZERO)
    a("s_branch Ltw_next")
    a.label("Ltw_l0")
    a.restore(sn)
    a(f"s_add_u32 s{sF1}, s{sF1}, {X_BYTES}")
    for j in range(3):
        a(f"buffer_store_dwordx2 {vr(OUTP + 2 * j, 2)}, v{vRES}, {WS}, s{sF1} offen offset:{j * 1024} sc1")
    vals = [ACC + 16 * j + r for j in range(3) for r in range(4)]
    a(f"v_add_f32 v{SS}, v{vals[0]}, v{vals[1]}")
    a(f"v_mul_f32 v{SS + 1}, v{vals[0]}, v{vals[0]}")
    a(f"v_fmac_f32 v{SS + 1}, v{vals[1]}, v{vals[1]}")
    for r in vals[2:]:
        a(f"v_add_f32 v{SS}, v{SS}, v{r}")
        a(f"v_fmac_f32 v{SS + 1}, v{r}, v{r}")
    for sw in (32, 16):
        seq(a, f"v_mov_b32 v{SS + 2}, v{SS}", f"v_mov_b32 v{SS + 3}, v{SS + 1}",
            f"v_permlane{sw}_swap_b32 v{SS}, v{SS + 2}", f"v_permlane{sw}_swap_b32 v{SS + 1}, v{SS + 3}",
            f"v_add_f32 v{SS}, v{SS}, v{SS + 2}", f"v_add_f32 v{SS + 1}, v{SS + 1}, v{SS + 3}")
    a(f"""
    s_mul_i32 s{S_TMP}, s{sCS}, {ST_SEG}
    s_add_u32 s{S_TMP}, s{S_TMP}, {WS_ST + 2 * ST_BYTES}
    s_mov_b64 exec, 0xffff
    buffer_store_dwordx2 {vr(SS, 2)}, v{vSTO}, {WS}, s{S_TMP} offen sc1
    s_mov_b64 exec, -1
    """)
    trace_at(a, sCO, vT0, vZERO)
    a(f"s_mul_i32 s{sF0}, s{sCS}, {FL_STRIDE}")
    a(f"s_add_u32 s{sF0}, s{sF0}, s{sFLB}")
    a.force_wait(vm=0)
    flag_out(a, sF0)
    a("s_branch Ltw_next")
    a.label("Ltw_end")
    a.restore(([], []))
    a.force_wait(vm=0)
    trace(a, vT0, vT1, True) if TRACE != 4 else None
    stamp_max(a, 7, vT0, vT1) if DBGT == 1 else None
    a(f"s_branch {done}")
```

```python
import sys, os
from common import *
import role_r2 as R
import pool, pool2, role_t, role_tw2

MAIN = KNAME + "_kernel"
INIT = "init_kernel"
def kd(name, vgpr, acc, sgpr=102):
    return f""".p2align 6
.amdhsa_kernel {name}
  .amdhsa_next_free_vgpr {vgpr}
  .amdhsa_next_free_sgpr {sgpr}
  .amdhsa_accum_offset {acc}
  .amdhsa_group_segment_fixed_size 0
  .amdhsa_kernarg_size 104
  .amdhsa_user_sgpr_count 2
  .amdhsa_user_sgpr_kernarg_segment_ptr 1
  .amdhsa_system_sgpr_workgroup_id_x 1
.end_amdhsa_kernel
"""


N_INIT = 123


def pool_init(a):
    WS = f"s[{SRD_WS}:{SRD_WS + 3}]"
    Q_ = 6
    XQ = N_INIT - 64
    srd(a, SRD_A, KA_X, 2048 * 1152)
    a(f"""
    v_lshlrev_b32 v7, 4, v0
    v_mov_b32 v12, 0
    v_mov_b32 v13, 0
    v_mov_b32 v14, 0
    v_mov_b32 v15, 0
    s_mov_b32 s46, s{Q_}
    Li_loop:
    """)
    a(f"""
    s_cmp_ge_u32 s46, 136
    s_cbranch_scc1 Li_nofl
    s_mul_i32 s41, s46, {FL_STRIDE}
    s_add_u32 s41, s41, {WS_FLAGS}
    s_sub_u32 s42, s46, 128
    s_lshl_b32 s42, s42, 12
    s_add_u32 s42, s42, {WS_ZERO}
    s_cmp_ge_u32 s46, 128
    s_cselect_b32 s41, s42, s41
    buffer_store_dwordx4 v[12:15], v7, {WS}, s41 offen sc1
    s_cbranch_scc1 Li_nofl
    """)
    for i in range(1, 6):
        a(f"s_add_u32 s41, s41, 4096")
        if i == 5:
            a("v_cmp_gt_u32 vcc, 128, v0")
            a("s_and_saveexec_b64 s[42:43], vcc")
            a("s_cbranch_execz Li_fl5")
        a(f"buffer_store_dwordx4 v[12:15], v7, {WS}, s41 offen sc1")
    a("Li_fl5:")
    a("s_mov_b64 exec, s[42:43]")
    a("Li_nofl:")
    a(f"""
    s_cmp_ge_u32 s46, 64
    s_cbranch_scc1 Li_rest
    s_mul_i32 s42, s46, {ST_SEG}
    s_add_u32 s42, s42, {WS_ST}
    s_add_u32 s43, s42, 2048
    buffer_store_dwordx4 v[12:15], v7, {WS}, s43 offen sc1
    s_branch Li_done
    Li_rest:
    s_cmp_ge_u32 s46, 192
    s_cbranch_scc1 Li_done
    s_sub_u32 s41, s46, 64
    s_lshr_b32 s42, s41, 6
    s_and_b32 s41, s41, 63
    s_mul_i32 s42, s42, {2 * ST_BYTES}
    s_mul_i32 s41, s41, {ST_SEG}
    s_add_u32 s41, s41, s42
    s_add_u32 s41, s41, {WS_ST + ST_BYTES + 9 * 512}
    v_cmp_gt_u32 vcc, 96, v0
    s_and_saveexec_b64 s[44:45], vcc
    s_cbranch_execz Li_rest2
    buffer_store_dwordx4 v[12:15], v7, {WS}, s41 offen sc1
    Li_rest2:
    s_mov_b64 exec, s[44:45]
    Li_done:
    s_add_u32 s46, s46, {N_INIT}
    s_cmp_lt_u32 s46, 192
    s_cbranch_scc1 Li_loop
    """)
    a(f"""
    v_and_b32 v1, 31, v0
    v_lshrrev_b32 v2, 5, v0
    v_mul_u32_u24 v3, 1152, v1
    v_mul_u32_u24 v5, 144, v2
    v_add_u32 v3, v3, v5
    s_sub_u32 s47, s{Q_}, {XQ}
    s_mul_i32 s41, s47, {32 * 1152}
    s_cmp_lt_u32 s{Q_}, {XQ}
    s_cselect_b32 s41, 0x7f000000, s41
    """)
    for i in range(9):
        a(f"buffer_load_dwordx4 {vr(64 + 4 * i, 4)}, v3, s[{SRD_A}:{SRD_A + 3}], s41 offen offset:{16 * i}")
    a.force_wait(vm=9)
    a("s_barrier")
    a(f"s_cmp_lg_u32 s{S_WAVE}, 0")
    a("s_cbranch_scc1 Li_mid")
    dbg_add(a, DB_POOL, 2, 3)
    a.label("Li_mid")
    a(f"s_cmp_lt_u32 s{Q_}, {XQ}")
    a("s_cbranch_scc1 Li_end")
    a.force_wait(vm=0)
    a(f"""
    v_and_b32 v1, 31, v0
    v_lshrrev_b32 v2, 5, v0
    v_mul_u32_u24 v4, {9 * 512}, v2
    v_lshl_add_u32 v4, v1, 4, v4
    s_mul_i32 s41, s47, {X_SEG}
    s_add_u32 s41, s41, {WS_X}
    s_mul_i32 s42, s47, {ST_SEG}
    s_add_u32 s42, s42, {WS_ST}
    v_mov_b32 v60, 0
    v_mov_b32 v61, 0
    """)
    for i in range(9):
        if i == 8:
            a("v_add_u32 v4, 4096, v4")
        a(f"buffer_store_dwordx4 {vr(64 + 4 * i, 4)}, v4, {WS}, s41 offen offset:{512 * (i % 8)} sc1")
    a("v_mov_b32 v62, 0x3f803f80")
    for r in range(64, 100):
        a(f"v_dot2c_f32_bf16 v60, v{r}, v62")
        a(f"v_dot2c_f32_bf16 v61, v{r}, v{r}")
    a.nop(4)
    a(f"""
    v_lshrrev_b32 v5, 1, v2
    v_lshlrev_b32 v5, 9, v5
    v_lshl_add_u32 v5, v1, 4, v5
    v_and_b32 v6, 1, v2
    v_lshl_add_u32 v5, v6, 3, v5
    buffer_store_dwordx2 v[60:61], v5, {WS}, s42 offen sc1
    """)
    a.force_wait(vm=0)
    dbg_wait(a, DB_POOL, N_POOL, 5, 6, "L_abort", "Li_pw", 2)
    a(f"""
    s_cmp_lg_u32 s{S_WAVE}, 0
    s_cbranch_scc1 Li_end
    v_lshrrev_b32 v5, 2, v0
    v_lshlrev_b32 v5, 7, v5
    v_and_b32 v6, 3, v0
    v_lshl_add_u32 v5, v6, 2, v5
    v_mov_b32 v6, 1
    s_mul_i32 s41, s47, {FL_STRIDE}
    s_mov_b32 exec_lo, -1
    s_mov_b32 exec_hi, 0xffff
    s_add_u32 s41, s41, {WS_FLAGS}
    buffer_store_dword v6, v5, {WS}, s41 offen offset:{FL_XA} sc1
    s_mov_b64 exec, -1
    """)
    if DBGT == 2:
        stamp_max(a, 14, 5, 6, (47, 0))
    a.label("Li_end")
    a.restore(([], []))


def init_index(a, sX, sTK):
    idx = {"P": 0, "W": 0, "T": 0, "A": 0, "O": 0}
    crit = {"P": 48, "A": 16, "O": 5, "W": 0, "T": 0}
    q = 0
    for cls, lst in ROLE_MAP.items():
        a(f"s_cmp_lg_u32 s{sX}, {cls}")
        a(f"s_cbranch_scc1 L_ii{cls}_no")
        runs, t0 = [], 0
        for ch, n in lst:
            for i in range(n):
                c = idx[ch] < crit[ch]
                idx[ch] += 1
                if runs and runs[-1][2] == c:
                    runs[-1][1] += 1
                else:
                    runs.append([t0 + i, t0 + i + 1, c])
            t0 += n
        if t0 < 32:
            if runs[-1][2]:
                runs.append([t0, 32, False])
            else:
                runs[-1][1] = 32
        for a0, a1, c in runs:
            a(f"s_cmp_lt_u32 s{sTK}, {a1}")
            if c:
                a("s_cbranch_scc1 L_noinit")
            else:
                a(f"s_add_u32 s6, s{sTK}, {(q - a0) & 0xffffffff}")
                a(f"s_cmp_lt_u32 s{sTK}, {a1}")
                a("s_cbranch_scc1 L_doinit")
                q += a1 - a0
        a.label(f"L_ii{cls}_no")
    assert q == N_INIT, q
    a("s_endpgm")


def gen_main(a, stamps=0, dbg_roles=None):
    WS = f"s[{SRD_WS}:{SRD_WS + 3}]"
    a.text(f".globl {MAIN}\n.p2align 8\n.type {MAIN},@function")
    a.label(MAIN)
    a.reset_window()
    sX, sTK = 3, 4
    DBG = f"s[{S_DBG}:{S_DBG + 1}]"
    a("s_cmp_ge_u32 s2, 256")
    a("s_cbranch_scc1 L_exit")
    srd(a, SRD_WS, KA_WS, WS_BYTES)
    a(f"""
    s_load_dwordx2 s[{S_DBG}:{S_DBG + 1}], s[0:1], {KA_DBG}
    v_lshrrev_b32 v1, 6, v0
    s_getreg_b32 s{sX}, hwreg(HW_REG_XCC_ID)
    v_readfirstlane_b32 s{S_WAVE}, v1
    s_and_b32 s{sX}, s{sX}, {6 if os.environ.get('FAKEX') else 7}
    s_and_b32 s{S_TMP}, s{sX}, 1
    s_lshl_b32 s{S_TMP}, s{S_TMP}, 7
    s_lshl_b32 s{S_TMP + 1}, s{sX}, 1
    s_and_b32 s{S_TMP + 1}, s{S_TMP + 1}, 12
    s_add_u32 s{S_TMP}, s{S_TMP}, s{S_TMP + 1}
    v_mov_b32 v2, 0
    v_mov_b32 v3, 1
    v_mov_b32 v4, s{S_TMP}
    s_mov_b32 s{R.sSTEP}, 0
    s_waitcnt lgkmcnt(0)
    s_cmp_lg_u32 s{S_WAVE}, 0
    s_cbranch_scc1 L_tk_wait
    s_mov_b64 exec, 1
    global_atomic_add v3, v4, v3, {DBG} sc0
    v_readfirstlane_b32 s{sTK}, v3
    s_cmp_lt_u32 s{sTK}, 32
    s_cbranch_scc1 L_tk_have
    """)
    a(f"""
    v_mov_b32 v3, 1
    v_mov_b32 v4, {DB_HOMELESS}
    global_atomic_add v3, v4, v3, {DBG} sc0
    v_readfirstlane_b32 s5, v3
    s_mov_b64 exec, 0xff
    v_and_b32 v4, 1, v0
    v_lshlrev_b32 v4, 7, v4
    v_lshlrev_b32 v5, 1, v0
    v_and_or_b32 v4, v5, 12, v4
    s_mov_b32 s{S_SPIN}, 0
    L_hl_poll:
    global_load_dword v5, v4, {DBG} sc1
    """)
    spin_check(a, "L_abort")
    a("s_mov_b32 s6, 0")
    for i in range(8):
        a(f"v_readlane_b32 s{40 + i}, v5, {i}")
        a(f"s_add_u32 s6, s6, s{40 + i}")
    a(f"""
    s_cmp_lt_u32 s6, 256
    s_cbranch_scc1 L_hl_poll
    s_mov_b32 s{sX}, 0
    s_mov_b32 s{sTK}, 0
    """)
    for i in range(7, -1, -1):
        a(f"""
        s_min_u32 s6, s{40 + i}, 32
        s_sub_u32 s7, 32, s6
        s_cmp_lt_u32 s5, s7
        s_cselect_b32 s{sX}, {i}, s{sX}
        s_add_u32 s6, s6, s5
        s_cmp_lt_u32 s5, s7
        s_cselect_b32 s{sTK}, s6, s{sTK}
        s_sub_u32 s5, s5, s7
        """)
    a(f"""
    L_tk_have:
    s_lshl_b32 s5, s{sX}, 8
    s_or_b32 s5, s5, s{sTK}
    v_mov_b32 v3, s5
    s_mov_b64 exec, 1
    ds_write_b32 v2, v3
    s_mov_b64 exec, -1
    L_tk_wait:
    """)
    a.force_wait(vm=0, lg=0)
    a("s_barrier")
    a("ds_read_b32 v3, v2")
    a(f"v_readfirstlane_b32 s5, v3")
    a(f"s_lshr_b32 s{sX}, s5, 8")
    a(f"s_and_b32 s{sTK}, s5, 255")
    a("s_barrier")
    trace_init(a)
    if DBGT:
        a("s_memrealtime s[6:7]")
        a.force_wait(lg=0)
        a("s_mov_b32 s5, s6")
    trace(a, 2, 3, True)
    en = dbg_roles or "RPWTAO"

    def tgt(ch, lab):
        return lab if ch in en else "L_exit"
    LAB = {"P": "L_role_p", "W": "L_role_tw", "T": "L_role_ta", "A": "L_role_aq", "O": "L_role_awo"}
    a(f"s_cmp_lt_u32 s{sX}, 2")
    a(f"s_cbranch_scc1 {tgt('R', 'L_role_r')}")
    init_index(a, sX, sTK)
    a.label("L_doinit")
    pool_init(a)
    a.label("L_noinit")
    base = {k: 0 for k in LAB}
    for cls, lst in ROLE_MAP.items():
        a(f"s_cmp_lg_u32 s{sX}, {cls}")
        a(f"s_cbranch_scc1 L_cls{cls}_no")
        t0 = 0
        for ch, n in lst:
            a(f"s_add_u32 s{S_ROLE}, s{sTK}, {(base[ch] - t0) & 0xffffffff}")
            a(f"s_cmp_lt_u32 s{sTK}, {t0 + n}")
            a(f"s_cbranch_scc1 {tgt(ch, LAB[ch])}")
            base[ch] += n
            t0 += n
        a("s_endpgm")
        a.label(f"L_cls{cls}_no")
    assert base == {"P": 96, "W": 36, "T": 16, "A": 32, "O": 10}, base
    a(f"""
    L_exit:
    s_endpgm
    L_abort:
    """)
    a.force_wait(lg=0)
    a(f"""
    s_mov_b64 exec, -1
    v_mov_b32 v0, {DB_ABORT}
    s_lshl_b32 s5, s{sX}, 8
    s_or_b32 s5, s5, s{sTK}
    s_or_b32 s5, s5, 0x10000
    v_mov_b32 v1, s5
    global_store_dword v0, v1, s[{S_DBG}:{S_DBG + 1}]
    s_endpgm
    """)
    for ch, lab, fn in (("P", "L_role_p", pool.role_p if os.environ.get("PV1") else pool2.role_p2),
                        ("W", "L_role_tw", role_tw2.role_tw2 if os.environ.get("TWV2") else role_t.role_tw),
                        ("O", "L_role_awo", pool.role_awo), ("A", "L_role_aq", pool.role_aq), ("T", "L_role_ta", role_t.role_ta)):
        if ch not in en:
            continue
        a.text(".p2align 6")
        a.label(lab)
        a.reset_window()
        fn(a, f"{lab}_abort", f"{lab}_exit")
        a.label(f"{lab}_abort")
        a("s_branch L_abort") if False else far_jump(a, "L_abort")
        a.label(f"{lab}_exit")
        if ch == "P" and role_t.TWX and "W" in en:
            a(f"s_cmp_lg_u32 s{pool.sLAYS}, 0")
            a("s_cbranch_scc1 L_p_end")
            a(f"s_cmp_ge_u32 s{S_ROLE}, 24")
            a("s_cbranch_scc1 L_p_end")
            a(f"s_add_u32 s{S_ROLE}, s{S_ROLE}, 36")
            a("v_lshrrev_b32 v0, 4, v0")
            a.force_wait(vm=0, lg=0)
            a("s_barrier")
            a("s_branch L_role_tw")
            a.label("L_p_end")
        a("s_endpgm")
    if "R" in en:
        a.text(".p2align 6")
        a.label("L_role_r")
        a.reset_window()
        a(f"s_mov_b32 s{R.sLAY}, s{sX}")
        a(f"s_mov_b32 s{R.sH}, s{sTK}")
        R.r_setup(a)
        a(f"""
        s_mov_b64 exec, 0xff
        v_lshlrev_b32 v12, 5, v{R.vL4}
        v_and_b32 v12, 128, v12
        v_lshrrev_b32 v13, 1, v{R.vL4}
        v_and_or_b32 v12, v13, 12, v12
        s_mov_b32 s{S_SPIN}, 0
        L_pure:
        global_load_dword v13, v12, {DBG} sc1
        """)
        spin_check(a, "Lr_abort")
        a("s_mov_b32 s6, 0")
        for i in range(8):
            a(f"v_readlane_b32 s7, v13, {i}")
            a(f"s_add_u32 s6, s6, s7")
        a(f"""
        v_readlane_b32 s7, v13, s{R.sLAY}
        s_cmp_ge_u32 s7, 32
        s_cselect_b32 s{R.sFAST}, {0 if os.environ.get('FAKEX') or os.environ.get('SLOW') else 1}, 0
        s_cselect_b32 s6, 256, s6
        s_cmp_lt_u32 s6, 256
        s_cbranch_scc1 L_pure
        s_mov_b64 exec, -1
        s_lshl_b32 s6, s{R.sLAY}, 2
        s_add_u32 s6, s6, {DB_TEAM}
        """)
        dbg_wait(a, "s6", 32, 12, 13, "Lr_abort", "L_team")
        dbg_wait(a, DB_POOL, N_POOL, 12, 13, "Lr_abort", "L_rpool")
        a("s_barrier")
        trace(a, 12, 13, True)
        stamp_max(a, 4, 12, 13, (R.sLAY, 0))
        for fast in (1, 0):
            if fast:
                a(f"s_cmp_eq_u32 s{R.sFAST}, 0")
                a("s_cbranch_scc1 L_slow")
            else:
                a.label("L_slow")
            for w in range(4):
                if w < 3:
                    a(f"s_cmp_lg_u32 s{S_WAVE}, {w}")
                    a(f"s_cbranch_scc1 L_w{w + 1}_{fast}")
                a.restore(([], []))
                R.r_loop(a, w, fast, "Lr_abort", "Lr_exit", stamps)
                if w < 3:
                    a.label(f"L_w{w + 1}_{fast}")
        a.label("Lr_abort")
        far_jump(a, "L_abort")
        a.label("Lr_exit")
        a("s_endpgm")


def far_jump(a, lab):
    a.force_wait(lg=0)
    a(f"""
    s_mov_b64 exec, -1
    v_mov_b32 v0, {DB_ABORT}
    s_lshl_b32 s5, s3, 8
    s_or_b32 s5, s5, s4
    s_or_b32 s5, s5, 0x10000
    v_mov_b32 v1, s5
    global_store_dword v0, v1, s[{S_DBG}:{S_DBG + 1}]
    s_endpgm
    """)


def build(stamps=0, dbg_roles=None):
    a = Asm()
    hdr = open(os.path.join(os.path.dirname(__file__), "..", KNAME + ".s.ref")).read().split("; Override launch")[0]
    a.text(hdr.rstrip())
    a.text("; @launch grid=(256,1,1) block=(256,1,1) lds=163840")
    a.text('.amdgcn_target "amdgcn-amd-amdhsa--gfx950"\n.text')
    gen_main(a, stamps, dbg_roles)
    a.text('.section .rodata,"a"')
    a.text(kd(MAIN, 512, 256))
    return a.render()


if __name__ == "__main__":
    out = sys.argv[1]
    open(out, "w").write(build(int(os.environ.get("STAMPS", "0")), os.environ.get("ROLES")))
```

```python
from asmlib import *

KNAME = "interleave_layers__sliding_local_dilated__memory_aug_recurrent_mem_tr__prompt"
NSEG = 64
import os as _os
QRING = int(_os.environ.get("QRING", "0"))
ORING = int(_os.environ.get("ORING", "0"))
KA_X, KA_WQKV, KA_WO, KA_BX, KA_MEM0, KA_WQ, KA_WK, KA_WV, KA_BWO, KA_SEG, KA_OUT, KA_DBG, KA_WS = [8 * i for i in range(13)]

WS_BYTES = 268435456
WS_FLAGS = 8 * 0x5800
FL_STRIDE = 0x5800
FL_XA, FL_OA, FL_XB, FL_OF, FL_QKV = 0, 1536, 3584, 4224, 5376
WS_ZERO = 0x2F0000
FLAGS_BYTES = 0x2F8000
WS_DUMMY = 0x300000
WS_RING = 0x400000
RING_TEAM = 0x100000
PART_SLOT = 0x80000
import os
PART_H = int(os.environ.get("PARTH", "12288"))
MEMB_OFF = 0xF0000
MEMB_SLOT = 0x4000
WS_X = 0x600000
X_BYTES = 0x240000
X_SEG = 36864
WS_ST = WS_X + 4 * X_BYTES
ST_SEG = 12 * 32 * 16
ST_BYTES = NSEG * ST_SEG
WS_OA = WS_ST + 4 * ST_BYTES
WS_AW = WS_OA + 2 * X_BYTES
WS_KM = 0x1A00000
KM_UNIT = 4096
KM_D = 8
WS_QKV = WS_KM + 2 * NSEG * 32 * KM_UNIT
QKV_M = NSEG * 32 * 8192
WS_OF = WS_QKV + 6 * QKV_M
WS_END = WS_OF + 2 * QKV_M
assert WS_AW + 32 * 90 * 1024 <= WS_KM
assert WS_END <= WS_BYTES, WS_END

SPIN_MAX = int(os.environ.get("SPIN_MAX", "100000"))

S_KARG = 0
S_WG = 2
SRD_WS = 8
S_DBG = 12
S_WAVE = 14
S_ROLE = 15
S_SPIN = 16
S_TMP = 17
SRD_A = 20
SRD_B = 24
SRD_C = 28
S_FREE = 32


def srd(a, base, ka_off, nbytes):
    a(f"s_load_dwordx2 s[{base}:{base + 1}], s[0:1], {ka_off}")
    a(f"s_mov_b32 s{base + 2}, {nbytes}")
    a(f"s_mov_b32 s{base + 3}, 0x00020000")
    a.force_wait(lg=0)
    a(f"s_and_b32 s{base + 1}, s{base + 1}, 0xffff")


def spin_check(a, abort_label):
    a(f"s_add_u32 s{S_SPIN}, s{S_SPIN}, 1")
    a(f"s_cmp_gt_u32 s{S_SPIN}, {SPIN_MAX}")
    a(f"s_cbranch_scc1 {abort_label}")


TRACE = int(os.environ.get("TRACE", "0"))
WS_TRACE = WS_END


def trace_init(a):
    if TRACE:
        a(f"s_lshl_b32 s5, s3, 5")
        a(f"s_add_u32 s5, s5, s4")
        a(f"s_lshl_b32 s5, s5, 2")
        a(f"s_add_u32 s5, s5, s{S_WAVE}")
        a(f"s_lshl_b32 s5, s5, 10")
        a(f"s_add_u32 s5, s5, {WS_TRACE}")


def trace(a, v0, v1, light=False):
    if TRACE in (1, 3, 6) or (TRACE in (2, 4, 5) and light):
        a("s_memrealtime s[6:7]")
        a.force_wait(lg=0)
        a(f"v_mov_b32 v{v0}, s6")
        a(f"v_mov_b32 v{v1}, 0")
        a("s_mov_b64 exec, 1")
        a(f"buffer_store_dword v{v0}, v{v1}, s[{SRD_WS}:{SRD_WS + 3}], s5 offen")
        a("s_mov_b64 exec, -1")
        a("s_add_u32 s5, s5, 4")


def trace_end(a):
    if TRACE:
        a.force_wait(vm=0, lg=0)
        a("s_memrealtime s[6:7]")
        a.force_wait(lg=0)
        a("s_lshl_b32 s7, s3, 5")
        a("s_add_u32 s7, s7, s4")
        a("s_lshl_b32 s7, s7, 2")
        a(f"s_add_u32 s7, s7, s{S_WAVE}")
        a("s_lshl_b32 s7, s7, 10")
        a(f"s_add_u32 s7, s7, {WS_TRACE + 255 * 4}")
        a("v_mov_b32 v10, s6")
        a("v_mov_b32 v11, 0")
        a("s_mov_b64 exec, 1")
        a(f"buffer_store_dword v10, v11, s[{SRD_WS}:{SRD_WS + 3}], s7 offen")


PROF = int(os.environ.get("PROF", "0"))


def prof_begin(a):
    if PROF:
        a("s_memtime s[88:89]")
        a.force_wait(lg=0)


def prof_end(a, k):
    if PROF:
        a("s_memtime s[86:87]")
        a.force_wait(lg=0)
        a("s_sub_u32 s86, s86, s88")
        a(f"s_add_u32 s{90 + k}, s{90 + k}, s86")


def prof_init(a):
    if PROF:
        for k in range(8):
            a(f"s_mov_b32 s{90 + k}, 0")


def prof_dump(a, v0, v1):
    if PROF:
        a(f"s_lshl_b32 s5, s3, 5")
        a(f"s_add_u32 s5, s5, s4")
        a(f"s_lshl_b32 s5, s5, 2")
        a(f"s_add_u32 s5, s5, s{S_WAVE}")
        a(f"s_lshl_b32 s5, s5, 5")
        a(f"s_add_u32 s5, s5, {WS_TRACE}")
        for k in range(8):
            a(f"v_writelane_b32 v{v0}, s{90 + k}, {k}")
        a(f"v_mbcnt_lo_u32_b32 v{v1}, -1, 0")
        a(f"v_lshlrev_b32 v{v1}, 2, v{v1}")
        a("s_mov_b64 exec, 0xff")
        a(f"buffer_store_dword v{v0}, v{v1}, s[{SRD_WS}:{SRD_WS + 3}], s5 offen")
        a("s_mov_b64 exec, -1")


def wait_units(a, lab):
    a.label(lab)
    a("s_cmp_eq_u32 s6, 0")
    a(f"s_cbranch_scc1 {lab}_d")
    a("s_sleep 127")
    a("s_sub_u32 s6, s6, 1")
    a(f"s_branch {lab}")
    a.label(lab + "_d")


DB_TICKET = 0
DB_HOMELESS = 32
DB_ABORT = 60
DB_POOL = 160
DB_POOLA = 40
DB_LOADED = 48
ORDER = int(os.environ.get('ORDER', '0'))
DB_STEP0 = 200
GATE0 = int(os.environ.get("GATE0", "0"))
DB_TEAM = 192
N_POOL = 123
SRD_DBG = 4


def dbg_add(a, off, v0, v1):
    a(f"v_mov_b32 v{v0}, {off}" if isinstance(off, int) else f"v_mov_b32 v{v0}, {off}")
    a(f"v_mov_b32 v{v1}, 1")
    a("s_mov_b64 exec, 1")
    a(f"global_atomic_add v{v0}, v{v1}, s[{S_DBG}:{S_DBG + 1}]")
    a("s_mov_b64 exec, -1")


def dbg_wait(a, off, target, v0, v1, abort, name, slp=8):
    a(f"s_cmp_lg_u32 s{S_WAVE}, 0")
    a(f"s_cbranch_scc1 {name}_d")
    a(f"v_mov_b32 v{v0}, {off}")
    a(f"s_mov_b32 s{S_SPIN}, 0")
    a.label(name)
    a(f"global_load_dword v{v1}, v{v0}, s[{S_DBG}:{S_DBG + 1}] sc1")
    spin_check(a, abort)
    a(f"v_cmp_gt_u32 vcc, {target}, v{v1}")
    a(f"s_cbranch_vccz {name}_d")
    a(f"s_sleep {slp}")
    a(f"s_branch {name}")
    a.label(name + "_d")
    a("s_barrier")


def trace_at(a, sidx, v0, vz):
    if TRACE == 4:
        a("s_memrealtime s[6:7]")
        a.force_wait(lg=0)
        a(f"s_lshl_b32 s7, s{sidx}, 2")
        a(f"s_add_u32 s7, s7, s5")
        a(f"v_mov_b32 v{v0}, s6")
        a("s_mov_b64 exec, 1")
        a(f"buffer_store_dword v{v0}, v{vz}, s[{SRD_WS}:{SRD_WS + 3}], s7 offen offset:12")
        a("s_mov_b64 exec, -1")


def trace5(a, sseg, k, v0, vz):
    if TRACE == 5:
        a("s_memrealtime s[6:7]")
        a.force_wait(lg=0)
        a(f"s_and_b32 s7, s{sseg}, 31")
        a(f"s_lshl_b32 s7, s7, 4")
        a(f"s_add_u32 s7, s7, s5")
        a(f"v_mov_b32 v{v0}, s6")
        a("s_mov_b64 exec, 1")
        a(f"buffer_store_dword v{v0}, v{vz}, s[{SRD_WS}:{SRD_WS + 3}], s7 offen offset:{16 + 4 * k}")
        a.vmq.pop()
        a("s_mov_b64 exec, -1")


DBGT = int(os.environ.get("DBGT", "0"))


def stamp_max(a, word, v0, v1, cond=None):
    if DBGT:
        L = a.newlabel("Lsm")
        if cond:
            a(f"s_cmp_lg_u32 s{cond[0]}, {cond[1]}")
            a(f"s_cbranch_scc1 {L}")
        sn = a.snap()
        a("s_memrealtime s[6:7]")
        a.force_wait(lg=0)
        a("s_sub_u32 s6, s6, s5")
        a(f"v_mov_b32 v{v0}, {word}" if isinstance(word, str) else f"v_mov_b32 v{v0}, {4 * word}")
        a(f"v_mov_b32 v{v1}, s6")
        a("s_mov_b64 exec, 1")
        a(f"global_atomic_umax v{v0}, v{v1}, s[{S_DBG}:{S_DBG + 1}]")
        a("s_mov_b64 exec, -1")
        a.restore(sn)
        a.label(L)


_MAPS = {0: {2: [("W", 24), ("P", 8)], 3: [("W", 12), ("P", 20)], 4: [("A", 16), ("O", 5), ("P", 11)],
             5: [("A", 16), ("O", 5), ("P", 11)], 6: [("T", 8), ("P", 23)], 7: [("T", 8), ("P", 23)]},
         1: {2: [("W", 12), ("P", 20)], 3: [("W", 12), ("P", 20)], 4: [("A", 16), ("O", 5), ("P", 11)],
             5: [("A", 16), ("O", 5), ("P", 11)], 6: [("T", 8), ("W", 12), ("P", 11)], 7: [("T", 8), ("P", 23)]},
         2: {2: [("P", 32)], 3: [("P", 32)], 4: [("A", 16), ("O", 5), ("P", 11)],
             5: [("A", 16), ("O", 5), ("P", 11)], 6: [("T", 8), ("W", 24)], 7: [("T", 8), ("W", 12), ("P", 10)]}}
ROLE_MAP = _MAPS[int(os.environ.get("RMAP", "2"))]
FASTH = int(os.environ.get("FASTH", "1")) and int(os.environ.get("RMAP", "2")) == 2


def class_pure(a, scls, sfast, v0, v1, abort, name):
    DBG = f"s[{S_DBG}:{S_DBG + 1}]"
    a(f"""
    v_mbcnt_lo_u32_b32 v{v0}, -1, 0
    v_mbcnt_hi_u32_b32 v{v0}, -1, v{v0}
    v_and_b32 v{v1}, 1, v{v0}
    v_lshlrev_b32 v{v1}, 7, v{v1}
    v_lshlrev_b32 v{v0}, 1, v{v0}
    v_and_or_b32 v{v0}, v{v0}, 12, v{v1}
    s_mov_b32 s{S_SPIN}, 0
    """)
    a.label(name)
    a(f"global_load_dword v{v1}, v{v0}, {DBG} sc1")
    spin_check(a, abort)
    a("s_mov_b32 s6, 0")
    for i in range(8):
        a(f"v_readlane_b32 s7, v{v1}, {i}")
        a(f"s_add_u32 s6, s6, s7")
    a(f"""
    v_readlane_b32 s7, v{v1}, s{scls}
    s_cmp_ge_u32 s7, 32
    s_cselect_b32 s{sfast}, {0 if os.environ.get('FAKEX') or os.environ.get('SLOW') or not FASTH else 1}, 0
    s_cselect_b32 s6, 256, s6
    s_cmp_lt_u32 s6, 256
    s_cbranch_scc1 {name}
    """)


def role_slots(ch):
    out = []
    for cls, lst in ROLE_MAP.items():
        t0 = 0
        for c, n in lst:
            if c == ch:
                out += [(cls, t0 + i) for i in range(n)]
            t0 += n
    return out
```

```python
import sys, os
from common import *
import role_r2 as R
import pool, pool2, role_t, role_tw2

MAIN = KNAME + "_kernel"
WBL2 = int(os.environ.get("WBL2", "1"))
INIT = "init_kernel"
def kd(name, vgpr, acc, sgpr=102):
    return f""".p2align 6
.amdhsa_kernel {name}
  .amdhsa_next_free_vgpr {vgpr}
  .amdhsa_next_free_sgpr {sgpr}
  .amdhsa_accum_offset {acc}
  .amdhsa_group_segment_fixed_size 0
  .amdhsa_kernarg_size 104
  .amdhsa_user_sgpr_count 2
  .amdhsa_user_sgpr_kernarg_segment_ptr 1
  .amdhsa_system_sgpr_workgroup_id_x 1
.end_amdhsa_kernel
"""


N_INIT = 123


def pool_init(a):
    WS = f"s[{SRD_WS}:{SRD_WS + 3}]"
    Q_ = 6
    XQ = N_INIT - 64
    srd(a, SRD_A, KA_X, 2048 * 1152)
    a(f"""
    v_lshlrev_b32 v7, 4, v0
    v_mov_b32 v12, 0
    v_mov_b32 v13, 0
    v_mov_b32 v14, 0
    v_mov_b32 v15, 0
    s_mov_b32 s46, s{Q_}
    Li_loop:
    """)
    a(f"""
    s_cmp_ge_u32 s46, 136
    s_cbranch_scc1 Li_nofl
    s_mul_i32 s41, s46, {FL_STRIDE}
    s_add_u32 s41, s41, {WS_FLAGS}
    s_sub_u32 s42, s46, 128
    s_lshl_b32 s42, s42, 12
    s_add_u32 s42, s42, {WS_ZERO}
    s_cmp_ge_u32 s46, 128
    s_cselect_b32 s41, s42, s41
    buffer_store_dwordx4 v[12:15], v7, {WS}, s41 offen sc1
    s_cbranch_scc1 Li_nofl
    """)
    for i in range(1, 6):
        a(f"s_add_u32 s41, s41, 4096")
        if i == 5:
            a("v_cmp_gt_u32 vcc, 128, v0")
            a("s_and_saveexec_b64 s[42:43], vcc")
            a("s_cbranch_execz Li_fl5")
        a(f"buffer_store_dwordx4 v[12:15], v7, {WS}, s41 offen sc1")
    a("Li_fl5:")
    a("s_mov_b64 exec, s[42:43]")
    a("Li_nofl:")
    a(f"""
    s_cmp_ge_u32 s46, 64
    s_cbranch_scc1 Li_rest
    s_mul_i32 s42, s46, {ST_SEG}
    s_add_u32 s42, s42, {WS_ST}
    s_add_u32 s43, s42, 2048
    buffer_store_dwordx4 v[12:15], v7, {WS}, s43 offen sc1
    s_branch Li_done
    Li_rest:
    s_cmp_ge_u32 s46, 192
    s_cbranch_scc1 Li_done
    s_sub_u32 s41, s46, 64
    s_lshr_b32 s42, s41, 6
    s_and_b32 s41, s41, 63
    s_mul_i32 s42, s42, {2 * ST_BYTES}
    s_mul_i32 s41, s41, {ST_SEG}
    s_add_u32 s41, s41, s42
    s_add_u32 s41, s41, {WS_ST + ST_BYTES + 9 * 512}
    v_cmp_gt_u32 vcc, 96, v0
    s_and_saveexec_b64 s[44:45], vcc
    s_cbranch_execz Li_rest2
    buffer_store_dwordx4 v[12:15], v7, {WS}, s41 offen sc1
    Li_rest2:
    s_mov_b64 exec, s[44:45]
    Li_done:
    s_add_u32 s46, s46, {N_INIT}
    s_cmp_lt_u32 s46, 192
    s_cbranch_scc1 Li_loop
    """)
    a(f"""
    v_and_b32 v1, 31, v0
    v_lshrrev_b32 v2, 5, v0
    v_mul_u32_u24 v3, 1152, v1
    v_mul_u32_u24 v5, 144, v2
    v_add_u32 v3, v3, v5
    s_sub_u32 s47, s{Q_}, {XQ}
    s_mul_i32 s41, s47, {32 * 1152}
    s_cmp_lt_u32 s{Q_}, {XQ}
    s_cselect_b32 s41, 0x7f000000, s41
    """)
    for i in range(9):
        a(f"buffer_load_dwordx4 {vr(64 + 4 * i, 4)}, v3, s[{SRD_A}:{SRD_A + 3}], s41 offen offset:{16 * i}")
    a.force_wait(vm=9)
    a("s_barrier")
    a(f"s_cmp_lg_u32 s{S_WAVE}, 0")
    a("s_cbranch_scc1 Li_mid")
    dbg_add(a, DB_POOL, 2, 3)
    a.label("Li_mid")
    a(f"s_cmp_lt_u32 s{Q_}, {XQ}")
    a("s_cbranch_scc1 Li_end")
    a.force_wait(vm=0)
    a(f"""
    v_and_b32 v1, 31, v0
    v_lshrrev_b32 v2, 5, v0
    v_mul_u32_u24 v4, {9 * 512}, v2
    v_lshl_add_u32 v4, v1, 4, v4
    s_mul_i32 s41, s47, {X_SEG}
    s_add_u32 s41, s41, {WS_X}
    s_mul_i32 s42, s47, {ST_SEG}
    s_add_u32 s42, s42, {WS_ST}
    v_mov_b32 v60, 0
    v_mov_b32 v61, 0
    """)
    for i in range(9):
        if i == 8:
            a("v_add_u32 v4, 4096, v4")
        a(f"buffer_store_dwordx4 {vr(64 + 4 * i, 4)}, v4, {WS}, s41 offen offset:{512 * (i % 8)} sc1")
    a("v_mov_b32 v62, 0x3f803f80")
    for r in range(64, 100):
        a(f"v_dot2c_f32_bf16 v60, v{r}, v62")
        a(f"v_dot2c_f32_bf16 v61, v{r}, v{r}")
    a.nop(4)
    a(f"""
    v_lshrrev_b32 v5, 1, v2
    v_lshlrev_b32 v5, 9, v5
    v_lshl_add_u32 v5, v1, 4, v5
    v_and_b32 v6, 1, v2
    v_lshl_add_u32 v5, v6, 3, v5
    buffer_store_dwordx2 v[60:61], v5, {WS}, s42 offen sc1
    """)
    a.force_wait(vm=0)
    dbg_wait(a, DB_POOL, N_POOL, 5, 6, "L_abort", "Li_pw", 2)
    a(f"""
    s_cmp_lg_u32 s{S_WAVE}, 0
    s_cbranch_scc1 Li_end
    v_lshrrev_b32 v5, 2, v0
    v_lshlrev_b32 v5, 7, v5
    v_and_b32 v6, 3, v0
    v_lshl_add_u32 v5, v6, 2, v5
    v_mov_b32 v6, 1
    s_mul_i32 s41, s47, {FL_STRIDE}
    s_mov_b32 exec_lo, -1
    s_mov_b32 exec_hi, 0xffff
    s_add_u32 s41, s41, {WS_FLAGS}
    buffer_store_dword v6, v5, {WS}, s41 offen offset:{FL_XA} sc1
    s_mov_b64 exec, -1
    """)
    if DBGT == 2:
        stamp_max(a, 14, 5, 6, (47, 0))
    a.label("Li_end")
    a.restore(([], []))


def init_index(a, sX, sTK):
    idx = {"P": 0, "W": 0, "T": 0, "A": 0, "O": 0}
    crit = {"P": 48, "A": 16, "O": 5, "W": 0, "T": 0}
    q = 0
    for cls, lst in ROLE_MAP.items():
        a(f"s_cmp_lg_u32 s{sX}, {cls}")
        a(f"s_cbranch_scc1 L_ii{cls}_no")
        runs, t0 = [], 0
        for ch, n in lst:
            for i in range(n):
                c = idx[ch] < crit[ch]
                idx[ch] += 1
                if runs and runs[-1][2] == c:
                    runs[-1][1] += 1
                else:
                    runs.append([t0 + i, t0 + i + 1, c])
            t0 += n
        if t0 < 32:
            if runs[-1][2]:
                runs.append([t0, 32, False])
            else:
                runs[-1][1] = 32
        for a0, a1, c in runs:
            a(f"s_cmp_lt_u32 s{sTK}, {a1}")
            if c:
                a("s_cbranch_scc1 L_noinit")
            else:
                a(f"s_add_u32 s6, s{sTK}, {(q - a0) & 0xffffffff}")
                a(f"s_cmp_lt_u32 s{sTK}, {a1}")
                a("s_cbranch_scc1 L_doinit")
                q += a1 - a0
        a.label(f"L_ii{cls}_no")
    assert q == N_INIT, q
    a("s_endpgm")


def gen_main(a, stamps=0, dbg_roles=None):
    WS = f"s[{SRD_WS}:{SRD_WS + 3}]"
    a.text(f".globl {MAIN}\n.p2align 8\n.type {MAIN},@function")
    a.label(MAIN)
    a.reset_window()
    sX, sTK = 3, 4
    DBG = f"s[{S_DBG}:{S_DBG + 1}]"
    a("s_cmp_ge_u32 s2, 256")
    a("s_cbranch_scc1 L_exit")
    srd(a, SRD_WS, KA_WS, WS_BYTES)
    a(f"""
    s_load_dwordx2 s[{S_DBG}:{S_DBG + 1}], s[0:1], {KA_DBG}
    v_lshrrev_b32 v1, 6, v0
    s_getreg_b32 s{sX}, hwreg(HW_REG_XCC_ID)
    v_readfirstlane_b32 s{S_WAVE}, v1
    s_and_b32 s{sX}, s{sX}, {6 if os.environ.get('FAKEX') else 7}
    s_and_b32 s{S_TMP}, s{sX}, 1
    s_lshl_b32 s{S_TMP}, s{S_TMP}, 7
    s_lshl_b32 s{S_TMP + 1}, s{sX}, 1
    s_and_b32 s{S_TMP + 1}, s{S_TMP + 1}, 12
    s_add_u32 s{S_TMP}, s{S_TMP}, s{S_TMP + 1}
    v_mov_b32 v2, 0
    v_mov_b32 v3, 1
    v_mov_b32 v4, s{S_TMP}
    s_mov_b32 s{R.sSTEP}, 0
    s_waitcnt lgkmcnt(0)
    s_cmp_lg_u32 s{S_WAVE}, 0
    s_cbranch_scc1 L_tk_wait
    s_mov_b64 exec, 1
    global_atomic_add v3, v4, v3, {DBG} sc0
    v_readfirstlane_b32 s{sTK}, v3
    s_cmp_lt_u32 s{sTK}, 32
    s_cbranch_scc1 L_tk_have
    """)
    a(f"""
    v_mov_b32 v3, 1
    v_mov_b32 v4, {DB_HOMELESS}
    global_atomic_add v3, v4, v3, {DBG} sc0
    v_readfirstlane_b32 s5, v3
    s_mov_b64 exec, 0xff
    v_and_b32 v4, 1, v0
    v_lshlrev_b32 v4, 7, v4
    v_lshlrev_b32 v5, 1, v0
    v_and_or_b32 v4, v5, 12, v4
    s_mov_b32 s{S_SPIN}, 0
    L_hl_poll:
    global_load_dword v5, v4, {DBG} sc1
    """)
    spin_check(a, "L_abort")
    a("s_mov_b32 s6, 0")
    for i in range(8):
        a(f"v_readlane_b32 s{40 + i}, v5, {i}")
        a(f"s_add_u32 s6, s6, s{40 + i}")
    a(f"""
    s_cmp_lt_u32 s6, 256
    s_cbranch_scc1 L_hl_poll
    s_mov_b32 s{sX}, 0
    s_mov_b32 s{sTK}, 0
    """)
    for i in range(7, -1, -1):
        a(f"""
        s_min_u32 s6, s{40 + i}, 32
        s_sub_u32 s7, 32, s6
        s_cmp_lt_u32 s5, s7
        s_cselect_b32 s{sX}, {i}, s{sX}
        s_add_u32 s6, s6, s5
        s_cmp_lt_u32 s5, s7
        s_cselect_b32 s{sTK}, s6, s{sTK}
        s_sub_u32 s5, s5, s7
        """)
    a(f"""
    L_tk_have:
    s_lshl_b32 s5, s{sX}, 8
    s_or_b32 s5, s5, s{sTK}
    v_mov_b32 v3, s5
    s_mov_b64 exec, 1
    ds_write_b32 v2, v3
    s_mov_b64 exec, -1
    L_tk_wait:
    """)
    a.force_wait(vm=0, lg=0)
    a("s_barrier")
    a("ds_read_b32 v3, v2")
    a(f"v_readfirstlane_b32 s5, v3")
    a(f"s_lshr_b32 s{sX}, s5, 8")
    a(f"s_and_b32 s{sTK}, s5, 255")
    a("s_barrier")
    trace_init(a)
    if DBGT:
        a("s_memrealtime s[6:7]")
        a.force_wait(lg=0)
        a("s_mov_b32 s5, s6")
    trace(a, 2, 3, True)
    en = dbg_roles or "RPWTAO"

    def tgt(ch, lab):
        return lab if ch in en else "L_exit"
    LAB = {"P": "L_role_p", "W": "L_role_tw", "T": "L_role_ta", "A": "L_role_aq", "O": "L_role_awo"}
    a(f"s_cmp_lt_u32 s{sX}, 2")
    a(f"s_cbranch_scc1 {tgt('R', 'L_role_r')}")
    init_index(a, sX, sTK)
    a.label("L_doinit")
    pool_init(a)
    a.label("L_noinit")
    base = {k: 0 for k in LAB}
    for cls, lst in ROLE_MAP.items():
        a(f"s_cmp_lg_u32 s{sX}, {cls}")
        a(f"s_cbranch_scc1 L_cls{cls}_no")
        t0 = 0
        for ch, n in lst:
            a(f"s_add_u32 s{S_ROLE}, s{sTK}, {(base[ch] - t0) & 0xffffffff}")
            a(f"s_cmp_lt_u32 s{sTK}, {t0 + n}")
            a(f"s_cbranch_scc1 {tgt(ch, LAB[ch])}")
            base[ch] += n
            t0 += n
        a("s_endpgm")
        a.label(f"L_cls{cls}_no")
    assert base == {"P": 96, "W": 36, "T": 16, "A": 32, "O": 10}, base
    a(f"""
    L_exit:
    s_endpgm
    L_abort:
    """)
    a.force_wait(lg=0)
    a(f"""
    s_mov_b64 exec, -1
    v_mov_b32 v0, {DB_ABORT}
    s_lshl_b32 s5, s{sX}, 8
    s_or_b32 s5, s5, s{sTK}
    s_or_b32 s5, s5, 0x10000
    v_mov_b32 v1, s5
    global_store_dword v0, v1, s[{S_DBG}:{S_DBG + 1}]
    s_endpgm
    """)
    for ch, lab, fn in (("P", "L_role_p", pool.role_p if os.environ.get("PV1") else pool2.role_p2),
                        ("W", "L_role_tw", role_tw2.role_tw2 if os.environ.get("TWV2") else role_t.role_tw),
                        ("O", "L_role_awo", pool.role_awo), ("A", "L_role_aq", pool.role_aq), ("T", "L_role_ta", role_t.role_ta)):
        if ch not in en:
            continue
        a.text(".p2align 6")
        a.label(lab)
        a.reset_window()
        fn(a, f"{lab}_abort", f"{lab}_exit")
        a.label(f"{lab}_abort")
        a("s_branch L_abort") if False else far_jump(a, "L_abort")
        a.label(f"{lab}_exit")
        if ch == "P" and role_t.TWX and "W" in en:
            a(f"s_cmp_lg_u32 s{pool.sLAYS}, 0")
            a("s_cbranch_scc1 L_p_end")
            a(f"s_cmp_ge_u32 s{S_ROLE}, 24")
            a("s_cbranch_scc1 L_p_end")
            a(f"s_add_u32 s{S_ROLE}, s{S_ROLE}, 36")
            a("v_lshrrev_b32 v0, 4, v0")
            a.force_wait(vm=0, lg=0)
            a("s_barrier")
            a("s_branch L_role_tw")
            a.label("L_p_end")
        if WBL2 and ch in "AT":
            lab2 = f"{lab}_nowb"
            a(f"s_and_b32 s6, s{S_ROLE}, {15 if ch == 'A' else 7}")
            a(f"s_add_u32 s6, s6, s{S_WAVE}")
            a("s_cmp_lg_u32 s6, 0")
            a(f"s_cbranch_scc1 {lab2}")
            a.force_wait(vm=0)
            a("buffer_wbl2 sc1")
            a.force_wait(vm=0)
            a.label(lab2)
        trace_end(a)
        a("s_endpgm")
    if "R" in en:
        a.text(".p2align 6")
        a.label("L_role_r")
        a.reset_window()
        a(f"s_mov_b32 s{R.sLAY}, s{sX}")
        a(f"s_mov_b32 s{R.sH}, s{sTK}")
        R.r_setup(a)
        a(f"""
        s_mov_b64 exec, 0xff
        v_lshlrev_b32 v12, 5, v{R.vL4}
        v_and_b32 v12, 128, v12
        v_lshrrev_b32 v13, 1, v{R.vL4}
        v_and_or_b32 v12, v13, 12, v12
        s_mov_b32 s{S_SPIN}, 0
        L_pure:
        global_load_dword v13, v12, {DBG} sc1
        """)
        spin_check(a, "Lr_abort")
        a("s_mov_b32 s6, 0")
        for i in range(8):
            a(f"v_readlane_b32 s7, v13, {i}")
            a(f"s_add_u32 s6, s6, s7")
        a(f"""
        v_readlane_b32 s7, v13, s{R.sLAY}
        s_cmp_ge_u32 s7, 32
        s_cselect_b32 s{R.sFAST}, {0 if os.environ.get('FAKEX') or os.environ.get('SLOW') else 1}, 0
        s_cselect_b32 s6, 256, s6
        s_cmp_lt_u32 s6, 256
        s_cbranch_scc1 L_pure
        s_mov_b64 exec, -1
        s_lshl_b32 s6, s{R.sLAY}, 2
        s_add_u32 s6, s6, {DB_TEAM}
        """)
        dbg_wait(a, "s6", 32, 12, 13, "Lr_abort", "L_team")
        dbg_wait(a, DB_POOL, N_POOL, 12, 13, "Lr_abort", "L_rpool")
        a("s_barrier")
        trace(a, 12, 13, True)
        stamp_max(a, 4, 12, 13, (R.sLAY, 0))
        for fast in (1, 0):
            if fast:
                a(f"s_cmp_eq_u32 s{R.sFAST}, 0")
                a("s_cbranch_scc1 L_slow")
            else:
                a.label("L_slow")
            for w in range(4):
                if w < 3:
                    a(f"s_cmp_lg_u32 s{S_WAVE}, {w}")
                    a(f"s_cbranch_scc1 L_w{w + 1}_{fast}")
                a.restore(([], []))
                R.r_loop(a, w, fast, "Lr_abort", "Lr_exit", stamps)
                if w < 3:
                    a.label(f"L_w{w + 1}_{fast}")
        a.label("Lr_abort")
        far_jump(a, "L_abort")
        a.label("Lr_exit")
        if WBL2:
            a(f"s_add_u32 s6, s{R.sH}, s{S_WAVE}")
            a("s_cmp_lg_u32 s6, 0")
            a(f"s_cbranch_scc1 Lr_nowb")
            a.force_wait(vm=0)
            a("buffer_wbl2 sc1")
            a.force_wait(vm=0)
            a.label("Lr_nowb")
        trace_end(a)
        a("s_endpgm")


def far_jump(a, lab):
    a.force_wait(lg=0)
    a(f"""
    s_mov_b64 exec, -1
    v_mov_b32 v0, {DB_ABORT}
    s_lshl_b32 s5, s3, 8
    s_or_b32 s5, s5, s4
    s_or_b32 s5, s5, 0x10000
    v_mov_b32 v1, s5
    global_store_dword v0, v1, s[{S_DBG}:{S_DBG + 1}]
    s_endpgm
    """)


def build(stamps=0, dbg_roles=None):
    a = Asm()
    hdr = open(os.path.join(os.path.dirname(__file__), "..", KNAME + ".s.ref")).read().split("; Override launch")[0]
    a.text(hdr.rstrip())
    a.text("; @launch grid=(256,1,1) block=(256,1,1) lds=163840")
    a.text('.amdgcn_target "amdgcn-amd-amdhsa--gfx950"\n.text')
    gen_main(a, stamps, dbg_roles)
    a.text('.section .rodata,"a"')
    a.text(kd(MAIN, 512, 256))
    return a.render()


if __name__ == "__main__":
    out = sys.argv[1]
    open(out, "w").write(build(int(os.environ.get("STAMPS", "0")), os.environ.get("ROLES")))
```

```python
from common import *
import os, struct

L_MEMA = 0
L_KX = 9216
ROWS = 288
L_QB = 17408
L_KB = L_QB + 8 * ROWS
L_OB = L_KB + 8 * ROWS
L_WO1 = 24576
L_W = 57344
LW_WAVE = 26624
assert L_OB + 8 * ROWS <= L_WO1 and L_W + 4 * LW_WAVE == 163840
PART_W = 2304

vL16, vIDX, vQW, vQR, vOR, vSPARE, vRLD, vRST, vL4, vLW = range(10)
vT0, vT1 = 10, 11
ACCQ, ACCK, ACCV = 12, 20, 28
VXA, VXB = 36, 40
Q = [44 + 4 * i for i in range(7)]
WR = [Q[3], Q[5]]
vSPARE2 = vRLD
WBASE = 72

sH = S_ROLE
sLAY = S_FREE
sSTEP = S_FREE + 1
sMEMR = S_FREE + 2
sMEMR8 = S_FREE + 3
sMEMW = S_FREE + 4
sMEMZ = S_FREE + 5
sPW = S_FREE + 6
sPH = S_FREE + 7
sKP = S_FREE + 8
sKF = S_FREE + 9
sVF = S_FREE + 10
sKM = S_FREE + 11
sFL = S_FREE + 12
sKMB = S_FREE + 13
sKPH = S_FREE + 34
sFMK = S_FREE + 46
sKPV = S_FREE + 24
sOFL = S_FREE + 35
sCEXP = S_FREE + 14
sMAXD = S_FREE + 22
sFAST = S_FREE + 23
sMASK = S_FREE + 18
sMLO = S_FREE + 20
sU = S_FREE + 16
sT = S_FREE + 25
sPR = sT
sJOBC = S_FREE + 30
sONES = S_FREE + 36
sM = S_FREE + 38
SRD_D = 80
S_STAMP = 80

MATS = "qkv"
D1 = [int(x) for x in os.environ.get("D1", "5,5,5").split(",")]
D2 = int(os.environ.get("D2", "2"))
R1LDW = int(os.environ.get("R1LDW", "16"))
WOD = int(os.environ.get("WOD", "3"))
RNT0 = int(os.environ.get("RNT0", "0"))
RNT = " nt" if os.environ.get("RNT") else ""
RNTO = " nt" if os.environ.get("RNTO") else ""
NOPUB = int(os.environ.get("NOPUB", "0"))
NOKV = int(os.environ.get("NOKV", "0"))
PFD = int(os.environ.get("PFD", "1"))
RFREE = int(os.environ.get("RFREE", "0"))
TORD = [8, 0, 1, 2, 3, 4, 5, 6, 7]
WO_L = [(TORD[i >> 1], i & 1) for i in (0, 1, 5, 6, 10, 11, 15, 16)]


def f32bits(x):
    return struct.unpack("<I", struct.pack("<f", x))[0]


def build_frag_map():
    fm = {}
    regs = [("v", WBASE + 8 * i) for i in range(23)] + [("a", 8 * i) for i in range(32)]
    ri = 0
    for t in range(9):
        for m in MATS:
            for b in range(2):
                if m == "k" and b == 1:
                    fm[(m, b, t)] = ("l", "W", t)
                else:
                    fm[(m, b, t)] = regs[ri]; ri += 1
    n0 = n1 = 0
    for tau in range(9):
        for ks in range(2):
            if (tau, ks) in WO_L:
                if ks == 0:
                    fm[("o", tau, ks)] = ("l", "W", 9 + n0); n0 += 1
                else:
                    fm[("o", tau, ks)] = ("l", "O", n1); n1 += 1
            else:
                fm[("o", tau, ks)] = regs[ri]; ri += 1
    assert ri == 55 and n0 == 4 and n1 == 4
    return fm


FM = build_frag_map()


def opnd(loc, n=8, off=0):
    k, b = loc[0], loc[1]
    return (vr if k == "v" else ar)(b + off, n)


def lds_addr(loc, w):
    if loc[1] == "W":
        return vLW, loc[2] * 2048
    return vL16, L_WO1 + w * 8192 + loc[2] * 2048


def lw_read(dst, loc, w):
    r, off = lds_addr(loc, w)
    return [f"ds_read_b128 {vr(dst, 4)}, v{r} offset:{off}", f"ds_read_b128 {vr(dst + 4, 4)}, v{r} offset:{off + 1024}"]


def SM(acc, A, B):
    return f"v_smfmac_f32_16x16x64_bf16 {vr(acc, 4)}, {vr(A, 4)}, {B}, v{vIDX}"


def r_setup(a):
    LANE, C, G = 10, 60, 61
    WS = f"s[{SRD_WS}:{SRD_WS + 3}]"
    cexp = hex(f32bits(128 ** -0.5 * 1.4426950408889634))
    a(f"""
    v_and_b32 v{LANE}, 63, v0
    v_and_b32 v{C}, 15, v{LANE}
    v_lshrrev_b32 v{G}, 4, v{LANE}
    v_lshlrev_b32 v{vL16}, 4, v{LANE}
    v_lshlrev_b32 v{vL4}, 2, v{LANE}
    s_mul_i32 s{S_TMP}, s{S_WAVE}, {LW_WAVE}
    s_add_u32 s{S_TMP}, s{S_TMP}, {L_W}
    v_add_u32 v{vLW}, s{S_TMP}, v{vL16}
    s_mov_b32 s{sMAXD}, 0xfffffffe
    s_mov_b32 s{sCEXP}, {cexp}
    s_mov_b32 s{sCEXP + 1}, {cexp}
    s_mov_b32 s{sMASK}, 0x00ff00ff
    s_mov_b32 s{sMASK + 1}, 0x00ff00ff
    s_mov_b32 s{sMLO}, -1
    s_mov_b32 s{sMLO + 1}, 0
    s_mov_b32 s{sONES}, 0x3f803f80
    s_mov_b32 s{sONES + 1}, 0x3f803f80
    s_mov_b32 s{sPH}, 0
    v_lshrrev_b32 v63, 2, v{C}
    v_and_b32 v64, 1, v{C}
    v_lshl_add_u32 v62, v63, 1, v64
    v_bfe_u32 v65, v{C}, 1, 1
    v_mov_b32 v{vIDX}, 0x4444
    v_mov_b32 v63, 0xeeee
    v_cmp_eq_u32 vcc, 0, v65
    v_cndmask_b32 v{vIDX}, v63, v{vIDX}, vcc
    v_mul_u32_u24 v63, {2 * ROWS}, v{G}
    v_lshl_add_u32 v{vQW}, v{C}, 2, v63
    s_lshl_b32 s{S_TMP}, s{S_WAVE}, 6
    v_add_u32 v{vQW}, s{S_TMP}, v{vQW}
    v_mul_u32_u24 v63, {ROWS}, v62
    v_lshl_add_u32 v{vQR}, v{G}, 4, v63
    v_lshl_add_u32 v{vOR}, v{G}, 5, v63
    v_lshl_add_u32 v{vOR}, v65, 4, v{vOR}
    """)
    def between(sfx=""):
        a(f"v_and_b32 v12, 15, v{LANE}")
        a(f"v_lshrrev_b32 v13, 4, v{LANE}")
        WP, GO, CH = 84, 85, 86
        C, G = 12, 13
        M0A, M0B = 14, 15
        a(f"""
        s_lshr_b32 s{WP}, s{sH}, 3
        s_bfe_u32 s{GO}, s{sH}, 0x20001
        s_and_b32 s{CH}, s{sH}, 1
        s_cmp_lt_u32 s{S_WAVE}, 2
        s_cbranch_scc1 Lr_jab{sfx}
        s_lshr_b32 s{WP}, s{sH}, 1
        s_and_b32 s{WP}, s{WP}, 3
        Lr_jab{sfx}:
        s_cmp_lt_u32 s{sH}, 8
        s_cselect_b32 s{sJOBC}, 1, 0
        v_bfe_u32 v20, v{C}, 2, 1
        v_lshl_add_u32 v17, v20, 2, v{G}
        v_mul_u32_u24 v17, {PART_H}, v17
        v_lshrrev_b32 v21, 3, v{C}
        v_lshlrev_b32 v21, 2, v21
        v_and_b32 v20, 3, v{C}
        v_add_u32 v21, v21, v20
        v_lshl_add_u32 v{vRLD}, v21, 4, v17
        s_mul_i32 s{S_TMP}, s{WP}, {PART_W}
        s_lshl_b32 s{S_TMP + 1}, s{S_WAVE}, 10
        s_add_u32 s{S_TMP}, s{S_TMP}, s{S_TMP + 1}
        s_lshl_b32 s{S_TMP + 1}, s{CH}, 7
        s_add_u32 s{S_TMP}, s{S_TMP}, s{S_TMP + 1}
        s_lshl_b32 s{S_TMP + 1}, s{GO}, 8
        s_cmp_lt_u32 s{S_WAVE}, 2
        s_cselect_b32 s{S_TMP + 1}, s{S_TMP + 1}, 0
        s_add_u32 s{S_TMP}, s{S_TMP}, s{S_TMP + 1}
        v_add_u32 v{vRLD}, s{S_TMP}, v{vRLD}
        """)
        HI, RR, G1, G0 = 24, 25, 26, 27
        a(f"""
        v_bfe_u32 v{HI}, v{C}, 1, 2
        v_and_b32 v{RR}, 1, v{C}
        v_lshrrev_b32 v{G1}, 1, v{G}
        v_and_b32 v{G0}, 1, v{G}
        s_cmp_lt_u32 s{S_WAVE}, 2
        s_cbranch_scc0 Lr_jc{sfx}
        s_lshl_b32 s{S_TMP}, s{S_WAVE}, 2
        v_add_u32 v18, s{S_TMP}, v{HI}
        v_lshlrev_b32 v{vRST}, 10, v18
        v_lshl_add_u32 v19, v{G0}, 1, v{RR}
        s_lshl_b32 s{S_TMP}, s{WP}, 4
        s_lshl_b32 s{S_TMP + 1}, s{GO}, 2
        s_add_u32 s{S_TMP}, s{S_TMP}, s{S_TMP + 1}
        v_add_u32 v19, s{S_TMP}, v19
        v_lshl_add_u32 v{vRST}, v19, 4, v{vRST}
        s_lshl_b32 s{S_TMP}, s{CH}, 1
        v_add_u32 v19, s{S_TMP}, v{G1}
        v_lshl_add_u32 v{vRST}, v19, 2, v{vRST}
        s_lshl_b32 s{S_TMP}, s{GO}, 1
        v_add_u32 v19, s{S_TMP}, v{RR}
        v_mul_u32_u24 v19, 576, v19
        v_lshl_add_u32 v19, v18, 4, v19
        v_lshl_add_u32 v19, v{G}, 1, v19
        s_mul_i32 s{S_TMP}, s{WP}, 144
        s_lshl_b32 s{S_TMP + 1}, s{CH}, 3
        s_add_u32 s{S_TMP}, s{S_TMP}, s{S_TMP + 1}
        v_add_u32 v19, s{S_TMP}, v19
        v_lshlrev_b32 v{M0A}, 1, v19
        v_add_u32 v{M0B}, 2, v{M0A}
        s_branch Lr_jd{sfx}
        Lr_jc{sfx}:
        s_lshl_b32 s{S_TMP}, s{CH}, 1
        v_add_u32 v18, s{S_TMP}, v{G1}
        v_lshlrev_b32 v19, 2, v18
        v_lshl_add_u32 v19, v{G0}, 1, v19
        v_add_u32 v19, v19, v{RR}
        s_lshl_b32 s{S_TMP}, s{WP}, 4
        v_add_u32 v19, s{S_TMP}, v19
        v_lshlrev_b32 v{vRST}, 4, v19
        v_lshl_add_u32 v{vRST}, v{HI}, 2, v{vRST}
        v_add_u32 v{vRST}, 8192, v{vRST}
        v_lshl_add_u32 v19, v18, 1, v{RR}
        v_mul_u32_u24 v19, 576, v19
        v_lshl_add_u32 v19, v{G0}, 3, v19
        v_add_u32 v19, v19, v{HI}
        s_mul_i32 s{S_TMP}, s{WP}, 144
        s_add_u32 s{S_TMP}, s{S_TMP}, 128
        v_add_u32 v19, s{S_TMP}, v19
        v_lshlrev_b32 v{M0A}, 1, v19
        v_add_u32 v{M0B}, 8, v{M0A}
        Lr_jd{sfx}:
        """)
        a(f"""
        s_mul_i32 s{sU}, s{sLAY}, {RING_TEAM}
        s_add_u32 s{sU}, s{sU}, {WS_RING}
        s_lshl_b32 s{S_TMP + 1}, s{S_WAVE}, 11
        s_lshl_b32 s{S_TMP + 2}, s{S_WAVE}, 8
        s_add_u32 s{S_TMP + 2}, s{S_TMP + 2}, 8192
        s_mul_i32 s{S_TMP}, s{sH}, {PART_H}
        s_add_u32 s{S_TMP}, s{S_TMP}, s{sU}
        s_mul_i32 s{sPW}, s{S_WAVE}, {PART_W}
        s_add_u32 s{sPW}, s{sPW}, s{S_TMP}
        s_add_u32 s{sMEMZ}, s{sU}, {MEMB_OFF}
        s_xor_b32 s{sMEMW}, s{sMEMZ}, {MEMB_SLOT}
        s_add_u32 s{sMEMR}, s{sMEMZ}, s{S_TMP + 1}
        s_add_u32 s{sMEMR8}, s{sMEMZ}, s{S_TMP + 2}
        s_mul_i32 s{S_TMP}, s{sLAY}, {3 * QKV_M}
        s_lshl_b32 s{S_TMP + 2}, s{sH}, 13
        s_add_u32 s{S_TMP}, s{S_TMP}, s{S_TMP + 2}
        s_add_u32 s{sKP}, s{S_TMP}, {WS_QKV + QKV_M + PFD * 32 * 8192}
        s_add_u32 s{S_TMP}, s{S_TMP}, s{S_TMP + 1}
        s_add_u32 s{sKF}, s{S_TMP}, {WS_QKV + QKV_M}
        s_add_u32 s{sVF}, s{S_TMP}, {WS_QKV + 2 * QKV_M}
        s_mul_i32 s{S_TMP}, s{sLAY}, {KM_D * 32 * KM_UNIT}
        s_lshl_b32 s{S_TMP + 2}, s{sH}, 12
        s_add_u32 s{S_TMP}, s{S_TMP}, s{S_TMP + 2}
        s_lshl_b32 s{S_TMP + 2}, s{S_WAVE}, 9
        s_add_u32 s{S_TMP}, s{S_TMP}, s{S_TMP + 2}
        s_add_u32 s{sKMB}, s{S_TMP}, {WS_KM}
        s_mov_b32 s{sKM}, s{sKMB}
        s_mov_b32 s{sKPH}, 0
        s_mov_b32 s{sOFL}, {WS_FLAGS + FL_XA + (NSEG - (KM_D - 1)) * FL_STRIDE}
        s_mov_b32 s{sFMK}, 0xff
        s_mov_b32 s{sFMK + 1}, 0
        s_mul_i32 s{S_TMP}, s{sLAY}, {NSEG * FL_STRIDE}
        s_lshl_b32 s{S_TMP + 2}, s{sH}, 9
        s_add_u32 s{S_TMP}, s{S_TMP}, s{S_TMP + 2}
        s_add_u32 s{sFL}, s{S_TMP}, {WS_FLAGS + FL_QKV}
        s_mov_b32 s{sSTEP}, 0
        """)
        srd(a, 88, KA_MEM0, 9216)
        A_ = "s[88:91]"
        a(f"""
        s_cmp_eq_u32 s{S_WAVE}, 3
        s_cbranch_scc1 Lr_mem0_done{sfx}
        s_cmp_lt_u32 s{S_WAVE}, 2
        s_cselect_b32 s{S_TMP}, 1, s{sJOBC}
        s_cmp_eq_u32 s{S_TMP}, 0
        s_cbranch_scc1 Lr_mem0_done{sfx}
        s_mov_b64 exec, s[{sMASK}:{sMASK + 1}]
        buffer_load_ushort v20, v{M0A}, {A_}, 0 offen
        buffer_load_ushort v21, v{M0B}, {A_}, 0 offen
        v_lshl_or_b32 v20, v21, 16, v20
        v_min_u32 v20, s{sMAXD}, v20
        buffer_store_dword v20, v{vRST}, {WS}, s{sMEMZ} offen sc1
        v_mov_b32 v20, -1
        buffer_store_dword v20, v{vRST}, {WS}, s{sMEMW} offen sc1
        s_mov_b64 exec, -1
        Lr_mem0_done{sfx}:
        v_mov_b32 v20, 1
        v_mov_b32 v21, 1
        v_mov_b32 v22, 1
        v_mov_b32 v23, 1
        s_xor_b32 s{S_TMP}, s{sPW}, {PART_SLOT}
        """)
        for sreg in (sPW, S_TMP):
            for i in range(2):
                a(f"buffer_store_dwordx4 v[20:23], v{vL16}, {WS}, s{sreg} offen offset:{1024 * i} sc1")
            a(f"buffer_store_dword v20, v{vL4}, {WS}, s{sreg} offen offset:2048 sc1")
        a(f"v_lshrrev_b32 v17, 1, v{vL16}")
        a(f"s_mov_b32 s{S_TMP}, s{sKMB}")
        for i in range(KM_D):
            a(f"buffer_store_dwordx2 v[20:21], v17, {WS}, s{S_TMP} offen offset:2048 sc1")
            a(f"s_mov_b64 exec, s[{sMLO}:{sMLO + 1}]")
            a(f"buffer_store_dwordx4 v[20:23], v{vL16}, {WS}, s{S_TMP} offen sc1")
            a(f"s_mov_b64 exec, -1")
            a(f"s_add_u32 s{S_TMP}, s{S_TMP}, {32 * KM_UNIT}")
        a(f"""
        s_cmp_lg_u32 s{S_WAVE}, 3
        s_cbranch_scc1 Lr_not_w3{sfx}
        v_and_b32 v{vRST}, 12, v{vL4}
        v_and_b32 v17, 4, v{LANE}
        v_lshl_add_u32 v{vRST}, v17, 5, v{vRST}
        s_add_u32 s{S_TMP}, s{sFL}, {(384 - (KM_D - 1 - 3) * FL_STRIDE) & 0xffffffff}
        s_cmp_eq_u32 s{sLAY}, 0
        s_cselect_b32 s{sOFL}, s{sOFL}, s{S_TMP}
        s_add_u32 s{S_TMP}, s{sFL}, {FL_STRIDE + 128}
        s_min_u32 s{S_TMP + 1}, s{S_TMP}, s{sOFL}
        s_sub_u32 s{S_TMP}, s{S_TMP}, s{S_TMP + 1}
        v_add_u32 v{vRST}, s{S_TMP}, v{vRST}
        s_sub_u32 s{S_TMP}, s{sOFL}, s{S_TMP + 1}
        v_mov_b32 v17, s{S_TMP}
        v_cmp_gt_u32 vcc, 8, v{LANE}
        v_cndmask_b32 v{vRST}, v17, v{vRST}, vcc
        s_mov_b32 s{sOFL}, s{S_TMP + 1}
        Lr_not_w3{sfx}:
        v_lshlrev_b32 v{vSPARE}, 3, v{vL16}
        s_add_u32 s{sKPV}, s{sKP}, {QKV_M}
        """)
    if R1LDW:
        a(f"s_cmp_eq_u32 s{sLAY}, 0")
        a("s_cbranch_scc1 Lr_noord")
        dbg_wait(a, DB_LOADED, R1LDW, 63, 64, "Lr_abort", "Lr_ord", 32)
        a.label("Lr_noord")
    if RNT0:
        a(f"s_cmp_lg_u32 s{sLAY}, 0")
        a("s_cbranch_scc1 Lr_ld1")
        sn = a.snap()
        load_weights(a, LANE, C, G, between, " nt" if RNT0 & 1 else "", " nt" if RNT0 & 2 else "", "a")
        a("s_branch Lr_ldd")
        a.label("Lr_ld1")
        a.restore(sn)
        load_weights(a, LANE, C, G, between, "", "", "b")
        a.label("Lr_ldd")
    else:
        load_weights(a, LANE, C, G, between)
    a(f"s_add_u32 s{S_TMP}, s{sLAY}, s{S_WAVE}")
    a(f"s_cmp_lg_u32 s{S_TMP}, 0")
    a("s_cbranch_scc1 Lr_nold")
    dbg_add(a, DB_LOADED, 63, 64)
    a.label("Lr_nold")
    for i in range(4):
        a(f"s_add_u32 s{sPR + i}, s{sU}, {i * 8 * PART_H}")


def load_weights(a, LANE, C, G, between, RNT=RNT, RNTO=RNTO, sfx=""):
    srd(a, SRD_A, KA_WQ, 576 * 8192)
    srd(a, SRD_B, KA_WK, 576 * 8192)
    srd(a, SRD_C, KA_WV, 576 * 8192)
    srd(a, SRD_D, KA_BWO, 4096 * 1152)
    SR = {"q": SRD_A, "k": SRD_B, "v": SRD_C}
    GA, GB, G8A, G8B, TR0, TR1, TRA, TRB, TRW = 62, 63, 64, 65, 66, 67, 68, 69, 70
    WA = 50
    sRow, sLB, sWo = sT, sT + 1, sT + 2
    a(f"""
    v_lshlrev_b32 v71, 1, v{G}
    v_xor_b32 v71, v71, v{C}
    v_lshlrev_b32 v71, 4, v71
    v_lshl_add_u32 v{GA}, v{G}, 13, v71
    v_xor_b32 v{GB}, 128, v{GA}
    v_lshrrev_b32 v{G8A}, 1, v{G}
    v_lshlrev_b32 v{G8A}, 3, v{G8A}
    v_and_b32 v{G8B}, 1, v{G}
    v_lshl_add_u32 v{G8A}, v{G8B}, 2, v{G8A}
    v_lshl_add_u32 v{G8A}, v{G8A}, 13, v71
    v_xor_b32 v{G8B}, 128, v{G8A}
    s_mul_i32 s{sRow}, s{S_WAVE}, {144 * 8192}
    s_lshl_b32 s{S_TMP}, s{sH}, 8
    s_add_u32 s{sRow}, s{sRow}, s{S_TMP}
    s_lshl_b32 s{sLB}, s{S_WAVE}, 12
    """)
    a(f"""
    v_lshrrev_b32 v71, 2, v{C}
    v_lshl_add_u32 v{TR0}, v{G}, 3, v71
    v_lshlrev_b32 v{TR0}, 8, v{TR0}
    v_bfe_u32 v{TR1}, v{C}, 1, 1
    s_lshl_b32 s{S_TMP}, s{S_WAVE}, 2
    v_add_u32 v{TR1}, s{S_TMP}, v{TR1}
    v_lshlrev_b32 v71, 1, v71
    v_xor_b32 v{TR1}, v{TR1}, v71
    v_and_b32 v71, 1, v{G}
    v_lshlrev_b32 v71, 3, v71
    v_xor_b32 v{TR1}, v{TR1}, v71
    v_and_b32 v71, 1, v{C}
    v_lshl_add_u32 v{TR0}, v71, 3, v{TR0}
    v_xor_b32 v71, 2, v{TR1}
    v_lshl_add_u32 v{TR1}, v71, 4, v{TR0}
    v_xor_b32 v71, 2, v71
    v_lshl_add_u32 v{TR0}, v71, 4, v{TR0}
    """)
    tiles = [(m, t) for t in range(9) for m in MATS]
    wo_regs = [FM[k] for k in FM if k[0] == "o" and FM[k][0] != "l"]
    park = {}
    for t in range(9):
        park[("k", 1, t)] = wo_regs[t]
    NT = len(tiles)

    def slot(i):
        return ((i + 3) % 10) * 16384

    def dma(i):
        m, t = tiles[i]
        S = f"s[{SR[m]}:{SR[m] + 3}]"
        for j in range(4):
            a(f"s_add_u32 m0, s{sLB}, {slot(i) + j * 1024}")
            if t < 8:
                a(f"s_add_u32 s{S_TMP}, s{sRow}, {(16 * t + 4 * j) * 8192}")
                g = GA if j < 2 else GB
            else:
                a(f"s_add_u32 s{S_TMP}, s{sRow}, {(128 + j) * 8192}")
                g = G8A if j < 2 else G8B
            a(f"buffer_load_dwordx4 v{g}, {S}, s{S_TMP} offen{RNT} lds")

    stages = [(ks, hf, qq) for ks in range(2) for hf in range(2) for qq in range(2)]
    STG = 18432

    def wo_prep():
        for j in range(5):
            a(f"v_add_u32 v71, {64 * j}, v{LANE}")
            a(f"v_mul_u32_u24 v59, {(65536 + 71) // 72}, v71")
            a(f"v_lshrrev_b32 v59, 16, v59")
            a(f"v_mul_u32_u24 v60, 72, v59")
            a(f"v_sub_u32 v71, v71, v60")
            a(f"v_and_b32 v60, 1, v59")
            a(f"v_lshlrev_b32 v60, 4, v60")
            a(f"v_lshrrev_b32 v59, 1, v59")
            a(f"v_lshl_add_u32 v60, v59, 2, v60")
            a(f"v_mul_u32_u24 v60, 1152, v60")
            a(f"v_lshl_add_u32 v{WA + j}, v71, 4, v60")
        a(f"""
        s_lshr_b32 s{S_TMP}, s{S_WAVE}, 1
        s_lshl_b32 s{S_TMP}, s{S_TMP}, 3
        s_and_b32 s{S_TMP + 1}, s{S_WAVE}, 1
        s_lshl_b32 s{S_TMP + 1}, s{S_TMP + 1}, 1
        s_add_u32 s{S_TMP}, s{S_TMP}, s{S_TMP + 1}
        s_lshl_b32 s{S_TMP + 1}, s{sH}, 7
        s_add_u32 s{S_TMP}, s{S_TMP}, s{S_TMP + 1}
        s_mul_i32 s{sWo}, s{S_TMP}, 1152
        s_mul_i32 s{sT + 3}, s{S_WAVE}, {4 * 1152}
        """)

    def wo_dma(z):
        ks, hf, qq = stages[z]
        base = (z % 3) * STG
        W_ = f"s[{SRD_D}:{SRD_D + 3}]"
        a(f"s_add_u32 s{S_TMP}, s{sWo}, {(64 * ks + 32 * hf + qq) * 1152}")
        for j in range(5):
            a(f"s_add_u32 m0, s{sT + 3}, {base + j * 1024}")
            if j == 4:
                a(f"s_mov_b64 exec, s[{sMLO}:{sMLO + 1}]")
            else:
                a("s_nop 0")
            a(f"buffer_load_dwordx4 v{WA + j}, {W_}, s{S_TMP} offen{RNTO} lds")
        a("s_mov_b64 exec, -1")

    a(f"""
    v_lshrrev_b32 v71, 2, v{C}
    v_lshl_add_u32 v{TRW}, v{G}, 2, v71
    v_mul_u32_u24 v{TRW}, 1152, v{TRW}
    v_and_b32 v71, 3, v{C}
    v_lshl_add_u32 v{TRW}, v71, 3, v{TRW}
    s_mul_i32 s{S_TMP}, s{S_WAVE}, 288
    v_add_u32 v{TRW}, s{S_TMP}, v{TRW}
    """)
    wo_prep()
    vq = []
    issued = [0]
    done_at = {}

    def issue(kind, i):
        if kind == "t":
            dma(i); issued[0] += 4
        else:
            wo_dma(i); issued[0] += 5
        done_at[(kind, i)] = issued[0]

    for i in range(9):
        issue("t", i)
    between(sfx)
    nxt_t, nxt_z = 9, 0
    for i in range(NT):
        a.force_wait(vm=min(63, issued[0] - done_at[("t", i)]))
        a("s_barrier")
        if i == 0:
            a(f"s_cmp_lg_u32 s{S_WAVE}, 0")
            a(f"s_cbranch_scc1 Lr_noadd{sfx}")
            a(f"s_lshl_b32 s{S_TMP}, s{sLAY}, 2")
            a(f"s_add_u32 s{S_TMP}, s{S_TMP}, {DB_TEAM}")
            dbg_add(a, f"s{S_TMP}", 48, 49)
            a.label(f"Lr_noadd{sfx}")
        if i >= 1 and nxt_t < NT:
            assert slot(nxt_t) == slot(i - 1) or nxt_t == 9
            issue("t", nxt_t); nxt_t += 1
        elif i == 0:
            issue("t", nxt_t); nxt_t += 1
        elif i >= 21 and nxt_z < 3:
            issue("z", nxt_z); nxt_z += 1
        m, t = tiles[i]
        a(f"v_add_u32 v{TRA}, {slot(i)}, v{TR0}")
        a(f"v_add_u32 v{TRB}, {slot(i)}, v{TR1}")
        for b in range(2):
            loc = park.get((m, b, t), FM[(m, b, t)])
            for q in range(4):
                a(f"ds_read_b64_tr_b16 {opnd(loc, 2, 2 * q)}, v{(TRA, TRB)[b]} offset:{(32 * (q >> 1) + 4 * (q & 1)) * 256}")
        a.wait(lg=0)
    assert nxt_t == NT and nxt_z == 3
    a("s_barrier")
    for t in range(9):
        loc = park[("k", 1, t)]
        a(f"ds_write_b128 v{vLW}, {opnd(loc, 4)} offset:{t * 2048}")
        a(f"ds_write_b128 v{vLW}, {opnd(loc, 4, 4)} offset:{t * 2048 + 1024}")
    a.wait(lg=0)
    PK = 12
    for z in range(8):
        ks, hf, qq = stages[z]
        a.force_wait(vm=min(63, issued[0] - done_at[("z", z)]))
        a("s_barrier")
        if z >= 1 and nxt_z < 8:
            assert nxt_z % 3 == (z - 1) % 3
            issue("z", nxt_z); nxt_z += 1
        q = 2 * hf + qq
        np_ = 0
        for tau in range(9):
            loc = FM[("o", tau, ks)]
            if loc[0] == "l":
                loc = ("v", PK + 8 * np_); np_ += 1
            a(f"ds_read_b64_tr_b16 {opnd(loc, 2, 2 * q)}, v{TRW} offset:{(z % 3) * STG + 32 * tau}")
        a.wait(lg=0)
        if z == 3:
            np_ = 0
            for tau in range(9):
                loc = FM[("o", tau, 0)]
                if loc[0] == "l":
                    a(f"ds_write_b128 v{vLW}, {vr(PK + 8 * np_, 4)} offset:{loc[2] * 2048}")
                    a(f"ds_write_b128 v{vLW}, {vr(PK + 8 * np_ + 4, 4)} offset:{loc[2] * 2048 + 1024}")
                    np_ += 1
            a.wait(lg=0)
    a("s_barrier")
    a(f"s_lshl_b32 s{S_TMP}, s{S_WAVE}, 13")
    a(f"v_add_u32 v71, s{S_TMP}, v{vL16}")
    np_ = 0
    for tau in range(9):
        loc = FM[("o", tau, 1)]
        if loc[0] == "l":
            a(f"ds_write_b128 v71, {vr(PK + 8 * np_, 4)} offset:{L_WO1 + loc[2] * 2048}")
            a(f"ds_write_b128 v71, {vr(PK + 8 * np_ + 4, 4)} offset:{L_WO1 + loc[2] * 2048 + 1024}")
            np_ += 1
    a.force_wait(vm=0, lg=0)
    a("s_barrier")


def flag_wait_kv(a, name, soff_extra, abort):
    if RFREE:
        return
    L = a.newlabel(name)
    a(f"s_mov_b32 s{S_SPIN}, 0")
    a(f"s_add_u32 s{S_TMP}, s{sFL}, {soff_extra + 128}")
    a(f"v_and_b32 v{vT1}, 16, v{vL4}")
    a(f"v_lshlrev_b32 v{vT1}, 3, v{vT1}")
    a(f"v_and_or_b32 v{vT1}, v{vL4}, 12, v{vT1}")
    a.label(L)
    a(f"buffer_load_dword v{vT0}, v{vT1}, s[{SRD_WS}:{SRD_WS + 3}], s{S_TMP} offen sc1")
    spin_check(a, abort)
    a(f"v_cmp_eq_u32 vcc, 0, v{vT0}")
    a(f"s_cbranch_vccz {L}d")
    a("s_sleep 4")
    a(f"s_branch {L}")
    a.label(L + "d")


def r_loop(a, w, fast, abort, done, stamps=False):
    sc = "" if fast else " sc1"
    pfx = f"Lr{w}{'f' if fast else 's'}_"
    WS = f"s[{SRD_WS}:{SRD_WS + 3}]"
    NST = 10
    HK = (w == 3)
    order = [2 * w, 2 * w + 1] + [t for t in range(8) if t >> 1 != w] + [8]

    STSEL = [int(x) for x in os.environ.get("STSEL", "0,1,2,3,4,5,6,7,8,9,10").split(",")]

    def stamp(i):
        if i not in STSEL:
            return
        if stamps == 2 or (stamps and i == NST):
            a(f"s_memrealtime s[{S_STAMP + 2 * i}:{S_STAMP + 1 + 2 * i}]")
        elif stamps:
            a(f"s_memtime s[{S_STAMP + 2 * i}:{S_STAMP + 1 + 2 * i}]")

    def dump_stamps():
        if stamps:
            a.force_wait(lg=0)
            for i in range(NST + 1):
                a(f"v_writelane_b32 v{vT1}, s{S_STAMP + 2 * i}, {i}")
            a(f"v_writelane_b32 v{vT1}, s3, 11")
            a(f"v_writelane_b32 v{vT1}, s4, 12")
            a(f"s_lshl_b32 s{S_TMP}, s{sLAY}, 5")
            a(f"s_add_u32 s{S_TMP}, s{S_TMP}, s{sH}")
            a(f"s_lshl_b32 s{S_TMP}, s{S_TMP}, 6")
            a(f"s_add_u32 s{S_TMP}, s{S_TMP}, s{sSTEP}")
            a(f"s_lshl_b32 s{S_TMP}, s{S_TMP}, 8")
            a(f"s_add_u32 s{S_TMP}, s{S_TMP}, {WS_END + w * 64}")
            a(f"s_mov_b64 exec, 0x1fff")
            a(f"buffer_store_dword v{vT1}, v{vL4}, {WS}, s{S_TMP} offen")
            a(f"s_mov_b64 exec, -1")

    def zero(base, n):
        return [f"v_mov_b64 {vr(base + 2 * i, 2)}, 0" for i in range(n // 2)]

    def seq(*items):
        for it in items:
            if isinstance(it, (list, tuple)):
                seq(*it)
            elif callable(it):
                it()
            elif it:
                a(it)

    cont = {}

    def ld(dst, name, text):
        def f():
            a(text)
            cont[dst] = name
        return f

    def use(reg, name):
        assert cont.get(reg) == name, (w, reg, name, cont.get(reg))

    def M(i):
        return f"s[{sM + 2 * i}:{sM + 2 * i + 1}]"

    def poll(name, loads, checks, between=None, issued=0):
        n = len(loads)
        L = pfx + name
        if not issued:
            seq(loads)
        a(f"s_mov_b32 s{S_SPIN}, 0")
        for i in range(n):
            a(f"s_mov_b64 {M(i)}, 0")
        a.label(L)
        a.auto = False
        for i in range(n):
            a(f"s_mov_b64 exec, {M(i)}")
            a(loads[i])
        a("s_mov_b64 exec, -1")
        spin_check(a, abort)
        for i in range(n):
            a.force_wait(vm=2 * n - 1 - i)
            seq(checks[i])
            if between:
                seq(between[i])
            if i >= 2:
                a(f"s_or_b64 vcc, {M(0) if i == 2 else 'vcc'}, {M(i - 1)}")
        a(f"s_or_b64 vcc, vcc, {M(n - 1)}")
        a(f"s_cbranch_scc1 {L}")
        a.auto = True
        a.vmq = [(frozenset(), "pollx")] * n

    def chk4(q, i):
        return [f"v_max3_u32 v{vT1}, v{q}, v{q + 1}, v{q + 2}", f"v_max_u32 v{vT1}, v{vT1}, v{q + 3}",
                f"v_cmp_eq_u32 {M(i)}, -1, v{vT1}"]

    ACC = {"q": ACCQ, "k": ACCK, "v": ACCV}

    def A_read(dst, t):
        return ld(dst, ("A", t), f"ds_read_b128 {vr(dst, 4)}, v{vL16} offset:{L_MEMA + t * 1024}")

    def LW(buf, key):
        r = lw_read(buf, FM[key], w)
        return [ld(buf, ("W", key), r[0]), ld(buf + 4, ("W2", key), r[1])]

    def S(m, b, t, A, buf=None):
        def f():
            use(A, ("A", t))
            loc = FM[(m, b, t)]
            if loc[0] == "l":
                use(buf, ("W", (m, b, t))); use(buf + 4, ("W2", (m, b, t)))
                B = vr(buf, 8)
            else:
                B = opnd(loc)
            a(SM(ACC[m] + 4 * b, A, B))
        return f

    def qB(dst, j):
        return ld(dst, ("qB", j), f"ds_read_b128 {vr(dst, 4)}, v{vQR} offset:{L_QB + j * 64}")

    def kmA(dst, j):
        return ld(dst, ("km", j), f"ds_read_b128 {vr(dst, 4)}, v{vQR} offset:{L_KB + j * 64}")

    def KX(dst, j, tt):
        return ld(dst, ("KX", j, tt), f"ds_read_b128 {vr(dst, 4)}, v{vL16} offset:{L_KX + (j * 2 + tt) * 1024}")

    def MF(acc, A, B, first, ea=None, eb=None):
        def f():
            if ea is not None:
                use(A, ea)
            if eb is not None:
                use(B, eb)
            a(f"v_mfma_f32_16x16x32_bf16 {vr(acc, 4)}, {vr(A, 4)}, {vr(B, 4)}, {'0' if first else vr(acc, 4)}")
        return f

    def MF16(acc, A, B):
        return f"v_mfma_f32_16x16x16_bf16 {vr(acc, 4)}, {vr(A, 2)}, {vr(B, 2)}, {vr(acc, 4)}"

    def xe(acc):
        X, Y = acc, acc + 4
        return [f"v_add_f32 v{X}, v{X}, v{X + 2}", f"v_add_f32 v{Y}, v{Y}, v{Y + 2}",
                f"v_add_f32 v{X + 1}, v{X + 1}, v{X + 3}", f"v_add_f32 v{Y + 1}, v{Y + 1}, v{Y + 3}",
                f"v_cvt_pk_bf16_f32 v{X + 2}, v{X}, v{Y}",
                f"v_cvt_pk_bf16_f32 v{X + 3}, v{X + 1}, v{Y + 1}"]

    def kdma(i):
        if NOKV & 1:
            return None
        return lambda: a(f"buffer_load_dwordx4 v{vL16}, {WS}, s{sKF} offen offset:{1024 * i} lds", tag="kdma")

    tails = []

    def flag_sample():
        if not RFREE:
            a(f"buffer_load_dword v{vRLD}, v{vRST}, {WS}, s{sOFL} offen sc1")

    def flag_check_prefetch():
        if not RFREE:
            a(f"v_cmp_eq_u32 vcc, 0, v{vRLD}")
            a(f"s_and_b64 vcc, vcc, s[{sFMK}:{sFMK + 1}]")
            a(f"s_cbranch_scc1 {pfx}flbad")
            wn = list(a.win)

            def flbad():
                a.label(pfx + "flbad")
                a.win = wn
                a.restore(([], []))
                a(f"s_cmp_eq_u32 s{sSTEP}, {NSEG - 1}")
                a(f"s_cbranch_scc1 {pfx}flok")
                a(f"s_mov_b32 s{S_SPIN}, 0")
                a.label(pfx + "flp")
                a(f"buffer_load_dword v{vRLD}, v{vRST}, {WS}, s{sOFL} offen sc1")
                spin_check(a, abort)
                a(f"v_cmp_eq_u32 vcc, 0, v{vRLD}")
                a(f"s_and_b64 vcc, vcc, s[{sFMK}:{sFMK + 1}]")
                a(f"s_cbranch_scc1 {pfx}flp")
                a(f"s_branch {pfx}flok")
            tails.append(flbad)
            a.label(pfx + "flok")
        if NOKV & 2:
            return
        a.auto = False
        a(f"buffer_load_dword v{vRLD}, v{vSPARE}, {WS}, s{sKP} offen", tag="pf")
        a(f"buffer_load_dword v{vRLD}, v{vSPARE}, {WS}, s{sKPV} offen", tag="pf")
        a.auto = True

    AO0, AO1, A8 = Q[0], Q[1], vT0
    loads2 = [f"buffer_load_dwordx4 {vr(AO0, 4)}, v{vL16}, {WS}, s{sMEMR} offen sc1",
              f"buffer_load_dwordx4 {vr(AO1, 4)}, v{vL16}, {WS}, s{sMEMR} offen offset:1024 sc1",
              f"buffer_load_dword v{A8}, v{vL4}, {WS}, s{sMEMR8} offen sc1"]

    def pre_step():
        seq(LW(WR[0], ("k", 1, order[0])), LW(WR[1], ("k", 1, order[1])), zero(ACCQ, 24))

    if HK:
        flag_wait_kv(a, pfx + "fw", 0, abort)
    a("s_barrier")
    a(f"s_mov_b32 m0, {L_KX + w * 2048}")
    a("s_nop 0")
    seq(kdma(0), kdma(1))
    a(f"s_add_u32 s{sKF}, s{sKF}, {32 * 8192}")
    a.wait(vm=0)
    seq(loads2)
    pre_step()
    a.wait(lg=0)
    head = pfx + "step"
    a.label(head)
    head_cont = dict(cont)
    poll("p2", loads2, [chk4(AO0, 0), chk4(AO1, 1), [f"v_cmp_eq_u32 {M(2)}, -1, v{A8}"]], issued=1)
    cont[AO0] = ("A", order[0]); cont[AO1] = ("A", order[1])
    stamp(0)
    if stamps:
        a(f"s_mov_b32 s4, s{S_SPIN}")
    ring = [Q[0], Q[1], Q[2], VXA, VXB, Q[2], Q[0], Q[1], Q[2]]

    def Ap(p):
        return ring[p]

    def qk(p, which):
        t = order[p]
        m, b = which
        return S(m, b, t, Ap(p), WR[p & 1])
    def run(slots):
        for mf, fl in slots:
            seq(mf, fl)

    def lwh(p, half):
        return LW(WR[p & 1], ("k", 1, order[p]))[half]
    run([(qk(0, ("q", 0)), [f"ds_write_b128 v{vL16}, {vr(AO0, 4)} offset:{L_MEMA + order[0] * 1024}"]),
         (qk(0, ("q", 1)), [f"ds_write_b128 v{vL16}, {vr(AO1, 4)} offset:{L_MEMA + order[1] * 1024}"]),
         (qk(0, ("k", 0)), [f"ds_write_b32 v{vL4}, v{A8} offset:{L_MEMA + 8192 + w * 256}"]),
         (qk(0, ("k", 1)), [])])
    a.barrier(lg=0)
    seq(A_read(Ap(2), order[2]))
    fl = {4: A_read(Ap(3), order[3]), 5: lwh(2, 0), 6: lwh(2, 1), 7: A_read(Ap(4), order[4]),
          9: lwh(3, 0), 10: lwh(3, 1), 12: A_read(Ap(5), order[5]),
          16: f"buffer_load_dwordx4 {vr(VXA, 4)}, v{vL16}, {WS}, s{sVF} offen",
          20: f"buffer_load_dwordx4 {vr(VXB, 4)}, v{vL16}, {WS}, s{sVF} offen offset:1024",
          19: [lambda: a.wait_tag("pollx"), A_read(Ap(6), order[6])], 23: A_read(Ap(7), order[7]), 24: A_read(Ap(8), order[8])}
    for p in range(4, 9):
        fl[4 * p - 3] = lwh(p, 0)
        fl[4 * p - 2] = lwh(p, 1)
    tail = [(7, ("q", 0)), (7, ("q", 1)), (8, ("q", 0)), (8, ("q", 1)), (7, ("k", 0)), (7, ("k", 1)), (8, ("k", 0)), (8, ("k", 1))]
    spine = [(p, mb) for p in range(7) for mb in (("q", 0), ("q", 1), ("k", 0), ("k", 1))] + tail
    if NOKV & 4:
        fl[16] = fl[20] = None
    qe, ke = xe(ACCQ), xe(ACCK)
    SX, SMm, X4 = ACCQ, ACCK + 4, ACCK
    fl[33] = [KX(Q[5], 0, 0), qe[0]]
    fl[34] = [KX(Q[6], 0, 1), qe[1]]
    fl[35] = [KX(Q[3], 1, 0), qe[2], qe[3], qe[4], qe[5]]
    if HK:
        fl[8] = [fl.get(8), flag_sample]
    for sl in range(4, 36):
        p, mb = spine[sl]
        seq(qk(p, mb), fl.get(sl))
        if sl == 7:
            stamp(1)
    seq(f"ds_write_b32 v{vQW}, v{ACCQ + 2} offset:{L_QB}",
        f"ds_write_b32 v{vQW}, v{ACCQ + 3} offset:{L_QB + ROWS}")
    stamp(2)

    def V(p, A):
        return [S("v", 0, order[p], A), S("v", 1, order[p], A)]
    run([(V(8, Q[2])[0], [KX(Q[4], 1, 1), ke[0], ke[1], ke[2], ke[3]]),
         (V(8, Q[2])[1], [A_read(ACCQ, order[0]), ke[4], ke[5],
                          f"ds_write_b32 v{vQW}, v{ACCK + 2} offset:{L_KB}",
                          f"ds_write_b32 v{vQW}, v{ACCK + 3} offset:{L_KB + ROWS}"]),
         (V(7, Q[1])[0], [A_read(ACCQ + 4, order[1])]),
         (V(7, Q[1])[1], [A_read(ACCK, order[2])]),
         (V(6, Q[0])[0], [A_read(ACCK + 4, order[3])]),
         (V(6, Q[0])[1], [])])
    a.barrier(lg=3)
    stamp(3)
    ve = [f"v_add_f32 v{ACCV}, v{ACCV}, v{ACCV + 2}", f"v_add_f32 v{ACCV + 1}, v{ACCV + 1}, v{ACCV + 3}",
          f"v_add_f32 v{ACCV + 4}, v{ACCV + 4}, v{ACCV + 6}", f"v_add_f32 v{ACCV + 5}, v{ACCV + 5}, v{ACCV + 7}",
          f"v_cvt_pk_bf16_f32 v{ACCV + 2}, v{ACCV}, v{ACCV + 1}",
          f"v_cvt_pk_bf16_f32 v{ACCV + 3}, v{ACCV + 4}, v{ACCV + 5}"]
    seq(qB(Q[0], 0))
    run([(V(0, ACCQ)[0], [A_read(Q[2], order[4])]),
         (V(0, ACCQ)[1], [kmA(ACCQ, 0)]),
         (V(1, ACCQ + 4)[0], [A_read(Q[1], order[5])]),
         (V(1, ACCQ + 4)[1], []),
         (V(2, ACCK)[0], []),
         (V(2, ACCK)[1], [qB(ACCK, 1)]),
         (V(3, ACCK + 4)[0], []),
         (V(3, ACCK + 4)[1], []),
         (V(4, Q[2])[0], []),
         (V(4, Q[2])[1], [kmA(Q[2], 1)]),
         (V(5, Q[1])[0], []),
         (V(5, Q[1])[1], [qB(Q[1], 2)])])
    PBQ = ACCV + 4
    run([(MF(SMm, ACCQ, Q[0], True, ("km", 0), ("qB", 0)), [flag_check_prefetch] if HK else []),
         (MF(SX, Q[5], Q[0], True, ("KX", 0, 0), ("qB", 0)), [KX(Q[5], 2, 0)]),
         (MF(SX + 4, Q[6], Q[0], True, ("KX", 0, 1), ("qB", 0)), [KX(Q[6], 2, 1)]),
         (MF(SMm, Q[2], ACCK, False, ("km", 1), ("qB", 1)), [kmA(Q[0], 2), ve[0], ve[1]]),
         (MF(SX, Q[3], ACCK, False, ("KX", 1, 0), ("qB", 1)), [qB(Q[2], 3), ve[2], ve[3]]),
         (MF(SX + 4, Q[4], ACCK, False, ("KX", 1, 1), ("qB", 1)), [KX(Q[3], 3, 0), ve[4], ve[5]]),
         (MF(SMm, Q[0], Q[1], False, ("km", 2), ("qB", 2)),
          [kmA(ACCK, 3), f"v_lshrrev_b32 v{vT0}, 8, v{vL16}", f"v_mul_u32_u24 v{vT0}, {ROWS}, v{vT0}"]),
         (MF(SX, Q[5], Q[1], False, ("KX", 2, 0), ("qB", 2)),
          [KX(Q[4], 3, 1), f"v_and_b32 v{vT1}, 0xf0, v{vL16}", f"v_add_u32 v{vT0}, v{vT0}, v{vT1}"]),
         (MF(SX + 4, Q[6], Q[1], False, ("KX", 2, 1), ("qB", 2)),
          [f"ds_read_b128 {vr(PBQ, 4)}, v{vT0} offset:{L_KB + 2 * w * ROWS}", f"v_lshrrev_b32 v{vT1}, 1, v{vL16}",
           f"v_bfi_b32 v{ACCV + 2}, 1, s{sKPH}, v{ACCV + 2}"]),
         (MF(SMm, ACCK, Q[2], False, ("km", 3), ("qB", 3)),
          [f"buffer_store_dwordx2 {vr(ACCV + 2, 2)}, v{vT1}, {WS}, s{sKM} offen offset:2048 sc1" if not NOPUB else None,
           f"v_mov_b32 v{Q[1] + 1}, 0", f"v_mov_b32 v{Q[1] + 2}, 0"]),
         (MF(SX, Q[3], Q[2], False, ("KX", 3, 0), ("qB", 3)),
          [f"v_mov_b64 {vr(Q[5], 2)}, s[{sONES}:{sONES + 1}]", f"v_mov_b64 {vr(Q[5] + 2, 2)}, s[{sONES}:{sONES + 1}]"]),
         (MF(SX + 4, Q[4], Q[2], False, ("KX", 3, 1), ("qB", 3)),
          [f"v_bfi_b32 v{PBQ}, 1, s{sKPH}, v{PBQ}", f"s_mov_b64 exec, s[{sMLO}:{sMLO + 1}]",
           f"buffer_store_dwordx4 {vr(PBQ, 4)}, v{vL16}, {WS}, s{sKM} offen sc1" if not NOPUB else None,
           "s_mov_b64 exec, -1"])])
    stamp(4)
    MX, T1 = vT0, vT1
    MP = X4
    LQ = Q[6]
    P4 = Q[0]
    PB = Q[1]
    OX, OY = Q[2], Q[3]
    ONES = Q[5]
    WB = [Q[4], VXA]
    wo_buf = {k: WB[i % 2] for i, k in enumerate(WO_L)}

    def wo_rd(i):
        return LW(wo_buf[WO_L[i]], ("o",) + WO_L[i])

    pf = [f"v_pk_fma_f32 {vr(b, 2)}, {vr(b, 2)}, s[{sCEXP}:{sCEXP + 1}], {vr(MP, 2)} op_sel_hi:[1,1,0] neg_lo:[0,0,1] neg_hi:[0,0,1]"
          for b in (SMm, SX, SX + 2, SX + 4, SX + 6)]
    ex = [f"v_exp_f32 v{r}, v{r}" for r in [SMm, SMm + 1] + list(range(SX, SX + 8))]
    seq(f"v_max3_f32 v{MX}, v{SMm}, v{SMm + 1}, v{SX}",
        f"v_max3_f32 v{MX}, v{MX}, v{SX + 1}, v{SX + 2}",
        f"v_max3_f32 v{MX}, v{MX}, v{SX + 3}, v{SX + 4}",
        f"v_max3_f32 v{MX}, v{MX}, v{SX + 5}, v{SX + 6}",
        f"v_max_f32 v{MX}, v{MX}, v{SX + 7}",
        f"v_mov_b32 v{T1}, v{MX}",
        f"v_permlane32_swap_b32 v{MX}, v{T1}",
        f"v_max_f32 v{MX}, v{MX}, v{T1}",
        f"v_mov_b32 v{T1}, v{MX}",
        f"v_permlane16_swap_b32 v{MX}, v{T1}",
        f"v_max_f32 v{MX}, v{MX}, v{T1}",
        f"v_mul_f32 v{MP}, s{sCEXP}, v{MX}",
        pf[0], pf[1], ex[0], ex[1], pf[2], ex[2], ex[3], pf[3],
        f"v_cvt_pk_bf16_f32 v{PB}, v{SMm}, v{SMm + 1}", ex[4], pf[4],
        f"v_cvt_pk_bf16_f32 v{PB + 3}, v{SMm}, v{SMm + 1}", ex[5],
        f"v_cvt_pk_bf16_f32 v{P4}, v{SX}, v{SX + 1}", ex[6], ex[7],
        f"v_cvt_pk_bf16_f32 v{P4 + 1}, v{SX + 2}, v{SX + 3}", ex[8], ex[9],
        f"v_cvt_pk_bf16_f32 v{P4 + 2}, v{SX + 4}, v{SX + 5}",
        f"v_cvt_pk_bf16_f32 v{P4 + 3}, v{SX + 6}, v{SX + 7}",
        f"v_mfma_f32_16x16x16_bf16 {vr(LQ, 4)}, {vr(ONES, 2)}, {vr(PB, 2)}, 0",
        f"v_mfma_f32_16x16x16_bf16 {vr(OX, 4)}, {vr(ACCV + 2, 2)}, {vr(PB, 2)}, 0",
        f"v_mfma_f32_16x16x16_bf16 {vr(OY, 4)}, {vr(ACCV + 2, 2)}, {vr(PB + 2, 2)}, 0",
        MF(LQ, ONES, P4, False),
        MF(OX, VXA, P4, False), wo_rd(0)[0] if False else None,
        MF(OY, VXB, P4, False), wo_rd(1)[0], wo_rd(1)[1],
        wo_rd(0)[0],
        f"v_rcp_f32 v{MX}, v{LQ}")
    stamp(5)
    OP = ACCQ + 4
    for i in (0, 2):
        a(f"v_pk_mul_f32 {vr(OX + i, 2)}, {vr(OX + i, 2)}, {vr(MX, 2)} op_sel_hi:[1,0]")
        a(f"v_pk_mul_f32 {vr(OY + i, 2)}, {vr(OY + i, 2)}, {vr(MX, 2)} op_sel_hi:[1,0]")
        a(f"v_cvt_pk_bf16_f32 v{OP + i}, v{OX + i}, v{OY + i}")
        a(f"v_cvt_pk_bf16_f32 v{OP + i + 1}, v{OX + i + 1}, v{OY + i + 1}")
    a(f"ds_write_b128 v{vQR}, {vr(OP, 4)} offset:{L_OB + w * 64}")
    TA = [ACCQ, ACCK, ACCK + 4, ACCV + 4, Q[0], Q[1], Q[6], ACCQ + 4, ACCV]
    OA0, OA1 = Q[2], Q[3]
    seq(wo_rd(0)[1], zero(ACCQ, 4), zero(ACCK, 8), zero(ACCV + 4, 4), zero(Q[0], 8))
    a.barrier(lg=1)
    a(f"ds_read_b128 {vr(OA0, 4)}, v{vOR} offset:{L_OB}")
    a(f"ds_read_b128 {vr(OA1, 4)}, v{vOR} offset:{L_OB + 128}")
    seq(zero(Q[6], 4), zero(ACCV, 4), zero(OP, 4))
    last = pfx + "last"
    seq(f"s_cmp_eq_u32 s{sSTEP}, {NSEG - 1}", f"s_cbranch_scc1 {last}")
    stamp(6)
    ST = [TA[0], TA[4], TA[8]]

    def epi(tau):
        acc = TA[tau]
        dst = ST[tau // 4] + tau % 4
        ops = [f"v_add_f32 v{acc}, v{acc}, v{acc + 2}", f"v_add_f32 v{acc + 1}, v{acc + 1}, v{acc + 3}",
               f"v_cvt_pk_bf16_f32 v{dst}, v{acc}, v{acc + 1}"]
        if tau % 4 == 0:
            ops.append(f"v_bfi_b32 v{dst}, 1, s{sPH}, v{dst}")
        if tau in (3, 7):
            ops.append(f"buffer_store_dwordx4 {vr(ST[tau // 4], 4)}, v{vL16}, {WS}, s{sPW} offen offset:{1024 * (tau // 4)}{sc}")
        if tau == 8:
            ops.append(f"buffer_store_dword v{dst}, v{vL4}, {WS}, s{sPW} offen offset:2048{sc}")
        return ops

    nxt = 2
    fill = []
    pend = []
    for idx in range(18):
        tau, ks = TORD[idx >> 1], idx & 1
        k = ("o", tau, ks)
        if FM[k][0] == "l":
            buf = wo_buf[(tau, ks)]
            use(buf, ("W", k)); use(buf + 4, ("W2", k))
            B = vr(buf, 8)
        else:
            B = opnd(FM[k])
        a(SM(TA[tau], (OA0, OA1)[ks], B))
        if pend:
            seq(pend.pop(0))
        elif idx in (3, 8):
            seq(kdma(idx // 8))
        if FM[k][0] == "l" and nxt < len(WO_L):
            r = wo_rd(nxt)
            seq(r[0])
            pend.append(r[1])
            nxt += 1
        n = 0
        while fill and fill[0][0] <= idx and (n < 2 or not fill[0][1].startswith("v_")):
            n += fill[0][1].startswith("v_")
            a(fill.pop(0)[1])
        if ks == 1:
            fill += [(idx + WOD, t) for t in epi(tau)]
    for _, t in fill:
        a(t)
    stamp(7)
    tog = [f"s_xor_b32 s{r}, s{r}, {MEMB_SLOT}" for r in [sMEMR, sMEMR8]]

    if not HK:
        if w == 2:
            a(f"s_cmp_eq_u32 s{sJOBC}, 0")
            a(f"s_cbranch_scc1 {pfx}nojob")
        LD = [Q[2], Q[3], Q[4], Q[5]]
        SEL, D = VXA, VXB
        loads1 = [f"buffer_load_dwordx4 {vr(LD[i], 4)}, v{vRLD}, {WS}, s{sPR + i} offen sc1" for i in range(4)]
        if w < 2:
            checks = [[f"v_and_b32 v{vT1}, 1, v{LD[i]}", f"v_cmp_ne_u32 {M(i)}, s{sPH}, v{vT1}"] for i in range(4)]
        else:
            checks = [[f"v_xor_b32 v{vT0}, v{LD[i]}, v{LD[i] + 1}", f"v_xor_b32 v{vT1}, v{LD[i] + 2}, v{LD[i] + 3}",
                       f"v_or_b32 v{vT0}, v{vT0}, v{vT1}", f"v_xor_b32 v{vT1}, v{LD[i]}, v{LD[i] + 2}",
                       f"v_or_b32 v{vT0}, v{vT0}, v{vT1}", f"v_xor_b32 v{vT1}, s{sPH}, v{LD[i]}",
                       f"v_or_b32 v{vT0}, v{vT0}, v{vT1}", f"v_and_b32 v{vT0}, 1, v{vT0}",
                       f"v_cmp_ne_u32 {M(i)}, 0, v{vT0}"] for i in range(4)]
        betw = [[MF(D, LD[i], SEL, i == 0)] for i in range(4)]
        stamp(9)
        a(f"v_bfe_u32 v{vT0}, v{vL16}, 4, 4")
        a(f"v_mov_b32 v{vT1}, 0x3f80")
        a(f"v_mov_b32 v{D}, 0x3f800000")
        for d in range(4):
            a(f"v_cmp_eq_u32 vcc, {2 * d}, v{vT0}")
            a(f"v_cmp_eq_u32 s[{sU}:{sU + 1}], {2 * d + 1}, v{vT0}")
            a(f"v_cndmask_b32 v{SEL + d}, 0, v{vT1}, vcc")
            a(f"v_cndmask_b32 v{SEL + d}, v{SEL + d}, v{D}, s[{sU}:{sU + 1}]")
        if D1[w]:
            a(f"s_sleep {D1[w]}")
        poll("p1", loads1, checks, betw)
        stamp(8)
        if stamps:
            a(f"s_mov_b32 s3, s{S_SPIN}")
        seq(f"v_permlane16_swap_b32 v{D}, v{D + 2}", f"v_permlane16_swap_b32 v{D + 1}, v{D + 3}",
            f"s_mov_b64 exec, s[{sMASK}:{sMASK + 1}]",
            f"v_add_f32 v{D}, v{D}, v{D + 2}", f"v_add_f32 v{D + 1}, v{D + 1}, v{D + 3}",
            f"v_cvt_pk_bf16_f32 v{D}, v{D}, v{D + 1}", f"v_min_u32 v{D}, s{sMAXD}, v{D}",
            f"buffer_store_dword v{D}, v{vRST}, {WS}, s{sMEMW} offen{sc}",
            f"v_mov_b32 v{D + 1}, -1",
            f"buffer_store_dword v{D + 1}, v{vRST}, {WS}, s{sMEMZ} offen{sc}",
            f"s_mov_b64 exec, -1")
        if w == 2:
            a(f"s_branch {pfx}jobdone")
            a.label(pfx + "nojob")
            a.restore(([], []))
            a.label(pfx + "jobdone")
            a.vmq = [(frozenset(), "pollx")] * 4 + [(frozenset(), "st")] * 3
    adv = [f"s_add_u32 s{sSTEP}, s{sSTEP}, 1", f"s_bfe_u32 s{sPH}, s{sSTEP}, 0x10001",
           f"s_xor_b32 s{sPW}, s{sPW}, {PART_SLOT}"]
    adv += [f"s_xor_b32 s{r}, s{r}, {PART_SLOT}" for r in ([] if HK else [sPR + i for i in range(4)])]
    adv += [f"s_xor_b32 s{r}, s{r}, {MEMB_SLOT}" for r in ([] if HK else [sMEMW, sMEMZ])]
    adv += [f"s_and_b32 s{S_TMP}, s{sSTEP}, {KM_D - 1}", f"s_mul_i32 s{S_TMP}, s{S_TMP}, {32 * KM_UNIT}",
            f"s_add_u32 s{sKM}, s{sKMB}, s{S_TMP}", f"s_bfe_u32 s{sKPH}, s{sSTEP}, {0x10000 + KM_D.bit_length() - 1}",
            f"s_add_u32 s{sOFL}, s{sOFL}, {FL_STRIDE}"]
    if HK:
        adv += [f"s_and_b32 s{S_TMP}, s{sSTEP}, 3", f"s_cmp_eq_u32 s{S_TMP}, 3", f"s_cselect_b32 s{S_TMP}, 1, 0",
                f"s_cmp_eq_u32 s{sLAY}, 0", f"s_cselect_b32 s{S_TMP}, 1, s{S_TMP}",
                f"s_cmp_ge_u32 s{sSTEP}, {KM_D - 1}", f"s_cselect_b32 s{S_TMP}, s{S_TMP}, 0",
                f"s_cmp_lg_u32 s{S_TMP}, 0", f"s_cselect_b64 s[{sFMK}:{sFMK + 1}], -1, 0xff",
                f"s_add_u32 s{sKPV}, s{sKPV}, {32 * 8192}"]
    adv += [f"s_add_u32 s{sVF}, s{sVF}, {32 * 8192}",
            f"s_add_u32 s{sKF}, s{sKF}, {32 * 8192}", f"s_add_u32 s{sKP}, s{sKP}, {32 * 8192}",
            f"s_add_u32 s{sFL}, s{sFL}, {FL_STRIDE}"]
    seq(tog)
    a("s_barrier")
    if D2:
        a(f"s_sleep {D2}")
    seq(loads2, adv)
    if not HK:
        a.wait_tag("pollx")
    pre_step()
    a.wait(lg=0)
    if HK:
        trace(a, Q[2], Q[2] + 1, True)
        if DBGT == 1:
            a.force_wait(lg=0)
            for k, (wd, st) in enumerate(((5, 1), (13, 63))):
                a(f"s_lshl_b32 s{S_TMP}, s{sLAY}, 2")
                a(f"s_add_u32 s{S_TMP + 1}, s{S_TMP}, {4 * wd}")
                stamp_max(a, f"s{S_TMP + 1}", Q[2], Q[2] + 1, (sSTEP, st))
    stamp(NST)
    dump_stamps()
    a.restore(([], []))
    a(f"s_branch {head}")
    for t in tails:
        t()
    a.restore(([], []))
    a.label(last)
    a.force_wait(vm=0, lg=0)
    if HK:
        trace(a, Q[2], Q[2] + 1, True)
    a(f"s_branch {done}")
```

```python
from common import *
import os, struct

L_MEMA = 0
L_KX = 9216
ROWS = 288
L_QB = 17408
L_KB = L_QB + 8 * ROWS
L_OB = L_KB + 8 * ROWS
L_WO1 = 24576
L_W = 57344
LW_WAVE = 26624
assert L_OB + 8 * ROWS <= L_WO1 and L_W + 4 * LW_WAVE == 163840
PART_W = 2304

vL16, vIDX, vQW, vQR, vOR, vSPARE, vRLD, vRST, vL4, vLW = range(10)
vT0, vT1 = 10, 11
ACCQ, ACCK, ACCV = 12, 20, 28
VXA, VXB = 36, 40
Q = [44 + 4 * i for i in range(7)]
WR = [Q[3], Q[5]]
vSPARE2 = vRLD
WBASE = 72

sH = S_ROLE
sLAY = S_FREE
sSTEP = S_FREE + 1
sMEMR = S_FREE + 2
sMEMR8 = S_FREE + 3
sMEMW = S_FREE + 4
sMEMZ = S_FREE + 5
sPW = S_FREE + 6
sPH = S_FREE + 7
sKP = S_FREE + 8
sKF = S_FREE + 9
sVF = S_FREE + 10
sKM = S_FREE + 11
sFL = S_FREE + 12
sKMB = S_FREE + 13
sKPH = S_FREE + 34
sFMK = S_FREE + 46
sKPV = S_FREE + 24
sOFL = S_FREE + 35
sCEXP = S_FREE + 14
sMAXD = S_FREE + 22
sFAST = S_FREE + 23
sMASK = S_FREE + 18
sMLO = S_FREE + 20
sU = S_FREE + 16
sT = S_FREE + 25
sPR = sT
sJOBC = S_FREE + 30
sONES = S_FREE + 36
sM = S_FREE + 38
SRD_D = 80
S_STAMP = 80

MATS = "qkv"
D1 = [int(x) for x in os.environ.get("D1", "5,5,5").split(",")]
D2 = int(os.environ.get("D2", "2"))
R1LDW = int(os.environ.get("R1LDW", "16"))
WOD = int(os.environ.get("WOD", "3"))
RNT0 = int(os.environ.get("RNT0", "0"))
RNT = " nt" if os.environ.get("RNT") else ""
RNTO = " nt" if os.environ.get("RNTO") else ""
NOPUB = int(os.environ.get("NOPUB", "0"))
NOKV = int(os.environ.get("NOKV", "0"))
PFD = int(os.environ.get("PFD", "1"))
RFREE = int(os.environ.get("RFREE", "0"))
TORD = [8, 0, 1, 2, 3, 4, 5, 6, 7]
WO_L = [(TORD[i >> 1], i & 1) for i in (0, 1, 5, 6, 10, 11, 15, 16)]


def f32bits(x):
    return struct.unpack("<I", struct.pack("<f", x))[0]


def build_frag_map():
    fm = {}
    regs = [("v", WBASE + 8 * i) for i in range(23)] + [("a", 8 * i) for i in range(32)]
    ri = 0
    for t in range(9):
        for m in MATS:
            for b in range(2):
                if m == "k" and b == 1:
                    fm[(m, b, t)] = ("l", "W", t)
                else:
                    fm[(m, b, t)] = regs[ri]; ri += 1
    n0 = n1 = 0
    for tau in range(9):
        for ks in range(2):
            if (tau, ks) in WO_L:
                if ks == 0:
                    fm[("o", tau, ks)] = ("l", "W", 9 + n0); n0 += 1
                else:
                    fm[("o", tau, ks)] = ("l", "O", n1); n1 += 1
            else:
                fm[("o", tau, ks)] = regs[ri]; ri += 1
    assert ri == 55 and n0 == 4 and n1 == 4
    return fm


FM = build_frag_map()


def opnd(loc, n=8, off=0):
    k, b = loc[0], loc[1]
    return (vr if k == "v" else ar)(b + off, n)


def lds_addr(loc, w):
    if loc[1] == "W":
        return vLW, loc[2] * 2048
    return vL16, L_WO1 + w * 8192 + loc[2] * 2048


def lw_read(dst, loc, w):
    r, off = lds_addr(loc, w)
    return [f"ds_read_b128 {vr(dst, 4)}, v{r} offset:{off}", f"ds_read_b128 {vr(dst + 4, 4)}, v{r} offset:{off + 1024}"]


def SM(acc, A, B):
    return f"v_smfmac_f32_16x16x64_bf16 {vr(acc, 4)}, {vr(A, 4)}, {B}, v{vIDX}"


def r_setup(a):
    LANE, C, G = 10, 60, 61
    WS = f"s[{SRD_WS}:{SRD_WS + 3}]"
    cexp = hex(f32bits(128 ** -0.5 * 1.4426950408889634))
    a(f"""
    v_and_b32 v{LANE}, 63, v0
    v_and_b32 v{C}, 15, v{LANE}
    v_lshrrev_b32 v{G}, 4, v{LANE}
    v_lshlrev_b32 v{vL16}, 4, v{LANE}
    v_lshlrev_b32 v{vL4}, 2, v{LANE}
    s_mul_i32 s{S_TMP}, s{S_WAVE}, {LW_WAVE}
    s_add_u32 s{S_TMP}, s{S_TMP}, {L_W}
    v_add_u32 v{vLW}, s{S_TMP}, v{vL16}
    s_mov_b32 s{sMAXD}, 0xfffffffe
    s_mov_b32 s{sCEXP}, {cexp}
    s_mov_b32 s{sCEXP + 1}, {cexp}
    s_mov_b32 s{sMASK}, 0x00ff00ff
    s_mov_b32 s{sMASK + 1}, 0x00ff00ff
    s_mov_b32 s{sMLO}, -1
    s_mov_b32 s{sMLO + 1}, 0
    s_mov_b32 s{sONES}, 0x3f803f80
    s_mov_b32 s{sONES + 1}, 0x3f803f80
    s_mov_b32 s{sPH}, 0
    v_lshrrev_b32 v63, 2, v{C}
    v_and_b32 v64, 1, v{C}
    v_lshl_add_u32 v62, v63, 1, v64
    v_bfe_u32 v65, v{C}, 1, 1
    v_mov_b32 v{vIDX}, 0x4444
    v_mov_b32 v63, 0xeeee
    v_cmp_eq_u32 vcc, 0, v65
    v_cndmask_b32 v{vIDX}, v63, v{vIDX}, vcc
    v_mul_u32_u24 v63, {2 * ROWS}, v{G}
    v_lshl_add_u32 v{vQW}, v{C}, 2, v63
    s_lshl_b32 s{S_TMP}, s{S_WAVE}, 6
    v_add_u32 v{vQW}, s{S_TMP}, v{vQW}
    v_mul_u32_u24 v63, {ROWS}, v62
    v_lshl_add_u32 v{vQR}, v{G}, 4, v63
    v_lshl_add_u32 v{vOR}, v{G}, 5, v63
    v_lshl_add_u32 v{vOR}, v65, 4, v{vOR}
    """)
    def between(sfx=""):
        a(f"v_and_b32 v12, 15, v{LANE}")
        a(f"v_lshrrev_b32 v13, 4, v{LANE}")
        WP, GO, CH = 84, 85, 86
        C, G = 12, 13
        M0A, M0B = 14, 15
        a(f"""
        s_lshr_b32 s{WP}, s{sH}, 3
        s_bfe_u32 s{GO}, s{sH}, 0x20001
        s_and_b32 s{CH}, s{sH}, 1
        s_cmp_lt_u32 s{S_WAVE}, 2
        s_cbranch_scc1 Lr_jab{sfx}
        s_lshr_b32 s{WP}, s{sH}, 1
        s_and_b32 s{WP}, s{WP}, 3
        Lr_jab{sfx}:
        s_cmp_lt_u32 s{sH}, 8
        s_cselect_b32 s{sJOBC}, 1, 0
        v_bfe_u32 v20, v{C}, 2, 1
        v_lshl_add_u32 v17, v20, 2, v{G}
        v_mul_u32_u24 v17, {PART_H}, v17
        v_lshrrev_b32 v21, 3, v{C}
        v_lshlrev_b32 v21, 2, v21
        v_and_b32 v20, 3, v{C}
        v_add_u32 v21, v21, v20
        v_lshl_add_u32 v{vRLD}, v21, 4, v17
        s_mul_i32 s{S_TMP}, s{WP}, {PART_W}
        s_lshl_b32 s{S_TMP + 1}, s{S_WAVE}, 10
        s_add_u32 s{S_TMP}, s{S_TMP}, s{S_TMP + 1}
        s_lshl_b32 s{S_TMP + 1}, s{CH}, 7
        s_add_u32 s{S_TMP}, s{S_TMP}, s{S_TMP + 1}
        s_lshl_b32 s{S_TMP + 1}, s{GO}, 8
        s_cmp_lt_u32 s{S_WAVE}, 2
        s_cselect_b32 s{S_TMP + 1}, s{S_TMP + 1}, 0
        s_add_u32 s{S_TMP}, s{S_TMP}, s{S_TMP + 1}
        v_add_u32 v{vRLD}, s{S_TMP}, v{vRLD}
        """)
        HI, RR, G1, G0 = 24, 25, 26, 27
        a(f"""
        v_bfe_u32 v{HI}, v{C}, 1, 2
        v_and_b32 v{RR}, 1, v{C}
        v_lshrrev_b32 v{G1}, 1, v{G}
        v_and_b32 v{G0}, 1, v{G}
        s_cmp_lt_u32 s{S_WAVE}, 2
        s_cbranch_scc0 Lr_jc{sfx}
        s_lshl_b32 s{S_TMP}, s{S_WAVE}, 2
        v_add_u32 v18, s{S_TMP}, v{HI}
        v_lshlrev_b32 v{vRST}, 10, v18
        v_lshl_add_u32 v19, v{G0}, 1, v{RR}
        s_lshl_b32 s{S_TMP}, s{WP}, 4
        s_lshl_b32 s{S_TMP + 1}, s{GO}, 2
        s_add_u32 s{S_TMP}, s{S_TMP}, s{S_TMP + 1}
        v_add_u32 v19, s{S_TMP}, v19
        v_lshl_add_u32 v{vRST}, v19, 4, v{vRST}
        s_lshl_b32 s{S_TMP}, s{CH}, 1
        v_add_u32 v19, s{S_TMP}, v{G1}
        v_lshl_add_u32 v{vRST}, v19, 2, v{vRST}
        s_lshl_b32 s{S_TMP}, s{GO}, 1
        v_add_u32 v19, s{S_TMP}, v{RR}
        v_mul_u32_u24 v19, 576, v19
        v_lshl_add_u32 v19, v18, 4, v19
        v_lshl_add_u32 v19, v{G}, 1, v19
        s_mul_i32 s{S_TMP}, s{WP}, 144
        s_lshl_b32 s{S_TMP + 1}, s{CH}, 3
        s_add_u32 s{S_TMP}, s{S_TMP}, s{S_TMP + 1}
        v_add_u32 v19, s{S_TMP}, v19
        v_lshlrev_b32 v{M0A}, 1, v19
        v_add_u32 v{M0B}, 2, v{M0A}
        s_branch Lr_jd{sfx}
        Lr_jc{sfx}:
        s_lshl_b32 s{S_TMP}, s{CH}, 1
        v_add_u32 v18, s{S_TMP}, v{G1}
        v_lshlrev_b32 v19, 2, v18
        v_lshl_add_u32 v19, v{G0}, 1, v19
        v_add_u32 v19, v19, v{RR}
        s_lshl_b32 s{S_TMP}, s{WP}, 4
        v_add_u32 v19, s{S_TMP}, v19
        v_lshlrev_b32 v{vRST}, 4, v19
        v_lshl_add_u32 v{vRST}, v{HI}, 2, v{vRST}
        v_add_u32 v{vRST}, 8192, v{vRST}
        v_lshl_add_u32 v19, v18, 1, v{RR}
        v_mul_u32_u24 v19, 576, v19
        v_lshl_add_u32 v19, v{G0}, 3, v19
        v_add_u32 v19, v19, v{HI}
        s_mul_i32 s{S_TMP}, s{WP}, 144
        s_add_u32 s{S_TMP}, s{S_TMP}, 128
        v_add_u32 v19, s{S_TMP}, v19
        v_lshlrev_b32 v{M0A}, 1, v19
        v_add_u32 v{M0B}, 8, v{M0A}
        Lr_jd{sfx}:
        """)
        a(f"""
        s_mul_i32 s{sU}, s{sLAY}, {RING_TEAM}
        s_add_u32 s{sU}, s{sU}, {WS_RING}
        s_lshl_b32 s{S_TMP + 1}, s{S_WAVE}, 11
        s_lshl_b32 s{S_TMP + 2}, s{S_WAVE}, 8
        s_add_u32 s{S_TMP + 2}, s{S_TMP + 2}, 8192
        s_mul_i32 s{S_TMP}, s{sH}, {PART_H}
        s_add_u32 s{S_TMP}, s{S_TMP}, s{sU}
        s_mul_i32 s{sPW}, s{S_WAVE}, {PART_W}
        s_add_u32 s{sPW}, s{sPW}, s{S_TMP}
        s_add_u32 s{sMEMZ}, s{sU}, {MEMB_OFF}
        s_xor_b32 s{sMEMW}, s{sMEMZ}, {MEMB_SLOT}
        s_add_u32 s{sMEMR}, s{sMEMZ}, s{S_TMP + 1}
        s_add_u32 s{sMEMR8}, s{sMEMZ}, s{S_TMP + 2}
        s_mul_i32 s{S_TMP}, s{sLAY}, {3 * QKV_M}
        s_lshl_b32 s{S_TMP + 2}, s{sH}, 13
        s_add_u32 s{S_TMP}, s{S_TMP}, s{S_TMP + 2}
        s_add_u32 s{sKP}, s{S_TMP}, {WS_QKV + QKV_M + PFD * 32 * 8192}
        s_add_u32 s{S_TMP}, s{S_TMP}, s{S_TMP + 1}
        s_add_u32 s{sKF}, s{S_TMP}, {WS_QKV + QKV_M}
        s_add_u32 s{sVF}, s{S_TMP}, {WS_QKV + 2 * QKV_M}
        s_mul_i32 s{S_TMP}, s{sLAY}, {KM_D * 32 * KM_UNIT}
        s_lshl_b32 s{S_TMP + 2}, s{sH}, 12
        s_add_u32 s{S_TMP}, s{S_TMP}, s{S_TMP + 2}
        s_lshl_b32 s{S_TMP + 2}, s{S_WAVE}, 9
        s_add_u32 s{S_TMP}, s{S_TMP}, s{S_TMP + 2}
        s_add_u32 s{sKMB}, s{S_TMP}, {WS_KM}
        s_mov_b32 s{sKM}, s{sKMB}
        s_mov_b32 s{sKPH}, 0
        s_mov_b32 s{sOFL}, {WS_FLAGS + FL_XA + (NSEG - (KM_D - 1)) * FL_STRIDE}
        s_mov_b32 s{sFMK}, 0xff
        s_mov_b32 s{sFMK + 1}, 0
        s_mul_i32 s{S_TMP}, s{sLAY}, {NSEG * FL_STRIDE}
        s_lshl_b32 s{S_TMP + 2}, s{sH}, 9
        s_add_u32 s{S_TMP}, s{S_TMP}, s{S_TMP + 2}
        s_add_u32 s{sFL}, s{S_TMP}, {WS_FLAGS + FL_QKV}
        s_mov_b32 s{sSTEP}, 0
        """)
        srd(a, 88, KA_MEM0, 9216)
        A_ = "s[88:91]"
        a(f"""
        s_cmp_eq_u32 s{S_WAVE}, 3
        s_cbranch_scc1 Lr_mem0_done{sfx}
        s_cmp_lt_u32 s{S_WAVE}, 2
        s_cselect_b32 s{S_TMP}, 1, s{sJOBC}
        s_cmp_eq_u32 s{S_TMP}, 0
        s_cbranch_scc1 Lr_mem0_done{sfx}
        s_mov_b64 exec, s[{sMASK}:{sMASK + 1}]
        buffer_load_ushort v20, v{M0A}, {A_}, 0 offen
        buffer_load_ushort v21, v{M0B}, {A_}, 0 offen
        v_lshl_or_b32 v20, v21, 16, v20
        v_min_u32 v20, s{sMAXD}, v20
        buffer_store_dword v20, v{vRST}, {WS}, s{sMEMZ} offen sc1
        v_mov_b32 v20, -1
        buffer_store_dword v20, v{vRST}, {WS}, s{sMEMW} offen sc1
        s_mov_b64 exec, -1
        Lr_mem0_done{sfx}:
        v_mov_b32 v20, 1
        v_mov_b32 v21, 1
        v_mov_b32 v22, 1
        v_mov_b32 v23, 1
        s_xor_b32 s{S_TMP}, s{sPW}, {PART_SLOT}
        """)
        for sreg in (sPW, S_TMP):
            for i in range(2):
                a(f"buffer_store_dwordx4 v[20:23], v{vL16}, {WS}, s{sreg} offen offset:{1024 * i} sc1")
            a(f"buffer_store_dword v20, v{vL4}, {WS}, s{sreg} offen offset:2048 sc1")
        a(f"v_lshrrev_b32 v17, 1, v{vL16}")
        a(f"s_mov_b32 s{S_TMP}, s{sKMB}")
        for i in range(KM_D):
            a(f"buffer_store_dwordx2 v[20:21], v17, {WS}, s{S_TMP} offen offset:2048 sc1")
            a(f"s_mov_b64 exec, s[{sMLO}:{sMLO + 1}]")
            a(f"buffer_store_dwordx4 v[20:23], v{vL16}, {WS}, s{S_TMP} offen sc1")
            a(f"s_mov_b64 exec, -1")
            a(f"s_add_u32 s{S_TMP}, s{S_TMP}, {32 * KM_UNIT}")
        a(f"""
        s_cmp_lg_u32 s{S_WAVE}, 3
        s_cbranch_scc1 Lr_not_w3{sfx}
        v_and_b32 v{vRST}, 12, v{vL4}
        v_and_b32 v17, 4, v{LANE}
        v_lshl_add_u32 v{vRST}, v17, 5, v{vRST}
        s_add_u32 s{S_TMP}, s{sFL}, {(384 - (KM_D - 1 - 3) * FL_STRIDE) & 0xffffffff}
        s_cmp_eq_u32 s{sLAY}, 0
        s_cselect_b32 s{sOFL}, s{sOFL}, s{S_TMP}
        s_add_u32 s{S_TMP}, s{sFL}, {FL_STRIDE + 128}
        s_min_u32 s{S_TMP + 1}, s{S_TMP}, s{sOFL}
        s_sub_u32 s{S_TMP}, s{S_TMP}, s{S_TMP + 1}
        v_add_u32 v{vRST}, s{S_TMP}, v{vRST}
        s_sub_u32 s{S_TMP}, s{sOFL}, s{S_TMP + 1}
        v_mov_b32 v17, s{S_TMP}
        v_cmp_gt_u32 vcc, 8, v{LANE}
        v_cndmask_b32 v{vRST}, v17, v{vRST}, vcc
        s_mov_b32 s{sOFL}, s{S_TMP + 1}
        Lr_not_w3{sfx}:
        v_lshlrev_b32 v{vSPARE}, 3, v{vL16}
        s_add_u32 s{sKPV}, s{sKP}, {QKV_M}
        """)
    if R1LDW:
        a(f"s_cmp_eq_u32 s{sLAY}, 0")
        a("s_cbranch_scc1 Lr_noord")
        if GATE0 & 1:
            dbg_wait(a, DB_STEP0, 1, 63, 64, "Lr_abort", "Lr_ord", 32)
        else:
            dbg_wait(a, DB_LOADED, R1LDW, 63, 64, "Lr_abort", "Lr_ord", 32)
        a.label("Lr_noord")
    if RNT0:
        a(f"s_cmp_lg_u32 s{sLAY}, 0")
        a("s_cbranch_scc1 Lr_ld1")
        sn = a.snap()
        load_weights(a, LANE, C, G, between, " nt" if RNT0 & 1 else "", " nt" if RNT0 & 2 else "", "a")
        a("s_branch Lr_ldd")
        a.label("Lr_ld1")
        a.restore(sn)
        load_weights(a, LANE, C, G, between, "", "", "b")
        a.label("Lr_ldd")
    else:
        load_weights(a, LANE, C, G, between)
    a(f"s_add_u32 s{S_TMP}, s{sLAY}, s{S_WAVE}")
    a(f"s_cmp_lg_u32 s{S_TMP}, 0")
    a("s_cbranch_scc1 Lr_nold")
    dbg_add(a, DB_LOADED, 63, 64)
    a.label("Lr_nold")
    for i in range(4):
        a(f"s_add_u32 s{sPR + i}, s{sU}, {i * 8 * PART_H}")


def load_weights(a, LANE, C, G, between, RNT=RNT, RNTO=RNTO, sfx=""):
    srd(a, SRD_A, KA_WQ, 576 * 8192)
    srd(a, SRD_B, KA_WK, 576 * 8192)
    srd(a, SRD_C, KA_WV, 576 * 8192)
    srd(a, SRD_D, KA_BWO, 4096 * 1152)
    SR = {"q": SRD_A, "k": SRD_B, "v": SRD_C}
    GA, GB, G8A, G8B, TR0, TR1, TRA, TRB, TRW = 62, 63, 64, 65, 66, 67, 68, 69, 70
    WA = 50
    sRow, sLB, sWo = sT, sT + 1, sT + 2
    a(f"""
    v_lshlrev_b32 v71, 1, v{G}
    v_xor_b32 v71, v71, v{C}
    v_lshlrev_b32 v71, 4, v71
    v_lshl_add_u32 v{GA}, v{G}, 13, v71
    v_xor_b32 v{GB}, 128, v{GA}
    v_lshrrev_b32 v{G8A}, 1, v{G}
    v_lshlrev_b32 v{G8A}, 3, v{G8A}
    v_and_b32 v{G8B}, 1, v{G}
    v_lshl_add_u32 v{G8A}, v{G8B}, 2, v{G8A}
    v_lshl_add_u32 v{G8A}, v{G8A}, 13, v71
    v_xor_b32 v{G8B}, 128, v{G8A}
    s_mul_i32 s{sRow}, s{S_WAVE}, {144 * 8192}
    s_lshl_b32 s{S_TMP}, s{sH}, 8
    s_add_u32 s{sRow}, s{sRow}, s{S_TMP}
    s_lshl_b32 s{sLB}, s{S_WAVE}, 12
    """)
    a(f"""
    v_lshrrev_b32 v71, 2, v{C}
    v_lshl_add_u32 v{TR0}, v{G}, 3, v71
    v_lshlrev_b32 v{TR0}, 8, v{TR0}
    v_bfe_u32 v{TR1}, v{C}, 1, 1
    s_lshl_b32 s{S_TMP}, s{S_WAVE}, 2
    v_add_u32 v{TR1}, s{S_TMP}, v{TR1}
    v_lshlrev_b32 v71, 1, v71
    v_xor_b32 v{TR1}, v{TR1}, v71
    v_and_b32 v71, 1, v{G}
    v_lshlrev_b32 v71, 3, v71
    v_xor_b32 v{TR1}, v{TR1}, v71
    v_and_b32 v71, 1, v{C}
    v_lshl_add_u32 v{TR0}, v71, 3, v{TR0}
    v_xor_b32 v71, 2, v{TR1}
    v_lshl_add_u32 v{TR1}, v71, 4, v{TR0}
    v_xor_b32 v71, 2, v71
    v_lshl_add_u32 v{TR0}, v71, 4, v{TR0}
    """)
    tiles = [(m, t) for t in range(9) for m in MATS]
    wo_regs = [FM[k] for k in FM if k[0] == "o" and FM[k][0] != "l"]
    park = {}
    for t in range(9):
        park[("k", 1, t)] = wo_regs[t]
    NT = len(tiles)

    def slot(i):
        return ((i + 3) % 10) * 16384

    def dma(i):
        m, t = tiles[i]
        S = f"s[{SR[m]}:{SR[m] + 3}]"
        for j in range(4):
            a(f"s_add_u32 m0, s{sLB}, {slot(i) + j * 1024}")
            if t < 8:
                a(f"s_add_u32 s{S_TMP}, s{sRow}, {(16 * t + 4 * j) * 8192}")
                g = GA if j < 2 else GB
            else:
                a(f"s_add_u32 s{S_TMP}, s{sRow}, {(128 + j) * 8192}")
                g = G8A if j < 2 else G8B
            a(f"buffer_load_dwordx4 v{g}, {S}, s{S_TMP} offen{RNT} lds")

    stages = [(ks, hf, qq) for ks in range(2) for hf in range(2) for qq in range(2)]
    STG = 18432

    def wo_prep():
        for j in range(5):
            a(f"v_add_u32 v71, {64 * j}, v{LANE}")
            a(f"v_mul_u32_u24 v59, {(65536 + 71) // 72}, v71")
            a(f"v_lshrrev_b32 v59, 16, v59")
            a(f"v_mul_u32_u24 v60, 72, v59")
            a(f"v_sub_u32 v71, v71, v60")
            a(f"v_and_b32 v60, 1, v59")
            a(f"v_lshlrev_b32 v60, 4, v60")
            a(f"v_lshrrev_b32 v59, 1, v59")
            a(f"v_lshl_add_u32 v60, v59, 2, v60")
            a(f"v_mul_u32_u24 v60, 1152, v60")
            a(f"v_lshl_add_u32 v{WA + j}, v71, 4, v60")
        a(f"""
        s_lshr_b32 s{S_TMP}, s{S_WAVE}, 1
        s_lshl_b32 s{S_TMP}, s{S_TMP}, 3
        s_and_b32 s{S_TMP + 1}, s{S_WAVE}, 1
        s_lshl_b32 s{S_TMP + 1}, s{S_TMP + 1}, 1
        s_add_u32 s{S_TMP}, s{S_TMP}, s{S_TMP + 1}
        s_lshl_b32 s{S_TMP + 1}, s{sH}, 7
        s_add_u32 s{S_TMP}, s{S_TMP}, s{S_TMP + 1}
        s_mul_i32 s{sWo}, s{S_TMP}, 1152
        s_mul_i32 s{sT + 3}, s{S_WAVE}, {4 * 1152}
        """)

    def wo_dma(z):
        ks, hf, qq = stages[z]
        base = (z % 3) * STG
        W_ = f"s[{SRD_D}:{SRD_D + 3}]"
        a(f"s_add_u32 s{S_TMP}, s{sWo}, {(64 * ks + 32 * hf + qq) * 1152}")
        for j in range(5):
            a(f"s_add_u32 m0, s{sT + 3}, {base + j * 1024}")
            if j == 4:
                a(f"s_mov_b64 exec, s[{sMLO}:{sMLO + 1}]")
            else:
                a("s_nop 0")
            a(f"buffer_load_dwordx4 v{WA + j}, {W_}, s{S_TMP} offen{RNTO} lds")
        a("s_mov_b64 exec, -1")

    a(f"""
    v_lshrrev_b32 v71, 2, v{C}
    v_lshl_add_u32 v{TRW}, v{G}, 2, v71
    v_mul_u32_u24 v{TRW}, 1152, v{TRW}
    v_and_b32 v71, 3, v{C}
    v_lshl_add_u32 v{TRW}, v71, 3, v{TRW}
    s_mul_i32 s{S_TMP}, s{S_WAVE}, 288
    v_add_u32 v{TRW}, s{S_TMP}, v{TRW}
    """)
    wo_prep()
    vq = []
    issued = [0]
    done_at = {}

    def issue(kind, i):
        if kind == "t":
            dma(i); issued[0] += 4
        else:
            wo_dma(i); issued[0] += 5
        done_at[(kind, i)] = issued[0]

    for i in range(9):
        issue("t", i)
    between(sfx)
    nxt_t, nxt_z = 9, 0
    for i in range(NT):
        a.force_wait(vm=min(63, issued[0] - done_at[("t", i)]))
        a("s_barrier")
        if i == 0:
            a(f"s_cmp_lg_u32 s{S_WAVE}, 0")
            a(f"s_cbranch_scc1 Lr_noadd{sfx}")
            a(f"s_lshl_b32 s{S_TMP}, s{sLAY}, 2")
            a(f"s_add_u32 s{S_TMP}, s{S_TMP}, {DB_TEAM}")
            dbg_add(a, f"s{S_TMP}", 48, 49)
            a.label(f"Lr_noadd{sfx}")
        if i >= 1 and nxt_t < NT:
            assert slot(nxt_t) == slot(i - 1) or nxt_t == 9
            issue("t", nxt_t); nxt_t += 1
        elif i == 0:
            issue("t", nxt_t); nxt_t += 1
        elif i >= 21 and nxt_z < 3:
            issue("z", nxt_z); nxt_z += 1
        m, t = tiles[i]
        a(f"v_add_u32 v{TRA}, {slot(i)}, v{TR0}")
        a(f"v_add_u32 v{TRB}, {slot(i)}, v{TR1}")
        for b in range(2):
            loc = park.get((m, b, t), FM[(m, b, t)])
            for q in range(4):
                a(f"ds_read_b64_tr_b16 {opnd(loc, 2, 2 * q)}, v{(TRA, TRB)[b]} offset:{(32 * (q >> 1) + 4 * (q & 1)) * 256}")
        a.wait(lg=0)
    assert nxt_t == NT and nxt_z == 3
    a("s_barrier")
    for t in range(9):
        loc = park[("k", 1, t)]
        a(f"ds_write_b128 v{vLW}, {opnd(loc, 4)} offset:{t * 2048}")
        a(f"ds_write_b128 v{vLW}, {opnd(loc, 4, 4)} offset:{t * 2048 + 1024}")
    a.wait(lg=0)
    PK = 12
    for z in range(8):
        ks, hf, qq = stages[z]
        a.force_wait(vm=min(63, issued[0] - done_at[("z", z)]))
        a("s_barrier")
        if z >= 1 and nxt_z < 8:
            assert nxt_z % 3 == (z - 1) % 3
            issue("z", nxt_z); nxt_z += 1
        q = 2 * hf + qq
        np_ = 0
        for tau in range(9):
            loc = FM[("o", tau, ks)]
            if loc[0] == "l":
                loc = ("v", PK + 8 * np_); np_ += 1
            a(f"ds_read_b64_tr_b16 {opnd(loc, 2, 2 * q)}, v{TRW} offset:{(z % 3) * STG + 32 * tau}")
        a.wait(lg=0)
        if z == 3:
            np_ = 0
            for tau in range(9):
                loc = FM[("o", tau, 0)]
                if loc[0] == "l":
                    a(f"ds_write_b128 v{vLW}, {vr(PK + 8 * np_, 4)} offset:{loc[2] * 2048}")
                    a(f"ds_write_b128 v{vLW}, {vr(PK + 8 * np_ + 4, 4)} offset:{loc[2] * 2048 + 1024}")
                    np_ += 1
            a.wait(lg=0)
    a("s_barrier")
    a(f"s_lshl_b32 s{S_TMP}, s{S_WAVE}, 13")
    a(f"v_add_u32 v71, s{S_TMP}, v{vL16}")
    np_ = 0
    for tau in range(9):
        loc = FM[("o", tau, 1)]
        if loc[0] == "l":
            a(f"ds_write_b128 v71, {vr(PK + 8 * np_, 4)} offset:{L_WO1 + loc[2] * 2048}")
            a(f"ds_write_b128 v71, {vr(PK + 8 * np_ + 4, 4)} offset:{L_WO1 + loc[2] * 2048 + 1024}")
            np_ += 1
    a.force_wait(vm=0, lg=0)
    a("s_barrier")


def flag_wait_kv(a, name, soff_extra, abort):
    if RFREE:
        return
    L = a.newlabel(name)
    a(f"s_mov_b32 s{S_SPIN}, 0")
    a(f"s_add_u32 s{S_TMP}, s{sFL}, {soff_extra + 128}")
    a(f"v_and_b32 v{vT1}, 16, v{vL4}")
    a(f"v_lshlrev_b32 v{vT1}, 3, v{vT1}")
    a(f"v_and_or_b32 v{vT1}, v{vL4}, 12, v{vT1}")
    a.label(L)
    a(f"buffer_load_dword v{vT0}, v{vT1}, s[{SRD_WS}:{SRD_WS + 3}], s{S_TMP} offen sc1")
    spin_check(a, abort)
    a(f"v_cmp_eq_u32 vcc, 0, v{vT0}")
    a(f"s_cbranch_vccz {L}d")
    a("s_sleep 4")
    a(f"s_branch {L}")
    a.label(L + "d")


def r_loop(a, w, fast, abort, done, stamps=False):
    sc = "" if fast else " sc1"
    pfx = f"Lr{w}{'f' if fast else 's'}_"
    WS = f"s[{SRD_WS}:{SRD_WS + 3}]"
    NST = 10
    HK = (w == 3)
    order = [2 * w, 2 * w + 1] + [t for t in range(8) if t >> 1 != w] + [8]

    STSEL = [int(x) for x in os.environ.get("STSEL", "0,1,2,3,4,5,6,7,8,9,10").split(",")]

    def stamp(i):
        if i not in STSEL:
            return
        if stamps == 2 or (stamps and i == NST):
            a(f"s_memrealtime s[{S_STAMP + 2 * i}:{S_STAMP + 1 + 2 * i}]")
        elif stamps:
            a(f"s_memtime s[{S_STAMP + 2 * i}:{S_STAMP + 1 + 2 * i}]")

    def dump_stamps():
        if stamps:
            a.force_wait(lg=0)
            for i in range(NST + 1):
                a(f"v_writelane_b32 v{vT1}, s{S_STAMP + 2 * i}, {i}")
            a(f"v_writelane_b32 v{vT1}, s3, 11")
            a(f"v_writelane_b32 v{vT1}, s4, 12")
            a(f"s_lshl_b32 s{S_TMP}, s{sLAY}, 5")
            a(f"s_add_u32 s{S_TMP}, s{S_TMP}, s{sH}")
            a(f"s_lshl_b32 s{S_TMP}, s{S_TMP}, 6")
            a(f"s_add_u32 s{S_TMP}, s{S_TMP}, s{sSTEP}")
            a(f"s_lshl_b32 s{S_TMP}, s{S_TMP}, 8")
            a(f"s_add_u32 s{S_TMP}, s{S_TMP}, {WS_END + w * 64}")
            a(f"s_mov_b64 exec, 0x1fff")
            a(f"buffer_store_dword v{vT1}, v{vL4}, {WS}, s{S_TMP} offen")
            a(f"s_mov_b64 exec, -1")

    def zero(base, n):
        return [f"v_mov_b64 {vr(base + 2 * i, 2)}, 0" for i in range(n // 2)]

    def seq(*items):
        for it in items:
            if isinstance(it, (list, tuple)):
                seq(*it)
            elif callable(it):
                it()
            elif it:
                a(it)

    cont = {}

    def ld(dst, name, text):
        def f():
            a(text)
            cont[dst] = name
        return f

    def use(reg, name):
        assert cont.get(reg) == name, (w, reg, name, cont.get(reg))

    def M(i):
        return f"s[{sM + 2 * i}:{sM + 2 * i + 1}]"

    def poll(name, loads, checks, between=None, issued=0):
        n = len(loads)
        L = pfx + name
        if not issued:
            seq(loads)
        a(f"s_mov_b32 s{S_SPIN}, 0")
        for i in range(n):
            a(f"s_mov_b64 {M(i)}, 0")
        a.label(L)
        a.auto = False
        for i in range(n):
            a(f"s_mov_b64 exec, {M(i)}")
            a(loads[i])
        a("s_mov_b64 exec, -1")
        spin_check(a, abort)
        for i in range(n):
            a.force_wait(vm=2 * n - 1 - i)
            seq(checks[i])
            if between:
                seq(between[i])
            if i >= 2:
                a(f"s_or_b64 vcc, {M(0) if i == 2 else 'vcc'}, {M(i - 1)}")
        a(f"s_or_b64 vcc, vcc, {M(n - 1)}")
        a(f"s_cbranch_scc1 {L}")
        a.auto = True
        a.vmq = [(frozenset(), "pollx")] * n

    def chk4(q, i):
        return [f"v_max3_u32 v{vT1}, v{q}, v{q + 1}, v{q + 2}", f"v_max_u32 v{vT1}, v{vT1}, v{q + 3}",
                f"v_cmp_eq_u32 {M(i)}, -1, v{vT1}"]

    ACC = {"q": ACCQ, "k": ACCK, "v": ACCV}

    def A_read(dst, t):
        return ld(dst, ("A", t), f"ds_read_b128 {vr(dst, 4)}, v{vL16} offset:{L_MEMA + t * 1024}")

    def LW(buf, key):
        r = lw_read(buf, FM[key], w)
        return [ld(buf, ("W", key), r[0]), ld(buf + 4, ("W2", key), r[1])]

    def S(m, b, t, A, buf=None):
        def f():
            use(A, ("A", t))
            loc = FM[(m, b, t)]
            if loc[0] == "l":
                use(buf, ("W", (m, b, t))); use(buf + 4, ("W2", (m, b, t)))
                B = vr(buf, 8)
            else:
                B = opnd(loc)
            a(SM(ACC[m] + 4 * b, A, B))
        return f

    def qB(dst, j):
        return ld(dst, ("qB", j), f"ds_read_b128 {vr(dst, 4)}, v{vQR} offset:{L_QB + j * 64}")

    def kmA(dst, j):
        return ld(dst, ("km", j), f"ds_read_b128 {vr(dst, 4)}, v{vQR} offset:{L_KB + j * 64}")

    def KX(dst, j, tt):
        return ld(dst, ("KX", j, tt), f"ds_read_b128 {vr(dst, 4)}, v{vL16} offset:{L_KX + (j * 2 + tt) * 1024}")

    def MF(acc, A, B, first, ea=None, eb=None):
        def f():
            if ea is not None:
                use(A, ea)
            if eb is not None:
                use(B, eb)
            a(f"v_mfma_f32_16x16x32_bf16 {vr(acc, 4)}, {vr(A, 4)}, {vr(B, 4)}, {'0' if first else vr(acc, 4)}")
        return f

    def MF16(acc, A, B):
        return f"v_mfma_f32_16x16x16_bf16 {vr(acc, 4)}, {vr(A, 2)}, {vr(B, 2)}, {vr(acc, 4)}"

    def xe(acc):
        X, Y = acc, acc + 4
        return [f"v_add_f32 v{X}, v{X}, v{X + 2}", f"v_add_f32 v{Y}, v{Y}, v{Y + 2}",
                f"v_add_f32 v{X + 1}, v{X + 1}, v{X + 3}", f"v_add_f32 v{Y + 1}, v{Y + 1}, v{Y + 3}",
                f"v_cvt_pk_bf16_f32 v{X + 2}, v{X}, v{Y}",
                f"v_cvt_pk_bf16_f32 v{X + 3}, v{X + 1}, v{Y + 1}"]

    def kdma(i):
        if NOKV & 1:
            return None
        return lambda: a(f"buffer_load_dwordx4 v{vL16}, {WS}, s{sKF} offen offset:{1024 * i} lds", tag="kdma")

    tails = []

    def flag_sample():
        if not RFREE:
            a(f"buffer_load_dword v{vRLD}, v{vRST}, {WS}, s{sOFL} offen sc1")

    def flag_check_prefetch():
        if not RFREE:
            a(f"v_cmp_eq_u32 vcc, 0, v{vRLD}")
            a(f"s_and_b64 vcc, vcc, s[{sFMK}:{sFMK + 1}]")
            a(f"s_cbranch_scc1 {pfx}flbad")
            wn = list(a.win)

            def flbad():
                a.label(pfx + "flbad")
                a.win = wn
                a.restore(([], []))
                a(f"s_cmp_eq_u32 s{sSTEP}, {NSEG - 1}")
                a(f"s_cbranch_scc1 {pfx}flok")
                a(f"s_mov_b32 s{S_SPIN}, 0")
                a.label(pfx + "flp")
                a(f"buffer_load_dword v{vRLD}, v{vRST}, {WS}, s{sOFL} offen sc1")
                spin_check(a, abort)
                a(f"v_cmp_eq_u32 vcc, 0, v{vRLD}")
                a(f"s_and_b64 vcc, vcc, s[{sFMK}:{sFMK + 1}]")
                a(f"s_cbranch_scc1 {pfx}flp")
                a(f"s_branch {pfx}flok")
            tails.append(flbad)
            a.label(pfx + "flok")
        if NOKV & 2:
            return
        a.auto = False
        a(f"buffer_load_dword v{vRLD}, v{vSPARE}, {WS}, s{sKP} offen", tag="pf")
        a(f"buffer_load_dword v{vRLD}, v{vSPARE}, {WS}, s{sKPV} offen", tag="pf")
        a.auto = True

    AO0, AO1, A8 = Q[0], Q[1], vT0
    loads2 = [f"buffer_load_dwordx4 {vr(AO0, 4)}, v{vL16}, {WS}, s{sMEMR} offen sc1",
              f"buffer_load_dwordx4 {vr(AO1, 4)}, v{vL16}, {WS}, s{sMEMR} offen offset:1024 sc1",
              f"buffer_load_dword v{A8}, v{vL4}, {WS}, s{sMEMR8} offen sc1"]

    def pre_step():
        seq(LW(WR[0], ("k", 1, order[0])), LW(WR[1], ("k", 1, order[1])), zero(ACCQ, 24))

    if HK:
        flag_wait_kv(a, pfx + "fw", 0, abort)
    a("s_barrier")
    a(f"s_mov_b32 m0, {L_KX + w * 2048}")
    a("s_nop 0")
    seq(kdma(0), kdma(1))
    a(f"s_add_u32 s{sKF}, s{sKF}, {32 * 8192}")
    a.wait(vm=0)
    seq(loads2)
    pre_step()
    a.wait(lg=0)
    head = pfx + "step"
    a.label(head)
    head_cont = dict(cont)
    poll("p2", loads2, [chk4(AO0, 0), chk4(AO1, 1), [f"v_cmp_eq_u32 {M(2)}, -1, v{A8}"]], issued=1)
    cont[AO0] = ("A", order[0]); cont[AO1] = ("A", order[1])
    stamp(0)
    if stamps:
        a(f"s_mov_b32 s4, s{S_SPIN}")
    ring = [Q[0], Q[1], Q[2], VXA, VXB, Q[2], Q[0], Q[1], Q[2]]

    def Ap(p):
        return ring[p]

    def qk(p, which):
        t = order[p]
        m, b = which
        return S(m, b, t, Ap(p), WR[p & 1])
    def run(slots):
        for mf, fl in slots:
            seq(mf, fl)

    def lwh(p, half):
        return LW(WR[p & 1], ("k", 1, order[p]))[half]
    run([(qk(0, ("q", 0)), [f"ds_write_b128 v{vL16}, {vr(AO0, 4)} offset:{L_MEMA + order[0] * 1024}"]),
         (qk(0, ("q", 1)), [f"ds_write_b128 v{vL16}, {vr(AO1, 4)} offset:{L_MEMA + order[1] * 1024}"]),
         (qk(0, ("k", 0)), [f"ds_write_b32 v{vL4}, v{A8} offset:{L_MEMA + 8192 + w * 256}"]),
         (qk(0, ("k", 1)), [])])
    a.barrier(lg=0)
    seq(A_read(Ap(2), order[2]))
    fl = {4: A_read(Ap(3), order[3]), 5: lwh(2, 0), 6: lwh(2, 1), 7: A_read(Ap(4), order[4]),
          9: lwh(3, 0), 10: lwh(3, 1), 12: A_read(Ap(5), order[5]),
          16: f"buffer_load_dwordx4 {vr(VXA, 4)}, v{vL16}, {WS}, s{sVF} offen",
          20: f"buffer_load_dwordx4 {vr(VXB, 4)}, v{vL16}, {WS}, s{sVF} offen offset:1024",
          19: [lambda: a.wait_tag("pollx"), A_read(Ap(6), order[6])], 23: A_read(Ap(7), order[7]), 24: A_read(Ap(8), order[8])}
    for p in range(4, 9):
        fl[4 * p - 3] = lwh(p, 0)
        fl[4 * p - 2] = lwh(p, 1)
    tail = [(7, ("q", 0)), (7, ("q", 1)), (8, ("q", 0)), (8, ("q", 1)), (7, ("k", 0)), (7, ("k", 1)), (8, ("k", 0)), (8, ("k", 1))]
    spine = [(p, mb) for p in range(7) for mb in (("q", 0), ("q", 1), ("k", 0), ("k", 1))] + tail
    if NOKV & 4:
        fl[16] = fl[20] = None
    qe, ke = xe(ACCQ), xe(ACCK)
    SX, SMm, X4 = ACCQ, ACCK + 4, ACCK
    fl[33] = [KX(Q[5], 0, 0), qe[0]]
    fl[34] = [KX(Q[6], 0, 1), qe[1]]
    fl[35] = [KX(Q[3], 1, 0), qe[2], qe[3], qe[4], qe[5]]
    if HK:
        fl[8] = [fl.get(8), flag_sample]
    for sl in range(4, 36):
        p, mb = spine[sl]
        seq(qk(p, mb), fl.get(sl))
        if sl == 7:
            stamp(1)
    seq(f"ds_write_b32 v{vQW}, v{ACCQ + 2} offset:{L_QB}",
        f"ds_write_b32 v{vQW}, v{ACCQ + 3} offset:{L_QB + ROWS}")
    stamp(2)

    def V(p, A):
        return [S("v", 0, order[p], A), S("v", 1, order[p], A)]
    run([(V(8, Q[2])[0], [KX(Q[4], 1, 1), ke[0], ke[1], ke[2], ke[3]]),
         (V(8, Q[2])[1], [A_read(ACCQ, order[0]), ke[4], ke[5],
                          f"ds_write_b32 v{vQW}, v{ACCK + 2} offset:{L_KB}",
                          f"ds_write_b32 v{vQW}, v{ACCK + 3} offset:{L_KB + ROWS}"]),
         (V(7, Q[1])[0], [A_read(ACCQ + 4, order[1])]),
         (V(7, Q[1])[1], [A_read(ACCK, order[2])]),
         (V(6, Q[0])[0], [A_read(ACCK + 4, order[3])]),
         (V(6, Q[0])[1], [])])
    a.barrier(lg=3)
    stamp(3)
    ve = [f"v_add_f32 v{ACCV}, v{ACCV}, v{ACCV + 2}", f"v_add_f32 v{ACCV + 1}, v{ACCV + 1}, v{ACCV + 3}",
          f"v_add_f32 v{ACCV + 4}, v{ACCV + 4}, v{ACCV + 6}", f"v_add_f32 v{ACCV + 5}, v{ACCV + 5}, v{ACCV + 7}",
          f"v_cvt_pk_bf16_f32 v{ACCV + 2}, v{ACCV}, v{ACCV + 1}",
          f"v_cvt_pk_bf16_f32 v{ACCV + 3}, v{ACCV + 4}, v{ACCV + 5}"]
    seq(qB(Q[0], 0))
    run([(V(0, ACCQ)[0], [A_read(Q[2], order[4])]),
         (V(0, ACCQ)[1], [kmA(ACCQ, 0)]),
         (V(1, ACCQ + 4)[0], [A_read(Q[1], order[5])]),
         (V(1, ACCQ + 4)[1], []),
         (V(2, ACCK)[0], []),
         (V(2, ACCK)[1], [qB(ACCK, 1)]),
         (V(3, ACCK + 4)[0], []),
         (V(3, ACCK + 4)[1], []),
         (V(4, Q[2])[0], []),
         (V(4, Q[2])[1], [kmA(Q[2], 1)]),
         (V(5, Q[1])[0], []),
         (V(5, Q[1])[1], [qB(Q[1], 2)])])
    PBQ = ACCV + 4
    run([(MF(SMm, ACCQ, Q[0], True, ("km", 0), ("qB", 0)), [flag_check_prefetch] if HK else []),
         (MF(SX, Q[5], Q[0], True, ("KX", 0, 0), ("qB", 0)), [KX(Q[5], 2, 0)]),
         (MF(SX + 4, Q[6], Q[0], True, ("KX", 0, 1), ("qB", 0)), [KX(Q[6], 2, 1)]),
         (MF(SMm, Q[2], ACCK, False, ("km", 1), ("qB", 1)), [kmA(Q[0], 2), ve[0], ve[1]]),
         (MF(SX, Q[3], ACCK, False, ("KX", 1, 0), ("qB", 1)), [qB(Q[2], 3), ve[2], ve[3]]),
         (MF(SX + 4, Q[4], ACCK, False, ("KX", 1, 1), ("qB", 1)), [KX(Q[3], 3, 0), ve[4], ve[5]]),
         (MF(SMm, Q[0], Q[1], False, ("km", 2), ("qB", 2)),
          [kmA(ACCK, 3), f"v_lshrrev_b32 v{vT0}, 8, v{vL16}", f"v_mul_u32_u24 v{vT0}, {ROWS}, v{vT0}"]),
         (MF(SX, Q[5], Q[1], False, ("KX", 2, 0), ("qB", 2)),
          [KX(Q[4], 3, 1), f"v_and_b32 v{vT1}, 0xf0, v{vL16}", f"v_add_u32 v{vT0}, v{vT0}, v{vT1}"]),
         (MF(SX + 4, Q[6], Q[1], False, ("KX", 2, 1), ("qB", 2)),
          [f"ds_read_b128 {vr(PBQ, 4)}, v{vT0} offset:{L_KB + 2 * w * ROWS}", f"v_lshrrev_b32 v{vT1}, 1, v{vL16}",
           f"v_bfi_b32 v{ACCV + 2}, 1, s{sKPH}, v{ACCV + 2}"]),
         (MF(SMm, ACCK, Q[2], False, ("km", 3), ("qB", 3)),
          [f"buffer_store_dwordx2 {vr(ACCV + 2, 2)}, v{vT1}, {WS}, s{sKM} offen offset:2048 sc1" if not NOPUB else None,
           f"v_mov_b32 v{Q[1] + 1}, 0", f"v_mov_b32 v{Q[1] + 2}, 0"]),
         (MF(SX, Q[3], Q[2], False, ("KX", 3, 0), ("qB", 3)),
          [f"v_mov_b64 {vr(Q[5], 2)}, s[{sONES}:{sONES + 1}]", f"v_mov_b64 {vr(Q[5] + 2, 2)}, s[{sONES}:{sONES + 1}]"]),
         (MF(SX + 4, Q[4], Q[2], False, ("KX", 3, 1), ("qB", 3)),
          [f"v_bfi_b32 v{PBQ}, 1, s{sKPH}, v{PBQ}", f"s_mov_b64 exec, s[{sMLO}:{sMLO + 1}]",
           f"buffer_store_dwordx4 {vr(PBQ, 4)}, v{vL16}, {WS}, s{sKM} offen sc1" if not NOPUB else None,
           "s_mov_b64 exec, -1"])])
    stamp(4)
    MX, T1 = vT0, vT1
    MP = X4
    LQ = Q[6]
    P4 = Q[0]
    PB = Q[1]
    OX, OY = Q[2], Q[3]
    ONES = Q[5]
    WB = [Q[4], VXA]
    wo_buf = {k: WB[i % 2] for i, k in enumerate(WO_L)}

    def wo_rd(i):
        return LW(wo_buf[WO_L[i]], ("o",) + WO_L[i])

    pf = [f"v_pk_fma_f32 {vr(b, 2)}, {vr(b, 2)}, s[{sCEXP}:{sCEXP + 1}], {vr(MP, 2)} op_sel_hi:[1,1,0] neg_lo:[0,0,1] neg_hi:[0,0,1]"
          for b in (SMm, SX, SX + 2, SX + 4, SX + 6)]
    ex = [f"v_exp_f32 v{r}, v{r}" for r in [SMm, SMm + 1] + list(range(SX, SX + 8))]
    seq(f"v_max3_f32 v{MX}, v{SMm}, v{SMm + 1}, v{SX}",
        f"v_max3_f32 v{MX}, v{MX}, v{SX + 1}, v{SX + 2}",
        f"v_max3_f32 v{MX}, v{MX}, v{SX + 3}, v{SX + 4}",
        f"v_max3_f32 v{MX}, v{MX}, v{SX + 5}, v{SX + 6}",
        f"v_max_f32 v{MX}, v{MX}, v{SX + 7}",
        f"v_mov_b32 v{T1}, v{MX}",
        f"v_permlane32_swap_b32 v{MX}, v{T1}",
        f"v_max_f32 v{MX}, v{MX}, v{T1}",
        f"v_mov_b32 v{T1}, v{MX}",
        f"v_permlane16_swap_b32 v{MX}, v{T1}",
        f"v_max_f32 v{MX}, v{MX}, v{T1}",
        f"v_mul_f32 v{MP}, s{sCEXP}, v{MX}",
        pf[0], pf[1], ex[0], ex[1], pf[2], ex[2], ex[3], pf[3],
        f"v_cvt_pk_bf16_f32 v{PB}, v{SMm}, v{SMm + 1}", ex[4], pf[4],
        f"v_cvt_pk_bf16_f32 v{PB + 3}, v{SMm}, v{SMm + 1}", ex[5],
        f"v_cvt_pk_bf16_f32 v{P4}, v{SX}, v{SX + 1}", ex[6], ex[7],
        f"v_cvt_pk_bf16_f32 v{P4 + 1}, v{SX + 2}, v{SX + 3}", ex[8], ex[9],
        f"v_cvt_pk_bf16_f32 v{P4 + 2}, v{SX + 4}, v{SX + 5}",
        f"v_cvt_pk_bf16_f32 v{P4 + 3}, v{SX + 6}, v{SX + 7}",
        f"v_mfma_f32_16x16x16_bf16 {vr(LQ, 4)}, {vr(ONES, 2)}, {vr(PB, 2)}, 0",
        f"v_mfma_f32_16x16x16_bf16 {vr(OX, 4)}, {vr(ACCV + 2, 2)}, {vr(PB, 2)}, 0",
        f"v_mfma_f32_16x16x16_bf16 {vr(OY, 4)}, {vr(ACCV + 2, 2)}, {vr(PB + 2, 2)}, 0",
        MF(LQ, ONES, P4, False),
        MF(OX, VXA, P4, False), wo_rd(0)[0] if False else None,
        MF(OY, VXB, P4, False), wo_rd(1)[0], wo_rd(1)[1],
        wo_rd(0)[0],
        f"v_rcp_f32 v{MX}, v{LQ}")
    stamp(5)
    OP = ACCQ + 4
    for i in (0, 2):
        a(f"v_pk_mul_f32 {vr(OX + i, 2)}, {vr(OX + i, 2)}, {vr(MX, 2)} op_sel_hi:[1,0]")
        a(f"v_pk_mul_f32 {vr(OY + i, 2)}, {vr(OY + i, 2)}, {vr(MX, 2)} op_sel_hi:[1,0]")
        a(f"v_cvt_pk_bf16_f32 v{OP + i}, v{OX + i}, v{OY + i}")
        a(f"v_cvt_pk_bf16_f32 v{OP + i + 1}, v{OX + i + 1}, v{OY + i + 1}")
    a(f"ds_write_b128 v{vQR}, {vr(OP, 4)} offset:{L_OB + w * 64}")
    TA = [ACCQ, ACCK, ACCK + 4, ACCV + 4, Q[0], Q[1], Q[6], ACCQ + 4, ACCV]
    OA0, OA1 = Q[2], Q[3]
    seq(wo_rd(0)[1], zero(ACCQ, 4), zero(ACCK, 8), zero(ACCV + 4, 4), zero(Q[0], 8))
    a.barrier(lg=1)
    a(f"ds_read_b128 {vr(OA0, 4)}, v{vOR} offset:{L_OB}")
    a(f"ds_read_b128 {vr(OA1, 4)}, v{vOR} offset:{L_OB + 128}")
    seq(zero(Q[6], 4), zero(ACCV, 4), zero(OP, 4))
    last = pfx + "last"
    seq(f"s_cmp_eq_u32 s{sSTEP}, {NSEG - 1}", f"s_cbranch_scc1 {last}")
    stamp(6)
    ST = [TA[0], TA[4], TA[8]]

    def epi(tau):
        acc = TA[tau]
        dst = ST[tau // 4] + tau % 4
        ops = [f"v_add_f32 v{acc}, v{acc}, v{acc + 2}", f"v_add_f32 v{acc + 1}, v{acc + 1}, v{acc + 3}",
               f"v_cvt_pk_bf16_f32 v{dst}, v{acc}, v{acc + 1}"]
        if tau % 4 == 0:
            ops.append(f"v_bfi_b32 v{dst}, 1, s{sPH}, v{dst}")
        if tau in (3, 7):
            ops.append(f"buffer_store_dwordx4 {vr(ST[tau // 4], 4)}, v{vL16}, {WS}, s{sPW} offen offset:{1024 * (tau // 4)}{sc}")
        if tau == 8:
            ops.append(f"buffer_store_dword v{dst}, v{vL4}, {WS}, s{sPW} offen offset:2048{sc}")
        return ops

    nxt = 2
    fill = []
    pend = []
    for idx in range(18):
        tau, ks = TORD[idx >> 1], idx & 1
        k = ("o", tau, ks)
        if FM[k][0] == "l":
            buf = wo_buf[(tau, ks)]
            use(buf, ("W", k)); use(buf + 4, ("W2", k))
            B = vr(buf, 8)
        else:
            B = opnd(FM[k])
        a(SM(TA[tau], (OA0, OA1)[ks], B))
        if pend:
            seq(pend.pop(0))
        elif idx in (3, 8):
            seq(kdma(idx // 8))
        if FM[k][0] == "l" and nxt < len(WO_L):
            r = wo_rd(nxt)
            seq(r[0])
            pend.append(r[1])
            nxt += 1
        n = 0
        while fill and fill[0][0] <= idx and (n < 2 or not fill[0][1].startswith("v_")):
            n += fill[0][1].startswith("v_")
            a(fill.pop(0)[1])
        if ks == 1:
            fill += [(idx + WOD, t) for t in epi(tau)]
    for _, t in fill:
        a(t)
    stamp(7)
    tog = [f"s_xor_b32 s{r}, s{r}, {MEMB_SLOT}" for r in [sMEMR, sMEMR8]]

    if not HK:
        if w == 2:
            a(f"s_cmp_eq_u32 s{sJOBC}, 0")
            a(f"s_cbranch_scc1 {pfx}nojob")
        LD = [Q[2], Q[3], Q[4], Q[5]]
        SEL, D = VXA, VXB
        loads1 = [f"buffer_load_dwordx4 {vr(LD[i], 4)}, v{vRLD}, {WS}, s{sPR + i} offen sc1" for i in range(4)]
        if w < 2:
            checks = [[f"v_and_b32 v{vT1}, 1, v{LD[i]}", f"v_cmp_ne_u32 {M(i)}, s{sPH}, v{vT1}"] for i in range(4)]
        else:
            checks = [[f"v_xor_b32 v{vT0}, v{LD[i]}, v{LD[i] + 1}", f"v_xor_b32 v{vT1}, v{LD[i] + 2}, v{LD[i] + 3}",
                       f"v_or_b32 v{vT0}, v{vT0}, v{vT1}", f"v_xor_b32 v{vT1}, v{LD[i]}, v{LD[i] + 2}",
                       f"v_or_b32 v{vT0}, v{vT0}, v{vT1}", f"v_xor_b32 v{vT1}, s{sPH}, v{LD[i]}",
                       f"v_or_b32 v{vT0}, v{vT0}, v{vT1}", f"v_and_b32 v{vT0}, 1, v{vT0}",
                       f"v_cmp_ne_u32 {M(i)}, 0, v{vT0}"] for i in range(4)]
        betw = [[MF(D, LD[i], SEL, i == 0)] for i in range(4)]
        stamp(9)
        a(f"v_bfe_u32 v{vT0}, v{vL16}, 4, 4")
        a(f"v_mov_b32 v{vT1}, 0x3f80")
        a(f"v_mov_b32 v{D}, 0x3f800000")
        for d in range(4):
            a(f"v_cmp_eq_u32 vcc, {2 * d}, v{vT0}")
            a(f"v_cmp_eq_u32 s[{sU}:{sU + 1}], {2 * d + 1}, v{vT0}")
            a(f"v_cndmask_b32 v{SEL + d}, 0, v{vT1}, vcc")
            a(f"v_cndmask_b32 v{SEL + d}, v{SEL + d}, v{D}, s[{sU}:{sU + 1}]")
        if D1[w]:
            a(f"s_sleep {D1[w]}")
        poll("p1", loads1, checks, betw)
        stamp(8)
        if stamps:
            a(f"s_mov_b32 s3, s{S_SPIN}")
        seq(f"v_permlane16_swap_b32 v{D}, v{D + 2}", f"v_permlane16_swap_b32 v{D + 1}, v{D + 3}",
            f"s_mov_b64 exec, s[{sMASK}:{sMASK + 1}]",
            f"v_add_f32 v{D}, v{D}, v{D + 2}", f"v_add_f32 v{D + 1}, v{D + 1}, v{D + 3}",
            f"v_cvt_pk_bf16_f32 v{D}, v{D}, v{D + 1}", f"v_min_u32 v{D}, s{sMAXD}, v{D}",
            f"buffer_store_dword v{D}, v{vRST}, {WS}, s{sMEMW} offen{sc}",
            f"v_mov_b32 v{D + 1}, -1",
            f"buffer_store_dword v{D + 1}, v{vRST}, {WS}, s{sMEMZ} offen{sc}",
            f"s_mov_b64 exec, -1")
        if w == 2:
            a(f"s_branch {pfx}jobdone")
            a.label(pfx + "nojob")
            a.restore(([], []))
            a.label(pfx + "jobdone")
            a.vmq = [(frozenset(), "pollx")] * 4 + [(frozenset(), "st")] * 3
    adv = [f"s_add_u32 s{sSTEP}, s{sSTEP}, 1", f"s_bfe_u32 s{sPH}, s{sSTEP}, 0x10001",
           f"s_xor_b32 s{sPW}, s{sPW}, {PART_SLOT}"]
    adv += [f"s_xor_b32 s{r}, s{r}, {PART_SLOT}" for r in ([] if HK else [sPR + i for i in range(4)])]
    adv += [f"s_xor_b32 s{r}, s{r}, {MEMB_SLOT}" for r in ([] if HK else [sMEMW, sMEMZ])]
    adv += [f"s_and_b32 s{S_TMP}, s{sSTEP}, {KM_D - 1}", f"s_mul_i32 s{S_TMP}, s{S_TMP}, {32 * KM_UNIT}",
            f"s_add_u32 s{sKM}, s{sKMB}, s{S_TMP}", f"s_bfe_u32 s{sKPH}, s{sSTEP}, {0x10000 + KM_D.bit_length() - 1}",
            f"s_add_u32 s{sOFL}, s{sOFL}, {FL_STRIDE}"]
    if HK:
        adv += [f"s_and_b32 s{S_TMP}, s{sSTEP}, 3", f"s_cmp_eq_u32 s{S_TMP}, 3", f"s_cselect_b32 s{S_TMP}, 1, 0",
                f"s_cmp_eq_u32 s{sLAY}, 0", f"s_cselect_b32 s{S_TMP}, 1, s{S_TMP}",
                f"s_cmp_ge_u32 s{sSTEP}, {KM_D - 1}", f"s_cselect_b32 s{S_TMP}, s{S_TMP}, 0",
                f"s_cmp_lg_u32 s{S_TMP}, 0", f"s_cselect_b64 s[{sFMK}:{sFMK + 1}], -1, 0xff",
                f"s_add_u32 s{sKPV}, s{sKPV}, {32 * 8192}"]
    adv += [f"s_add_u32 s{sVF}, s{sVF}, {32 * 8192}",
            f"s_add_u32 s{sKF}, s{sKF}, {32 * 8192}", f"s_add_u32 s{sKP}, s{sKP}, {32 * 8192}",
            f"s_add_u32 s{sFL}, s{sFL}, {FL_STRIDE}"]
    seq(tog)
    a("s_barrier")
    if D2:
        a(f"s_sleep {D2}")
    seq(loads2, adv)
    if not HK:
        a.wait_tag("pollx")
    pre_step()
    a.wait(lg=0)
    if HK and GATE0:
        L0 = a.newlabel("Lg0")
        a(f"s_add_u32 s{S_TMP}, s{sSTEP}, s{sLAY}")
        a(f"s_cmp_lg_u32 s{S_TMP}, 1")
        a(f"s_cbranch_scc1 {L0}")
        a(f"s_cmp_lg_u32 s{sLAY}, 0")
        a(f"s_cbranch_scc1 {L0}")
        sn = a.snap()
        dbg_add(a, DB_STEP0, Q[2], Q[2] + 1)
        a.restore(sn)
        a.label(L0)
    if HK:
        trace(a, Q[2], Q[2] + 1, True)
        if DBGT == 1:
            a.force_wait(lg=0)
            for k, (wd, st) in enumerate(((5, 1), (13, 63))):
                a(f"s_lshl_b32 s{S_TMP}, s{sLAY}, 2")
                a(f"s_add_u32 s{S_TMP + 1}, s{S_TMP}, {4 * wd}")
                stamp_max(a, f"s{S_TMP + 1}", Q[2], Q[2] + 1, (sSTEP, st))
    stamp(NST)
    dump_stamps()
    a.restore(([], []))
    a(f"s_branch {head}")
    for t in tails:
        t()
    a.restore(([], []))
    a.label(last)
    a.force_wait(vm=0, lg=0)
    if HK:
        trace(a, Q[2], Q[2] + 1, True)
    a(f"s_branch {done}")
```

```python
from common import *
import struct, os

WS = f"s[{SRD_WS}:{SRD_WS + 3}]"
L0_AP = 16
L0_T = 16
SLP = int(os.environ.get("SLP", "4"))
AQLDW = int(os.environ.get("AQLDW", "1"))
EARLYF = int(os.environ.get("EARLYF", "0"))


def f32bits(x):
    return struct.unpack("<I", struct.pack("<f", x))[0]


sN0, sN1 = S_FREE, S_FREE + 1
sCL, sCS = S_FREE + 2, S_FREE + 3
sNL, sNS = S_FREE + 4, S_FREE + 5
sLEFT = S_FREE + 6
sPF = S_FREE + 7
sBUF = S_FREE + 8
sNX = S_FREE + 9
sNFL = S_FREE + 10
sPEND = S_FREE + 11
sSELX, sSELY = S_FREE + 12, S_FREE + 13
sO1, sO2, sO3 = S_FREE + 14, S_FREE + 15, S_FREE + 16
sK1, sK2, sK3, sK4 = S_FREE + 17, S_FREE + 18, S_FREE + 19, S_FREE + 20
sE = S_FREE + 22
sNO = S_FREE + 24
sCO = S_FREE + 25
sWQ = S_FREE + 26
sOB = S_FREE + 27
sF0, sF1, sDEC = S_FREE + 28, S_FREE + 29, S_FREE + 30
sLAYS = S_FREE + 31
sSB, sW1K = S_FREE + 34, S_FREE + 35
sX0, sX1 = S_FREE + 32, S_FREE + 33

vL16, vFLA, vFLV, vONE, vZERO, vT0, vT1, vC, vG = range(9)
XBUF = X_SEG


def seq(a, *items):
    for it in items:
        if isinstance(it, (list, tuple)):
            seq(a, *it)
        elif callable(it):
            it()
        elif it:
            a(it)


def MF(acc, A, B, C=None):
    return f"v_mfma_f32_16x16x32_bf16 {vr(acc, 4)}, {A}, {B}, {vr(acc, 4) if C is None else C}"


def lane_setup(a, nflags):
    a(f"""
    v_and_b32 v{vT0}, 63, v0
    v_lshlrev_b32 v{vL16}, 4, v{vT0}
    v_and_b32 v{vC}, 15, v{vT0}
    v_lshrrev_b32 v{vG}, 4, v{vT0}
    v_min_u32 v{vFLA}, {nflags - 1}, v{vT0}
    v_lshrrev_b32 v{vT1}, 2, v{vFLA}
    v_and_b32 v{vFLA}, 3, v{vFLA}
    v_lshlrev_b32 v{vFLA}, 2, v{vFLA}
    v_lshl_add_u32 v{vFLA}, v{vT1}, 7, v{vFLA}
    v_mov_b32 v{vONE}, 1
    v_mov_b32 v{vZERO}, 0
    s_mov_b32 s{sSELX}, 0x05040100
    s_mov_b32 s{sSELY}, 0x07060302
    """)


def pick_next(a, step, l0):
    a(f"""
    s_add_u32 s{S_TMP}, s{sN1}, {l0}
    s_min_u32 s{S_TMP}, s{S_TMP}, {NSEG}
    s_cmp_lt_u32 s{sN0}, s{S_TMP}
    s_cselect_b32 s{sNL}, 0, 1
    s_cselect_b32 s{sNS}, s{sN0}, s{sN1}
    s_cselect_b32 s{S_TMP}, {step}, 0
    s_cselect_b32 s{S_TMP + 1}, 0, {step}
    s_add_u32 s{sN0}, s{sN0}, s{S_TMP}
    s_add_u32 s{sN1}, s{sN1}, s{S_TMP + 1}
    s_lshl_b32 s{sNO}, s{sNL}, 6
    s_add_u32 s{sNO}, s{sNO}, s{sNS}
    """)


def flag_out(a, sreg):
    a("s_mov_b64 exec, 1")
    a(f"buffer_store_dword v{vONE}, v{vZERO}, {WS}, s{sreg} offen sc1")
    a("s_mov_b64 exec, -1")


def flag_block(a, name, abort):
    L = a.newlabel(name)
    a(f"s_mov_b32 s{S_SPIN}, 0")
    a.label(L)
    a(f"buffer_load_dword v{vFLV}, v{vFLA}, {WS}, s{sNFL} offen sc1")
    spin_check(a, abort)
    a(f"v_cmp_eq_u32 vcc, 0, v{vFLV}")
    Ld = a.newlabel(name + "d")
    a(f"s_cbranch_vccz {Ld}")
    a(f"s_sleep {SLP}")
    a(f"s_branch {L}")
    a.label(Ld)


PFS = f"s[{SRD_C}:{SRD_C + 3}]"


STB3 = 0x1C000
sCSB = S_FREE + 39
P3 = int(os.environ.get('P3', '0'))
MBOX = 2 * XBUF + 1024
vFL1 = 15


def cand_addr(a, flag_off):
    a(f"""
    s_mul_i32 s{sF0}, s{sN0}, {FL_STRIDE}
    s_add_u32 s{sF0}, s{sF0}, {WS_FLAGS + flag_off}
    s_cmp_lt_u32 s{sN0}, {NSEG}
    s_cselect_b32 s{sF0}, s{sF0}, {WS_ZERO}
    s_mul_i32 s{sF1}, s{sN1}, {FL_STRIDE}
    s_add_u32 s{sF1}, s{sF1}, {WS_FLAGS + flag_off + NSEG * FL_STRIDE}
    s_cmp_lt_u32 s{sN1}, {NSEG}
    s_cselect_b32 s{sF1}, s{sF1}, {WS_ZERO}
    """)


def sample2(a):
    a(f"buffer_load_dword v{vFLV}, v{vFLA}, {WS}, s{sF0} offen sc1")
    a(f"buffer_load_dword v{vFL1}, v{vFLA}, {WS}, s{sF1} offen sc1")


def decide(a, prio=1):
    a(f"v_cmp_eq_u32 vcc, 0, v{vFLV}")
    a(f"v_cmp_eq_u32 s[{sE}:{sE + 1}], 0, v{vFL1}")
    m = ["vcc", f"s[{sE}:{sE + 1}]"]
    a(f"s_cmp_eq_u64 {m[1 - prio]}, 0")
    a(f"s_cselect_b32 s{sDEC}, {2 - prio}, 0")
    a(f"s_cmp_eq_u64 {m[prio]}, 0")
    a(f"s_cselect_b32 s{sDEC}, {1 + prio}, s{sDEC}")


def take(dec, step, step1=None):
    return [f"s_cmp_eq_u32 s{dec}, 2",
            f"s_cselect_b32 s{sNL}, 1, 0",
            f"s_cselect_b32 s{sNS}, s{sN1}, s{sN0}",
            f"s_cselect_b32 s{S_TMP}, {step if step1 is None else step1}, 0",
            f"s_add_u32 s{sN1}, s{sN1}, s{S_TMP}",
            f"s_cmp_eq_u32 s{dec}, 1",
            f"s_cselect_b32 s{S_TMP}, {step}, 0",
            f"s_add_u32 s{sN0}, s{sN0}, s{S_TMP}",
            f"s_lshl_b32 s{sNO}, s{sNL}, 6",
            f"s_add_u32 s{sNO}, s{sNO}, s{sNS}"]


def poll2(a, name, abort, flag_off, prio=1):
    cand_addr(a, flag_off)
    L = a.newlabel(name)
    a(f"s_mov_b32 s{S_SPIN}, 0")
    a.label(L)
    sample2(a)
    spin_check(a, abort)
    decide(a, prio)
    a(f"s_cmp_lg_u32 s{sDEC}, 0")
    a(f"s_cbranch_scc1 {L}d")
    a(f"s_sleep {SLP}")
    a(f"s_branch {L}")
    a.label(L + "d")


def staged_loop(a, name, abort, done, xbase, xlayer, flag_off, extra_loads, compute, out_flag, nst, vMB, laysel=None, waited=False, epi=None, early=None, vsrc=None, pub2=None):
    crit = [f"s_cmp_eq_u32 s{sDEC}, 2", f"s_cselect_b32 s{sNX}, s{sX1}, s{sX0}",
            f"s_cmp_lg_u32 s{sDEC}, 0", f"s_cselect_b32 s{SRD_C + 2}, {WS_BYTES}, 0"]
    adv_x = [f"s_cmp_eq_u32 s{sDEC}, 2", f"s_cselect_b32 s{S_TMP}, {X_SEG}, 0", f"s_add_u32 s{sX1}, s{sX1}, s{S_TMP}",
             f"s_cmp_eq_u32 s{sDEC}, 1", f"s_cselect_b32 s{S_TMP}, {X_SEG}, 0", f"s_add_u32 s{sX0}, s{sX0}, s{S_TMP}"]

    def dma_ops(srd_):
        ops = []
        for i in range(9):
            pre = []
            if i % 4 == 0:
                pre = [f"s_add_u32 m0, s{sOB}, {i * 1024}", f"s_add_u32 s{sO2}, s{sNX}, {i * 1024}"]
            ops.append(pre + [f"buffer_load_dwordx4 v{vL16 if vsrc is None else vsrc}, {srd_}, s{sO2} offen offset:{(i % 4) * 1024} lds"])
        return ops

    def post():
        a(f"v_mov_b32 v{vT0}, s{sDEC}")
        a(f"ds_write_b32 v{vMB}, v{vT0}")
        a.wait(lg=0)

    def publish():
        a(f"s_cmp_lg_u32 s{sPEND}, 0")
        a("s_cselect_b64 exec, 1, 0")
        if pub2 is None:
            a(f"buffer_store_dword v{vONE}, v{vZERO}, {WS}, s{sPEND} offen sc1")
        else:
            a(f"buffer_store_dwordx2 {vr(pub2, 2)}, v{vZERO}, {WS}, s{sPEND} offen sc1")
        a("s_mov_b64 exec, -1")
        a(f"s_mov_b32 s{sPEND}, 0")

    def cur_from_next():
        a(f"s_mov_b32 s{sCL}, s{sNL}")
        a(f"s_mov_b32 s{sCS}, s{sNS}")
        a(f"s_mov_b32 s{sCO}, s{sNO}")

    def roll():
        Ls = a.newlabel(name + "_ns")
        a(f"s_cmp_lg_u32 s{S_WAVE}, 0")
        a(f"s_cbranch_scc1 {Ls}")
        sn = a.snap()
        cand_addr(a, flag_off)
        sample2(a)
        a.restore(sn)
        a.label(Ls)

    a(f"""
    s_mov_b32 s{sN0}, 0
    s_mov_b32 s{sN1}, 0
    s_mov_b32 s{sLEFT}, {2 * NSEG}
    s_mul_i32 s{sWQ}, s{S_WAVE}, 9216
    s_mov_b32 s{sBUF}, {XBUF}
    s_mov_b32 s{sOB}, s{sWQ}
    s_mov_b32 s{sPEND}, 0
    s_mov_b32 s{SRD_C}, s{SRD_WS}
    s_mov_b32 s{SRD_C + 1}, s{SRD_WS + 1}
    s_mov_b32 s{SRD_C + 2}, 0
    s_mov_b32 s{SRD_C + 3}, 0x00020000
    v_mov_b32 v{vMB}, {MBOX}
    s_add_u32 s{sX0}, s{sWQ}, {xbase}
    s_add_u32 s{sX1}, s{sWQ}, {xbase + xlayer}
    """)
    if laysel is not None:
        a(f"s_cmp_eq_u32 s{laysel}, 0")
        a(f"s_cselect_b32 s{sN0}, 0, {NSEG}")
        a(f"s_cselect_b32 s{sN1}, {NSEG}, 0")
        a(f"s_mov_b32 s{sLEFT}, {NSEG}")
    a(f"ds_write2_b32 v{vMB}, v{vZERO}, v{vZERO} offset0:0 offset1:1")
    a.wait(lg=0)
    if not waited:
        dbg_wait(a, DB_POOL, N_POOL, vT0, vT1, abort, name + "_ini")
    trace(a, vT0, vT1)
    prof_init(a)
    a(f"s_branch {name}_idle0")
    head = name + "_item"
    a.label(head)
    a.restore(([], []))
    prof_begin(a)
    a.force_wait(vm=nst)
    if EARLYF and (laysel is not None or EARLYF > 1):
        a(f"s_cmp_lt_u32 s{sPEND}, {NSEG * FL_STRIDE}")
        a(f"s_cbranch_scc1 {name}_defer")
        a.force_wait(vm=0)
        publish()
    a.label(name + "_defer")
    prof_end(a, 0)
    a(f"s_cmp_lg_u32 s{S_WAVE}, 0")
    a(f"s_cbranch_scc1 {name}_nw0")
    decide(a)
    post()
    a.label(name + "_nw0")
    prof_begin(a)
    a("s_barrier")
    prof_end(a, 1)
    a(f"ds_read_b32 v{vT1}, v{vMB}")
    a(f"""
    v_xor_b32 v{vMB}, 4, v{vMB}
    s_xor_b32 s{sBUF}, s{sBUF}, {XBUF}
    s_xor_b32 s{sOB}, s{sOB}, {XBUF}
    s_xor_b32 s{sSB}, s{sSB}, 0x2000
    s_xor_b32 s{sCSB}, s{sCSB}, 0x2000
    s_sub_u32 s{sLEFT}, s{sLEFT}, 1
    """)
    if epi:
        early()
        a(f"s_cmp_eq_u32 s{sPEND}, 0")
        a(f"s_cbranch_scc1 {name}_noepi")
        lg = list(a.lgq)
        epi()
        assert a.lgq == lg or not a.lgq
        a.lgq = lg
        a.label(name + "_noepi")
    a.vmq = [(frozenset(), "st")] * nst
    ex = extra_loads(PFS)
    tk = take(sDEC, 1)
    pre = ([f"v_readfirstlane_b32 s{sDEC}, v{vT1}"] + crit, [tk[:5], tk[5:], ex[0][:-1], adv_x[:3], adv_x[3:]] if os.environ.get('BSPLIT', '1') == '1' else [tk, ex[0][:-1], adv_x, [], []])
    ex[0] = ex[0][-1:]

    def mid():
        prof_begin(a) if PROF == 1 else None
        a.wait_tag("st")
        prof_end(a, 2) if PROF == 1 else None
        publish()

    compute(pre, dma_ops(PFS), ex, mid, roll)
    out_flag()
    trace_at(a, sCO, vT0, vZERO)
    if name.startswith("Lp"):
        stamp_max(a, 9, vT0, vT1, (sCO, 1)) if DBGT == 2 else None
    cur_from_next()
    if TRACE == 1:
        a.force_wait(vm=0)
        trace(a, vT0, vT1)
        a.force_wait(vm=0)
    a(f"s_min_u32 s{sDEC}, s{sDEC}, s{sLEFT}")
    a(f"s_cmp_lg_u32 s{sDEC}, 0")
    a(f"s_cbranch_scc1 {head}")
    roll()
    a.force_wait(vm=0)
    publish()
    a(f"s_cmp_eq_u32 s{sLEFT}, 0")
    a(f"s_cbranch_scc1 {name}_end")
    a(f"s_cmp_lg_u32 s{S_WAVE}, 0")
    a(f"s_cbranch_scc1 {name}_nw1")
    decide(a)
    a(f"s_cmp_lg_u32 s{sDEC}, 0")
    a(f"s_cbranch_scc1 {name}_got")
    a.label(name + "_idle0")
    a.restore(([], []))
    a(f"s_cmp_lg_u32 s{S_WAVE}, 0")
    a(f"s_cbranch_scc1 {name}_nw1")
    poll2(a, name + "_pl", abort, flag_off)
    a.label(name + "_got")
    post()
    a.label(name + "_nw1")
    a("s_barrier")
    a(f"ds_read_b32 v{vT1}, v{vMB}")
    a(f"v_xor_b32 v{vMB}, 4, v{vMB}")
    a(f"v_readfirstlane_b32 s{sDEC}, v{vT1}")
    a(f"s_cmp_eq_u32 s{sDEC}, 0")
    a(f"s_cbranch_scc1 {abort}")
    seq(a, crit, take(sDEC, 1), adv_x, dma_ops(WS), extra_loads(WS))
    cur_from_next()
    roll()
    a.force_wait(vm=0)
    if PROF:
        a("s_add_u32 s96, s96, 1000")
    a(f"s_branch {head}")
    a.label(name + "_end")
    prof_dump(a, vT0, vT1)
    a(f"s_branch {done}")


WB = 112


def MF32(acc, A, B, C=None):
    return f"v_mfma_f32_32x32x16_bf16 {vr(acc, 16)}, {A}, {B}, {vr(acc, 16) if C is None else C}"


def load_cols(a, srdb, vad, vsel, items, nt=os.environ.get("NT_P", "")):
    D = 28
    n = len(items)
    for i in range(n + D):
        if i < n:
            r = 16 + 2 * (i % 48)
            a(f"s_add_u32 s{S_TMP}, s{sK1}, {items[i][0]}")
            a(f"buffer_load_dword v{r}, v{vad}, s[{srdb}:{srdb + 3}], s{S_TMP} offen {nt}")
            a(f"buffer_load_dword v{r + 1}, v{vad + 1}, s[{srdb}:{srdb + 3}], s{S_TMP} offen {nt}")
        j = i - D
        if j >= 0:
            r = 16 + 2 * (j % 48)
            a(f"v_perm_b32 v{items[j][1]}, v{r + 1}, v{r}, v{vsel}")


def feat_of_row(a, dst, row, t1):
    a(f"""
    v_and_b32 v{dst}, 19, v{row}
    v_bfe_u32 v{t1}, v{row}, 2, 1
    v_lshl_add_u32 v{dst}, v{t1}, 3, v{dst}
    v_bfe_u32 v{t1}, v{row}, 3, 1
    v_lshl_add_u32 v{dst}, v{t1}, 2, v{dst}
    """)


def sel_of_parity(a, vsel, par, t1):
    a(f"""
    v_mov_b32 v{vsel}, s{sSELX}
    v_mov_b32 v{t1}, s{sSELY}
    v_cmp_eq_u32 vcc, 1, v{par}
    v_cndmask_b32 v{vsel}, v{vsel}, v{t1}, vcc
    """)


def gemm32(a, acc, swap, vXA, ring, pre, dma, extra, mid, roll, init=None, fill=None, issued=False):
    nr = len(ring)

    def rd(t):
        return f"ds_read_b128 {vr(ring[t % nr], 4)}, v{vXA} offset:{t * 1024}"
    if PROF == 2:
        a("s_memtime s[84:85]")
    if not issued:
        for t in range(nr - 1):
            a(rd(t))
    fill = list(fill or [])
    crit, blocks = pre
    blocks = list(blocks)
    vm = list(dma) + list(extra)
    for t in range(36):
        x, w = vr(ring[t % nr], 4), vr(WB + 4 * t, 4)
        a(MF32(acc, x if swap else w, w if swap else x, "0" if (t == 0 and not init) else None))
        if t + nr - 1 < 36:
            a(rd(t + nr - 1))
        k = 3 if t < 16 else 4
        if t == 1:
            seq(a, crit); k = 0
        elif t >= 2 and t % 2 == 1 and blocks:
            k = min(3, 5 - len(blocks[0]))
            seq(a, blocks.pop(0))
        elif t >= 2 and vm and (len(vm) > len(extra) or len(blocks) <= 2):
            assert len(vm) > len(extra) or len(blocks) <= 2
            seq(a, vm.pop(0)); k -= 2
        while fill and k > 0:
            seq(a, fill.pop(0)); k -= 1
        if t == 10:
            mid()
        if t == 16:
            roll()
    assert not vm and not fill and not blocks
    if PROF == 2:
        a("s_memtime s[86:87]")
        a.force_wait(lg=0)
        a("s_sub_u32 s86, s86, s84")
        a("s_add_u32 s97, s97, s86")


VMDENSE = int(os.environ.get("VMDENSE", "1"))
STB = 0x14000


def stats_dma(base, srd_):
    pre = [f"s_mul_i32 s{sO3}, s{sNL}, {2 * ST_BYTES}", f"s_mul_i32 s{S_TMP + 1}, s{sNS}, {ST_SEG}",
           f"s_add_u32 s{sO3}, s{sO3}, s{S_TMP + 1}", f"s_add_u32 s{sO3}, s{sO3}, {base + 4096}"]
    return [pre + [[f"s_add_u32 m0, s{sSB}, 4096", f"s_nop 0",
                    f"buffer_load_dwordx4 v{vL16}, {srd_}, s{sO3} offen lds"]],
            [f"s_add_u32 m0, s{sSB}, s{sW1K}", f"s_sub_u32 s{sO3}, s{sO3}, 4096", f"s_add_u32 s{sO3}, s{sO3}, s{sW1K}",
             f"buffer_load_dwordx4 v{vL16}, {srd_}, s{sO3} offen lds"]]


def stats_loads(base, STR, vaddr, srd_):
    pre = [f"s_mul_i32 s{sO3}, s{sNL}, {2 * ST_BYTES}", f"s_mul_i32 s{S_TMP + 1}, s{sNS}, {ST_SEG}",
           f"s_add_u32 s{sO3}, s{sO3}, s{S_TMP + 1}", f"s_add_u32 s{sO3}, s{sO3}, {base}"]
    ops = [[f"buffer_load_dwordx4 {vr(STR + 4 * i, 4)}, v{vaddr}, {srd_}, s{sO3} offen offset:{512 * i}"] for i in range(6)]
    ops[0] = pre + ops[0]
    return ops


def stats_math(STR, RS, MR):
    ops = []
    for i in range(1, 5):
        ops += [f"v_add_f32 v{STR + j}, v{STR + j}, v{STR + 4 * i + j}" for j in range(4)]
    S1, S2 = STR, STR + 1
    ops += [f"v_add_f32 v{S1}, v{S1}, v{STR + 2}", f"v_add_f32 v{S2}, v{S2}, v{STR + 3}",
            f"v_mov_b32 v{STR + 2}, v{S1}", f"v_mov_b32 v{STR + 3}, v{S2}",
            f"v_permlane32_swap_b32 v{S1}, v{STR + 2}", f"v_permlane32_swap_b32 v{S2}, v{STR + 3}",
            f"v_add_f32 v{S1}, v{S1}, v{STR + 2}", f"v_add_f32 v{S2}, v{S2}, v{STR + 3}",
            f"v_mul_f32 v{S1}, {hex(f32bits(1.0 / 576))}, v{S1}",
            f"v_mul_f32 v{S2}, {hex(f32bits(1.0 / 576))}, v{S2}",
            f"v_fma_f32 v{S2}, -v{S1}, v{S1}, v{S2}",
            f"v_max_f32 v{S2}, 0, v{S2}",
            f"v_add_f32 v{S2}, {hex(f32bits(1e-5))}, v{S2}",
            f"v_rsq_f32 v{RS}, v{S2}",
            f"v_mul_f32 v{MR}, v{S1}, v{RS}"]
    return ops


def role_p(a, abort, done):
    lane_setup(a, 18)
    vXA, vSTA, vCS, vA0, vLDS, vO = 9, 10, 11, 12, 12, 14
    vMB = 108
    ACC, RING, STR, LN = 16, 32, 56, 76
    TT = 96
    CS = 80
    a(f"""
    s_lshr_b32 s{sK2}, s{S_ROLE}, 5
    s_and_b32 s{sK3}, s{S_ROLE}, 31
    s_lshl_b32 s{S_TMP}, s{sK2}, 3
    s_add_u32 s{S_TMP}, s{S_TMP}, {KA_WQ}
    s_load_dwordx2 s[{SRD_A}:{SRD_A + 1}], s[0:1], s{S_TMP}
    s_mov_b32 s{SRD_A + 2}, {576 * 8192}
    s_mov_b32 s{SRD_A + 3}, 0x00020000
    s_lshl_b32 s{sK1}, s{sK3}, 8
    s_lshl_b32 s{S_TMP}, s{S_WAVE}, 6
    s_add_u32 s{sK1}, s{sK1}, s{S_TMP}
    v_bfe_u32 v{vSTA}, v{vL16}, 4, 5
    """)
    feat_of_row(a, vO, vSTA, vT0)
    a(f"""
    v_bfe_u32 v{vT0}, v{vL16}, 8, 1
    v_lshl_add_u32 v{vT1}, v{vC}, 1, v{vT0}
    s_cmp_eq_u32 s{sK2}, 2
    s_cselect_b64 vcc, -1, 0
    v_cndmask_b32 v{vO}, v{vO}, v{vT1}, vcc
    v_and_b32 v{vT0}, 1, v{vO}
    """)
    sel_of_parity(a, vCS, vT0, vT1)
    a(f"""
    v_and_b32 v{vO}, 30, v{vO}
    v_lshrrev_b32 v{vT0}, 9, v{vL16}
    v_lshlrev_b32 v{vA0}, 16, v{vT0}
    v_lshl_add_u32 v{vA0}, v{vO}, 1, v{vA0}
    v_add_u32 v{vA0 + 1}, 8192, v{vA0}
    v_lshlrev_b32 v{vSTA}, 4, v{vSTA}
    v_mul_u32_u24 v{vT1}, 2560, v{vT0}
    v_add_u32 v{vSTA}, v{vSTA}, v{vT1}
    v_add_u32 v{vSTA}, {STB3}, v{vSTA}
    s_lshl_b32 s{sW1K}, s{S_WAVE}, 10
    v_bfe_u32 v{vT1}, v{vL16}, 8, 1
    v_lshlrev_b32 v{vO}, 10, v{vT1}
    v_lshl_add_u32 v{vO}, v{vC}, 4, v{vO}
    v_lshl_add_u32 v{vO}, v{vT0}, 8, v{vO}
    """)
    a.force_wait(lg=0)
    a(f"s_and_b32 s{SRD_A + 1}, s{SRD_A + 1}, 0xffff")
    load_cols(a, SRD_A, vA0, vCS, [((16 * t + 2 * d) * 8192, WB + 4 * t + d) for t in range(36) for d in range(4)])
    a(f"""
    s_mul_i32 s{sK4}, s{sK2}, {QKV_M}
    s_lshl_b32 s{S_TMP}, s{sK3}, 13
    s_add_u32 s{sK4}, s{sK4}, s{S_TMP}
    s_lshl_b32 s{S_TMP}, s{S_WAVE}, 11
    s_add_u32 s{sK4}, s{sK4}, s{S_TMP}
    s_add_u32 s{sK4}, s{sK4}, {WS_QKV}
    s_lshl_b32 s{sK1}, s{sK3}, 9
    s_lshl_b32 s{S_TMP}, s{sK2}, 7
    s_add_u32 s{sK1}, s{sK1}, s{S_TMP}
    s_lshl_b32 s{S_TMP}, s{S_WAVE}, 2
    s_add_u32 s{sK1}, s{sK1}, s{S_TMP}
    s_add_u32 s{sK1}, s{sK1}, {WS_FLAGS + FL_QKV}
    v_mov_b32 v{RING}, 0x3f803f80
    v_mov_b32 v{RING + 1}, 0x3f803f80
    v_mov_b32 v{RING + 2}, 0x3f803f80
    v_mov_b32 v{RING + 3}, 0x3f803f80
    s_lshl_b32 s{S_TMP}, s{S_WAVE}, 8
    s_add_u32 s{S_TMP}, s{S_TMP}, {3 * XBUF}
    v_bfe_u32 v{vT0}, v{vL16}, 4, 5
    v_lshl_add_u32 v{vLDS}, v{vT0}, 2, s{S_TMP}
    v_lshrrev_b32 v{vT0}, 9, v{vL16}
    v_lshl_add_u32 v{vLDS + 1}, v{vT0}, 4, s{S_TMP}
    s_cmp_eq_u32 s{sK2}, 2
    s_cbranch_scc1 Lp_v
    """)
    for swap in (0, 1):
        nm = "LpV" if swap else "LpQ"
        if swap:
            a.label("Lp_v")
            a.restore(([], []))
        for t in range(36):
            w, o = vr(WB + 4 * t, 4), vr(RING, 4)
            a(MF32(ACC if swap else CS, o if swap else w, w if swap else o, "0" if t == 0 else None))
        if swap:
            a(f"v_mov_b32 v{vCS}, v{ACC}")

        def early():
            a(f"v_add_u32 v{vXA}, s{sBUF}, v{vL16}")
            a(f"v_add_u32 v{vT0}, s{sCSB}, v{vSTA}")
            for t in range(3):
                a(f"ds_read_b128 {vr(RING + 4 * t, 4)}, v{vXA} offset:{t * 1024}")
            for i in range(5):
                a(f"ds_read_b128 {vr(STR + 4 * i, 4)}, v{vT0} offset:{512 * i}")

        def compute(pre, dma, extra, mid, roll, swap=swap):
            early()
            sm = [None] * 3 + stats_math(STR, LN, LN + 1)
            if swap:
                sm += [f"ds_write2_b32 v{vLDS}, v{LN}, v{LN + 1} offset0:0 offset1:32"]
                sm += [f"ds_read_b128 {vr(LN + 4 * i, 4)}, v{vLDS + 1} offset:{(i >> 2) * 128 + (i & 3) * 32}" for i in range(8)]
                sm += [None] * 9 + [f"v_mul_f32 v{LN + 16 + i}, v{vCS}, v{LN + 16 + i}" for i in range(16)]
            else:
                sm += [f"v_mul_f32 v{TT + i}, v{LN + 1}, v{CS + i}" for i in range(16)]
            sm += [f"s_mul_i32 s{sO1}, s{sCL}, {3 * QKV_M}", f"s_lshl_b32 s{sK3}, s{sCS}, 18",
                   f"s_add_u32 s{sO1}, s{sO1}, s{sK3}", f"s_add_u32 s{sO1}, s{sO1}, s{sK4}"]
            gemm32(a, ACC, swap, vXA, [RING + 4 * i for i in range(4)], pre, dma, extra, mid, roll, fill=sm, issued=True)
            epi()

        def epi(swap=swap):
            for k in range(2):
                regs = [0, 1, 2, 3, 8, 9, 10, 11] if swap else list(range(8))
                regs = [r + (4 if swap else 8) * k for r in regs]
                for i in regs[::2]:
                    if swap:
                        a(f"v_pk_fma_f32 {vr(ACC + i, 2)}, {vr(ACC + i, 2)}, {vr(LN + i, 2)}, {vr(LN + 16 + i, 2)} neg_lo:[0,0,1] neg_hi:[0,0,1]")
                    else:
                        a(f"v_pk_fma_f32 {vr(ACC + i, 2)}, {vr(ACC + i, 2)}, {vr(LN, 2)}, {vr(TT + i, 2)} op_sel_hi:[1,0,1] neg_lo:[0,0,1] neg_hi:[0,0,1]")
                o = RING + 16 + 4 * k
                for i in range(4):
                    a(f"v_cvt_pk_bf16_f32 v{o + i}, v{ACC + regs[2 * i]}, v{ACC + regs[2 * i + 1]}")
                a(f"buffer_store_dwordx4 {vr(o, 4)}, v{vO}, {WS}, s{sO1} offen offset:{512 * k} sc1", tag="st")

        def out_flag():
            a(f"s_mul_i32 s{sPEND}, s{sCO}, {FL_STRIDE}")
            a(f"s_add_u32 s{sPEND}, s{sPEND}, s{sK1}")

        a(f"s_mov_b32 s{sSB}, {STB3}")
        a(f"s_mov_b32 s{sCSB}, 0x2000")
        staged_loop(a, nm, abort, done, WS_X + X_BYTES, 2 * X_BYTES, FL_XB,
                    lambda sr_: stats_dma(WS_ST + ST_BYTES, sr_), compute, out_flag, 2, vMB if swap else 78)


def role_awo(a, abort, done):
    lane_setup(a, 64)
    vXA, vSTO, vSEL, vA0, vRES = 9, 10, 11, 12, 14
    ACC, RING, RES, SS = 16, 32, 64, 72
    if AQLDW:
        a(f"s_cmp_lt_u32 s{S_ROLE}, 5")
        a("s_cbranch_scc1 Lawo_noord")
        dbg_wait(a, DB_LOADED, AQLDW, vT0, vT1, abort, "Lawo_ord", 64)
        a.label("Lawo_noord")
    srd(a, SRD_A, KA_WO, 576 * 1152)
    a(f"""
    s_cmp_ge_u32 s{S_ROLE}, 5
    s_cselect_b32 s{sLAYS}, 1, 0
    s_cselect_b32 s{S_TMP}, 5, 0
    s_sub_u32 s{S_ROLE}, s{S_ROLE}, s{S_TMP}
    s_lshl_b32 s{sK2}, s{S_ROLE}, 2
    s_add_u32 s{sK2}, s{sK2}, s{S_WAVE}
    s_min_u32 s{sK2}, s{sK2}, 17
    s_lshl_b32 s{sK1}, s{sK2}, 6
    v_bfe_u32 v{vSTO}, v{vL16}, 4, 5
    """)
    feat_of_row(a, vRES, vSTO, vT0)
    a(f"v_and_b32 v{vT0}, 1, v{vRES}")
    sel_of_parity(a, vSEL, vT0, vT1)
    a(f"""
    v_and_b32 v{vRES}, 30, v{vRES}
    v_lshlrev_b32 v{vRES}, 1, v{vRES}
    v_lshrrev_b32 v{vXA}, 9, v{vL16}
    v_mul_u32_u24 v{vT0}, {8 * 1152}, v{vXA}
    v_add_u32 v{vA0}, v{vT0}, v{vRES}
    v_add_u32 v{vA0 + 1}, 1152, v{vA0}
    """)
    load_cols(a, SRD_A, vA0, vSEL, [((18 * t + 2 * (t & 1) + 2 * d) * 1152, WB + 4 * t + d) for t in range(32) for d in range(4)])
    a(f"""
    v_mul_u32_u24 v{vT0}, {72 * 1152}, v{vXA}
    v_add_u32 v{vA0}, v{vT0}, v{vRES}
    v_add_u32 v{vA0 + 1}, 1152, v{vA0}
    """)
    load_cols(a, SRD_A, vA0, vSEL, [((144 * t + 18 * d + (0 if d & 1 else 16)) * 1152, WB + 128 + 4 * t + d) for t in range(4) for d in range(4)])
    a(f"""
    v_lshlrev_b32 v{vSTO}, 4, v{vSTO}
    v_lshl_add_u32 v{vRES}, v{vXA}, 9, v{vSTO}
    s_lshl_b32 s{S_TMP}, s{sK2}, 11
    v_add_u32 v{vRES}, s{S_TMP}, v{vRES}
    s_lshr_b32 s{S_TMP}, s{sK2}, 1
    s_lshl_b32 s{S_TMP}, s{S_TMP}, 9
    s_and_b32 s{S_TMP + 1}, s{sK2}, 1
    s_lshl_b32 s{S_TMP + 1}, s{S_TMP + 1}, 3
    s_add_u32 s{S_TMP}, s{S_TMP}, s{S_TMP + 1}
    v_add_u32 v{vSTO}, s{S_TMP}, v{vSTO}
    s_lshr_b32 s{sK1}, s{sK2}, 2
    s_lshl_b32 s{sK1}, s{sK1}, 7
    s_and_b32 s{S_TMP}, s{sK2}, 3
    s_lshl_b32 s{S_TMP}, s{S_TMP}, 2
    s_add_u32 s{sK1}, s{sK1}, s{S_TMP}
    s_add_u32 s{sK1}, s{sK1}, {WS_FLAGS + FL_XB}
    """)

    def res_loads(srd_):
        pre = [f"s_mul_i32 s{sO3}, s{sNL}, {2 * X_BYTES}", f"s_mul_i32 s{S_TMP + 1}, s{sNS}, {X_SEG}",
               f"s_add_u32 s{sO3}, s{sO3}, s{S_TMP + 1}", f"s_add_u32 s{sO3}, s{sO3}, {WS_X}"]
        ops = [[f"buffer_load_dwordx4 {vr(RES + 4 * k, 4)}, v{vRES}, {srd_}, s{sO3} offen offset:{1024 * k}"] for k in range(2)]
        ops[0] = pre + ops[0]
        return ops

    AOST = int(os.environ.get("AOST", "14"))
    AODEC = int(os.environ.get("AODEC", "32"))

    def compute(start, decide, vm):
        vm = list(vm)
        a(f"v_add_u32 v{vXA}, s{sBUF}, v{vL16}")
        nr = 8
        ring = [RING + 4 * i for i in range(nr)]

        def rd(t):
            return f"ds_read_b128 {vr(ring[t % nr], 4)}, v{vXA} offset:{t * 1024}"
        for t in range(nr - 1):
            a(rd(t))
        for i in range(8):
            a(f"v_lshlrev_b32 v{ACC + 2 * i}, 16, v{RES + i}")
            a(f"v_and_b32 v{ACC + 2 * i + 1}, 0xffff0000, v{RES + i}")
        fl = [f"s_mul_i32 s{sO1}, s{sCL}, {2 * X_BYTES}", f"s_mul_i32 s{sK3}, s{sCS}, {X_SEG}",
              f"s_add_u32 s{sO1}, s{sO1}, s{sK3}", f"s_add_u32 s{sO1}, s{sO1}, {WS_X + X_BYTES}",
              f"s_mul_i32 s{sK4}, s{sCL}, {2 * ST_BYTES}", f"s_mul_i32 s{sK3}, s{sCS}, {ST_SEG}",
              f"s_add_u32 s{sK4}, s{sK4}, s{sK3}", f"s_add_u32 s{sK4}, s{sK4}, {WS_ST + ST_BYTES}"]
        for t in range(36):
            a(MF32(ACC, vr(WB + 4 * t, 4), vr(ring[t % nr], 4), None))
            if t + nr - 1 < 36:
                a(rd(t + nr - 1))
            if fl:
                a(fl.pop(0))
            if t == AOST:
                start()
            if t == AODEC:
                decide()
            elif t > AODEC and vm:
                seq(a, vm.pop(0))
                if vm:
                    seq(a, vm.pop(0))
        seq(a, vm)
        for k in range(2):
            for i in range(4):
                a(f"v_cvt_pk_bf16_f32 v{RING + 4 * k + i}, v{ACC + 8 * k + 2 * i}, v{ACC + 8 * k + 2 * i + 1}")
            a(f"buffer_store_dwordx4 {vr(RING + 4 * k, 4)}, v{vRES}, {WS}, s{sO1} offen offset:{1024 * k} sc1")
        a(f"v_add_f32 v{SS}, v{ACC}, v{ACC + 1}")
        a(f"v_mul_f32 v{SS + 1}, v{ACC}, v{ACC}")
        a(f"v_fmac_f32 v{SS + 1}, v{ACC + 1}, v{ACC + 1}")
        for i in range(2, 16):
            a(f"v_add_f32 v{SS}, v{SS}, v{ACC + i}")
            a(f"v_fmac_f32 v{SS + 1}, v{ACC + i}, v{ACC + i}")
        seq(a, f"v_mov_b32 v{SS + 2}, v{SS}", f"v_mov_b32 v{SS + 3}, v{SS + 1}",
            f"v_permlane32_swap_b32 v{SS}, v{SS + 2}", f"v_permlane32_swap_b32 v{SS + 1}, v{SS + 3}",
            f"v_add_f32 v{SS}, v{SS}, v{SS + 2}", f"v_add_f32 v{SS + 1}, v{SS + 1}, v{SS + 3}",
            f"buffer_store_dwordx2 {vr(SS, 2)}, v{vSTO}, {WS}, s{sK4} offen sc1")

    def out_flag():
        a(f"s_mul_i32 s{sPEND}, s{sCO}, {FL_STRIDE}")
        a(f"s_add_u32 s{sPEND}, s{sPEND}, s{sK1}")

    seq_loop(a, "Lawo", abort, done, WS_OA, X_BYTES, FL_OA, res_loads, compute, out_flag, 3, sLAYS, slp=2, DBGW=11)


def role_aq(a, abort, done, nt=""):
    lane_setup(a, 48)
    vXA, vSTA, vLDS, vOUT = 9, 10, 11, 13
    ACC, CS, RING, STR = 16, 36, 56, 68
    LN, BI = 92, 72
    ST8 = 112
    QB, KC, VA, VB, SP, PP = 128, 132, 136, 140, 144, 68
    AQ1P = int(os.environ.get("AQ1P", "1"))
    AQST = int(os.environ.get("AQST", "10"))
    AQDEC = int(os.environ.get("AQDEC", "14" if AQ1P else "22"))
    NR = int(os.environ.get("AQNR", "4"))
    RG = [RING, RING + 4, RING + 8, 104][:NR]
    vSRC = 111
    WV = 152

    def wreg(tile, t, i=None):
        n = (tile * 18 + t) * 4
        k, b = ("v", WV + n) if n < 104 else ("a", n - 104)
        return f"{k}[{b}:{b + 3}]" if i is None else f"{k}{b + i}"

    a(f"""
    s_lshr_b32 s{sLAYS}, s{S_ROLE}, 4
    s_and_b32 s{S_ROLE}, s{S_ROLE}, 15
    s_lshl_b32 s{sK2}, s{S_ROLE}, 1
    s_lshr_b32 s{S_TMP}, s{S_WAVE}, 1
    s_add_u32 s{sK2}, s{sK2}, s{S_TMP}
    s_and_b32 s{sK3}, s{S_WAVE}, 1
    s_mul_i32 s{sK1}, s{sK2}, 36
    """)
    if AQLDW:
        a(f"s_cmp_eq_u32 s{sLAYS}, 0")
        a("s_cbranch_scc1 Laq_noord")
        dbg_wait(a, DB_LOADED, AQLDW, vT0, vT1, abort, "Laq_ord", 64)
        a.label("Laq_noord")
    srd(a, SRD_A, KA_WQKV, 576 * 3456)
    A_ = f"s[{SRD_A}:{SRD_A + 3}]"
    SLOT, ROWB, MB_ = 7680, 240, 80
    EXA = 18 * SLOT
    ZERO = EXA + 18 * 1024
    GA2, TRM, TRE, MSK, TX, CR, CWR = 16, 19, 20, 21, 22, 23, 28
    sLB, sHD, sDL = sO1, sO2, sO3
    for j in range(2):
        a(f"""
        v_lshrrev_b32 v24, 4, v{vL16}
        v_add_u32 v24, {64 * j}, v24
        v_mul_u32_u24 v25, {(65536 + 14) // 15}, v24
        v_lshrrev_b32 v25, 16, v25
        v_mul_u32_u24 v26, 15, v25
        v_sub_u32 v24, v24, v26
        v_mul_u32_u24 v{GA2 + j}, 3456, v25
        v_mul_u32_u24 v25, {(65536 + 4) // 5}, v24
        v_lshrrev_b32 v25, 16, v25
        v_mul_u32_u24 v26, 5, v25
        v_sub_u32 v24, v24, v26
        v_mul_u32_u24 v25, 1152, v25
        v_lshlrev_b32 v24, 4, v24
        v_add3_u32 v{GA2 + j}, v{GA2 + j}, v24, v25
        """)
    a(f"""
    s_mul_i32 s{sK1}, s{S_ROLE}, 72
    s_and_b32 s{sDL}, s{sK1}, 15
    s_and_b32 s{sK1}, s{sK1}, -16
    s_mul_i32 s{S_TMP}, s{S_WAVE}, {8 * 3456}
    s_add_u32 s{sK1}, s{sK1}, s{S_TMP}
    s_mul_i32 s{sLB}, s{S_WAVE}, {8 * ROWB}
    s_mov_b32 s{sE}, -1
    s_mov_b32 s{sE + 1}, 0x00ffffff
    """)
    def wdma(t):
        a(f"s_add_u32 s{S_TMP}, s{sK1}, {32 * t * 3456}")
        a(f"s_add_u32 m0, s{sLB}, {t * SLOT}")
        a("s_nop 0")
        a(f"buffer_load_dwordx4 v{GA2}, {A_}, s{S_TMP} offen lds")
        a(f"s_add_u32 m0, s{sLB}, {t * SLOT + 1024}")
        a(f"s_mov_b64 exec, s[{sE}:{sE + 1}]")
        a(f"buffer_load_dwordx4 v{GA2 + 1}, {A_}, s{S_TMP} offen lds")
        a("s_mov_b64 exec, -1")
    for t in range(12):
        wdma(t)
    a(f"""
    s_lshr_b32 s{sHD}, s{S_WAVE}, 1
    s_mul_i32 s{S_TMP}, s{sHD}, 40
    s_add_u32 s{S_TMP}, s{S_TMP}, s{sDL}
    s_mul_i32 s{S_TMP + 1}, s{sHD}, 4
    s_add_u32 s{S_TMP + 1}, s{S_TMP + 1}, s{sDL}
    s_add_u32 s{S_TMP + 1}, s{S_TMP + 1}, 32
    s_lshl_b32 s{S_TMP + 2}, s{sHD}, 4
    s_add_u32 s{S_TMP + 2}, s{S_TMP + 2}, {EXA}
    v_lshrrev_b32 v{vT0}, 2, v{vC}
    v_lshl_add_u32 v{vT0}, v{vG}, 3, v{vT0}
    v_and_b32 v{vT1}, 3, v{vC}
    v_mul_u32_u24 v{TRM}, {ROWB}, v{vT0}
    v_add_u32 v{TRM}, s{S_TMP}, v{TRM}
    v_lshl_add_u32 v{TRM}, v{vT1}, 3, v{TRM}
    v_lshlrev_b32 v{TRE}, 5, v{vT0}
    v_add_u32 v{TRE}, s{S_TMP + 2}, v{TRE}
    v_mov_b32 v{TX}, {ZERO}
    v_cmp_eq_u32 vcc, 0, v{vT1}
    v_cndmask_b32 v{TRE}, v{TX}, v{TRE}, vcc
    v_cndmask_b32 v{MSK}, 0, -1, vcc
    v_bfe_u32 v{vT0}, v{vL16}, 4, 5
    v_mul_u32_u24 v{CR}, {ROWB}, v{vT0}
    v_add_u32 v{CR}, s{S_TMP + 1}, v{CR}
    v_lshlrev_b32 v{CWR}, 5, v{vT0}
    v_add_u32 v{CWR}, s{S_TMP + 2}, v{CWR}
    v_mov_b32 v24, 0
    v_mov_b32 v25, 0
    v_mov_b32 v26, 0
    v_mov_b32 v27, 0
    v_lshlrev_b32 v{TX}, 4, v{vC}
    v_add_u32 v{TX}, {ZERO}, v{TX}
    ds_write_b128 v{TX}, v[24:27]
    """)

    def pair(tile, t, hh):
        n = (tile * 18 + t) * 4 + 2 * hh
        k, b = ("v", WV + n) if n < 104 else ("a", n - 104)
        return f"{k}[{b}:{b + 1}]"
    EB = 56

    def batch(ts):
        regs = {t: (EB + 8 * i, EB + 8 * i + 2, EB + 8 * i + 4) for i, t in enumerate(ts)}
        for t in ts:
            e, x, ad = regs[t]
            a(f"v_add_u32 v{ad}, {t * SLOT}, v{CR}")
            a(f"v_mov_b32 v{x + 1}, 0")
            a(f"ds_read_b32 v{e}, v{ad}")
            a(f"ds_read_b32 v{e + 1}, v{ad} offset:{MB_}")
            a(f"ds_read_b32 v{x}, v{ad} offset:{2 * MB_}")
        for t in ts:
            e, x, ad = regs[t]
            a(f"v_add_u32 v{ad + 1}, {t * SLOT}, v{TRM}")
            for hh in range(2):
                for tile, m in ((0, 0), (1, 1), (3, 2)):
                    a(f"ds_read_b64_tr_b16 {pair(tile, t, hh)}, v{ad + 1} offset:{m * MB_ + hh * 4 * ROWB}")
        for t in ts:
            e, x, ad = regs[t]
            a(f"ds_write_b64 v{CWR}, {vr(e, 2)} offset:{t * 1024}")
            a(f"ds_write_b64 v{CWR}, {vr(x, 2)} offset:{t * 1024 + 8}")
        a.wait(lg=0)
        for t in ts:
            e, x, ad = regs[t]
            for tile, off, q in ((2, 0, e), (4, 8, e + 1)):
                a(f"v_and_b32 v{q}, {t * 1024 + off}, v{MSK}")
                a(f"v_add_u32 v{q}, v{q}, v{TRE}")
                for hh in range(2):
                    a(f"ds_read_b64_tr_b16 {pair(tile, t, hh)}, v{q} offset:{hh * 128}")
        a.wait(lg=0)
    for i in range(4):
        a(f"v_mov_b32 v{104 + i}, 0x3f803f80")

    def csum(ts):
        for t in ts:
            for tile in range(5):
                w, o = wreg(tile, t), vr(104, 4)
                a(MF(CS + 4 * tile, o if tile >= 3 else w, w if tile >= 3 else o, "0" if t == 0 else None))
    a.force_wait(vm=2 * 6, lg=0)
    a("s_barrier")
    batch(list(range(0, 6)))
    for t in range(12, 18):
        wdma(t)
    csum(range(0, 6))
    a.force_wait(vm=2 * 6)
    a("s_barrier")
    batch(list(range(6, 12)))
    csum(range(6, 12))
    a.force_wait(vm=0)
    a("s_barrier")
    batch(list(range(12, 18)))
    csum(range(12, 18))
    a("s_barrier")
    NEG = hex(f32bits(-1e30))
    a(f"""
    v_lshlrev_b32 v{vSTA}, 5, v{vC}
    s_lshl_b32 s{S_TMP}, s{sK3}, 4
    v_add_u32 v{vSTA}, s{S_TMP}, v{vSTA}
    v_mul_u32_u24 v{vT1}, 1536, v{vG}
    v_add_u32 v{vSTA}, v{vSTA}, v{vT1}
    s_lshl_b32 s{S_TMP}, s{S_WAVE}, 7
    s_add_u32 s{S_TMP}, s{S_TMP}, {2 * XBUF}
    v_lshl_add_u32 v{vLDS}, v{vC}, 3, s{S_TMP}
    v_lshl_add_u32 v{vLDS + 1}, v{vG}, 5, s{S_TMP}
    v_lshlrev_b32 v{vOUT}, 5, v{vC}
    s_lshl_b32 s{S_TMP}, s{sK3}, 4
    v_add_u32 v{vOUT}, s{S_TMP}, v{vOUT}
    s_lshr_b32 s{S_TMP}, s{sK2}, 2
    s_add_u32 s{S_TMP}, s{S_TMP}, 64
    s_lshl_b32 s{S_TMP}, s{S_TMP}, 9
    s_and_b32 s{S_TMP + 1}, s{sK2}, 3
    s_lshl_b32 s{S_TMP + 1}, s{S_TMP + 1}, 2
    s_add_u32 s{S_TMP}, s{S_TMP}, s{S_TMP + 1}
    v_add_u32 v{vOUT + 1}, s{S_TMP}, v{vOUT}
    v_lshrrev_b32 v{vT0}, 1, v{vG}
    v_lshl_add_u32 v{vOUT}, v{vT0}, 9, v{vOUT}
    v_and_b32 v{vT0}, 1, v{vG}
    v_lshl_add_u32 v{vOUT}, v{vT0}, 3, v{vOUT}
    s_lshl_b32 s{S_TMP}, s{sK2}, 10
    v_add_u32 v{vOUT}, s{S_TMP}, v{vOUT}
    s_lshl_b32 s{sK1}, s{S_ROLE}, 7
    s_lshl_b32 s{S_TMP}, s{S_WAVE}, 2
    s_add_u32 s{sK1}, s{sK1}, s{S_TMP}
    s_add_u32 s{sK1}, s{sK1}, {WS_FLAGS + FL_OA}
    s_mov_b32 s{sK4}, {hex(f32bits(18 ** -0.5 * 1.4426950408889634))}
    v_mov_b32 v{vT1}, {NEG}
    """)
    for i in range(4):
        a(f"v_lshl_add_u32 v{vT0}, v{vG}, 2, {i}")
        a(f"v_sub_u32 v{vT0}, v{vT0}, v{vC}")
        a(f"v_cmp_le_i32 vcc, 9, v{vT0}")
        a(f"v_cndmask_b32 v{BI + i}, v{vT1}, v{vZERO}, vcc")
        a(f"v_add_u32 v{vT0}, 7, v{vT0}")
        a(f"v_cmp_ge_u32 vcc, 7, v{vT0}")
        a(f"v_cndmask_b32 v{BI + 4 + i}, v{vT1}, v{vZERO}, vcc")
    a(f"v_and_b32 v{vSRC}, 0x200, v{vL16}")
    a(f"v_lshl_add_u32 v{vSRC}, v{vC}, 5, v{vSRC}")
    a(f"v_and_b32 v{vT0}, 1, v{vG}")
    a(f"v_lshl_add_u32 v{vSRC}, v{vT0}, 4, v{vSRC}")
    for r in (ST8, VA, VB):
        for i in range(4):
            a(f"v_mov_b32 v{r + i}, 0")
    for i in range(4):
        a(f"v_mov_b32 v{ST8 + 4 + i}, 0x3f803f80")
    a(f"v_mov_b32 v{QB + 3}, 0")
    a(f"v_mov_b32 v{KC + 3}, 0")

    def st_loads(srd_):
        pre = [f"s_mul_i32 s{sO3}, s{sNL}, {2 * ST_BYTES}", f"s_mul_i32 s{S_TMP + 1}, s{sNS}, {ST_SEG}",
               f"s_add_u32 s{sO3}, s{sO3}, s{S_TMP + 1}", f"s_add_u32 s{sO3}, s{sO3}, {WS_ST}"]
        ops = [[f"buffer_load_dwordx4 {vr(STR + 12 + 4 * i, 4)}, v{vSTA}, {srd_}, s{sO3} offen offset:{512 * i}"] for i in range(3)]
        ops[0] = pre + ops[0]
        return ops

    def compute(start, decide, vm, osc):
        vm = list(vm)
        S0 = STR + 12
        a(f"v_lshlrev_b32 v{vXA}, 9, v{vG}")
        a(f"v_lshl_add_u32 v{vXA}, v{vC}, 4, v{vXA}")
        a(f"s_lshl_b32 s{S_TMP}, s{sK3}, 8")
        a(f"s_add_u32 s{S_TMP}, s{S_TMP}, s{sBUF}")
        a(f"v_add_u32 v{vXA}, s{S_TMP}, v{vXA}")
        S1, S2 = S0, S0 + 1
        sm = [f"v_add_f32 v{S0 + j}, v{S0 + j}, v{S0 + 4 * i + j}" for i in (1, 2) for j in range(4)]
        sm += [f"v_add_f32 v{S1}, v{S1}, v{S0 + 2}", f"v_add_f32 v{S2}, v{S2}, v{S0 + 3}"]
        for sw in (32, 16):
            sm += [f"v_mov_b32 v{S0 + 2}, v{S1}", f"v_mov_b32 v{S0 + 3}, v{S2}",
                   f"v_permlane{sw}_swap_b32 v{S1}, v{S0 + 2}", f"v_permlane{sw}_swap_b32 v{S2}, v{S0 + 3}",
                   f"v_add_f32 v{S1}, v{S1}, v{S0 + 2}", f"v_add_f32 v{S2}, v{S2}, v{S0 + 3}"]
        sm += [f"v_mul_f32 v{S1}, {hex(f32bits(1.0 / 576))}, v{S1}", f"v_mul_f32 v{S2}, {hex(f32bits(1.0 / 576))}, v{S2}",
               f"v_fma_f32 v{S2}, -v{S1}, v{S1}, v{S2}", f"v_max_f32 v{S2}, 0, v{S2}",
               f"v_add_f32 v{S2}, {hex(f32bits(1e-5))}, v{S2}", f"v_rsq_f32 v{LN}, v{S2}",
               f"v_mul_f32 v{LN + 1}, v{S1}, v{LN}",
               f"ds_write_b64 v{vLDS}, {vr(LN, 2)}",
               f"ds_read_b128 {vr(LN + 4, 4)}, v{vLDS + 1}", f"ds_read_b128 {vr(LN + 8, 4)}, v{vLDS + 1} offset:16"]
        def rd(n):
            return f"ds_read_b128 {vr(RG[n % NR], 4)}, v{vXA} offset:{(n % 18) * 2048}"
        q0, k0, ex, v0, vx = [ACC + 4 * i for i in range(5)]
        KP = ST8
        MX, T1 = vT0, vT1
        LQ, OX, OY, ON = ACC, ACC + 4, ACC + 8, ST8 + 4

        def fold(tile):
            ops = []
            for i in range(4):
                r = ACC + 4 * tile + i
                rs, mr = (LN + 4 + 2 * i, LN + 5 + 2 * i) if tile >= 3 else (LN, LN + 1)
                ops += [f"v_mul_f32 v{LN + 2}, v{mr}, v{CS + 4 * tile + i}", f"v_fma_f32 v{r}, v{r}, v{rs}, -v{LN + 2}"]
            return ops
        post = fold(0) + fold(2) + fold(1) + [
            f"v_cvt_pk_bf16_f32 v{QB}, v{q0}, v{q0 + 1}", f"v_cvt_pk_bf16_f32 v{QB + 1}, v{q0 + 2}, v{q0 + 3}",
            f"v_cvt_pk_bf16_f32 v{QB + 2}, v{ex}, v{ex + 1}",
            f"v_cvt_pk_bf16_f32 v{KC}, v{k0}, v{k0 + 1}", f"v_cvt_pk_bf16_f32 v{KC + 1}, v{k0 + 2}, v{k0 + 3}",
            f"v_cvt_pk_bf16_f32 v{KC + 2}, v{ex + 2}, v{ex + 3}",
            [f"s_cmp_eq_u32 s{sCS}, 0", f"s_cselect_b32 s{sO1}, {NEG}, 0"],
            None, MF(SP, vr(KP, 4), vr(QB, 4), "0"), None, MF(SP + 4, vr(KC, 4), vr(QB, 4), "0"), None, None]
        post += [f"v_mov_b32 v{KP + i}, v{KC + i}" for i in range(3)] + [None] * 3
        post += [f"v_fma_f32 v{SP + i}, v{SP + i}, s{sK4}, v{BI + i}" for i in range(8)]
        post += [f"v_add_f32 v{SP + i}, s{sO1}, v{SP + i}" for i in range(4)]
        post += [f"v_max3_f32 v{MX}, v{SP}, v{SP + 1}, v{SP + 2}", f"v_max3_f32 v{MX}, v{MX}, v{SP + 3}, v{SP + 4}",
                 f"v_max3_f32 v{MX}, v{MX}, v{SP + 5}, v{SP + 6}", f"v_max_f32 v{MX}, v{MX}, v{SP + 7}",
                 f"v_mov_b32 v{T1}, v{MX}", None, f"v_permlane32_swap_b32 v{MX}, v{T1}", f"v_max_f32 v{MX}, v{MX}, v{T1}",
                 f"v_mov_b32 v{T1}, v{MX}", None, f"v_permlane16_swap_b32 v{MX}, v{T1}", f"v_max_f32 v{MX}, v{MX}, v{T1}"]
        post += [f"v_sub_f32 v{SP + i}, v{SP + i}, v{MX}" for i in range(8)]
        post += [f"v_exp_f32 v{SP + i}, v{SP + i}" for i in range(8)]
        post += [f"v_cvt_pk_bf16_f32 v{PP + i}, v{SP + 2 * i}, v{SP + 2 * i + 1}" for i in range(4)]
        post += [None, MF(LQ, vr(ON, 4), vr(PP, 4), "0"),
                 [f"s_mul_i32 s{sO1}, s{sCO}, {X_SEG}", f"s_add_u32 s{sO1}, s{sO1}, {WS_OA}"]]
        if AQ1P:
            st_, dec_ = (AQST, AQDEC) if osc else (int(os.environ.get("AQFS", "1")), int(os.environ.get("AQFD", "11")))
            seq(a, [rd(i) for i in range(NR - 1)])
            if PROF == 3:
                prof_begin(a)
            for t in range(18):
                if t + NR - 1 < 18:
                    a(rd(t + NR - 1))
                x = vr(RG[t % NR], 4)
                for tile in range(5):
                    w = wreg(tile, t)
                    a(MF(ACC + 4 * tile, x if tile >= 3 else w, w if tile >= 3 else x, "0" if t == 0 else None))
                    if sm and tile < 4:
                        a(sm.pop(0))
                    if tile == 4 and t > dec_ and vm:
                        seq(a, vm.pop(0))
                    if tile == 2 and t > dec_ and len(vm) > 17 - t:
                        seq(a, vm.pop(0))
                if t == st_:
                    start()
                if t == dec_:
                    decide()
            assert not sm
            seq(a, vm)
            vm = []
            if PROF == 3:
                prof_end(a, 3); prof_begin(a)
            f3, f4 = fold(3), fold(4)
            post2 = []
            for op in post:
                if op is None:
                    if f3:
                        post2 += [f3.pop(0), f3.pop(0)]
                    elif f4:
                        post2 += [f4.pop(0), f4.pop(0)]
                else:
                    post2.append(op)
            post = post2 + f3 + f4
            vfold_done = True
        else:
            vfold_done = False
            seq(a, [rd(i) for i in range(NR - 1)])
            if PROF == 3:
                prof_begin(a)
            for n in range(36):
                t = n % 18
                if PROF == 3 and n == 18:
                    prof_end(a, 3); prof_begin(a)
                if n + NR - 1 < 36:
                    a(rd(n + NR - 1))
                x = vr(RG[n % NR], 4)
                for tile in ((0, 1, 2) if n < 18 else (3, 4)):
                    w = wreg(tile, t)
                    a(MF(ACC + 4 * tile, x if tile >= 3 else w, w if tile >= 3 else x, "0" if t == 0 else None))
                    if n < 18 and sm:
                        a(sm.pop(0))
                    if n >= 19:
                        for _ in range(3 if n >= 30 else 2):
                            if post:
                                seq(a, post.pop(0))
                if n == AQST:
                    start()
                if n == 17:
                    assert not sm
                if n == AQDEC:
                    decide()
                elif n > AQDEC and vm:
                    seq(a, vm.pop(0))
            assert not vm
        if PROF == 3:
            prof_end(a, 4); prof_begin(a)
        fo3 = [] if vfold_done else fold(3)
        fo4 = [] if vfold_done else fold(4)
        seq(a, post, f"v_rcp_f32 v{T1}, v{LQ}", fo3,
            f"v_cvt_pk_bf16_f32 v{VA + 2}, v{v0}, v{v0 + 1}", f"v_cvt_pk_bf16_f32 v{VA + 3}, v{v0 + 2}, v{v0 + 3}",
            fo4[:2], MF(OX, vr(VA, 4), vr(PP, 4), "0"), fo4[2:],
            f"v_cvt_pk_bf16_f32 v{VB + 2}, v{vx}, v{vx + 1}", f"v_cvt_pk_bf16_f32 v{VB + 3}, v{vx + 2}, v{vx + 3}",
            f"v_mov_b32 v{VA}, v{VA + 2}", f"v_mov_b32 v{VA + 1}, v{VA + 3}",
            MF(OY, vr(VB, 4), vr(PP, 4), "0"),
            [f"v_mul_f32 v{OX + i}, v{T1}, v{OX + i}" for i in range(4)],
            f"v_cvt_pk_bf16_f32 v{OX}, v{OX}, v{OX + 1}", f"v_cvt_pk_bf16_f32 v{OX + 1}, v{OX + 2}, v{OX + 3}",
            f"buffer_store_dwordx2 {vr(OX, 2)}, v{vOUT}, {WS}, s{sO1} offen{osc}",
            f"v_mov_b32 v{VB}, v{VB + 2}", f"v_mov_b32 v{VB + 1}, v{VB + 3}",
            f"v_mul_f32 v{OY}, v{T1}, v{OY}", f"v_mul_f32 v{OY + 1}, v{T1}, v{OY + 1}",
            f"v_cvt_pk_bf16_f32 v{OY}, v{OY}, v{OY + 1}",
            "s_mov_b64 exec, 0xffff",
            f"buffer_store_dword v{OY}, v{vOUT + 1}, {WS}, s{sO1} offen{osc}",
            "s_mov_b64 exec, -1")
        if PROF == 3:
            prof_end(a, 5)

    def out_flag():
        a(f"s_mul_i32 s{sPEND}, s{sCO}, {FL_STRIDE}")
        a(f"s_add_u32 s{sPEND}, s{sPEND}, s{sK1}")

    class_pure(a, 3, sF1, 24, 25, abort, "Laq_pure")
    a(f"s_cmp_eq_u32 s{sF1}, 0")
    a("s_cbranch_scc1 Laq_slow")
    for nm, osc in (("Laqf", ""), ("Laq", " sc1")):
        if osc:
            a.label("Laq_slow")
            a.restore(([], []))
        seq_loop(a, nm, abort, done, WS_X, 2 * X_BYTES, FL_XA, st_loads, lambda s_, d_, v_, osc=osc: compute(s_, d_, v_, osc),
                 out_flag, 2, sLAYS, vsrc=vSRC, DBGW=9, osc=osc)


def seq_loop(a, name, abort, done, xbase, xlayer, flag_off, extra_loads, compute, out_flag, nst, laysel, prefetch=True,
             vsrc=None, pub2=None, slp=None, DBGW=None, osc=" sc1"):
    slp = SLP if slp is None else slp

    def dma_ops(srd_):
        ops = []
        for i in range(9):
            pre = []
            if i % 4 == 0:
                pre = [f"s_add_u32 m0, s{sOB}, {i * 1024}", f"s_add_u32 s{sO2}, s{sNX}, {i * 1024}"]
            ops.append(pre + [f"buffer_load_dwordx4 v{vL16 if vsrc is None else vsrc}, {srd_}, s{sO2} offen offset:{(i % 4) * 1024} lds"])
        return ops

    def publish():
        a(f"s_cmp_lg_u32 s{sPEND}, 0")
        a("s_cselect_b64 exec, 1, 0")
        if pub2 is None:
            a(f"buffer_store_dword v{vONE}, v{vZERO}, {WS}, s{sPEND} offen{osc}")
        else:
            a(f"buffer_store_dwordx2 {vr(pub2, 2)}, v{vZERO}, {WS}, s{sPEND} offen sc1")
        a("s_mov_b64 exec, -1")
        a(f"s_mov_b32 s{sPEND}, 0")

    a(f"""
    s_mov_b32 s{sNL}, s{laysel}
    s_mov_b32 s{sCL}, s{laysel}
    s_mov_b32 s{sNS}, 0
    s_lshl_b32 s{sNO}, s{laysel}, 6
    s_mul_i32 s{sWQ}, s{S_WAVE}, 9216
    s_mov_b32 s{sBUF}, {XBUF}
    s_mov_b32 s{sOB}, s{sWQ}
    s_mov_b32 s{sPEND}, 0
    s_mov_b32 s{SRD_C}, s{SRD_WS}
    s_mov_b32 s{SRD_C + 1}, s{SRD_WS + 1}
    s_mov_b32 s{SRD_C + 2}, 0
    s_mov_b32 s{SRD_C + 3}, 0x00020000
    s_mul_i32 s{sNX}, s{laysel}, {xlayer}
    s_add_u32 s{sNX}, s{sNX}, s{sWQ}
    s_add_u32 s{sNX}, s{sNX}, {xbase}
    s_mul_i32 s{sNFL}, s{sNO}, {FL_STRIDE}
    s_add_u32 s{sNFL}, s{sNFL}, {WS_FLAGS + flag_off}
    """)
    if DBGT == 2 and DBGW is not None:
        stamp_max(a, 5 + (DBGW - 9), vT0, vT1, (laysel, 0))
    dbg_wait(a, DB_POOL, N_POOL, vT0, vT1, abort, name + "_ini")
    if DBGT == 2 and DBGW is not None:
        stamp_max(a, 13, vT0, vT1, (laysel, 0))
    trace(a, vT0, vT1)
    prof_init(a)
    a(f"s_branch {name}_poll")
    head = name + "_item"
    a.label(head)
    a.restore(([], []))
    prof_begin(a)
    a.force_wait(vm=nst)
    prof_end(a, 0)
    a.label(name + "_go")
    prof_begin(a)
    a("s_barrier")
    prof_end(a, 1)
    a(f"""
    s_xor_b32 s{sBUF}, s{sBUF}, {XBUF}
    s_xor_b32 s{sOB}, s{sOB}, {XBUF}
    s_xor_b32 s{sSB}, s{sSB}, 0x2000
    s_xor_b32 s{sCSB}, s{sCSB}, 0x2000
    s_mov_b32 s{sCS}, s{sNS}
    s_mov_b32 s{sCO}, s{sNO}
    s_add_u32 s{sNS}, s{sNS}, 1
    s_add_u32 s{sNO}, s{sNO}, 1
    s_add_u32 s{sNX}, s{sNX}, {X_SEG}
    s_add_u32 s{sNFL}, s{sNFL}, {FL_STRIDE}
    s_mov_b32 s{sDEC}, 0
    """)
    a.vmq = [(frozenset(), "st")] * nst

    def start():
        if PROF == 1:
            prof_begin(a)
        a.force_wait(vm=0)
        if PROF == 1:
            prof_end(a, 2)
        a(f"buffer_load_dword v{vFLV}, v{vFLA}, {WS}, s{sNFL} offen sc1")
        publish()

    def decide():
        a.force_wait(vm=1)
        a(f"v_cmp_eq_u32 vcc, 0, v{vFLV}")
        a("s_cmp_eq_u64 vcc, 0")
        a(f"s_cselect_b32 s{sDEC}, 1, 0")
        a(f"s_cmp_lt_u32 s{sNS}, {NSEG}")
        a(f"s_cselect_b32 s{sDEC}, s{sDEC}, 0")
        a(f"s_cmp_lg_u32 s{sDEC}, 0")
        a(f"s_cselect_b32 s{SRD_C + 2}, {WS_BYTES}, 0")

    if prefetch:
        compute(start, decide, dma_ops(PFS) + extra_loads(PFS))
    else:
        compute(None, None, [])
    out_flag()
    trace_at(a, sCO, vT0, vZERO)
    trace5(a, sCS, 2, vT0, vZERO)
    if DBGW is not None:
        stamp_max(a, DBGW, vT0, vT1, (sCO, 0))
    if TRACE == 1:
        a.force_wait(vm=0)
        trace(a, vT0, vT1)
        a.force_wait(vm=0)
    if prefetch:
        a(f"s_cmp_lg_u32 s{sDEC}, 0")
        a(f"s_cbranch_scc1 {head}")
    a(f"buffer_load_dword v{vFLV}, v{vFLA}, {WS}, s{sNFL} offen sc1")
    a.force_wait(vm=0)
    a(f"s_cmp_ge_u32 s{sNS}, {NSEG}")
    a(f"s_cbranch_scc1 {name}_fin")
    a(f"v_cmp_eq_u32 vcc, 0, v{vFLV}")
    a(f"s_cbranch_vccnz {name}_pub")
    seq(a, dma_ops(WS), extra_loads(WS))
    publish()
    trace5(a, sCS, 3, vT0, vZERO)
    a.force_wait(vm=1)
    a(f"s_branch {name}_go")
    a.label(name + "_fin")
    a.restore(([], []))
    prof_dump(a, vT0, vT1)
    publish()
    a(f"s_branch {done}")
    a.label(name + "_pub")
    a.restore(([], []))
    publish()
    trace5(a, sCS, 3, vT0, vZERO)
    a.label(name + "_poll")
    a.restore(([], []))
    a(f"s_mov_b32 s{S_SPIN}, 0")
    L = name + "_pl"
    a.label(L)
    a(f"buffer_load_dword v{vFLV}, v{vFLA}, {WS}, s{sNFL} offen sc1")
    spin_check(a, abort)
    a(f"v_cmp_eq_u32 vcc, 0, v{vFLV}")
    a(f"s_cbranch_vccz {L}d")
    if slp:
        a(f"s_sleep {slp}")
    a(f"s_branch {L}")
    a.label(L + "d")
    trace5(a, sNS, 0, vT0, vZERO)
    seq(a, dma_ops(WS), extra_loads(WS))
    a.force_wait(vm=0)
    trace5(a, sNS, 1, vT0, vZERO)
    a(f"s_branch {name}_go")
```

```python
from common import *
import os, struct

L_MEMA = 0
L_KX = 9216
ROWS = 288
L_QB = 17408
L_KB = L_QB + 8 * ROWS
L_OB = L_KB + 8 * ROWS
L_WO1 = 24576
L_W = 57344
LW_WAVE = 26624
assert L_OB + 8 * ROWS <= L_WO1 and L_W + 4 * LW_WAVE == 163840
PART_W = 2304

vL16, vIDX, vQW, vQR, vOR, vSPARE, vRLD, vRST, vL4, vLW = range(10)
vT0, vT1 = 10, 11
ACCQ, ACCK, ACCV = 12, 20, 28
VXA, VXB = 36, 40
Q = [44 + 4 * i for i in range(7)]
WR = [Q[3], Q[5]]
vSPARE2 = vRLD
WBASE = 72

sH = S_ROLE
sLAY = S_FREE
sSTEP = S_FREE + 1
sMEMR = S_FREE + 2
sMEMR8 = S_FREE + 3
sMEMW = S_FREE + 4
sMEMZ = S_FREE + 5
sPW = S_FREE + 6
sPH = S_FREE + 7
sKP = S_FREE + 8
sKF = S_FREE + 9
sVF = S_FREE + 10
sKM = S_FREE + 11
sFL = S_FREE + 12
sKMB = S_FREE + 13
sKPH = S_FREE + 34
sLATE = S_FREE + 15 - 15 + 8 + 0 if False else 87
sKMW = 86
sKMP, sKPP = 84, 85
sFMK = S_FREE + 46
sKPV = S_FREE + 24
sOFL = S_FREE + 35
sCEXP = S_FREE + 14
sMAXD = S_FREE + 22
sFAST = S_FREE + 23
sMASK = S_FREE + 18
sMLO = S_FREE + 20
sU = S_FREE + 16
sT = S_FREE + 25
sPR = sT
sJOBC = S_FREE + 30
sONES = S_FREE + 36
sM = S_FREE + 38
SRD_D = 80
S_STAMP = 80

MATS = "qkv"
D1 = [int(x) for x in os.environ.get("D1", "6,6,6").split(",")]
D2 = int(os.environ.get("D2", "2"))
R1LDW = int(os.environ.get("R1LDW", "16"))
WOD = int(os.environ.get("WOD", "3"))
RNT0 = int(os.environ.get("RNT0", "3"))
RNT = " nt" if os.environ.get("RNT") else ""
RNTO = " nt" if os.environ.get("RNTO") else ""
DL = int(os.environ["DL"]) if os.environ.get("DL") else None
DLN = int(os.environ.get("DLN", "1"))
PUBHK = int(os.environ.get("PUBHK", "0"))
KST = int(os.environ.get("KST", "0"))
VST = int(os.environ.get("VST", "0"))
S1 = int(os.environ.get("S1", "0"))
S2 = int(os.environ.get("S2", "0"))
NOPUB = int(os.environ.get("NOPUB", "0"))
NOKV = int(os.environ.get("NOKV", "0"))
PFD = int(os.environ.get("PFD", "1"))
RFREE = int(os.environ.get("RFREE", "0"))
TORD = [8, 0, 1, 2, 3, 4, 5, 6, 7]
WO_L = [(TORD[i >> 1], i & 1) for i in (0, 1, 5, 6, 10, 11, 15, 16)]


def f32bits(x):
    return struct.unpack("<I", struct.pack("<f", x))[0]


def build_frag_map():
    fm = {}
    regs = [("v", WBASE + 8 * i) for i in range(23)] + [("a", 8 * i) for i in range(32)]
    ri = 0
    for t in range(9):
        for m in MATS:
            for b in range(2):
                if m == "k" and b == 1:
                    fm[(m, b, t)] = ("l", "W", t)
                else:
                    fm[(m, b, t)] = regs[ri]; ri += 1
    n0 = n1 = 0
    for tau in range(9):
        for ks in range(2):
            if (tau, ks) in WO_L:
                if ks == 0:
                    fm[("o", tau, ks)] = ("l", "W", 9 + n0); n0 += 1
                else:
                    fm[("o", tau, ks)] = ("l", "O", n1); n1 += 1
            else:
                fm[("o", tau, ks)] = regs[ri]; ri += 1
    assert ri == 55 and n0 == 4 and n1 == 4
    return fm


FM = build_frag_map()


def opnd(loc, n=8, off=0):
    k, b = loc[0], loc[1]
    return (vr if k == "v" else ar)(b + off, n)


def lds_addr(loc, w):
    if loc[1] == "W":
        return vLW, loc[2] * 2048
    return vL16, L_WO1 + w * 8192 + loc[2] * 2048


def lw_read(dst, loc, w):
    r, off = lds_addr(loc, w)
    return [f"ds_read_b128 {vr(dst, 4)}, v{r} offset:{off}", f"ds_read_b128 {vr(dst + 4, 4)}, v{r} offset:{off + 1024}"]


def SM(acc, A, B):
    return f"v_smfmac_f32_16x16x64_bf16 {vr(acc, 4)}, {vr(A, 4)}, {B}, v{vIDX}"


def r_setup(a):
    LANE, C, G = 10, 60, 61
    WS = f"s[{SRD_WS}:{SRD_WS + 3}]"
    cexp = hex(f32bits(128 ** -0.5 * 1.4426950408889634))
    a(f"""
    v_and_b32 v{LANE}, 63, v0
    v_and_b32 v{C}, 15, v{LANE}
    v_lshrrev_b32 v{G}, 4, v{LANE}
    v_lshlrev_b32 v{vL16}, 4, v{LANE}
    v_lshlrev_b32 v{vL4}, 2, v{LANE}
    s_mul_i32 s{S_TMP}, s{S_WAVE}, {LW_WAVE}
    s_add_u32 s{S_TMP}, s{S_TMP}, {L_W}
    v_add_u32 v{vLW}, s{S_TMP}, v{vL16}
    s_mov_b32 s{sMAXD}, 0xfffffffe
    s_mov_b32 s{sCEXP}, {cexp}
    s_mov_b32 s{sCEXP + 1}, {cexp}
    s_mov_b32 s{sMASK}, 0x00ff00ff
    s_mov_b32 s{sMASK + 1}, 0x00ff00ff
    s_mov_b32 s{sMLO}, -1
    s_mov_b32 s{sMLO + 1}, 0
    s_mov_b32 s{sONES}, 0x3f803f80
    s_mov_b32 s{sONES + 1}, 0x3f803f80
    s_mov_b32 s{sPH}, 0
    v_lshrrev_b32 v63, 2, v{C}
    v_and_b32 v64, 1, v{C}
    v_lshl_add_u32 v62, v63, 1, v64
    v_bfe_u32 v65, v{C}, 1, 1
    v_mov_b32 v{vIDX}, 0x4444
    v_mov_b32 v63, 0xeeee
    v_cmp_eq_u32 vcc, 0, v65
    v_cndmask_b32 v{vIDX}, v63, v{vIDX}, vcc
    v_mul_u32_u24 v63, {2 * ROWS}, v{G}
    v_lshl_add_u32 v{vQW}, v{C}, 2, v63
    s_lshl_b32 s{S_TMP}, s{S_WAVE}, 6
    v_add_u32 v{vQW}, s{S_TMP}, v{vQW}
    v_mul_u32_u24 v63, {ROWS}, v62
    v_lshl_add_u32 v{vQR}, v{G}, 4, v63
    v_lshl_add_u32 v{vOR}, v{G}, 5, v63
    v_lshl_add_u32 v{vOR}, v65, 4, v{vOR}
    """)
    def between(sfx=""):
        a(f"v_and_b32 v12, 15, v{LANE}")
        a(f"v_lshrrev_b32 v13, 4, v{LANE}")
        WP, GO, CH = 84, 85, 86
        C, G = 12, 13
        M0A, M0B = 14, 15
        a(f"""
        s_lshr_b32 s{WP}, s{sH}, 3
        s_bfe_u32 s{GO}, s{sH}, 0x20001
        s_and_b32 s{CH}, s{sH}, 1
        s_cmp_lt_u32 s{S_WAVE}, 2
        s_cbranch_scc1 Lr_jab{sfx}
        s_lshr_b32 s{WP}, s{sH}, 1
        s_and_b32 s{WP}, s{WP}, 3
        Lr_jab{sfx}:
        s_cmp_lt_u32 s{sH}, 8
        s_cselect_b32 s{sJOBC}, 1, 0
        v_bfe_u32 v20, v{C}, 2, 1
        v_lshl_add_u32 v17, v20, 2, v{G}
        v_mul_u32_u24 v17, {PART_H}, v17
        v_lshrrev_b32 v21, 3, v{C}
        v_lshlrev_b32 v21, 2, v21
        v_and_b32 v20, 3, v{C}
        v_add_u32 v21, v21, v20
        v_lshl_add_u32 v{vRLD}, v21, 4, v17
        s_mul_i32 s{S_TMP}, s{WP}, {PART_W}
        s_lshl_b32 s{S_TMP + 1}, s{S_WAVE}, 10
        s_add_u32 s{S_TMP}, s{S_TMP}, s{S_TMP + 1}
        s_lshl_b32 s{S_TMP + 1}, s{CH}, 7
        s_add_u32 s{S_TMP}, s{S_TMP}, s{S_TMP + 1}
        s_lshl_b32 s{S_TMP + 1}, s{GO}, 8
        s_cmp_lt_u32 s{S_WAVE}, 2
        s_cselect_b32 s{S_TMP + 1}, s{S_TMP + 1}, 0
        s_add_u32 s{S_TMP}, s{S_TMP}, s{S_TMP + 1}
        v_add_u32 v{vRLD}, s{S_TMP}, v{vRLD}
        """)
        HI, RR, G1, G0 = 24, 25, 26, 27
        a(f"""
        v_bfe_u32 v{HI}, v{C}, 1, 2
        v_and_b32 v{RR}, 1, v{C}
        v_lshrrev_b32 v{G1}, 1, v{G}
        v_and_b32 v{G0}, 1, v{G}
        s_cmp_lt_u32 s{S_WAVE}, 2
        s_cbranch_scc0 Lr_jc{sfx}
        s_lshl_b32 s{S_TMP}, s{S_WAVE}, 2
        v_add_u32 v18, s{S_TMP}, v{HI}
        v_lshlrev_b32 v{vRST}, 10, v18
        v_lshl_add_u32 v19, v{G0}, 1, v{RR}
        s_lshl_b32 s{S_TMP}, s{WP}, 4
        s_lshl_b32 s{S_TMP + 1}, s{GO}, 2
        s_add_u32 s{S_TMP}, s{S_TMP}, s{S_TMP + 1}
        v_add_u32 v19, s{S_TMP}, v19
        v_lshl_add_u32 v{vRST}, v19, 4, v{vRST}
        s_lshl_b32 s{S_TMP}, s{CH}, 1
        v_add_u32 v19, s{S_TMP}, v{G1}
        v_lshl_add_u32 v{vRST}, v19, 2, v{vRST}
        s_lshl_b32 s{S_TMP}, s{GO}, 1
        v_add_u32 v19, s{S_TMP}, v{RR}
        v_mul_u32_u24 v19, 576, v19
        v_lshl_add_u32 v19, v18, 4, v19
        v_lshl_add_u32 v19, v{G}, 1, v19
        s_mul_i32 s{S_TMP}, s{WP}, 144
        s_lshl_b32 s{S_TMP + 1}, s{CH}, 3
        s_add_u32 s{S_TMP}, s{S_TMP}, s{S_TMP + 1}
        v_add_u32 v19, s{S_TMP}, v19
        v_lshlrev_b32 v{M0A}, 1, v19
        v_add_u32 v{M0B}, 2, v{M0A}
        s_branch Lr_jd{sfx}
        Lr_jc{sfx}:
        s_lshl_b32 s{S_TMP}, s{CH}, 1
        v_add_u32 v18, s{S_TMP}, v{G1}
        v_lshlrev_b32 v19, 2, v18
        v_lshl_add_u32 v19, v{G0}, 1, v19
        v_add_u32 v19, v19, v{RR}
        s_lshl_b32 s{S_TMP}, s{WP}, 4
        v_add_u32 v19, s{S_TMP}, v19
        v_lshlrev_b32 v{vRST}, 4, v19
        v_lshl_add_u32 v{vRST}, v{HI}, 2, v{vRST}
        v_add_u32 v{vRST}, 8192, v{vRST}
        v_lshl_add_u32 v19, v18, 1, v{RR}
        v_mul_u32_u24 v19, 576, v19
        v_lshl_add_u32 v19, v{G0}, 3, v19
        v_add_u32 v19, v19, v{HI}
        s_mul_i32 s{S_TMP}, s{WP}, 144
        s_add_u32 s{S_TMP}, s{S_TMP}, 128
        v_add_u32 v19, s{S_TMP}, v19
        v_lshlrev_b32 v{M0A}, 1, v19
        v_add_u32 v{M0B}, 8, v{M0A}
        Lr_jd{sfx}:
        """)
        a(f"""
        s_mul_i32 s{sU}, s{sLAY}, {RING_TEAM}
        s_add_u32 s{sU}, s{sU}, {WS_RING}
        s_lshl_b32 s{S_TMP + 1}, s{S_WAVE}, 11
        s_lshl_b32 s{S_TMP + 2}, s{S_WAVE}, 8
        s_add_u32 s{S_TMP + 2}, s{S_TMP + 2}, 8192
        s_mul_i32 s{S_TMP}, s{sH}, {PART_H}
        s_add_u32 s{S_TMP}, s{S_TMP}, s{sU}
        s_mul_i32 s{sPW}, s{S_WAVE}, {PART_W}
        s_add_u32 s{sPW}, s{sPW}, s{S_TMP}
        s_add_u32 s{sMEMZ}, s{sU}, {MEMB_OFF}
        s_xor_b32 s{sMEMW}, s{sMEMZ}, {MEMB_SLOT}
        s_add_u32 s{sMEMR}, s{sMEMZ}, s{S_TMP + 1}
        s_add_u32 s{sMEMR8}, s{sMEMZ}, s{S_TMP + 2}
        s_mul_i32 s{S_TMP}, s{sLAY}, {3 * QKV_M}
        s_lshl_b32 s{S_TMP + 2}, s{sH}, 13
        s_add_u32 s{S_TMP}, s{S_TMP}, s{S_TMP + 2}
        s_add_u32 s{sKP}, s{S_TMP}, {WS_QKV + QKV_M + PFD * 32 * 8192}
        s_add_u32 s{S_TMP}, s{S_TMP}, s{S_TMP + 1}
        s_add_u32 s{sKF}, s{S_TMP}, {WS_QKV + QKV_M}
        s_add_u32 s{sVF}, s{S_TMP}, {WS_QKV + 2 * QKV_M}
        s_mul_i32 s{S_TMP}, s{sLAY}, {KM_D * 32 * KM_UNIT}
        s_lshl_b32 s{S_TMP + 2}, s{sH}, 12
        s_add_u32 s{S_TMP}, s{S_TMP}, s{S_TMP + 2}
        s_lshl_b32 s{S_TMP + 2}, s{S_WAVE}, 9
        s_add_u32 s{S_TMP}, s{S_TMP}, s{S_TMP + 2}
        s_add_u32 s{sKMB}, s{S_TMP}, {WS_KM}
        s_mov_b32 s{sKMW}, s{S_TMP + 2}
        s_mov_b32 s{sKM}, s{sKMB}
        s_mov_b32 s{sKPH}, 0
        s_mov_b32 s{sOFL}, {WS_FLAGS + FL_XA + (NSEG - (KM_D - 1)) * FL_STRIDE}
        s_mov_b32 s{sFMK}, 0xff
        s_mov_b32 s{sFMK + 1}, 0
        s_mul_i32 s{S_TMP}, s{sLAY}, {NSEG * FL_STRIDE}
        s_lshl_b32 s{S_TMP + 2}, s{sH}, 9
        s_add_u32 s{S_TMP}, s{S_TMP}, s{S_TMP + 2}
        s_add_u32 s{sFL}, s{S_TMP}, {WS_FLAGS + FL_QKV}
        s_mov_b32 s{sSTEP}, 0
        """)
        srd(a, 88, KA_MEM0, 9216)
        A_ = "s[88:91]"
        a(f"""
        s_cmp_eq_u32 s{S_WAVE}, 3
        s_cbranch_scc1 Lr_mem0_done{sfx}
        s_cmp_lt_u32 s{S_WAVE}, 2
        s_cselect_b32 s{S_TMP}, 1, s{sJOBC}
        s_cmp_eq_u32 s{S_TMP}, 0
        s_cbranch_scc1 Lr_mem0_done{sfx}
        s_mov_b64 exec, s[{sMASK}:{sMASK + 1}]
        buffer_load_ushort v20, v{M0A}, {A_}, 0 offen
        buffer_load_ushort v21, v{M0B}, {A_}, 0 offen
        v_lshl_or_b32 v20, v21, 16, v20
        v_min_u32 v20, s{sMAXD}, v20
        buffer_store_dword v20, v{vRST}, {WS}, s{sMEMZ} offen sc1
        v_mov_b32 v20, -1
        buffer_store_dword v20, v{vRST}, {WS}, s{sMEMW} offen sc1
        s_mov_b64 exec, -1
        Lr_mem0_done{sfx}:
        v_mov_b32 v20, 1
        v_mov_b32 v21, 1
        v_mov_b32 v22, 1
        v_mov_b32 v23, 1
        s_xor_b32 s{S_TMP}, s{sPW}, {PART_SLOT}
        """)
        for sreg in (sPW, S_TMP):
            for i in range(2):
                a(f"buffer_store_dwordx4 v[20:23], v{vL16}, {WS}, s{sreg} offen offset:{1024 * i} sc1")
            a(f"buffer_store_dword v20, v{vL4}, {WS}, s{sreg} offen offset:2048 sc1")
        a(f"v_lshrrev_b32 v17, 1, v{vL16}")
        a(f"s_mov_b32 s{S_TMP}, s{sKMB}")
        for i in range(KM_D):
            a(f"buffer_store_dwordx2 v[20:21], v17, {WS}, s{S_TMP} offen offset:2048 sc1")
            a(f"s_mov_b64 exec, s[{sMLO}:{sMLO + 1}]")
            a(f"buffer_store_dwordx4 v[20:23], v{vL16}, {WS}, s{S_TMP} offen sc1")
            a(f"s_mov_b64 exec, -1")
            a(f"s_add_u32 s{S_TMP}, s{S_TMP}, {32 * KM_UNIT}")
        a(f"""
        s_cmp_lg_u32 s{S_WAVE}, 3
        s_cbranch_scc1 Lr_not_w3{sfx}
        v_and_b32 v{vRST}, 12, v{vL4}
        v_and_b32 v17, 4, v{LANE}
        v_lshl_add_u32 v{vRST}, v17, 5, v{vRST}
        s_add_u32 s{S_TMP}, s{sFL}, {(384 - (KM_D - 1 - 3) * FL_STRIDE) & 0xffffffff}
        s_cmp_eq_u32 s{sLAY}, 0
        s_cselect_b32 s{sOFL}, s{sOFL}, s{S_TMP}
        s_add_u32 s{S_TMP}, s{sFL}, {FL_STRIDE + 128}
        s_min_u32 s{S_TMP + 1}, s{S_TMP}, s{sOFL}
        s_sub_u32 s{S_TMP}, s{S_TMP}, s{S_TMP + 1}
        v_add_u32 v{vRST}, s{S_TMP}, v{vRST}
        s_sub_u32 s{S_TMP}, s{sOFL}, s{S_TMP + 1}
        v_mov_b32 v17, s{S_TMP}
        v_cmp_gt_u32 vcc, 8, v{LANE}
        v_cndmask_b32 v{vRST}, v17, v{vRST}, vcc
        s_mov_b32 s{sOFL}, s{S_TMP + 1}
        Lr_not_w3{sfx}:
        v_lshlrev_b32 v{vSPARE}, 3, v{vL16}
        s_add_u32 s{sKPV}, s{sKP}, {QKV_M}
        """)
    if R1LDW:
        a(f"s_cmp_eq_u32 s{sLAY}, 0")
        a("s_cbranch_scc1 Lr_noord")
        if GATE0 & 1:
            dbg_wait(a, DB_STEP0, 1, 63, 64, "Lr_abort", "Lr_ord", 32)
        else:
            dbg_wait(a, DB_LOADED, R1LDW, 63, 64, "Lr_abort", "Lr_ord", 32)
        a.label("Lr_noord")
    if RNT0:
        a(f"s_cmp_lg_u32 s{sLAY}, 0")
        a("s_cbranch_scc1 Lr_ld1")
        sn = a.snap()
        load_weights(a, LANE, C, G, between, " nt" if RNT0 & 1 else "", " nt" if RNT0 & 2 else "", "a")
        a("s_branch Lr_ldd")
        a.label("Lr_ld1")
        a.restore(sn)
        load_weights(a, LANE, C, G, between, "", "", "b")
        a.label("Lr_ldd")
    else:
        load_weights(a, LANE, C, G, between)
    a(f"s_add_u32 s{S_TMP}, s{sLAY}, s{S_WAVE}")
    a(f"s_cmp_lg_u32 s{S_TMP}, 0")
    a("s_cbranch_scc1 Lr_nold")
    dbg_add(a, DB_LOADED, 63, 64)
    a.label("Lr_nold")
    for i in range(4):
        a(f"s_add_u32 s{sPR + i}, s{sU}, {i * 8 * PART_H}")
    if PUBHK:
        a(f"s_sub_u32 s{sKMB}, s{sKMB}, s{sKMW}")
        a(f"s_mov_b32 s{sKM}, s{sKMB}")
        a(f"s_lshl_b32 s{sKMP}, s{sLAY}, 5")
        a(f"s_add_u32 s{sKMP}, s{sKMP}, s{sH}")
        a(f"s_lshl_b32 s{sKMP}, s{sKMP}, 12")
        a(f"s_add_u32 s{sKMP}, s{sKMP}, {WS_DUMMY}")
        a(f"s_mov_b32 s{sKPP}, 0")


def load_weights(a, LANE, C, G, between, RNT=RNT, RNTO=RNTO, sfx=""):
    srd(a, SRD_A, KA_WQ, 576 * 8192)
    srd(a, SRD_B, KA_WK, 576 * 8192)
    srd(a, SRD_C, KA_WV, 576 * 8192)
    srd(a, SRD_D, KA_BWO, 4096 * 1152)
    SR = {"q": SRD_A, "k": SRD_B, "v": SRD_C}
    GA, GB, G8A, G8B, TR0, TR1, TRA, TRB, TRW = 62, 63, 64, 65, 66, 67, 68, 69, 70
    WA = 50
    sRow, sLB, sWo = sT, sT + 1, sT + 2
    a(f"""
    v_lshlrev_b32 v71, 1, v{G}
    v_xor_b32 v71, v71, v{C}
    v_lshlrev_b32 v71, 4, v71
    v_lshl_add_u32 v{GA}, v{G}, 13, v71
    v_xor_b32 v{GB}, 128, v{GA}
    v_lshrrev_b32 v{G8A}, 1, v{G}
    v_lshlrev_b32 v{G8A}, 3, v{G8A}
    v_and_b32 v{G8B}, 1, v{G}
    v_lshl_add_u32 v{G8A}, v{G8B}, 2, v{G8A}
    v_lshl_add_u32 v{G8A}, v{G8A}, 13, v71
    v_xor_b32 v{G8B}, 128, v{G8A}
    s_mul_i32 s{sRow}, s{S_WAVE}, {144 * 8192}
    s_lshl_b32 s{S_TMP}, s{sH}, 8
    s_add_u32 s{sRow}, s{sRow}, s{S_TMP}
    s_lshl_b32 s{sLB}, s{S_WAVE}, 12
    """)
    a(f"""
    v_lshrrev_b32 v71, 2, v{C}
    v_lshl_add_u32 v{TR0}, v{G}, 3, v71
    v_lshlrev_b32 v{TR0}, 8, v{TR0}
    v_bfe_u32 v{TR1}, v{C}, 1, 1
    s_lshl_b32 s{S_TMP}, s{S_WAVE}, 2
    v_add_u32 v{TR1}, s{S_TMP}, v{TR1}
    v_lshlrev_b32 v71, 1, v71
    v_xor_b32 v{TR1}, v{TR1}, v71
    v_and_b32 v71, 1, v{G}
    v_lshlrev_b32 v71, 3, v71
    v_xor_b32 v{TR1}, v{TR1}, v71
    v_and_b32 v71, 1, v{C}
    v_lshl_add_u32 v{TR0}, v71, 3, v{TR0}
    v_xor_b32 v71, 2, v{TR1}
    v_lshl_add_u32 v{TR1}, v71, 4, v{TR0}
    v_xor_b32 v71, 2, v71
    v_lshl_add_u32 v{TR0}, v71, 4, v{TR0}
    """)
    tiles = [(m, t) for t in range(9) for m in MATS]
    wo_regs = [FM[k] for k in FM if k[0] == "o" and FM[k][0] != "l"]
    park = {}
    for t in range(9):
        park[("k", 1, t)] = wo_regs[t]
    NT = len(tiles)

    def slot(i):
        return ((i + 3) % 10) * 16384

    def dma(i):
        m, t = tiles[i]
        S = f"s[{SR[m]}:{SR[m] + 3}]"
        for j in range(4):
            a(f"s_add_u32 m0, s{sLB}, {slot(i) + j * 1024}")
            if t < 8:
                a(f"s_add_u32 s{S_TMP}, s{sRow}, {(16 * t + 4 * j) * 8192}")
                g = GA if j < 2 else GB
            else:
                a(f"s_add_u32 s{S_TMP}, s{sRow}, {(128 + j) * 8192}")
                g = G8A if j < 2 else G8B
            a(f"buffer_load_dwordx4 v{g}, {S}, s{S_TMP} offen{RNT} lds")

    stages = [(ks, hf, qq) for ks in range(2) for hf in range(2) for qq in range(2)]
    STG = 18432

    def wo_prep():
        for j in range(5):
            a(f"v_add_u32 v71, {64 * j}, v{LANE}")
            a(f"v_mul_u32_u24 v59, {(65536 + 71) // 72}, v71")
            a(f"v_lshrrev_b32 v59, 16, v59")
            a(f"v_mul_u32_u24 v60, 72, v59")
            a(f"v_sub_u32 v71, v71, v60")
            a(f"v_and_b32 v60, 1, v59")
            a(f"v_lshlrev_b32 v60, 4, v60")
            a(f"v_lshrrev_b32 v59, 1, v59")
            a(f"v_lshl_add_u32 v60, v59, 2, v60")
            a(f"v_mul_u32_u24 v60, 1152, v60")
            a(f"v_lshl_add_u32 v{WA + j}, v71, 4, v60")
        a(f"""
        s_lshr_b32 s{S_TMP}, s{S_WAVE}, 1
        s_lshl_b32 s{S_TMP}, s{S_TMP}, 3
        s_and_b32 s{S_TMP + 1}, s{S_WAVE}, 1
        s_lshl_b32 s{S_TMP + 1}, s{S_TMP + 1}, 1
        s_add_u32 s{S_TMP}, s{S_TMP}, s{S_TMP + 1}
        s_lshl_b32 s{S_TMP + 1}, s{sH}, 7
        s_add_u32 s{S_TMP}, s{S_TMP}, s{S_TMP + 1}
        s_mul_i32 s{sWo}, s{S_TMP}, 1152
        s_mul_i32 s{sT + 3}, s{S_WAVE}, {4 * 1152}
        """)

    def wo_dma(z):
        ks, hf, qq = stages[z]
        base = (z % 3) * STG
        W_ = f"s[{SRD_D}:{SRD_D + 3}]"
        a(f"s_add_u32 s{S_TMP}, s{sWo}, {(64 * ks + 32 * hf + qq) * 1152}")
        for j in range(5):
            a(f"s_add_u32 m0, s{sT + 3}, {base + j * 1024}")
            if j == 4:
                a(f"s_mov_b64 exec, s[{sMLO}:{sMLO + 1}]")
            else:
                a("s_nop 0")
            a(f"buffer_load_dwordx4 v{WA + j}, {W_}, s{S_TMP} offen{RNTO} lds")
        a("s_mov_b64 exec, -1")

    a(f"""
    v_lshrrev_b32 v71, 2, v{C}
    v_lshl_add_u32 v{TRW}, v{G}, 2, v71
    v_mul_u32_u24 v{TRW}, 1152, v{TRW}
    v_and_b32 v71, 3, v{C}
    v_lshl_add_u32 v{TRW}, v71, 3, v{TRW}
    s_mul_i32 s{S_TMP}, s{S_WAVE}, 288
    v_add_u32 v{TRW}, s{S_TMP}, v{TRW}
    """)
    wo_prep()
    vq = []
    issued = [0]
    done_at = {}

    def issue(kind, i):
        if kind == "t":
            dma(i); issued[0] += 4
        else:
            wo_dma(i); issued[0] += 5
        done_at[(kind, i)] = issued[0]

    for i in range(9):
        issue("t", i)
    between(sfx)
    nxt_t, nxt_z = 9, 0
    for i in range(NT):
        a.force_wait(vm=min(63, issued[0] - done_at[("t", i)]))
        a("s_barrier")
        if i == 0:
            a(f"s_cmp_lg_u32 s{S_WAVE}, 0")
            a(f"s_cbranch_scc1 Lr_noadd{sfx}")
            a(f"s_lshl_b32 s{S_TMP}, s{sLAY}, 2")
            a(f"s_add_u32 s{S_TMP}, s{S_TMP}, {DB_TEAM}")
            dbg_add(a, f"s{S_TMP}", 48, 49)
            a.label(f"Lr_noadd{sfx}")
        if i >= 1 and nxt_t < NT:
            assert slot(nxt_t) == slot(i - 1) or nxt_t == 9
            issue("t", nxt_t); nxt_t += 1
        elif i == 0:
            issue("t", nxt_t); nxt_t += 1
        elif i >= 21 and nxt_z < 3:
            issue("z", nxt_z); nxt_z += 1
        m, t = tiles[i]
        a(f"v_add_u32 v{TRA}, {slot(i)}, v{TR0}")
        a(f"v_add_u32 v{TRB}, {slot(i)}, v{TR1}")
        for b in range(2):
            loc = park.get((m, b, t), FM[(m, b, t)])
            for q in range(4):
                a(f"ds_read_b64_tr_b16 {opnd(loc, 2, 2 * q)}, v{(TRA, TRB)[b]} offset:{(32 * (q >> 1) + 4 * (q & 1)) * 256}")
        a.wait(lg=0)
    assert nxt_t == NT and nxt_z == 3
    a("s_barrier")
    for t in range(9):
        loc = park[("k", 1, t)]
        a(f"ds_write_b128 v{vLW}, {opnd(loc, 4)} offset:{t * 2048}")
        a(f"ds_write_b128 v{vLW}, {opnd(loc, 4, 4)} offset:{t * 2048 + 1024}")
    a.wait(lg=0)
    PK = 12
    for z in range(8):
        ks, hf, qq = stages[z]
        a.force_wait(vm=min(63, issued[0] - done_at[("z", z)]))
        a("s_barrier")
        if z >= 1 and nxt_z < 8:
            assert nxt_z % 3 == (z - 1) % 3
            issue("z", nxt_z); nxt_z += 1
        q = 2 * hf + qq
        np_ = 0
        for tau in range(9):
            loc = FM[("o", tau, ks)]
            if loc[0] == "l":
                loc = ("v", PK + 8 * np_); np_ += 1
            a(f"ds_read_b64_tr_b16 {opnd(loc, 2, 2 * q)}, v{TRW} offset:{(z % 3) * STG + 32 * tau}")
        a.wait(lg=0)
        if z == 3:
            np_ = 0
            for tau in range(9):
                loc = FM[("o", tau, 0)]
                if loc[0] == "l":
                    a(f"ds_write_b128 v{vLW}, {vr(PK + 8 * np_, 4)} offset:{loc[2] * 2048}")
                    a(f"ds_write_b128 v{vLW}, {vr(PK + 8 * np_ + 4, 4)} offset:{loc[2] * 2048 + 1024}")
                    np_ += 1
            a.wait(lg=0)
    a("s_barrier")
    a(f"s_lshl_b32 s{S_TMP}, s{S_WAVE}, 13")
    a(f"v_add_u32 v71, s{S_TMP}, v{vL16}")
    np_ = 0
    for tau in range(9):
        loc = FM[("o", tau, 1)]
        if loc[0] == "l":
            a(f"ds_write_b128 v71, {vr(PK + 8 * np_, 4)} offset:{L_WO1 + loc[2] * 2048}")
            a(f"ds_write_b128 v71, {vr(PK + 8 * np_ + 4, 4)} offset:{L_WO1 + loc[2] * 2048 + 1024}")
            np_ += 1
    a.force_wait(vm=0, lg=0)
    a("s_barrier")


def flag_wait_kv(a, name, soff_extra, abort):
    if RFREE:
        return
    L = a.newlabel(name)
    a(f"s_mov_b32 s{S_SPIN}, 0")
    a(f"s_add_u32 s{S_TMP}, s{sFL}, {soff_extra + 128}")
    a(f"v_and_b32 v{vT1}, 16, v{vL4}")
    a(f"v_lshlrev_b32 v{vT1}, 3, v{vT1}")
    a(f"v_and_or_b32 v{vT1}, v{vL4}, 12, v{vT1}")
    a.label(L)
    a(f"buffer_load_dword v{vT0}, v{vT1}, s[{SRD_WS}:{SRD_WS + 3}], s{S_TMP} offen sc1")
    spin_check(a, abort)
    a(f"v_cmp_eq_u32 vcc, 0, v{vT0}")
    a(f"s_cbranch_vccz {L}d")
    a("s_sleep 4")
    a(f"s_branch {L}")
    a.label(L + "d")


def r_loop(a, w, fast, abort, done, stamps=False):
    sc = "" if fast else " sc1"
    pfx = f"Lr{w}{'f' if fast else 's'}_"
    WS = f"s[{SRD_WS}:{SRD_WS + 3}]"
    NST = 10
    HK = (w == 3)
    order = [2 * w, 2 * w + 1] + [t for t in range(8) if t >> 1 != w] + [8]

    STSEL = [int(x) for x in os.environ.get("STSEL", "0,1,2,3,4,5,6,7,8,9,10").split(",")]

    def stamp(i):
        if i not in STSEL:
            return
        if stamps == 2 or (stamps and i == NST):
            a(f"s_memrealtime s[{S_STAMP + 2 * i}:{S_STAMP + 1 + 2 * i}]")
        elif stamps:
            a(f"s_memtime s[{S_STAMP + 2 * i}:{S_STAMP + 1 + 2 * i}]")

    def dump_stamps():
        if stamps:
            a.force_wait(lg=0)
            for i in range(NST + 1):
                a(f"v_writelane_b32 v{vT1}, s{S_STAMP + 2 * i}, {i}")
            a(f"v_writelane_b32 v{vT1}, s3, 11")
            a(f"v_writelane_b32 v{vT1}, s4, 12")
            a(f"s_lshl_b32 s{S_TMP}, s{sLAY}, 5")
            a(f"s_add_u32 s{S_TMP}, s{S_TMP}, s{sH}")
            a(f"s_lshl_b32 s{S_TMP}, s{S_TMP}, 6")
            a(f"s_add_u32 s{S_TMP}, s{S_TMP}, s{sSTEP}")
            a(f"s_lshl_b32 s{S_TMP}, s{S_TMP}, 8")
            a(f"s_add_u32 s{S_TMP}, s{S_TMP}, {WS_END + w * 64}")
            a(f"s_mov_b64 exec, 0x1fff")
            a(f"buffer_store_dword v{vT1}, v{vL4}, {WS}, s{S_TMP} offen")
            a(f"s_mov_b64 exec, -1")

    def zero(base, n):
        return [f"v_mov_b64 {vr(base + 2 * i, 2)}, 0" for i in range(n // 2)]

    def seq(*items):
        for it in items:
            if isinstance(it, (list, tuple)):
                seq(*it)
            elif callable(it):
                it()
            elif it:
                a(it)

    cont = {}

    def ld(dst, name, text):
        def f():
            a(text)
            cont[dst] = name
        return f

    def use(reg, name):
        assert cont.get(reg) == name, (w, reg, name, cont.get(reg))

    tails = []

    def M(i):
        return f"s[{sM + 2 * i}:{sM + 2 * i + 1}]"

    def poll(name, loads, checks, between=None, issued=0, work=None, slp=0):
        n = len(loads)
        L = pfx + name
        if not issued:
            seq(loads)
        seq(work)
        a(f"s_mov_b32 s{S_SPIN}, 0")
        for i in range(n):
            a(f"s_mov_b64 {M(i)}, 0")
        a.label(L)
        a.auto = False
        for i in range(n):
            a(f"s_mov_b64 exec, {M(i)}")
            a(loads[i])
        a("s_mov_b64 exec, -1")
        spin_check(a, abort)
        for i in range(n):
            a.force_wait(vm=2 * n - 1 - i)
            seq(checks[i])
            if between:
                seq(between[i])
            if i >= 2:
                a(f"s_or_b64 vcc, {M(0) if i == 2 else 'vcc'}, {M(i - 1)}")
        a(f"s_or_b64 vcc, vcc, {M(n - 1)}")
        if slp:
            a(f"s_cbranch_scc1 {L}r")

            def retry():
                a.label(L + "r")
                a.reset_window()
                a(f"s_sleep {slp}")
                a(f"s_branch {L}")
            tails.append(retry)
        else:
            a(f"s_cbranch_scc1 {L}")
        a.auto = True
        a.vmq = [(frozenset(), "pollx")] * n

    def chk4(q, i):
        return [f"v_max3_u32 v{vT1}, v{q}, v{q + 1}, v{q + 2}", f"v_max_u32 v{vT1}, v{vT1}, v{q + 3}",
                f"v_cmp_eq_u32 {M(i)}, -1, v{vT1}"]

    ACC = {"q": ACCQ, "k": ACCK, "v": ACCV}

    def A_read(dst, t):
        return ld(dst, ("A", t), f"ds_read_b128 {vr(dst, 4)}, v{vL16} offset:{L_MEMA + t * 1024}")

    def LW(buf, key):
        r = lw_read(buf, FM[key], w)
        return [ld(buf, ("W", key), r[0]), ld(buf + 4, ("W2", key), r[1])]

    def S(m, b, t, A, buf=None):
        def f():
            use(A, ("A", t))
            loc = FM[(m, b, t)]
            if loc[0] == "l":
                use(buf, ("W", (m, b, t))); use(buf + 4, ("W2", (m, b, t)))
                B = vr(buf, 8)
            else:
                B = opnd(loc)
            a(SM(ACC[m] + 4 * b, A, B))
        return f

    def qB(dst, j):
        return ld(dst, ("qB", j), f"ds_read_b128 {vr(dst, 4)}, v{vQR} offset:{L_QB + j * 64}")

    def kmA(dst, j):
        return ld(dst, ("km", j), f"ds_read_b128 {vr(dst, 4)}, v{vQR} offset:{L_KB + j * 64}")

    def KX(dst, j, tt):
        return ld(dst, ("KX", j, tt), f"ds_read_b128 {vr(dst, 4)}, v{vL16} offset:{L_KX + (j * 2 + tt) * 1024}")

    def MF(acc, A, B, first, ea=None, eb=None):
        def f():
            if ea is not None:
                use(A, ea)
            if eb is not None:
                use(B, eb)
            a(f"v_mfma_f32_16x16x32_bf16 {vr(acc, 4)}, {vr(A, 4)}, {vr(B, 4)}, {'0' if first else vr(acc, 4)}")
        return f

    def MF16(acc, A, B):
        return f"v_mfma_f32_16x16x16_bf16 {vr(acc, 4)}, {vr(A, 2)}, {vr(B, 2)}, {vr(acc, 4)}"

    def xe(acc):
        X, Y = acc, acc + 4
        return [f"v_add_f32 v{X}, v{X}, v{X + 2}", f"v_add_f32 v{Y}, v{Y}, v{Y + 2}",
                f"v_add_f32 v{X + 1}, v{X + 1}, v{X + 3}", f"v_add_f32 v{Y + 1}, v{Y + 1}, v{Y + 3}",
                f"v_cvt_pk_bf16_f32 v{X + 2}, v{X}, v{Y}",
                f"v_cvt_pk_bf16_f32 v{X + 3}, v{X + 1}, v{Y + 1}"]

    def kdma(i):
        if NOKV & 1:
            return None
        return lambda: a(f"buffer_load_dwordx4 v{vL16}, {WS}, s{sKF} offen offset:{1024 * i} lds", tag="kdma")

    def flag_sample():
        if not RFREE:
            a(f"buffer_load_dword v{vRLD}, v{vRST}, {WS}, s{sOFL} offen sc1")

    def flag_check_prefetch():
        if not RFREE:
            a(f"v_cmp_eq_u32 vcc, 0, v{vRLD}")
            a(f"s_and_b64 vcc, vcc, s[{sFMK}:{sFMK + 1}]")
            a(f"s_cbranch_scc1 {pfx}flbad")
            wn = list(a.win)

            def flbad():
                a.label(pfx + "flbad")
                a.win = wn
                a.restore(([], []))
                a(f"s_cmp_eq_u32 s{sSTEP}, {NSEG - 1}")
                a(f"s_cbranch_scc1 {pfx}flok")
                a(f"s_mov_b32 s{S_SPIN}, 0")
                a.label(pfx + "flp")
                a(f"buffer_load_dword v{vRLD}, v{vRST}, {WS}, s{sOFL} offen sc1")
                spin_check(a, abort)
                a(f"v_cmp_eq_u32 vcc, 0, v{vRLD}")
                a(f"s_and_b64 vcc, vcc, s[{sFMK}:{sFMK + 1}]")
                a(f"s_cbranch_scc1 {pfx}flp")
                a(f"s_branch {pfx}flok")
            tails.append(flbad)
            a.label(pfx + "flok")
        if NOKV & 2:
            return
        a(f"s_mov_b32 m0, {L_OB + 8 * ROWS}")
        a("s_nop 0")
        a(f"buffer_load_dword v{vSPARE}, {WS}, s{sKP} offen lds", tag="pf")
        a(f"buffer_load_dword v{vSPARE}, {WS}, s{sKPV} offen lds", tag="pf")
        a(f"s_mov_b32 m0, {L_KX + w * 2048}")

    AO0, AO1, A8 = Q[0], Q[1], vT0
    loads2 = [f"buffer_load_dwordx4 {vr(AO0, 4)}, v{vL16}, {WS}, s{sMEMR} offen sc1",
              f"buffer_load_dwordx4 {vr(AO1, 4)}, v{vL16}, {WS}, s{sMEMR} offen offset:1024 sc1",
              f"buffer_load_dword v{A8}, v{vL4}, {WS}, s{sMEMR8} offen sc1"]

    PQ = ACCV + 4

    def pub_rd():
        if w < 2:
            return [f"v_lshrrev_b32 v{vT1}, 8, v{vL16}", f"v_mul_u32_u24 v{vT1}, {ROWS}, v{vT1}",
                    f"v_and_b32 v{PQ}, 0xf0, v{vL16}", f"v_add_u32 v{vT1}, v{vT1}, v{PQ}",
                    f"ds_read_b128 {vr(PQ, 4)}, v{vT1} offset:{L_KB + 4 * ROWS * w}"]
        return [f"ds_read_b128 {vr(PQ, 4)}, v{vL16} offset:{L_QB + 1024 * (w - 2)}"]

    def pub_st():
        ops = [f"v_bfi_b32 v{PQ}, 1, s{sKPP}, v{PQ}"] if w < 2 else []
        return ops + [f"buffer_store_dwordx4 {vr(PQ, 4)}, v{vL16}, {WS}, s{sKMP} offen offset:{1024 * w} sc1"]
    def pre_step():
        seq(LW(WR[0], ("k", 1, order[0])), LW(WR[1], ("k", 1, order[1])), zero(ACCQ, 20 if PUBHK == 2 else 24))
        if PUBHK == 2:
            seq(pub_rd())

    if HK:
        flag_wait_kv(a, pfx + "fw", 0, abort)
    a("s_barrier")
    a(f"s_mov_b32 m0, {L_KX + w * 2048}")
    a("s_nop 0")
    seq(kdma(0), kdma(1))
    a(f"s_add_u32 s{sKF}, s{sKF}, {32 * 8192}")
    a.wait(vm=0)
    seq(loads2)
    pre_step()
    a.wait(lg=0)
    head = pfx + "step"
    a.label(head)
    head_cont = dict(cont)
    poll("p2", loads2, [chk4(AO0, 0), chk4(AO1, 1), [f"v_cmp_eq_u32 {M(2)}, -1, v{A8}"]], issued=1, slp=S2)
    if DL is not None and not HK:
        a(f"s_mov_b32 s{sLATE}, s{S_SPIN}")
    cont[AO0] = ("A", order[0]); cont[AO1] = ("A", order[1])
    stamp(0)
    if stamps:
        a(f"s_mov_b32 s4, s{S_SPIN}")
    ring = [Q[0], Q[1], Q[2], VXA, VXB, Q[2], Q[0], Q[1], Q[2]]

    def Ap(p):
        return ring[p]

    def qk(p, which):
        t = order[p]
        m, b = which
        return S(m, b, t, Ap(p), WR[p & 1])
    def run(slots):
        for mf, fl in slots:
            seq(mf, fl)

    def lwh(p, half):
        return LW(WR[p & 1], ("k", 1, order[p]))[half]
    run([(qk(0, ("q", 0)), [f"ds_write_b128 v{vL16}, {vr(AO0, 4)} offset:{L_MEMA + order[0] * 1024}"]),
         (qk(0, ("q", 1)), [f"ds_write_b128 v{vL16}, {vr(AO1, 4)} offset:{L_MEMA + order[1] * 1024}"]),
         (qk(0, ("k", 0)), [f"ds_write_b32 v{vL4}, v{A8} offset:{L_MEMA + 8192 + w * 256}"]),
         (qk(0, ("k", 1)), [])])
    a.barrier(lg=0)
    seq(A_read(Ap(2), order[2]))
    fl = {4: A_read(Ap(3), order[3]), 5: lwh(2, 0), 6: lwh(2, 1), 7: A_read(Ap(4), order[4]),
          9: lwh(3, 0), 10: lwh(3, 1), 12: A_read(Ap(5), order[5]),
          (16 if not VST else (16, 27, 31, 16)[w]): f"buffer_load_dwordx4 {vr(VXA, 4)}, v{vL16}, {WS}, s{sVF} offen",
          (20 if not VST else (20, 28, 32, 27)[w]): f"buffer_load_dwordx4 {vr(VXB, 4)}, v{vL16}, {WS}, s{sVF} offen offset:1024",
          19: [lambda: a.wait_tag("pollx"), A_read(Ap(6), order[6])], 23: A_read(Ap(7), order[7]), 24: A_read(Ap(8), order[8])}
    for p in range(4, 9):
        fl[4 * p - 3] = lwh(p, 0)
        fl[4 * p - 2] = lwh(p, 1)
    tail = [(7, ("q", 0)), (7, ("q", 1)), (8, ("q", 0)), (8, ("q", 1)), (7, ("k", 0)), (7, ("k", 1)), (8, ("k", 0)), (8, ("k", 1))]
    spine = [(p, mb) for p in range(7) for mb in (("q", 0), ("q", 1), ("k", 0), ("k", 1))] + tail
    if NOKV & 4:
        fl[16] = fl[20] = None
    qe, ke = xe(ACCQ), xe(ACCK)
    SX, SMm, X4 = ACCQ, ACCK + 4, ACCK
    fl[33] = [KX(Q[5], 0, 0), qe[0]]
    fl[34] = [KX(Q[6], 0, 1), qe[1]]
    fl[35] = [KX(Q[3], 1, 0), qe[2], qe[3], qe[4], qe[5]]
    if PUBHK == 2:
        fl[27] = [fl.get(27)] + pub_st()
        fl[28] = [fl.get(28)] + zero(PQ, 4)
    if HK:
        fl[8] = [fl.get(8), flag_sample]
    for sl in range(4, 36):
        p, mb = spine[sl]
        seq(qk(p, mb), fl.get(sl))
        if sl == 7:
            stamp(1)
    seq(f"ds_write_b32 v{vQW}, v{ACCQ + 2} offset:{L_QB}",
        f"ds_write_b32 v{vQW}, v{ACCQ + 3} offset:{L_QB + ROWS}")
    stamp(2)

    def V(p, A):
        return [S("v", 0, order[p], A), S("v", 1, order[p], A)]
    run([(V(8, Q[2])[0], [KX(Q[4], 1, 1), ke[0], ke[1], ke[2], ke[3]]),
         (V(8, Q[2])[1], [A_read(ACCQ, order[0]), ke[4], ke[5],
                          f"ds_write_b32 v{vQW}, v{ACCK + 2} offset:{L_KB}",
                          f"ds_write_b32 v{vQW}, v{ACCK + 3} offset:{L_KB + ROWS}"]),
         (V(7, Q[1])[0], [A_read(ACCQ + 4, order[1])]),
         (V(7, Q[1])[1], [A_read(ACCK, order[2])]),
         (V(6, Q[0])[0], [A_read(ACCK + 4, order[3])]),
         (V(6, Q[0])[1], [])])
    a.barrier(lg=3)
    stamp(3)
    ve = [f"v_add_f32 v{ACCV}, v{ACCV}, v{ACCV + 2}", f"v_add_f32 v{ACCV + 1}, v{ACCV + 1}, v{ACCV + 3}",
          f"v_add_f32 v{ACCV + 4}, v{ACCV + 4}, v{ACCV + 6}", f"v_add_f32 v{ACCV + 5}, v{ACCV + 5}, v{ACCV + 7}",
          f"v_cvt_pk_bf16_f32 v{ACCV + 2}, v{ACCV}, v{ACCV + 1}",
          f"v_cvt_pk_bf16_f32 v{ACCV + 3}, v{ACCV + 4}, v{ACCV + 5}"]
    seq(qB(Q[0], 0))
    run([(V(0, ACCQ)[0], [A_read(Q[2], order[4])]),
         (V(0, ACCQ)[1], [kmA(ACCQ, 0)]),
         (V(1, ACCQ + 4)[0], [A_read(Q[1], order[5])]),
         (V(1, ACCQ + 4)[1], []),
         (V(2, ACCK)[0], []),
         (V(2, ACCK)[1], [qB(ACCK, 1)]),
         (V(3, ACCK + 4)[0], []),
         (V(3, ACCK + 4)[1], []),
         (V(4, Q[2])[0], []),
         (V(4, Q[2])[1], [kmA(Q[2], 1)]),
         (V(5, Q[1])[0], []),
         (V(5, Q[1])[1], [qB(Q[1], 2)])])
    PBQ = ACCV + 4
    VST_ = [L_MEMA + 6 * 1024, L_MEMA + 6 * 1024 + 512, L_MEMA + 8 * 1024]
    if PUBHK == 2:
        pub = [[], [], [f"v_bfi_b32 v{ACCV + 2}, 1, s{sKPH}, v{ACCV + 2}"], [], []]
    elif PUBHK:
        if HK:
            pub = [[f"v_lshrrev_b32 v{vT0}, 8, v{vL16}", f"v_mul_u32_u24 v{vT0}, {ROWS}, v{vT0}"],
                   [f"v_and_b32 v{vT1}, 0xf0, v{vL16}", f"v_add_u32 v{vT0}, v{vT0}, v{vT1}"],
                   [f"ds_read_b128 {vr(PBQ, 4)}, v{vT0} offset:{L_KB}", f"v_lshrrev_b32 v{vRLD}, 1, v{vL16}",
                    f"v_bfi_b32 v{ACCV + 2}, 1, s{sKPH}, v{ACCV + 2}"],
                   [f"buffer_store_dwordx2 {vr(ACCV + 2, 2)}, v{vRLD}, {WS}, s{sKM} offen offset:{2048 + 3 * 512} sc1"],
                   [f"v_bfi_b32 v{PBQ}, 1, s{sKPH}, v{PBQ}",
                    f"buffer_store_dwordx4 {vr(PBQ, 4)}, v{vL16}, {WS}, s{sKM} offen sc1",
                    f"ds_read_b128 {vr(PBQ, 4)}, v{vT0} offset:{L_KB + 4 * ROWS}"]]
        else:
            pub = [[], [f"v_lshrrev_b32 v{vT1}, 1, v{vL16}"], [f"v_bfi_b32 v{ACCV + 2}, 1, s{sKPH}, v{ACCV + 2}"],
                   [f"ds_write_b64 v{vT1}, {vr(ACCV + 2, 2)} offset:{VST_[w]}"], []]
    else:
        pub = [[f"v_lshrrev_b32 v{vT0}, 8, v{vL16}", f"v_mul_u32_u24 v{vT0}, {ROWS}, v{vT0}"],
               [f"v_and_b32 v{vT1}, 0xf0, v{vL16}", f"v_add_u32 v{vT0}, v{vT0}, v{vT1}"],
               [f"ds_read_b128 {vr(PBQ, 4)}, v{vT0} offset:{L_KB + 2 * w * ROWS}", f"v_lshrrev_b32 v{vT1}, 1, v{vL16}",
                f"v_bfi_b32 v{ACCV + 2}, 1, s{sKPH}, v{ACCV + 2}"],
               [f"buffer_store_dwordx2 {vr(ACCV + 2, 2)}, v{vT1}, {WS}, s{sKM} offen offset:2048 sc1"],
               [f"v_bfi_b32 v{PBQ}, 1, s{sKPH}, v{PBQ}", f"s_mov_b64 exec, s[{sMLO}:{sMLO + 1}]",
                f"buffer_store_dwordx4 {vr(PBQ, 4)}, v{vL16}, {WS}, s{sKM} offen sc1", "s_mov_b64 exec, -1"]]
    run([(MF(SMm, ACCQ, Q[0], True, ("km", 0), ("qB", 0)), [flag_check_prefetch] if HK else []),
         (MF(SX, Q[5], Q[0], True, ("KX", 0, 0), ("qB", 0)), [KX(Q[5], 2, 0)]),
         (MF(SX + 4, Q[6], Q[0], True, ("KX", 0, 1), ("qB", 0)), [KX(Q[6], 2, 1)]),
         (MF(SMm, Q[2], ACCK, False, ("km", 1), ("qB", 1)), [kmA(Q[0], 2), ve[0], ve[1]]),
         (MF(SX, Q[3], ACCK, False, ("KX", 1, 0), ("qB", 1)), [qB(Q[2], 3), ve[2], ve[3]]),
         (MF(SX + 4, Q[4], ACCK, False, ("KX", 1, 1), ("qB", 1)), [KX(Q[3], 3, 0), ve[4], ve[5]]),
         (MF(SMm, Q[0], Q[1], False, ("km", 2), ("qB", 2)), [kmA(ACCK, 3)] + pub[0]),
         (MF(SX, Q[5], Q[1], False, ("KX", 2, 0), ("qB", 2)), [KX(Q[4], 3, 1)] + pub[1]),
         (MF(SX + 4, Q[6], Q[1], False, ("KX", 2, 1), ("qB", 2)), pub[2]),
         (MF(SMm, ACCK, Q[2], False, ("km", 3), ("qB", 3)),
          pub[3] + [f"v_mov_b32 v{Q[1] + 1}, 0", f"v_mov_b32 v{Q[1] + 2}, 0"]),
         (MF(SX, Q[3], Q[2], False, ("KX", 3, 0), ("qB", 3)),
          [f"v_mov_b64 {vr(Q[5], 2)}, s[{sONES}:{sONES + 1}]", f"v_mov_b64 {vr(Q[5] + 2, 2)}, s[{sONES}:{sONES + 1}]"]),
         (MF(SX + 4, Q[4], Q[2], False, ("KX", 3, 1), ("qB", 3)), pub[4])])
    late_pub = []
    if PUBHK == 1 and HK:
        late_pub = [f"v_bfi_b32 v{PBQ}, 1, s{sKPH}, v{PBQ}",
                    f"buffer_store_dwordx4 {vr(PBQ, 4)}, v{vL16}, {WS}, s{sKM} offen offset:1024 sc1"]
    stamp(4)
    MX, T1 = vT0, vT1
    MP = X4
    LQ = Q[6]
    P4 = Q[0]
    PB = Q[1]
    OX, OY = Q[2], Q[3]
    ONES = Q[5]
    WB = [Q[4], VXA]
    wo_buf = {k: WB[i % 2] for i, k in enumerate(WO_L)}

    def wo_rd(i):
        return LW(wo_buf[WO_L[i]], ("o",) + WO_L[i])

    pf = [f"v_pk_fma_f32 {vr(b, 2)}, {vr(b, 2)}, s[{sCEXP}:{sCEXP + 1}], {vr(MP, 2)} op_sel_hi:[1,1,0] neg_lo:[0,0,1] neg_hi:[0,0,1]"
          for b in (SMm, SX, SX + 2, SX + 4, SX + 6)]
    ex = [f"v_exp_f32 v{r}, v{r}" for r in [SMm, SMm + 1] + list(range(SX, SX + 8))]
    seq(f"v_max3_f32 v{MX}, v{SMm}, v{SMm + 1}, v{SX}",
        f"v_max3_f32 v{MX}, v{MX}, v{SX + 1}, v{SX + 2}",
        f"v_max3_f32 v{MX}, v{MX}, v{SX + 3}, v{SX + 4}",
        f"v_max3_f32 v{MX}, v{MX}, v{SX + 5}, v{SX + 6}",
        f"v_max_f32 v{MX}, v{MX}, v{SX + 7}",
        f"v_mov_b32 v{T1}, v{MX}", late_pub,
        f"v_permlane32_swap_b32 v{MX}, v{T1}",
        f"v_max_f32 v{MX}, v{MX}, v{T1}",
        f"v_mov_b32 v{T1}, v{MX}",
        f"v_permlane16_swap_b32 v{MX}, v{T1}",
        f"v_max_f32 v{MX}, v{MX}, v{T1}",
        f"v_mul_f32 v{MP}, s{sCEXP}, v{MX}",
        pf[0], pf[1], ex[0], ex[1], pf[2], ex[2], ex[3], pf[3],
        f"v_cvt_pk_bf16_f32 v{PB}, v{SMm}, v{SMm + 1}", ex[4], pf[4],
        f"v_cvt_pk_bf16_f32 v{PB + 3}, v{SMm}, v{SMm + 1}", ex[5],
        f"v_cvt_pk_bf16_f32 v{P4}, v{SX}, v{SX + 1}", ex[6], ex[7],
        f"v_cvt_pk_bf16_f32 v{P4 + 1}, v{SX + 2}, v{SX + 3}", ex[8], ex[9],
        f"v_cvt_pk_bf16_f32 v{P4 + 2}, v{SX + 4}, v{SX + 5}",
        f"v_cvt_pk_bf16_f32 v{P4 + 3}, v{SX + 6}, v{SX + 7}",
        f"v_mfma_f32_16x16x16_bf16 {vr(LQ, 4)}, {vr(ONES, 2)}, {vr(PB, 2)}, 0",
        f"v_mfma_f32_16x16x16_bf16 {vr(OX, 4)}, {vr(ACCV + 2, 2)}, {vr(PB, 2)}, 0",
        f"v_mfma_f32_16x16x16_bf16 {vr(OY, 4)}, {vr(ACCV + 2, 2)}, {vr(PB + 2, 2)}, 0",
        MF(LQ, ONES, P4, False),
        MF(OX, VXA, P4, False), wo_rd(0)[0] if False else None,
        MF(OY, VXB, P4, False), wo_rd(1)[0], wo_rd(1)[1],
        wo_rd(0)[0],
        f"v_rcp_f32 v{MX}, v{LQ}")
    stamp(5)
    OP = ACCQ + 4
    for i in (0, 2):
        a(f"v_pk_mul_f32 {vr(OX + i, 2)}, {vr(OX + i, 2)}, {vr(MX, 2)} op_sel_hi:[1,0]")
        a(f"v_pk_mul_f32 {vr(OY + i, 2)}, {vr(OY + i, 2)}, {vr(MX, 2)} op_sel_hi:[1,0]")
        a(f"v_cvt_pk_bf16_f32 v{OP + i}, v{OX + i}, v{OY + i}")
        a(f"v_cvt_pk_bf16_f32 v{OP + i + 1}, v{OX + i + 1}, v{OY + i + 1}")
    a(f"ds_write_b128 v{vQR}, {vr(OP, 4)} offset:{L_OB + w * 64}")
    TA = [ACCQ, ACCK, ACCK + 4, ACCV + 4, Q[0], Q[1], Q[6], ACCQ + 4, ACCV]
    OA0, OA1 = Q[2], Q[3]
    seq(wo_rd(0)[1], zero(ACCQ, 4), zero(ACCK, 8), zero(ACCV + 4, 4), zero(Q[0], 8))
    a.barrier(lg=1)
    a(f"ds_read_b128 {vr(OA0, 4)}, v{vOR} offset:{L_OB}")
    a(f"ds_read_b128 {vr(OA1, 4)}, v{vOR} offset:{L_OB + 128}")
    if PUBHK == 2:
        a(f"v_lshrrev_b32 v{vT1}, 1, v{vL16}")
        a(f"ds_write_b64 v{vT1}, {vr(ACCV + 2, 2)} offset:{L_QB + w * 512}")
    seq(zero(Q[6], 4), zero(ACCV, 4), zero(OP, 4))
    last = pfx + "last"
    seq(f"s_cmp_eq_u32 s{sSTEP}, {NSEG - 1}", f"s_cbranch_scc1 {last}")
    stamp(6)
    ST = [TA[0], TA[4], TA[8]]

    def epi(tau):
        acc = TA[tau]
        dst = ST[tau // 4] + tau % 4
        ops = [f"v_add_f32 v{acc}, v{acc}, v{acc + 2}", f"v_add_f32 v{acc + 1}, v{acc + 1}, v{acc + 3}",
               f"v_cvt_pk_bf16_f32 v{dst}, v{acc}, v{acc + 1}"]
        if tau % 4 == 0:
            ops.append(f"v_bfi_b32 v{dst}, 1, s{sPH}, v{dst}")
        if tau in (3, 7):
            ops.append(f"buffer_store_dwordx4 {vr(ST[tau // 4], 4)}, v{vL16}, {WS}, s{sPW} offen offset:{1024 * (tau // 4)}{sc}")
        if tau == 8:
            ops.append(f"buffer_store_dword v{dst}, v{vL4}, {WS}, s{sPW} offen offset:2048{sc}")
        return ops

    KPOS = {0: {0: (3, 8), 1: (3, 8), 2: (3, 8), 3: (3, 8)}, 1: {0: (3, 9), 1: (4, 13), 2: (8, 14), 3: (3, 8)},
            2: {0: (3, 13), 1: (4, 14), 2: (8, 9), 3: (9, 14)}}[KST]
    nxt = 2
    fill = []
    pend = []
    for idx in range(18):
        tau, ks = TORD[idx >> 1], idx & 1
        k = ("o", tau, ks)
        if FM[k][0] == "l":
            buf = wo_buf[(tau, ks)]
            use(buf, ("W", k)); use(buf + 4, ("W2", k))
            B = vr(buf, 8)
        else:
            B = opnd(FM[k])
        a(SM(TA[tau], (OA0, OA1)[ks], B))
        if PUBHK == 1 and HK:
            hk = {0: f"ds_read_b64 {vr(vT0, 2)}, v{vRLD} offset:{VST_[0]}",
                  4: f"buffer_store_dwordx2 {vr(vT0, 2)}, v{vRLD}, {WS}, s{sKM} offen offset:2048 sc1",
                  5: f"ds_read_b64 {vr(vT0, 2)}, v{vRLD} offset:{VST_[1]}",
                  9: f"buffer_store_dwordx2 {vr(vT0, 2)}, v{vRLD}, {WS}, s{sKM} offen offset:{2048 + 512} sc1",
                  10: f"ds_read_b64 {vr(vT0, 2)}, v{vRLD} offset:{VST_[2]}",
                  14: f"buffer_store_dwordx2 {vr(vT0, 2)}, v{vRLD}, {WS}, s{sKM} offen offset:{2048 + 1024} sc1"}
            seq(hk.get(idx))
        if pend:
            seq(pend.pop(0))
        elif idx in KPOS[w]:
            seq(kdma(KPOS[w].index(idx)))
        if FM[k][0] == "l" and nxt < len(WO_L):
            r = wo_rd(nxt)
            seq(r[0])
            pend.append(r[1])
            nxt += 1
        n = 0
        while fill and fill[0][0] <= idx and (n < 2 or not fill[0][1].startswith("v_")):
            n += fill[0][1].startswith("v_")
            a(fill.pop(0)[1])
        if ks == 1:
            fill += [(idx + WOD, t) for t in epi(tau)]
    for _, t in fill:
        a(t)
    stamp(7)
    tog = [f"s_xor_b32 s{r}, s{r}, {MEMB_SLOT}" for r in [sMEMR, sMEMR8]]

    if not HK:
        if w == 2:
            a(f"s_cmp_eq_u32 s{sJOBC}, 0")
            a(f"s_cbranch_scc1 {pfx}nojob")
        LD = [Q[2], Q[3], Q[4], Q[5]]
        SEL, D = VXA, VXB
        loads1 = [f"buffer_load_dwordx4 {vr(LD[i], 4)}, v{vRLD}, {WS}, s{sPR + i} offen sc1" for i in range(4)]
        if w < 2:
            checks = [[f"v_and_b32 v{vT1}, 1, v{LD[i]}", f"v_cmp_ne_u32 {M(i)}, s{sPH}, v{vT1}"] for i in range(4)]
        else:
            checks = [[f"v_xor_b32 v{vT0}, v{LD[i]}, v{LD[i] + 1}", f"v_xor_b32 v{vT1}, v{LD[i] + 2}, v{LD[i] + 3}",
                       f"v_or_b32 v{vT0}, v{vT0}, v{vT1}", f"v_xor_b32 v{vT1}, v{LD[i]}, v{LD[i] + 2}",
                       f"v_or_b32 v{vT0}, v{vT0}, v{vT1}", f"v_xor_b32 v{vT1}, s{sPH}, v{LD[i]}",
                       f"v_or_b32 v{vT0}, v{vT0}, v{vT1}", f"v_and_b32 v{vT0}, 1, v{vT0}",
                       f"v_cmp_ne_u32 {M(i)}, 0, v{vT0}"] for i in range(4)]
        betw = [[MF(D, LD[i], SEL, i == 0)] for i in range(4)]
        stamp(9)
        sel = [f"v_bfe_u32 v{vT0}, v{vL16}, 4, 4", f"v_mov_b32 v{vT1}, 0x3f80", f"v_mov_b32 v{D}, 0x3f800000"]
        for d in range(4):
            sel += [f"v_cmp_eq_u32 vcc, {2 * d}, v{vT0}", f"v_cmp_eq_u32 s[{sU}:{sU + 1}], {2 * d + 1}, v{vT0}",
                    f"v_cndmask_b32 v{SEL + d}, 0, v{vT1}, vcc", f"v_cndmask_b32 v{SEL + d}, v{SEL + d}, v{D}, s[{sU}:{sU + 1}]"]
        if DL is not None:
            if DL:
                a(f"s_sleep {DL}")
            a(f"s_cmp_le_u32 s{sLATE}, {DLN}")
            a(f"s_cbranch_scc1 {pfx}late")
            a(f"s_sleep {D1[w] - DL}")
            a.label(pfx + "late")
        elif D1[w]:
            a(f"s_sleep {D1[w]}")
        poll("p1", loads1, checks, betw, work=sel, slp=S1)
        stamp(8)
        if stamps:
            a(f"s_mov_b32 s3, s{S_SPIN}")
        seq(f"v_permlane16_swap_b32 v{D}, v{D + 2}", f"v_permlane16_swap_b32 v{D + 1}, v{D + 3}",
            f"s_mov_b64 exec, s[{sMASK}:{sMASK + 1}]",
            f"v_add_f32 v{D}, v{D}, v{D + 2}", f"v_add_f32 v{D + 1}, v{D + 1}, v{D + 3}",
            f"v_cvt_pk_bf16_f32 v{D}, v{D}, v{D + 1}", f"v_min_u32 v{D}, s{sMAXD}, v{D}",
            f"buffer_store_dword v{D}, v{vRST}, {WS}, s{sMEMW} offen{sc}",
            f"v_mov_b32 v{D + 1}, -1",
            f"buffer_store_dword v{D + 1}, v{vRST}, {WS}, s{sMEMZ} offen{sc}",
            f"s_mov_b64 exec, -1")
        if w == 2:
            a(f"s_branch {pfx}jobdone")
            a.label(pfx + "nojob")
            a.restore(([], []))
            a.label(pfx + "jobdone")
            a.vmq = [(frozenset(), "pollx")] * 4 + [(frozenset(), "st")] * 3
    adv = [f"s_add_u32 s{sSTEP}, s{sSTEP}, 1", f"s_bfe_u32 s{sPH}, s{sSTEP}, 0x10001",
           f"s_xor_b32 s{sPW}, s{sPW}, {PART_SLOT}"]
    adv += [f"s_xor_b32 s{r}, s{r}, {PART_SLOT}" for r in ([] if HK else [sPR + i for i in range(4)])]
    adv += [f"s_xor_b32 s{r}, s{r}, {MEMB_SLOT}" for r in ([] if HK else [sMEMW, sMEMZ])]
    if PUBHK == 2:
        adv += [f"s_mov_b32 s{sKMP}, s{sKM}", f"s_mov_b32 s{sKPP}, s{sKPH}"]
    adv += [f"s_and_b32 s{S_TMP}, s{sSTEP}, {KM_D - 1}", f"s_mul_i32 s{S_TMP}, s{S_TMP}, {32 * KM_UNIT}",
            f"s_add_u32 s{sKM}, s{sKMB}, s{S_TMP}", f"s_bfe_u32 s{sKPH}, s{sSTEP}, {0x10000 + KM_D.bit_length() - 1}",
            f"s_add_u32 s{sOFL}, s{sOFL}, {FL_STRIDE}"]
    if HK:
        adv += [f"s_and_b32 s{S_TMP}, s{sSTEP}, 3", f"s_cmp_eq_u32 s{S_TMP}, 3", f"s_cselect_b32 s{S_TMP}, 1, 0",
                f"s_cmp_eq_u32 s{sLAY}, 0", f"s_cselect_b32 s{S_TMP}, 1, s{S_TMP}",
                f"s_cmp_ge_u32 s{sSTEP}, {KM_D - 1}", f"s_cselect_b32 s{S_TMP}, s{S_TMP}, 0",
                f"s_cmp_lg_u32 s{S_TMP}, 0", f"s_cselect_b64 s[{sFMK}:{sFMK + 1}], -1, 0xff",
                f"s_add_u32 s{sKPV}, s{sKPV}, {32 * 8192}"]
    adv += [f"s_add_u32 s{sVF}, s{sVF}, {32 * 8192}",
            f"s_add_u32 s{sKF}, s{sKF}, {32 * 8192}", f"s_add_u32 s{sKP}, s{sKP}, {32 * 8192}",
            f"s_add_u32 s{sFL}, s{sFL}, {FL_STRIDE}"]
    seq(tog)
    a("s_barrier")
    if D2:
        a(f"s_sleep {D2}")
    seq(loads2, adv)
    if not HK:
        a.wait_tag("pollx")
    pre_step()
    a.wait(lg=0)
    if HK and GATE0:
        L0 = a.newlabel("Lg0")
        a(f"s_add_u32 s{S_TMP}, s{sSTEP}, s{sLAY}")
        a(f"s_cmp_lg_u32 s{S_TMP}, 1")
        a(f"s_cbranch_scc1 {L0}")
        a(f"s_cmp_lg_u32 s{sLAY}, 0")
        a(f"s_cbranch_scc1 {L0}")
        sn = a.snap()
        dbg_add(a, DB_STEP0, Q[2], Q[2] + 1)
        a.restore(sn)
        a.label(L0)
    if HK:
        trace(a, Q[2], Q[2] + 1, True)
        if DBGT == 1:
            a.force_wait(lg=0)
            for k, (wd, st) in enumerate(((5, 1), (13, 63))):
                a(f"s_lshl_b32 s{S_TMP}, s{sLAY}, 2")
                a(f"s_add_u32 s{S_TMP + 1}, s{S_TMP}, {4 * wd}")
                stamp_max(a, f"s{S_TMP + 1}", Q[2], Q[2] + 1, (sSTEP, st))
    stamp(NST)
    dump_stamps()
    a.restore(([], []))
    a(f"s_branch {head}")
    for t in tails:
        t()
    a.restore(([], []))
    a.label(last)
    if PUBHK == 2:
        a.force_wait(lg=0)
        a("s_barrier")
        a(f"s_mov_b32 s{sKMP}, s{sKM}")
        a(f"s_mov_b32 s{sKPP}, s{sKPH}")
        seq(pub_rd(), pub_st())
    elif PUBHK == 1 and HK:
        for i in range(3):
            a(f"ds_read_b64 {vr(vT0, 2)}, v{vRLD} offset:{VST_[i]}")
            a(f"buffer_store_dwordx2 {vr(vT0, 2)}, v{vRLD}, {WS}, s{sKM} offen offset:{2048 + 512 * i} sc1")
    a.force_wait(vm=0, lg=0)
    if HK:
        trace(a, Q[2], Q[2] + 1, True)
    a(f"s_branch {done}")
```

```python
from pool import *


def MF16(acc, A, B):
    return f"v_mfma_f32_16x16x16_bf16 {vr(acc, 4)}, {vr(A, 2)}, {vr(B, 2)}, {vr(acc, 4)}"


def role_ta(a, abort, done):
    lane_setup(a, 12)
    vKM, vL8 = 9, 10
    BI, ON, PB, PX, LQ = 236, 16, 20, 24, 28
    SX, SMm = 32, 44
    KMf, VMf, O, OUT = 52, 68, 76, 108
    SET = [("v", 140), ("a", 0)]
    NEG = hex(f32bits(-1e30))
    sQO, sNQ, sRDY, sPN, sKPH, sKMB = sO1, sK3, sPF, sK1, sCL, sCS

    OSC = [" sc1"]
    sPM = sO3 + 0 if False else sSB

    def publish():
        a(f"s_and_b32 s{S_TMP}, s{sPN}, s{sPM}")
        a("s_cselect_b64 exec, 1, 0")
        a(f"buffer_store_dword v{vONE}, v{vZERO}, {WS}, s{sPEND} offen")
        a(f"s_andn2_b32 s{S_TMP}, s{sPN}, s{sPM}")
        a("s_cselect_b64 exec, 1, 0")
        a(f"buffer_store_dword v{vONE}, v{vZERO}, {WS}, s{sPEND} offen sc1")
        a("s_mov_b64 exec, -1")
        a(f"s_add_u32 s{sPEND}, s{sPEND}, s{sPN}")
        a(f"s_mov_b32 s{sPN}, 0")

    def fr(st, m, i):
        k, b = SET[st]
        return f"{k}[{b + 32 * m + 4 * i}:{b + 32 * m + 4 * i + 3}]"

    a(f"""
    s_lshl_b32 s{S_TMP}, s{S_ROLE}, 2
    s_add_u32 s{S_TMP}, s{S_TMP}, s{S_WAVE}
    s_lshr_b32 s{sNL}, s{S_TMP}, 5
    s_and_b32 s{sK2}, s{S_TMP}, 31
    s_mov_b32 s{sNS}, 0
    s_mov_b32 s{sK4}, {hex(f32bits(128 ** -0.5 * 1.4426950408889634))}
    v_lshrrev_b32 v{vT0}, 2, v{vC}
    v_and_b32 v{vT1}, 1, v{vC}
    v_lshl_add_u32 v{vT0}, v{vT0}, 1, v{vT1}
    v_lshlrev_b32 v{vKM}, 8, v{vT0}
    v_lshl_add_u32 v{vKM}, v{vG}, 4, v{vKM}
    v_lshrrev_b32 v{vL8}, 1, v{vL16}
    v_mov_b32 v{vT1}, {NEG}
    v_mov_b32 v{PB + 1}, 0
    v_mov_b32 v{PB + 2}, 0
    s_mul_i32 s{sNFL}, s{sNL}, {NSEG * FL_STRIDE}
    s_lshl_b32 s{S_TMP}, s{sK2}, 9
    s_add_u32 s{sNFL}, s{sNFL}, s{S_TMP}
    s_add_u32 s{sNFL}, s{sNFL}, {WS_FLAGS + FL_QKV}
    s_mul_i32 s{sNQ}, s{sNL}, {3 * QKV_M}
    s_lshl_b32 s{S_TMP}, s{sK2}, 13
    s_add_u32 s{sNQ}, s{sNQ}, s{S_TMP}
    s_add_u32 s{sNQ}, s{sNQ}, {WS_QKV}
    s_lshl_b32 s{sO2}, s{sNL}, 11
    s_add_u32 s{sO2}, s{sO2}, s{sK2}
    s_lshl_b32 s{sO3}, s{sO2}, 13
    s_add_u32 s{sO3}, s{sO3}, {WS_OF}
    s_mul_i32 s{sKMB}, s{sNL}, {KM_D * 32}
    s_add_u32 s{sKMB}, s{sKMB}, s{sK2}
    s_lshl_b32 s{sKMB}, s{sKMB}, 12
    s_add_u32 s{sKMB}, s{sKMB}, {WS_KM}
    s_mul_i32 s{sPEND}, s{sNL}, {NSEG * FL_STRIDE}
    s_lshr_b32 s{S_TMP}, s{sK2}, 2
    s_lshl_b32 s{S_TMP}, s{S_TMP}, 7
    s_add_u32 s{sPEND}, s{sPEND}, s{S_TMP}
    s_lshl_b32 s{S_TMP}, s{S_WAVE}, 2
    s_add_u32 s{sPEND}, s{sPEND}, s{S_TMP}
    s_add_u32 s{sPEND}, s{sPEND}, {WS_FLAGS + FL_OF}
    s_mov_b32 s{SRD_C}, s{SRD_WS}
    s_mov_b32 s{SRD_C + 1}, s{SRD_WS + 1}
    s_mov_b32 s{SRD_C + 2}, 0
    s_mov_b32 s{SRD_C + 3}, 0x00020000
    s_mov_b32 s{sRDY}, 0
    s_mov_b32 s{sPN}, 0
    s_mov_b32 s{sSB}, 0
    s_lshl_b32 s{sO2}, s{sNL}, 2
    s_add_u32 s{sO2}, s{sO2}, {DB_TEAM}
    """)
    for i in range(4):
        a(f"v_mov_b32 v{ON + i}, 0x3f803f80")
        a(f"v_lshl_add_u32 v{vT0}, v{vG}, 2, {i}")
        a(f"v_cmp_le_u32 vcc, v{vT0}, v{vC}")
        a(f"v_cndmask_b32 v{BI + i}, v{vT1}, v{vZERO}, vcc")

    def qkv_ops(st, srd_):
        ops = []
        for m in range(3):
            for i in range(8):
                pre = [f"s_add_u32 s{sQO}, s{sNQ}, {m * QKV_M + i * 1024}"] if i % 4 == 0 else []
                ops.append(pre + [f"buffer_load_dwordx4 {fr(st, m, i)}, v{vL16}, {srd_}, s{sQO} offen offset:{(i % 4) * 1024}"])
        return ops

    km_ops = ([f"buffer_load_dwordx4 {vr(KMf + 4 * j, 4)}, v{vKM}, {WS}, s{sO2} offen offset:{j * 64} sc1" for j in range(4)] +
              [f"buffer_load_dwordx2 {vr(VMf + 2 * j, 2)}, v{vL8}, {WS}, s{sO2} offen offset:{2048 + j * 512} sc1" for j in range(4)])

    def km_check():
        heads = [KMf + 4 * j for j in range(4)] + [VMf + 2 * j for j in range(4)]
        a(f"v_xor_b32 v{vT0}, s{sKPH}, v{heads[0]}")
        for r in heads[1:]:
            a(f"v_xor_b32 v{vT1}, s{sKPH}, v{r}")
            a(f"v_or_b32 v{vT0}, v{vT0}, v{vT1}")
        a(f"v_and_b32 v{vT0}, 1, v{vT0}")
        a(f"v_cmp_ne_u32 vcc, 0, v{vT0}")

    MX, T1 = vT0, vT1
    dbg_wait(a, DB_POOL, N_POOL, vT0, vT1, abort, "Lta_ini", 64)
    dbg_wait(a, f"s{sO2}", 32, vT0, vT1, abort, "Lta_team", 64)
    trace(a, vT0, vT1)
    class_pure(a, 3, sF1, vT0, vT1, abort, "Lta_pure")

    def pick(st, here):
        a(f"""
        s_sub_u32 s{S_TMP}, s{sNS}, {TW_S0 - 1}
        s_mul_i32 s{S_TMP + 1}, s{S_TMP}, 43
        s_lshr_b32 s{S_TMP + 1}, s{S_TMP + 1}, 7
        s_mul_i32 s{S_TMP + 1}, s{S_TMP + 1}, 3
        s_cmp_eq_u32 s{S_TMP + 1}, s{S_TMP}
        s_cselect_b32 s{S_TMP + 1}, 1, 0
        s_cmp_lt_u32 s{sNS}, {TW_S0}
        s_cselect_b32 s{S_TMP + 1}, 1, s{S_TMP + 1}
        s_cmp_eq_u32 s{sNL}, 0
        s_cselect_b32 s{S_TMP + 1}, 1, s{S_TMP + 1}
        s_and_b32 s{S_TMP + 1}, s{S_TMP + 1}, s{sF1}
        """)
        if here == "F":
            a(f"s_cbranch_scc0 LtaS{st}_in")
        else:
            a(f"s_cbranch_scc1 LtaF{st}_in")
    for osc, st in (("", 0), ("", 1), (" sc1", 0), (" sc1", 1)):
        pre = "LtaS" if osc else "LtaF"
        nm = f"{pre}{st}"
        a.label(nm)
        a.restore(([], []))
        pick(st, pre[-1])
        a.label(nm + "_in")
        OSC[0] = osc
        a(f"s_and_b32 s{S_TMP}, s{sNS}, {KM_D - 1}")
        a(f"s_mul_i32 s{S_TMP}, s{S_TMP}, {32 * KM_UNIT}")
        a(f"s_add_u32 s{sO2}, s{sKMB}, s{S_TMP}")
        a(f"s_bfe_u32 s{sKPH}, s{sNS}, {0x10000 + KM_D.bit_length() - 1}")
        a(f"s_cmp_eq_u32 s{sRDY}, 1")
        a(f"s_cbranch_scc1 {nm}_have")
        a.force_wait(vm=0)
        publish()
        flag_block(a, nm + "_f", abort)
        seq(a, qkv_ops(st, WS))
        a.label(nm + "_have")
        a.restore(([], []))
        a(f"s_add_u32 s{S_TMP}, s{sNFL}, {FL_STRIDE}")
        a(f"buffer_load_dword v{vFL1}, v{vFLA}, {WS}, s{S_TMP} offen sc1")
        seq(a, km_ops)
        a.force_wait(vm=9)
        publish()
        for j in range(4):
            for (tt, kt, d) in ((0, 0, 0), (1, 0, 4), (1, 1, 8)):
                a(MF(SX + d, fr(st, 1, 2 * j + kt), fr(st, 0, 2 * j + tt), "0" if j == 0 else None))
        a.force_wait(vm=2)
        a(f"""
        v_cmp_eq_u32 vcc, 0, v{vFL1}
        s_add_u32 s{sNQ}, s{sNQ}, {32 * 8192}
        s_add_u32 s{sNFL}, s{sNFL}, {FL_STRIDE}
        s_add_u32 s{sNS}, s{sNS}, 1
        s_cmp_eq_u64 vcc, 0
        s_cselect_b32 s{sRDY}, 1, 0
        s_cmp_lt_u32 s{sNS}, {NSEG}
        s_cselect_b32 s{sRDY}, s{sRDY}, 0
        s_cmp_eq_u32 s{sRDY}, 1
        s_cselect_b32 s{SRD_C + 2}, {WS_BYTES}, 0
        """)
        for d, diag in ((0, 1), (4, 0), (8, 1)):
            for i in range(4):
                r = SX + d + i
                a(f"v_fma_f32 v{r}, v{r}, s{sK4}, v{BI + i}" if diag else f"v_mul_f32 v{r}, s{sK4}, v{r}")
        km_check()
        a(f"s_cbranch_vccz {nm}_r")
        a(f"s_mov_b32 s{S_SPIN}, 0")
        a.label(nm + "_rp")
        a.restore(([], []))
        seq(a, km_ops)
        spin_check(a, abort)
        a.force_wait(vm=0)
        km_check()
        a(f"s_cbranch_vccz {nm}_r")
        a(f"s_sleep {TASLP}")
        a(f"s_branch {nm}_rp")
        a.label(nm + "_r")
        a.restore(([], []))
        a(f"s_and_b32 s{S_TMP}, s{sNS}, 3")
        a(f"s_cmp_eq_u32 s{S_TMP}, 0")
        a(f"s_cselect_b32 s{S_TMP}, s{sNL}, 0")
        a(f"s_cmp_lg_u32 s{S_TMP}, 0")
        a("s_cselect_b64 exec, 1, 0")
        a(f"s_sub_u32 s{S_TMP}, s{sNFL}, {FL_STRIDE}")
        a(f"buffer_store_dword v{vONE}, v{vZERO}, {WS}, s{S_TMP} offen offset:384 sc1")
        a("s_mov_b64 exec, -1")
        nxt = qkv_ops(1 - st, PFS)
        seq(a, nxt.pop(0), nxt.pop(0))
        for j in range(4):
            for tt in range(2):
                a(MF(SMm + 4 * tt, vr(KMf + 4 * j, 4), fr(st, 0, 2 * j + tt), "0" if j == 0 else None))
        for tt in range(2):
            xs = list(range(SX, SX + 4)) if tt == 0 else list(range(SX + 4, SX + 12))
            ms = [SMm + 4 * tt, SMm + 4 * tt + 1]
            vals = xs + ms
            a(f"v_max3_f32 v{MX}, v{xs[0]}, v{xs[1]}, v{xs[2]}")
            a(f"v_max_f32 v{MX}, v{MX}, v{xs[3]}")
            for i in range(4, len(xs), 2):
                a(f"v_max3_f32 v{MX}, v{MX}, v{xs[i]}, v{xs[i + 1]}")
            for r in ms:
                a(f"v_mul_f32 v{r}, s{sK4}, v{r}")
            a(f"v_max3_f32 v{MX}, v{MX}, v{ms[0]}, v{ms[1]}")
            seq(a, f"v_mov_b32 v{T1}, v{MX}", nxt.pop(0), f"v_permlane32_swap_b32 v{MX}, v{T1}", f"v_max_f32 v{MX}, v{MX}, v{T1}",
                f"v_mov_b32 v{T1}, v{MX}", nxt.pop(0), f"v_permlane16_swap_b32 v{MX}, v{T1}", f"v_max_f32 v{MX}, v{MX}, v{T1}",
                [f"v_sub_f32 v{r}, v{r}, v{MX}" for r in vals], [f"v_exp_f32 v{r}, v{r}" for r in vals])
            for i in range(4):
                if 2 * i < len(xs):
                    a(f"v_cvt_pk_bf16_f32 v{PX + i}, v{xs[2 * i]}, v{xs[2 * i + 1]}")
                else:
                    a(f"v_mov_b32 v{PX + i}, 0")
            a(f"v_cvt_pk_bf16_f32 v{PB}, v{ms[0]}, v{ms[1]}")
            a(f"v_cvt_pk_bf16_f32 v{PB + 3}, v{ms[0]}, v{ms[1]}")
            a(MF(LQ, vr(ON, 4), vr(PX, 4), "0"))
            for t in range(8):
                a(MF(O + 4 * t, fr(st, 2, t), vr(PX, 4), "0"))
                if t & 1 and nxt:
                    seq(a, nxt.pop(0))
                if t == 5:
                    a(MF16(LQ, ON, PB))
            for t in range(8):
                a(MF16(O + 4 * t, VMf + 2 * (t >> 1), PB + 2 * (t & 1)))
                if t == 1:
                    a(f"v_rcp_f32 v{T1}, v{LQ}")
                if t >= 3 and t & 1:
                    norm(a, O, OUT, T1, (t - 3) >> 1, tt, sO3, nxt, osc)
            norm(a, O, OUT, T1, 3, tt, sO3, nxt, osc)
        seq(a, nxt)
        a(f"s_add_u32 s{sO3}, s{sO3}, {32 * 8192}")
        a(f"s_mov_b32 s{sPN}, {FL_STRIDE}")
        a(f"s_mov_b32 s{sPM}, {0 if osc else -1}")
        trace_at(a, sNS, vT0, vZERO)
        trace(a, vT0, vT1)
        a(f"s_cmp_ge_u32 s{sNS}, {NSEG}")
        a(f"s_cbranch_scc1 {pre}_end")
        if st == 1:
            a(f"s_branch {pre}0")
            a.label(f"{pre}_end")
            a.restore(([], []))
            a.force_wait(vm=0)
            publish()
            a(f"s_branch {done}")


TASLP = int(os.environ.get("TASLP", "2"))


def norm(a, O, OUT, T1, j, tt, sO3, nxt, osc=" sc1"):
    for i in range(4):
        x, y = O + 8 * j + i, O + 8 * j + 4 + i
        a(f"v_mul_f32 v{x}, v{T1}, v{x}")
        a(f"v_mul_f32 v{y}, v{T1}, v{y}")
        a(f"v_cvt_pk_bf16_f32 v{OUT + 16 * tt + 4 * j + i}, v{x}, v{y}")
    if j % 2 == 0:
        a(f"s_add_u32 s{S_TMP}, s{sO3}, {j * 2048}")
    a(f"buffer_store_dwordx4 {vr(OUT + 16 * tt + 4 * j, 4)}, v{vL16}, {WS}, s{S_TMP} offen offset:{(j % 2) * 2048 + tt * 1024}{osc}")
    if nxt:
        seq(a, nxt.pop(0))


TWX = int(os.environ.get("TWX", "1"))
TW_S0 = int(os.environ.get("TW_S0", "34"))
TWPF = int(os.environ.get("TWPF", "1"))
OUTSC = os.environ.get("OUTSC", "")
TWLD = {"": "", "nt": " nt", "sc1": " sc1", "sc0": " sc0"}[os.environ.get("TWLD", "")]


def role_tw(a, abort, done, nt=os.environ.get("NT_W", "")):
    lane_setup(a, 32)
    vA0, vSEL, vRES, vROW, vSTO, vRED, vMBT, vRD2, OUTP = 9, 11, 12, 13, 14, 48, 49, 50, 52
    nst_ = 0
    ACC, RES, SS, RING, ZB = 16, 40, 44, 64, 128
    sSL = sK2
    TWLDW = int(os.environ.get("TWLDW", "1"))
    TWG = int(os.environ.get("TWG", "24"))
    if TWLDW:
        a(f"s_cmp_lt_u32 s{S_ROLE}, {TWG}")
        a("s_cbranch_scc1 Ltw_noord")
        dbg_wait(a, DB_STEP0 if GATE0 & 4 else DB_LOADED, TWLDW, vT0, vT1, abort, "Ltw_ord", 64)
        a.label("Ltw_noord")
    srd(a, SRD_A, KA_BWO, 4096 * 1152)
    srd(a, SRD_B, KA_OUT, 2048 * 1152)
    A_ = f"s[{SRD_A}:{SRD_A + 3}]"
    OUTS = f"s[{SRD_B}:{SRD_B + 3}]"
    a(f"""
    s_mul_i32 s{S_TMP}, s{S_ROLE}, 43
    s_lshr_b32 s{sN0}, s{S_TMP}, 9
    s_mul_i32 s{S_TMP}, s{sN0}, 12
    s_sub_u32 s{sSL}, s{S_ROLE}, s{S_TMP}
    s_add_u32 s{sN1}, s{sN0}, {(TW_S0 - (3 if TWX else 0)) & 0xffffffff}
    s_cmp_eq_u32 s{sN0}, 2
    s_cselect_b32 s{sN1}, 0, s{sN1}
    s_cmp_lt_u32 s{sN0}, 2
    s_cselect_b32 s{sN1}, {f"{NSEG}" if TWX else f"s{sN1}"}, s{sN1}
    s_cselect_b32 s{sN0}, s{sN0}, {NSEG}
    s_mul_i32 s{sK1}, s{sSL}, 96
    s_mul_i32 s{S_TMP}, s{S_WAVE}, {1024 * 1152}
    s_add_u32 s{sK1}, s{sK1}, s{S_TMP}
    v_mul_u32_u24 v{vT0}, {4 * 1152}, v{vG}
    v_lshl_add_u32 v{vA0}, v{vC}, 2, v{vT0}
    v_add_u32 v{vA0 + 1}, {16 * 1152}, v{vA0}
    v_and_b32 v{vT1}, 14, v{vC}
    v_lshl_add_u32 v{vRES}, v{vT1}, 1, v{vT0}
    v_add_u32 v{vRES}, 64, v{vRES}
    v_add_u32 v{vROW}, {16 * 1152}, v{vRES}
    v_and_b32 v{vT0}, 1, v{vC}
    v_mov_b32 v{vSEL}, s{sSELX}
    v_mov_b32 v{vT1}, s{sSELY}
    v_cmp_eq_u32 vcc, 1, v{vT0}
    v_cndmask_b32 v{vSEL}, v{vSEL}, v{vT1}, vcc
    """)
    STG = 16
    n = 128
    D = 14
    for i in range(n + D):
        if i < n:
            kk, d = i >> 2, i & 3
            r = STG + 4 * (i % 28)
            a(f"s_add_u32 s{S_TMP}, s{sK1}, {(32 * kk + d) * 1152}")
            for q, ad in enumerate((vA0, vA0 + 1, vRES, vROW)):
                a(f"buffer_load_dword v{r + q}, v{ad}, {A_}, s{S_TMP} offen {nt}")
        j = i - D
        if j >= 0:
            kk, d = j >> 2, j & 3
            r = STG + 4 * (j % 28)
            a(f"v_perm_b32 v{vT0}, v{r + 1}, v{r}, s{sSELX}")
            a(f"v_perm_b32 v{vT1}, v{r + 1}, v{r}, s{sSELY}")
            a(f"v_perm_b32 v{ZB + 4 * kk + d}, v{r + 3}, v{r + 2}, v{vSEL}")
            a(f"v_accvgpr_write_b32 a{8 * kk + d}, v{vT0}")
            a(f"v_accvgpr_write_b32 a{8 * kk + 4 + d}, v{vT1}")
    a(f"""
    s_and_b32 s{sK3}, s{S_WAVE}, 1
    s_lshl_b32 s{S_TMP}, s{sK3}, 4
    v_add_u32 v{vT0}, s{S_TMP}, v{vC}
    v_lshlrev_b32 v{vSTO}, 4, v{vT0}
    v_mul_u32_u24 v{vROW}, 1152, v{vT0}
    s_mul_i32 s{S_TMP}, s{sSL}, 96
    v_add_u32 v{vROW}, s{S_TMP}, v{vROW}
    s_mul_i32 s{S_TMP}, s{sSL}, 3072
    v_add_u32 v{vRES}, s{S_TMP}, v{vSTO}
    s_lshl_b32 s{S_TMP}, s{sSL}, 9
    v_add_u32 v{vSTO}, s{S_TMP}, v{vSTO}
    s_lshl_b32 s{sK1}, s{sSL}, 7
    s_lshl_b32 s{S_TMP}, s{S_WAVE}, 2
    s_add_u32 s{sK1}, s{sK1}, s{S_TMP}
    s_add_u32 s{sK1}, s{sK1}, {WS_FLAGS + FL_XA + NSEG * FL_STRIDE}
    s_mul_i32 s{S_TMP}, s{S_WAVE}, 6144
    v_add_u32 v{vRED}, s{S_TMP}, v{vL16}
    v_mov_b32 v{vMBT}, 0x10000
    v_lshrrev_b32 v51, 4, v{vL16}
    v_min_u32 v51, 42, v51
    s_mul_i32 s{S_TMP}, s{sSL}, 43
    v_add_u32 v51, s{S_TMP}, v51
    v_lshlrev_b32 v51, 7, v51
    s_cmp_gt_u32 s{S_WAVE}, 1
    s_cbranch_scc1 Ltw_z
    """)
    for z in (0, 1):
        nm = "LtwZ" if z else "LtwX"
        if z:
            a.label("Ltw_z")
            a.restore(([], []))
            a(f"""
            v_lshrrev_b32 v{vT0}, 1, v{vG}
            v_lshl_add_u32 v{vRES}, v{vT0}, 9, v{vRES}
            v_and_b32 v{vT0}, 1, v{vG}
            v_lshl_add_u32 v{vRES}, v{vT0}, 3, v{vRES}
            v_add_u32 v{vRES}, 2048, v{vRES}
            v_lshl_add_u32 v{vROW}, v{vG}, 3, v{vROW}
            v_add_u32 v{vROW}, 64, v{vROW}
            v_add_u32 v{vSTO}, 8, v{vSTO}
            """)
        else:
            a(f"v_lshl_add_u32 v{vRES}, v{vG}, 9, v{vRES}")
            a(f"v_lshl_add_u32 v{vROW}, v{vG}, 4, v{vROW}")
        st = "dwordx2" if z else "dwordx4"
        nq = 1 if z else 2
        nv = 4 * nq
        R = ACC
        RDL = [ACC + 8, ACC + 12, ACC + 16, ACC + 20, 56, 60, RING + 60, OUTP]
        RD = lambda k: RDL[k]

        def step1():
            return [f"s_cmp_lt_u32 s{sN1}, {TW_S0 - 1}", f"s_cselect_b32 s{sLEFT}, 1, 3"]

        def addr_next():
            return [f"s_lshl_b32 s{sO1}, s{sNO}, 18", f"s_add_u32 s{sO1}, s{sO1}, s{sWQ}",
                    f"s_mul_i32 s{sNX}, s{sNL}, {2 * X_BYTES}", f"s_mul_i32 s{S_TMP}, s{sNS}, {X_SEG}",
                    f"s_add_u32 s{sNX}, s{sNX}, s{S_TMP}", f"s_add_u32 s{sNX}, s{sNX}, {WS_X + X_BYTES}"]

        def ld(i, srd_):
            if i % 4 == 0:
                a(f"s_add_u32 s{sO3}, s{sO1}, {i * 1024}")
            a(f"buffer_load_dwordx4 {vr(RING + 4 * (i % 16), 4)}, v{vL16}, {srd_}, s{sO3} offen offset:{(i % 4) * 1024}{TWLD}")

        def line_pf(srd_):
            if TWPF:
                a(f"buffer_load_dword v10, v51, {srd_}, s{sO1} offen")
                a.vmq.pop()

        def first_loads(srd_):
            line_pf(srd_)
            for i in range(15):
                ld(i, srd_)
            a(f"buffer_load_{st} {vr(RES, nv // 2)}, v{vRES}, {srd_}, s{sNX} offen")

        def w0(fn, lab):
            if not z:
                a(f"s_cmp_lg_u32 s{S_WAVE}, 0")
                a(f"s_cbranch_scc1 {lab}")
                sn = a.snap()
                fn()
                a.restore(sn)
                a.label(lab)

        def post():
            a(f"v_mov_b32 v{vT0}, s{sDEC}")
            a(f"ds_write_b32 v{vMBT}, v{vT0}")

        a(f"""
        s_lshl_b32 s{sWQ}, s{S_WAVE}, 16
        s_add_u32 s{sWQ}, s{sWQ}, {WS_OF}
        s_mov_b32 s{sPEND}, 0
        s_mov_b32 s{SRD_C}, s{SRD_WS}
        s_mov_b32 s{SRD_C + 1}, s{SRD_WS + 1}
        s_mov_b32 s{SRD_C + 2}, 0
        s_mov_b32 s{SRD_C + 3}, 0x00020000
        s_mul_i32 s{S_TMP}, s{sK3}, 3072
        v_add_u32 v{vRD2}, s{S_TMP}, v{vL16}
        """)
        a(f"ds_write2_b32 v{vMBT}, v{vZERO}, v{vZERO} offset0:0 offset1:1")
        a.wait(lg=0)
        dbg_wait(a, DB_POOL, N_POOL, vT0, vT1, abort, nm + "_ini")
        a.label(nm + "_idle")
        a.restore(([], []))
        w0(lambda: (poll2(a, nm + "_p", abort, FL_OF, 0), post(), a.wait(lg=0)), nm + "_nw0")
        a("s_barrier")
        a(f"ds_read_b32 v{vT1}, v{vMBT}")
        a(f"v_xor_b32 v{vMBT}, 4, v{vMBT}")
        a(f"v_readfirstlane_b32 s{sDEC}, v{vT1}")
        a(f"s_cmp_eq_u32 s{sDEC}, 0")
        a(f"s_cbranch_scc1 {abort}")
        seq(a, step1(), take(sDEC, 2, f"s{sLEFT}"), addr_next(), f"s_cmp_ge_u32 s{sNS}, {NSEG}", f"s_cbranch_scc1 {abort}")
        first_loads(WS)
        for _ in range(nst_):
            a.vmq.append((frozenset(), "st"))
        a.label(nm + "_item")
        trace(a, vT0, vT1, True) if TRACE == 1 else None
        a(f"s_mov_b32 s{sCL}, s{sNL}")
        a(f"s_mov_b32 s{sCS}, s{sNS}")
        a(f"s_mov_b32 s{sO2}, s{sNX}")
        a.vmq = a.vmq[:16]
        for i in range(64):
            kk, tt = i >> 1, i & 1
            ld((i + 15) % 64, WS if i + 15 < 64 else PFS)
            b = vr(RING + 4 * (i % 16), 4)
            c = "0" if kk == 0 else None
            a(MF(ACC + 12 * tt, ar(8 * kk, 4), b, c))
            a(MF(ACC + 12 * tt + 4, ar(8 * kk + 4, 4), b, c))
            a(MF(ACC + 12 * tt + 8, vr(ZB + 4 * kk, 4), b, c))
            if i == 17:
                a(f"s_cmp_lg_u32 s{sPEND}, 0")
                a("s_cselect_b64 exec, 1, 0")
                a(f"buffer_store_dword v{vONE}, v{vZERO}, {WS}, s{sPEND} offen sc1")
                a("s_mov_b64 exec, -1")
                a(f"s_mov_b32 s{sPEND}, 0")
            if i == 26:
                w0(lambda: (cand_addr(a, FL_OF), sample2(a)), nm + "_nw1")
            if i == 44:
                w0(lambda: (decide(a, 0), post(), a.force_wait(lg=0)), nm + "_nw2")
                a("s_barrier")
                a(f"ds_read_b32 v{vT1}, v{vMBT}")
                a(f"v_xor_b32 v{vMBT}, 4, v{vMBT}")
            if i == 47:
                a(f"v_readfirstlane_b32 s{sDEC}, v{vT1}")
                seq(a, step1(), take(sDEC, 2, f"s{sLEFT}"))
            if i == 48:
                seq(a, f"s_cmp_lt_u32 s{sNS}, {NSEG}", f"s_cselect_b32 s{sDEC}, s{sDEC}, 0")
                seq(a, addr_next(), f"s_cmp_lg_u32 s{sDEC}, 0", f"s_cselect_b32 s{SRD_C + 2}, {WS_BYTES}, 0")
                line_pf(PFS)
        a.nop(6)
        for q in range(6):
            a(f"ds_write_b128 v{vRED}, {vr(ACC + 4 * q, 4)} offset:{q * 1024}")
        a.force_wait(lg=0)
        a("s_barrier")
        for wv in range(4):
            for q in range(nq):
                a(f"ds_read_b128 {vr(RD(wv * nq + q), 4)}, v{vRD2} offset:{wv * 6144 + (2 if z else q) * 1024}")
        a(f"v_xor_b32 v{vRED}, 0x8000, v{vRED}")
        a(f"v_xor_b32 v{vRD2}, 0x8000, v{vRD2}")
        if z:
            for i in range(2):
                a(f"v_lshlrev_b32 v{R + 2 * i}, 16, v{RES + i}")
                a(f"v_and_b32 v{R + 2 * i + 1}, 0xffff0000, v{RES + i}")
        else:
            for i in range(4):
                a(f"v_lshlrev_b32 v{R + i}, 16, v{RES + i}")
                a(f"v_and_b32 v{R + 4 + i}, 0xffff0000, v{RES + i}")
        a(f"buffer_load_{st} {vr(RES, nv // 2)}, v{vRES}, {PFS}, s{sNX} offen")
        for wv in range(4):
            for i in range(nv):
                a(f"v_add_f32 v{R + i}, v{R + i}, v{RD(wv * nq + i // 4) + i % 4}")
        if z:
            a(f"v_cvt_pk_bf16_f32 v{OUTP}, v{R}, v{R + 1}")
            a(f"v_cvt_pk_bf16_f32 v{OUTP + 1}, v{R + 2}, v{R + 3}")
        else:
            for i in range(4):
                a(f"v_cvt_pk_bf16_f32 v{OUTP + i}, v{R + i}, v{R + 4 + i}")
        a(f"s_cmp_eq_u32 s{sCL}, 0")
        a(f"s_cbranch_scc1 {nm}_l0")
        win = list(a.win)
        sn = a.snap()
        a(f"s_mul_i32 s{S_TMP}, s{sCS}, {32 * 1152}")
        a(f"buffer_store_{st} {vr(OUTP, nv // 2)}, v{vROW}, {OUTS}, s{S_TMP} offen{OUTSC}")
        a(f"s_cmp_lg_u32 s{sDEC}, 0")
        a(f"s_cbranch_scc1 {nm}_item")
        a.label(nm + "_chk")
        a(f"s_min_u32 s{S_TMP}, s{sN0}, s{sN1}")
        a(f"s_cmp_lt_u32 s{S_TMP}, {NSEG}")
        a(f"s_cbranch_scc1 {nm}_idle")
        trace(a, vT0, vT1, True) if TRACE != 4 else None
        stamp_max(a, 7, vT0, vT1) if DBGT == 1 else None
        a(f"s_branch {done}")
        a.label(nm + "_l0")
        a.win = win
        a.restore(sn)
        a(f"s_add_u32 s{sO2}, s{sO2}, {X_BYTES}")
        a(f"buffer_store_{st} {vr(OUTP, nv // 2)}, v{vRES}, {WS}, s{sO2} offen sc1")
        a(f"v_add_f32 v{SS}, v{R}, v{R + 1}")
        a(f"v_mul_f32 v{SS + 1}, v{R}, v{R}")
        a(f"v_fmac_f32 v{SS + 1}, v{R + 1}, v{R + 1}")
        for i in range(2, nv):
            a(f"v_add_f32 v{SS}, v{SS}, v{R + i}")
            a(f"v_fmac_f32 v{SS + 1}, v{R + i}, v{R + i}")
        for sw in (32, 16):
            seq(a, f"v_mov_b32 v{SS + 2}, v{SS}", f"v_mov_b32 v{SS + 3}, v{SS + 1}",
                f"v_permlane{sw}_swap_b32 v{SS}, v{SS + 2}", f"v_permlane{sw}_swap_b32 v{SS + 1}, v{SS + 3}",
                f"v_add_f32 v{SS}, v{SS}, v{SS + 2}", f"v_add_f32 v{SS + 1}, v{SS + 1}, v{SS + 3}")
        a(f"""
        s_mul_i32 s{S_TMP}, s{sCS}, {ST_SEG}
        s_add_u32 s{S_TMP}, s{S_TMP}, {WS_ST + 2 * ST_BYTES}
        s_mov_b64 exec, 0xffff
        buffer_store_dwordx2 {vr(SS, 2)}, v{vSTO}, {WS}, s{S_TMP} offen sc1
        s_mov_b64 exec, -1
        s_mul_i32 s{sPEND}, s{sCS}, {FL_STRIDE}
        s_add_u32 s{sPEND}, s{sPEND}, s{sK1}
        """)
        trace_at(a, sCS, vT0, vZERO)
        a(f"s_cmp_lg_u32 s{sDEC}, 0")
        a(f"s_cbranch_scc1 {nm}_item")
        w0(lambda: (cand_addr(a, FL_OF), sample2(a)), nm + "_nw3")
        a.force_wait(vm=0)
        flag_out(a, sPEND)
        a(f"s_mov_b32 s{sPEND}, 0")
        a(f"s_min_u32 s{S_TMP}, s{sN0}, s{sN1}")
        a(f"s_cmp_lt_u32 s{S_TMP}, {NSEG}")
        a(f"s_cbranch_scc0 {nm}_chk")
        if not z:
            a(f"s_cmp_lg_u32 s{S_WAVE}, 0")
            a(f"s_cbranch_scc1 {nm}_nw0")
            decide(a, 0)
            a(f"s_cmp_eq_u32 s{sDEC}, 0")
            a(f"s_cbranch_scc1 {nm}_idle")
            post()
            a.force_wait(lg=0)
        a(f"s_branch {nm}_idle" if z else f"s_branch {nm}_nw0")
```

```python
from common import *
import struct, os

WS = f"s[{SRD_WS}:{SRD_WS + 3}]"
L0_AP = 16
L0_T = 16
SLP = int(os.environ.get("SLP", "4"))
AQLDW = int(os.environ.get("AQLDW", "1"))
EARLYF = int(os.environ.get("EARLYF", "0"))


def f32bits(x):
    return struct.unpack("<I", struct.pack("<f", x))[0]


sN0, sN1 = S_FREE, S_FREE + 1
sCL, sCS = S_FREE + 2, S_FREE + 3
sNL, sNS = S_FREE + 4, S_FREE + 5
sLEFT = S_FREE + 6
sPF = S_FREE + 7
sBUF = S_FREE + 8
sNX = S_FREE + 9
sNFL = S_FREE + 10
sPEND = S_FREE + 11
sSELX, sSELY = S_FREE + 12, S_FREE + 13
sO1, sO2, sO3 = S_FREE + 14, S_FREE + 15, S_FREE + 16
sK1, sK2, sK3, sK4 = S_FREE + 17, S_FREE + 18, S_FREE + 19, S_FREE + 20
sE = S_FREE + 22
sNO = S_FREE + 24
sCO = S_FREE + 25
sWQ = S_FREE + 26
sOB = S_FREE + 27
sF0, sF1, sDEC = S_FREE + 28, S_FREE + 29, S_FREE + 30
sLAYS = S_FREE + 31
sSB, sW1K = S_FREE + 34, S_FREE + 35
sX0, sX1 = S_FREE + 32, S_FREE + 33

vL16, vFLA, vFLV, vONE, vZERO, vT0, vT1, vC, vG = range(9)
XBUF = X_SEG


def seq(a, *items):
    for it in items:
        if isinstance(it, (list, tuple)):
            seq(a, *it)
        elif callable(it):
            it()
        elif it:
            a(it)


def MF(acc, A, B, C=None):
    return f"v_mfma_f32_16x16x32_bf16 {vr(acc, 4)}, {A}, {B}, {vr(acc, 4) if C is None else C}"


def lane_setup(a, nflags):
    a(f"""
    v_and_b32 v{vT0}, 63, v0
    v_lshlrev_b32 v{vL16}, 4, v{vT0}
    v_and_b32 v{vC}, 15, v{vT0}
    v_lshrrev_b32 v{vG}, 4, v{vT0}
    v_min_u32 v{vFLA}, {nflags - 1}, v{vT0}
    v_lshrrev_b32 v{vT1}, 2, v{vFLA}
    v_and_b32 v{vFLA}, 3, v{vFLA}
    v_lshlrev_b32 v{vFLA}, 2, v{vFLA}
    v_lshl_add_u32 v{vFLA}, v{vT1}, 7, v{vFLA}
    v_mov_b32 v{vONE}, 1
    v_mov_b32 v{vZERO}, 0
    s_mov_b32 s{sSELX}, 0x05040100
    s_mov_b32 s{sSELY}, 0x07060302
    """)


def pick_next(a, step, l0):
    a(f"""
    s_add_u32 s{S_TMP}, s{sN1}, {l0}
    s_min_u32 s{S_TMP}, s{S_TMP}, {NSEG}
    s_cmp_lt_u32 s{sN0}, s{S_TMP}
    s_cselect_b32 s{sNL}, 0, 1
    s_cselect_b32 s{sNS}, s{sN0}, s{sN1}
    s_cselect_b32 s{S_TMP}, {step}, 0
    s_cselect_b32 s{S_TMP + 1}, 0, {step}
    s_add_u32 s{sN0}, s{sN0}, s{S_TMP}
    s_add_u32 s{sN1}, s{sN1}, s{S_TMP + 1}
    s_lshl_b32 s{sNO}, s{sNL}, 6
    s_add_u32 s{sNO}, s{sNO}, s{sNS}
    """)


def flag_out(a, sreg):
    a("s_mov_b64 exec, 1")
    a(f"buffer_store_dword v{vONE}, v{vZERO}, {WS}, s{sreg} offen sc1")
    a("s_mov_b64 exec, -1")


def flag_block(a, name, abort):
    L = a.newlabel(name)
    a(f"s_mov_b32 s{S_SPIN}, 0")
    a.label(L)
    a(f"buffer_load_dword v{vFLV}, v{vFLA}, {WS}, s{sNFL} offen sc1")
    spin_check(a, abort)
    a(f"v_cmp_eq_u32 vcc, 0, v{vFLV}")
    Ld = a.newlabel(name + "d")
    a(f"s_cbranch_vccz {Ld}")
    a(f"s_sleep {SLP}")
    a(f"s_branch {L}")
    a.label(Ld)


PFS = f"s[{SRD_C}:{SRD_C + 3}]"


STB3 = 0x1C000
sCSB = S_FREE + 39
P3 = int(os.environ.get('P3', '0'))
MBOX = 2 * XBUF + 1024
vFL1 = 15


def cand_addr(a, flag_off):
    a(f"""
    s_mul_i32 s{sF0}, s{sN0}, {FL_STRIDE}
    s_add_u32 s{sF0}, s{sF0}, {WS_FLAGS + flag_off}
    s_cmp_lt_u32 s{sN0}, {NSEG}
    s_cselect_b32 s{sF0}, s{sF0}, {WS_ZERO}
    s_mul_i32 s{sF1}, s{sN1}, {FL_STRIDE}
    s_add_u32 s{sF1}, s{sF1}, {WS_FLAGS + flag_off + NSEG * FL_STRIDE}
    s_cmp_lt_u32 s{sN1}, {NSEG}
    s_cselect_b32 s{sF1}, s{sF1}, {WS_ZERO}
    """)


def sample2(a):
    a(f"buffer_load_dword v{vFLV}, v{vFLA}, {WS}, s{sF0} offen sc1")
    a(f"buffer_load_dword v{vFL1}, v{vFLA}, {WS}, s{sF1} offen sc1")


def decide(a, prio=1):
    a(f"v_cmp_eq_u32 vcc, 0, v{vFLV}")
    a(f"v_cmp_eq_u32 s[{sE}:{sE + 1}], 0, v{vFL1}")
    m = ["vcc", f"s[{sE}:{sE + 1}]"]
    a(f"s_cmp_eq_u64 {m[1 - prio]}, 0")
    a(f"s_cselect_b32 s{sDEC}, {2 - prio}, 0")
    a(f"s_cmp_eq_u64 {m[prio]}, 0")
    a(f"s_cselect_b32 s{sDEC}, {1 + prio}, s{sDEC}")


def take(dec, step, step1=None):
    return [f"s_cmp_eq_u32 s{dec}, 2",
            f"s_cselect_b32 s{sNL}, 1, 0",
            f"s_cselect_b32 s{sNS}, s{sN1}, s{sN0}",
            f"s_cselect_b32 s{S_TMP}, {step if step1 is None else step1}, 0",
            f"s_add_u32 s{sN1}, s{sN1}, s{S_TMP}",
            f"s_cmp_eq_u32 s{dec}, 1",
            f"s_cselect_b32 s{S_TMP}, {step}, 0",
            f"s_add_u32 s{sN0}, s{sN0}, s{S_TMP}",
            f"s_lshl_b32 s{sNO}, s{sNL}, 6",
            f"s_add_u32 s{sNO}, s{sNO}, s{sNS}"]


def poll2(a, name, abort, flag_off, prio=1):
    cand_addr(a, flag_off)
    L = a.newlabel(name)
    a(f"s_mov_b32 s{S_SPIN}, 0")
    a.label(L)
    sample2(a)
    spin_check(a, abort)
    decide(a, prio)
    a(f"s_cmp_lg_u32 s{sDEC}, 0")
    a(f"s_cbranch_scc1 {L}d")
    a(f"s_sleep {SLP}")
    a(f"s_branch {L}")
    a.label(L + "d")


def staged_loop(a, name, abort, done, xbase, xlayer, flag_off, extra_loads, compute, out_flag, nst, vMB, laysel=None, waited=False, epi=None, early=None, vsrc=None, pub2=None):
    crit = [f"s_cmp_eq_u32 s{sDEC}, 2", f"s_cselect_b32 s{sNX}, s{sX1}, s{sX0}",
            f"s_cmp_lg_u32 s{sDEC}, 0", f"s_cselect_b32 s{SRD_C + 2}, {WS_BYTES}, 0"]
    adv_x = [f"s_cmp_eq_u32 s{sDEC}, 2", f"s_cselect_b32 s{S_TMP}, {X_SEG}, 0", f"s_add_u32 s{sX1}, s{sX1}, s{S_TMP}",
             f"s_cmp_eq_u32 s{sDEC}, 1", f"s_cselect_b32 s{S_TMP}, {X_SEG}, 0", f"s_add_u32 s{sX0}, s{sX0}, s{S_TMP}"]

    def dma_ops(srd_):
        ops = []
        for i in range(9):
            pre = []
            if i % 4 == 0:
                pre = [f"s_add_u32 m0, s{sOB}, {i * 1024}", f"s_add_u32 s{sO2}, s{sNX}, {i * 1024}"]
            ops.append(pre + [f"buffer_load_dwordx4 v{vL16 if vsrc is None else vsrc}, {srd_}, s{sO2} offen offset:{(i % 4) * 1024} lds"])
        return ops

    def post():
        a(f"v_mov_b32 v{vT0}, s{sDEC}")
        a(f"ds_write_b32 v{vMB}, v{vT0}")
        a.wait(lg=0)

    def publish():
        a(f"s_cmp_lg_u32 s{sPEND}, 0")
        a("s_cselect_b64 exec, 1, 0")
        if pub2 is None:
            a(f"buffer_store_dword v{vONE}, v{vZERO}, {WS}, s{sPEND} offen sc1")
        else:
            a(f"buffer_store_dwordx2 {vr(pub2, 2)}, v{vZERO}, {WS}, s{sPEND} offen sc1")
        a("s_mov_b64 exec, -1")
        a(f"s_mov_b32 s{sPEND}, 0")

    def cur_from_next():
        a(f"s_mov_b32 s{sCL}, s{sNL}")
        a(f"s_mov_b32 s{sCS}, s{sNS}")
        a(f"s_mov_b32 s{sCO}, s{sNO}")

    def roll():
        Ls = a.newlabel(name + "_ns")
        a(f"s_cmp_lg_u32 s{S_WAVE}, 0")
        a(f"s_cbranch_scc1 {Ls}")
        sn = a.snap()
        cand_addr(a, flag_off)
        sample2(a)
        a.restore(sn)
        a.label(Ls)

    a(f"""
    s_mov_b32 s{sN0}, 0
    s_mov_b32 s{sN1}, 0
    s_mov_b32 s{sLEFT}, {2 * NSEG}
    s_mul_i32 s{sWQ}, s{S_WAVE}, 9216
    s_mov_b32 s{sBUF}, {XBUF}
    s_mov_b32 s{sOB}, s{sWQ}
    s_mov_b32 s{sPEND}, 0
    s_mov_b32 s{SRD_C}, s{SRD_WS}
    s_mov_b32 s{SRD_C + 1}, s{SRD_WS + 1}
    s_mov_b32 s{SRD_C + 2}, 0
    s_mov_b32 s{SRD_C + 3}, 0x00020000
    v_mov_b32 v{vMB}, {MBOX}
    s_add_u32 s{sX0}, s{sWQ}, {xbase}
    s_add_u32 s{sX1}, s{sWQ}, {xbase + xlayer}
    """)
    if laysel is not None:
        a(f"s_cmp_eq_u32 s{laysel}, 0")
        a(f"s_cselect_b32 s{sN0}, 0, {NSEG}")
        a(f"s_cselect_b32 s{sN1}, {NSEG}, 0")
        a(f"s_mov_b32 s{sLEFT}, {NSEG}")
    a(f"ds_write2_b32 v{vMB}, v{vZERO}, v{vZERO} offset0:0 offset1:1")
    a.wait(lg=0)
    if not waited:
        dbg_wait(a, DB_POOL, N_POOL, vT0, vT1, abort, name + "_ini")
    trace(a, vT0, vT1)
    prof_init(a)
    a(f"s_branch {name}_idle0")
    head = name + "_item"
    a.label(head)
    a.restore(([], []))
    prof_begin(a)
    a.force_wait(vm=nst)
    if EARLYF and (laysel is not None or EARLYF > 1):
        a(f"s_cmp_lt_u32 s{sPEND}, {NSEG * FL_STRIDE}")
        a(f"s_cbranch_scc1 {name}_defer")
        a.force_wait(vm=0)
        publish()
    a.label(name + "_defer")
    prof_end(a, 0)
    a(f"s_cmp_lg_u32 s{S_WAVE}, 0")
    a(f"s_cbranch_scc1 {name}_nw0")
    decide(a)
    post()
    a.label(name + "_nw0")
    prof_begin(a)
    a("s_barrier")
    prof_end(a, 1)
    a(f"ds_read_b32 v{vT1}, v{vMB}")
    a(f"""
    v_xor_b32 v{vMB}, 4, v{vMB}
    s_xor_b32 s{sBUF}, s{sBUF}, {XBUF}
    s_xor_b32 s{sOB}, s{sOB}, {XBUF}
    s_xor_b32 s{sSB}, s{sSB}, 0x2000
    s_xor_b32 s{sCSB}, s{sCSB}, 0x2000
    s_sub_u32 s{sLEFT}, s{sLEFT}, 1
    """)
    if epi:
        early()
        a(f"s_cmp_eq_u32 s{sPEND}, 0")
        a(f"s_cbranch_scc1 {name}_noepi")
        lg = list(a.lgq)
        epi()
        assert a.lgq == lg or not a.lgq
        a.lgq = lg
        a.label(name + "_noepi")
    a.vmq = [(frozenset(), "st")] * nst
    ex = extra_loads(PFS)
    tk = take(sDEC, 1)
    pre = ([f"v_readfirstlane_b32 s{sDEC}, v{vT1}"] + crit, [tk[:5], tk[5:], ex[0][:-1], adv_x[:3], adv_x[3:]] if os.environ.get('BSPLIT', '1') == '1' else [tk, ex[0][:-1], adv_x, [], []])
    ex[0] = ex[0][-1:]

    def mid():
        prof_begin(a) if PROF == 1 else None
        a.wait_tag("st")
        prof_end(a, 2) if PROF == 1 else None
        publish()

    compute(pre, dma_ops(PFS), ex, mid, roll)
    out_flag()
    trace_at(a, sCO, vT0, vZERO)
    if name.startswith("Lp"):
        stamp_max(a, 9, vT0, vT1, (sCO, 1)) if DBGT == 2 else None
    cur_from_next()
    if TRACE == 1:
        a.force_wait(vm=0)
        trace(a, vT0, vT1)
        a.force_wait(vm=0)
    a(f"s_min_u32 s{sDEC}, s{sDEC}, s{sLEFT}")
    a(f"s_cmp_lg_u32 s{sDEC}, 0")
    a(f"s_cbranch_scc1 {head}")
    roll()
    a.force_wait(vm=0)
    publish()
    a(f"s_cmp_eq_u32 s{sLEFT}, 0")
    a(f"s_cbranch_scc1 {name}_end")
    a(f"s_cmp_lg_u32 s{S_WAVE}, 0")
    a(f"s_cbranch_scc1 {name}_nw1")
    decide(a)
    a(f"s_cmp_lg_u32 s{sDEC}, 0")
    a(f"s_cbranch_scc1 {name}_got")
    a.label(name + "_idle0")
    a.restore(([], []))
    a(f"s_cmp_lg_u32 s{S_WAVE}, 0")
    a(f"s_cbranch_scc1 {name}_nw1")
    poll2(a, name + "_pl", abort, flag_off)
    a.label(name + "_got")
    post()
    a.label(name + "_nw1")
    a("s_barrier")
    a(f"ds_read_b32 v{vT1}, v{vMB}")
    a(f"v_xor_b32 v{vMB}, 4, v{vMB}")
    a(f"v_readfirstlane_b32 s{sDEC}, v{vT1}")
    a(f"s_cmp_eq_u32 s{sDEC}, 0")
    a(f"s_cbranch_scc1 {abort}")
    seq(a, crit, take(sDEC, 1), adv_x, dma_ops(WS), extra_loads(WS))
    cur_from_next()
    roll()
    a.force_wait(vm=0)
    if PROF:
        a("s_add_u32 s96, s96, 1000")
    a(f"s_branch {head}")
    a.label(name + "_end")
    prof_dump(a, vT0, vT1)
    a(f"s_branch {done}")


WB = 112


def MF32(acc, A, B, C=None):
    return f"v_mfma_f32_32x32x16_bf16 {vr(acc, 16)}, {A}, {B}, {vr(acc, 16) if C is None else C}"


def load_cols(a, srdb, vad, vsel, items, nt=os.environ.get("NT_P", "")):
    D = 28
    n = len(items)
    for i in range(n + D):
        if i < n:
            r = 16 + 2 * (i % 48)
            a(f"s_add_u32 s{S_TMP}, s{sK1}, {items[i][0]}")
            a(f"buffer_load_dword v{r}, v{vad}, s[{srdb}:{srdb + 3}], s{S_TMP} offen {nt}")
            a(f"buffer_load_dword v{r + 1}, v{vad + 1}, s[{srdb}:{srdb + 3}], s{S_TMP} offen {nt}")
        j = i - D
        if j >= 0:
            r = 16 + 2 * (j % 48)
            a(f"v_perm_b32 v{items[j][1]}, v{r + 1}, v{r}, v{vsel}")


def feat_of_row(a, dst, row, t1):
    a(f"""
    v_and_b32 v{dst}, 19, v{row}
    v_bfe_u32 v{t1}, v{row}, 2, 1
    v_lshl_add_u32 v{dst}, v{t1}, 3, v{dst}
    v_bfe_u32 v{t1}, v{row}, 3, 1
    v_lshl_add_u32 v{dst}, v{t1}, 2, v{dst}
    """)


def sel_of_parity(a, vsel, par, t1):
    a(f"""
    v_mov_b32 v{vsel}, s{sSELX}
    v_mov_b32 v{t1}, s{sSELY}
    v_cmp_eq_u32 vcc, 1, v{par}
    v_cndmask_b32 v{vsel}, v{vsel}, v{t1}, vcc
    """)


def gemm32(a, acc, swap, vXA, ring, pre, dma, extra, mid, roll, init=None, fill=None, issued=False):
    nr = len(ring)

    def rd(t):
        return f"ds_read_b128 {vr(ring[t % nr], 4)}, v{vXA} offset:{t * 1024}"
    if PROF == 2:
        a("s_memtime s[84:85]")
    if not issued:
        for t in range(nr - 1):
            a(rd(t))
    fill = list(fill or [])
    crit, blocks = pre
    blocks = list(blocks)
    vm = list(dma) + list(extra)
    for t in range(36):
        x, w = vr(ring[t % nr], 4), vr(WB + 4 * t, 4)
        a(MF32(acc, x if swap else w, w if swap else x, "0" if (t == 0 and not init) else None))
        if t + nr - 1 < 36:
            a(rd(t + nr - 1))
        k = 3 if t < 16 else 4
        if t == 1:
            seq(a, crit); k = 0
        elif t >= 2 and t % 2 == 1 and blocks:
            k = min(3, 5 - len(blocks[0]))
            seq(a, blocks.pop(0))
        elif t >= 2 and vm and (len(vm) > len(extra) or len(blocks) <= 2):
            assert len(vm) > len(extra) or len(blocks) <= 2
            seq(a, vm.pop(0)); k -= 2
        while fill and k > 0:
            seq(a, fill.pop(0)); k -= 1
        if t == 10:
            mid()
        if t == 16:
            roll()
    assert not vm and not fill and not blocks
    if PROF == 2:
        a("s_memtime s[86:87]")
        a.force_wait(lg=0)
        a("s_sub_u32 s86, s86, s84")
        a("s_add_u32 s97, s97, s86")


VMDENSE = int(os.environ.get("VMDENSE", "1"))
STB = 0x14000


def stats_dma(base, srd_):
    pre = [f"s_mul_i32 s{sO3}, s{sNL}, {2 * ST_BYTES}", f"s_mul_i32 s{S_TMP + 1}, s{sNS}, {ST_SEG}",
           f"s_add_u32 s{sO3}, s{sO3}, s{S_TMP + 1}", f"s_add_u32 s{sO3}, s{sO3}, {base + 4096}"]
    return [pre + [[f"s_add_u32 m0, s{sSB}, 4096", f"s_nop 0",
                    f"buffer_load_dwordx4 v{vL16}, {srd_}, s{sO3} offen lds"]],
            [f"s_add_u32 m0, s{sSB}, s{sW1K}", f"s_sub_u32 s{sO3}, s{sO3}, 4096", f"s_add_u32 s{sO3}, s{sO3}, s{sW1K}",
             f"buffer_load_dwordx4 v{vL16}, {srd_}, s{sO3} offen lds"]]


def stats_loads(base, STR, vaddr, srd_):
    pre = [f"s_mul_i32 s{sO3}, s{sNL}, {2 * ST_BYTES}", f"s_mul_i32 s{S_TMP + 1}, s{sNS}, {ST_SEG}",
           f"s_add_u32 s{sO3}, s{sO3}, s{S_TMP + 1}", f"s_add_u32 s{sO3}, s{sO3}, {base}"]
    ops = [[f"buffer_load_dwordx4 {vr(STR + 4 * i, 4)}, v{vaddr}, {srd_}, s{sO3} offen offset:{512 * i}"] for i in range(6)]
    ops[0] = pre + ops[0]
    return ops


def stats_math(STR, RS, MR):
    ops = []
    for i in range(1, 5):
        ops += [f"v_add_f32 v{STR + j}, v{STR + j}, v{STR + 4 * i + j}" for j in range(4)]
    S1, S2 = STR, STR + 1
    ops += [f"v_add_f32 v{S1}, v{S1}, v{STR + 2}", f"v_add_f32 v{S2}, v{S2}, v{STR + 3}",
            f"v_mov_b32 v{STR + 2}, v{S1}", f"v_mov_b32 v{STR + 3}, v{S2}",
            f"v_permlane32_swap_b32 v{S1}, v{STR + 2}", f"v_permlane32_swap_b32 v{S2}, v{STR + 3}",
            f"v_add_f32 v{S1}, v{S1}, v{STR + 2}", f"v_add_f32 v{S2}, v{S2}, v{STR + 3}",
            f"v_mul_f32 v{S1}, {hex(f32bits(1.0 / 576))}, v{S1}",
            f"v_mul_f32 v{S2}, {hex(f32bits(1.0 / 576))}, v{S2}",
            f"v_fma_f32 v{S2}, -v{S1}, v{S1}, v{S2}",
            f"v_max_f32 v{S2}, 0, v{S2}",
            f"v_add_f32 v{S2}, {hex(f32bits(1e-5))}, v{S2}",
            f"v_rsq_f32 v{RS}, v{S2}",
            f"v_mul_f32 v{MR}, v{S1}, v{RS}"]
    return ops


def role_p(a, abort, done):
    lane_setup(a, 18)
    vXA, vSTA, vCS, vA0, vLDS, vO = 9, 10, 11, 12, 12, 14
    vMB = 108
    ACC, RING, STR, LN = 16, 32, 56, 76
    TT = 96
    CS = 80
    a(f"""
    s_lshr_b32 s{sK2}, s{S_ROLE}, 5
    s_and_b32 s{sK3}, s{S_ROLE}, 31
    s_lshl_b32 s{S_TMP}, s{sK2}, 3
    s_add_u32 s{S_TMP}, s{S_TMP}, {KA_WQ}
    s_load_dwordx2 s[{SRD_A}:{SRD_A + 1}], s[0:1], s{S_TMP}
    s_mov_b32 s{SRD_A + 2}, {576 * 8192}
    s_mov_b32 s{SRD_A + 3}, 0x00020000
    s_lshl_b32 s{sK1}, s{sK3}, 8
    s_lshl_b32 s{S_TMP}, s{S_WAVE}, 6
    s_add_u32 s{sK1}, s{sK1}, s{S_TMP}
    v_bfe_u32 v{vSTA}, v{vL16}, 4, 5
    """)
    feat_of_row(a, vO, vSTA, vT0)
    a(f"""
    v_bfe_u32 v{vT0}, v{vL16}, 8, 1
    v_lshl_add_u32 v{vT1}, v{vC}, 1, v{vT0}
    s_cmp_eq_u32 s{sK2}, 2
    s_cselect_b64 vcc, -1, 0
    v_cndmask_b32 v{vO}, v{vO}, v{vT1}, vcc
    v_and_b32 v{vT0}, 1, v{vO}
    """)
    sel_of_parity(a, vCS, vT0, vT1)
    a(f"""
    v_and_b32 v{vO}, 30, v{vO}
    v_lshrrev_b32 v{vT0}, 9, v{vL16}
    v_lshlrev_b32 v{vA0}, 16, v{vT0}
    v_lshl_add_u32 v{vA0}, v{vO}, 1, v{vA0}
    v_add_u32 v{vA0 + 1}, 8192, v{vA0}
    v_lshlrev_b32 v{vSTA}, 4, v{vSTA}
    v_mul_u32_u24 v{vT1}, 2560, v{vT0}
    v_add_u32 v{vSTA}, v{vSTA}, v{vT1}
    v_add_u32 v{vSTA}, {STB3}, v{vSTA}
    s_lshl_b32 s{sW1K}, s{S_WAVE}, 10
    v_bfe_u32 v{vT1}, v{vL16}, 8, 1
    v_lshlrev_b32 v{vO}, 10, v{vT1}
    v_lshl_add_u32 v{vO}, v{vC}, 4, v{vO}
    v_lshl_add_u32 v{vO}, v{vT0}, 8, v{vO}
    """)
    a.force_wait(lg=0)
    a(f"s_and_b32 s{SRD_A + 1}, s{SRD_A + 1}, 0xffff")
    load_cols(a, SRD_A, vA0, vCS, [((16 * t + 2 * d) * 8192, WB + 4 * t + d) for t in range(36) for d in range(4)])
    a(f"""
    s_mul_i32 s{sK4}, s{sK2}, {QKV_M}
    s_lshl_b32 s{S_TMP}, s{sK3}, 13
    s_add_u32 s{sK4}, s{sK4}, s{S_TMP}
    s_lshl_b32 s{S_TMP}, s{S_WAVE}, 11
    s_add_u32 s{sK4}, s{sK4}, s{S_TMP}
    s_add_u32 s{sK4}, s{sK4}, {WS_QKV}
    s_lshl_b32 s{sK1}, s{sK3}, 9
    s_lshl_b32 s{S_TMP}, s{sK2}, 7
    s_add_u32 s{sK1}, s{sK1}, s{S_TMP}
    s_lshl_b32 s{S_TMP}, s{S_WAVE}, 2
    s_add_u32 s{sK1}, s{sK1}, s{S_TMP}
    s_add_u32 s{sK1}, s{sK1}, {WS_FLAGS + FL_QKV}
    v_mov_b32 v{RING}, 0x3f803f80
    v_mov_b32 v{RING + 1}, 0x3f803f80
    v_mov_b32 v{RING + 2}, 0x3f803f80
    v_mov_b32 v{RING + 3}, 0x3f803f80
    s_lshl_b32 s{S_TMP}, s{S_WAVE}, 8
    s_add_u32 s{S_TMP}, s{S_TMP}, {3 * XBUF}
    v_bfe_u32 v{vT0}, v{vL16}, 4, 5
    v_lshl_add_u32 v{vLDS}, v{vT0}, 2, s{S_TMP}
    v_lshrrev_b32 v{vT0}, 9, v{vL16}
    v_lshl_add_u32 v{vLDS + 1}, v{vT0}, 4, s{S_TMP}
    s_cmp_eq_u32 s{sK2}, 2
    s_cbranch_scc1 Lp_v
    """)
    for swap in (0, 1):
        nm = "LpV" if swap else "LpQ"
        if swap:
            a.label("Lp_v")
            a.restore(([], []))
        for t in range(36):
            w, o = vr(WB + 4 * t, 4), vr(RING, 4)
            a(MF32(ACC if swap else CS, o if swap else w, w if swap else o, "0" if t == 0 else None))
        if swap:
            a(f"v_mov_b32 v{vCS}, v{ACC}")

        def early():
            a(f"v_add_u32 v{vXA}, s{sBUF}, v{vL16}")
            a(f"v_add_u32 v{vT0}, s{sCSB}, v{vSTA}")
            for t in range(3):
                a(f"ds_read_b128 {vr(RING + 4 * t, 4)}, v{vXA} offset:{t * 1024}")
            for i in range(5):
                a(f"ds_read_b128 {vr(STR + 4 * i, 4)}, v{vT0} offset:{512 * i}")

        def compute(pre, dma, extra, mid, roll, swap=swap):
            early()
            sm = [None] * 3 + stats_math(STR, LN, LN + 1)
            if swap:
                sm += [f"ds_write2_b32 v{vLDS}, v{LN}, v{LN + 1} offset0:0 offset1:32"]
                sm += [f"ds_read_b128 {vr(LN + 4 * i, 4)}, v{vLDS + 1} offset:{(i >> 2) * 128 + (i & 3) * 32}" for i in range(8)]
                sm += [None] * 9 + [f"v_mul_f32 v{LN + 16 + i}, v{vCS}, v{LN + 16 + i}" for i in range(16)]
            else:
                sm += [f"v_mul_f32 v{TT + i}, v{LN + 1}, v{CS + i}" for i in range(16)]
            sm += [f"s_mul_i32 s{sO1}, s{sCL}, {3 * QKV_M}", f"s_lshl_b32 s{sK3}, s{sCS}, 18",
                   f"s_add_u32 s{sO1}, s{sO1}, s{sK3}", f"s_add_u32 s{sO1}, s{sO1}, s{sK4}"]
            gemm32(a, ACC, swap, vXA, [RING + 4 * i for i in range(4)], pre, dma, extra, mid, roll, fill=sm, issued=True)
            epi()

        def epi(swap=swap):
            for k in range(2):
                regs = [0, 1, 2, 3, 8, 9, 10, 11] if swap else list(range(8))
                regs = [r + (4 if swap else 8) * k for r in regs]
                for i in regs[::2]:
                    if swap:
                        a(f"v_pk_fma_f32 {vr(ACC + i, 2)}, {vr(ACC + i, 2)}, {vr(LN + i, 2)}, {vr(LN + 16 + i, 2)} neg_lo:[0,0,1] neg_hi:[0,0,1]")
                    else:
                        a(f"v_pk_fma_f32 {vr(ACC + i, 2)}, {vr(ACC + i, 2)}, {vr(LN, 2)}, {vr(TT + i, 2)} op_sel_hi:[1,0,1] neg_lo:[0,0,1] neg_hi:[0,0,1]")
                o = RING + 16 + 4 * k
                for i in range(4):
                    a(f"v_cvt_pk_bf16_f32 v{o + i}, v{ACC + regs[2 * i]}, v{ACC + regs[2 * i + 1]}")
                a(f"buffer_store_dwordx4 {vr(o, 4)}, v{vO}, {WS}, s{sO1} offen offset:{512 * k} sc1", tag="st")

        def out_flag():
            a(f"s_mul_i32 s{sPEND}, s{sCO}, {FL_STRIDE}")
            a(f"s_add_u32 s{sPEND}, s{sPEND}, s{sK1}")

        a(f"s_mov_b32 s{sSB}, {STB3}")
        a(f"s_mov_b32 s{sCSB}, 0x2000")
        staged_loop(a, nm, abort, done, WS_X + X_BYTES, 2 * X_BYTES, FL_XB,
                    lambda sr_: stats_dma(WS_ST + ST_BYTES, sr_), compute, out_flag, 2, vMB if swap else 78)


def role_awo(a, abort, done):
    lane_setup(a, 64)
    vXA, vSTO, vSEL, vA0, vRES = 9, 10, 11, 12, 14
    ACC, RING, RES, SS = 16, 32, 64, 72
    if AQLDW:
        a(f"s_cmp_lt_u32 s{S_ROLE}, 5")
        a("s_cbranch_scc1 Lawo_noord")
        dbg_wait(a, DB_LOADED, AQLDW, vT0, vT1, abort, "Lawo_ord", 64)
        a.label("Lawo_noord")
    srd(a, SRD_A, KA_WO, 576 * 1152)
    a(f"""
    s_cmp_ge_u32 s{S_ROLE}, 5
    s_cselect_b32 s{sLAYS}, 1, 0
    s_cselect_b32 s{S_TMP}, 5, 0
    s_sub_u32 s{S_ROLE}, s{S_ROLE}, s{S_TMP}
    s_lshl_b32 s{sK2}, s{S_ROLE}, 2
    s_add_u32 s{sK2}, s{sK2}, s{S_WAVE}
    s_min_u32 s{sK2}, s{sK2}, 17
    s_lshl_b32 s{sK1}, s{sK2}, 6
    v_bfe_u32 v{vSTO}, v{vL16}, 4, 5
    """)
    feat_of_row(a, vRES, vSTO, vT0)
    a(f"v_and_b32 v{vT0}, 1, v{vRES}")
    sel_of_parity(a, vSEL, vT0, vT1)
    a(f"""
    v_and_b32 v{vRES}, 30, v{vRES}
    v_lshlrev_b32 v{vRES}, 1, v{vRES}
    v_lshrrev_b32 v{vXA}, 9, v{vL16}
    v_mul_u32_u24 v{vT0}, {8 * 1152}, v{vXA}
    v_add_u32 v{vA0}, v{vT0}, v{vRES}
    v_add_u32 v{vA0 + 1}, 1152, v{vA0}
    """)
    load_cols(a, SRD_A, vA0, vSEL, [((18 * t + 2 * (t & 1) + 2 * d) * 1152, WB + 4 * t + d) for t in range(32) for d in range(4)])
    a(f"""
    v_mul_u32_u24 v{vT0}, {72 * 1152}, v{vXA}
    v_add_u32 v{vA0}, v{vT0}, v{vRES}
    v_add_u32 v{vA0 + 1}, 1152, v{vA0}
    """)
    load_cols(a, SRD_A, vA0, vSEL, [((144 * t + 18 * d + (0 if d & 1 else 16)) * 1152, WB + 128 + 4 * t + d) for t in range(4) for d in range(4)])
    a(f"""
    v_lshlrev_b32 v{vSTO}, 4, v{vSTO}
    v_lshl_add_u32 v{vRES}, v{vXA}, 9, v{vSTO}
    s_lshl_b32 s{S_TMP}, s{sK2}, 11
    v_add_u32 v{vRES}, s{S_TMP}, v{vRES}
    s_lshr_b32 s{S_TMP}, s{sK2}, 1
    s_lshl_b32 s{S_TMP}, s{S_TMP}, 9
    s_and_b32 s{S_TMP + 1}, s{sK2}, 1
    s_lshl_b32 s{S_TMP + 1}, s{S_TMP + 1}, 3
    s_add_u32 s{S_TMP}, s{S_TMP}, s{S_TMP + 1}
    v_add_u32 v{vSTO}, s{S_TMP}, v{vSTO}
    s_lshr_b32 s{sK1}, s{sK2}, 2
    s_lshl_b32 s{sK1}, s{sK1}, 7
    s_and_b32 s{S_TMP}, s{sK2}, 3
    s_lshl_b32 s{S_TMP}, s{S_TMP}, 2
    s_add_u32 s{sK1}, s{sK1}, s{S_TMP}
    s_add_u32 s{sK1}, s{sK1}, {WS_FLAGS + FL_XB}
    """)

    def res_loads(srd_):
        pre = [f"s_mul_i32 s{sO3}, s{sNL}, {2 * X_BYTES}", f"s_mul_i32 s{S_TMP + 1}, s{sNS}, {X_SEG}",
               f"s_add_u32 s{sO3}, s{sO3}, s{S_TMP + 1}", f"s_add_u32 s{sO3}, s{sO3}, {WS_X}"]
        ops = [[f"buffer_load_dwordx4 {vr(RES + 4 * k, 4)}, v{vRES}, {srd_}, s{sO3} offen offset:{1024 * k}"] for k in range(2)]
        ops[0] = pre + ops[0]
        return ops

    AOST = int(os.environ.get("AOST", "14"))
    AODEC = int(os.environ.get("AODEC", "32"))

    def compute(start, decide, vm):
        vm = list(vm)
        a(f"v_add_u32 v{vXA}, s{sBUF}, v{vL16}")
        nr = 8
        ring = [RING + 4 * i for i in range(nr)]

        def rd(t):
            return f"ds_read_b128 {vr(ring[t % nr], 4)}, v{vXA} offset:{t * 1024}"
        for t in range(nr - 1):
            a(rd(t))
        for i in range(8):
            a(f"v_lshlrev_b32 v{ACC + 2 * i}, 16, v{RES + i}")
            a(f"v_and_b32 v{ACC + 2 * i + 1}, 0xffff0000, v{RES + i}")
        fl = [f"s_mul_i32 s{sO1}, s{sCL}, {2 * X_BYTES}", f"s_mul_i32 s{sK3}, s{sCS}, {X_SEG}",
              f"s_add_u32 s{sO1}, s{sO1}, s{sK3}", f"s_add_u32 s{sO1}, s{sO1}, {WS_X + X_BYTES}",
              f"s_mul_i32 s{sK4}, s{sCL}, {2 * ST_BYTES}", f"s_mul_i32 s{sK3}, s{sCS}, {ST_SEG}",
              f"s_add_u32 s{sK4}, s{sK4}, s{sK3}", f"s_add_u32 s{sK4}, s{sK4}, {WS_ST + ST_BYTES}"]
        for t in range(36):
            a(MF32(ACC, vr(WB + 4 * t, 4), vr(ring[t % nr], 4), None))
            if t + nr - 1 < 36:
                a(rd(t + nr - 1))
            if fl:
                a(fl.pop(0))
            if t == AOST:
                start()
            if t == AODEC:
                decide()
            elif t > AODEC and vm:
                seq(a, vm.pop(0))
                if vm:
                    seq(a, vm.pop(0))
        seq(a, vm)
        for k in range(2):
            for i in range(4):
                a(f"v_cvt_pk_bf16_f32 v{RING + 4 * k + i}, v{ACC + 8 * k + 2 * i}, v{ACC + 8 * k + 2 * i + 1}")
            a(f"buffer_store_dwordx4 {vr(RING + 4 * k, 4)}, v{vRES}, {WS}, s{sO1} offen offset:{1024 * k} sc1")
        a(f"v_add_f32 v{SS}, v{ACC}, v{ACC + 1}")
        a(f"v_mul_f32 v{SS + 1}, v{ACC}, v{ACC}")
        a(f"v_fmac_f32 v{SS + 1}, v{ACC + 1}, v{ACC + 1}")
        for i in range(2, 16):
            a(f"v_add_f32 v{SS}, v{SS}, v{ACC + i}")
            a(f"v_fmac_f32 v{SS + 1}, v{ACC + i}, v{ACC + i}")
        seq(a, f"v_mov_b32 v{SS + 2}, v{SS}", f"v_mov_b32 v{SS + 3}, v{SS + 1}",
            f"v_permlane32_swap_b32 v{SS}, v{SS + 2}", f"v_permlane32_swap_b32 v{SS + 1}, v{SS + 3}",
            f"v_add_f32 v{SS}, v{SS}, v{SS + 2}", f"v_add_f32 v{SS + 1}, v{SS + 1}, v{SS + 3}",
            f"buffer_store_dwordx2 {vr(SS, 2)}, v{vSTO}, {WS}, s{sK4} offen sc1")

    def out_flag():
        a(f"s_mul_i32 s{sPEND}, s{sCO}, {FL_STRIDE}")
        a(f"s_add_u32 s{sPEND}, s{sPEND}, s{sK1}")

    seq_loop(a, "Lawo", abort, done, WS_OA, X_BYTES, FL_OA, res_loads, compute, out_flag, 3, sLAYS, slp=2, DBGW=11, nflags=64)


def role_aq(a, abort, done, nt=""):
    lane_setup(a, 48)
    vXA, vSTA, vLDS, vOUT = 9, 10, 11, 13
    ACC, CS, RING, STR = 16, 36, 56, 68
    LN, BI = 92, 72
    ST8 = 112
    QB, KC, VA, VB, SP, PP = 128, 132, 136, 140, 144, 68
    AQ1P = int(os.environ.get("AQ1P", "1"))
    AQST = int(os.environ.get("AQST", "10"))
    AQDEC = int(os.environ.get("AQDEC", "14" if AQ1P else "22"))
    NR = int(os.environ.get("AQNR", "4"))
    RG = [RING, RING + 4, RING + 8, 104][:NR]
    vSRC = 111
    WV = 152

    def wreg(tile, t, i=None):
        n = (tile * 18 + t) * 4
        k, b = ("v", WV + n) if n < 104 else ("a", n - 104)
        return f"{k}[{b}:{b + 3}]" if i is None else f"{k}{b + i}"

    a(f"""
    s_lshr_b32 s{sLAYS}, s{S_ROLE}, 4
    s_and_b32 s{S_ROLE}, s{S_ROLE}, 15
    s_lshl_b32 s{sK2}, s{S_ROLE}, 1
    s_lshr_b32 s{S_TMP}, s{S_WAVE}, 1
    s_add_u32 s{sK2}, s{sK2}, s{S_TMP}
    s_and_b32 s{sK3}, s{S_WAVE}, 1
    s_mul_i32 s{sK1}, s{sK2}, 36
    """)
    if AQLDW:
        a(f"s_cmp_eq_u32 s{sLAYS}, 0")
        a("s_cbranch_scc1 Laq_noord")
        dbg_wait(a, DB_LOADED, AQLDW, vT0, vT1, abort, "Laq_ord", 64)
        a.label("Laq_noord")
    srd(a, SRD_A, KA_WQKV, 576 * 3456)
    A_ = f"s[{SRD_A}:{SRD_A + 3}]"
    SLOT, ROWB, MB_ = 7680, 240, 80
    EXA = 18 * SLOT
    ZERO = EXA + 18 * 1024
    GA2, TRM, TRE, MSK, TX, CR, CWR = 16, 19, 20, 21, 22, 23, 28
    sLB, sHD, sDL = sO1, sO2, sO3
    for j in range(2):
        a(f"""
        v_lshrrev_b32 v24, 4, v{vL16}
        v_add_u32 v24, {64 * j}, v24
        v_mul_u32_u24 v25, {(65536 + 14) // 15}, v24
        v_lshrrev_b32 v25, 16, v25
        v_mul_u32_u24 v26, 15, v25
        v_sub_u32 v24, v24, v26
        v_mul_u32_u24 v{GA2 + j}, 3456, v25
        v_mul_u32_u24 v25, {(65536 + 4) // 5}, v24
        v_lshrrev_b32 v25, 16, v25
        v_mul_u32_u24 v26, 5, v25
        v_sub_u32 v24, v24, v26
        v_mul_u32_u24 v25, 1152, v25
        v_lshlrev_b32 v24, 4, v24
        v_add3_u32 v{GA2 + j}, v{GA2 + j}, v24, v25
        """)
    a(f"""
    s_mul_i32 s{sK1}, s{S_ROLE}, 72
    s_and_b32 s{sDL}, s{sK1}, 15
    s_and_b32 s{sK1}, s{sK1}, -16
    s_mul_i32 s{S_TMP}, s{S_WAVE}, {8 * 3456}
    s_add_u32 s{sK1}, s{sK1}, s{S_TMP}
    s_mul_i32 s{sLB}, s{S_WAVE}, {8 * ROWB}
    s_mov_b32 s{sE}, -1
    s_mov_b32 s{sE + 1}, 0x00ffffff
    """)
    def wdma(t):
        a(f"s_add_u32 s{S_TMP}, s{sK1}, {32 * t * 3456}")
        a(f"s_add_u32 m0, s{sLB}, {t * SLOT}")
        a("s_nop 0")
        a(f"buffer_load_dwordx4 v{GA2}, {A_}, s{S_TMP} offen lds")
        a(f"s_add_u32 m0, s{sLB}, {t * SLOT + 1024}")
        a(f"s_mov_b64 exec, s[{sE}:{sE + 1}]")
        a(f"buffer_load_dwordx4 v{GA2 + 1}, {A_}, s{S_TMP} offen lds")
        a("s_mov_b64 exec, -1")
    for t in range(12):
        wdma(t)
    a(f"""
    s_lshr_b32 s{sHD}, s{S_WAVE}, 1
    s_mul_i32 s{S_TMP}, s{sHD}, 40
    s_add_u32 s{S_TMP}, s{S_TMP}, s{sDL}
    s_mul_i32 s{S_TMP + 1}, s{sHD}, 4
    s_add_u32 s{S_TMP + 1}, s{S_TMP + 1}, s{sDL}
    s_add_u32 s{S_TMP + 1}, s{S_TMP + 1}, 32
    s_lshl_b32 s{S_TMP + 2}, s{sHD}, 4
    s_add_u32 s{S_TMP + 2}, s{S_TMP + 2}, {EXA}
    v_lshrrev_b32 v{vT0}, 2, v{vC}
    v_lshl_add_u32 v{vT0}, v{vG}, 3, v{vT0}
    v_and_b32 v{vT1}, 3, v{vC}
    v_mul_u32_u24 v{TRM}, {ROWB}, v{vT0}
    v_add_u32 v{TRM}, s{S_TMP}, v{TRM}
    v_lshl_add_u32 v{TRM}, v{vT1}, 3, v{TRM}
    v_lshlrev_b32 v{TRE}, 5, v{vT0}
    v_add_u32 v{TRE}, s{S_TMP + 2}, v{TRE}
    v_mov_b32 v{TX}, {ZERO}
    v_cmp_eq_u32 vcc, 0, v{vT1}
    v_cndmask_b32 v{TRE}, v{TX}, v{TRE}, vcc
    v_cndmask_b32 v{MSK}, 0, -1, vcc
    v_bfe_u32 v{vT0}, v{vL16}, 4, 5
    v_mul_u32_u24 v{CR}, {ROWB}, v{vT0}
    v_add_u32 v{CR}, s{S_TMP + 1}, v{CR}
    v_lshlrev_b32 v{CWR}, 5, v{vT0}
    v_add_u32 v{CWR}, s{S_TMP + 2}, v{CWR}
    v_mov_b32 v24, 0
    v_mov_b32 v25, 0
    v_mov_b32 v26, 0
    v_mov_b32 v27, 0
    v_lshlrev_b32 v{TX}, 4, v{vC}
    v_add_u32 v{TX}, {ZERO}, v{TX}
    ds_write_b128 v{TX}, v[24:27]
    """)

    def pair(tile, t, hh):
        n = (tile * 18 + t) * 4 + 2 * hh
        k, b = ("v", WV + n) if n < 104 else ("a", n - 104)
        return f"{k}[{b}:{b + 1}]"
    EB = 56

    def batch(ts):
        regs = {t: (EB + 8 * i, EB + 8 * i + 2, EB + 8 * i + 4) for i, t in enumerate(ts)}
        for t in ts:
            e, x, ad = regs[t]
            a(f"v_add_u32 v{ad}, {t * SLOT}, v{CR}")
            a(f"v_mov_b32 v{x + 1}, 0")
            a(f"ds_read_b32 v{e}, v{ad}")
            a(f"ds_read_b32 v{e + 1}, v{ad} offset:{MB_}")
            a(f"ds_read_b32 v{x}, v{ad} offset:{2 * MB_}")
        for t in ts:
            e, x, ad = regs[t]
            a(f"v_add_u32 v{ad + 1}, {t * SLOT}, v{TRM}")
            for hh in range(2):
                for tile, m in ((0, 0), (1, 1), (3, 2)):
                    a(f"ds_read_b64_tr_b16 {pair(tile, t, hh)}, v{ad + 1} offset:{m * MB_ + hh * 4 * ROWB}")
        for t in ts:
            e, x, ad = regs[t]
            a(f"ds_write_b64 v{CWR}, {vr(e, 2)} offset:{t * 1024}")
            a(f"ds_write_b64 v{CWR}, {vr(x, 2)} offset:{t * 1024 + 8}")
        a.wait(lg=0)
        for t in ts:
            e, x, ad = regs[t]
            for tile, off, q in ((2, 0, e), (4, 8, e + 1)):
                a(f"v_and_b32 v{q}, {t * 1024 + off}, v{MSK}")
                a(f"v_add_u32 v{q}, v{q}, v{TRE}")
                for hh in range(2):
                    a(f"ds_read_b64_tr_b16 {pair(tile, t, hh)}, v{q} offset:{hh * 128}")
        a.wait(lg=0)
    for i in range(4):
        a(f"v_mov_b32 v{104 + i}, 0x3f803f80")

    def csum(ts):
        for t in ts:
            for tile in range(5):
                w, o = wreg(tile, t), vr(104, 4)
                a(MF(CS + 4 * tile, o if tile >= 3 else w, w if tile >= 3 else o, "0" if t == 0 else None))
    a.force_wait(vm=2 * 6, lg=0)
    a("s_barrier")
    batch(list(range(0, 6)))
    for t in range(12, 18):
        wdma(t)
    csum(range(0, 6))
    a.force_wait(vm=2 * 6)
    a("s_barrier")
    batch(list(range(6, 12)))
    csum(range(6, 12))
    a.force_wait(vm=0)
    a("s_barrier")
    batch(list(range(12, 18)))
    csum(range(12, 18))
    a("s_barrier")
    NEG = hex(f32bits(-1e30))
    a(f"""
    v_lshlrev_b32 v{vSTA}, 5, v{vC}
    s_lshl_b32 s{S_TMP}, s{sK3}, 4
    v_add_u32 v{vSTA}, s{S_TMP}, v{vSTA}
    v_mul_u32_u24 v{vT1}, 1536, v{vG}
    v_add_u32 v{vSTA}, v{vSTA}, v{vT1}
    s_lshl_b32 s{S_TMP}, s{S_WAVE}, 7
    s_add_u32 s{S_TMP}, s{S_TMP}, {2 * XBUF}
    v_lshl_add_u32 v{vLDS}, v{vC}, 3, s{S_TMP}
    v_lshl_add_u32 v{vLDS + 1}, v{vG}, 5, s{S_TMP}
    v_lshlrev_b32 v{vOUT}, 5, v{vC}
    s_lshl_b32 s{S_TMP}, s{sK3}, 4
    v_add_u32 v{vOUT}, s{S_TMP}, v{vOUT}
    s_lshr_b32 s{S_TMP}, s{sK2}, 2
    s_add_u32 s{S_TMP}, s{S_TMP}, 64
    s_lshl_b32 s{S_TMP}, s{S_TMP}, 9
    s_and_b32 s{S_TMP + 1}, s{sK2}, 3
    s_lshl_b32 s{S_TMP + 1}, s{S_TMP + 1}, 2
    s_add_u32 s{S_TMP}, s{S_TMP}, s{S_TMP + 1}
    v_add_u32 v{vOUT + 1}, s{S_TMP}, v{vOUT}
    v_lshrrev_b32 v{vT0}, 1, v{vG}
    v_lshl_add_u32 v{vOUT}, v{vT0}, 9, v{vOUT}
    v_and_b32 v{vT0}, 1, v{vG}
    v_lshl_add_u32 v{vOUT}, v{vT0}, 3, v{vOUT}
    s_lshl_b32 s{S_TMP}, s{sK2}, 10
    v_add_u32 v{vOUT}, s{S_TMP}, v{vOUT}
    s_lshl_b32 s{sK1}, s{S_ROLE}, 7
    s_lshl_b32 s{S_TMP}, s{S_WAVE}, 2
    s_add_u32 s{sK1}, s{sK1}, s{S_TMP}
    s_add_u32 s{sK1}, s{sK1}, {WS_FLAGS + FL_OA}
    s_mov_b32 s{sK4}, {hex(f32bits(18 ** -0.5 * 1.4426950408889634))}
    v_mov_b32 v{vT1}, {NEG}
    """)
    for i in range(4):
        a(f"v_lshl_add_u32 v{vT0}, v{vG}, 2, {i}")
        a(f"v_sub_u32 v{vT0}, v{vT0}, v{vC}")
        a(f"v_cmp_le_i32 vcc, 9, v{vT0}")
        a(f"v_cndmask_b32 v{BI + i}, v{vT1}, v{vZERO}, vcc")
        a(f"v_add_u32 v{vT0}, 7, v{vT0}")
        a(f"v_cmp_ge_u32 vcc, 7, v{vT0}")
        a(f"v_cndmask_b32 v{BI + 4 + i}, v{vT1}, v{vZERO}, vcc")
    a(f"v_and_b32 v{vSRC}, 0x200, v{vL16}")
    a(f"v_lshl_add_u32 v{vSRC}, v{vC}, 5, v{vSRC}")
    a(f"v_and_b32 v{vT0}, 1, v{vG}")
    a(f"v_lshl_add_u32 v{vSRC}, v{vT0}, 4, v{vSRC}")
    for r in (ST8, VA, VB):
        for i in range(4):
            a(f"v_mov_b32 v{r + i}, 0")
    for i in range(4):
        a(f"v_mov_b32 v{ST8 + 4 + i}, 0x3f803f80")
    a(f"v_mov_b32 v{QB + 3}, 0")
    a(f"v_mov_b32 v{KC + 3}, 0")

    def st_loads(srd_):
        pre = [f"s_mul_i32 s{sO3}, s{sNL}, {2 * ST_BYTES}", f"s_mul_i32 s{S_TMP + 1}, s{sNS}, {ST_SEG}",
               f"s_add_u32 s{sO3}, s{sO3}, s{S_TMP + 1}", f"s_add_u32 s{sO3}, s{sO3}, {WS_ST}"]
        ops = [[f"buffer_load_dwordx4 {vr(STR + 12 + 4 * i, 4)}, v{vSTA}, {srd_}, s{sO3} offen offset:{512 * i}"] for i in range(3)]
        ops[0] = pre + ops[0]
        return ops

    def compute(start, decide, vm, osc):
        vm = list(vm)
        S0 = STR + 12
        a(f"v_lshlrev_b32 v{vXA}, 9, v{vG}")
        a(f"v_lshl_add_u32 v{vXA}, v{vC}, 4, v{vXA}")
        a(f"s_lshl_b32 s{S_TMP}, s{sK3}, 8")
        a(f"s_add_u32 s{S_TMP}, s{S_TMP}, s{sBUF}")
        a(f"v_add_u32 v{vXA}, s{S_TMP}, v{vXA}")
        S1, S2 = S0, S0 + 1
        sm = [f"v_add_f32 v{S0 + j}, v{S0 + j}, v{S0 + 4 * i + j}" for i in (1, 2) for j in range(4)]
        sm += [f"v_add_f32 v{S1}, v{S1}, v{S0 + 2}", f"v_add_f32 v{S2}, v{S2}, v{S0 + 3}"]
        for sw in (32, 16):
            sm += [f"v_mov_b32 v{S0 + 2}, v{S1}", f"v_mov_b32 v{S0 + 3}, v{S2}",
                   f"v_permlane{sw}_swap_b32 v{S1}, v{S0 + 2}", f"v_permlane{sw}_swap_b32 v{S2}, v{S0 + 3}",
                   f"v_add_f32 v{S1}, v{S1}, v{S0 + 2}", f"v_add_f32 v{S2}, v{S2}, v{S0 + 3}"]
        sm += [f"v_mul_f32 v{S1}, {hex(f32bits(1.0 / 576))}, v{S1}", f"v_mul_f32 v{S2}, {hex(f32bits(1.0 / 576))}, v{S2}",
               f"v_fma_f32 v{S2}, -v{S1}, v{S1}, v{S2}", f"v_max_f32 v{S2}, 0, v{S2}",
               f"v_add_f32 v{S2}, {hex(f32bits(1e-5))}, v{S2}", f"v_rsq_f32 v{LN}, v{S2}",
               f"v_mul_f32 v{LN + 1}, v{S1}, v{LN}",
               f"ds_write_b64 v{vLDS}, {vr(LN, 2)}",
               f"ds_read_b128 {vr(LN + 4, 4)}, v{vLDS + 1}", f"ds_read_b128 {vr(LN + 8, 4)}, v{vLDS + 1} offset:16"]
        def rd(n):
            return f"ds_read_b128 {vr(RG[n % NR], 4)}, v{vXA} offset:{(n % 18) * 2048}"
        q0, k0, ex, v0, vx = [ACC + 4 * i for i in range(5)]
        KP = ST8
        MX, T1 = vT0, vT1
        LQ, OX, OY, ON = ACC, ACC + 4, ACC + 8, ST8 + 4

        def fold(tile):
            ops = []
            for i in range(4):
                r = ACC + 4 * tile + i
                rs, mr = (LN + 4 + 2 * i, LN + 5 + 2 * i) if tile >= 3 else (LN, LN + 1)
                ops += [f"v_mul_f32 v{LN + 2}, v{mr}, v{CS + 4 * tile + i}", f"v_fma_f32 v{r}, v{r}, v{rs}, -v{LN + 2}"]
            return ops
        post = fold(0) + fold(2) + fold(1) + [
            f"v_cvt_pk_bf16_f32 v{QB}, v{q0}, v{q0 + 1}", f"v_cvt_pk_bf16_f32 v{QB + 1}, v{q0 + 2}, v{q0 + 3}",
            f"v_cvt_pk_bf16_f32 v{QB + 2}, v{ex}, v{ex + 1}",
            f"v_cvt_pk_bf16_f32 v{KC}, v{k0}, v{k0 + 1}", f"v_cvt_pk_bf16_f32 v{KC + 1}, v{k0 + 2}, v{k0 + 3}",
            f"v_cvt_pk_bf16_f32 v{KC + 2}, v{ex + 2}, v{ex + 3}",
            [f"s_cmp_eq_u32 s{sCS}, 0", f"s_cselect_b32 s{sO1}, {NEG}, 0"],
            None, MF(SP, vr(KP, 4), vr(QB, 4), "0"), None, MF(SP + 4, vr(KC, 4), vr(QB, 4), "0"), None, None]
        post += [f"v_mov_b32 v{KP + i}, v{KC + i}" for i in range(3)] + [None] * 3
        post += [f"v_fma_f32 v{SP + i}, v{SP + i}, s{sK4}, v{BI + i}" for i in range(8)]
        post += [f"v_add_f32 v{SP + i}, s{sO1}, v{SP + i}" for i in range(4)]
        post += [f"v_max3_f32 v{MX}, v{SP}, v{SP + 1}, v{SP + 2}", f"v_max3_f32 v{MX}, v{MX}, v{SP + 3}, v{SP + 4}",
                 f"v_max3_f32 v{MX}, v{MX}, v{SP + 5}, v{SP + 6}", f"v_max_f32 v{MX}, v{MX}, v{SP + 7}",
                 f"v_mov_b32 v{T1}, v{MX}", None, f"v_permlane32_swap_b32 v{MX}, v{T1}", f"v_max_f32 v{MX}, v{MX}, v{T1}",
                 f"v_mov_b32 v{T1}, v{MX}", None, f"v_permlane16_swap_b32 v{MX}, v{T1}", f"v_max_f32 v{MX}, v{MX}, v{T1}"]
        post += [f"v_sub_f32 v{SP + i}, v{SP + i}, v{MX}" for i in range(8)]
        post += [f"v_exp_f32 v{SP + i}, v{SP + i}" for i in range(8)]
        post += [f"v_cvt_pk_bf16_f32 v{PP + i}, v{SP + 2 * i}, v{SP + 2 * i + 1}" for i in range(4)]
        post += [None, MF(LQ, vr(ON, 4), vr(PP, 4), "0"),
                 [f"s_mul_i32 s{sO1}, s{sCO}, {X_SEG}", f"s_add_u32 s{sO1}, s{sO1}, {WS_OA}"]]
        if AQ1P:
            st_, dec_ = (AQST, AQDEC) if osc else (int(os.environ.get("AQFS", "1")), int(os.environ.get("AQFD", "11")))
            seq(a, [rd(i) for i in range(NR - 1)])
            if PROF == 3:
                prof_begin(a)
            for t in range(18):
                if t + NR - 1 < 18:
                    a(rd(t + NR - 1))
                x = vr(RG[t % NR], 4)
                for tile in range(5):
                    w = wreg(tile, t)
                    a(MF(ACC + 4 * tile, x if tile >= 3 else w, w if tile >= 3 else x, "0" if t == 0 else None))
                    if sm and tile < 4:
                        a(sm.pop(0))
                    if tile == 4 and t > dec_ and vm:
                        seq(a, vm.pop(0))
                    if tile == 2 and t > dec_ and len(vm) > 17 - t:
                        seq(a, vm.pop(0))
                if t == st_:
                    start()
                if t == dec_:
                    decide()
            assert not sm
            seq(a, vm)
            vm = []
            if PROF == 3:
                prof_end(a, 3); prof_begin(a)
            f3, f4 = fold(3), fold(4)
            post2 = []
            for op in post:
                if op is None:
                    if f3:
                        post2 += [f3.pop(0), f3.pop(0)]
                    elif f4:
                        post2 += [f4.pop(0), f4.pop(0)]
                else:
                    post2.append(op)
            post = post2 + f3 + f4
            vfold_done = True
        else:
            vfold_done = False
            seq(a, [rd(i) for i in range(NR - 1)])
            if PROF == 3:
                prof_begin(a)
            for n in range(36):
                t = n % 18
                if PROF == 3 and n == 18:
                    prof_end(a, 3); prof_begin(a)
                if n + NR - 1 < 36:
                    a(rd(n + NR - 1))
                x = vr(RG[n % NR], 4)
                for tile in ((0, 1, 2) if n < 18 else (3, 4)):
                    w = wreg(tile, t)
                    a(MF(ACC + 4 * tile, x if tile >= 3 else w, w if tile >= 3 else x, "0" if t == 0 else None))
                    if n < 18 and sm:
                        a(sm.pop(0))
                    if n >= 19:
                        for _ in range(3 if n >= 30 else 2):
                            if post:
                                seq(a, post.pop(0))
                if n == AQST:
                    start()
                if n == 17:
                    assert not sm
                if n == AQDEC:
                    decide()
                elif n > AQDEC and vm:
                    seq(a, vm.pop(0))
            assert not vm
        if PROF == 3:
            prof_end(a, 4); prof_begin(a)
        fo3 = [] if vfold_done else fold(3)
        fo4 = [] if vfold_done else fold(4)
        seq(a, post, f"v_rcp_f32 v{T1}, v{LQ}", fo3,
            f"v_cvt_pk_bf16_f32 v{VA + 2}, v{v0}, v{v0 + 1}", f"v_cvt_pk_bf16_f32 v{VA + 3}, v{v0 + 2}, v{v0 + 3}",
            fo4[:2], MF(OX, vr(VA, 4), vr(PP, 4), "0"), fo4[2:],
            f"v_cvt_pk_bf16_f32 v{VB + 2}, v{vx}, v{vx + 1}", f"v_cvt_pk_bf16_f32 v{VB + 3}, v{vx + 2}, v{vx + 3}",
            f"v_mov_b32 v{VA}, v{VA + 2}", f"v_mov_b32 v{VA + 1}, v{VA + 3}",
            MF(OY, vr(VB, 4), vr(PP, 4), "0"),
            [f"v_mul_f32 v{OX + i}, v{T1}, v{OX + i}" for i in range(4)],
            f"v_cvt_pk_bf16_f32 v{OX}, v{OX}, v{OX + 1}", f"v_cvt_pk_bf16_f32 v{OX + 1}, v{OX + 2}, v{OX + 3}",
            f"buffer_store_dwordx2 {vr(OX, 2)}, v{vOUT}, {WS}, s{sO1} offen{osc}",
            f"v_mov_b32 v{VB}, v{VB + 2}", f"v_mov_b32 v{VB + 1}, v{VB + 3}",
            f"v_mul_f32 v{OY}, v{T1}, v{OY}", f"v_mul_f32 v{OY + 1}, v{T1}, v{OY + 1}",
            f"v_cvt_pk_bf16_f32 v{OY}, v{OY}, v{OY + 1}",
            "s_mov_b64 exec, 0xffff",
            f"buffer_store_dword v{OY}, v{vOUT + 1}, {WS}, s{sO1} offen{osc}",
            "s_mov_b64 exec, -1")
        if PROF == 3:
            prof_end(a, 5)

    def out_flag():
        a(f"s_mul_i32 s{sPEND}, s{sCO}, {FL_STRIDE}")
        a(f"s_add_u32 s{sPEND}, s{sPEND}, s{sK1}")

    class_pure(a, 3, sF1, 24, 25, abort, "Laq_pure")
    a(f"s_cmp_eq_u32 s{sF1}, 0")
    a("s_cbranch_scc1 Laq_slow")
    for nm, osc in (("Laqf", ""), ("Laq", " sc1")):
        if osc:
            a.label("Laq_slow")
            a.restore(([], []))
        seq_loop(a, nm, abort, done, WS_X, 2 * X_BYTES, FL_XA, st_loads, lambda s_, d_, v_, osc=osc: compute(s_, d_, v_, osc),
                 out_flag, 2, sLAYS, vsrc=vSRC, DBGW=9, osc=osc, nflags=48)


SPOLL = int(os.environ.get("SPOLL", "0"))
SPSLP = int(os.environ.get("SPSLP", "4"))
SPR = 72


def sflag_issue(a, sbase, lines, nflags):
    for i, ln in enumerate(lines):
        nw = min(4, nflags - 4 * ln)
        a(f"s_add_u32 s{S_TMP}, s{sbase}, {ln * 128}")
        if nw > 2:
            a(f"s_load_dwordx4 s[{SPR + 4 * i}:{SPR + 4 * i + 3}], s[{SRD_WS}:{SRD_WS + 1}], s{S_TMP} glc")
        else:
            a(f"s_load_dwordx2 s[{SPR + 4 * i}:{SPR + 4 * i + 1}], s[{SRD_WS}:{SRD_WS + 1}], s{S_TMP} glc")


def sflag_and(a, lines, nflags, dst):
    regs = [SPR + 4 * i + j for i, ln in enumerate(lines) for j in range(min(4, nflags - 4 * ln))]
    a(f"s_and_b32 s{dst}, s{regs[0]}, s{regs[1]}")
    for r in regs[2:]:
        a(f"s_and_b32 s{dst}, s{dst}, s{r}")


def sflag_wait(a, name, sbase, nflags, abort, slp):
    nl = (nflags + 3) // 4
    a(f"s_mov_b32 s{S_SPIN}, 0")
    for b0 in range(0, nl, 4):
        lines = list(range(b0, min(nl, b0 + 4)))
        L = f"{name}_s{b0}"
        a.label(L)
        sflag_issue(a, sbase, lines, nflags)
        spin_check(a, abort)
        a.force_wait(lg=0)
        sflag_and(a, lines, nflags, S_TMP + 1)
        a(f"s_cbranch_scc1 {L}d")
        if slp:
            a(f"s_sleep {slp}")
        a(f"s_branch {L}")
        a.label(L + "d")


def seq_loop(a, name, abort, done, xbase, xlayer, flag_off, extra_loads, compute, out_flag, nst, laysel, prefetch=True,
             vsrc=None, pub2=None, slp=None, DBGW=None, osc=" sc1", nflags=None):
    slp = SLP if slp is None else slp

    def dma_ops(srd_):
        ops = []
        for i in range(9):
            pre = []
            if i % 4 == 0:
                pre = [f"s_add_u32 m0, s{sOB}, {i * 1024}", f"s_add_u32 s{sO2}, s{sNX}, {i * 1024}"]
            ops.append(pre + [f"buffer_load_dwordx4 v{vL16 if vsrc is None else vsrc}, {srd_}, s{sO2} offen offset:{(i % 4) * 1024} lds"])
        return ops

    def publish():
        a(f"s_cmp_lg_u32 s{sPEND}, 0")
        a("s_cselect_b64 exec, 1, 0")
        if pub2 is None:
            a(f"buffer_store_dword v{vONE}, v{vZERO}, {WS}, s{sPEND} offen{osc}")
        else:
            a(f"buffer_store_dwordx2 {vr(pub2, 2)}, v{vZERO}, {WS}, s{sPEND} offen sc1")
        a("s_mov_b64 exec, -1")
        a(f"s_mov_b32 s{sPEND}, 0")

    a(f"""
    s_mov_b32 s{sNL}, s{laysel}
    s_mov_b32 s{sCL}, s{laysel}
    s_mov_b32 s{sNS}, 0
    s_lshl_b32 s{sNO}, s{laysel}, 6
    s_mul_i32 s{sWQ}, s{S_WAVE}, 9216
    s_mov_b32 s{sBUF}, {XBUF}
    s_mov_b32 s{sOB}, s{sWQ}
    s_mov_b32 s{sPEND}, 0
    s_mov_b32 s{SRD_C}, s{SRD_WS}
    s_mov_b32 s{SRD_C + 1}, s{SRD_WS + 1}
    s_mov_b32 s{SRD_C + 2}, 0
    s_mov_b32 s{SRD_C + 3}, 0x00020000
    s_mul_i32 s{sNX}, s{laysel}, {xlayer}
    s_add_u32 s{sNX}, s{sNX}, s{sWQ}
    s_add_u32 s{sNX}, s{sNX}, {xbase}
    s_mul_i32 s{sNFL}, s{sNO}, {FL_STRIDE}
    s_add_u32 s{sNFL}, s{sNFL}, {WS_FLAGS + flag_off}
    """)
    if DBGT == 2 and DBGW is not None:
        stamp_max(a, 5 + (DBGW - 9), vT0, vT1, (laysel, 0))
    dbg_wait(a, DB_POOL, N_POOL, vT0, vT1, abort, name + "_ini")
    if DBGT == 2 and DBGW is not None:
        stamp_max(a, 13, vT0, vT1, (laysel, 0))
    trace(a, vT0, vT1)
    prof_init(a)
    a(f"s_branch {name}_poll")
    head = name + "_item"
    a.label(head)
    a.restore(([], []))
    prof_begin(a)
    a.force_wait(vm=nst)
    prof_end(a, 0)
    a.label(name + "_go")
    prof_begin(a)
    a("s_barrier")
    prof_end(a, 1)
    a(f"""
    s_xor_b32 s{sBUF}, s{sBUF}, {XBUF}
    s_xor_b32 s{sOB}, s{sOB}, {XBUF}
    s_xor_b32 s{sSB}, s{sSB}, 0x2000
    s_xor_b32 s{sCSB}, s{sCSB}, 0x2000
    s_mov_b32 s{sCS}, s{sNS}
    s_mov_b32 s{sCO}, s{sNO}
    s_add_u32 s{sNS}, s{sNS}, 1
    s_add_u32 s{sNO}, s{sNO}, 1
    s_add_u32 s{sNX}, s{sNX}, {X_SEG}
    s_add_u32 s{sNFL}, s{sNFL}, {FL_STRIDE}
    s_mov_b32 s{sDEC}, 0
    """)
    a.vmq = [(frozenset(), "st")] * nst

    def start():
        if PROF == 1:
            prof_begin(a)
        a.force_wait(vm=0)
        if PROF == 1:
            prof_end(a, 2)
        a(f"buffer_load_dword v{vFLV}, v{vFLA}, {WS}, s{sNFL} offen sc1")
        publish()

    def decide():
        a.force_wait(vm=1)
        a(f"v_cmp_eq_u32 vcc, 0, v{vFLV}")
        a("s_cmp_eq_u64 vcc, 0")
        a(f"s_cselect_b32 s{sDEC}, 1, 0")
        a(f"s_cmp_lt_u32 s{sNS}, {NSEG}")
        a(f"s_cselect_b32 s{sDEC}, s{sDEC}, 0")
        a(f"s_cmp_lg_u32 s{sDEC}, 0")
        a(f"s_cselect_b32 s{SRD_C + 2}, {WS_BYTES}, 0")

    if prefetch:
        compute(start, decide, dma_ops(PFS) + extra_loads(PFS))
    else:
        compute(None, None, [])
    out_flag()
    trace_at(a, sCO, vT0, vZERO)
    trace5(a, sCS, 2, vT0, vZERO)
    if DBGW is not None:
        stamp_max(a, DBGW, vT0, vT1, (sCO, 0))
    if TRACE == 1:
        a.force_wait(vm=0)
        trace(a, vT0, vT1)
        a.force_wait(vm=0)
    if prefetch:
        a(f"s_cmp_lg_u32 s{sDEC}, 0")
        a(f"s_cbranch_scc1 {head}")
    a(f"buffer_load_dword v{vFLV}, v{vFLA}, {WS}, s{sNFL} offen sc1")
    a.force_wait(vm=0)
    a(f"s_cmp_ge_u32 s{sNS}, {NSEG}")
    a(f"s_cbranch_scc1 {name}_fin")
    a(f"v_cmp_eq_u32 vcc, 0, v{vFLV}")
    a(f"s_cbranch_vccnz {name}_pub")
    seq(a, dma_ops(WS), extra_loads(WS))
    publish()
    trace5(a, sCS, 3, vT0, vZERO)
    a.force_wait(vm=1)
    a(f"s_branch {name}_go")
    a.label(name + "_fin")
    a.restore(([], []))
    prof_dump(a, vT0, vT1)
    publish()
    a(f"s_branch {done}")
    a.label(name + "_pub")
    a.restore(([], []))
    publish()
    trace5(a, sCS, 3, vT0, vZERO)
    a.label(name + "_poll")
    a.restore(([], []))
    if SPOLL & {18: 1, 48: 2, 64: 4}[nflags]:
        sflag_wait(a, name + "_pl", sNFL, nflags, abort, max(slp, SPSLP))
    else:
        a(f"s_mov_b32 s{S_SPIN}, 0")
        L = name + "_pl"
        a.label(L)
        a(f"buffer_load_dword v{vFLV}, v{vFLA}, {WS}, s{sNFL} offen sc1")
        spin_check(a, abort)
        a(f"v_cmp_eq_u32 vcc, 0, v{vFLV}")
        a(f"s_cbranch_vccz {L}d")
        if slp:
            a(f"s_sleep {slp}")
        a(f"s_branch {L}")
        a.label(L + "d")
    trace5(a, sNS, 0, vT0, vZERO)
    seq(a, dma_ops(WS), extra_loads(WS))
    a.force_wait(vm=0)
    trace5(a, sNS, 1, vT0, vZERO)
    a(f"s_branch {name}_go")
```

```python
from common import *
import os, struct

L_MEMA = 0
L_KX = 9216
ROWS = 288
L_QB = 17408
L_KB = L_QB + 8 * ROWS
L_OB = L_KB + 8 * ROWS
L_WO1 = 24576
L_W = 57344
LW_WAVE = 26624
assert L_OB + 8 * ROWS <= L_WO1 and L_W + 4 * LW_WAVE == 163840
PART_W = 2304

vL16, vIDX, vQW, vQR, vOR, vSPARE, vRLD, vRST, vL4, vLW = range(10)
vT0, vT1 = 10, 11
ACCQ, ACCK, ACCV = 12, 20, 28
VXA, VXB = 36, 40
Q = [44 + 4 * i for i in range(7)]
WR = [Q[3], Q[5]]
vSPARE2 = vRLD
WBASE = 72

sH = S_ROLE
sLAY = S_FREE
sSTEP = S_FREE + 1
sMEMR = S_FREE + 2
sMEMR8 = S_FREE + 3
sMEMW = S_FREE + 4
sMEMZ = S_FREE + 5
sPW = S_FREE + 6
sPH = S_FREE + 7
sKP = S_FREE + 8
sKF = S_FREE + 9
sVF = S_FREE + 10
sKM = S_FREE + 11
sFL = S_FREE + 12
sKMB = S_FREE + 13
sKPH = S_FREE + 34
sLATE = S_FREE + 15 - 15 + 8 + 0 if False else 87
sKMW = 86
sKMP, sKPP = 84, 85
sFMK = S_FREE + 46
sKPV = S_FREE + 24
sOFL = S_FREE + 35
sCEXP = S_FREE + 14
sMAXD = S_FREE + 22
sFAST = S_FREE + 23
sMASK = S_FREE + 18
sMLO = S_FREE + 20
sU = S_FREE + 16
sT = S_FREE + 25
sPR = sT
sJOBC = S_FREE + 30
sONES = S_FREE + 36
sM = S_FREE + 38
SRD_D = 80
S_STAMP = 80

MATS = "qkv"
D1 = [int(x) for x in os.environ.get("D1", "6,6,6").split(",")]
D2 = int(os.environ.get("D2", "2"))
R1LDW = int(os.environ.get("R1LDW", "16"))
WOD = int(os.environ.get("WOD", "3"))
RNT0 = int(os.environ.get("RNT0", "0"))
RNT = " nt" if os.environ.get("RNT") else ""
RNTO = " nt" if os.environ.get("RNTO") else ""
DL = int(os.environ["DL"]) if os.environ.get("DL") else None
DLN = int(os.environ.get("DLN", "1"))
PUBHK = int(os.environ.get("PUBHK", "0"))
LATEF = int(os.environ.get("LATEF", "0"))
KST = int(os.environ.get("KST", "0"))
VST = int(os.environ.get("VST", "0"))
S1 = int(os.environ.get("S1", "0"))
S2 = int(os.environ.get("S2", "0"))
NOPUB = int(os.environ.get("NOPUB", "0"))
NOKV = int(os.environ.get("NOKV", "0"))
PFD = int(os.environ.get("PFD", "1"))
RFREE = int(os.environ.get("RFREE", "0"))
TORD = [8, 0, 1, 2, 3, 4, 5, 6, 7]
WO_L = [(TORD[i >> 1], i & 1) for i in (0, 1, 5, 6, 10, 11, 15, 16)]


def f32bits(x):
    return struct.unpack("<I", struct.pack("<f", x))[0]


def build_frag_map():
    fm = {}
    regs = [("v", WBASE + 8 * i) for i in range(23)] + [("a", 8 * i) for i in range(32)]
    ri = 0
    for t in range(9):
        for m in MATS:
            for b in range(2):
                if m == "k" and b == 1:
                    fm[(m, b, t)] = ("l", "W", t)
                else:
                    fm[(m, b, t)] = regs[ri]; ri += 1
    n0 = n1 = 0
    for tau in range(9):
        for ks in range(2):
            if (tau, ks) in WO_L:
                if ks == 0:
                    fm[("o", tau, ks)] = ("l", "W", 9 + n0); n0 += 1
                else:
                    fm[("o", tau, ks)] = ("l", "O", n1); n1 += 1
            else:
                fm[("o", tau, ks)] = regs[ri]; ri += 1
    assert ri == 55 and n0 == 4 and n1 == 4
    return fm


FM = build_frag_map()


def opnd(loc, n=8, off=0):
    k, b = loc[0], loc[1]
    return (vr if k == "v" else ar)(b + off, n)


def lds_addr(loc, w):
    if loc[1] == "W":
        return vLW, loc[2] * 2048
    return vL16, L_WO1 + w * 8192 + loc[2] * 2048


def lw_read(dst, loc, w):
    r, off = lds_addr(loc, w)
    return [f"ds_read_b128 {vr(dst, 4)}, v{r} offset:{off}", f"ds_read_b128 {vr(dst + 4, 4)}, v{r} offset:{off + 1024}"]


def SM(acc, A, B):
    return f"v_smfmac_f32_16x16x64_bf16 {vr(acc, 4)}, {vr(A, 4)}, {B}, v{vIDX}"


def r_setup(a):
    LANE, C, G = 10, 60, 61
    WS = f"s[{SRD_WS}:{SRD_WS + 3}]"
    cexp = hex(f32bits(128 ** -0.5 * 1.4426950408889634))
    a(f"""
    v_and_b32 v{LANE}, 63, v0
    v_and_b32 v{C}, 15, v{LANE}
    v_lshrrev_b32 v{G}, 4, v{LANE}
    v_lshlrev_b32 v{vL16}, 4, v{LANE}
    v_lshlrev_b32 v{vL4}, 2, v{LANE}
    s_mul_i32 s{S_TMP}, s{S_WAVE}, {LW_WAVE}
    s_add_u32 s{S_TMP}, s{S_TMP}, {L_W}
    v_add_u32 v{vLW}, s{S_TMP}, v{vL16}
    s_mov_b32 s{sMAXD}, 0xfffffffe
    s_mov_b32 s{sCEXP}, {cexp}
    s_mov_b32 s{sCEXP + 1}, {cexp}
    s_mov_b32 s{sMASK}, 0x00ff00ff
    s_mov_b32 s{sMASK + 1}, 0x00ff00ff
    s_mov_b32 s{sMLO}, -1
    s_mov_b32 s{sMLO + 1}, 0
    s_mov_b32 s{sONES}, 0x3f803f80
    s_mov_b32 s{sONES + 1}, 0x3f803f80
    s_mov_b32 s{sPH}, 0
    v_lshrrev_b32 v63, 2, v{C}
    v_and_b32 v64, 1, v{C}
    v_lshl_add_u32 v62, v63, 1, v64
    v_bfe_u32 v65, v{C}, 1, 1
    v_mov_b32 v{vIDX}, 0x4444
    v_mov_b32 v63, 0xeeee
    v_cmp_eq_u32 vcc, 0, v65
    v_cndmask_b32 v{vIDX}, v63, v{vIDX}, vcc
    v_mul_u32_u24 v63, {2 * ROWS}, v{G}
    v_lshl_add_u32 v{vQW}, v{C}, 2, v63
    s_lshl_b32 s{S_TMP}, s{S_WAVE}, 6
    v_add_u32 v{vQW}, s{S_TMP}, v{vQW}
    v_mul_u32_u24 v63, {ROWS}, v62
    v_lshl_add_u32 v{vQR}, v{G}, 4, v63
    v_lshl_add_u32 v{vOR}, v{G}, 5, v63
    v_lshl_add_u32 v{vOR}, v65, 4, v{vOR}
    """)
    def between(sfx=""):
        a(f"v_and_b32 v12, 15, v{LANE}")
        a(f"v_lshrrev_b32 v13, 4, v{LANE}")
        WP, GO, CH = 84, 85, 86
        C, G = 12, 13
        M0A, M0B = 14, 15
        a(f"""
        s_lshr_b32 s{WP}, s{sH}, 3
        s_bfe_u32 s{GO}, s{sH}, 0x20001
        s_and_b32 s{CH}, s{sH}, 1
        s_cmp_lt_u32 s{S_WAVE}, 2
        s_cbranch_scc1 Lr_jab{sfx}
        s_lshr_b32 s{WP}, s{sH}, 1
        s_and_b32 s{WP}, s{WP}, 3
        Lr_jab{sfx}:
        s_cmp_lt_u32 s{sH}, 8
        s_cselect_b32 s{sJOBC}, 1, 0
        v_bfe_u32 v20, v{C}, 2, 1
        v_lshl_add_u32 v17, v20, 2, v{G}
        v_mul_u32_u24 v17, {PART_H}, v17
        v_lshrrev_b32 v21, 3, v{C}
        v_lshlrev_b32 v21, 2, v21
        v_and_b32 v20, 3, v{C}
        v_add_u32 v21, v21, v20
        v_lshl_add_u32 v{vRLD}, v21, 4, v17
        s_mul_i32 s{S_TMP}, s{WP}, {PART_W}
        s_lshl_b32 s{S_TMP + 1}, s{S_WAVE}, 10
        s_add_u32 s{S_TMP}, s{S_TMP}, s{S_TMP + 1}
        s_lshl_b32 s{S_TMP + 1}, s{CH}, 7
        s_add_u32 s{S_TMP}, s{S_TMP}, s{S_TMP + 1}
        s_lshl_b32 s{S_TMP + 1}, s{GO}, 8
        s_cmp_lt_u32 s{S_WAVE}, 2
        s_cselect_b32 s{S_TMP + 1}, s{S_TMP + 1}, 0
        s_add_u32 s{S_TMP}, s{S_TMP}, s{S_TMP + 1}
        v_add_u32 v{vRLD}, s{S_TMP}, v{vRLD}
        """)
        HI, RR, G1, G0 = 24, 25, 26, 27
        a(f"""
        v_bfe_u32 v{HI}, v{C}, 1, 2
        v_and_b32 v{RR}, 1, v{C}
        v_lshrrev_b32 v{G1}, 1, v{G}
        v_and_b32 v{G0}, 1, v{G}
        s_cmp_lt_u32 s{S_WAVE}, 2
        s_cbranch_scc0 Lr_jc{sfx}
        s_lshl_b32 s{S_TMP}, s{S_WAVE}, 2
        v_add_u32 v18, s{S_TMP}, v{HI}
        v_lshlrev_b32 v{vRST}, 10, v18
        v_lshl_add_u32 v19, v{G0}, 1, v{RR}
        s_lshl_b32 s{S_TMP}, s{WP}, 4
        s_lshl_b32 s{S_TMP + 1}, s{GO}, 2
        s_add_u32 s{S_TMP}, s{S_TMP}, s{S_TMP + 1}
        v_add_u32 v19, s{S_TMP}, v19
        v_lshl_add_u32 v{vRST}, v19, 4, v{vRST}
        s_lshl_b32 s{S_TMP}, s{CH}, 1
        v_add_u32 v19, s{S_TMP}, v{G1}
        v_lshl_add_u32 v{vRST}, v19, 2, v{vRST}
        s_lshl_b32 s{S_TMP}, s{GO}, 1
        v_add_u32 v19, s{S_TMP}, v{RR}
        v_mul_u32_u24 v19, 576, v19
        v_lshl_add_u32 v19, v18, 4, v19
        v_lshl_add_u32 v19, v{G}, 1, v19
        s_mul_i32 s{S_TMP}, s{WP}, 144
        s_lshl_b32 s{S_TMP + 1}, s{CH}, 3
        s_add_u32 s{S_TMP}, s{S_TMP}, s{S_TMP + 1}
        v_add_u32 v19, s{S_TMP}, v19
        v_lshlrev_b32 v{M0A}, 1, v19
        v_add_u32 v{M0B}, 2, v{M0A}
        s_branch Lr_jd{sfx}
        Lr_jc{sfx}:
        s_lshl_b32 s{S_TMP}, s{CH}, 1
        v_add_u32 v18, s{S_TMP}, v{G1}
        v_lshlrev_b32 v19, 2, v18
        v_lshl_add_u32 v19, v{G0}, 1, v19
        v_add_u32 v19, v19, v{RR}
        s_lshl_b32 s{S_TMP}, s{WP}, 4
        v_add_u32 v19, s{S_TMP}, v19
        v_lshlrev_b32 v{vRST}, 4, v19
        v_lshl_add_u32 v{vRST}, v{HI}, 2, v{vRST}
        v_add_u32 v{vRST}, 8192, v{vRST}
        v_lshl_add_u32 v19, v18, 1, v{RR}
        v_mul_u32_u24 v19, 576, v19
        v_lshl_add_u32 v19, v{G0}, 3, v19
        v_add_u32 v19, v19, v{HI}
        s_mul_i32 s{S_TMP}, s{WP}, 144
        s_add_u32 s{S_TMP}, s{S_TMP}, 128
        v_add_u32 v19, s{S_TMP}, v19
        v_lshlrev_b32 v{M0A}, 1, v19
        v_add_u32 v{M0B}, 8, v{M0A}
        Lr_jd{sfx}:
        """)
        a(f"""
        s_mul_i32 s{sU}, s{sLAY}, {RING_TEAM}
        s_add_u32 s{sU}, s{sU}, {WS_RING}
        s_lshl_b32 s{S_TMP + 1}, s{S_WAVE}, 11
        s_lshl_b32 s{S_TMP + 2}, s{S_WAVE}, 8
        s_add_u32 s{S_TMP + 2}, s{S_TMP + 2}, 8192
        s_mul_i32 s{S_TMP}, s{sH}, {PART_H}
        s_add_u32 s{S_TMP}, s{S_TMP}, s{sU}
        s_mul_i32 s{sPW}, s{S_WAVE}, {PART_W}
        s_add_u32 s{sPW}, s{sPW}, s{S_TMP}
        s_add_u32 s{sMEMZ}, s{sU}, {MEMB_OFF}
        s_xor_b32 s{sMEMW}, s{sMEMZ}, {MEMB_SLOT}
        s_add_u32 s{sMEMR}, s{sMEMZ}, s{S_TMP + 1}
        s_add_u32 s{sMEMR8}, s{sMEMZ}, s{S_TMP + 2}
        s_mul_i32 s{S_TMP}, s{sLAY}, {3 * QKV_M}
        s_lshl_b32 s{S_TMP + 2}, s{sH}, 13
        s_add_u32 s{S_TMP}, s{S_TMP}, s{S_TMP + 2}
        s_add_u32 s{sKP}, s{S_TMP}, {WS_QKV + QKV_M + PFD * 32 * 8192}
        s_add_u32 s{S_TMP}, s{S_TMP}, s{S_TMP + 1}
        s_add_u32 s{sKF}, s{S_TMP}, {WS_QKV + QKV_M}
        s_add_u32 s{sVF}, s{S_TMP}, {WS_QKV + 2 * QKV_M}
        s_mul_i32 s{S_TMP}, s{sLAY}, {KM_D * 32 * KM_UNIT}
        s_lshl_b32 s{S_TMP + 2}, s{sH}, 12
        s_add_u32 s{S_TMP}, s{S_TMP}, s{S_TMP + 2}
        s_lshl_b32 s{S_TMP + 2}, s{S_WAVE}, 9
        s_add_u32 s{S_TMP}, s{S_TMP}, s{S_TMP + 2}
        s_add_u32 s{sKMB}, s{S_TMP}, {WS_KM}
        s_mov_b32 s{sKMW}, s{S_TMP + 2}
        s_mov_b32 s{sKM}, s{sKMB}
        s_mov_b32 s{sKPH}, 0
        s_mov_b32 s{sOFL}, {WS_FLAGS + FL_XA + (NSEG - (KM_D - 1)) * FL_STRIDE}
        s_mov_b32 s{sFMK}, 0xff
        s_mov_b32 s{sFMK + 1}, 0
        s_mul_i32 s{S_TMP}, s{sLAY}, {NSEG * FL_STRIDE}
        s_lshl_b32 s{S_TMP + 2}, s{sH}, 9
        s_add_u32 s{S_TMP}, s{S_TMP}, s{S_TMP + 2}
        s_add_u32 s{sFL}, s{S_TMP}, {WS_FLAGS + FL_QKV}
        s_mov_b32 s{sSTEP}, 0
        """)
        srd(a, 88, KA_MEM0, 9216)
        A_ = "s[88:91]"
        a(f"""
        s_cmp_eq_u32 s{S_WAVE}, 3
        s_cbranch_scc1 Lr_mem0_done{sfx}
        s_cmp_lt_u32 s{S_WAVE}, 2
        s_cselect_b32 s{S_TMP}, 1, s{sJOBC}
        s_cmp_eq_u32 s{S_TMP}, 0
        s_cbranch_scc1 Lr_mem0_done{sfx}
        s_mov_b64 exec, s[{sMASK}:{sMASK + 1}]
        buffer_load_ushort v20, v{M0A}, {A_}, 0 offen
        buffer_load_ushort v21, v{M0B}, {A_}, 0 offen
        v_lshl_or_b32 v20, v21, 16, v20
        v_min_u32 v20, s{sMAXD}, v20
        buffer_store_dword v20, v{vRST}, {WS}, s{sMEMZ} offen sc1
        v_mov_b32 v20, -1
        buffer_store_dword v20, v{vRST}, {WS}, s{sMEMW} offen sc1
        s_mov_b64 exec, -1
        Lr_mem0_done{sfx}:
        v_mov_b32 v20, 1
        v_mov_b32 v21, 1
        v_mov_b32 v22, 1
        v_mov_b32 v23, 1
        s_xor_b32 s{S_TMP}, s{sPW}, {PART_SLOT}
        """)
        for sreg in (sPW, S_TMP):
            for i in range(2):
                a(f"buffer_store_dwordx4 v[20:23], v{vL16}, {WS}, s{sreg} offen offset:{1024 * i} sc1")
            a(f"buffer_store_dword v20, v{vL4}, {WS}, s{sreg} offen offset:2048 sc1")
        a(f"v_lshrrev_b32 v17, 1, v{vL16}")
        a(f"s_mov_b32 s{S_TMP}, s{sKMB}")
        for i in range(KM_D):
            a(f"buffer_store_dwordx2 v[20:21], v17, {WS}, s{S_TMP} offen offset:2048 sc1")
            a(f"s_mov_b64 exec, s[{sMLO}:{sMLO + 1}]")
            a(f"buffer_store_dwordx4 v[20:23], v{vL16}, {WS}, s{S_TMP} offen sc1")
            a(f"s_mov_b64 exec, -1")
            a(f"s_add_u32 s{S_TMP}, s{S_TMP}, {32 * KM_UNIT}")
        a(f"""
        s_cmp_lg_u32 s{S_WAVE}, 3
        s_cbranch_scc1 Lr_not_w3{sfx}
        v_and_b32 v{vRST}, 12, v{vL4}
        v_and_b32 v17, 4, v{LANE}
        v_lshl_add_u32 v{vRST}, v17, 5, v{vRST}
        s_add_u32 s{S_TMP}, s{sFL}, {(384 - (KM_D - 1 - 3) * FL_STRIDE) & 0xffffffff}
        s_cmp_eq_u32 s{sLAY}, 0
        s_cselect_b32 s{sOFL}, s{sOFL}, s{S_TMP}
        s_add_u32 s{S_TMP}, s{sFL}, {FL_STRIDE + 128}
        s_min_u32 s{S_TMP + 1}, s{S_TMP}, s{sOFL}
        s_sub_u32 s{S_TMP}, s{S_TMP}, s{S_TMP + 1}
        v_add_u32 v{vRST}, s{S_TMP}, v{vRST}
        s_sub_u32 s{S_TMP}, s{sOFL}, s{S_TMP + 1}
        v_mov_b32 v17, s{S_TMP}
        v_cmp_gt_u32 vcc, 8, v{LANE}
        v_cndmask_b32 v{vRST}, v17, v{vRST}, vcc
        s_mov_b32 s{sOFL}, s{S_TMP + 1}
        Lr_not_w3{sfx}:
        v_lshlrev_b32 v{vSPARE}, 3, v{vL16}
        s_add_u32 s{sKPV}, s{sKP}, {QKV_M}
        """)
    if R1LDW:
        a(f"s_cmp_eq_u32 s{sLAY}, 0")
        a("s_cbranch_scc1 Lr_noord")
        if GATE0 & 1:
            dbg_wait(a, DB_STEP0, 1, 63, 64, "Lr_abort", "Lr_ord", 32)
        else:
            dbg_wait(a, DB_LOADED, R1LDW, 63, 64, "Lr_abort", "Lr_ord", 32)
        a.label("Lr_noord")
    if RNT0:
        a(f"s_cmp_lg_u32 s{sLAY}, 0")
        a("s_cbranch_scc1 Lr_ld1")
        sn = a.snap()
        load_weights(a, LANE, C, G, between, " nt" if RNT0 & 1 else "", " nt" if RNT0 & 2 else "", "a")
        a("s_branch Lr_ldd")
        a.label("Lr_ld1")
        a.restore(sn)
        load_weights(a, LANE, C, G, between, "", "", "b")
        a.label("Lr_ldd")
    else:
        load_weights(a, LANE, C, G, between)
    a(f"s_add_u32 s{S_TMP}, s{sLAY}, s{S_WAVE}")
    a(f"s_cmp_lg_u32 s{S_TMP}, 0")
    a("s_cbranch_scc1 Lr_nold")
    dbg_add(a, DB_LOADED, 63, 64)
    a.label("Lr_nold")
    for i in range(4):
        a(f"s_add_u32 s{sPR + i}, s{sU}, {i * 8 * PART_H}")
    if PUBHK:
        a(f"s_sub_u32 s{sKMB}, s{sKMB}, s{sKMW}")
        a(f"s_mov_b32 s{sKM}, s{sKMB}")
        a(f"s_lshl_b32 s{sKMP}, s{sLAY}, 5")
        a(f"s_add_u32 s{sKMP}, s{sKMP}, s{sH}")
        a(f"s_lshl_b32 s{sKMP}, s{sKMP}, 12")
        a(f"s_add_u32 s{sKMP}, s{sKMP}, {WS_DUMMY}")
        a(f"s_mov_b32 s{sKPP}, 0")


def load_weights(a, LANE, C, G, between, RNT=RNT, RNTO=RNTO, sfx=""):
    srd(a, SRD_A, KA_WQ, 576 * 8192)
    srd(a, SRD_B, KA_WK, 576 * 8192)
    srd(a, SRD_C, KA_WV, 576 * 8192)
    srd(a, SRD_D, KA_BWO, 4096 * 1152)
    SR = {"q": SRD_A, "k": SRD_B, "v": SRD_C}
    GA, GB, G8A, G8B, TR0, TR1, TRA, TRB, TRW = 62, 63, 64, 65, 66, 67, 68, 69, 70
    WA = 50
    sRow, sLB, sWo = sT, sT + 1, sT + 2
    a(f"""
    v_lshlrev_b32 v71, 1, v{G}
    v_xor_b32 v71, v71, v{C}
    v_lshlrev_b32 v71, 4, v71
    v_lshl_add_u32 v{GA}, v{G}, 13, v71
    v_xor_b32 v{GB}, 128, v{GA}
    v_lshrrev_b32 v{G8A}, 1, v{G}
    v_lshlrev_b32 v{G8A}, 3, v{G8A}
    v_and_b32 v{G8B}, 1, v{G}
    v_lshl_add_u32 v{G8A}, v{G8B}, 2, v{G8A}
    v_lshl_add_u32 v{G8A}, v{G8A}, 13, v71
    v_xor_b32 v{G8B}, 128, v{G8A}
    s_mul_i32 s{sRow}, s{S_WAVE}, {144 * 8192}
    s_lshl_b32 s{S_TMP}, s{sH}, 8
    s_add_u32 s{sRow}, s{sRow}, s{S_TMP}
    s_lshl_b32 s{sLB}, s{S_WAVE}, 12
    """)
    a(f"""
    v_lshrrev_b32 v71, 2, v{C}
    v_lshl_add_u32 v{TR0}, v{G}, 3, v71
    v_lshlrev_b32 v{TR0}, 8, v{TR0}
    v_bfe_u32 v{TR1}, v{C}, 1, 1
    s_lshl_b32 s{S_TMP}, s{S_WAVE}, 2
    v_add_u32 v{TR1}, s{S_TMP}, v{TR1}
    v_lshlrev_b32 v71, 1, v71
    v_xor_b32 v{TR1}, v{TR1}, v71
    v_and_b32 v71, 1, v{G}
    v_lshlrev_b32 v71, 3, v71
    v_xor_b32 v{TR1}, v{TR1}, v71
    v_and_b32 v71, 1, v{C}
    v_lshl_add_u32 v{TR0}, v71, 3, v{TR0}
    v_xor_b32 v71, 2, v{TR1}
    v_lshl_add_u32 v{TR1}, v71, 4, v{TR0}
    v_xor_b32 v71, 2, v71
    v_lshl_add_u32 v{TR0}, v71, 4, v{TR0}
    """)
    tiles = [(m, t) for t in range(9) for m in MATS]
    wo_regs = [FM[k] for k in FM if k[0] == "o" and FM[k][0] != "l"]
    park = {}
    for t in range(9):
        park[("k", 1, t)] = wo_regs[t]
    NT = len(tiles)

    def slot(i):
        return ((i + 3) % 10) * 16384

    def dma(i):
        m, t = tiles[i]
        S = f"s[{SR[m]}:{SR[m] + 3}]"
        for j in range(4):
            a(f"s_add_u32 m0, s{sLB}, {slot(i) + j * 1024}")
            if t < 8:
                a(f"s_add_u32 s{S_TMP}, s{sRow}, {(16 * t + 4 * j) * 8192}")
                g = GA if j < 2 else GB
            else:
                a(f"s_add_u32 s{S_TMP}, s{sRow}, {(128 + j) * 8192}")
                g = G8A if j < 2 else G8B
            a(f"buffer_load_dwordx4 v{g}, {S}, s{S_TMP} offen{RNT} lds")

    stages = [(ks, hf, qq) for ks in range(2) for hf in range(2) for qq in range(2)]
    STG = 18432

    def wo_prep():
        for j in range(5):
            a(f"v_add_u32 v71, {64 * j}, v{LANE}")
            a(f"v_mul_u32_u24 v59, {(65536 + 71) // 72}, v71")
            a(f"v_lshrrev_b32 v59, 16, v59")
            a(f"v_mul_u32_u24 v60, 72, v59")
            a(f"v_sub_u32 v71, v71, v60")
            a(f"v_and_b32 v60, 1, v59")
            a(f"v_lshlrev_b32 v60, 4, v60")
            a(f"v_lshrrev_b32 v59, 1, v59")
            a(f"v_lshl_add_u32 v60, v59, 2, v60")
            a(f"v_mul_u32_u24 v60, 1152, v60")
            a(f"v_lshl_add_u32 v{WA + j}, v71, 4, v60")
        a(f"""
        s_lshr_b32 s{S_TMP}, s{S_WAVE}, 1
        s_lshl_b32 s{S_TMP}, s{S_TMP}, 3
        s_and_b32 s{S_TMP + 1}, s{S_WAVE}, 1
        s_lshl_b32 s{S_TMP + 1}, s{S_TMP + 1}, 1
        s_add_u32 s{S_TMP}, s{S_TMP}, s{S_TMP + 1}
        s_lshl_b32 s{S_TMP + 1}, s{sH}, 7
        s_add_u32 s{S_TMP}, s{S_TMP}, s{S_TMP + 1}
        s_mul_i32 s{sWo}, s{S_TMP}, 1152
        s_mul_i32 s{sT + 3}, s{S_WAVE}, {4 * 1152}
        """)

    def wo_dma(z):
        ks, hf, qq = stages[z]
        base = (z % 3) * STG
        W_ = f"s[{SRD_D}:{SRD_D + 3}]"
        a(f"s_add_u32 s{S_TMP}, s{sWo}, {(64 * ks + 32 * hf + qq) * 1152}")
        for j in range(5):
            a(f"s_add_u32 m0, s{sT + 3}, {base + j * 1024}")
            if j == 4:
                a(f"s_mov_b64 exec, s[{sMLO}:{sMLO + 1}]")
            else:
                a("s_nop 0")
            a(f"buffer_load_dwordx4 v{WA + j}, {W_}, s{S_TMP} offen{RNTO} lds")
        a("s_mov_b64 exec, -1")

    a(f"""
    v_lshrrev_b32 v71, 2, v{C}
    v_lshl_add_u32 v{TRW}, v{G}, 2, v71
    v_mul_u32_u24 v{TRW}, 1152, v{TRW}
    v_and_b32 v71, 3, v{C}
    v_lshl_add_u32 v{TRW}, v71, 3, v{TRW}
    s_mul_i32 s{S_TMP}, s{S_WAVE}, 288
    v_add_u32 v{TRW}, s{S_TMP}, v{TRW}
    """)
    wo_prep()
    vq = []
    issued = [0]
    done_at = {}

    def issue(kind, i):
        if kind == "t":
            dma(i); issued[0] += 4
        else:
            wo_dma(i); issued[0] += 5
        done_at[(kind, i)] = issued[0]

    for i in range(9):
        issue("t", i)
    between(sfx)
    nxt_t, nxt_z = 9, 0
    for i in range(NT):
        a.force_wait(vm=min(63, issued[0] - done_at[("t", i)]))
        a("s_barrier")
        if i == 0:
            a(f"s_cmp_lg_u32 s{S_WAVE}, 0")
            a(f"s_cbranch_scc1 Lr_noadd{sfx}")
            a(f"s_lshl_b32 s{S_TMP}, s{sLAY}, 2")
            a(f"s_add_u32 s{S_TMP}, s{S_TMP}, {DB_TEAM}")
            dbg_add(a, f"s{S_TMP}", 48, 49)
            a.label(f"Lr_noadd{sfx}")
        if i >= 1 and nxt_t < NT:
            assert slot(nxt_t) == slot(i - 1) or nxt_t == 9
            issue("t", nxt_t); nxt_t += 1
        elif i == 0:
            issue("t", nxt_t); nxt_t += 1
        elif i >= 21 and nxt_z < 3:
            issue("z", nxt_z); nxt_z += 1
        m, t = tiles[i]
        a(f"v_add_u32 v{TRA}, {slot(i)}, v{TR0}")
        a(f"v_add_u32 v{TRB}, {slot(i)}, v{TR1}")
        for b in range(2):
            loc = park.get((m, b, t), FM[(m, b, t)])
            for q in range(4):
                a(f"ds_read_b64_tr_b16 {opnd(loc, 2, 2 * q)}, v{(TRA, TRB)[b]} offset:{(32 * (q >> 1) + 4 * (q & 1)) * 256}")
        a.wait(lg=0)
    assert nxt_t == NT and nxt_z == 3
    a("s_barrier")
    for t in range(9):
        loc = park[("k", 1, t)]
        a(f"ds_write_b128 v{vLW}, {opnd(loc, 4)} offset:{t * 2048}")
        a(f"ds_write_b128 v{vLW}, {opnd(loc, 4, 4)} offset:{t * 2048 + 1024}")
    a.wait(lg=0)
    PK = 12
    for z in range(8):
        ks, hf, qq = stages[z]
        a.force_wait(vm=min(63, issued[0] - done_at[("z", z)]))
        a("s_barrier")
        if z >= 1 and nxt_z < 8:
            assert nxt_z % 3 == (z - 1) % 3
            issue("z", nxt_z); nxt_z += 1
        q = 2 * hf + qq
        np_ = 0
        for tau in range(9):
            loc = FM[("o", tau, ks)]
            if loc[0] == "l":
                loc = ("v", PK + 8 * np_); np_ += 1
            a(f"ds_read_b64_tr_b16 {opnd(loc, 2, 2 * q)}, v{TRW} offset:{(z % 3) * STG + 32 * tau}")
        a.wait(lg=0)
        if z == 3:
            np_ = 0
            for tau in range(9):
                loc = FM[("o", tau, 0)]
                if loc[0] == "l":
                    a(f"ds_write_b128 v{vLW}, {vr(PK + 8 * np_, 4)} offset:{loc[2] * 2048}")
                    a(f"ds_write_b128 v{vLW}, {vr(PK + 8 * np_ + 4, 4)} offset:{loc[2] * 2048 + 1024}")
                    np_ += 1
            a.wait(lg=0)
    a("s_barrier")
    a(f"s_lshl_b32 s{S_TMP}, s{S_WAVE}, 13")
    a(f"v_add_u32 v71, s{S_TMP}, v{vL16}")
    np_ = 0
    for tau in range(9):
        loc = FM[("o", tau, 1)]
        if loc[0] == "l":
            a(f"ds_write_b128 v71, {vr(PK + 8 * np_, 4)} offset:{L_WO1 + loc[2] * 2048}")
            a(f"ds_write_b128 v71, {vr(PK + 8 * np_ + 4, 4)} offset:{L_WO1 + loc[2] * 2048 + 1024}")
            np_ += 1
    a.force_wait(vm=0, lg=0)
    a("s_barrier")


def flag_wait_kv(a, name, soff_extra, abort):
    if RFREE:
        return
    L = a.newlabel(name)
    a(f"s_mov_b32 s{S_SPIN}, 0")
    a(f"s_add_u32 s{S_TMP}, s{sFL}, {soff_extra + 128}")
    a(f"v_and_b32 v{vT1}, 16, v{vL4}")
    a(f"v_lshlrev_b32 v{vT1}, 3, v{vT1}")
    a(f"v_and_or_b32 v{vT1}, v{vL4}, 12, v{vT1}")
    a.label(L)
    a(f"buffer_load_dword v{vT0}, v{vT1}, s[{SRD_WS}:{SRD_WS + 3}], s{S_TMP} offen sc1")
    spin_check(a, abort)
    a(f"v_cmp_eq_u32 vcc, 0, v{vT0}")
    a(f"s_cbranch_vccz {L}d")
    a("s_sleep 4")
    a(f"s_branch {L}")
    a.label(L + "d")


def r_loop(a, w, fast, abort, done, stamps=False):
    sc = "" if fast else " sc1"
    pfx = f"Lr{w}{'f' if fast else 's'}_"
    WS = f"s[{SRD_WS}:{SRD_WS + 3}]"
    NST = 10
    HK = (w == 3)
    order = [2 * w, 2 * w + 1] + [t for t in range(8) if t >> 1 != w] + [8]

    STSEL = [int(x) for x in os.environ.get("STSEL", "0,1,2,3,4,5,6,7,8,9,10").split(",")]

    def stamp(i):
        if i not in STSEL:
            return
        if stamps == 2 or (stamps and i == NST):
            a(f"s_memrealtime s[{S_STAMP + 2 * i}:{S_STAMP + 1 + 2 * i}]")
        elif stamps:
            a(f"s_memtime s[{S_STAMP + 2 * i}:{S_STAMP + 1 + 2 * i}]")

    def dump_stamps():
        if stamps:
            a.force_wait(lg=0)
            for i in range(NST + 1):
                a(f"v_writelane_b32 v{vT1}, s{S_STAMP + 2 * i}, {i}")
            a(f"v_writelane_b32 v{vT1}, s3, 11")
            a(f"v_writelane_b32 v{vT1}, s4, 12")
            a(f"s_lshl_b32 s{S_TMP}, s{sLAY}, 5")
            a(f"s_add_u32 s{S_TMP}, s{S_TMP}, s{sH}")
            a(f"s_lshl_b32 s{S_TMP}, s{S_TMP}, 6")
            a(f"s_add_u32 s{S_TMP}, s{S_TMP}, s{sSTEP}")
            a(f"s_lshl_b32 s{S_TMP}, s{S_TMP}, 8")
            a(f"s_add_u32 s{S_TMP}, s{S_TMP}, {WS_END + w * 64}")
            a(f"s_mov_b64 exec, 0x1fff")
            a(f"buffer_store_dword v{vT1}, v{vL4}, {WS}, s{S_TMP} offen")
            a(f"s_mov_b64 exec, -1")

    def zero(base, n):
        return [f"v_mov_b64 {vr(base + 2 * i, 2)}, 0" for i in range(n // 2)]

    def seq(*items):
        for it in items:
            if isinstance(it, (list, tuple)):
                seq(*it)
            elif callable(it):
                it()
            elif it:
                a(it)

    cont = {}

    def ld(dst, name, text):
        def f():
            a(text)
            cont[dst] = name
        return f

    def use(reg, name):
        assert cont.get(reg) == name, (w, reg, name, cont.get(reg))

    tails = []

    def M(i):
        return f"s[{sM + 2 * i}:{sM + 2 * i + 1}]"

    def poll(name, loads, checks, between=None, issued=0, work=None, slp=0):
        n = len(loads)
        L = pfx + name
        if not issued:
            seq(loads)
        seq(work)
        a(f"s_mov_b32 s{S_SPIN}, 0")
        for i in range(n):
            a(f"s_mov_b64 {M(i)}, 0")
        a.label(L)
        a.auto = False
        for i in range(n):
            a(f"s_mov_b64 exec, {M(i)}")
            a(loads[i])
        a("s_mov_b64 exec, -1")
        spin_check(a, abort)
        for i in range(n):
            a.force_wait(vm=2 * n - 1 - i)
            seq(checks[i])
            if between:
                seq(between[i])
            if i >= 2:
                a(f"s_or_b64 vcc, {M(0) if i == 2 else 'vcc'}, {M(i - 1)}")
        a(f"s_or_b64 vcc, vcc, {M(n - 1)}")
        if slp:
            a(f"s_cbranch_scc1 {L}r")

            def retry():
                a.label(L + "r")
                a.reset_window()
                a(f"s_sleep {slp}")
                a(f"s_branch {L}")
            tails.append(retry)
        else:
            a(f"s_cbranch_scc1 {L}")
        a.auto = True
        a.vmq = [(frozenset(), "pollx")] * n

    def chk4(q, i):
        return [f"v_max3_u32 v{vT1}, v{q}, v{q + 1}, v{q + 2}", f"v_max_u32 v{vT1}, v{vT1}, v{q + 3}",
                f"v_cmp_eq_u32 {M(i)}, -1, v{vT1}"]

    ACC = {"q": ACCQ, "k": ACCK, "v": ACCV}

    def A_read(dst, t):
        return ld(dst, ("A", t), f"ds_read_b128 {vr(dst, 4)}, v{vL16} offset:{L_MEMA + t * 1024}")

    def LW(buf, key):
        r = lw_read(buf, FM[key], w)
        return [ld(buf, ("W", key), r[0]), ld(buf + 4, ("W2", key), r[1])]

    def S(m, b, t, A, buf=None):
        def f():
            use(A, ("A", t))
            loc = FM[(m, b, t)]
            if loc[0] == "l":
                use(buf, ("W", (m, b, t))); use(buf + 4, ("W2", (m, b, t)))
                B = vr(buf, 8)
            else:
                B = opnd(loc)
            a(SM(ACC[m] + 4 * b, A, B))
        return f

    def qB(dst, j):
        return ld(dst, ("qB", j), f"ds_read_b128 {vr(dst, 4)}, v{vQR} offset:{L_QB + j * 64}")

    def kmA(dst, j):
        return ld(dst, ("km", j), f"ds_read_b128 {vr(dst, 4)}, v{vQR} offset:{L_KB + j * 64}")

    def KX(dst, j, tt):
        return ld(dst, ("KX", j, tt), f"ds_read_b128 {vr(dst, 4)}, v{vL16} offset:{L_KX + (j * 2 + tt) * 1024}")

    def MF(acc, A, B, first, ea=None, eb=None):
        def f():
            if ea is not None:
                use(A, ea)
            if eb is not None:
                use(B, eb)
            a(f"v_mfma_f32_16x16x32_bf16 {vr(acc, 4)}, {vr(A, 4)}, {vr(B, 4)}, {'0' if first else vr(acc, 4)}")
        return f

    def MF16(acc, A, B):
        return f"v_mfma_f32_16x16x16_bf16 {vr(acc, 4)}, {vr(A, 2)}, {vr(B, 2)}, {vr(acc, 4)}"

    def xe(acc):
        X, Y = acc, acc + 4
        return [f"v_add_f32 v{X}, v{X}, v{X + 2}", f"v_add_f32 v{Y}, v{Y}, v{Y + 2}",
                f"v_add_f32 v{X + 1}, v{X + 1}, v{X + 3}", f"v_add_f32 v{Y + 1}, v{Y + 1}, v{Y + 3}",
                f"v_cvt_pk_bf16_f32 v{X + 2}, v{X}, v{Y}",
                f"v_cvt_pk_bf16_f32 v{X + 3}, v{X + 1}, v{Y + 1}"]

    def kdma(i):
        if NOKV & 1:
            return None
        return lambda: a(f"buffer_load_dwordx4 v{vL16}, {WS}, s{sKF} offen offset:{1024 * i} lds", tag="kdma")

    def flag_sample():
        if not RFREE:
            a(f"buffer_load_dword v{vRLD}, v{vRST}, {WS}, s{sOFL} offen sc1")

    def flag_check_prefetch():
        if not RFREE:
            a(f"v_cmp_eq_u32 vcc, 0, v{vRLD}")
            a(f"s_and_b64 vcc, vcc, s[{sFMK}:{sFMK + 1}]")
            a(f"s_cbranch_scc1 {pfx}flbad")
            wn = list(a.win)

            def flbad():
                a.label(pfx + "flbad")
                a.win = wn
                a.restore(([], []))
                a(f"s_cmp_eq_u32 s{sSTEP}, {NSEG - 1}")
                a(f"s_cbranch_scc1 {pfx}flok")
                a(f"s_mov_b32 s{S_SPIN}, 0")
                a.label(pfx + "flp")
                a(f"buffer_load_dword v{vRLD}, v{vRST}, {WS}, s{sOFL} offen sc1")
                spin_check(a, abort)
                a(f"v_cmp_eq_u32 vcc, 0, v{vRLD}")
                a(f"s_and_b64 vcc, vcc, s[{sFMK}:{sFMK + 1}]")
                a(f"s_cbranch_scc1 {pfx}flp")
                a(f"s_branch {pfx}flok")
            tails.append(flbad)
            a.label(pfx + "flok")
        if NOKV & 2 or LATEF == 2:
            return
        a(f"s_mov_b32 m0, {L_OB + 8 * ROWS}")
        a("s_nop 0")
        a(f"buffer_load_dword v{vSPARE}, {WS}, s{sKP} offen lds", tag="pf")
        a(f"buffer_load_dword v{vSPARE}, {WS}, s{sKPV} offen lds", tag="pf")
        a(f"s_mov_b32 m0, {L_KX + w * 2048}")

    AO0, AO1, A8 = Q[0], Q[1], vT0
    loads2 = [f"buffer_load_dwordx4 {vr(AO0, 4)}, v{vL16}, {WS}, s{sMEMR} offen sc1",
              f"buffer_load_dwordx4 {vr(AO1, 4)}, v{vL16}, {WS}, s{sMEMR} offen offset:1024 sc1",
              f"buffer_load_dword v{A8}, v{vL4}, {WS}, s{sMEMR8} offen sc1"]

    PQ = ACCV + 4

    def pub_rd():
        if w < 2:
            return [f"v_lshrrev_b32 v{vT1}, 8, v{vL16}", f"v_mul_u32_u24 v{vT1}, {ROWS}, v{vT1}",
                    f"v_and_b32 v{PQ}, 0xf0, v{vL16}", f"v_add_u32 v{vT1}, v{vT1}, v{PQ}",
                    f"ds_read_b128 {vr(PQ, 4)}, v{vT1} offset:{L_KB + 4 * ROWS * w}"]
        return [f"ds_read_b128 {vr(PQ, 4)}, v{vL16} offset:{L_QB + 1024 * (w - 2)}"]

    def pub_st():
        ops = [f"v_bfi_b32 v{PQ}, 1, s{sKPP}, v{PQ}"] if w < 2 else []
        return ops + [f"buffer_store_dwordx4 {vr(PQ, 4)}, v{vL16}, {WS}, s{sKMP} offen offset:{1024 * w} sc1"]
    def pre_step():
        seq(LW(WR[0], ("k", 1, order[0])), LW(WR[1], ("k", 1, order[1])), zero(ACCQ, 20 if PUBHK == 2 else 24))
        if PUBHK == 2:
            seq(pub_rd())

    if HK:
        flag_wait_kv(a, pfx + "fw", 0, abort)
    a("s_barrier")
    a(f"s_mov_b32 m0, {L_KX + w * 2048}")
    a("s_nop 0")
    seq(kdma(0), kdma(1))
    a(f"s_add_u32 s{sKF}, s{sKF}, {32 * 8192}")
    a.wait(vm=0)
    seq(loads2)
    pre_step()
    a.wait(lg=0)
    head = pfx + "step"
    a.label(head)
    head_cont = dict(cont)
    poll("p2", loads2, [chk4(AO0, 0), chk4(AO1, 1), [f"v_cmp_eq_u32 {M(2)}, -1, v{A8}"]], issued=1, slp=S2)
    if DL is not None and not HK:
        a(f"s_mov_b32 s{sLATE}, s{S_SPIN}")
    cont[AO0] = ("A", order[0]); cont[AO1] = ("A", order[1])
    stamp(0)
    if stamps:
        a(f"s_mov_b32 s4, s{S_SPIN}")
    ring = [Q[0], Q[1], Q[2], VXA, VXB, Q[2], Q[0], Q[1], Q[2]]

    def Ap(p):
        return ring[p]

    def qk(p, which):
        t = order[p]
        m, b = which
        return S(m, b, t, Ap(p), WR[p & 1])
    def run(slots):
        for mf, fl in slots:
            seq(mf, fl)

    def lwh(p, half):
        return LW(WR[p & 1], ("k", 1, order[p]))[half]
    run([(qk(0, ("q", 0)), [f"ds_write_b128 v{vL16}, {vr(AO0, 4)} offset:{L_MEMA + order[0] * 1024}"]),
         (qk(0, ("q", 1)), [f"ds_write_b128 v{vL16}, {vr(AO1, 4)} offset:{L_MEMA + order[1] * 1024}"]),
         (qk(0, ("k", 0)), [f"ds_write_b32 v{vL4}, v{A8} offset:{L_MEMA + 8192 + w * 256}"]),
         (qk(0, ("k", 1)), [])])
    a.barrier(lg=0)
    seq(A_read(Ap(2), order[2]))
    fl = {4: A_read(Ap(3), order[3]), 5: lwh(2, 0), 6: lwh(2, 1), 7: A_read(Ap(4), order[4]),
          9: lwh(3, 0), 10: lwh(3, 1), 12: A_read(Ap(5), order[5]),
          (16 if not VST else (16, 27, 31, 16)[w]): f"buffer_load_dwordx4 {vr(VXA, 4)}, v{vL16}, {WS}, s{sVF} offen",
          (20 if not VST else (20, 28, 32, 27)[w]): f"buffer_load_dwordx4 {vr(VXB, 4)}, v{vL16}, {WS}, s{sVF} offen offset:1024",
          19: [lambda: a.wait_tag("pollx"), A_read(Ap(6), order[6])], 23: A_read(Ap(7), order[7]), 24: A_read(Ap(8), order[8])}
    for p in range(4, 9):
        fl[4 * p - 3] = lwh(p, 0)
        fl[4 * p - 2] = lwh(p, 1)
    tail = [(7, ("q", 0)), (7, ("q", 1)), (8, ("q", 0)), (8, ("q", 1)), (7, ("k", 0)), (7, ("k", 1)), (8, ("k", 0)), (8, ("k", 1))]
    spine = [(p, mb) for p in range(7) for mb in (("q", 0), ("q", 1), ("k", 0), ("k", 1))] + tail
    if NOKV & 4:
        fl[16] = fl[20] = None
    qe, ke = xe(ACCQ), xe(ACCK)
    SX, SMm, X4 = ACCQ, ACCK + 4, ACCK
    fl[33] = [KX(Q[5], 0, 0), qe[0]]
    fl[34] = [KX(Q[6], 0, 1), qe[1]]
    fl[35] = [KX(Q[3], 1, 0), qe[2], qe[3], qe[4], qe[5]]
    if PUBHK == 2:
        fl[27] = [fl.get(27)] + pub_st()
        fl[28] = [fl.get(28)] + zero(PQ, 4)
    if HK and not LATEF:
        fl[8] = [fl.get(8), flag_sample]
    for sl in range(4, 36):
        p, mb = spine[sl]
        seq(qk(p, mb), fl.get(sl))
        if sl == 7:
            stamp(1)
    seq(f"ds_write_b32 v{vQW}, v{ACCQ + 2} offset:{L_QB}",
        f"ds_write_b32 v{vQW}, v{ACCQ + 3} offset:{L_QB + ROWS}")
    stamp(2)

    def V(p, A):
        return [S("v", 0, order[p], A), S("v", 1, order[p], A)]
    run([(V(8, Q[2])[0], [KX(Q[4], 1, 1), ke[0], ke[1], ke[2], ke[3]]),
         (V(8, Q[2])[1], [A_read(ACCQ, order[0]), ke[4], ke[5],
                          f"ds_write_b32 v{vQW}, v{ACCK + 2} offset:{L_KB}",
                          f"ds_write_b32 v{vQW}, v{ACCK + 3} offset:{L_KB + ROWS}"]),
         (V(7, Q[1])[0], [A_read(ACCQ + 4, order[1])]),
         (V(7, Q[1])[1], [A_read(ACCK, order[2])]),
         (V(6, Q[0])[0], [A_read(ACCK + 4, order[3])]),
         (V(6, Q[0])[1], [])])
    a.barrier(lg=3)
    stamp(3)
    ve = [f"v_add_f32 v{ACCV}, v{ACCV}, v{ACCV + 2}", f"v_add_f32 v{ACCV + 1}, v{ACCV + 1}, v{ACCV + 3}",
          f"v_add_f32 v{ACCV + 4}, v{ACCV + 4}, v{ACCV + 6}", f"v_add_f32 v{ACCV + 5}, v{ACCV + 5}, v{ACCV + 7}",
          f"v_cvt_pk_bf16_f32 v{ACCV + 2}, v{ACCV}, v{ACCV + 1}",
          f"v_cvt_pk_bf16_f32 v{ACCV + 3}, v{ACCV + 4}, v{ACCV + 5}"]
    seq(qB(Q[0], 0))
    run([(V(0, ACCQ)[0], [A_read(Q[2], order[4])]),
         (V(0, ACCQ)[1], [kmA(ACCQ, 0)]),
         (V(1, ACCQ + 4)[0], [A_read(Q[1], order[5])]),
         (V(1, ACCQ + 4)[1], []),
         (V(2, ACCK)[0], []),
         (V(2, ACCK)[1], [qB(ACCK, 1)]),
         (V(3, ACCK + 4)[0], []),
         (V(3, ACCK + 4)[1], []),
         (V(4, Q[2])[0], []),
         (V(4, Q[2])[1], [kmA(Q[2], 1)]),
         (V(5, Q[1])[0], []),
         (V(5, Q[1])[1], [qB(Q[1], 2)])])
    PBQ = ACCV + 4
    VST_ = [L_MEMA + 6 * 1024, L_MEMA + 6 * 1024 + 512, L_MEMA + 8 * 1024]
    if PUBHK == 2:
        pub = [[], [], [f"v_bfi_b32 v{ACCV + 2}, 1, s{sKPH}, v{ACCV + 2}"], [], []]
    elif PUBHK:
        if HK:
            pub = [[f"v_lshrrev_b32 v{vT0}, 8, v{vL16}", f"v_mul_u32_u24 v{vT0}, {ROWS}, v{vT0}"],
                   [f"v_and_b32 v{vT1}, 0xf0, v{vL16}", f"v_add_u32 v{vT0}, v{vT0}, v{vT1}"],
                   [f"ds_read_b128 {vr(PBQ, 4)}, v{vT0} offset:{L_KB}", f"v_lshrrev_b32 v{vRLD}, 1, v{vL16}",
                    f"v_bfi_b32 v{ACCV + 2}, 1, s{sKPH}, v{ACCV + 2}"],
                   [f"buffer_store_dwordx2 {vr(ACCV + 2, 2)}, v{vRLD}, {WS}, s{sKM} offen offset:{2048 + 3 * 512} sc1"],
                   [f"v_bfi_b32 v{PBQ}, 1, s{sKPH}, v{PBQ}",
                    f"buffer_store_dwordx4 {vr(PBQ, 4)}, v{vL16}, {WS}, s{sKM} offen sc1",
                    f"ds_read_b128 {vr(PBQ, 4)}, v{vT0} offset:{L_KB + 4 * ROWS}"]]
        else:
            pub = [[], [f"v_lshrrev_b32 v{vT1}, 1, v{vL16}"], [f"v_bfi_b32 v{ACCV + 2}, 1, s{sKPH}, v{ACCV + 2}"],
                   [f"ds_write_b64 v{vT1}, {vr(ACCV + 2, 2)} offset:{VST_[w]}"], []]
    else:
        pub = [[f"v_lshrrev_b32 v{vT0}, 8, v{vL16}", f"v_mul_u32_u24 v{vT0}, {ROWS}, v{vT0}"],
               [f"v_and_b32 v{vT1}, 0xf0, v{vL16}", f"v_add_u32 v{vT0}, v{vT0}, v{vT1}"],
               [f"ds_read_b128 {vr(PBQ, 4)}, v{vT0} offset:{L_KB + 2 * w * ROWS}", f"v_lshrrev_b32 v{vT1}, 1, v{vL16}",
                f"v_bfi_b32 v{ACCV + 2}, 1, s{sKPH}, v{ACCV + 2}"],
               [f"buffer_store_dwordx2 {vr(ACCV + 2, 2)}, v{vT1}, {WS}, s{sKM} offen offset:2048 sc1"],
               [f"v_bfi_b32 v{PBQ}, 1, s{sKPH}, v{PBQ}", f"s_mov_b64 exec, s[{sMLO}:{sMLO + 1}]",
                f"buffer_store_dwordx4 {vr(PBQ, 4)}, v{vL16}, {WS}, s{sKM} offen sc1", "s_mov_b64 exec, -1"]]
    run([(MF(SMm, ACCQ, Q[0], True, ("km", 0), ("qB", 0)), ([flag_sample] if LATEF else [flag_check_prefetch]) if HK else []),
         (MF(SX, Q[5], Q[0], True, ("KX", 0, 0), ("qB", 0)), [KX(Q[5], 2, 0)]),
         (MF(SX + 4, Q[6], Q[0], True, ("KX", 0, 1), ("qB", 0)), [KX(Q[6], 2, 1)]),
         (MF(SMm, Q[2], ACCK, False, ("km", 1), ("qB", 1)), [kmA(Q[0], 2), ve[0], ve[1]]),
         (MF(SX, Q[3], ACCK, False, ("KX", 1, 0), ("qB", 1)), [qB(Q[2], 3), ve[2], ve[3]]),
         (MF(SX + 4, Q[4], ACCK, False, ("KX", 1, 1), ("qB", 1)), [KX(Q[3], 3, 0), ve[4], ve[5]]),
         (MF(SMm, Q[0], Q[1], False, ("km", 2), ("qB", 2)), [kmA(ACCK, 3)] + pub[0]),
         (MF(SX, Q[5], Q[1], False, ("KX", 2, 0), ("qB", 2)), [KX(Q[4], 3, 1)] + pub[1]),
         (MF(SX + 4, Q[6], Q[1], False, ("KX", 2, 1), ("qB", 2)), pub[2]),
         (MF(SMm, ACCK, Q[2], False, ("km", 3), ("qB", 3)),
          pub[3] + [f"v_mov_b32 v{Q[1] + 1}, 0", f"v_mov_b32 v{Q[1] + 2}, 0"]),
         (MF(SX, Q[3], Q[2], False, ("KX", 3, 0), ("qB", 3)),
          [f"v_mov_b64 {vr(Q[5], 2)}, s[{sONES}:{sONES + 1}]", f"v_mov_b64 {vr(Q[5] + 2, 2)}, s[{sONES}:{sONES + 1}]"]),
         (MF(SX + 4, Q[4], Q[2], False, ("KX", 3, 1), ("qB", 3)), pub[4])])
    late_pub = []
    if PUBHK == 1 and HK:
        late_pub = [f"v_bfi_b32 v{PBQ}, 1, s{sKPH}, v{PBQ}",
                    f"buffer_store_dwordx4 {vr(PBQ, 4)}, v{vL16}, {WS}, s{sKM} offen offset:1024 sc1"]
    stamp(4)
    MX, T1 = vT0, vT1
    MP = X4
    LQ = Q[6]
    P4 = Q[0]
    PB = Q[1]
    OX, OY = Q[2], Q[3]
    ONES = Q[5]
    WB = [Q[4], VXA]
    wo_buf = {k: WB[i % 2] for i, k in enumerate(WO_L)}

    def wo_rd(i):
        return LW(wo_buf[WO_L[i]], ("o",) + WO_L[i])

    pf = [f"v_pk_fma_f32 {vr(b, 2)}, {vr(b, 2)}, s[{sCEXP}:{sCEXP + 1}], {vr(MP, 2)} op_sel_hi:[1,1,0] neg_lo:[0,0,1] neg_hi:[0,0,1]"
          for b in (SMm, SX, SX + 2, SX + 4, SX + 6)]
    ex = [f"v_exp_f32 v{r}, v{r}" for r in [SMm, SMm + 1] + list(range(SX, SX + 8))]
    seq(f"v_max3_f32 v{MX}, v{SMm}, v{SMm + 1}, v{SX}",
        f"v_max3_f32 v{MX}, v{MX}, v{SX + 1}, v{SX + 2}",
        f"v_max3_f32 v{MX}, v{MX}, v{SX + 3}, v{SX + 4}",
        f"v_max3_f32 v{MX}, v{MX}, v{SX + 5}, v{SX + 6}",
        f"v_max_f32 v{MX}, v{MX}, v{SX + 7}",
        f"v_mov_b32 v{T1}, v{MX}", late_pub,
        f"v_permlane32_swap_b32 v{MX}, v{T1}",
        f"v_max_f32 v{MX}, v{MX}, v{T1}",
        f"v_mov_b32 v{T1}, v{MX}",
        f"v_permlane16_swap_b32 v{MX}, v{T1}",
        f"v_max_f32 v{MX}, v{MX}, v{T1}",
        f"v_mul_f32 v{MP}, s{sCEXP}, v{MX}",
        pf[0], pf[1], ex[0], ex[1], pf[2], ex[2], ex[3], pf[3],
        f"v_cvt_pk_bf16_f32 v{PB}, v{SMm}, v{SMm + 1}", ex[4], pf[4],
        f"v_cvt_pk_bf16_f32 v{PB + 3}, v{SMm}, v{SMm + 1}", ex[5],
        f"v_cvt_pk_bf16_f32 v{P4}, v{SX}, v{SX + 1}", ex[6], ex[7],
        f"v_cvt_pk_bf16_f32 v{P4 + 1}, v{SX + 2}, v{SX + 3}", ex[8], ex[9],
        f"v_cvt_pk_bf16_f32 v{P4 + 2}, v{SX + 4}, v{SX + 5}",
        f"v_cvt_pk_bf16_f32 v{P4 + 3}, v{SX + 6}, v{SX + 7}",
        f"v_mfma_f32_16x16x16_bf16 {vr(LQ, 4)}, {vr(ONES, 2)}, {vr(PB, 2)}, 0",
        f"v_mfma_f32_16x16x16_bf16 {vr(OX, 4)}, {vr(ACCV + 2, 2)}, {vr(PB, 2)}, 0",
        f"v_mfma_f32_16x16x16_bf16 {vr(OY, 4)}, {vr(ACCV + 2, 2)}, {vr(PB + 2, 2)}, 0",
        MF(LQ, ONES, P4, False),
        MF(OX, VXA, P4, False), wo_rd(0)[0] if False else None,
        MF(OY, VXB, P4, False), wo_rd(1)[0], wo_rd(1)[1],
        wo_rd(0)[0],
        f"v_rcp_f32 v{MX}, v{LQ}")
    stamp(5)
    OP = ACCQ + 4
    for i in (0, 2):
        a(f"v_pk_mul_f32 {vr(OX + i, 2)}, {vr(OX + i, 2)}, {vr(MX, 2)} op_sel_hi:[1,0]")
        a(f"v_pk_mul_f32 {vr(OY + i, 2)}, {vr(OY + i, 2)}, {vr(MX, 2)} op_sel_hi:[1,0]")
        a(f"v_cvt_pk_bf16_f32 v{OP + i}, v{OX + i}, v{OY + i}")
        a(f"v_cvt_pk_bf16_f32 v{OP + i + 1}, v{OX + i + 1}, v{OY + i + 1}")
    a(f"ds_write_b128 v{vQR}, {vr(OP, 4)} offset:{L_OB + w * 64}")
    TA = [ACCQ, ACCK, ACCK + 4, ACCV + 4, Q[0], Q[1], Q[6], ACCQ + 4, ACCV]
    OA0, OA1 = Q[2], Q[3]
    seq(wo_rd(0)[1], zero(ACCQ, 4), zero(ACCK, 8), zero(ACCV + 4, 4), zero(Q[0], 8))
    if HK and LATEF:
        flag_check_prefetch()
    a.barrier(lg=1)
    a(f"ds_read_b128 {vr(OA0, 4)}, v{vOR} offset:{L_OB}")
    a(f"ds_read_b128 {vr(OA1, 4)}, v{vOR} offset:{L_OB + 128}")
    if PUBHK == 2:
        a(f"v_lshrrev_b32 v{vT1}, 1, v{vL16}")
        a(f"ds_write_b64 v{vT1}, {vr(ACCV + 2, 2)} offset:{L_QB + w * 512}")
    seq(zero(Q[6], 4), zero(ACCV, 4), zero(OP, 4))
    last = pfx + "last"
    seq(f"s_cmp_eq_u32 s{sSTEP}, {NSEG - 1}", f"s_cbranch_scc1 {last}")
    stamp(6)
    ST = [TA[0], TA[4], TA[8]]

    def epi(tau):
        acc = TA[tau]
        dst = ST[tau // 4] + tau % 4
        ops = [f"v_add_f32 v{acc}, v{acc}, v{acc + 2}", f"v_add_f32 v{acc + 1}, v{acc + 1}, v{acc + 3}",
               f"v_cvt_pk_bf16_f32 v{dst}, v{acc}, v{acc + 1}"]
        if tau % 4 == 0:
            ops.append(f"v_bfi_b32 v{dst}, 1, s{sPH}, v{dst}")
        if tau in (3, 7):
            ops.append(f"buffer_store_dwordx4 {vr(ST[tau // 4], 4)}, v{vL16}, {WS}, s{sPW} offen offset:{1024 * (tau // 4)}{sc}")
        if tau == 8:
            ops.append(f"buffer_store_dword v{dst}, v{vL4}, {WS}, s{sPW} offen offset:2048{sc}")
        return ops

    KPOS = {0: {0: (3, 8), 1: (3, 8), 2: (3, 8), 3: (3, 8)}, 1: {0: (3, 9), 1: (4, 13), 2: (8, 14), 3: (3, 8)},
            2: {0: (3, 13), 1: (4, 14), 2: (8, 9), 3: (9, 14)}}[KST]
    nxt = 2
    fill = []
    pend = []
    for idx in range(18):
        tau, ks = TORD[idx >> 1], idx & 1
        k = ("o", tau, ks)
        if FM[k][0] == "l":
            buf = wo_buf[(tau, ks)]
            use(buf, ("W", k)); use(buf + 4, ("W2", k))
            B = vr(buf, 8)
        else:
            B = opnd(FM[k])
        a(SM(TA[tau], (OA0, OA1)[ks], B))
        if PUBHK == 1 and HK:
            hk = {0: f"ds_read_b64 {vr(vT0, 2)}, v{vRLD} offset:{VST_[0]}",
                  4: f"buffer_store_dwordx2 {vr(vT0, 2)}, v{vRLD}, {WS}, s{sKM} offen offset:2048 sc1",
                  5: f"ds_read_b64 {vr(vT0, 2)}, v{vRLD} offset:{VST_[1]}",
                  9: f"buffer_store_dwordx2 {vr(vT0, 2)}, v{vRLD}, {WS}, s{sKM} offen offset:{2048 + 512} sc1",
                  10: f"ds_read_b64 {vr(vT0, 2)}, v{vRLD} offset:{VST_[2]}",
                  14: f"buffer_store_dwordx2 {vr(vT0, 2)}, v{vRLD}, {WS}, s{sKM} offen offset:{2048 + 1024} sc1"}
            seq(hk.get(idx))
        if pend:
            seq(pend.pop(0))
        elif idx in KPOS[w]:
            seq(kdma(KPOS[w].index(idx)))
        if FM[k][0] == "l" and nxt < len(WO_L):
            r = wo_rd(nxt)
            seq(r[0])
            pend.append(r[1])
            nxt += 1
        n = 0
        while fill and fill[0][0] <= idx and (n < 2 or not fill[0][1].startswith("v_")):
            n += fill[0][1].startswith("v_")
            a(fill.pop(0)[1])
        if ks == 1:
            fill += [(idx + WOD, t) for t in epi(tau)]
    for _, t in fill:
        a(t)
    stamp(7)
    tog = [f"s_xor_b32 s{r}, s{r}, {MEMB_SLOT}" for r in [sMEMR, sMEMR8]]

    if not HK:
        if w == 2:
            a(f"s_cmp_eq_u32 s{sJOBC}, 0")
            a(f"s_cbranch_scc1 {pfx}nojob")
        LD = [Q[2], Q[3], Q[4], Q[5]]
        SEL, D = VXA, VXB
        loads1 = [f"buffer_load_dwordx4 {vr(LD[i], 4)}, v{vRLD}, {WS}, s{sPR + i} offen sc1" for i in range(4)]
        if w < 2:
            checks = [[f"v_and_b32 v{vT1}, 1, v{LD[i]}", f"v_cmp_ne_u32 {M(i)}, s{sPH}, v{vT1}"] for i in range(4)]
        else:
            checks = [[f"v_xor_b32 v{vT0}, v{LD[i]}, v{LD[i] + 1}", f"v_xor_b32 v{vT1}, v{LD[i] + 2}, v{LD[i] + 3}",
                       f"v_or_b32 v{vT0}, v{vT0}, v{vT1}", f"v_xor_b32 v{vT1}, v{LD[i]}, v{LD[i] + 2}",
                       f"v_or_b32 v{vT0}, v{vT0}, v{vT1}", f"v_xor_b32 v{vT1}, s{sPH}, v{LD[i]}",
                       f"v_or_b32 v{vT0}, v{vT0}, v{vT1}", f"v_and_b32 v{vT0}, 1, v{vT0}",
                       f"v_cmp_ne_u32 {M(i)}, 0, v{vT0}"] for i in range(4)]
        betw = [[MF(D, LD[i], SEL, i == 0)] for i in range(4)]
        stamp(9)
        sel = [f"v_bfe_u32 v{vT0}, v{vL16}, 4, 4", f"v_mov_b32 v{vT1}, 0x3f80", f"v_mov_b32 v{D}, 0x3f800000"]
        for d in range(4):
            sel += [f"v_cmp_eq_u32 vcc, {2 * d}, v{vT0}", f"v_cmp_eq_u32 s[{sU}:{sU + 1}], {2 * d + 1}, v{vT0}",
                    f"v_cndmask_b32 v{SEL + d}, 0, v{vT1}, vcc", f"v_cndmask_b32 v{SEL + d}, v{SEL + d}, v{D}, s[{sU}:{sU + 1}]"]
        if DL is not None:
            if DL:
                a(f"s_sleep {DL}")
            a(f"s_cmp_le_u32 s{sLATE}, {DLN}")
            a(f"s_cbranch_scc1 {pfx}late")
            a(f"s_sleep {D1[w] - DL}")
            a.label(pfx + "late")
        elif D1[w]:
            a(f"s_sleep {D1[w]}")
        poll("p1", loads1, checks, betw, work=sel, slp=S1)
        stamp(8)
        if stamps:
            a(f"s_mov_b32 s3, s{S_SPIN}")
        seq(f"v_permlane16_swap_b32 v{D}, v{D + 2}", f"v_permlane16_swap_b32 v{D + 1}, v{D + 3}",
            f"s_mov_b64 exec, s[{sMASK}:{sMASK + 1}]",
            f"v_add_f32 v{D}, v{D}, v{D + 2}", f"v_add_f32 v{D + 1}, v{D + 1}, v{D + 3}",
            f"v_cvt_pk_bf16_f32 v{D}, v{D}, v{D + 1}", f"v_min_u32 v{D}, s{sMAXD}, v{D}",
            f"buffer_store_dword v{D}, v{vRST}, {WS}, s{sMEMW} offen{sc}",
            f"v_mov_b32 v{D + 1}, -1",
            f"buffer_store_dword v{D + 1}, v{vRST}, {WS}, s{sMEMZ} offen{sc}",
            f"s_mov_b64 exec, -1")
        if w == 2:
            a(f"s_branch {pfx}jobdone")
            a.label(pfx + "nojob")
            a.restore(([], []))
            a.label(pfx + "jobdone")
            a.vmq = [(frozenset(), "pollx")] * 4 + [(frozenset(), "st")] * 3
    adv = [f"s_add_u32 s{sSTEP}, s{sSTEP}, 1", f"s_bfe_u32 s{sPH}, s{sSTEP}, 0x10001",
           f"s_xor_b32 s{sPW}, s{sPW}, {PART_SLOT}"]
    adv += [f"s_xor_b32 s{r}, s{r}, {PART_SLOT}" for r in ([] if HK else [sPR + i for i in range(4)])]
    adv += [f"s_xor_b32 s{r}, s{r}, {MEMB_SLOT}" for r in ([] if HK else [sMEMW, sMEMZ])]
    if PUBHK == 2:
        adv += [f"s_mov_b32 s{sKMP}, s{sKM}", f"s_mov_b32 s{sKPP}, s{sKPH}"]
    adv += [f"s_and_b32 s{S_TMP}, s{sSTEP}, {KM_D - 1}", f"s_mul_i32 s{S_TMP}, s{S_TMP}, {32 * KM_UNIT}",
            f"s_add_u32 s{sKM}, s{sKMB}, s{S_TMP}", f"s_bfe_u32 s{sKPH}, s{sSTEP}, {0x10000 + KM_D.bit_length() - 1}",
            f"s_add_u32 s{sOFL}, s{sOFL}, {FL_STRIDE}"]
    if HK:
        adv += [f"s_and_b32 s{S_TMP}, s{sSTEP}, 3", f"s_cmp_eq_u32 s{S_TMP}, 3", f"s_cselect_b32 s{S_TMP}, 1, 0",
                f"s_cmp_eq_u32 s{sLAY}, 0", f"s_cselect_b32 s{S_TMP}, 1, s{S_TMP}",
                f"s_cmp_ge_u32 s{sSTEP}, {KM_D - 1}", f"s_cselect_b32 s{S_TMP}, s{S_TMP}, 0",
                f"s_cmp_lg_u32 s{S_TMP}, 0", f"s_cselect_b64 s[{sFMK}:{sFMK + 1}], -1, 0xff",
                f"s_add_u32 s{sKPV}, s{sKPV}, {32 * 8192}"]
    adv += [f"s_add_u32 s{sVF}, s{sVF}, {32 * 8192}",
            f"s_add_u32 s{sKF}, s{sKF}, {32 * 8192}", f"s_add_u32 s{sKP}, s{sKP}, {32 * 8192}",
            f"s_add_u32 s{sFL}, s{sFL}, {FL_STRIDE}"]
    seq(tog)
    a("s_barrier")
    if D2:
        a(f"s_sleep {D2}")
    seq(loads2, adv)
    if not HK:
        a.wait_tag("pollx")
    pre_step()
    a.wait(lg=0)
    if HK and GATE0:
        L0 = a.newlabel("Lg0")
        a(f"s_add_u32 s{S_TMP}, s{sSTEP}, s{sLAY}")
        a(f"s_cmp_lg_u32 s{S_TMP}, 1")
        a(f"s_cbranch_scc1 {L0}")
        a(f"s_cmp_lg_u32 s{sLAY}, 0")
        a(f"s_cbranch_scc1 {L0}")
        sn = a.snap()
        dbg_add(a, DB_STEP0, Q[2], Q[2] + 1)
        a.restore(sn)
        a.label(L0)
    if HK:
        trace(a, Q[2], Q[2] + 1, True)
        if DBGT == 1:
            a.force_wait(lg=0)
            for k, (wd, st) in enumerate(((5, 1), (13, 63))):
                a(f"s_lshl_b32 s{S_TMP}, s{sLAY}, 2")
                a(f"s_add_u32 s{S_TMP + 1}, s{S_TMP}, {4 * wd}")
                stamp_max(a, f"s{S_TMP + 1}", Q[2], Q[2] + 1, (sSTEP, st))
    stamp(NST)
    dump_stamps()
    a.restore(([], []))
    a(f"s_branch {head}")
    for t in tails:
        t()
    a.restore(([], []))
    a.label(last)
    if PUBHK == 2:
        a.force_wait(lg=0)
        a("s_barrier")
        a(f"s_mov_b32 s{sKMP}, s{sKM}")
        a(f"s_mov_b32 s{sKPP}, s{sKPH}")
        seq(pub_rd(), pub_st())
    elif PUBHK == 1 and HK:
        for i in range(3):
            a(f"ds_read_b64 {vr(vT0, 2)}, v{vRLD} offset:{VST_[i]}")
            a(f"buffer_store_dwordx2 {vr(vT0, 2)}, v{vRLD}, {WS}, s{sKM} offen offset:{2048 + 512 * i} sc1")
    a.force_wait(vm=0, lg=0)
    if HK:
        trace(a, Q[2], Q[2] + 1, True)
    a(f"s_branch {done}")
```

```python
from common import *
import struct, os

WS = f"s[{SRD_WS}:{SRD_WS + 3}]"
L0_AP = 16
L0_T = 16
SLP = int(os.environ.get("SLP", "4"))
AQLDW = int(os.environ.get("AQLDW", "1"))
EARLYF = int(os.environ.get("EARLYF", "0"))


def f32bits(x):
    return struct.unpack("<I", struct.pack("<f", x))[0]


sN0, sN1 = S_FREE, S_FREE + 1
sCL, sCS = S_FREE + 2, S_FREE + 3
sNL, sNS = S_FREE + 4, S_FREE + 5
sLEFT = S_FREE + 6
sPF = S_FREE + 7
sBUF = S_FREE + 8
sNX = S_FREE + 9
sNFL = S_FREE + 10
sPEND = S_FREE + 11
sSELX, sSELY = S_FREE + 12, S_FREE + 13
sO1, sO2, sO3 = S_FREE + 14, S_FREE + 15, S_FREE + 16
sK1, sK2, sK3, sK4 = S_FREE + 17, S_FREE + 18, S_FREE + 19, S_FREE + 20
sE = S_FREE + 22
sNO = S_FREE + 24
sCO = S_FREE + 25
sWQ = S_FREE + 26
sOB = S_FREE + 27
sF0, sF1, sDEC = S_FREE + 28, S_FREE + 29, S_FREE + 30
sLAYS = S_FREE + 31
sSB, sW1K = S_FREE + 34, S_FREE + 35
sX0, sX1 = S_FREE + 32, S_FREE + 33

vL16, vFLA, vFLV, vONE, vZERO, vT0, vT1, vC, vG = range(9)
XBUF = X_SEG


def seq(a, *items):
    for it in items:
        if isinstance(it, (list, tuple)):
            seq(a, *it)
        elif callable(it):
            it()
        elif it:
            a(it)


def MF(acc, A, B, C=None):
    return f"v_mfma_f32_16x16x32_bf16 {vr(acc, 4)}, {A}, {B}, {vr(acc, 4) if C is None else C}"


def lane_setup(a, nflags):
    a(f"""
    v_and_b32 v{vT0}, 63, v0
    v_lshlrev_b32 v{vL16}, 4, v{vT0}
    v_and_b32 v{vC}, 15, v{vT0}
    v_lshrrev_b32 v{vG}, 4, v{vT0}
    v_min_u32 v{vFLA}, {nflags - 1}, v{vT0}
    v_lshrrev_b32 v{vT1}, 2, v{vFLA}
    v_and_b32 v{vFLA}, 3, v{vFLA}
    v_lshlrev_b32 v{vFLA}, 2, v{vFLA}
    v_lshl_add_u32 v{vFLA}, v{vT1}, 7, v{vFLA}
    v_mov_b32 v{vONE}, 1
    v_mov_b32 v{vZERO}, 0
    s_mov_b32 s{sSELX}, 0x05040100
    s_mov_b32 s{sSELY}, 0x07060302
    """)


def pick_next(a, step, l0):
    a(f"""
    s_add_u32 s{S_TMP}, s{sN1}, {l0}
    s_min_u32 s{S_TMP}, s{S_TMP}, {NSEG}
    s_cmp_lt_u32 s{sN0}, s{S_TMP}
    s_cselect_b32 s{sNL}, 0, 1
    s_cselect_b32 s{sNS}, s{sN0}, s{sN1}
    s_cselect_b32 s{S_TMP}, {step}, 0
    s_cselect_b32 s{S_TMP + 1}, 0, {step}
    s_add_u32 s{sN0}, s{sN0}, s{S_TMP}
    s_add_u32 s{sN1}, s{sN1}, s{S_TMP + 1}
    s_lshl_b32 s{sNO}, s{sNL}, 6
    s_add_u32 s{sNO}, s{sNO}, s{sNS}
    """)


def flag_out(a, sreg):
    a("s_mov_b64 exec, 1")
    a(f"buffer_store_dword v{vONE}, v{vZERO}, {WS}, s{sreg} offen sc1")
    a("s_mov_b64 exec, -1")


def flag_block(a, name, abort):
    L = a.newlabel(name)
    a(f"s_mov_b32 s{S_SPIN}, 0")
    a.label(L)
    a(f"buffer_load_dword v{vFLV}, v{vFLA}, {WS}, s{sNFL} offen sc1")
    spin_check(a, abort)
    a(f"v_cmp_eq_u32 vcc, 0, v{vFLV}")
    Ld = a.newlabel(name + "d")
    a(f"s_cbranch_vccz {Ld}")
    a(f"s_sleep {SLP}")
    a(f"s_branch {L}")
    a.label(Ld)


PFS = f"s[{SRD_C}:{SRD_C + 3}]"


STB3 = 0x1C000
sCSB = S_FREE + 39
P3 = int(os.environ.get('P3', '0'))
MBOX = 2 * XBUF + 1024
vFL1 = 15


def cand_addr(a, flag_off):
    a(f"""
    s_mul_i32 s{sF0}, s{sN0}, {FL_STRIDE}
    s_add_u32 s{sF0}, s{sF0}, {WS_FLAGS + flag_off}
    s_cmp_lt_u32 s{sN0}, {NSEG}
    s_cselect_b32 s{sF0}, s{sF0}, {WS_ZERO}
    s_mul_i32 s{sF1}, s{sN1}, {FL_STRIDE}
    s_add_u32 s{sF1}, s{sF1}, {WS_FLAGS + flag_off + NSEG * FL_STRIDE}
    s_cmp_lt_u32 s{sN1}, {NSEG}
    s_cselect_b32 s{sF1}, s{sF1}, {WS_ZERO}
    """)


def sample2(a):
    a(f"buffer_load_dword v{vFLV}, v{vFLA}, {WS}, s{sF0} offen sc1")
    a(f"buffer_load_dword v{vFL1}, v{vFLA}, {WS}, s{sF1} offen sc1")


def decide(a, prio=1):
    a(f"v_cmp_eq_u32 vcc, 0, v{vFLV}")
    a(f"v_cmp_eq_u32 s[{sE}:{sE + 1}], 0, v{vFL1}")
    m = ["vcc", f"s[{sE}:{sE + 1}]"]
    a(f"s_cmp_eq_u64 {m[1 - prio]}, 0")
    a(f"s_cselect_b32 s{sDEC}, {2 - prio}, 0")
    a(f"s_cmp_eq_u64 {m[prio]}, 0")
    a(f"s_cselect_b32 s{sDEC}, {1 + prio}, s{sDEC}")


def take(dec, step, step1=None):
    return [f"s_cmp_eq_u32 s{dec}, 2",
            f"s_cselect_b32 s{sNL}, 1, 0",
            f"s_cselect_b32 s{sNS}, s{sN1}, s{sN0}",
            f"s_cselect_b32 s{S_TMP}, {step if step1 is None else step1}, 0",
            f"s_add_u32 s{sN1}, s{sN1}, s{S_TMP}",
            f"s_cmp_eq_u32 s{dec}, 1",
            f"s_cselect_b32 s{S_TMP}, {step}, 0",
            f"s_add_u32 s{sN0}, s{sN0}, s{S_TMP}",
            f"s_lshl_b32 s{sNO}, s{sNL}, 6",
            f"s_add_u32 s{sNO}, s{sNO}, s{sNS}"]


def poll2(a, name, abort, flag_off, prio=1):
    cand_addr(a, flag_off)
    L = a.newlabel(name)
    a(f"s_mov_b32 s{S_SPIN}, 0")
    a.label(L)
    sample2(a)
    spin_check(a, abort)
    decide(a, prio)
    a(f"s_cmp_lg_u32 s{sDEC}, 0")
    a(f"s_cbranch_scc1 {L}d")
    a(f"s_sleep {SLP}")
    a(f"s_branch {L}")
    a.label(L + "d")


def staged_loop(a, name, abort, done, xbase, xlayer, flag_off, extra_loads, compute, out_flag, nst, vMB, laysel=None, waited=False, epi=None, early=None, vsrc=None, pub2=None):
    crit = [f"s_cmp_eq_u32 s{sDEC}, 2", f"s_cselect_b32 s{sNX}, s{sX1}, s{sX0}",
            f"s_cmp_lg_u32 s{sDEC}, 0", f"s_cselect_b32 s{SRD_C + 2}, {WS_BYTES}, 0"]
    adv_x = [f"s_cmp_eq_u32 s{sDEC}, 2", f"s_cselect_b32 s{S_TMP}, {X_SEG}, 0", f"s_add_u32 s{sX1}, s{sX1}, s{S_TMP}",
             f"s_cmp_eq_u32 s{sDEC}, 1", f"s_cselect_b32 s{S_TMP}, {X_SEG}, 0", f"s_add_u32 s{sX0}, s{sX0}, s{S_TMP}"]

    def dma_ops(srd_):
        ops = []
        for i in range(9):
            pre = []
            if i % 4 == 0:
                pre = [f"s_add_u32 m0, s{sOB}, {i * 1024}", f"s_add_u32 s{sO2}, s{sNX}, {i * 1024}"]
            ops.append(pre + [f"buffer_load_dwordx4 v{vL16 if vsrc is None else vsrc}, {srd_}, s{sO2} offen offset:{(i % 4) * 1024} lds"])
        return ops

    def post():
        a(f"v_mov_b32 v{vT0}, s{sDEC}")
        a(f"ds_write_b32 v{vMB}, v{vT0}")
        a.wait(lg=0)

    def publish():
        a(f"s_cmp_lg_u32 s{sPEND}, 0")
        a("s_cselect_b64 exec, 1, 0")
        if pub2 is None:
            a(f"buffer_store_dword v{vONE}, v{vZERO}, {WS}, s{sPEND} offen sc1")
        else:
            a(f"buffer_store_dwordx2 {vr(pub2, 2)}, v{vZERO}, {WS}, s{sPEND} offen sc1")
        a("s_mov_b64 exec, -1")
        a(f"s_mov_b32 s{sPEND}, 0")

    def cur_from_next():
        a(f"s_mov_b32 s{sCL}, s{sNL}")
        a(f"s_mov_b32 s{sCS}, s{sNS}")
        a(f"s_mov_b32 s{sCO}, s{sNO}")

    def roll():
        Ls = a.newlabel(name + "_ns")
        a(f"s_cmp_lg_u32 s{S_WAVE}, 0")
        a(f"s_cbranch_scc1 {Ls}")
        sn = a.snap()
        cand_addr(a, flag_off)
        sample2(a)
        a.restore(sn)
        a.label(Ls)

    a(f"""
    s_mov_b32 s{sN0}, 0
    s_mov_b32 s{sN1}, 0
    s_mov_b32 s{sLEFT}, {2 * NSEG}
    s_mul_i32 s{sWQ}, s{S_WAVE}, 9216
    s_mov_b32 s{sBUF}, {XBUF}
    s_mov_b32 s{sOB}, s{sWQ}
    s_mov_b32 s{sPEND}, 0
    s_mov_b32 s{SRD_C}, s{SRD_WS}
    s_mov_b32 s{SRD_C + 1}, s{SRD_WS + 1}
    s_mov_b32 s{SRD_C + 2}, 0
    s_mov_b32 s{SRD_C + 3}, 0x00020000
    v_mov_b32 v{vMB}, {MBOX}
    s_add_u32 s{sX0}, s{sWQ}, {xbase}
    s_add_u32 s{sX1}, s{sWQ}, {xbase + xlayer}
    """)
    if laysel is not None:
        a(f"s_cmp_eq_u32 s{laysel}, 0")
        a(f"s_cselect_b32 s{sN0}, 0, {NSEG}")
        a(f"s_cselect_b32 s{sN1}, {NSEG}, 0")
        a(f"s_mov_b32 s{sLEFT}, {NSEG}")
    a(f"ds_write2_b32 v{vMB}, v{vZERO}, v{vZERO} offset0:0 offset1:1")
    a.wait(lg=0)
    if not waited:
        dbg_wait(a, DB_POOL, N_POOL, vT0, vT1, abort, name + "_ini")
    trace(a, vT0, vT1)
    prof_init(a)
    a(f"s_branch {name}_idle0")
    head = name + "_item"
    a.label(head)
    a.restore(([], []))
    prof_begin(a)
    a.force_wait(vm=nst)
    if EARLYF and (laysel is not None or EARLYF > 1):
        a(f"s_cmp_lt_u32 s{sPEND}, {NSEG * FL_STRIDE}")
        a(f"s_cbranch_scc1 {name}_defer")
        a.force_wait(vm=0)
        publish()
    a.label(name + "_defer")
    prof_end(a, 0)
    a(f"s_cmp_lg_u32 s{S_WAVE}, 0")
    a(f"s_cbranch_scc1 {name}_nw0")
    decide(a)
    post()
    a.label(name + "_nw0")
    prof_begin(a)
    a("s_barrier")
    prof_end(a, 1)
    a(f"ds_read_b32 v{vT1}, v{vMB}")
    a(f"""
    v_xor_b32 v{vMB}, 4, v{vMB}
    s_xor_b32 s{sBUF}, s{sBUF}, {XBUF}
    s_xor_b32 s{sOB}, s{sOB}, {XBUF}
    s_xor_b32 s{sSB}, s{sSB}, 0x2000
    s_xor_b32 s{sCSB}, s{sCSB}, 0x2000
    s_sub_u32 s{sLEFT}, s{sLEFT}, 1
    """)
    if epi:
        early()
        a(f"s_cmp_eq_u32 s{sPEND}, 0")
        a(f"s_cbranch_scc1 {name}_noepi")
        lg = list(a.lgq)
        epi()
        assert a.lgq == lg or not a.lgq
        a.lgq = lg
        a.label(name + "_noepi")
    a.vmq = [(frozenset(), "st")] * nst
    ex = extra_loads(PFS)
    tk = take(sDEC, 1)
    pre = ([f"v_readfirstlane_b32 s{sDEC}, v{vT1}"] + crit, [tk[:5], tk[5:], ex[0][:-1], adv_x[:3], adv_x[3:]] if os.environ.get('BSPLIT', '1') == '1' else [tk, ex[0][:-1], adv_x, [], []])
    ex[0] = ex[0][-1:]

    def mid():
        prof_begin(a) if PROF == 1 else None
        a.wait_tag("st")
        prof_end(a, 2) if PROF == 1 else None
        publish()

    compute(pre, dma_ops(PFS), ex, mid, roll)
    out_flag()
    trace_at(a, sCO, vT0, vZERO)
    if name.startswith("Lp"):
        stamp_max(a, 9, vT0, vT1, (sCO, 1)) if DBGT == 2 else None
    cur_from_next()
    if TRACE == 1:
        a.force_wait(vm=0)
        trace(a, vT0, vT1)
        a.force_wait(vm=0)
    a(f"s_min_u32 s{sDEC}, s{sDEC}, s{sLEFT}")
    a(f"s_cmp_lg_u32 s{sDEC}, 0")
    a(f"s_cbranch_scc1 {head}")
    roll()
    a.force_wait(vm=0)
    publish()
    a(f"s_cmp_eq_u32 s{sLEFT}, 0")
    a(f"s_cbranch_scc1 {name}_end")
    a(f"s_cmp_lg_u32 s{S_WAVE}, 0")
    a(f"s_cbranch_scc1 {name}_nw1")
    decide(a)
    a(f"s_cmp_lg_u32 s{sDEC}, 0")
    a(f"s_cbranch_scc1 {name}_got")
    a.label(name + "_idle0")
    a.restore(([], []))
    a(f"s_cmp_lg_u32 s{S_WAVE}, 0")
    a(f"s_cbranch_scc1 {name}_nw1")
    poll2(a, name + "_pl", abort, flag_off)
    a.label(name + "_got")
    post()
    a.label(name + "_nw1")
    a("s_barrier")
    a(f"ds_read_b32 v{vT1}, v{vMB}")
    a(f"v_xor_b32 v{vMB}, 4, v{vMB}")
    a(f"v_readfirstlane_b32 s{sDEC}, v{vT1}")
    a(f"s_cmp_eq_u32 s{sDEC}, 0")
    a(f"s_cbranch_scc1 {abort}")
    seq(a, crit, take(sDEC, 1), adv_x, dma_ops(WS), extra_loads(WS))
    cur_from_next()
    roll()
    a.force_wait(vm=0)
    if PROF:
        a("s_add_u32 s96, s96, 1000")
    a(f"s_branch {head}")
    a.label(name + "_end")
    prof_dump(a, vT0, vT1)
    a(f"s_branch {done}")


WB = 112


def MF32(acc, A, B, C=None):
    return f"v_mfma_f32_32x32x16_bf16 {vr(acc, 16)}, {A}, {B}, {vr(acc, 16) if C is None else C}"


def load_cols(a, srdb, vad, vsel, items, nt=os.environ.get("NT_P", "")):
    D = 28
    n = len(items)
    for i in range(n + D):
        if i < n:
            r = 16 + 2 * (i % 48)
            a(f"s_add_u32 s{S_TMP}, s{sK1}, {items[i][0]}")
            a(f"buffer_load_dword v{r}, v{vad}, s[{srdb}:{srdb + 3}], s{S_TMP} offen {nt}")
            a(f"buffer_load_dword v{r + 1}, v{vad + 1}, s[{srdb}:{srdb + 3}], s{S_TMP} offen {nt}")
        j = i - D
        if j >= 0:
            r = 16 + 2 * (j % 48)
            a(f"v_perm_b32 v{items[j][1]}, v{r + 1}, v{r}, v{vsel}")


def feat_of_row(a, dst, row, t1):
    a(f"""
    v_and_b32 v{dst}, 19, v{row}
    v_bfe_u32 v{t1}, v{row}, 2, 1
    v_lshl_add_u32 v{dst}, v{t1}, 3, v{dst}
    v_bfe_u32 v{t1}, v{row}, 3, 1
    v_lshl_add_u32 v{dst}, v{t1}, 2, v{dst}
    """)


def sel_of_parity(a, vsel, par, t1):
    a(f"""
    v_mov_b32 v{vsel}, s{sSELX}
    v_mov_b32 v{t1}, s{sSELY}
    v_cmp_eq_u32 vcc, 1, v{par}
    v_cndmask_b32 v{vsel}, v{vsel}, v{t1}, vcc
    """)


def gemm32(a, acc, swap, vXA, ring, pre, dma, extra, mid, roll, init=None, fill=None, issued=False):
    nr = len(ring)

    def rd(t):
        return f"ds_read_b128 {vr(ring[t % nr], 4)}, v{vXA} offset:{t * 1024}"
    if PROF == 2:
        a("s_memtime s[84:85]")
    if not issued:
        for t in range(nr - 1):
            a(rd(t))
    fill = list(fill or [])
    crit, blocks = pre
    blocks = list(blocks)
    vm = list(dma) + list(extra)
    for t in range(36):
        x, w = vr(ring[t % nr], 4), vr(WB + 4 * t, 4)
        a(MF32(acc, x if swap else w, w if swap else x, "0" if (t == 0 and not init) else None))
        if t + nr - 1 < 36:
            a(rd(t + nr - 1))
        k = 3 if t < 16 else 4
        if t == 1:
            seq(a, crit); k = 0
        elif t >= 2 and t % 2 == 1 and blocks:
            k = min(3, 5 - len(blocks[0]))
            seq(a, blocks.pop(0))
        elif t >= 2 and vm and (len(vm) > len(extra) or len(blocks) <= 2):
            assert len(vm) > len(extra) or len(blocks) <= 2
            seq(a, vm.pop(0)); k -= 2
        while fill and k > 0:
            seq(a, fill.pop(0)); k -= 1
        if t == 10:
            mid()
        if t == 16:
            roll()
    assert not vm and not fill and not blocks
    if PROF == 2:
        a("s_memtime s[86:87]")
        a.force_wait(lg=0)
        a("s_sub_u32 s86, s86, s84")
        a("s_add_u32 s97, s97, s86")


VMDENSE = int(os.environ.get("VMDENSE", "1"))
STB = 0x14000


def stats_dma(base, srd_):
    pre = [f"s_mul_i32 s{sO3}, s{sNL}, {2 * ST_BYTES}", f"s_mul_i32 s{S_TMP + 1}, s{sNS}, {ST_SEG}",
           f"s_add_u32 s{sO3}, s{sO3}, s{S_TMP + 1}", f"s_add_u32 s{sO3}, s{sO3}, {base + 4096}"]
    return [pre + [[f"s_add_u32 m0, s{sSB}, 4096", f"s_nop 0",
                    f"buffer_load_dwordx4 v{vL16}, {srd_}, s{sO3} offen lds"]],
            [f"s_add_u32 m0, s{sSB}, s{sW1K}", f"s_sub_u32 s{sO3}, s{sO3}, 4096", f"s_add_u32 s{sO3}, s{sO3}, s{sW1K}",
             f"buffer_load_dwordx4 v{vL16}, {srd_}, s{sO3} offen lds"]]


def stats_loads(base, STR, vaddr, srd_):
    pre = [f"s_mul_i32 s{sO3}, s{sNL}, {2 * ST_BYTES}", f"s_mul_i32 s{S_TMP + 1}, s{sNS}, {ST_SEG}",
           f"s_add_u32 s{sO3}, s{sO3}, s{S_TMP + 1}", f"s_add_u32 s{sO3}, s{sO3}, {base}"]
    ops = [[f"buffer_load_dwordx4 {vr(STR + 4 * i, 4)}, v{vaddr}, {srd_}, s{sO3} offen offset:{512 * i}"] for i in range(6)]
    ops[0] = pre + ops[0]
    return ops


def stats_math2(STR, n, RS, MR):
    ops = []
    for i in range(1, n):
        ops += [f"v_add_f32 v{STR}, v{STR}, v{STR + 2 * i}", f"v_add_f32 v{STR + 1}, v{STR + 1}, v{STR + 2 * i + 1}"]
    full = stats_math(STR, RS, MR)
    return ops + full[16 + 2:]


def stats_math(STR, RS, MR):
    ops = []
    for i in range(1, 5):
        ops += [f"v_add_f32 v{STR + j}, v{STR + j}, v{STR + 4 * i + j}" for j in range(4)]
    S1, S2 = STR, STR + 1
    ops += [f"v_add_f32 v{S1}, v{S1}, v{STR + 2}", f"v_add_f32 v{S2}, v{S2}, v{STR + 3}",
            f"v_mov_b32 v{STR + 2}, v{S1}", f"v_mov_b32 v{STR + 3}, v{S2}",
            f"v_permlane32_swap_b32 v{S1}, v{STR + 2}", f"v_permlane32_swap_b32 v{S2}, v{STR + 3}",
            f"v_add_f32 v{S1}, v{S1}, v{STR + 2}", f"v_add_f32 v{S2}, v{S2}, v{STR + 3}",
            f"v_mul_f32 v{S1}, {hex(f32bits(1.0 / 576))}, v{S1}",
            f"v_mul_f32 v{S2}, {hex(f32bits(1.0 / 576))}, v{S2}",
            f"v_fma_f32 v{S2}, -v{S1}, v{S1}, v{S2}",
            f"v_max_f32 v{S2}, 0, v{S2}",
            f"v_add_f32 v{S2}, {hex(f32bits(1e-5))}, v{S2}",
            f"v_rsq_f32 v{RS}, v{S2}",
            f"v_mul_f32 v{MR}, v{S1}, v{RS}"]
    return ops


def role_p(a, abort, done):
    lane_setup(a, 18)
    vXA, vSTA, vCS, vA0, vLDS, vO = 9, 10, 11, 12, 12, 14
    vMB = 108
    ACC, RING, STR, LN = 16, 32, 56, 76
    TT = 96
    CS = 80
    a(f"""
    s_lshr_b32 s{sK2}, s{S_ROLE}, 5
    s_and_b32 s{sK3}, s{S_ROLE}, 31
    s_lshl_b32 s{S_TMP}, s{sK2}, 3
    s_add_u32 s{S_TMP}, s{S_TMP}, {KA_WQ}
    s_load_dwordx2 s[{SRD_A}:{SRD_A + 1}], s[0:1], s{S_TMP}
    s_mov_b32 s{SRD_A + 2}, {576 * 8192}
    s_mov_b32 s{SRD_A + 3}, 0x00020000
    s_lshl_b32 s{sK1}, s{sK3}, 8
    s_lshl_b32 s{S_TMP}, s{S_WAVE}, 6
    s_add_u32 s{sK1}, s{sK1}, s{S_TMP}
    v_bfe_u32 v{vSTA}, v{vL16}, 4, 5
    """)
    feat_of_row(a, vO, vSTA, vT0)
    a(f"""
    v_bfe_u32 v{vT0}, v{vL16}, 8, 1
    v_lshl_add_u32 v{vT1}, v{vC}, 1, v{vT0}
    s_cmp_eq_u32 s{sK2}, 2
    s_cselect_b64 vcc, -1, 0
    v_cndmask_b32 v{vO}, v{vO}, v{vT1}, vcc
    v_and_b32 v{vT0}, 1, v{vO}
    """)
    sel_of_parity(a, vCS, vT0, vT1)
    a(f"""
    v_and_b32 v{vO}, 30, v{vO}
    v_lshrrev_b32 v{vT0}, 9, v{vL16}
    v_lshlrev_b32 v{vA0}, 16, v{vT0}
    v_lshl_add_u32 v{vA0}, v{vO}, 1, v{vA0}
    v_add_u32 v{vA0 + 1}, 8192, v{vA0}
    v_lshlrev_b32 v{vSTA}, 4, v{vSTA}
    v_mul_u32_u24 v{vT1}, 2560, v{vT0}
    v_add_u32 v{vSTA}, v{vSTA}, v{vT1}
    v_add_u32 v{vSTA}, {STB3}, v{vSTA}
    s_lshl_b32 s{sW1K}, s{S_WAVE}, 10
    v_bfe_u32 v{vT1}, v{vL16}, 8, 1
    v_lshlrev_b32 v{vO}, 10, v{vT1}
    v_lshl_add_u32 v{vO}, v{vC}, 4, v{vO}
    v_lshl_add_u32 v{vO}, v{vT0}, 8, v{vO}
    """)
    a.force_wait(lg=0)
    a(f"s_and_b32 s{SRD_A + 1}, s{SRD_A + 1}, 0xffff")
    load_cols(a, SRD_A, vA0, vCS, [((16 * t + 2 * d) * 8192, WB + 4 * t + d) for t in range(36) for d in range(4)])
    a(f"""
    s_mul_i32 s{sK4}, s{sK2}, {QKV_M}
    s_lshl_b32 s{S_TMP}, s{sK3}, 13
    s_add_u32 s{sK4}, s{sK4}, s{S_TMP}
    s_lshl_b32 s{S_TMP}, s{S_WAVE}, 11
    s_add_u32 s{sK4}, s{sK4}, s{S_TMP}
    s_add_u32 s{sK4}, s{sK4}, {WS_QKV}
    s_lshl_b32 s{sK1}, s{sK3}, 9
    s_lshl_b32 s{S_TMP}, s{sK2}, 7
    s_add_u32 s{sK1}, s{sK1}, s{S_TMP}
    s_lshl_b32 s{S_TMP}, s{S_WAVE}, 2
    s_add_u32 s{sK1}, s{sK1}, s{S_TMP}
    s_add_u32 s{sK1}, s{sK1}, {WS_FLAGS + FL_QKV}
    v_mov_b32 v{RING}, 0x3f803f80
    v_mov_b32 v{RING + 1}, 0x3f803f80
    v_mov_b32 v{RING + 2}, 0x3f803f80
    v_mov_b32 v{RING + 3}, 0x3f803f80
    s_lshl_b32 s{S_TMP}, s{S_WAVE}, 8
    s_add_u32 s{S_TMP}, s{S_TMP}, {3 * XBUF}
    v_bfe_u32 v{vT0}, v{vL16}, 4, 5
    v_lshl_add_u32 v{vLDS}, v{vT0}, 2, s{S_TMP}
    v_lshrrev_b32 v{vT0}, 9, v{vL16}
    v_lshl_add_u32 v{vLDS + 1}, v{vT0}, 4, s{S_TMP}
    s_cmp_eq_u32 s{sK2}, 2
    s_cbranch_scc1 Lp_v
    """)
    for swap in (0, 1):
        nm = "LpV" if swap else "LpQ"
        if swap:
            a.label("Lp_v")
            a.restore(([], []))
        for t in range(36):
            w, o = vr(WB + 4 * t, 4), vr(RING, 4)
            a(MF32(ACC if swap else CS, o if swap else w, w if swap else o, "0" if t == 0 else None))
        if swap:
            a(f"v_mov_b32 v{vCS}, v{ACC}")

        def early():
            a(f"v_add_u32 v{vXA}, s{sBUF}, v{vL16}")
            a(f"v_add_u32 v{vT0}, s{sCSB}, v{vSTA}")
            for t in range(3):
                a(f"ds_read_b128 {vr(RING + 4 * t, 4)}, v{vXA} offset:{t * 1024}")
            for i in range(5):
                a(f"ds_read_b128 {vr(STR + 4 * i, 4)}, v{vT0} offset:{512 * i}")

        def compute(pre, dma, extra, mid, roll, swap=swap):
            early()
            sm = [None] * 3 + stats_math(STR, LN, LN + 1)
            if swap:
                sm += [f"ds_write2_b32 v{vLDS}, v{LN}, v{LN + 1} offset0:0 offset1:32"]
                sm += [f"ds_read_b128 {vr(LN + 4 * i, 4)}, v{vLDS + 1} offset:{(i >> 2) * 128 + (i & 3) * 32}" for i in range(8)]
                sm += [None] * 9 + [f"v_mul_f32 v{LN + 16 + i}, v{vCS}, v{LN + 16 + i}" for i in range(16)]
            else:
                sm += [f"v_mul_f32 v{TT + i}, v{LN + 1}, v{CS + i}" for i in range(16)]
            sm += [f"s_mul_i32 s{sO1}, s{sCL}, {3 * QKV_M}", f"s_lshl_b32 s{sK3}, s{sCS}, 18",
                   f"s_add_u32 s{sO1}, s{sO1}, s{sK3}", f"s_add_u32 s{sO1}, s{sO1}, s{sK4}"]
            gemm32(a, ACC, swap, vXA, [RING + 4 * i for i in range(4)], pre, dma, extra, mid, roll, fill=sm, issued=True)
            epi()

        def epi(swap=swap):
            for k in range(2):
                regs = [0, 1, 2, 3, 8, 9, 10, 11] if swap else list(range(8))
                regs = [r + (4 if swap else 8) * k for r in regs]
                for i in regs[::2]:
                    if swap:
                        a(f"v_pk_fma_f32 {vr(ACC + i, 2)}, {vr(ACC + i, 2)}, {vr(LN + i, 2)}, {vr(LN + 16 + i, 2)} neg_lo:[0,0,1] neg_hi:[0,0,1]")
                    else:
                        a(f"v_pk_fma_f32 {vr(ACC + i, 2)}, {vr(ACC + i, 2)}, {vr(LN, 2)}, {vr(TT + i, 2)} op_sel_hi:[1,0,1] neg_lo:[0,0,1] neg_hi:[0,0,1]")
                o = RING + 16 + 4 * k
                for i in range(4):
                    a(f"v_cvt_pk_bf16_f32 v{o + i}, v{ACC + regs[2 * i]}, v{ACC + regs[2 * i + 1]}")
                a(f"buffer_store_dwordx4 {vr(o, 4)}, v{vO}, {WS}, s{sO1} offen offset:{512 * k} sc1", tag="st")

        def out_flag():
            a(f"s_mul_i32 s{sPEND}, s{sCO}, {FL_STRIDE}")
            a(f"s_add_u32 s{sPEND}, s{sPEND}, s{sK1}")

        a(f"s_mov_b32 s{sSB}, {STB3}")
        a(f"s_mov_b32 s{sCSB}, 0x2000")
        staged_loop(a, nm, abort, done, WS_X + X_BYTES, 2 * X_BYTES, FL_XB,
                    lambda sr_: stats_dma(WS_ST + ST_BYTES, sr_), compute, out_flag, 2, vMB if swap else 78)


def role_awo(a, abort, done):
    lane_setup(a, 64)
    vXA, vSTO, vSEL, vA0, vRES = 9, 10, 11, 12, 14
    ACC, RING, RES, SS = 16, 32, 64, 72
    if AQLDW:
        a(f"s_cmp_lt_u32 s{S_ROLE}, 5")
        a("s_cbranch_scc1 Lawo_noord")
        dbg_wait(a, DB_LOADED, AQLDW, vT0, vT1, abort, "Lawo_ord", 64)
        a.label("Lawo_noord")
    srd(a, SRD_A, KA_WO, 576 * 1152)
    a(f"""
    s_cmp_ge_u32 s{S_ROLE}, 5
    s_cselect_b32 s{sLAYS}, 1, 0
    s_cselect_b32 s{S_TMP}, 5, 0
    s_sub_u32 s{S_ROLE}, s{S_ROLE}, s{S_TMP}
    s_lshl_b32 s{sK2}, s{S_ROLE}, 2
    s_add_u32 s{sK2}, s{sK2}, s{S_WAVE}
    s_min_u32 s{sK2}, s{sK2}, 17
    s_lshl_b32 s{sK1}, s{sK2}, 6
    v_bfe_u32 v{vSTO}, v{vL16}, 4, 5
    """)
    feat_of_row(a, vRES, vSTO, vT0)
    a(f"v_and_b32 v{vT0}, 1, v{vRES}")
    sel_of_parity(a, vSEL, vT0, vT1)
    a(f"""
    v_and_b32 v{vRES}, 30, v{vRES}
    v_lshlrev_b32 v{vRES}, 1, v{vRES}
    v_lshrrev_b32 v{vXA}, 9, v{vL16}
    v_mul_u32_u24 v{vT0}, {8 * 1152}, v{vXA}
    v_add_u32 v{vA0}, v{vT0}, v{vRES}
    v_add_u32 v{vA0 + 1}, 1152, v{vA0}
    """)
    load_cols(a, SRD_A, vA0, vSEL, [((18 * t + 2 * (t & 1) + 2 * d) * 1152, WB + 4 * t + d) for t in range(32) for d in range(4)])
    a(f"""
    v_mul_u32_u24 v{vT0}, {72 * 1152}, v{vXA}
    v_add_u32 v{vA0}, v{vT0}, v{vRES}
    v_add_u32 v{vA0 + 1}, 1152, v{vA0}
    """)
    load_cols(a, SRD_A, vA0, vSEL, [((144 * t + 18 * d + (0 if d & 1 else 16)) * 1152, WB + 128 + 4 * t + d) for t in range(4) for d in range(4)])
    a(f"""
    v_lshlrev_b32 v{vSTO}, 4, v{vSTO}
    v_lshl_add_u32 v{vRES}, v{vXA}, 9, v{vSTO}
    s_lshl_b32 s{S_TMP}, s{sK2}, 11
    v_add_u32 v{vRES}, s{S_TMP}, v{vRES}
    v_lshrrev_b32 v{vSTO}, 1, v{vSTO}
    s_lshl_b32 s{S_TMP}, s{sK2}, 8
    v_add_u32 v{vSTO}, s{S_TMP}, v{vSTO}
    s_lshr_b32 s{sK1}, s{sK2}, 2
    s_lshl_b32 s{sK1}, s{sK1}, 7
    s_and_b32 s{S_TMP}, s{sK2}, 3
    s_lshl_b32 s{S_TMP}, s{S_TMP}, 2
    s_add_u32 s{sK1}, s{sK1}, s{S_TMP}
    s_add_u32 s{sK1}, s{sK1}, {WS_FLAGS + FL_XB}
    """)

    def res_loads(srd_):
        pre = [f"s_mul_i32 s{sO3}, s{sNL}, {2 * X_BYTES}", f"s_mul_i32 s{S_TMP + 1}, s{sNS}, {X_SEG}",
               f"s_add_u32 s{sO3}, s{sO3}, s{S_TMP + 1}", f"s_add_u32 s{sO3}, s{sO3}, {WS_X}"]
        ops = [[f"buffer_load_dwordx4 {vr(RES + 4 * k, 4)}, v{vRES}, {srd_}, s{sO3} offen offset:{1024 * k}"] for k in range(2)]
        ops[0] = pre + ops[0]
        return ops

    AOST = int(os.environ.get("AOST", "14"))
    AODEC = int(os.environ.get("AODEC", "32"))

    def compute(start, decide, vm):
        vm = list(vm)
        a(f"v_add_u32 v{vXA}, s{sBUF}, v{vL16}")
        nr = 8
        ring = [RING + 4 * i for i in range(nr)]

        def rd(t):
            return f"ds_read_b128 {vr(ring[t % nr], 4)}, v{vXA} offset:{t * 1024}"
        for t in range(nr - 1):
            a(rd(t))
        for i in range(8):
            a(f"v_lshlrev_b32 v{ACC + 2 * i}, 16, v{RES + i}")
            a(f"v_and_b32 v{ACC + 2 * i + 1}, 0xffff0000, v{RES + i}")
        fl = [f"s_mul_i32 s{sO1}, s{sCL}, {2 * X_BYTES}", f"s_mul_i32 s{sK3}, s{sCS}, {X_SEG}",
              f"s_add_u32 s{sO1}, s{sO1}, s{sK3}", f"s_add_u32 s{sO1}, s{sO1}, {WS_X + X_BYTES}",
              f"s_mul_i32 s{sK4}, s{sCL}, {2 * ST_BYTES}", f"s_mul_i32 s{sK3}, s{sCS}, {ST_SEG}",
              f"s_add_u32 s{sK4}, s{sK4}, s{sK3}", f"s_add_u32 s{sK4}, s{sK4}, {WS_ST + ST_BYTES}"]
        for t in range(36):
            a(MF32(ACC, vr(WB + 4 * t, 4), vr(ring[t % nr], 4), None))
            if t + nr - 1 < 36:
                a(rd(t + nr - 1))
            if fl:
                a(fl.pop(0))
            if t == AOST:
                start()
            if t == AODEC:
                decide()
            elif t > AODEC and vm:
                seq(a, vm.pop(0))
                if vm:
                    seq(a, vm.pop(0))
        seq(a, vm)
        for k in range(2):
            for i in range(4):
                a(f"v_cvt_pk_bf16_f32 v{RING + 4 * k + i}, v{ACC + 8 * k + 2 * i}, v{ACC + 8 * k + 2 * i + 1}")
            a(f"buffer_store_dwordx4 {vr(RING + 4 * k, 4)}, v{vRES}, {WS}, s{sO1} offen offset:{1024 * k} sc1")
        a(f"v_add_f32 v{SS}, v{ACC}, v{ACC + 1}")
        a(f"v_mul_f32 v{SS + 1}, v{ACC}, v{ACC}")
        a(f"v_fmac_f32 v{SS + 1}, v{ACC + 1}, v{ACC + 1}")
        for i in range(2, 16):
            a(f"v_add_f32 v{SS}, v{SS}, v{ACC + i}")
            a(f"v_fmac_f32 v{SS + 1}, v{ACC + i}, v{ACC + i}")
        seq(a, f"v_mov_b32 v{SS + 2}, v{SS}", f"v_mov_b32 v{SS + 3}, v{SS + 1}",
            f"v_permlane32_swap_b32 v{SS}, v{SS + 2}", f"v_permlane32_swap_b32 v{SS + 1}, v{SS + 3}",
            f"v_add_f32 v{SS}, v{SS}, v{SS + 2}", f"v_add_f32 v{SS + 1}, v{SS + 1}, v{SS + 3}",
            f"buffer_store_dwordx2 {vr(SS, 2)}, v{vSTO}, {WS}, s{sK4} offen sc1")

    def out_flag():
        a(f"s_mul_i32 s{sPEND}, s{sCO}, {FL_STRIDE}")
        a(f"s_add_u32 s{sPEND}, s{sPEND}, s{sK1}")

    seq_loop(a, "Lawo", abort, done, WS_OA, X_BYTES, FL_OA, res_loads, compute, out_flag, 3, sLAYS, slp=2, DBGW=11, nflags=64)


def role_aq(a, abort, done, nt=""):
    lane_setup(a, 48)
    vXA, vSTA, vLDS, vOUT = 9, 10, 11, 13
    ACC, CS, RING, STR = 16, 36, 56, 68
    LN, BI = 92, 72
    ST8 = 112
    QB, KC, VA, VB, SP, PP = 128, 132, 136, 140, 144, 68
    AQ1P = int(os.environ.get("AQ1P", "1"))
    AQST = int(os.environ.get("AQST", "10"))
    AQDEC = int(os.environ.get("AQDEC", "14" if AQ1P else "22"))
    NR = int(os.environ.get("AQNR", "4"))
    RG = [RING, RING + 4, RING + 8, 104][:NR]
    vSRC = 111
    WV = 152

    def wreg(tile, t, i=None):
        n = (tile * 18 + t) * 4
        k, b = ("v", WV + n) if n < 104 else ("a", n - 104)
        return f"{k}[{b}:{b + 3}]" if i is None else f"{k}{b + i}"

    a(f"""
    s_lshr_b32 s{sLAYS}, s{S_ROLE}, 4
    s_and_b32 s{S_ROLE}, s{S_ROLE}, 15
    s_lshl_b32 s{sK2}, s{S_ROLE}, 1
    s_lshr_b32 s{S_TMP}, s{S_WAVE}, 1
    s_add_u32 s{sK2}, s{sK2}, s{S_TMP}
    s_and_b32 s{sK3}, s{S_WAVE}, 1
    s_mul_i32 s{sK1}, s{sK2}, 36
    """)
    if AQLDW:
        a(f"s_cmp_eq_u32 s{sLAYS}, 0")
        a("s_cbranch_scc1 Laq_noord")
        dbg_wait(a, DB_LOADED, AQLDW, vT0, vT1, abort, "Laq_ord", 64)
        a.label("Laq_noord")
    srd(a, SRD_A, KA_WQKV, 576 * 3456)
    A_ = f"s[{SRD_A}:{SRD_A + 3}]"
    SLOT, ROWB, MB_ = 7680, 240, 80
    EXA = 18 * SLOT
    ZERO = EXA + 18 * 1024
    GA2, TRM, TRE, MSK, TX, CR, CWR = 16, 19, 20, 21, 22, 23, 28
    sLB, sHD, sDL = sO1, sO2, sO3
    for j in range(2):
        a(f"""
        v_lshrrev_b32 v24, 4, v{vL16}
        v_add_u32 v24, {64 * j}, v24
        v_mul_u32_u24 v25, {(65536 + 14) // 15}, v24
        v_lshrrev_b32 v25, 16, v25
        v_mul_u32_u24 v26, 15, v25
        v_sub_u32 v24, v24, v26
        v_mul_u32_u24 v{GA2 + j}, 3456, v25
        v_mul_u32_u24 v25, {(65536 + 4) // 5}, v24
        v_lshrrev_b32 v25, 16, v25
        v_mul_u32_u24 v26, 5, v25
        v_sub_u32 v24, v24, v26
        v_mul_u32_u24 v25, 1152, v25
        v_lshlrev_b32 v24, 4, v24
        v_add3_u32 v{GA2 + j}, v{GA2 + j}, v24, v25
        """)
    a(f"""
    s_mul_i32 s{sK1}, s{S_ROLE}, 72
    s_and_b32 s{sDL}, s{sK1}, 15
    s_and_b32 s{sK1}, s{sK1}, -16
    s_mul_i32 s{S_TMP}, s{S_WAVE}, {8 * 3456}
    s_add_u32 s{sK1}, s{sK1}, s{S_TMP}
    s_mul_i32 s{sLB}, s{S_WAVE}, {8 * ROWB}
    s_mov_b32 s{sE}, -1
    s_mov_b32 s{sE + 1}, 0x00ffffff
    """)
    def wdma(t):
        a(f"s_add_u32 s{S_TMP}, s{sK1}, {32 * t * 3456}")
        a(f"s_add_u32 m0, s{sLB}, {t * SLOT}")
        a("s_nop 0")
        a(f"buffer_load_dwordx4 v{GA2}, {A_}, s{S_TMP} offen lds")
        a(f"s_add_u32 m0, s{sLB}, {t * SLOT + 1024}")
        a(f"s_mov_b64 exec, s[{sE}:{sE + 1}]")
        a(f"buffer_load_dwordx4 v{GA2 + 1}, {A_}, s{S_TMP} offen lds")
        a("s_mov_b64 exec, -1")
    for t in range(12):
        wdma(t)
    a(f"""
    s_lshr_b32 s{sHD}, s{S_WAVE}, 1
    s_mul_i32 s{S_TMP}, s{sHD}, 40
    s_add_u32 s{S_TMP}, s{S_TMP}, s{sDL}
    s_mul_i32 s{S_TMP + 1}, s{sHD}, 4
    s_add_u32 s{S_TMP + 1}, s{S_TMP + 1}, s{sDL}
    s_add_u32 s{S_TMP + 1}, s{S_TMP + 1}, 32
    s_lshl_b32 s{S_TMP + 2}, s{sHD}, 4
    s_add_u32 s{S_TMP + 2}, s{S_TMP + 2}, {EXA}
    v_lshrrev_b32 v{vT0}, 2, v{vC}
    v_lshl_add_u32 v{vT0}, v{vG}, 3, v{vT0}
    v_and_b32 v{vT1}, 3, v{vC}
    v_mul_u32_u24 v{TRM}, {ROWB}, v{vT0}
    v_add_u32 v{TRM}, s{S_TMP}, v{TRM}
    v_lshl_add_u32 v{TRM}, v{vT1}, 3, v{TRM}
    v_lshlrev_b32 v{TRE}, 5, v{vT0}
    v_add_u32 v{TRE}, s{S_TMP + 2}, v{TRE}
    v_mov_b32 v{TX}, {ZERO}
    v_cmp_eq_u32 vcc, 0, v{vT1}
    v_cndmask_b32 v{TRE}, v{TX}, v{TRE}, vcc
    v_cndmask_b32 v{MSK}, 0, -1, vcc
    v_bfe_u32 v{vT0}, v{vL16}, 4, 5
    v_mul_u32_u24 v{CR}, {ROWB}, v{vT0}
    v_add_u32 v{CR}, s{S_TMP + 1}, v{CR}
    v_lshlrev_b32 v{CWR}, 5, v{vT0}
    v_add_u32 v{CWR}, s{S_TMP + 2}, v{CWR}
    v_mov_b32 v24, 0
    v_mov_b32 v25, 0
    v_mov_b32 v26, 0
    v_mov_b32 v27, 0
    v_lshlrev_b32 v{TX}, 4, v{vC}
    v_add_u32 v{TX}, {ZERO}, v{TX}
    ds_write_b128 v{TX}, v[24:27]
    """)

    def pair(tile, t, hh):
        n = (tile * 18 + t) * 4 + 2 * hh
        k, b = ("v", WV + n) if n < 104 else ("a", n - 104)
        return f"{k}[{b}:{b + 1}]"
    EB = 56

    def batch(ts):
        regs = {t: (EB + 8 * i, EB + 8 * i + 2, EB + 8 * i + 4) for i, t in enumerate(ts)}
        for t in ts:
            e, x, ad = regs[t]
            a(f"v_add_u32 v{ad}, {t * SLOT}, v{CR}")
            a(f"v_mov_b32 v{x + 1}, 0")
            a(f"ds_read_b32 v{e}, v{ad}")
            a(f"ds_read_b32 v{e + 1}, v{ad} offset:{MB_}")
            a(f"ds_read_b32 v{x}, v{ad} offset:{2 * MB_}")
        for t in ts:
            e, x, ad = regs[t]
            a(f"v_add_u32 v{ad + 1}, {t * SLOT}, v{TRM}")
            for hh in range(2):
                for tile, m in ((0, 0), (1, 1), (3, 2)):
                    a(f"ds_read_b64_tr_b16 {pair(tile, t, hh)}, v{ad + 1} offset:{m * MB_ + hh * 4 * ROWB}")
        for t in ts:
            e, x, ad = regs[t]
            a(f"ds_write_b64 v{CWR}, {vr(e, 2)} offset:{t * 1024}")
            a(f"ds_write_b64 v{CWR}, {vr(x, 2)} offset:{t * 1024 + 8}")
        a.wait(lg=0)
        for t in ts:
            e, x, ad = regs[t]
            for tile, off, q in ((2, 0, e), (4, 8, e + 1)):
                a(f"v_and_b32 v{q}, {t * 1024 + off}, v{MSK}")
                a(f"v_add_u32 v{q}, v{q}, v{TRE}")
                for hh in range(2):
                    a(f"ds_read_b64_tr_b16 {pair(tile, t, hh)}, v{q} offset:{hh * 128}")
        a.wait(lg=0)
    for i in range(4):
        a(f"v_mov_b32 v{104 + i}, 0x3f803f80")

    def csum(ts):
        for t in ts:
            for tile in range(5):
                w, o = wreg(tile, t), vr(104, 4)
                a(MF(CS + 4 * tile, o if tile >= 3 else w, w if tile >= 3 else o, "0" if t == 0 else None))
    a.force_wait(vm=2 * 6, lg=0)
    a("s_barrier")
    batch(list(range(0, 6)))
    for t in range(12, 18):
        wdma(t)
    csum(range(0, 6))
    a.force_wait(vm=2 * 6)
    a("s_barrier")
    batch(list(range(6, 12)))
    csum(range(6, 12))
    a.force_wait(vm=0)
    a("s_barrier")
    batch(list(range(12, 18)))
    csum(range(12, 18))
    a("s_barrier")
    NEG = hex(f32bits(-1e30))
    a(f"""
    v_lshlrev_b32 v{vSTA}, 4, v{vC}
    s_lshl_b32 s{S_TMP}, s{sK3}, 3
    v_add_u32 v{vSTA}, s{S_TMP}, v{vSTA}
    v_mul_u32_u24 v{vT1}, 1536, v{vG}
    v_add_u32 v{vSTA}, v{vSTA}, v{vT1}
    s_lshl_b32 s{S_TMP}, s{S_WAVE}, 7
    s_add_u32 s{S_TMP}, s{S_TMP}, {2 * XBUF}
    v_lshl_add_u32 v{vLDS}, v{vC}, 3, s{S_TMP}
    v_lshl_add_u32 v{vLDS + 1}, v{vG}, 5, s{S_TMP}
    v_lshlrev_b32 v{vOUT}, 5, v{vC}
    s_lshl_b32 s{S_TMP}, s{sK3}, 4
    v_add_u32 v{vOUT}, s{S_TMP}, v{vOUT}
    s_lshr_b32 s{S_TMP}, s{sK2}, 2
    s_add_u32 s{S_TMP}, s{S_TMP}, 64
    s_lshl_b32 s{S_TMP}, s{S_TMP}, 9
    s_and_b32 s{S_TMP + 1}, s{sK2}, 3
    s_lshl_b32 s{S_TMP + 1}, s{S_TMP + 1}, 2
    s_add_u32 s{S_TMP}, s{S_TMP}, s{S_TMP + 1}
    v_add_u32 v{vOUT + 1}, s{S_TMP}, v{vOUT}
    v_lshrrev_b32 v{vT0}, 1, v{vG}
    v_lshl_add_u32 v{vOUT}, v{vT0}, 9, v{vOUT}
    v_and_b32 v{vT0}, 1, v{vG}
    v_lshl_add_u32 v{vOUT}, v{vT0}, 3, v{vOUT}
    s_lshl_b32 s{S_TMP}, s{sK2}, 10
    v_add_u32 v{vOUT}, s{S_TMP}, v{vOUT}
    s_lshl_b32 s{sK1}, s{S_ROLE}, 7
    s_lshl_b32 s{S_TMP}, s{S_WAVE}, 2
    s_add_u32 s{sK1}, s{sK1}, s{S_TMP}
    s_add_u32 s{sK1}, s{sK1}, {WS_FLAGS + FL_OA}
    s_mov_b32 s{sK4}, {hex(f32bits(18 ** -0.5 * 1.4426950408889634))}
    v_mov_b32 v{vT1}, {NEG}
    """)
    for i in range(4):
        a(f"v_lshl_add_u32 v{vT0}, v{vG}, 2, {i}")
        a(f"v_sub_u32 v{vT0}, v{vT0}, v{vC}")
        a(f"v_cmp_le_i32 vcc, 9, v{vT0}")
        a(f"v_cndmask_b32 v{BI + i}, v{vT1}, v{vZERO}, vcc")
        a(f"v_add_u32 v{vT0}, 7, v{vT0}")
        a(f"v_cmp_ge_u32 vcc, 7, v{vT0}")
        a(f"v_cndmask_b32 v{BI + 4 + i}, v{vT1}, v{vZERO}, vcc")
    a(f"v_and_b32 v{vSRC}, 0x200, v{vL16}")
    a(f"v_lshl_add_u32 v{vSRC}, v{vC}, 5, v{vSRC}")
    a(f"v_and_b32 v{vT0}, 1, v{vG}")
    a(f"v_lshl_add_u32 v{vSRC}, v{vT0}, 4, v{vSRC}")
    for r in (ST8, VA, VB):
        for i in range(4):
            a(f"v_mov_b32 v{r + i}, 0")
    for i in range(4):
        a(f"v_mov_b32 v{ST8 + 4 + i}, 0x3f803f80")
    a(f"v_mov_b32 v{QB + 3}, 0")
    a(f"v_mov_b32 v{KC + 3}, 0")

    def st_loads(srd_):
        pre = [f"s_mul_i32 s{sO3}, s{sNL}, {2 * ST_BYTES}", f"s_mul_i32 s{S_TMP + 1}, s{sNS}, {ST_SEG}",
               f"s_add_u32 s{sO3}, s{sO3}, s{S_TMP + 1}", f"s_add_u32 s{sO3}, s{sO3}, {WS_ST}"]
        ops = [[f"buffer_load_dwordx2 {vr(STR + 12 + 2 * i, 2)}, v{vSTA}, {srd_}, s{sO3} offen offset:{256 * i}"] for i in range(6)]
        ops[0] = pre + ops[0]
        return ops

    def compute(start, decide, vm, osc):
        vm = list(vm)
        S0 = STR + 12
        a(f"v_lshlrev_b32 v{vXA}, 9, v{vG}")
        a(f"v_lshl_add_u32 v{vXA}, v{vC}, 4, v{vXA}")
        a(f"s_lshl_b32 s{S_TMP}, s{sK3}, 8")
        a(f"s_add_u32 s{S_TMP}, s{S_TMP}, s{sBUF}")
        a(f"v_add_u32 v{vXA}, s{S_TMP}, v{vXA}")
        S1, S2 = S0, S0 + 1
        sm = [f"v_add_f32 v{S0 + j}, v{S0 + j}, v{S0 + 2 * i + j}" for i in range(1, 6) for j in range(2)]
        for sw in (32, 16):
            sm += [f"v_mov_b32 v{S0 + 2}, v{S1}", f"v_mov_b32 v{S0 + 3}, v{S2}",
                   f"v_permlane{sw}_swap_b32 v{S1}, v{S0 + 2}", f"v_permlane{sw}_swap_b32 v{S2}, v{S0 + 3}",
                   f"v_add_f32 v{S1}, v{S1}, v{S0 + 2}", f"v_add_f32 v{S2}, v{S2}, v{S0 + 3}"]
        sm += [f"v_mul_f32 v{S1}, {hex(f32bits(1.0 / 576))}, v{S1}", f"v_mul_f32 v{S2}, {hex(f32bits(1.0 / 576))}, v{S2}",
               f"v_fma_f32 v{S2}, -v{S1}, v{S1}, v{S2}", f"v_max_f32 v{S2}, 0, v{S2}",
               f"v_add_f32 v{S2}, {hex(f32bits(1e-5))}, v{S2}", f"v_rsq_f32 v{LN}, v{S2}",
               f"v_mul_f32 v{LN + 1}, v{S1}, v{LN}",
               f"ds_write_b64 v{vLDS}, {vr(LN, 2)}",
               f"ds_read_b128 {vr(LN + 4, 4)}, v{vLDS + 1}", f"ds_read_b128 {vr(LN + 8, 4)}, v{vLDS + 1} offset:16"]
        def rd(n):
            return f"ds_read_b128 {vr(RG[n % NR], 4)}, v{vXA} offset:{(n % 18) * 2048}"
        q0, k0, ex, v0, vx = [ACC + 4 * i for i in range(5)]
        KP = ST8
        MX, T1 = vT0, vT1
        LQ, OX, OY, ON = ACC, ACC + 4, ACC + 8, ST8 + 4

        def fold(tile):
            ops = []
            for i in range(4):
                r = ACC + 4 * tile + i
                rs, mr = (LN + 4 + 2 * i, LN + 5 + 2 * i) if tile >= 3 else (LN, LN + 1)
                ops += [f"v_mul_f32 v{LN + 2}, v{mr}, v{CS + 4 * tile + i}", f"v_fma_f32 v{r}, v{r}, v{rs}, -v{LN + 2}"]
            return ops
        post = fold(0) + fold(2) + fold(1) + [
            f"v_cvt_pk_bf16_f32 v{QB}, v{q0}, v{q0 + 1}", f"v_cvt_pk_bf16_f32 v{QB + 1}, v{q0 + 2}, v{q0 + 3}",
            f"v_cvt_pk_bf16_f32 v{QB + 2}, v{ex}, v{ex + 1}",
            f"v_cvt_pk_bf16_f32 v{KC}, v{k0}, v{k0 + 1}", f"v_cvt_pk_bf16_f32 v{KC + 1}, v{k0 + 2}, v{k0 + 3}",
            f"v_cvt_pk_bf16_f32 v{KC + 2}, v{ex + 2}, v{ex + 3}",
            [f"s_cmp_eq_u32 s{sCS}, 0", f"s_cselect_b32 s{sO1}, {NEG}, 0"],
            None, MF(SP, vr(KP, 4), vr(QB, 4), "0"), None, MF(SP + 4, vr(KC, 4), vr(QB, 4), "0"), None, None]
        post += [f"v_mov_b32 v{KP + i}, v{KC + i}" for i in range(3)] + [None] * 3
        post += [f"v_fma_f32 v{SP + i}, v{SP + i}, s{sK4}, v{BI + i}" for i in range(8)]
        post += [f"v_add_f32 v{SP + i}, s{sO1}, v{SP + i}" for i in range(4)]
        post += [f"v_max3_f32 v{MX}, v{SP}, v{SP + 1}, v{SP + 2}", f"v_max3_f32 v{MX}, v{MX}, v{SP + 3}, v{SP + 4}",
                 f"v_max3_f32 v{MX}, v{MX}, v{SP + 5}, v{SP + 6}", f"v_max_f32 v{MX}, v{MX}, v{SP + 7}",
                 f"v_mov_b32 v{T1}, v{MX}", None, f"v_permlane32_swap_b32 v{MX}, v{T1}", f"v_max_f32 v{MX}, v{MX}, v{T1}",
                 f"v_mov_b32 v{T1}, v{MX}", None, f"v_permlane16_swap_b32 v{MX}, v{T1}", f"v_max_f32 v{MX}, v{MX}, v{T1}"]
        post += [f"v_sub_f32 v{SP + i}, v{SP + i}, v{MX}" for i in range(8)]
        post += [f"v_exp_f32 v{SP + i}, v{SP + i}" for i in range(8)]
        post += [f"v_cvt_pk_bf16_f32 v{PP + i}, v{SP + 2 * i}, v{SP + 2 * i + 1}" for i in range(4)]
        post += [None, MF(LQ, vr(ON, 4), vr(PP, 4), "0"),
                 [f"s_mul_i32 s{sO1}, s{sCO}, {X_SEG}", f"s_add_u32 s{sO1}, s{sO1}, {WS_OA}"]]
        if AQ1P:
            st_, dec_ = (AQST, AQDEC) if osc else (int(os.environ.get("AQFS", "1")), int(os.environ.get("AQFD", "11")))
            seq(a, [rd(i) for i in range(NR - 1)])
            if PROF == 3:
                prof_begin(a)
            for t in range(18):
                if t + NR - 1 < 18:
                    a(rd(t + NR - 1))
                x = vr(RG[t % NR], 4)
                for tile in range(5):
                    w = wreg(tile, t)
                    a(MF(ACC + 4 * tile, x if tile >= 3 else w, w if tile >= 3 else x, "0" if t == 0 else None))
                    if sm and tile < 4:
                        a(sm.pop(0))
                    if tile == 4 and t > dec_ and vm:
                        seq(a, vm.pop(0))
                    if tile == 2 and t > dec_ and len(vm) > 17 - t:
                        seq(a, vm.pop(0))
                if t == st_:
                    start()
                if t == dec_:
                    decide()
            assert not sm
            seq(a, vm)
            vm = []
            if PROF == 3:
                prof_end(a, 3); prof_begin(a)
            f3, f4 = fold(3), fold(4)
            post2 = []
            for op in post:
                if op is None:
                    if f3:
                        post2 += [f3.pop(0), f3.pop(0)]
                    elif f4:
                        post2 += [f4.pop(0), f4.pop(0)]
                else:
                    post2.append(op)
            post = post2 + f3 + f4
            vfold_done = True
        else:
            vfold_done = False
            seq(a, [rd(i) for i in range(NR - 1)])
            if PROF == 3:
                prof_begin(a)
            for n in range(36):
                t = n % 18
                if PROF == 3 and n == 18:
                    prof_end(a, 3); prof_begin(a)
                if n + NR - 1 < 36:
                    a(rd(n + NR - 1))
                x = vr(RG[n % NR], 4)
                for tile in ((0, 1, 2) if n < 18 else (3, 4)):
                    w = wreg(tile, t)
                    a(MF(ACC + 4 * tile, x if tile >= 3 else w, w if tile >= 3 else x, "0" if t == 0 else None))
                    if n < 18 and sm:
                        a(sm.pop(0))
                    if n >= 19:
                        for _ in range(3 if n >= 30 else 2):
                            if post:
                                seq(a, post.pop(0))
                if n == AQST:
                    start()
                if n == 17:
                    assert not sm
                if n == AQDEC:
                    decide()
                elif n > AQDEC and vm:
                    seq(a, vm.pop(0))
            assert not vm
        if PROF == 3:
            prof_end(a, 4); prof_begin(a)
        fo3 = [] if vfold_done else fold(3)
        fo4 = [] if vfold_done else fold(4)
        seq(a, post, f"v_rcp_f32 v{T1}, v{LQ}", fo3,
            f"v_cvt_pk_bf16_f32 v{VA + 2}, v{v0}, v{v0 + 1}", f"v_cvt_pk_bf16_f32 v{VA + 3}, v{v0 + 2}, v{v0 + 3}",
            fo4[:2], MF(OX, vr(VA, 4), vr(PP, 4), "0"), fo4[2:],
            f"v_cvt_pk_bf16_f32 v{VB + 2}, v{vx}, v{vx + 1}", f"v_cvt_pk_bf16_f32 v{VB + 3}, v{vx + 2}, v{vx + 3}",
            f"v_mov_b32 v{VA}, v{VA + 2}", f"v_mov_b32 v{VA + 1}, v{VA + 3}",
            MF(OY, vr(VB, 4), vr(PP, 4), "0"),
            [f"v_mul_f32 v{OX + i}, v{T1}, v{OX + i}" for i in range(4)],
            f"v_cvt_pk_bf16_f32 v{OX}, v{OX}, v{OX + 1}", f"v_cvt_pk_bf16_f32 v{OX + 1}, v{OX + 2}, v{OX + 3}",
            f"buffer_store_dwordx2 {vr(OX, 2)}, v{vOUT}, {WS}, s{sO1} offen{osc}",
            f"v_mov_b32 v{VB}, v{VB + 2}", f"v_mov_b32 v{VB + 1}, v{VB + 3}",
            f"v_mul_f32 v{OY}, v{T1}, v{OY}", f"v_mul_f32 v{OY + 1}, v{T1}, v{OY + 1}",
            f"v_cvt_pk_bf16_f32 v{OY}, v{OY}, v{OY + 1}",
            "s_mov_b64 exec, 0xffff",
            f"buffer_store_dword v{OY}, v{vOUT + 1}, {WS}, s{sO1} offen{osc}",
            "s_mov_b64 exec, -1")
        if PROF == 3:
            prof_end(a, 5)

    def out_flag():
        a(f"s_mul_i32 s{sPEND}, s{sCO}, {FL_STRIDE}")
        a(f"s_add_u32 s{sPEND}, s{sPEND}, s{sK1}")

    class_pure(a, 3, sF1, 24, 25, abort, "Laq_pure")
    a(f"s_cmp_eq_u32 s{sF1}, 0")
    a("s_cbranch_scc1 Laq_slow")
    for nm, osc in (("Laqf", ""), ("Laq", " sc1")):
        if osc:
            a.label("Laq_slow")
            a.restore(([], []))
        seq_loop(a, nm, abort, done, WS_X, 2 * X_BYTES, FL_XA, st_loads, lambda s_, d_, v_, osc=osc: compute(s_, d_, v_, osc),
                 out_flag, 2, sLAYS, vsrc=vSRC, DBGW=9, osc=osc, nflags=48)


SPOLL = int(os.environ.get("SPOLL", "0"))
SPSLP = int(os.environ.get("SPSLP", "4"))
SPR = 72


def sflag_issue(a, sbase, lines, nflags):
    for i, ln in enumerate(lines):
        nw = min(4, nflags - 4 * ln)
        a(f"s_add_u32 s{S_TMP}, s{sbase}, {ln * 128}")
        if nw > 2:
            a(f"s_load_dwordx4 s[{SPR + 4 * i}:{SPR + 4 * i + 3}], s[{SRD_WS}:{SRD_WS + 1}], s{S_TMP} glc")
        else:
            a(f"s_load_dwordx2 s[{SPR + 4 * i}:{SPR + 4 * i + 1}], s[{SRD_WS}:{SRD_WS + 1}], s{S_TMP} glc")


def sflag_and(a, lines, nflags, dst):
    regs = [SPR + 4 * i + j for i, ln in enumerate(lines) for j in range(min(4, nflags - 4 * ln))]
    a(f"s_and_b32 s{dst}, s{regs[0]}, s{regs[1]}")
    for r in regs[2:]:
        a(f"s_and_b32 s{dst}, s{dst}, s{r}")


def sflag_wait(a, name, sbase, nflags, abort, slp):
    nl = (nflags + 3) // 4
    a(f"s_mov_b32 s{S_SPIN}, 0")
    for b0 in range(0, nl, 4):
        lines = list(range(b0, min(nl, b0 + 4)))
        L = f"{name}_s{b0}"
        a.label(L)
        sflag_issue(a, sbase, lines, nflags)
        spin_check(a, abort)
        a.force_wait(lg=0)
        sflag_and(a, lines, nflags, S_TMP + 1)
        a(f"s_cbranch_scc1 {L}d")
        if slp:
            a(f"s_sleep {slp}")
        a(f"s_branch {L}")
        a.label(L + "d")


def seq_loop(a, name, abort, done, xbase, xlayer, flag_off, extra_loads, compute, out_flag, nst, laysel, prefetch=True,
             vsrc=None, pub2=None, slp=None, DBGW=None, osc=" sc1", nflags=None, guard=None, fbias=0):
    slp = SLP if slp is None else slp

    GM = 88

    def missing():
        a(f"v_cmp_eq_u32 vcc, 0, v{vFLV}")
        if guard:
            a(f"s_and_b64 vcc, vcc, s[{GM}:{GM + 1}]")

    def dma_ops(srd_):
        ops = []
        for i in range(9):
            pre = []
            if i % 4 == 0:
                pre = [f"s_add_u32 m0, s{sOB}, {i * 1024}", f"s_add_u32 s{sO2}, s{sNX}, {i * 1024}"]
            ops.append(pre + [f"buffer_load_dwordx4 v{vL16 if vsrc is None else vsrc}, {srd_}, s{sO2} offen offset:{(i % 4) * 1024} lds"])
        return ops

    def publish():
        a(f"s_cmp_lg_u32 s{sPEND}, 0")
        a("s_cselect_b64 exec, 1, 0")
        if pub2 is None:
            a(f"buffer_store_dword v{vONE}, v{vZERO}, {WS}, s{sPEND} offen{osc}")
        else:
            a(f"buffer_store_dwordx2 {vr(pub2, 2)}, v{vZERO}, {WS}, s{sPEND} offen sc1")
        a("s_mov_b64 exec, -1")
        a(f"s_mov_b32 s{sPEND}, 0")

    a(f"""
    s_mov_b32 s{sNL}, s{laysel}
    s_mov_b32 s{sCL}, s{laysel}
    s_mov_b32 s{sNS}, 0
    s_lshl_b32 s{sNO}, s{laysel}, 6
    s_mul_i32 s{sWQ}, s{S_WAVE}, 9216
    s_mov_b32 s{sBUF}, {XBUF}
    s_mov_b32 s{sOB}, s{sWQ}
    s_mov_b32 s{sPEND}, 0
    s_mov_b32 s{SRD_C}, s{SRD_WS}
    s_mov_b32 s{SRD_C + 1}, s{SRD_WS + 1}
    s_mov_b32 s{SRD_C + 2}, 0
    s_mov_b32 s{SRD_C + 3}, 0x00020000
    s_mul_i32 s{sNX}, s{laysel}, {xlayer}
    s_add_u32 s{sNX}, s{sNX}, s{sWQ}
    s_add_u32 s{sNX}, s{sNX}, {xbase}
    s_mul_i32 s{sNFL}, s{sNO}, {FL_STRIDE}
    s_add_u32 s{sNFL}, s{sNFL}, {WS_FLAGS + flag_off}
    """)
    if fbias:
        a(f"s_sub_u32 s{sNFL}, s{sNFL}, s{fbias}")
    if DBGT == 2 and DBGW is not None:
        stamp_max(a, 5 + (DBGW - 9), vT0, vT1, (laysel, 0))
    if guard:
        guard(GM)
    dbg_wait(a, DB_POOL, N_POOL, vT0, vT1, abort, name + "_ini")
    if DBGT == 2 and DBGW is not None:
        stamp_max(a, 13, vT0, vT1, (laysel, 0))
    trace(a, vT0, vT1)
    prof_init(a)
    a(f"s_branch {name}_poll")
    head = name + "_item"
    a.label(head)
    a.restore(([], []))
    prof_begin(a)
    a.force_wait(vm=nst)
    prof_end(a, 0)
    a.label(name + "_go")
    prof_begin(a)
    a("s_barrier")
    prof_end(a, 1)
    a(f"""
    s_xor_b32 s{sBUF}, s{sBUF}, {XBUF}
    s_xor_b32 s{sOB}, s{sOB}, {XBUF}
    s_xor_b32 s{sSB}, s{sSB}, 0x2000
    s_xor_b32 s{sCSB}, s{sCSB}, 0x2000
    s_mov_b32 s{sCS}, s{sNS}
    s_mov_b32 s{sCO}, s{sNO}
    s_add_u32 s{sNS}, s{sNS}, 1
    s_add_u32 s{sNO}, s{sNO}, 1
    s_add_u32 s{sNX}, s{sNX}, {X_SEG}
    s_add_u32 s{sNFL}, s{sNFL}, {FL_STRIDE}
    s_mov_b32 s{sDEC}, 0
    """)
    if guard:
        guard(GM)
    a.vmq = [(frozenset(), "st")] * nst

    def start():
        if PROF == 1:
            prof_begin(a)
        a.force_wait(vm=0)
        if PROF == 1:
            prof_end(a, 2)
        a(f"buffer_load_dword v{vFLV}, v{vFLA}, {WS}, s{sNFL} offen sc1")
        publish()

    def decide():
        a.force_wait(vm=1)
        missing()
        a("s_cmp_eq_u64 vcc, 0")
        a(f"s_cselect_b32 s{sDEC}, 1, 0")
        a(f"s_cmp_lt_u32 s{sNS}, {NSEG}")
        a(f"s_cselect_b32 s{sDEC}, s{sDEC}, 0")
        a(f"s_cmp_lg_u32 s{sDEC}, 0")
        a(f"s_cselect_b32 s{SRD_C + 2}, {WS_BYTES}, 0")

    if prefetch:
        compute(start, decide, dma_ops(PFS) + extra_loads(PFS))
    else:
        compute(None, None, [])
    out_flag()
    trace_at(a, sCO, vT0, vZERO)
    trace5(a, sCS, 2, vT0, vZERO)
    if DBGW is not None:
        stamp_max(a, DBGW, vT0, vT1, (sCO, 0))
    if TRACE == 1:
        a.force_wait(vm=0)
        trace(a, vT0, vT1)
        a.force_wait(vm=0)
    if prefetch:
        a(f"s_cmp_lg_u32 s{sDEC}, 0")
        a(f"s_cbranch_scc1 {head}")
    a(f"buffer_load_dword v{vFLV}, v{vFLA}, {WS}, s{sNFL} offen sc1")
    a.force_wait(vm=0)
    a(f"s_cmp_ge_u32 s{sNS}, {NSEG}")
    a(f"s_cbranch_scc1 {name}_fin")
    missing()
    a("s_cmp_lg_u64 vcc, 0")
    a(f"s_cbranch_scc1 {name}_pub")
    seq(a, dma_ops(WS), extra_loads(WS))
    publish()
    trace5(a, sCS, 3, vT0, vZERO)
    a.force_wait(vm=1)
    a(f"s_branch {name}_go")
    a.label(name + "_fin")
    a.restore(([], []))
    prof_dump(a, vT0, vT1)
    publish()
    a(f"s_branch {done}")
    a.label(name + "_pub")
    a.restore(([], []))
    publish()
    trace5(a, sCS, 3, vT0, vZERO)
    a.label(name + "_poll")
    a.restore(([], []))
    if SPOLL & {18: 1, 48: 2, 64: 4}[nflags]:
        sflag_wait(a, name + "_pl", sNFL, nflags, abort, max(slp, SPSLP))
    else:
        a(f"s_mov_b32 s{S_SPIN}, 0")
        L = name + "_pl"
        a.label(L)
        a(f"buffer_load_dword v{vFLV}, v{vFLA}, {WS}, s{sNFL} offen sc1")
        spin_check(a, abort)
        missing()
        a("s_cmp_eq_u64 vcc, 0")
        a(f"s_cbranch_scc1 {L}d")
        if slp:
            a(f"s_sleep {slp}")
        a(f"s_branch {L}")
        a.label(L + "d")
    trace5(a, sNS, 0, vT0, vZERO)
    seq(a, dma_ops(WS), extra_loads(WS))
    a.force_wait(vm=0)
    trace5(a, sNS, 1, vT0, vZERO)
    a(f"s_branch {name}_go")
```

```python
from pool import *

PD = int(os.environ.get("PD", "8"))
PST = int(os.environ.get("PST", "20"))
PDEC = int(os.environ.get("PDEC", "42"))
PTOUCH = int(os.environ.get("PTOUCH", "0"))
PPF = 3
PLDW = int(os.environ.get("PLDW", "1"))


def role_p2(a, abort, done):
    lane_setup(a, 18)
    vXA, vSTA, vCS0, vCS1, vLDS, vO, vTR, vGA = 9, 10, 11, 12, 14, 13, 210, 211
    vMB, PUB = 208, 212
    vLD2 = 15
    ACC = [16, 32]
    NRG = PD + PPF + 1
    RING = [48 + 4 * i for i in range(NRG)]
    assert RING[-1] + 4 <= 96
    STR, LN = 96, 116
    CS = [148, 164]
    TT = [180, 180]
    TTB = [180, 116 + 32]
    OUT = [196, 196]
    vL2 = 214
    vLN, vJ = 215, 216

    def W(T, t):
        n = T * 36 + t
        return ar(4 * n, 4) if n < 64 else vr(224 + 4 * (n - 64), 4)

    sLAY, sM, sHD, sHALF = sLAYS, sK2, sK3, sO2
    sGB = 90
    a(f"""
    s_cmp_ge_u32 s{S_ROLE}, 48
    s_cselect_b32 s{sLAY}, 1, 0
    s_cselect_b32 s{S_TMP}, 48, 0
    s_sub_u32 s{S_ROLE}, s{S_ROLE}, s{S_TMP}
    s_lshr_b32 s{sM}, s{S_ROLE}, 4
    s_and_b32 s{sHD}, s{S_ROLE}, 15
    s_lshl_b32 s{sHD}, s{sHD}, 1
    s_lshr_b32 s{S_TMP}, s{S_WAVE}, 1
    s_add_u32 s{sHD}, s{sHD}, s{S_TMP}
    s_and_b32 s{sHALF}, s{S_WAVE}, 1
    s_lshl_b32 s{S_TMP}, s{sM}, 3
    s_add_u32 s{S_TMP}, s{S_TMP}, {KA_WQ}
    s_load_dwordx2 s[{SRD_A}:{SRD_A + 1}], s[0:1], s{S_TMP}
    s_mov_b32 s{SRD_A + 2}, {576 * 8192}
    s_mov_b32 s{SRD_A + 3}, 0x00020000
    s_lshl_b32 s{sK1}, s{sHD}, 8
    s_lshl_b32 s{S_TMP}, s{sHALF}, 7
    s_add_u32 s{sK1}, s{sK1}, s{S_TMP}
    """)
    if PLDW:
        a(f"s_cmp_eq_u32 s{sLAY}, 0")
        a("s_cbranch_scc1 Lp_noord")
        dbg_wait(a, DB_STEP0 if GATE0 & 2 else DB_LOADED, PLDW, vT0, vT1, abort, "Lp_ord", 64)
        a.label("Lp_noord")
    lane = vT0
    a(f"""
    v_lshrrev_b32 v{lane}, 4, v{vL16}
    v_lshrrev_b32 v{vGA}, 3, v{lane}
    v_lshlrev_b32 v{vGA}, 13, v{vGA}
    v_and_b32 v{vT1}, 7, v{lane}
    v_lshl_add_u32 v{vGA}, v{vT1}, 4, v{vGA}
    v_lshrrev_b32 v{vTR}, 1, v{vG}
    v_lshlrev_b32 v{vTR}, 3, v{vTR}
    v_lshrrev_b32 v{vT1}, 2, v{vC}
    v_add_u32 v{vTR}, v{vTR}, v{vT1}
    v_lshlrev_b32 v{vTR}, 7, v{vTR}
    s_lshl_b32 s{S_TMP}, s{S_WAVE}, 15
    v_add_u32 v{vTR}, s{S_TMP}, v{vTR}
    v_and_b32 v{vO}, 1, v{vG}
    v_and_b32 v{vT1}, 1, v{vC}
    v_lshlrev_b32 v{vT1}, 3, v{vT1}
    v_lshl_add_u32 v{vT1}, v{vO}, 4, v{vT1}
    v_bfe_u32 v{vXA}, v{vC}, 1, 1
    v_lshl_add_u32 v{vT1}, v{vXA}, 5, v{vT1}
    v_and_b32 v{vXA}, 3, v{vC}
    v_lshlrev_b32 v{vXA}, 3, v{vXA}
    v_lshl_add_u32 v{vO}, v{vO}, 5, v{vXA}
    s_cmp_eq_u32 s{sM}, 2
    s_cselect_b64 vcc, -1, 0
    v_cndmask_b32 v{vT1}, v{vT1}, v{vO}, vcc
    v_add_u32 v{vTR}, v{vTR}, v{vT1}
    """)
    a.force_wait(lg=0)
    a(f"s_and_b32 s{SRD_A + 1}, s{SRD_A + 1}, 0xffff")
    A_ = f"s[{SRD_A}:{SRD_A + 3}]"
    NSL = 32

    def dma(i):
        a(f"s_add_u32 m0, s{sO1}, {(i % NSL) * 1024}")
        a(f"s_add_u32 s{S_TMP}, s{sK1}, {8 * i * 8192}")
        a(f"buffer_load_dwordx4 v{vGA}, {A_}, s{S_TMP} offen lds", tag="wd")
    a(f"s_lshl_b32 s{sO1}, s{S_WAVE}, 15")
    for i in range(NSL):
        dma(i)
    for t in range(36):
        issued = min(72, NSL + 2 * t)
        a.force_wait(vm=issued - (2 * t + 2))
        for T in range(2):
            w = W(T, t)
            k, b = w[0], int(w[2:].split(":")[0])
            for hh in range(2):
                a(f"ds_read_b64_tr_b16 {k}[{b + 2 * hh}:{b + 2 * hh + 1}], v{vTR} offset:{(t % 16) * 2048 + T * 64 + hh * 512}")
        if issued < 72:
            a.force_wait(lg=0)
            dma(issued)
            dma(issued + 1)
    a.force_wait(vm=0, lg=0)
    a(f"""
    v_bfe_u32 v{vSTA}, v{vL16}, 4, 5
    v_lshrrev_b32 v{vT0}, 9, v{vL16}
    v_lshlrev_b32 v{vSTA}, 3, v{vSTA}
    v_mul_u32_u24 v{vT1}, 2304, v{vT0}
    v_add_u32 v{vSTA}, v{vSTA}, v{vT1}
    v_add_u32 v{vSTA}, {STB3}, v{vSTA}
    s_lshl_b32 s{sW1K}, s{S_WAVE}, 10
    v_bfe_u32 v{vT1}, v{vL16}, 8, 1
    v_lshlrev_b32 v{vO}, 10, v{vT1}
    v_lshl_add_u32 v{vO}, v{vC}, 4, v{vO}
    v_lshl_add_u32 v{vO}, v{vT0}, 8, v{vO}
    v_lshlrev_b32 v{vLN}, 3, v{vL16}
    v_mov_b32 v{PUB}, 1
    v_mov_b32 v{PUB + 1}, 1
    s_mul_i32 s{sK4}, s{sM}, {QKV_M}
    s_lshl_b32 s{S_TMP}, s{sHD}, 13
    s_add_u32 s{sK4}, s{sK4}, s{S_TMP}
    s_lshl_b32 s{S_TMP}, s{sHALF}, 12
    s_add_u32 s{sK4}, s{sK4}, s{S_TMP}
    s_add_u32 s{sK4}, s{sK4}, {WS_QKV}
    s_lshl_b32 s{sK1}, s{sHD}, 9
    s_lshl_b32 s{S_TMP}, s{sM}, 7
    s_add_u32 s{sK1}, s{sK1}, s{S_TMP}
    s_lshl_b32 s{S_TMP}, s{sHALF}, 3
    s_add_u32 s{sK1}, s{sK1}, s{S_TMP}
    s_add_u32 s{sK1}, s{sK1}, {WS_FLAGS + FL_QKV}
    v_mov_b32 v{RING[0]}, 0x3f803f80
    v_mov_b32 v{RING[0] + 1}, 0x3f803f80
    v_mov_b32 v{RING[0] + 2}, 0x3f803f80
    v_mov_b32 v{RING[0] + 3}, 0x3f803f80
    s_lshl_b32 s{S_TMP}, s{S_WAVE}, 8
    s_add_u32 s{S_TMP}, s{S_TMP}, {3 * XBUF}
    v_bfe_u32 v{vT0}, v{vL16}, 4, 5
    v_lshl_add_u32 v{vLDS}, v{vT0}, 2, s{S_TMP}
    v_lshrrev_b32 v{vT0}, 9, v{vL16}
    v_lshl_add_u32 v{vL2}, v{vT0}, 4, s{S_TMP}
    s_cmp_eq_u32 s{sM}, 2
    s_cbranch_scc1 Lp_v
    """)
    guard = None
    if QRING and not os.environ.get("NOGUARD"):
        d0 = (NSEG - (QRING - 1)) * FL_STRIDE + FL_XA - FL_XB
        a(f"""
        s_mul_i32 s{sGB}, s{sLAY}, {(QRING - 7) * FL_STRIDE}
        s_lshl_b32 s{S_TMP}, s{sHD}, 9
        s_add_u32 s{S_TMP}, s{S_TMP}, {FL_QKV + 384 - FL_XB}
        s_cmp_eq_u32 s{sLAY}, 0
        s_cselect_b32 s{S_TMP}, {d0}, s{S_TMP}
        v_mov_b32 v{vT0}, s{S_TMP}
        v_add_u32 v{vFLA}, s{sGB}, v{vFLA}
        v_lshrrev_b32 v{vT1}, 4, v{vL16}
        v_cmp_gt_u32 vcc, 18, v{vT1}
        v_cndmask_b32 v{vFLA}, v{vT0}, v{vFLA}, vcc
        """)

        def guard(GM):
            a(f"""
            s_and_b32 s{S_TMP}, s{sNS}, 3
            s_cmp_eq_u32 s{S_TMP}, 0
            s_cselect_b32 s{S_TMP}, 1, 0
            s_cmp_eq_u32 s{sLAY}, 0
            s_cselect_b32 s{S_TMP}, 1, s{S_TMP}
            s_cmp_ge_u32 s{sNS}, {QRING}
            s_cselect_b32 s{S_TMP}, s{S_TMP}, 0
            s_cmp_lt_u32 s{sNS}, {NSEG}
            s_cselect_b32 s{S_TMP}, s{S_TMP}, 0
            s_cmp_lg_u32 s{S_TMP}, 0
            s_cselect_b64 s[{GM}:{GM + 1}], -1, {(1 << 18) - 1}
            """)
    for swap in (0, 1):
        nm = "LpV" if swap else "LpQ"
        if swap:
            a.label("Lp_v")
            a.restore(([], []))
        for T in range(2):
            for t in range(36):
                w, o = W(T, t), vr(RING[0], 4)
                a(MF32(ACC[T] if swap else CS[T], o if swap else w, w if swap else o, "0" if t == 0 else None))
        if swap:
            a(f"v_mov_b32 v{vCS0}, v{ACC[0]}")
            a(f"v_mov_b32 v{vCS1}, v{ACC[1]}")

        def epi_ops(T, swap=swap):
            ops = []
            acc = ACC[T]
            tt = TT[T]
            for k in range(2):
                regs = [0, 1, 2, 3, 8, 9, 10, 11] if swap else [0, 4, 1, 5, 2, 6, 3, 7]
                regs = [r + (4 if swap else 8) * k for r in regs]
                o = OUT[T] + 4 * k
                for i in range(4):
                    for r in regs[2 * i:2 * i + 2]:
                        if swap:
                            ops.append(f"v_mul_f32 v{tt + r}, v{(vCS0, vCS1)[T]}, v{LN + 16 + r}")
                            ops.append(f"v_fma_f32 v{acc + r}, v{acc + r}, v{LN + r}, -v{tt + r}")
                        else:
                            ops.append(f"v_mul_f32 v{tt + r}, v{LN + 1}, v{CS[T] + r}")
                            ops.append(f"v_fma_f32 v{acc + r}, v{acc + r}, v{LN}, -v{tt + r}")
                    ops.append(f"v_cvt_pk_bf16_f32 v{o + i}, v{acc + regs[2 * i]}, v{acc + regs[2 * i + 1]}")
                ops.append(("st", f"buffer_store_dwordx4 {vr(o, 4)}, v{vO}, {WS}, s{sO1} offen offset:{2048 * T + 512 * k} sc1"))
            return ops

        def compute(start, decide, vm, swap=swap):
            a(f"v_add_u32 v{vXA}, s{sBUF}, v{vL16}")
            a(f"v_add_u32 v{vT0}, s{sCSB}, v{vSTA}")

            def rd(t):
                return f"ds_read_b128 {vr(RING[t % NRG], 4)}, v{vXA} offset:{t * 1024}"
            for t in range(PPF):
                a(rd(t))
            st_rd = [f"ds_read_b64 {vr(STR + 2 * i, 2)}, v{vT0} offset:{256 * i}" for i in range(9)]
            sm = st_rd + [None] * 2 + stats_math2(STR, 9, LN, LN + 1)
            if swap:
                sm += [f"ds_write2_b32 v{vLDS}, v{LN}, v{LN + 1} offset0:0 offset1:32"]
                sm += [f"ds_read_b128 {vr(LN + 4 * i, 4)}, v{vL2} offset:{(i >> 2) * 128 + (i & 3) * 32}" for i in range(8)]
            if QRING:
                sm += [[f"s_and_b32 s{S_TMP + 2}, s{sCS}, {QRING - 1}", f"s_lshl_b32 s{S_TMP + 2}, s{S_TMP + 2}, 18"]]
            sm += [f"s_mul_i32 s{sO1}, s{sCL}, {3 * QKV_M}", f"s_lshl_b32 s{S_TMP + 2}, s{sCS}, 18" if not QRING else None,
                   f"s_add_u32 s{sO1}, s{sO1}, s{S_TMP + 2}", f"s_add_u32 s{sO1}, s{sO1}, s{sK4}"]
            vm = list(vm)
            e0 = epi_ops(0)
            slots = []
            for u in range(36 + PD):
                if u < 36:
                    slots.append((0, u))
                if u >= PD:
                    slots.append((1, u - PD))
            last0 = slots.index((0, 35))
            for si, (T, t) in enumerate(slots):
                x, w = vr(RING[t % NRG], 4), W(T, t)
                a(MF32(ACC[T], x if swap else w, w if swap else x, "0" if t == 0 else None))
                if T == 0 and t + PPF < 36:
                    a(rd(t + PPF))
                k = 2
                if si == PST:
                    start(); k = 0
                elif si == PDEC:
                    decide(); k = 0
                elif si > PDEC and vm and si % 2 == 0:
                    seq(a, vm.pop(0)); k = 0
                while sm and k > 0:
                    seq(a, sm.pop(0)); k -= 1
                if si >= last0 + 3:
                    k = 5
                    while e0 and k > 0:
                        op = e0.pop(0)
                        if isinstance(op, tuple):
                            a(op[1], tag="st")
                        else:
                            a(op)
                        k -= 1
            assert not vm and not sm
            if PTOUCH:
                a(f"s_add_u32 s{S_TMP}, s{sO1}, {PTOUCH << 18}")
                a("s_mov_b64 exec, 0xffffffff")
                a(f"buffer_load_dword v{vJ}, v{vLN}, {WS}, s{S_TMP} offen sc1")
                a.vmq.pop()
                a("s_mov_b64 exec, -1")
            for op in e0 + epi_ops(1):
                if isinstance(op, tuple):
                    a(op[1], tag="st")
                else:
                    a(op)

        def out_flag():
            a(f"s_mul_i32 s{sPEND}, s{sCO}, {FL_STRIDE}")
            a(f"s_add_u32 s{sPEND}, s{sPEND}, s{sK1}")

        a(f"s_mov_b32 s{sSB}, {STB3}")
        a(f"s_mov_b32 s{sCSB}, 0x2000")
        seq_loop(a, nm, abort, done, WS_X + X_BYTES, 2 * X_BYTES, FL_XB,
                 lambda sr_: stats_dma(WS_ST + ST_BYTES, sr_), compute, out_flag, 4, sLAY, pub2=PUB, DBGW=10, nflags=18, guard=guard,
                 fbias=sGB if guard else 0)
```

```python
from common import *
import os, struct

L_MEMA = 0
L_KX = 9216
ROWS = 288
L_QB = 17408
L_KB = L_QB + 8 * ROWS
L_OB = L_KB + 8 * ROWS
L_WO1 = 24576
L_W = 57344
LW_WAVE = 26624
assert L_OB + 8 * ROWS <= L_WO1 and L_W + 4 * LW_WAVE == 163840
PART_W = 2304

vL16, vIDX, vQW, vQR, vOR, vSPARE, vRLD, vRST, vL4, vLW = range(10)
vT0, vT1 = 10, 11
ACCQ, ACCK, ACCV = 12, 20, 28
VXA, VXB = 36, 40
Q = [44 + 4 * i for i in range(7)]
WR = [Q[3], Q[5]]
vSPARE2 = vRLD
WBASE = 72

sH = S_ROLE
sLAY = S_FREE
sSTEP = S_FREE + 1
sMEMR = S_FREE + 2
sMEMR8 = S_FREE + 3
sMEMW = S_FREE + 4
sMEMZ = S_FREE + 5
sPW = S_FREE + 6
sPH = S_FREE + 7
sKP = S_FREE + 8
sKF = S_FREE + 9
sVF = S_FREE + 10
sKM = S_FREE + 11
sFL = S_FREE + 12
sKMB = S_FREE + 13
sKPH = S_FREE + 34
sLATE = S_FREE + 15 - 15 + 8 + 0 if False else 87
sKMW = 86
sKMP, sKPP = 84, 85
sFMK = S_FREE + 46
sKPV = S_FREE + 24
sOFL = S_FREE + 35
sCEXP = S_FREE + 14
sMAXD = S_FREE + 22
sFAST = S_FREE + 23
sMASK = S_FREE + 18
sMLO = S_FREE + 20
sU = S_FREE + 16
sT = S_FREE + 25
sPR = sT
sJOBC = S_FREE + 30
sONES = S_FREE + 36
sM = S_FREE + 38
SRD_D = 80
S_STAMP = 80

MATS = "qkv"
D1 = [int(x) for x in os.environ.get("D1", "6,6,6").split(",")]
D2 = int(os.environ.get("D2", "2"))
R1LDW = int(os.environ.get("R1LDW", "16"))
WOD = int(os.environ.get("WOD", "3"))
RNT0 = int(os.environ.get("RNT0", "0"))
RNT = " nt" if os.environ.get("RNT") else ""
RNTO = " nt" if os.environ.get("RNTO") else ""
DL = int(os.environ["DL"]) if os.environ.get("DL") else None
DLN = int(os.environ.get("DLN", "1"))
PUBHK = int(os.environ.get("PUBHK", "0"))
LATEF = int(os.environ.get("LATEF", "0"))
KST = int(os.environ.get("KST", "0"))
VST = int(os.environ.get("VST", "0"))
S1 = int(os.environ.get("S1", "0"))
S2 = int(os.environ.get("S2", "0"))
NOPUB = int(os.environ.get("NOPUB", "0"))
NOKV = int(os.environ.get("NOKV", "0"))
PFD = int(os.environ.get("PFD", "1"))
RFREE = int(os.environ.get("RFREE", "0"))
TORD = [8, 0, 1, 2, 3, 4, 5, 6, 7]
WO_L = [(TORD[i >> 1], i & 1) for i in (0, 1, 5, 6, 10, 11, 15, 16)]


def f32bits(x):
    return struct.unpack("<I", struct.pack("<f", x))[0]


def build_frag_map():
    fm = {}
    regs = [("v", WBASE + 8 * i) for i in range(23)] + [("a", 8 * i) for i in range(32)]
    ri = 0
    for t in range(9):
        for m in MATS:
            for b in range(2):
                if m == "k" and b == 1:
                    fm[(m, b, t)] = ("l", "W", t)
                else:
                    fm[(m, b, t)] = regs[ri]; ri += 1
    n0 = n1 = 0
    for tau in range(9):
        for ks in range(2):
            if (tau, ks) in WO_L:
                if ks == 0:
                    fm[("o", tau, ks)] = ("l", "W", 9 + n0); n0 += 1
                else:
                    fm[("o", tau, ks)] = ("l", "O", n1); n1 += 1
            else:
                fm[("o", tau, ks)] = regs[ri]; ri += 1
    assert ri == 55 and n0 == 4 and n1 == 4
    return fm


FM = build_frag_map()


def opnd(loc, n=8, off=0):
    k, b = loc[0], loc[1]
    return (vr if k == "v" else ar)(b + off, n)


def lds_addr(loc, w):
    if loc[1] == "W":
        return vLW, loc[2] * 2048
    return vL16, L_WO1 + w * 8192 + loc[2] * 2048


def lw_read(dst, loc, w):
    r, off = lds_addr(loc, w)
    return [f"ds_read_b128 {vr(dst, 4)}, v{r} offset:{off}", f"ds_read_b128 {vr(dst + 4, 4)}, v{r} offset:{off + 1024}"]


def SM(acc, A, B):
    return f"v_smfmac_f32_16x16x64_bf16 {vr(acc, 4)}, {vr(A, 4)}, {B}, v{vIDX}"


def r_setup(a):
    LANE, C, G = 10, 60, 61
    WS = f"s[{SRD_WS}:{SRD_WS + 3}]"
    cexp = hex(f32bits(128 ** -0.5 * 1.4426950408889634))
    a(f"""
    v_and_b32 v{LANE}, 63, v0
    v_and_b32 v{C}, 15, v{LANE}
    v_lshrrev_b32 v{G}, 4, v{LANE}
    v_lshlrev_b32 v{vL16}, 4, v{LANE}
    v_lshlrev_b32 v{vL4}, 2, v{LANE}
    s_mul_i32 s{S_TMP}, s{S_WAVE}, {LW_WAVE}
    s_add_u32 s{S_TMP}, s{S_TMP}, {L_W}
    v_add_u32 v{vLW}, s{S_TMP}, v{vL16}
    s_mov_b32 s{sMAXD}, 0xfffffffe
    s_mov_b32 s{sCEXP}, {cexp}
    s_mov_b32 s{sCEXP + 1}, {cexp}
    s_mov_b32 s{sMASK}, 0x00ff00ff
    s_mov_b32 s{sMASK + 1}, 0x00ff00ff
    s_mov_b32 s{sMLO}, -1
    s_mov_b32 s{sMLO + 1}, 0
    s_mov_b32 s{sONES}, 0x3f803f80
    s_mov_b32 s{sONES + 1}, 0x3f803f80
    s_mov_b32 s{sPH}, 0
    v_lshrrev_b32 v63, 2, v{C}
    v_and_b32 v64, 1, v{C}
    v_lshl_add_u32 v62, v63, 1, v64
    v_bfe_u32 v65, v{C}, 1, 1
    v_mov_b32 v{vIDX}, 0x4444
    v_mov_b32 v63, 0xeeee
    v_cmp_eq_u32 vcc, 0, v65
    v_cndmask_b32 v{vIDX}, v63, v{vIDX}, vcc
    v_mul_u32_u24 v63, {2 * ROWS}, v{G}
    v_lshl_add_u32 v{vQW}, v{C}, 2, v63
    s_lshl_b32 s{S_TMP}, s{S_WAVE}, 6
    v_add_u32 v{vQW}, s{S_TMP}, v{vQW}
    v_mul_u32_u24 v63, {ROWS}, v62
    v_lshl_add_u32 v{vQR}, v{G}, 4, v63
    v_lshl_add_u32 v{vOR}, v{G}, 5, v63
    v_lshl_add_u32 v{vOR}, v65, 4, v{vOR}
    """)
    def between(sfx=""):
        a(f"v_and_b32 v12, 15, v{LANE}")
        a(f"v_lshrrev_b32 v13, 4, v{LANE}")
        WP, GO, CH = 84, 85, 86
        C, G = 12, 13
        M0A, M0B = 14, 15
        a(f"""
        s_lshr_b32 s{WP}, s{sH}, 3
        s_bfe_u32 s{GO}, s{sH}, 0x20001
        s_and_b32 s{CH}, s{sH}, 1
        s_cmp_lt_u32 s{S_WAVE}, 2
        s_cbranch_scc1 Lr_jab{sfx}
        s_lshr_b32 s{WP}, s{sH}, 1
        s_and_b32 s{WP}, s{WP}, 3
        Lr_jab{sfx}:
        s_cmp_lt_u32 s{sH}, 8
        s_cselect_b32 s{sJOBC}, 1, 0
        v_bfe_u32 v20, v{C}, 2, 1
        v_lshl_add_u32 v17, v20, 2, v{G}
        v_mul_u32_u24 v17, {PART_H}, v17
        v_lshrrev_b32 v21, 3, v{C}
        v_lshlrev_b32 v21, 2, v21
        v_and_b32 v20, 3, v{C}
        v_add_u32 v21, v21, v20
        v_lshl_add_u32 v{vRLD}, v21, 4, v17
        s_mul_i32 s{S_TMP}, s{WP}, {PART_W}
        s_lshl_b32 s{S_TMP + 1}, s{S_WAVE}, 10
        s_add_u32 s{S_TMP}, s{S_TMP}, s{S_TMP + 1}
        s_lshl_b32 s{S_TMP + 1}, s{CH}, 7
        s_add_u32 s{S_TMP}, s{S_TMP}, s{S_TMP + 1}
        s_lshl_b32 s{S_TMP + 1}, s{GO}, 8
        s_cmp_lt_u32 s{S_WAVE}, 2
        s_cselect_b32 s{S_TMP + 1}, s{S_TMP + 1}, 0
        s_add_u32 s{S_TMP}, s{S_TMP}, s{S_TMP + 1}
        v_add_u32 v{vRLD}, s{S_TMP}, v{vRLD}
        """)
        HI, RR, G1, G0 = 24, 25, 26, 27
        a(f"""
        v_bfe_u32 v{HI}, v{C}, 1, 2
        v_and_b32 v{RR}, 1, v{C}
        v_lshrrev_b32 v{G1}, 1, v{G}
        v_and_b32 v{G0}, 1, v{G}
        s_cmp_lt_u32 s{S_WAVE}, 2
        s_cbranch_scc0 Lr_jc{sfx}
        s_lshl_b32 s{S_TMP}, s{S_WAVE}, 2
        v_add_u32 v18, s{S_TMP}, v{HI}
        v_lshlrev_b32 v{vRST}, 10, v18
        v_lshl_add_u32 v19, v{G0}, 1, v{RR}
        s_lshl_b32 s{S_TMP}, s{WP}, 4
        s_lshl_b32 s{S_TMP + 1}, s{GO}, 2
        s_add_u32 s{S_TMP}, s{S_TMP}, s{S_TMP + 1}
        v_add_u32 v19, s{S_TMP}, v19
        v_lshl_add_u32 v{vRST}, v19, 4, v{vRST}
        s_lshl_b32 s{S_TMP}, s{CH}, 1
        v_add_u32 v19, s{S_TMP}, v{G1}
        v_lshl_add_u32 v{vRST}, v19, 2, v{vRST}
        s_lshl_b32 s{S_TMP}, s{GO}, 1
        v_add_u32 v19, s{S_TMP}, v{RR}
        v_mul_u32_u24 v19, 576, v19
        v_lshl_add_u32 v19, v18, 4, v19
        v_lshl_add_u32 v19, v{G}, 1, v19
        s_mul_i32 s{S_TMP}, s{WP}, 144
        s_lshl_b32 s{S_TMP + 1}, s{CH}, 3
        s_add_u32 s{S_TMP}, s{S_TMP}, s{S_TMP + 1}
        v_add_u32 v19, s{S_TMP}, v19
        v_lshlrev_b32 v{M0A}, 1, v19
        v_add_u32 v{M0B}, 2, v{M0A}
        s_branch Lr_jd{sfx}
        Lr_jc{sfx}:
        s_lshl_b32 s{S_TMP}, s{CH}, 1
        v_add_u32 v18, s{S_TMP}, v{G1}
        v_lshlrev_b32 v19, 2, v18
        v_lshl_add_u32 v19, v{G0}, 1, v19
        v_add_u32 v19, v19, v{RR}
        s_lshl_b32 s{S_TMP}, s{WP}, 4
        v_add_u32 v19, s{S_TMP}, v19
        v_lshlrev_b32 v{vRST}, 4, v19
        v_lshl_add_u32 v{vRST}, v{HI}, 2, v{vRST}
        v_add_u32 v{vRST}, 8192, v{vRST}
        v_lshl_add_u32 v19, v18, 1, v{RR}
        v_mul_u32_u24 v19, 576, v19
        v_lshl_add_u32 v19, v{G0}, 3, v19
        v_add_u32 v19, v19, v{HI}
        s_mul_i32 s{S_TMP}, s{WP}, 144
        s_add_u32 s{S_TMP}, s{S_TMP}, 128
        v_add_u32 v19, s{S_TMP}, v19
        v_lshlrev_b32 v{M0A}, 1, v19
        v_add_u32 v{M0B}, 8, v{M0A}
        Lr_jd{sfx}:
        """)
        a(f"""
        s_mul_i32 s{sU}, s{sLAY}, {RING_TEAM}
        s_add_u32 s{sU}, s{sU}, {WS_RING}
        s_lshl_b32 s{S_TMP + 1}, s{S_WAVE}, 11
        s_lshl_b32 s{S_TMP + 2}, s{S_WAVE}, 8
        s_add_u32 s{S_TMP + 2}, s{S_TMP + 2}, 8192
        s_mul_i32 s{S_TMP}, s{sH}, {PART_H}
        s_add_u32 s{S_TMP}, s{S_TMP}, s{sU}
        s_mul_i32 s{sPW}, s{S_WAVE}, {PART_W}
        s_add_u32 s{sPW}, s{sPW}, s{S_TMP}
        s_add_u32 s{sMEMZ}, s{sU}, {MEMB_OFF}
        s_xor_b32 s{sMEMW}, s{sMEMZ}, {MEMB_SLOT}
        s_add_u32 s{sMEMR}, s{sMEMZ}, s{S_TMP + 1}
        s_add_u32 s{sMEMR8}, s{sMEMZ}, s{S_TMP + 2}
        s_mul_i32 s{S_TMP}, s{sLAY}, {3 * QKV_M}
        s_lshl_b32 s{S_TMP + 2}, s{sH}, 13
        s_add_u32 s{S_TMP}, s{S_TMP}, s{S_TMP + 2}
        s_add_u32 s{sKP}, s{S_TMP}, {WS_QKV + QKV_M + PFD * 32 * 8192}
        s_add_u32 s{S_TMP}, s{S_TMP}, s{S_TMP + 1}
        s_add_u32 s{sKF}, s{S_TMP}, {WS_QKV + QKV_M}
        s_add_u32 s{sVF}, s{S_TMP}, {WS_QKV + 2 * QKV_M}
        s_mul_i32 s{S_TMP}, s{sLAY}, {KM_D * 32 * KM_UNIT}
        s_lshl_b32 s{S_TMP + 2}, s{sH}, 12
        s_add_u32 s{S_TMP}, s{S_TMP}, s{S_TMP + 2}
        s_lshl_b32 s{S_TMP + 2}, s{S_WAVE}, 9
        s_add_u32 s{S_TMP}, s{S_TMP}, s{S_TMP + 2}
        s_add_u32 s{sKMB}, s{S_TMP}, {WS_KM}
        s_mov_b32 s{sKMW}, s{S_TMP + 2}
        s_mov_b32 s{sKM}, s{sKMB}
        s_mov_b32 s{sKPH}, 0
        s_mov_b32 s{sOFL}, {WS_FLAGS + FL_XA + (NSEG - (KM_D - 1)) * FL_STRIDE}
        s_mov_b32 s{sFMK}, 0xff
        s_mov_b32 s{sFMK + 1}, 0
        s_mul_i32 s{S_TMP}, s{sLAY}, {NSEG * FL_STRIDE}
        s_lshl_b32 s{S_TMP + 2}, s{sH}, 9
        s_add_u32 s{S_TMP}, s{S_TMP}, s{S_TMP + 2}
        s_add_u32 s{sFL}, s{S_TMP}, {WS_FLAGS + FL_QKV}
        s_mov_b32 s{sSTEP}, 0
        """)
        srd(a, 88, KA_MEM0, 9216)
        A_ = "s[88:91]"
        a(f"""
        s_cmp_eq_u32 s{S_WAVE}, 3
        s_cbranch_scc1 Lr_mem0_done{sfx}
        s_cmp_lt_u32 s{S_WAVE}, 2
        s_cselect_b32 s{S_TMP}, 1, s{sJOBC}
        s_cmp_eq_u32 s{S_TMP}, 0
        s_cbranch_scc1 Lr_mem0_done{sfx}
        s_mov_b64 exec, s[{sMASK}:{sMASK + 1}]
        buffer_load_ushort v20, v{M0A}, {A_}, 0 offen
        buffer_load_ushort v21, v{M0B}, {A_}, 0 offen
        v_lshl_or_b32 v20, v21, 16, v20
        v_min_u32 v20, s{sMAXD}, v20
        buffer_store_dword v20, v{vRST}, {WS}, s{sMEMZ} offen sc1
        v_mov_b32 v20, -1
        buffer_store_dword v20, v{vRST}, {WS}, s{sMEMW} offen sc1
        s_mov_b64 exec, -1
        Lr_mem0_done{sfx}:
        v_mov_b32 v20, 1
        v_mov_b32 v21, 1
        v_mov_b32 v22, 1
        v_mov_b32 v23, 1
        s_xor_b32 s{S_TMP}, s{sPW}, {PART_SLOT}
        """)
        for sreg in (sPW, S_TMP):
            for i in range(2):
                a(f"buffer_store_dwordx4 v[20:23], v{vL16}, {WS}, s{sreg} offen offset:{1024 * i} sc1")
            a(f"buffer_store_dword v20, v{vL4}, {WS}, s{sreg} offen offset:2048 sc1")
        a(f"v_lshrrev_b32 v17, 1, v{vL16}")
        a(f"s_mov_b32 s{S_TMP}, s{sKMB}")
        for i in range(KM_D):
            a(f"buffer_store_dwordx2 v[20:21], v17, {WS}, s{S_TMP} offen offset:2048 sc1")
            a(f"s_mov_b64 exec, s[{sMLO}:{sMLO + 1}]")
            a(f"buffer_store_dwordx4 v[20:23], v{vL16}, {WS}, s{S_TMP} offen sc1")
            a(f"s_mov_b64 exec, -1")
            a(f"s_add_u32 s{S_TMP}, s{S_TMP}, {32 * KM_UNIT}")
        a(f"""
        s_cmp_lg_u32 s{S_WAVE}, 3
        s_cbranch_scc1 Lr_not_w3{sfx}
        v_and_b32 v{vRST}, 12, v{vL4}
        v_and_b32 v17, 4, v{LANE}
        v_lshl_add_u32 v{vRST}, v17, 5, v{vRST}
        s_add_u32 s{S_TMP}, s{sFL}, {(384 - (KM_D - 1 - 3) * FL_STRIDE) & 0xffffffff}
        s_cmp_eq_u32 s{sLAY}, 0
        s_cselect_b32 s{sOFL}, s{sOFL}, s{S_TMP}
        s_add_u32 s{S_TMP}, s{sFL}, {FL_STRIDE + 128}
        s_min_u32 s{S_TMP + 1}, s{S_TMP}, s{sOFL}
        s_sub_u32 s{S_TMP}, s{S_TMP}, s{S_TMP + 1}
        v_add_u32 v{vRST}, s{S_TMP}, v{vRST}
        s_sub_u32 s{S_TMP}, s{sOFL}, s{S_TMP + 1}
        v_mov_b32 v17, s{S_TMP}
        v_cmp_gt_u32 vcc, 8, v{LANE}
        v_cndmask_b32 v{vRST}, v17, v{vRST}, vcc
        s_mov_b32 s{sOFL}, s{S_TMP + 1}
        Lr_not_w3{sfx}:
        v_lshlrev_b32 v{vSPARE}, 3, v{vL16}
        s_add_u32 s{sKPV}, s{sKP}, {QKV_M}
        """)
    if R1LDW:
        a(f"s_cmp_eq_u32 s{sLAY}, 0")
        a("s_cbranch_scc1 Lr_noord")
        if GATE0 & 1:
            dbg_wait(a, DB_STEP0, 1, 63, 64, "Lr_abort", "Lr_ord", 32)
        else:
            dbg_wait(a, DB_LOADED, R1LDW, 63, 64, "Lr_abort", "Lr_ord", 32)
        a.label("Lr_noord")
    if RNT0:
        a(f"s_cmp_lg_u32 s{sLAY}, 0")
        a("s_cbranch_scc1 Lr_ld1")
        sn = a.snap()
        load_weights(a, LANE, C, G, between, " nt" if RNT0 & 1 else "", " nt" if RNT0 & 2 else "", "a")
        a("s_branch Lr_ldd")
        a.label("Lr_ld1")
        a.restore(sn)
        load_weights(a, LANE, C, G, between, "", "", "b")
        a.label("Lr_ldd")
    else:
        load_weights(a, LANE, C, G, between)
    a(f"s_add_u32 s{S_TMP}, s{sLAY}, s{S_WAVE}")
    a(f"s_cmp_lg_u32 s{S_TMP}, 0")
    a("s_cbranch_scc1 Lr_nold")
    dbg_add(a, DB_LOADED, 63, 64)
    a.label("Lr_nold")
    for i in range(4):
        a(f"s_add_u32 s{sPR + i}, s{sU}, {i * 8 * PART_H}")
    if PUBHK:
        a(f"s_sub_u32 s{sKMB}, s{sKMB}, s{sKMW}")
        a(f"s_mov_b32 s{sKM}, s{sKMB}")
        a(f"s_lshl_b32 s{sKMP}, s{sLAY}, 5")
        a(f"s_add_u32 s{sKMP}, s{sKMP}, s{sH}")
        a(f"s_lshl_b32 s{sKMP}, s{sKMP}, 12")
        a(f"s_add_u32 s{sKMP}, s{sKMP}, {WS_DUMMY}")
        a(f"s_mov_b32 s{sKPP}, 0")


def load_weights(a, LANE, C, G, between, RNT=RNT, RNTO=RNTO, sfx=""):
    srd(a, SRD_A, KA_WQ, 576 * 8192)
    srd(a, SRD_B, KA_WK, 576 * 8192)
    srd(a, SRD_C, KA_WV, 576 * 8192)
    srd(a, SRD_D, KA_BWO, 4096 * 1152)
    SR = {"q": SRD_A, "k": SRD_B, "v": SRD_C}
    GA, GB, G8A, G8B, TR0, TR1, TRA, TRB, TRW = 62, 63, 64, 65, 66, 67, 68, 69, 70
    WA = 50
    sRow, sLB, sWo = sT, sT + 1, sT + 2
    a(f"""
    v_lshlrev_b32 v71, 1, v{G}
    v_xor_b32 v71, v71, v{C}
    v_lshlrev_b32 v71, 4, v71
    v_lshl_add_u32 v{GA}, v{G}, 13, v71
    v_xor_b32 v{GB}, 128, v{GA}
    v_lshrrev_b32 v{G8A}, 1, v{G}
    v_lshlrev_b32 v{G8A}, 3, v{G8A}
    v_and_b32 v{G8B}, 1, v{G}
    v_lshl_add_u32 v{G8A}, v{G8B}, 2, v{G8A}
    v_lshl_add_u32 v{G8A}, v{G8A}, 13, v71
    v_xor_b32 v{G8B}, 128, v{G8A}
    s_mul_i32 s{sRow}, s{S_WAVE}, {144 * 8192}
    s_lshl_b32 s{S_TMP}, s{sH}, 8
    s_add_u32 s{sRow}, s{sRow}, s{S_TMP}
    s_lshl_b32 s{sLB}, s{S_WAVE}, 12
    """)
    a(f"""
    v_lshrrev_b32 v71, 2, v{C}
    v_lshl_add_u32 v{TR0}, v{G}, 3, v71
    v_lshlrev_b32 v{TR0}, 8, v{TR0}
    v_bfe_u32 v{TR1}, v{C}, 1, 1
    s_lshl_b32 s{S_TMP}, s{S_WAVE}, 2
    v_add_u32 v{TR1}, s{S_TMP}, v{TR1}
    v_lshlrev_b32 v71, 1, v71
    v_xor_b32 v{TR1}, v{TR1}, v71
    v_and_b32 v71, 1, v{G}
    v_lshlrev_b32 v71, 3, v71
    v_xor_b32 v{TR1}, v{TR1}, v71
    v_and_b32 v71, 1, v{C}
    v_lshl_add_u32 v{TR0}, v71, 3, v{TR0}
    v_xor_b32 v71, 2, v{TR1}
    v_lshl_add_u32 v{TR1}, v71, 4, v{TR0}
    v_xor_b32 v71, 2, v71
    v_lshl_add_u32 v{TR0}, v71, 4, v{TR0}
    """)
    tiles = [(m, t) for t in range(9) for m in MATS]
    wo_regs = [FM[k] for k in FM if k[0] == "o" and FM[k][0] != "l"]
    park = {}
    for t in range(9):
        park[("k", 1, t)] = wo_regs[t]
    NT = len(tiles)

    def slot(i):
        return ((i + 3) % 10) * 16384

    def dma(i):
        m, t = tiles[i]
        S = f"s[{SR[m]}:{SR[m] + 3}]"
        for j in range(4):
            a(f"s_add_u32 m0, s{sLB}, {slot(i) + j * 1024}")
            if t < 8:
                a(f"s_add_u32 s{S_TMP}, s{sRow}, {(16 * t + 4 * j) * 8192}")
                g = GA if j < 2 else GB
            else:
                a(f"s_add_u32 s{S_TMP}, s{sRow}, {(128 + j) * 8192}")
                g = G8A if j < 2 else G8B
            a(f"buffer_load_dwordx4 v{g}, {S}, s{S_TMP} offen{RNT} lds")

    stages = [(ks, hf, qq) for ks in range(2) for hf in range(2) for qq in range(2)]
    STG = 18432

    def wo_prep():
        for j in range(5):
            a(f"v_add_u32 v71, {64 * j}, v{LANE}")
            a(f"v_mul_u32_u24 v59, {(65536 + 71) // 72}, v71")
            a(f"v_lshrrev_b32 v59, 16, v59")
            a(f"v_mul_u32_u24 v60, 72, v59")
            a(f"v_sub_u32 v71, v71, v60")
            a(f"v_and_b32 v60, 1, v59")
            a(f"v_lshlrev_b32 v60, 4, v60")
            a(f"v_lshrrev_b32 v59, 1, v59")
            a(f"v_lshl_add_u32 v60, v59, 2, v60")
            a(f"v_mul_u32_u24 v60, 1152, v60")
            a(f"v_lshl_add_u32 v{WA + j}, v71, 4, v60")
        a(f"""
        s_lshr_b32 s{S_TMP}, s{S_WAVE}, 1
        s_lshl_b32 s{S_TMP}, s{S_TMP}, 3
        s_and_b32 s{S_TMP + 1}, s{S_WAVE}, 1
        s_lshl_b32 s{S_TMP + 1}, s{S_TMP + 1}, 1
        s_add_u32 s{S_TMP}, s{S_TMP}, s{S_TMP + 1}
        s_lshl_b32 s{S_TMP + 1}, s{sH}, 7
        s_add_u32 s{S_TMP}, s{S_TMP}, s{S_TMP + 1}
        s_mul_i32 s{sWo}, s{S_TMP}, 1152
        s_mul_i32 s{sT + 3}, s{S_WAVE}, {4 * 1152}
        """)

    def wo_dma(z):
        ks, hf, qq = stages[z]
        base = (z % 3) * STG
        W_ = f"s[{SRD_D}:{SRD_D + 3}]"
        a(f"s_add_u32 s{S_TMP}, s{sWo}, {(64 * ks + 32 * hf + qq) * 1152}")
        for j in range(5):
            a(f"s_add_u32 m0, s{sT + 3}, {base + j * 1024}")
            if j == 4:
                a(f"s_mov_b64 exec, s[{sMLO}:{sMLO + 1}]")
            else:
                a("s_nop 0")
            a(f"buffer_load_dwordx4 v{WA + j}, {W_}, s{S_TMP} offen{RNTO} lds")
        a("s_mov_b64 exec, -1")

    a(f"""
    v_lshrrev_b32 v71, 2, v{C}
    v_lshl_add_u32 v{TRW}, v{G}, 2, v71
    v_mul_u32_u24 v{TRW}, 1152, v{TRW}
    v_and_b32 v71, 3, v{C}
    v_lshl_add_u32 v{TRW}, v71, 3, v{TRW}
    s_mul_i32 s{S_TMP}, s{S_WAVE}, 288
    v_add_u32 v{TRW}, s{S_TMP}, v{TRW}
    """)
    wo_prep()
    vq = []
    issued = [0]
    done_at = {}

    def issue(kind, i):
        if kind == "t":
            dma(i); issued[0] += 4
        else:
            wo_dma(i); issued[0] += 5
        done_at[(kind, i)] = issued[0]

    for i in range(9):
        issue("t", i)
    between(sfx)
    nxt_t, nxt_z = 9, 0
    for i in range(NT):
        a.force_wait(vm=min(63, issued[0] - done_at[("t", i)]))
        a("s_barrier")
        if i == 0:
            a(f"s_cmp_lg_u32 s{S_WAVE}, 0")
            a(f"s_cbranch_scc1 Lr_noadd{sfx}")
            a(f"s_lshl_b32 s{S_TMP}, s{sLAY}, 2")
            a(f"s_add_u32 s{S_TMP}, s{S_TMP}, {DB_TEAM}")
            dbg_add(a, f"s{S_TMP}", 48, 49)
            a.label(f"Lr_noadd{sfx}")
        if i >= 1 and nxt_t < NT:
            assert slot(nxt_t) == slot(i - 1) or nxt_t == 9
            issue("t", nxt_t); nxt_t += 1
        elif i == 0:
            issue("t", nxt_t); nxt_t += 1
        elif i >= 21 and nxt_z < 3:
            issue("z", nxt_z); nxt_z += 1
        m, t = tiles[i]
        a(f"v_add_u32 v{TRA}, {slot(i)}, v{TR0}")
        a(f"v_add_u32 v{TRB}, {slot(i)}, v{TR1}")
        for b in range(2):
            loc = park.get((m, b, t), FM[(m, b, t)])
            for q in range(4):
                a(f"ds_read_b64_tr_b16 {opnd(loc, 2, 2 * q)}, v{(TRA, TRB)[b]} offset:{(32 * (q >> 1) + 4 * (q & 1)) * 256}")
        a.wait(lg=0)
    assert nxt_t == NT and nxt_z == 3
    a("s_barrier")
    for t in range(9):
        loc = park[("k", 1, t)]
        a(f"ds_write_b128 v{vLW}, {opnd(loc, 4)} offset:{t * 2048}")
        a(f"ds_write_b128 v{vLW}, {opnd(loc, 4, 4)} offset:{t * 2048 + 1024}")
    a.wait(lg=0)
    PK = 12
    for z in range(8):
        ks, hf, qq = stages[z]
        a.force_wait(vm=min(63, issued[0] - done_at[("z", z)]))
        a("s_barrier")
        if z >= 1 and nxt_z < 8:
            assert nxt_z % 3 == (z - 1) % 3
            issue("z", nxt_z); nxt_z += 1
        q = 2 * hf + qq
        np_ = 0
        for tau in range(9):
            loc = FM[("o", tau, ks)]
            if loc[0] == "l":
                loc = ("v", PK + 8 * np_); np_ += 1
            a(f"ds_read_b64_tr_b16 {opnd(loc, 2, 2 * q)}, v{TRW} offset:{(z % 3) * STG + 32 * tau}")
        a.wait(lg=0)
        if z == 3:
            np_ = 0
            for tau in range(9):
                loc = FM[("o", tau, 0)]
                if loc[0] == "l":
                    a(f"ds_write_b128 v{vLW}, {vr(PK + 8 * np_, 4)} offset:{loc[2] * 2048}")
                    a(f"ds_write_b128 v{vLW}, {vr(PK + 8 * np_ + 4, 4)} offset:{loc[2] * 2048 + 1024}")
                    np_ += 1
            a.wait(lg=0)
    a("s_barrier")
    a(f"s_lshl_b32 s{S_TMP}, s{S_WAVE}, 13")
    a(f"v_add_u32 v71, s{S_TMP}, v{vL16}")
    np_ = 0
    for tau in range(9):
        loc = FM[("o", tau, 1)]
        if loc[0] == "l":
            a(f"ds_write_b128 v71, {vr(PK + 8 * np_, 4)} offset:{L_WO1 + loc[2] * 2048}")
            a(f"ds_write_b128 v71, {vr(PK + 8 * np_ + 4, 4)} offset:{L_WO1 + loc[2] * 2048 + 1024}")
            np_ += 1
    a.force_wait(vm=0, lg=0)
    a("s_barrier")


def flag_wait_kv(a, name, soff_extra, abort):
    if RFREE:
        return
    L = a.newlabel(name)
    a(f"s_mov_b32 s{S_SPIN}, 0")
    a(f"s_add_u32 s{S_TMP}, s{sFL}, {soff_extra + 128}")
    a(f"v_and_b32 v{vT1}, 16, v{vL4}")
    a(f"v_lshlrev_b32 v{vT1}, 3, v{vT1}")
    a(f"v_and_or_b32 v{vT1}, v{vL4}, 12, v{vT1}")
    a.label(L)
    a(f"buffer_load_dword v{vT0}, v{vT1}, s[{SRD_WS}:{SRD_WS + 3}], s{S_TMP} offen sc1")
    spin_check(a, abort)
    a(f"v_cmp_eq_u32 vcc, 0, v{vT0}")
    a(f"s_cbranch_vccz {L}d")
    a("s_sleep 4")
    a(f"s_branch {L}")
    a.label(L + "d")


def r_loop(a, w, fast, abort, done, stamps=False):
    sc = "" if fast else " sc1"
    pfx = f"Lr{w}{'f' if fast else 's'}_"
    WS = f"s[{SRD_WS}:{SRD_WS + 3}]"
    NST = 10
    HK = (w == 3)
    order = [2 * w, 2 * w + 1] + [t for t in range(8) if t >> 1 != w] + [8]

    STSEL = [int(x) for x in os.environ.get("STSEL", "0,1,2,3,4,5,6,7,8,9,10").split(",")]

    def stamp(i):
        if i not in STSEL:
            return
        if stamps == 2 or (stamps and i == NST):
            a(f"s_memrealtime s[{S_STAMP + 2 * i}:{S_STAMP + 1 + 2 * i}]")
        elif stamps:
            a(f"s_memtime s[{S_STAMP + 2 * i}:{S_STAMP + 1 + 2 * i}]")

    def dump_stamps():
        if stamps:
            a.force_wait(lg=0)
            for i in range(NST + 1):
                a(f"v_writelane_b32 v{vT1}, s{S_STAMP + 2 * i}, {i}")
            a(f"v_writelane_b32 v{vT1}, s3, 11")
            a(f"v_writelane_b32 v{vT1}, s4, 12")
            a(f"s_lshl_b32 s{S_TMP}, s{sLAY}, 5")
            a(f"s_add_u32 s{S_TMP}, s{S_TMP}, s{sH}")
            a(f"s_lshl_b32 s{S_TMP}, s{S_TMP}, 6")
            a(f"s_add_u32 s{S_TMP}, s{S_TMP}, s{sSTEP}")
            a(f"s_lshl_b32 s{S_TMP}, s{S_TMP}, 8")
            a(f"s_add_u32 s{S_TMP}, s{S_TMP}, {WS_END + w * 64}")
            a(f"s_mov_b64 exec, 0x1fff")
            a(f"buffer_store_dword v{vT1}, v{vL4}, {WS}, s{S_TMP} offen")
            a(f"s_mov_b64 exec, -1")

    def zero(base, n):
        return [f"v_mov_b64 {vr(base + 2 * i, 2)}, 0" for i in range(n // 2)]

    def seq(*items):
        for it in items:
            if isinstance(it, (list, tuple)):
                seq(*it)
            elif callable(it):
                it()
            elif it:
                a(it)

    cont = {}

    def ld(dst, name, text):
        def f():
            a(text)
            cont[dst] = name
        return f

    def use(reg, name):
        assert cont.get(reg) == name, (w, reg, name, cont.get(reg))

    tails = []

    def M(i):
        return f"s[{sM + 2 * i}:{sM + 2 * i + 1}]"

    def poll(name, loads, checks, between=None, issued=0, work=None, slp=0):
        n = len(loads)
        L = pfx + name
        if not issued:
            seq(loads)
        seq(work)
        a(f"s_mov_b32 s{S_SPIN}, 0")
        for i in range(n):
            a(f"s_mov_b64 {M(i)}, 0")
        a.label(L)
        a.auto = False
        for i in range(n):
            a(f"s_mov_b64 exec, {M(i)}")
            a(loads[i])
        a("s_mov_b64 exec, -1")
        spin_check(a, abort)
        for i in range(n):
            a.force_wait(vm=2 * n - 1 - i)
            seq(checks[i])
            if between:
                seq(between[i])
            if i >= 2:
                a(f"s_or_b64 vcc, {M(0) if i == 2 else 'vcc'}, {M(i - 1)}")
        a(f"s_or_b64 vcc, vcc, {M(n - 1)}")
        if slp:
            a(f"s_cbranch_scc1 {L}r")

            def retry():
                a.label(L + "r")
                a.reset_window()
                a(f"s_sleep {slp}")
                a(f"s_branch {L}")
            tails.append(retry)
        else:
            a(f"s_cbranch_scc1 {L}")
        a.auto = True
        a.vmq = [(frozenset(), "pollx")] * n

    def chk4(q, i):
        return [f"v_max3_u32 v{vT1}, v{q}, v{q + 1}, v{q + 2}", f"v_max_u32 v{vT1}, v{vT1}, v{q + 3}",
                f"v_cmp_eq_u32 {M(i)}, -1, v{vT1}"]

    ACC = {"q": ACCQ, "k": ACCK, "v": ACCV}

    def A_read(dst, t):
        return ld(dst, ("A", t), f"ds_read_b128 {vr(dst, 4)}, v{vL16} offset:{L_MEMA + t * 1024}")

    def LW(buf, key):
        r = lw_read(buf, FM[key], w)
        return [ld(buf, ("W", key), r[0]), ld(buf + 4, ("W2", key), r[1])]

    def S(m, b, t, A, buf=None):
        def f():
            use(A, ("A", t))
            loc = FM[(m, b, t)]
            if loc[0] == "l":
                use(buf, ("W", (m, b, t))); use(buf + 4, ("W2", (m, b, t)))
                B = vr(buf, 8)
            else:
                B = opnd(loc)
            a(SM(ACC[m] + 4 * b, A, B))
        return f

    def qB(dst, j):
        return ld(dst, ("qB", j), f"ds_read_b128 {vr(dst, 4)}, v{vQR} offset:{L_QB + j * 64}")

    def kmA(dst, j):
        return ld(dst, ("km", j), f"ds_read_b128 {vr(dst, 4)}, v{vQR} offset:{L_KB + j * 64}")

    def KX(dst, j, tt):
        return ld(dst, ("KX", j, tt), f"ds_read_b128 {vr(dst, 4)}, v{vL16} offset:{L_KX + (j * 2 + tt) * 1024}")

    def MF(acc, A, B, first, ea=None, eb=None):
        def f():
            if ea is not None:
                use(A, ea)
            if eb is not None:
                use(B, eb)
            a(f"v_mfma_f32_16x16x32_bf16 {vr(acc, 4)}, {vr(A, 4)}, {vr(B, 4)}, {'0' if first else vr(acc, 4)}")
        return f

    def MF16(acc, A, B):
        return f"v_mfma_f32_16x16x16_bf16 {vr(acc, 4)}, {vr(A, 2)}, {vr(B, 2)}, {vr(acc, 4)}"

    def xe(acc):
        X, Y = acc, acc + 4
        return [f"v_add_f32 v{X}, v{X}, v{X + 2}", f"v_add_f32 v{Y}, v{Y}, v{Y + 2}",
                f"v_add_f32 v{X + 1}, v{X + 1}, v{X + 3}", f"v_add_f32 v{Y + 1}, v{Y + 1}, v{Y + 3}",
                f"v_cvt_pk_bf16_f32 v{X + 2}, v{X}, v{Y}",
                f"v_cvt_pk_bf16_f32 v{X + 3}, v{X + 1}, v{Y + 1}"]

    def kdma(i):
        if NOKV & 1:
            return None
        return lambda: a(f"buffer_load_dwordx4 v{vL16}, {WS}, s{sKF} offen offset:{1024 * i} lds", tag="kdma")

    def flag_sample():
        if not RFREE:
            a(f"buffer_load_dword v{vRLD}, v{vRST}, {WS}, s{sOFL} offen sc1")

    def flag_check_prefetch():
        if not RFREE:
            a(f"v_cmp_eq_u32 vcc, 0, v{vRLD}")
            a(f"s_and_b64 vcc, vcc, s[{sFMK}:{sFMK + 1}]")
            a(f"s_cbranch_scc1 {pfx}flbad")
            wn = list(a.win)

            def flbad():
                a.label(pfx + "flbad")
                a.win = wn
                a.restore(([], []))
                a(f"s_cmp_eq_u32 s{sSTEP}, {NSEG - 1}")
                a(f"s_cbranch_scc1 {pfx}flok")
                a(f"s_mov_b32 s{S_SPIN}, 0")
                a.label(pfx + "flp")
                a(f"buffer_load_dword v{vRLD}, v{vRST}, {WS}, s{sOFL} offen sc1")
                spin_check(a, abort)
                a(f"v_cmp_eq_u32 vcc, 0, v{vRLD}")
                a(f"s_and_b64 vcc, vcc, s[{sFMK}:{sFMK + 1}]")
                a(f"s_cbranch_scc1 {pfx}flp")
                a(f"s_branch {pfx}flok")
            tails.append(flbad)
            a.label(pfx + "flok")
        if NOKV & 2 or LATEF == 2:
            return
        a(f"s_mov_b32 m0, {L_OB + 8 * ROWS}")
        a("s_nop 0")
        a(f"buffer_load_dword v{vSPARE}, {WS}, s{sKP} offen lds", tag="pf")
        a(f"buffer_load_dword v{vSPARE}, {WS}, s{sKPV} offen lds", tag="pf")
        a(f"s_mov_b32 m0, {L_KX + w * 2048}")

    AO0, AO1, A8 = Q[0], Q[1], vT0
    loads2 = [f"buffer_load_dwordx4 {vr(AO0, 4)}, v{vL16}, {WS}, s{sMEMR} offen sc1",
              f"buffer_load_dwordx4 {vr(AO1, 4)}, v{vL16}, {WS}, s{sMEMR} offen offset:1024 sc1",
              f"buffer_load_dword v{A8}, v{vL4}, {WS}, s{sMEMR8} offen sc1"]

    PQ = ACCV + 4

    def pub_rd():
        if w < 2:
            return [f"v_lshrrev_b32 v{vT1}, 8, v{vL16}", f"v_mul_u32_u24 v{vT1}, {ROWS}, v{vT1}",
                    f"v_and_b32 v{PQ}, 0xf0, v{vL16}", f"v_add_u32 v{vT1}, v{vT1}, v{PQ}",
                    f"ds_read_b128 {vr(PQ, 4)}, v{vT1} offset:{L_KB + 4 * ROWS * w}"]
        return [f"ds_read_b128 {vr(PQ, 4)}, v{vL16} offset:{L_QB + 1024 * (w - 2)}"]

    def pub_st():
        ops = [f"v_bfi_b32 v{PQ}, 1, s{sKPP}, v{PQ}"] if w < 2 else []
        return ops + [f"buffer_store_dwordx4 {vr(PQ, 4)}, v{vL16}, {WS}, s{sKMP} offen offset:{1024 * w} sc1"]
    def pre_step():
        seq(LW(WR[0], ("k", 1, order[0])), LW(WR[1], ("k", 1, order[1])), zero(ACCQ, 20 if PUBHK == 2 else 24))
        if PUBHK == 2:
            seq(pub_rd())

    if HK:
        flag_wait_kv(a, pfx + "fw", 0, abort)
    a("s_barrier")
    a(f"s_mov_b32 m0, {L_KX + w * 2048}")
    a("s_nop 0")
    seq(kdma(0), kdma(1))
    a(f"s_add_u32 s{sKF}, s{sKF}, {32 * 8192}")
    a.wait(vm=0)
    seq(loads2)
    pre_step()
    a.wait(lg=0)
    head = pfx + "step"
    a.label(head)
    head_cont = dict(cont)
    poll("p2", loads2, [chk4(AO0, 0), chk4(AO1, 1), [f"v_cmp_eq_u32 {M(2)}, -1, v{A8}"]], issued=1, slp=S2)
    if DL is not None and not HK:
        a(f"s_mov_b32 s{sLATE}, s{S_SPIN}")
    cont[AO0] = ("A", order[0]); cont[AO1] = ("A", order[1])
    stamp(0)
    if stamps:
        a(f"s_mov_b32 s4, s{S_SPIN}")
    ring = [Q[0], Q[1], Q[2], VXA, VXB, Q[2], Q[0], Q[1], Q[2]]

    def Ap(p):
        return ring[p]

    def qk(p, which):
        t = order[p]
        m, b = which
        return S(m, b, t, Ap(p), WR[p & 1])
    def run(slots):
        for mf, fl in slots:
            seq(mf, fl)

    def lwh(p, half):
        return LW(WR[p & 1], ("k", 1, order[p]))[half]
    run([(qk(0, ("q", 0)), [f"ds_write_b128 v{vL16}, {vr(AO0, 4)} offset:{L_MEMA + order[0] * 1024}"]),
         (qk(0, ("q", 1)), [f"ds_write_b128 v{vL16}, {vr(AO1, 4)} offset:{L_MEMA + order[1] * 1024}"]),
         (qk(0, ("k", 0)), [f"ds_write_b32 v{vL4}, v{A8} offset:{L_MEMA + 8192 + w * 256}"]),
         (qk(0, ("k", 1)), [])])
    a.barrier(lg=0)
    seq(A_read(Ap(2), order[2]))
    fl = {4: A_read(Ap(3), order[3]), 5: lwh(2, 0), 6: lwh(2, 1), 7: A_read(Ap(4), order[4]),
          9: lwh(3, 0), 10: lwh(3, 1), 12: A_read(Ap(5), order[5]),
          (16 if not VST else (16, 27, 31, 16)[w]): f"buffer_load_dwordx4 {vr(VXA, 4)}, v{vL16}, {WS}, s{sVF} offen",
          (20 if not VST else (20, 28, 32, 27)[w]): f"buffer_load_dwordx4 {vr(VXB, 4)}, v{vL16}, {WS}, s{sVF} offen offset:1024",
          19: [lambda: a.wait_tag("pollx"), A_read(Ap(6), order[6])], 23: A_read(Ap(7), order[7]), 24: A_read(Ap(8), order[8])}
    for p in range(4, 9):
        fl[4 * p - 3] = lwh(p, 0)
        fl[4 * p - 2] = lwh(p, 1)
    tail = [(7, ("q", 0)), (7, ("q", 1)), (8, ("q", 0)), (8, ("q", 1)), (7, ("k", 0)), (7, ("k", 1)), (8, ("k", 0)), (8, ("k", 1))]
    spine = [(p, mb) for p in range(7) for mb in (("q", 0), ("q", 1), ("k", 0), ("k", 1))] + tail
    if NOKV & 4:
        fl[16] = fl[20] = None
    qe, ke = xe(ACCQ), xe(ACCK)
    SX, SMm, X4 = ACCQ, ACCK + 4, ACCK
    fl[33] = [KX(Q[5], 0, 0), qe[0]]
    fl[34] = [KX(Q[6], 0, 1), qe[1]]
    fl[35] = [KX(Q[3], 1, 0), qe[2], qe[3], qe[4], qe[5]]
    if PUBHK == 2:
        fl[27] = [fl.get(27)] + pub_st()
        fl[28] = [fl.get(28)] + zero(PQ, 4)
    if HK and not LATEF:
        fl[8] = [fl.get(8), flag_sample]
    for sl in range(4, 36):
        p, mb = spine[sl]
        seq(qk(p, mb), fl.get(sl))
        if sl == 7:
            stamp(1)
    seq(f"ds_write_b32 v{vQW}, v{ACCQ + 2} offset:{L_QB}",
        f"ds_write_b32 v{vQW}, v{ACCQ + 3} offset:{L_QB + ROWS}")
    stamp(2)

    def V(p, A):
        return [S("v", 0, order[p], A), S("v", 1, order[p], A)]
    run([(V(8, Q[2])[0], [KX(Q[4], 1, 1), ke[0], ke[1], ke[2], ke[3]]),
         (V(8, Q[2])[1], [A_read(ACCQ, order[0]), ke[4], ke[5],
                          f"ds_write_b32 v{vQW}, v{ACCK + 2} offset:{L_KB}",
                          f"ds_write_b32 v{vQW}, v{ACCK + 3} offset:{L_KB + ROWS}"]),
         (V(7, Q[1])[0], [A_read(ACCQ + 4, order[1])]),
         (V(7, Q[1])[1], [A_read(ACCK, order[2])]),
         (V(6, Q[0])[0], [A_read(ACCK + 4, order[3])]),
         (V(6, Q[0])[1], [])])
    a.barrier(lg=3)
    stamp(3)
    ve = [f"v_add_f32 v{ACCV}, v{ACCV}, v{ACCV + 2}", f"v_add_f32 v{ACCV + 1}, v{ACCV + 1}, v{ACCV + 3}",
          f"v_add_f32 v{ACCV + 4}, v{ACCV + 4}, v{ACCV + 6}", f"v_add_f32 v{ACCV + 5}, v{ACCV + 5}, v{ACCV + 7}",
          f"v_cvt_pk_bf16_f32 v{ACCV + 2}, v{ACCV}, v{ACCV + 1}",
          f"v_cvt_pk_bf16_f32 v{ACCV + 3}, v{ACCV + 4}, v{ACCV + 5}"]
    seq(qB(Q[0], 0))
    run([(V(0, ACCQ)[0], [A_read(Q[2], order[4])]),
         (V(0, ACCQ)[1], [kmA(ACCQ, 0)]),
         (V(1, ACCQ + 4)[0], [A_read(Q[1], order[5])]),
         (V(1, ACCQ + 4)[1], []),
         (V(2, ACCK)[0], []),
         (V(2, ACCK)[1], [qB(ACCK, 1)]),
         (V(3, ACCK + 4)[0], []),
         (V(3, ACCK + 4)[1], []),
         (V(4, Q[2])[0], []),
         (V(4, Q[2])[1], [kmA(Q[2], 1)]),
         (V(5, Q[1])[0], []),
         (V(5, Q[1])[1], [qB(Q[1], 2)])])
    PBQ = ACCV + 4
    VST_ = [L_MEMA + 6 * 1024, L_MEMA + 6 * 1024 + 512, L_MEMA + 8 * 1024]
    if PUBHK == 2:
        pub = [[], [], [f"v_bfi_b32 v{ACCV + 2}, 1, s{sKPH}, v{ACCV + 2}"], [], []]
    elif PUBHK:
        if HK:
            pub = [[f"v_lshrrev_b32 v{vT0}, 8, v{vL16}", f"v_mul_u32_u24 v{vT0}, {ROWS}, v{vT0}"],
                   [f"v_and_b32 v{vT1}, 0xf0, v{vL16}", f"v_add_u32 v{vT0}, v{vT0}, v{vT1}"],
                   [f"ds_read_b128 {vr(PBQ, 4)}, v{vT0} offset:{L_KB}", f"v_lshrrev_b32 v{vRLD}, 1, v{vL16}",
                    f"v_bfi_b32 v{ACCV + 2}, 1, s{sKPH}, v{ACCV + 2}"],
                   [f"buffer_store_dwordx2 {vr(ACCV + 2, 2)}, v{vRLD}, {WS}, s{sKM} offen offset:{2048 + 3 * 512} sc1"],
                   [f"v_bfi_b32 v{PBQ}, 1, s{sKPH}, v{PBQ}",
                    f"buffer_store_dwordx4 {vr(PBQ, 4)}, v{vL16}, {WS}, s{sKM} offen sc1",
                    f"ds_read_b128 {vr(PBQ, 4)}, v{vT0} offset:{L_KB + 4 * ROWS}"]]
        else:
            pub = [[], [f"v_lshrrev_b32 v{vT1}, 1, v{vL16}"], [f"v_bfi_b32 v{ACCV + 2}, 1, s{sKPH}, v{ACCV + 2}"],
                   [f"ds_write_b64 v{vT1}, {vr(ACCV + 2, 2)} offset:{VST_[w]}"], []]
    else:
        pub = [[f"v_lshrrev_b32 v{vT0}, 8, v{vL16}", f"v_mul_u32_u24 v{vT0}, {ROWS}, v{vT0}"],
               [f"v_and_b32 v{vT1}, 0xf0, v{vL16}", f"v_add_u32 v{vT0}, v{vT0}, v{vT1}"],
               [f"ds_read_b128 {vr(PBQ, 4)}, v{vT0} offset:{L_KB + 2 * w * ROWS}", f"v_lshrrev_b32 v{vT1}, 1, v{vL16}",
                f"v_bfi_b32 v{ACCV + 2}, 1, s{sKPH}, v{ACCV + 2}"],
               [f"buffer_store_dwordx2 {vr(ACCV + 2, 2)}, v{vT1}, {WS}, s{sKM} offen offset:2048 sc1"],
               [f"v_bfi_b32 v{PBQ}, 1, s{sKPH}, v{PBQ}", f"s_mov_b64 exec, s[{sMLO}:{sMLO + 1}]",
                f"buffer_store_dwordx4 {vr(PBQ, 4)}, v{vL16}, {WS}, s{sKM} offen sc1", "s_mov_b64 exec, -1"]]
    run([(MF(SMm, ACCQ, Q[0], True, ("km", 0), ("qB", 0)), ([flag_sample] if LATEF else [flag_check_prefetch]) if HK else []),
         (MF(SX, Q[5], Q[0], True, ("KX", 0, 0), ("qB", 0)), [KX(Q[5], 2, 0)]),
         (MF(SX + 4, Q[6], Q[0], True, ("KX", 0, 1), ("qB", 0)), [KX(Q[6], 2, 1)]),
         (MF(SMm, Q[2], ACCK, False, ("km", 1), ("qB", 1)), [kmA(Q[0], 2), ve[0], ve[1]]),
         (MF(SX, Q[3], ACCK, False, ("KX", 1, 0), ("qB", 1)), [qB(Q[2], 3), ve[2], ve[3]]),
         (MF(SX + 4, Q[4], ACCK, False, ("KX", 1, 1), ("qB", 1)), [KX(Q[3], 3, 0), ve[4], ve[5]]),
         (MF(SMm, Q[0], Q[1], False, ("km", 2), ("qB", 2)), [kmA(ACCK, 3)] + pub[0]),
         (MF(SX, Q[5], Q[1], False, ("KX", 2, 0), ("qB", 2)), [KX(Q[4], 3, 1)] + pub[1]),
         (MF(SX + 4, Q[6], Q[1], False, ("KX", 2, 1), ("qB", 2)), pub[2]),
         (MF(SMm, ACCK, Q[2], False, ("km", 3), ("qB", 3)),
          pub[3] + [f"v_mov_b32 v{Q[1] + 1}, 0", f"v_mov_b32 v{Q[1] + 2}, 0"]),
         (MF(SX, Q[3], Q[2], False, ("KX", 3, 0), ("qB", 3)),
          [f"v_mov_b64 {vr(Q[5], 2)}, s[{sONES}:{sONES + 1}]", f"v_mov_b64 {vr(Q[5] + 2, 2)}, s[{sONES}:{sONES + 1}]"]),
         (MF(SX + 4, Q[4], Q[2], False, ("KX", 3, 1), ("qB", 3)), pub[4])])
    late_pub = []
    if PUBHK == 1 and HK:
        late_pub = [f"v_bfi_b32 v{PBQ}, 1, s{sKPH}, v{PBQ}",
                    f"buffer_store_dwordx4 {vr(PBQ, 4)}, v{vL16}, {WS}, s{sKM} offen offset:1024 sc1"]
    stamp(4)
    MX, T1 = vT0, vT1
    MP = X4
    LQ = Q[6]
    P4 = Q[0]
    PB = Q[1]
    OX, OY = Q[2], Q[3]
    ONES = Q[5]
    WB = [Q[4], VXA]
    wo_buf = {k: WB[i % 2] for i, k in enumerate(WO_L)}

    def wo_rd(i):
        return LW(wo_buf[WO_L[i]], ("o",) + WO_L[i])

    pf = [f"v_pk_fma_f32 {vr(b, 2)}, {vr(b, 2)}, s[{sCEXP}:{sCEXP + 1}], {vr(MP, 2)} op_sel_hi:[1,1,0] neg_lo:[0,0,1] neg_hi:[0,0,1]"
          for b in (SMm, SX, SX + 2, SX + 4, SX + 6)]
    ex = [f"v_exp_f32 v{r}, v{r}" for r in [SMm, SMm + 1] + list(range(SX, SX + 8))]
    seq(f"v_max3_f32 v{MX}, v{SMm}, v{SMm + 1}, v{SX}",
        f"v_max3_f32 v{MX}, v{MX}, v{SX + 1}, v{SX + 2}",
        f"v_max3_f32 v{MX}, v{MX}, v{SX + 3}, v{SX + 4}",
        f"v_max3_f32 v{MX}, v{MX}, v{SX + 5}, v{SX + 6}",
        f"v_max_f32 v{MX}, v{MX}, v{SX + 7}",
        f"v_mov_b32 v{T1}, v{MX}", late_pub,
        f"v_permlane32_swap_b32 v{MX}, v{T1}",
        f"v_max_f32 v{MX}, v{MX}, v{T1}",
        f"v_mov_b32 v{T1}, v{MX}",
        f"v_permlane16_swap_b32 v{MX}, v{T1}",
        f"v_max_f32 v{MX}, v{MX}, v{T1}",
        f"v_mul_f32 v{MP}, s{sCEXP}, v{MX}",
        pf[0], pf[1], ex[0], ex[1], pf[2], ex[2], ex[3], pf[3],
        f"v_cvt_pk_bf16_f32 v{PB}, v{SMm}, v{SMm + 1}", ex[4], pf[4],
        f"v_cvt_pk_bf16_f32 v{PB + 3}, v{SMm}, v{SMm + 1}", ex[5],
        f"v_cvt_pk_bf16_f32 v{P4}, v{SX}, v{SX + 1}", ex[6], ex[7],
        f"v_cvt_pk_bf16_f32 v{P4 + 1}, v{SX + 2}, v{SX + 3}", ex[8], ex[9],
        f"v_cvt_pk_bf16_f32 v{P4 + 2}, v{SX + 4}, v{SX + 5}",
        f"v_cvt_pk_bf16_f32 v{P4 + 3}, v{SX + 6}, v{SX + 7}",
        f"v_mfma_f32_16x16x16_bf16 {vr(LQ, 4)}, {vr(ONES, 2)}, {vr(PB, 2)}, 0",
        f"v_mfma_f32_16x16x16_bf16 {vr(OX, 4)}, {vr(ACCV + 2, 2)}, {vr(PB, 2)}, 0",
        f"v_mfma_f32_16x16x16_bf16 {vr(OY, 4)}, {vr(ACCV + 2, 2)}, {vr(PB + 2, 2)}, 0",
        MF(LQ, ONES, P4, False),
        MF(OX, VXA, P4, False), wo_rd(0)[0] if False else None,
        MF(OY, VXB, P4, False), wo_rd(1)[0], wo_rd(1)[1],
        wo_rd(0)[0],
        f"v_rcp_f32 v{MX}, v{LQ}")
    stamp(5)
    OP = ACCQ + 4
    for i in (0, 2):
        a(f"v_pk_mul_f32 {vr(OX + i, 2)}, {vr(OX + i, 2)}, {vr(MX, 2)} op_sel_hi:[1,0]")
        a(f"v_pk_mul_f32 {vr(OY + i, 2)}, {vr(OY + i, 2)}, {vr(MX, 2)} op_sel_hi:[1,0]")
        a(f"v_cvt_pk_bf16_f32 v{OP + i}, v{OX + i}, v{OY + i}")
        a(f"v_cvt_pk_bf16_f32 v{OP + i + 1}, v{OX + i + 1}, v{OY + i + 1}")
    a(f"ds_write_b128 v{vQR}, {vr(OP, 4)} offset:{L_OB + w * 64}")
    TA = [ACCQ, ACCK, ACCK + 4, ACCV + 4, Q[0], Q[1], Q[6], ACCQ + 4, ACCV]
    OA0, OA1 = Q[2], Q[3]
    seq(wo_rd(0)[1], zero(ACCQ, 4), zero(ACCK, 8), zero(ACCV + 4, 4), zero(Q[0], 8))
    if HK and LATEF:
        flag_check_prefetch()
    a.barrier(lg=1)
    a(f"ds_read_b128 {vr(OA0, 4)}, v{vOR} offset:{L_OB}")
    a(f"ds_read_b128 {vr(OA1, 4)}, v{vOR} offset:{L_OB + 128}")
    if PUBHK == 2:
        a(f"v_lshrrev_b32 v{vT1}, 1, v{vL16}")
        a(f"ds_write_b64 v{vT1}, {vr(ACCV + 2, 2)} offset:{L_QB + w * 512}")
    seq(zero(Q[6], 4), zero(ACCV, 4), zero(OP, 4))
    last = pfx + "last"
    seq(f"s_cmp_eq_u32 s{sSTEP}, {NSEG - 1}", f"s_cbranch_scc1 {last}")
    stamp(6)
    ST = [TA[0], TA[4], TA[8]]

    def epi(tau):
        acc = TA[tau]
        dst = ST[tau // 4] + tau % 4
        ops = [f"v_add_f32 v{acc}, v{acc}, v{acc + 2}", f"v_add_f32 v{acc + 1}, v{acc + 1}, v{acc + 3}",
               f"v_cvt_pk_bf16_f32 v{dst}, v{acc}, v{acc + 1}"]
        if tau % 4 == 0:
            ops.append(f"v_bfi_b32 v{dst}, 1, s{sPH}, v{dst}")
        if tau in (3, 7):
            ops.append(f"buffer_store_dwordx4 {vr(ST[tau // 4], 4)}, v{vL16}, {WS}, s{sPW} offen offset:{1024 * (tau // 4)}{sc}")
        if tau == 8:
            ops.append(f"buffer_store_dword v{dst}, v{vL4}, {WS}, s{sPW} offen offset:2048{sc}")
        return ops

    KPOS = {0: {0: (3, 8), 1: (3, 8), 2: (3, 8), 3: (3, 8)}, 1: {0: (3, 9), 1: (4, 13), 2: (8, 14), 3: (3, 8)},
            2: {0: (3, 13), 1: (4, 14), 2: (8, 9), 3: (9, 14)}}[KST]
    nxt = 2
    fill = []
    pend = []
    for idx in range(18):
        tau, ks = TORD[idx >> 1], idx & 1
        k = ("o", tau, ks)
        if FM[k][0] == "l":
            buf = wo_buf[(tau, ks)]
            use(buf, ("W", k)); use(buf + 4, ("W2", k))
            B = vr(buf, 8)
        else:
            B = opnd(FM[k])
        a(SM(TA[tau], (OA0, OA1)[ks], B))
        if PUBHK == 1 and HK:
            hk = {0: f"ds_read_b64 {vr(vT0, 2)}, v{vRLD} offset:{VST_[0]}",
                  4: f"buffer_store_dwordx2 {vr(vT0, 2)}, v{vRLD}, {WS}, s{sKM} offen offset:2048 sc1",
                  5: f"ds_read_b64 {vr(vT0, 2)}, v{vRLD} offset:{VST_[1]}",
                  9: f"buffer_store_dwordx2 {vr(vT0, 2)}, v{vRLD}, {WS}, s{sKM} offen offset:{2048 + 512} sc1",
                  10: f"ds_read_b64 {vr(vT0, 2)}, v{vRLD} offset:{VST_[2]}",
                  14: f"buffer_store_dwordx2 {vr(vT0, 2)}, v{vRLD}, {WS}, s{sKM} offen offset:{2048 + 1024} sc1"}
            seq(hk.get(idx))
        if pend:
            seq(pend.pop(0))
        elif idx in KPOS[w]:
            seq(kdma(KPOS[w].index(idx)))
        if FM[k][0] == "l" and nxt < len(WO_L):
            r = wo_rd(nxt)
            seq(r[0])
            pend.append(r[1])
            nxt += 1
        n = 0
        while fill and fill[0][0] <= idx and (n < 2 or not fill[0][1].startswith("v_")):
            n += fill[0][1].startswith("v_")
            a(fill.pop(0)[1])
        if ks == 1:
            fill += [(idx + WOD, t) for t in epi(tau)]
    for _, t in fill:
        a(t)
    stamp(7)
    tog = [f"s_xor_b32 s{r}, s{r}, {MEMB_SLOT}" for r in [sMEMR, sMEMR8]]

    if not HK:
        if w == 2:
            a(f"s_cmp_eq_u32 s{sJOBC}, 0")
            a(f"s_cbranch_scc1 {pfx}nojob")
        LD = [Q[2], Q[3], Q[4], Q[5]]
        SEL, D = VXA, VXB
        loads1 = [f"buffer_load_dwordx4 {vr(LD[i], 4)}, v{vRLD}, {WS}, s{sPR + i} offen sc1" for i in range(4)]
        if w < 2:
            checks = [[f"v_and_b32 v{vT1}, 1, v{LD[i]}", f"v_cmp_ne_u32 {M(i)}, s{sPH}, v{vT1}"] for i in range(4)]
        else:
            checks = [[f"v_xor_b32 v{vT0}, v{LD[i]}, v{LD[i] + 1}", f"v_xor_b32 v{vT1}, v{LD[i] + 2}, v{LD[i] + 3}",
                       f"v_or_b32 v{vT0}, v{vT0}, v{vT1}", f"v_xor_b32 v{vT1}, v{LD[i]}, v{LD[i] + 2}",
                       f"v_or_b32 v{vT0}, v{vT0}, v{vT1}", f"v_xor_b32 v{vT1}, s{sPH}, v{LD[i]}",
                       f"v_or_b32 v{vT0}, v{vT0}, v{vT1}", f"v_and_b32 v{vT0}, 1, v{vT0}",
                       f"v_cmp_ne_u32 {M(i)}, 0, v{vT0}"] for i in range(4)]
        betw = [[MF(D, LD[i], SEL, i == 0)] for i in range(4)]
        stamp(9)
        sel = [f"v_bfe_u32 v{vT0}, v{vL16}, 4, 4", f"v_mov_b32 v{vT1}, 0x3f80", f"v_mov_b32 v{D}, 0x3f800000"]
        for d in range(4):
            sel += [f"v_cmp_eq_u32 vcc, {2 * d}, v{vT0}", f"v_cmp_eq_u32 s[{sU}:{sU + 1}], {2 * d + 1}, v{vT0}",
                    f"v_cndmask_b32 v{SEL + d}, 0, v{vT1}, vcc", f"v_cndmask_b32 v{SEL + d}, v{SEL + d}, v{D}, s[{sU}:{sU + 1}]"]
        if DL is not None:
            if DL:
                a(f"s_sleep {DL}")
            a(f"s_cmp_le_u32 s{sLATE}, {DLN}")
            a(f"s_cbranch_scc1 {pfx}late")
            a(f"s_sleep {D1[w] - DL}")
            a.label(pfx + "late")
        elif D1[w]:
            a(f"s_sleep {D1[w]}")
        poll("p1", loads1, checks, betw, work=sel, slp=S1)
        stamp(8)
        if stamps:
            a(f"s_mov_b32 s3, s{S_SPIN}")
        seq(f"v_permlane16_swap_b32 v{D}, v{D + 2}", f"v_permlane16_swap_b32 v{D + 1}, v{D + 3}",
            f"s_mov_b64 exec, s[{sMASK}:{sMASK + 1}]",
            f"v_add_f32 v{D}, v{D}, v{D + 2}", f"v_add_f32 v{D + 1}, v{D + 1}, v{D + 3}",
            f"v_cvt_pk_bf16_f32 v{D}, v{D}, v{D + 1}", f"v_min_u32 v{D}, s{sMAXD}, v{D}",
            f"buffer_store_dword v{D}, v{vRST}, {WS}, s{sMEMW} offen{sc}",
            f"v_mov_b32 v{D + 1}, -1",
            f"buffer_store_dword v{D + 1}, v{vRST}, {WS}, s{sMEMZ} offen{sc}",
            f"s_mov_b64 exec, -1")
        if w == 2:
            a(f"s_branch {pfx}jobdone")
            a.label(pfx + "nojob")
            a.restore(([], []))
            a.label(pfx + "jobdone")
            a.vmq = [(frozenset(), "pollx")] * 4 + [(frozenset(), "st")] * 3
    adv = [f"s_add_u32 s{sSTEP}, s{sSTEP}, 1", f"s_bfe_u32 s{sPH}, s{sSTEP}, 0x10001",
           f"s_xor_b32 s{sPW}, s{sPW}, {PART_SLOT}"]
    adv += [f"s_xor_b32 s{r}, s{r}, {PART_SLOT}" for r in ([] if HK else [sPR + i for i in range(4)])]
    adv += [f"s_xor_b32 s{r}, s{r}, {MEMB_SLOT}" for r in ([] if HK else [sMEMW, sMEMZ])]
    if PUBHK == 2:
        adv += [f"s_mov_b32 s{sKMP}, s{sKM}", f"s_mov_b32 s{sKPP}, s{sKPH}"]
    adv += [f"s_and_b32 s{S_TMP}, s{sSTEP}, {KM_D - 1}", f"s_mul_i32 s{S_TMP}, s{S_TMP}, {32 * KM_UNIT}",
            f"s_add_u32 s{sKM}, s{sKMB}, s{S_TMP}", f"s_bfe_u32 s{sKPH}, s{sSTEP}, {0x10000 + KM_D.bit_length() - 1}",
            f"s_add_u32 s{sOFL}, s{sOFL}, {FL_STRIDE}"]
    if HK:
        adv += [f"s_and_b32 s{S_TMP}, s{sSTEP}, 3", f"s_cmp_eq_u32 s{S_TMP}, 3", f"s_cselect_b32 s{S_TMP}, 1, 0",
                f"s_cmp_eq_u32 s{sLAY}, 0", f"s_cselect_b32 s{S_TMP}, 1, s{S_TMP}",
                f"s_cmp_ge_u32 s{sSTEP}, {KM_D - 1}", f"s_cselect_b32 s{S_TMP}, s{S_TMP}, 0",
                f"s_cmp_lg_u32 s{S_TMP}, 0", f"s_cselect_b64 s[{sFMK}:{sFMK + 1}], -1, 0xff",
                f"s_add_u32 s{sKPV}, s{sKPV}, {32 * 8192}"]
    adv += [f"s_add_u32 s{sVF}, s{sVF}, {32 * 8192}",
            f"s_add_u32 s{sKF}, s{sKF}, {32 * 8192}", f"s_add_u32 s{sKP}, s{sKP}, {32 * 8192}",
            f"s_add_u32 s{sFL}, s{sFL}, {FL_STRIDE}"]
    if QRING:
        adv += [f"s_and_b32 s{S_TMP}, s{sSTEP}, {QRING - 1}", f"s_cselect_b32 s{S_TMP}, 0, {QRING << 18}",
                f"s_sub_u32 s{sVF}, s{sVF}, s{S_TMP}",
                f"s_add_u32 s{S_TMP}, s{sSTEP}, 1", f"s_and_b32 s{S_TMP}, s{S_TMP}, {QRING - 1}", f"s_cselect_b32 s{S_TMP}, 0, {QRING << 18}",
                f"s_sub_u32 s{sKF}, s{sKF}, s{S_TMP}", f"s_sub_u32 s{sKP}, s{sKP}, s{S_TMP}"]
        if HK:
            adv += [f"s_sub_u32 s{sKPV}, s{sKPV}, s{S_TMP}"]
    seq(tog)
    a("s_barrier")
    if D2:
        a(f"s_sleep {D2}")
    seq(loads2, adv)
    if not HK:
        a.wait_tag("pollx")
    pre_step()
    a.wait(lg=0)
    if HK and GATE0:
        L0 = a.newlabel("Lg0")
        a(f"s_add_u32 s{S_TMP}, s{sSTEP}, s{sLAY}")
        a(f"s_cmp_lg_u32 s{S_TMP}, 1")
        a(f"s_cbranch_scc1 {L0}")
        a(f"s_cmp_lg_u32 s{sLAY}, 0")
        a(f"s_cbranch_scc1 {L0}")
        sn = a.snap()
        dbg_add(a, DB_STEP0, Q[2], Q[2] + 1)
        a.restore(sn)
        a.label(L0)
    if HK:
        trace(a, Q[2], Q[2] + 1, True)
        if DBGT == 1:
            a.force_wait(lg=0)
            for k, (wd, st) in enumerate(((5, 1), (13, 63))):
                a(f"s_lshl_b32 s{S_TMP}, s{sLAY}, 2")
                a(f"s_add_u32 s{S_TMP + 1}, s{S_TMP}, {4 * wd}")
                stamp_max(a, f"s{S_TMP + 1}", Q[2], Q[2] + 1, (sSTEP, st))
    stamp(NST)
    dump_stamps()
    a.restore(([], []))
    a(f"s_branch {head}")
    for t in tails:
        t()
    a.restore(([], []))
    a.label(last)
    if PUBHK == 2:
        a.force_wait(lg=0)
        a("s_barrier")
        a(f"s_mov_b32 s{sKMP}, s{sKM}")
        a(f"s_mov_b32 s{sKPP}, s{sKPH}")
        seq(pub_rd(), pub_st())
    elif PUBHK == 1 and HK:
        for i in range(3):
            a(f"ds_read_b64 {vr(vT0, 2)}, v{vRLD} offset:{VST_[i]}")
            a(f"buffer_store_dwordx2 {vr(vT0, 2)}, v{vRLD}, {WS}, s{sKM} offen offset:{2048 + 512 * i} sc1")
    a.force_wait(vm=0, lg=0)
    if HK:
        trace(a, Q[2], Q[2] + 1, True)
    a(f"s_branch {done}")
```

```python
from pool import *


def MF16(acc, A, B):
    return f"v_mfma_f32_16x16x16_bf16 {vr(acc, 4)}, {vr(A, 2)}, {vr(B, 2)}, {vr(acc, 4)}"


def role_ta(a, abort, done):
    lane_setup(a, 12)
    vKM, vL8 = 9, 10
    BI, ON, PB, PX, LQ = 236, 16, 20, 24, 28
    SX, SMm = 32, 44
    KMf, VMf, O, OUT = 52, 68, 76, 108
    SET = [("v", 140), ("a", 0)]
    NEG = hex(f32bits(-1e30))
    sQO, sNQ, sRDY, sPN, sKPH, sKMB = sO1, sK3, sPF, sK1, sCL, sCS

    OSC = [" sc1"]
    sPM = sO3 + 0 if False else sSB

    def publish():
        a(f"s_and_b32 s{S_TMP}, s{sPN}, s{sPM}")
        a("s_cselect_b64 exec, 1, 0")
        a(f"buffer_store_dword v{vONE}, v{vZERO}, {WS}, s{sPEND} offen")
        a(f"s_andn2_b32 s{S_TMP}, s{sPN}, s{sPM}")
        a("s_cselect_b64 exec, 1, 0")
        a(f"buffer_store_dword v{vONE}, v{vZERO}, {WS}, s{sPEND} offen sc1")
        a("s_mov_b64 exec, -1")
        a(f"s_add_u32 s{sPEND}, s{sPEND}, s{sPN}")
        a(f"s_mov_b32 s{sPN}, 0")

    def fr(st, m, i):
        k, b = SET[st]
        return f"{k}[{b + 32 * m + 4 * i}:{b + 32 * m + 4 * i + 3}]"

    a(f"""
    s_lshl_b32 s{S_TMP}, s{S_ROLE}, 2
    s_add_u32 s{S_TMP}, s{S_TMP}, s{S_WAVE}
    s_lshr_b32 s{sNL}, s{S_TMP}, 5
    s_and_b32 s{sK2}, s{S_TMP}, 31
    s_mov_b32 s{sNS}, 0
    s_mov_b32 s{sK4}, {hex(f32bits(128 ** -0.5 * 1.4426950408889634))}
    v_lshrrev_b32 v{vT0}, 2, v{vC}
    v_and_b32 v{vT1}, 1, v{vC}
    v_lshl_add_u32 v{vT0}, v{vT0}, 1, v{vT1}
    v_lshlrev_b32 v{vKM}, 8, v{vT0}
    v_lshl_add_u32 v{vKM}, v{vG}, 4, v{vKM}
    v_lshrrev_b32 v{vL8}, 1, v{vL16}
    v_mov_b32 v{vT1}, {NEG}
    v_mov_b32 v{PB + 1}, 0
    v_mov_b32 v{PB + 2}, 0
    s_mul_i32 s{sNFL}, s{sNL}, {NSEG * FL_STRIDE}
    s_lshl_b32 s{S_TMP}, s{sK2}, 9
    s_add_u32 s{sNFL}, s{sNFL}, s{S_TMP}
    s_add_u32 s{sNFL}, s{sNFL}, {WS_FLAGS + FL_QKV}
    s_mul_i32 s{sNQ}, s{sNL}, {3 * QKV_M}
    s_lshl_b32 s{S_TMP}, s{sK2}, 13
    s_add_u32 s{sNQ}, s{sNQ}, s{S_TMP}
    s_add_u32 s{sNQ}, s{sNQ}, {WS_QKV}
    s_lshl_b32 s{sO2}, s{sNL}, 11
    s_add_u32 s{sO2}, s{sO2}, s{sK2}
    s_lshl_b32 s{sO3}, s{sO2}, 13
    s_add_u32 s{sO3}, s{sO3}, {WS_OF}
    s_mul_i32 s{sKMB}, s{sNL}, {KM_D * 32}
    s_add_u32 s{sKMB}, s{sKMB}, s{sK2}
    s_lshl_b32 s{sKMB}, s{sKMB}, 12
    s_add_u32 s{sKMB}, s{sKMB}, {WS_KM}
    s_mul_i32 s{sPEND}, s{sNL}, {NSEG * FL_STRIDE}
    s_lshr_b32 s{S_TMP}, s{sK2}, 2
    s_lshl_b32 s{S_TMP}, s{S_TMP}, 7
    s_add_u32 s{sPEND}, s{sPEND}, s{S_TMP}
    s_lshl_b32 s{S_TMP}, s{S_WAVE}, 2
    s_add_u32 s{sPEND}, s{sPEND}, s{S_TMP}
    s_add_u32 s{sPEND}, s{sPEND}, {WS_FLAGS + FL_OF}
    s_mov_b32 s{SRD_C}, s{SRD_WS}
    s_mov_b32 s{SRD_C + 1}, s{SRD_WS + 1}
    s_mov_b32 s{SRD_C + 2}, 0
    s_mov_b32 s{SRD_C + 3}, 0x00020000
    s_mov_b32 s{sRDY}, 0
    s_mov_b32 s{sPN}, 0
    s_mov_b32 s{sSB}, 0
    s_lshl_b32 s{sO2}, s{sNL}, 2
    s_add_u32 s{sO2}, s{sO2}, {DB_TEAM}
    """)
    for i in range(4):
        a(f"v_mov_b32 v{ON + i}, 0x3f803f80")
        a(f"v_lshl_add_u32 v{vT0}, v{vG}, 2, {i}")
        a(f"v_cmp_le_u32 vcc, v{vT0}, v{vC}")
        a(f"v_cndmask_b32 v{BI + i}, v{vT1}, v{vZERO}, vcc")

    def qkv_ops(st, srd_):
        ops = []
        for m in range(3):
            for i in range(8):
                pre = [f"s_add_u32 s{sQO}, s{sNQ}, {m * QKV_M + i * 1024}"] if i % 4 == 0 else []
                ops.append(pre + [f"buffer_load_dwordx4 {fr(st, m, i)}, v{vL16}, {srd_}, s{sQO} offen offset:{(i % 4) * 1024}"])
        return ops

    km_ops = ([f"buffer_load_dwordx4 {vr(KMf + 4 * j, 4)}, v{vKM}, {WS}, s{sO2} offen offset:{j * 64} sc1" for j in range(4)] +
              [f"buffer_load_dwordx2 {vr(VMf + 2 * j, 2)}, v{vL8}, {WS}, s{sO2} offen offset:{2048 + j * 512} sc1" for j in range(4)])

    def km_check():
        heads = [KMf + 4 * j for j in range(4)] + [VMf + 2 * j for j in range(4)]
        a(f"v_xor_b32 v{vT0}, s{sKPH}, v{heads[0]}")
        for r in heads[1:]:
            a(f"v_xor_b32 v{vT1}, s{sKPH}, v{r}")
            a(f"v_or_b32 v{vT0}, v{vT0}, v{vT1}")
        a(f"v_and_b32 v{vT0}, 1, v{vT0}")
        a(f"v_cmp_ne_u32 vcc, 0, v{vT0}")

    MX, T1 = vT0, vT1
    dbg_wait(a, DB_POOL, N_POOL, vT0, vT1, abort, "Lta_ini", 64)
    dbg_wait(a, f"s{sO2}", 32, vT0, vT1, abort, "Lta_team", 64)
    trace(a, vT0, vT1)
    class_pure(a, 3, sF1, vT0, vT1, abort, "Lta_pure")

    def pick(st, here):
        a(f"""
        s_sub_u32 s{S_TMP}, s{sNS}, {TW_S0 - 1}
        s_mul_i32 s{S_TMP + 1}, s{S_TMP}, 43
        s_lshr_b32 s{S_TMP + 1}, s{S_TMP + 1}, 7
        s_mul_i32 s{S_TMP + 1}, s{S_TMP + 1}, 3
        s_cmp_eq_u32 s{S_TMP + 1}, s{S_TMP}
        s_cselect_b32 s{S_TMP + 1}, 1, 0
        s_cmp_lt_u32 s{sNS}, {TW_S0}
        s_cselect_b32 s{S_TMP + 1}, 1, s{S_TMP + 1}
        s_cmp_eq_u32 s{sNL}, 0
        s_cselect_b32 s{S_TMP + 1}, 1, s{S_TMP + 1}
        s_and_b32 s{S_TMP + 1}, s{S_TMP + 1}, s{sF1}
        """)
        if here == "F":
            a(f"s_cbranch_scc0 LtaS{st}_in")
        else:
            a(f"s_cbranch_scc1 LtaF{st}_in")
    for osc, st in (("", 0), ("", 1), (" sc1", 0), (" sc1", 1)):
        pre = "LtaS" if osc else "LtaF"
        nm = f"{pre}{st}"
        a.label(nm)
        a.restore(([], []))
        pick(st, pre[-1])
        a.label(nm + "_in")
        OSC[0] = osc
        a(f"s_and_b32 s{S_TMP}, s{sNS}, {KM_D - 1}")
        a(f"s_mul_i32 s{S_TMP}, s{S_TMP}, {32 * KM_UNIT}")
        a(f"s_add_u32 s{sO2}, s{sKMB}, s{S_TMP}")
        a(f"s_bfe_u32 s{sKPH}, s{sNS}, {0x10000 + KM_D.bit_length() - 1}")
        a(f"s_cmp_eq_u32 s{sRDY}, 1")
        a(f"s_cbranch_scc1 {nm}_have")
        a.force_wait(vm=0)
        publish()
        flag_block(a, nm + "_f", abort)
        seq(a, qkv_ops(st, WS))
        a.label(nm + "_have")
        a.restore(([], []))
        a(f"s_add_u32 s{S_TMP}, s{sNFL}, {FL_STRIDE}")
        a(f"buffer_load_dword v{vFL1}, v{vFLA}, {WS}, s{S_TMP} offen sc1")
        seq(a, km_ops)
        a.force_wait(vm=9)
        publish()
        for j in range(4):
            for (tt, kt, d) in ((0, 0, 0), (1, 0, 4), (1, 1, 8)):
                a(MF(SX + d, fr(st, 1, 2 * j + kt), fr(st, 0, 2 * j + tt), "0" if j == 0 else None))
        a.force_wait(vm=2)
        a(f"""
        v_cmp_eq_u32 vcc, 0, v{vFL1}
        s_add_u32 s{sNQ}, s{sNQ}, {32 * 8192}
        s_add_u32 s{sNFL}, s{sNFL}, {FL_STRIDE}
        s_add_u32 s{sNS}, s{sNS}, 1
        s_cmp_eq_u64 vcc, 0
        s_cselect_b32 s{sRDY}, 1, 0
        s_cmp_lt_u32 s{sNS}, {NSEG}
        s_cselect_b32 s{sRDY}, s{sRDY}, 0
        s_cmp_eq_u32 s{sRDY}, 1
        s_cselect_b32 s{SRD_C + 2}, {WS_BYTES}, 0
        """)
        if QRING:
            a(f"s_and_b32 s{S_TMP}, s{sNS}, {QRING - 1}")
            a(f"s_cselect_b32 s{S_TMP}, 0, {QRING << 18}")
            a(f"s_sub_u32 s{sNQ}, s{sNQ}, s{S_TMP}")
        for d, diag in ((0, 1), (4, 0), (8, 1)):
            for i in range(4):
                r = SX + d + i
                a(f"v_fma_f32 v{r}, v{r}, s{sK4}, v{BI + i}" if diag else f"v_mul_f32 v{r}, s{sK4}, v{r}")
        km_check()
        a(f"s_cbranch_vccz {nm}_r")
        a(f"s_mov_b32 s{S_SPIN}, 0")
        a.label(nm + "_rp")
        a.restore(([], []))
        seq(a, km_ops)
        spin_check(a, abort)
        a.force_wait(vm=0)
        km_check()
        a(f"s_cbranch_vccz {nm}_r")
        a(f"s_sleep {TASLP}")
        a(f"s_branch {nm}_rp")
        a.label(nm + "_r")
        a.restore(([], []))
        a(f"s_and_b32 s{S_TMP}, s{sNS}, 3")
        a(f"s_cmp_eq_u32 s{S_TMP}, 0")
        a(f"s_cselect_b32 s{S_TMP}, s{sNL}, 0")
        a(f"s_cmp_lg_u32 s{S_TMP}, 0")
        a("s_cselect_b64 exec, 1, 0")
        a(f"s_sub_u32 s{S_TMP}, s{sNFL}, {FL_STRIDE}")
        a(f"buffer_store_dword v{vONE}, v{vZERO}, {WS}, s{S_TMP} offen offset:384 sc1")
        a("s_mov_b64 exec, -1")
        nxt = qkv_ops(1 - st, PFS)
        seq(a, nxt.pop(0), nxt.pop(0))
        for j in range(4):
            for tt in range(2):
                a(MF(SMm + 4 * tt, vr(KMf + 4 * j, 4), fr(st, 0, 2 * j + tt), "0" if j == 0 else None))
        for tt in range(2):
            xs = list(range(SX, SX + 4)) if tt == 0 else list(range(SX + 4, SX + 12))
            ms = [SMm + 4 * tt, SMm + 4 * tt + 1]
            vals = xs + ms
            a(f"v_max3_f32 v{MX}, v{xs[0]}, v{xs[1]}, v{xs[2]}")
            a(f"v_max_f32 v{MX}, v{MX}, v{xs[3]}")
            for i in range(4, len(xs), 2):
                a(f"v_max3_f32 v{MX}, v{MX}, v{xs[i]}, v{xs[i + 1]}")
            for r in ms:
                a(f"v_mul_f32 v{r}, s{sK4}, v{r}")
            a(f"v_max3_f32 v{MX}, v{MX}, v{ms[0]}, v{ms[1]}")
            seq(a, f"v_mov_b32 v{T1}, v{MX}", nxt.pop(0), f"v_permlane32_swap_b32 v{MX}, v{T1}", f"v_max_f32 v{MX}, v{MX}, v{T1}",
                f"v_mov_b32 v{T1}, v{MX}", nxt.pop(0), f"v_permlane16_swap_b32 v{MX}, v{T1}", f"v_max_f32 v{MX}, v{MX}, v{T1}",
                [f"v_sub_f32 v{r}, v{r}, v{MX}" for r in vals], [f"v_exp_f32 v{r}, v{r}" for r in vals])
            for i in range(4):
                if 2 * i < len(xs):
                    a(f"v_cvt_pk_bf16_f32 v{PX + i}, v{xs[2 * i]}, v{xs[2 * i + 1]}")
                else:
                    a(f"v_mov_b32 v{PX + i}, 0")
            a(f"v_cvt_pk_bf16_f32 v{PB}, v{ms[0]}, v{ms[1]}")
            a(f"v_cvt_pk_bf16_f32 v{PB + 3}, v{ms[0]}, v{ms[1]}")
            a(MF(LQ, vr(ON, 4), vr(PX, 4), "0"))
            for t in range(8):
                a(MF(O + 4 * t, fr(st, 2, t), vr(PX, 4), "0"))
                if t & 1 and nxt:
                    seq(a, nxt.pop(0))
                if t == 5:
                    a(MF16(LQ, ON, PB))
            for t in range(8):
                a(MF16(O + 4 * t, VMf + 2 * (t >> 1), PB + 2 * (t & 1)))
                if t == 1:
                    a(f"v_rcp_f32 v{T1}, v{LQ}")
                if t >= 3 and t & 1:
                    norm(a, O, OUT, T1, (t - 3) >> 1, tt, sO3, nxt, osc)
            norm(a, O, OUT, T1, 3, tt, sO3, nxt, osc)
        seq(a, nxt)
        a(f"s_add_u32 s{sO3}, s{sO3}, {32 * 8192}")
        if ORING:
            a(f"s_and_b32 s{S_TMP}, s{sNS}, {ORING - 1}")
            a(f"s_cselect_b32 s{S_TMP}, 0, {ORING << 18}")
            a(f"s_sub_u32 s{sO3}, s{sO3}, s{S_TMP}")
        a(f"s_mov_b32 s{sPN}, {FL_STRIDE}")
        a(f"s_mov_b32 s{sPM}, {0 if osc else -1}")
        trace_at(a, sNS, vT0, vZERO)
        trace(a, vT0, vT1)
        a(f"s_cmp_ge_u32 s{sNS}, {NSEG}")
        a(f"s_cbranch_scc1 {pre}_end")
        if st == 1:
            a(f"s_branch {pre}0")
            a.label(f"{pre}_end")
            a.restore(([], []))
            a.force_wait(vm=0)
            publish()
            a(f"s_branch {done}")


TASLP = int(os.environ.get("TASLP", "2"))


def norm(a, O, OUT, T1, j, tt, sO3, nxt, osc=" sc1"):
    for i in range(4):
        x, y = O + 8 * j + i, O + 8 * j + 4 + i
        a(f"v_mul_f32 v{x}, v{T1}, v{x}")
        a(f"v_mul_f32 v{y}, v{T1}, v{y}")
        a(f"v_cvt_pk_bf16_f32 v{OUT + 16 * tt + 4 * j + i}, v{x}, v{y}")
    if j % 2 == 0:
        a(f"s_add_u32 s{S_TMP}, s{sO3}, {j * 2048}")
    a(f"buffer_store_dwordx4 {vr(OUT + 16 * tt + 4 * j, 4)}, v{vL16}, {WS}, s{S_TMP} offen offset:{(j % 2) * 2048 + tt * 1024}{osc}")
    if nxt:
        seq(a, nxt.pop(0))


TWX = int(os.environ.get("TWX", "1"))
TW_S0 = int(os.environ.get("TW_S0", "34"))
TWPF = int(os.environ.get("TWPF", "1"))
OUTSC = os.environ.get("OUTSC", "")
TWLD = {"": "", "nt": " nt", "sc1": " sc1", "sc0": " sc0"}[os.environ.get("TWLD", "")]


def role_tw(a, abort, done, nt=os.environ.get("NT_W", "")):
    lane_setup(a, 32)
    vA0, vSEL, vRES, vROW, vSTO, vRED, vMBT, vRD2, OUTP = 9, 11, 12, 13, 14, 48, 49, 50, 52
    nst_ = 0
    ACC, RES, SS, RING, ZB = 16, 40, 44, 64, 128
    sSL = sK2
    TWLDW = int(os.environ.get("TWLDW", "1"))
    TWG = int(os.environ.get("TWG", "24"))
    if TWLDW:
        a(f"s_cmp_lt_u32 s{S_ROLE}, {TWG}")
        a("s_cbranch_scc1 Ltw_noord")
        dbg_wait(a, DB_STEP0 if GATE0 & 4 else DB_LOADED, TWLDW, vT0, vT1, abort, "Ltw_ord", 64)
        a.label("Ltw_noord")
    srd(a, SRD_A, KA_BWO, 4096 * 1152)
    srd(a, SRD_B, KA_OUT, 2048 * 1152)
    A_ = f"s[{SRD_A}:{SRD_A + 3}]"
    OUTS = f"s[{SRD_B}:{SRD_B + 3}]"
    a(f"""
    s_mul_i32 s{S_TMP}, s{S_ROLE}, 43
    s_lshr_b32 s{sN0}, s{S_TMP}, 9
    s_mul_i32 s{S_TMP}, s{sN0}, 12
    s_sub_u32 s{sSL}, s{S_ROLE}, s{S_TMP}
    s_add_u32 s{sN1}, s{sN0}, {(TW_S0 - (3 if TWX else 0)) & 0xffffffff}
    s_cmp_eq_u32 s{sN0}, 2
    s_cselect_b32 s{sN1}, 0, s{sN1}
    s_cmp_lt_u32 s{sN0}, 2
    s_cselect_b32 s{sN1}, {f"{NSEG}" if TWX else f"s{sN1}"}, s{sN1}
    s_cselect_b32 s{sN0}, s{sN0}, {NSEG}
    s_mul_i32 s{sK1}, s{sSL}, 96
    s_mul_i32 s{S_TMP}, s{S_WAVE}, {1024 * 1152}
    s_add_u32 s{sK1}, s{sK1}, s{S_TMP}
    v_mul_u32_u24 v{vT0}, {4 * 1152}, v{vG}
    v_lshl_add_u32 v{vA0}, v{vC}, 2, v{vT0}
    v_add_u32 v{vA0 + 1}, {16 * 1152}, v{vA0}
    v_and_b32 v{vT1}, 14, v{vC}
    v_lshl_add_u32 v{vRES}, v{vT1}, 1, v{vT0}
    v_add_u32 v{vRES}, 64, v{vRES}
    v_add_u32 v{vROW}, {16 * 1152}, v{vRES}
    v_and_b32 v{vT0}, 1, v{vC}
    v_mov_b32 v{vSEL}, s{sSELX}
    v_mov_b32 v{vT1}, s{sSELY}
    v_cmp_eq_u32 vcc, 1, v{vT0}
    v_cndmask_b32 v{vSEL}, v{vSEL}, v{vT1}, vcc
    """)
    STG = 16
    n = 128
    D = 14
    for i in range(n + D):
        if i < n:
            kk, d = i >> 2, i & 3
            r = STG + 4 * (i % 28)
            a(f"s_add_u32 s{S_TMP}, s{sK1}, {(32 * kk + d) * 1152}")
            for q, ad in enumerate((vA0, vA0 + 1, vRES, vROW)):
                a(f"buffer_load_dword v{r + q}, v{ad}, {A_}, s{S_TMP} offen {nt}")
        j = i - D
        if j >= 0:
            kk, d = j >> 2, j & 3
            r = STG + 4 * (j % 28)
            a(f"v_perm_b32 v{vT0}, v{r + 1}, v{r}, s{sSELX}")
            a(f"v_perm_b32 v{vT1}, v{r + 1}, v{r}, s{sSELY}")
            a(f"v_perm_b32 v{ZB + 4 * kk + d}, v{r + 3}, v{r + 2}, v{vSEL}")
            a(f"v_accvgpr_write_b32 a{8 * kk + d}, v{vT0}")
            a(f"v_accvgpr_write_b32 a{8 * kk + 4 + d}, v{vT1}")
    a(f"""
    s_and_b32 s{sK3}, s{S_WAVE}, 1
    s_lshl_b32 s{S_TMP}, s{sK3}, 4
    v_add_u32 v{vT0}, s{S_TMP}, v{vC}
    v_lshlrev_b32 v{vSTO}, 4, v{vT0}
    v_mul_u32_u24 v{vROW}, 1152, v{vT0}
    s_mul_i32 s{S_TMP}, s{sSL}, 96
    v_add_u32 v{vROW}, s{S_TMP}, v{vROW}
    s_mul_i32 s{S_TMP}, s{sSL}, 3072
    v_add_u32 v{vRES}, s{S_TMP}, v{vSTO}
    v_lshrrev_b32 v{vSTO}, 1, v{vSTO}
    s_lshl_b32 s{S_TMP}, s{sSL}, 9
    v_add_u32 v{vSTO}, s{S_TMP}, v{vSTO}
    s_lshl_b32 s{sK1}, s{sSL}, 7
    s_lshl_b32 s{S_TMP}, s{S_WAVE}, 2
    s_add_u32 s{sK1}, s{sK1}, s{S_TMP}
    s_add_u32 s{sK1}, s{sK1}, {WS_FLAGS + FL_XA + NSEG * FL_STRIDE}
    s_mul_i32 s{S_TMP}, s{S_WAVE}, 6144
    v_add_u32 v{vRED}, s{S_TMP}, v{vL16}
    v_mov_b32 v{vMBT}, 0x10000
    v_lshrrev_b32 v51, 4, v{vL16}
    v_min_u32 v51, 42, v51
    s_mul_i32 s{S_TMP}, s{sSL}, 43
    v_add_u32 v51, s{S_TMP}, v51
    v_lshlrev_b32 v51, 7, v51
    s_cmp_gt_u32 s{S_WAVE}, 1
    s_cbranch_scc1 Ltw_z
    """)
    for z in (0, 1):
        nm = "LtwZ" if z else "LtwX"
        if z:
            a.label("Ltw_z")
            a.restore(([], []))
            a(f"""
            v_lshrrev_b32 v{vT0}, 1, v{vG}
            v_lshl_add_u32 v{vRES}, v{vT0}, 9, v{vRES}
            v_and_b32 v{vT0}, 1, v{vG}
            v_lshl_add_u32 v{vRES}, v{vT0}, 3, v{vRES}
            v_add_u32 v{vRES}, 2048, v{vRES}
            v_lshl_add_u32 v{vROW}, v{vG}, 3, v{vROW}
            v_add_u32 v{vROW}, 64, v{vROW}
            v_add_u32 v{vSTO}, 256, v{vSTO}
            """)
        else:
            a(f"v_lshl_add_u32 v{vRES}, v{vG}, 9, v{vRES}")
            a(f"v_lshl_add_u32 v{vROW}, v{vG}, 4, v{vROW}")
        st = "dwordx2" if z else "dwordx4"
        nq = 1 if z else 2
        nv = 4 * nq
        R = ACC
        RDL = [ACC + 8, ACC + 12, ACC + 16, ACC + 20, 56, 60, RING + 60, OUTP]
        RD = lambda k: RDL[k]

        def step1():
            return [f"s_cmp_lt_u32 s{sN1}, {TW_S0 - 1}", f"s_cselect_b32 s{sLEFT}, 1, 3"]

        def addr_next():
            first = [f"s_lshl_b32 s{sO1}, s{sNO}, 18"] if not ORING else \
                [f"s_and_b32 s{sO1}, s{sNO}, {64 + ORING - 1}", f"s_lshl_b32 s{sO1}, s{sO1}, 18"]
            return first + [f"s_add_u32 s{sO1}, s{sO1}, s{sWQ}",
                    f"s_mul_i32 s{sNX}, s{sNL}, {2 * X_BYTES}", f"s_mul_i32 s{S_TMP}, s{sNS}, {X_SEG}",
                    f"s_add_u32 s{sNX}, s{sNX}, s{S_TMP}", f"s_add_u32 s{sNX}, s{sNX}, {WS_X + X_BYTES}"]

        def ld(i, srd_):
            if i % 4 == 0:
                a(f"s_add_u32 s{sO3}, s{sO1}, {i * 1024}")
            a(f"buffer_load_dwordx4 {vr(RING + 4 * (i % 16), 4)}, v{vL16}, {srd_}, s{sO3} offen offset:{(i % 4) * 1024}{TWLD}")

        def line_pf(srd_):
            if TWPF:
                a(f"buffer_load_dword v10, v51, {srd_}, s{sO1} offen")
                a.vmq.pop()

        def first_loads(srd_):
            line_pf(srd_)
            for i in range(15):
                ld(i, srd_)
            a(f"buffer_load_{st} {vr(RES, nv // 2)}, v{vRES}, {srd_}, s{sNX} offen")

        def w0(fn, lab):
            if not z:
                a(f"s_cmp_lg_u32 s{S_WAVE}, 0")
                a(f"s_cbranch_scc1 {lab}")
                sn = a.snap()
                fn()
                a.restore(sn)
                a.label(lab)

        def post():
            a(f"v_mov_b32 v{vT0}, s{sDEC}")
            a(f"ds_write_b32 v{vMBT}, v{vT0}")

        a(f"""
        s_lshl_b32 s{sWQ}, s{S_WAVE}, 16
        s_add_u32 s{sWQ}, s{sWQ}, {WS_OF}
        s_mov_b32 s{sPEND}, 0
        s_mov_b32 s{SRD_C}, s{SRD_WS}
        s_mov_b32 s{SRD_C + 1}, s{SRD_WS + 1}
        s_mov_b32 s{SRD_C + 2}, 0
        s_mov_b32 s{SRD_C + 3}, 0x00020000
        s_mul_i32 s{S_TMP}, s{sK3}, 3072
        v_add_u32 v{vRD2}, s{S_TMP}, v{vL16}
        """)
        a(f"ds_write2_b32 v{vMBT}, v{vZERO}, v{vZERO} offset0:0 offset1:1")
        a.wait(lg=0)
        dbg_wait(a, DB_POOL, N_POOL, vT0, vT1, abort, nm + "_ini")
        a.label(nm + "_idle")
        a.restore(([], []))
        w0(lambda: (poll2(a, nm + "_p", abort, FL_OF, 0), post(), a.wait(lg=0)), nm + "_nw0")
        a("s_barrier")
        a(f"ds_read_b32 v{vT1}, v{vMBT}")
        a(f"v_xor_b32 v{vMBT}, 4, v{vMBT}")
        a(f"v_readfirstlane_b32 s{sDEC}, v{vT1}")
        a(f"s_cmp_eq_u32 s{sDEC}, 0")
        a(f"s_cbranch_scc1 {abort}")
        seq(a, step1(), take(sDEC, 2, f"s{sLEFT}"), addr_next(), f"s_cmp_ge_u32 s{sNS}, {NSEG}", f"s_cbranch_scc1 {abort}")
        first_loads(WS)
        for _ in range(nst_):
            a.vmq.append((frozenset(), "st"))
        a.label(nm + "_item")
        trace(a, vT0, vT1, True) if TRACE == 1 else None
        a(f"s_mov_b32 s{sCL}, s{sNL}")
        a(f"s_mov_b32 s{sCS}, s{sNS}")
        a(f"s_mov_b32 s{sO2}, s{sNX}")
        a.vmq = a.vmq[:16]
        for i in range(64):
            kk, tt = i >> 1, i & 1
            ld((i + 15) % 64, WS if i + 15 < 64 else PFS)
            b = vr(RING + 4 * (i % 16), 4)
            c = "0" if kk == 0 else None
            a(MF(ACC + 12 * tt, ar(8 * kk, 4), b, c))
            a(MF(ACC + 12 * tt + 4, ar(8 * kk + 4, 4), b, c))
            a(MF(ACC + 12 * tt + 8, vr(ZB + 4 * kk, 4), b, c))
            if i == 17:
                a(f"s_cmp_lg_u32 s{sPEND}, 0")
                a("s_cselect_b64 exec, 1, 0")
                a(f"buffer_store_dword v{vONE}, v{vZERO}, {WS}, s{sPEND} offen sc1")
                a("s_mov_b64 exec, -1")
                a(f"s_mov_b32 s{sPEND}, 0")
            if i == 26:
                w0(lambda: (cand_addr(a, FL_OF), sample2(a)), nm + "_nw1")
            if i == 44:
                w0(lambda: (decide(a, 0), post(), a.force_wait(lg=0)), nm + "_nw2")
                a("s_barrier")
                a(f"ds_read_b32 v{vT1}, v{vMBT}")
                a(f"v_xor_b32 v{vMBT}, 4, v{vMBT}")
            if i == 47:
                a(f"v_readfirstlane_b32 s{sDEC}, v{vT1}")
                seq(a, step1(), take(sDEC, 2, f"s{sLEFT}"))
            if i == 48:
                seq(a, f"s_cmp_lt_u32 s{sNS}, {NSEG}", f"s_cselect_b32 s{sDEC}, s{sDEC}, 0")
                seq(a, addr_next(), f"s_cmp_lg_u32 s{sDEC}, 0", f"s_cselect_b32 s{SRD_C + 2}, {WS_BYTES}, 0")
                line_pf(PFS)
        a.nop(6)
        for q in range(6):
            a(f"ds_write_b128 v{vRED}, {vr(ACC + 4 * q, 4)} offset:{q * 1024}")
        a.force_wait(lg=0)
        a("s_barrier")
        for wv in range(4):
            for q in range(nq):
                a(f"ds_read_b128 {vr(RD(wv * nq + q), 4)}, v{vRD2} offset:{wv * 6144 + (2 if z else q) * 1024}")
        a(f"v_xor_b32 v{vRED}, 0x8000, v{vRED}")
        a(f"v_xor_b32 v{vRD2}, 0x8000, v{vRD2}")
        if z:
            for i in range(2):
                a(f"v_lshlrev_b32 v{R + 2 * i}, 16, v{RES + i}")
                a(f"v_and_b32 v{R + 2 * i + 1}, 0xffff0000, v{RES + i}")
        else:
            for i in range(4):
                a(f"v_lshlrev_b32 v{R + i}, 16, v{RES + i}")
                a(f"v_and_b32 v{R + 4 + i}, 0xffff0000, v{RES + i}")
        a(f"buffer_load_{st} {vr(RES, nv // 2)}, v{vRES}, {PFS}, s{sNX} offen")
        for wv in range(4):
            for i in range(nv):
                a(f"v_add_f32 v{R + i}, v{R + i}, v{RD(wv * nq + i // 4) + i % 4}")
        if z:
            a(f"v_cvt_pk_bf16_f32 v{OUTP}, v{R}, v{R + 1}")
            a(f"v_cvt_pk_bf16_f32 v{OUTP + 1}, v{R + 2}, v{R + 3}")
        else:
            for i in range(4):
                a(f"v_cvt_pk_bf16_f32 v{OUTP + i}, v{R + i}, v{R + 4 + i}")
        a(f"s_cmp_eq_u32 s{sCL}, 0")
        a(f"s_cbranch_scc1 {nm}_l0")
        win = list(a.win)
        sn = a.snap()
        a(f"s_mul_i32 s{S_TMP}, s{sCS}, {32 * 1152}")
        a(f"buffer_store_{st} {vr(OUTP, nv // 2)}, v{vROW}, {OUTS}, s{S_TMP} offen{OUTSC}")
        a(f"s_cmp_lg_u32 s{sDEC}, 0")
        a(f"s_cbranch_scc1 {nm}_item")
        a.label(nm + "_chk")
        a(f"s_min_u32 s{S_TMP}, s{sN0}, s{sN1}")
        a(f"s_cmp_lt_u32 s{S_TMP}, {NSEG}")
        a(f"s_cbranch_scc1 {nm}_idle")
        trace(a, vT0, vT1, True) if TRACE != 4 else None
        stamp_max(a, 7, vT0, vT1) if DBGT == 1 else None
        a(f"s_branch {done}")
        a.label(nm + "_l0")
        a.win = win
        a.restore(sn)
        a(f"s_add_u32 s{sO2}, s{sO2}, {X_BYTES}")
        a(f"buffer_store_{st} {vr(OUTP, nv // 2)}, v{vRES}, {WS}, s{sO2} offen sc1")
        a(f"v_add_f32 v{SS}, v{R}, v{R + 1}")
        a(f"v_mul_f32 v{SS + 1}, v{R}, v{R}")
        a(f"v_fmac_f32 v{SS + 1}, v{R + 1}, v{R + 1}")
        for i in range(2, nv):
            a(f"v_add_f32 v{SS}, v{SS}, v{R + i}")
            a(f"v_fmac_f32 v{SS + 1}, v{R + i}, v{R + i}")
        for sw in (32, 16):
            seq(a, f"v_mov_b32 v{SS + 2}, v{SS}", f"v_mov_b32 v{SS + 3}, v{SS + 1}",
                f"v_permlane{sw}_swap_b32 v{SS}, v{SS + 2}", f"v_permlane{sw}_swap_b32 v{SS + 1}, v{SS + 3}",
                f"v_add_f32 v{SS}, v{SS}, v{SS + 2}", f"v_add_f32 v{SS + 1}, v{SS + 1}, v{SS + 3}")
        a(f"""
        s_mul_i32 s{S_TMP}, s{sCS}, {ST_SEG}
        s_add_u32 s{S_TMP}, s{S_TMP}, {WS_ST + 2 * ST_BYTES}
        s_mov_b64 exec, 0xffff
        buffer_store_dwordx2 {vr(SS, 2)}, v{vSTO}, {WS}, s{S_TMP} offen sc1
        s_mov_b64 exec, -1
        s_mul_i32 s{sPEND}, s{sCS}, {FL_STRIDE}
        s_add_u32 s{sPEND}, s{sPEND}, s{sK1}
        """)
        trace_at(a, sCS, vT0, vZERO)
        a(f"s_cmp_lg_u32 s{sDEC}, 0")
        a(f"s_cbranch_scc1 {nm}_item")
        w0(lambda: (cand_addr(a, FL_OF), sample2(a)), nm + "_nw3")
        a.force_wait(vm=0)
        flag_out(a, sPEND)
        a(f"s_mov_b32 s{sPEND}, 0")
        a(f"s_min_u32 s{S_TMP}, s{sN0}, s{sN1}")
        a(f"s_cmp_lt_u32 s{S_TMP}, {NSEG}")
        a(f"s_cbranch_scc0 {nm}_chk")
        if not z:
            a(f"s_cmp_lg_u32 s{S_WAVE}, 0")
            a(f"s_cbranch_scc1 {nm}_nw0")
            decide(a, 0)
            a(f"s_cmp_eq_u32 s{sDEC}, 0")
            a(f"s_cbranch_scc1 {nm}_idle")
            post()
            a.force_wait(lg=0)
        a(f"s_branch {nm}_idle" if z else f"s_branch {nm}_nw0")
```

```python
import sys, os
from common import *
import role_r2 as R
import pool, pool2, role_t, role_tw2

MAIN = KNAME + "_kernel"
TLBW = int(os.environ.get("TLBW", "0"))
WBL2 = int(os.environ.get("WBL2", "1"))
INIT = "init_kernel"
def kd(name, vgpr, acc, sgpr=102):
    return f""".p2align 6
.amdhsa_kernel {name}
  .amdhsa_next_free_vgpr {vgpr}
  .amdhsa_next_free_sgpr {sgpr}
  .amdhsa_accum_offset {acc}
  .amdhsa_group_segment_fixed_size 0
  .amdhsa_kernarg_size 104
  .amdhsa_user_sgpr_count 2
  .amdhsa_user_sgpr_kernarg_segment_ptr 1
  .amdhsa_system_sgpr_workgroup_id_x 1
.end_amdhsa_kernel
"""


N_INIT = 123


def pool_init(a):
    WS = f"s[{SRD_WS}:{SRD_WS + 3}]"
    Q_ = 6
    XQ = N_INIT - 64
    srd(a, SRD_A, KA_X, 2048 * 1152)
    a(f"""
    v_lshlrev_b32 v7, 4, v0
    v_mov_b32 v12, 0
    v_mov_b32 v13, 0
    v_mov_b32 v14, 0
    v_mov_b32 v15, 0
    s_mov_b32 s46, s{Q_}
    Li_loop:
    """)
    a(f"""
    s_cmp_ge_u32 s46, 136
    s_cbranch_scc1 Li_nofl
    s_mul_i32 s41, s46, {FL_STRIDE}
    s_add_u32 s41, s41, {WS_FLAGS}
    s_sub_u32 s42, s46, 128
    s_lshl_b32 s42, s42, 12
    s_add_u32 s42, s42, {WS_ZERO}
    s_cmp_ge_u32 s46, 128
    s_cselect_b32 s41, s42, s41
    buffer_store_dwordx4 v[12:15], v7, {WS}, s41 offen sc1
    s_cbranch_scc1 Li_nofl
    """)
    for i in range(1, 6):
        a(f"s_add_u32 s41, s41, 4096")
        if i == 5:
            a("v_cmp_gt_u32 vcc, 128, v0")
            a("s_and_saveexec_b64 s[42:43], vcc")
            a("s_cbranch_execz Li_fl5")
        a(f"buffer_store_dwordx4 v[12:15], v7, {WS}, s41 offen sc1")
    a("Li_fl5:")
    a("s_mov_b64 exec, s[42:43]")
    a("Li_nofl:")
    a(f"""
    s_cmp_ge_u32 s46, 64
    s_cbranch_scc1 Li_rest
    s_mul_i32 s42, s46, {ST_SEG}
    s_add_u32 s42, s42, {WS_ST}
    s_add_u32 s43, s42, 2048
    buffer_store_dwordx4 v[12:15], v7, {WS}, s43 offen sc1
    s_branch Li_done
    Li_rest:
    s_cmp_ge_u32 s46, 192
    s_cbranch_scc1 Li_done
    s_sub_u32 s41, s46, 64
    s_lshr_b32 s42, s41, 6
    s_and_b32 s41, s41, 63
    s_mul_i32 s42, s42, {2 * ST_BYTES}
    s_mul_i32 s41, s41, {ST_SEG}
    s_add_u32 s41, s41, s42
    s_add_u32 s41, s41, {WS_ST + ST_BYTES + 9 * 512}
    v_cmp_gt_u32 vcc, 96, v0
    s_and_saveexec_b64 s[44:45], vcc
    s_cbranch_execz Li_rest2
    buffer_store_dwordx4 v[12:15], v7, {WS}, s41 offen sc1
    Li_rest2:
    s_mov_b64 exec, s[44:45]
    Li_done:
    s_add_u32 s46, s46, {N_INIT}
    s_cmp_lt_u32 s46, 192
    s_cbranch_scc1 Li_loop
    """)
    a(f"""
    v_and_b32 v1, 31, v0
    v_lshrrev_b32 v2, 5, v0
    v_mul_u32_u24 v3, 1152, v1
    v_mul_u32_u24 v5, 144, v2
    v_add_u32 v3, v3, v5
    s_sub_u32 s47, s{Q_}, {XQ}
    s_mul_i32 s41, s47, {32 * 1152}
    s_cmp_lt_u32 s{Q_}, {XQ}
    s_cselect_b32 s41, 0x7f000000, s41
    """)
    for i in range(9):
        a(f"buffer_load_dwordx4 {vr(64 + 4 * i, 4)}, v3, s[{SRD_A}:{SRD_A + 3}], s41 offen offset:{16 * i}")
    a.force_wait(vm=9)
    a("s_barrier")
    a(f"s_cmp_lg_u32 s{S_WAVE}, 0")
    a("s_cbranch_scc1 Li_mid")
    dbg_add(a, DB_POOL, 2, 3)
    a.label("Li_mid")
    a(f"s_cmp_lt_u32 s{Q_}, {XQ}")
    a("s_cbranch_scc1 Li_end")
    a.force_wait(vm=0)
    a(f"""
    v_and_b32 v1, 31, v0
    v_lshrrev_b32 v2, 5, v0
    v_mul_u32_u24 v4, {9 * 512}, v2
    v_lshl_add_u32 v4, v1, 4, v4
    s_mul_i32 s41, s47, {X_SEG}
    s_add_u32 s41, s41, {WS_X}
    s_mul_i32 s42, s47, {ST_SEG}
    s_add_u32 s42, s42, {WS_ST}
    v_mov_b32 v60, 0
    v_mov_b32 v61, 0
    """)
    for i in range(9):
        if i == 8:
            a("v_add_u32 v4, 4096, v4")
        a(f"buffer_store_dwordx4 {vr(64 + 4 * i, 4)}, v4, {WS}, s41 offen offset:{512 * (i % 8)} sc1")
    a("v_mov_b32 v62, 0x3f803f80")
    for r in range(64, 100):
        a(f"v_dot2c_f32_bf16 v60, v{r}, v62")
        a(f"v_dot2c_f32_bf16 v61, v{r}, v{r}")
    a.nop(4)
    a(f"""
    v_lshlrev_b32 v5, 8, v2
    v_lshl_add_u32 v5, v1, 3, v5
    buffer_store_dwordx2 v[60:61], v5, {WS}, s42 offen sc1
    """)
    a.force_wait(vm=0)
    dbg_wait(a, DB_POOL, N_POOL, 5, 6, "L_abort", "Li_pw", 2)
    a(f"""
    s_cmp_lg_u32 s{S_WAVE}, 0
    s_cbranch_scc1 Li_end
    v_lshrrev_b32 v5, 2, v0
    v_lshlrev_b32 v5, 7, v5
    v_and_b32 v6, 3, v0
    v_lshl_add_u32 v5, v6, 2, v5
    v_mov_b32 v6, 1
    s_mul_i32 s41, s47, {FL_STRIDE}
    s_mov_b32 exec_lo, -1
    s_mov_b32 exec_hi, 0xffff
    s_add_u32 s41, s41, {WS_FLAGS}
    buffer_store_dword v6, v5, {WS}, s41 offen offset:{FL_XA} sc1
    s_mov_b64 exec, -1
    """)
    if DBGT == 2:
        stamp_max(a, 14, 5, 6, (47, 0))
    a.label("Li_end")
    a.restore(([], []))


def init_index(a, sX, sTK):
    idx = {"P": 0, "W": 0, "T": 0, "A": 0, "O": 0}
    crit = {"P": 48, "A": 16, "O": 5, "W": 0, "T": 0}
    q = 0
    for cls, lst in ROLE_MAP.items():
        a(f"s_cmp_lg_u32 s{sX}, {cls}")
        a(f"s_cbranch_scc1 L_ii{cls}_no")
        runs, t0 = [], 0
        for ch, n in lst:
            for i in range(n):
                c = idx[ch] < crit[ch]
                idx[ch] += 1
                if runs and runs[-1][2] == c:
                    runs[-1][1] += 1
                else:
                    runs.append([t0 + i, t0 + i + 1, c])
            t0 += n
        if t0 < 32:
            if runs[-1][2]:
                runs.append([t0, 32, False])
            else:
                runs[-1][1] = 32
        for a0, a1, c in runs:
            a(f"s_cmp_lt_u32 s{sTK}, {a1}")
            if c:
                a("s_cbranch_scc1 L_noinit")
            else:
                a(f"s_add_u32 s6, s{sTK}, {(q - a0) & 0xffffffff}")
                a(f"s_cmp_lt_u32 s{sTK}, {a1}")
                a("s_cbranch_scc1 L_doinit")
                q += a1 - a0
        a.label(f"L_ii{cls}_no")
    assert q == N_INIT, q
    a("s_endpgm")


def gen_main(a, stamps=0, dbg_roles=None):
    WS = f"s[{SRD_WS}:{SRD_WS + 3}]"
    a.text(f".globl {MAIN}\n.p2align 8\n.type {MAIN},@function")
    a.label(MAIN)
    a.reset_window()
    sX, sTK = 3, 4
    DBG = f"s[{S_DBG}:{S_DBG + 1}]"
    a("s_cmp_ge_u32 s2, 256")
    a("s_cbranch_scc1 L_exit")
    srd(a, SRD_WS, KA_WS, WS_BYTES)
    a(f"""
    s_load_dwordx2 s[{S_DBG}:{S_DBG + 1}], s[0:1], {KA_DBG}
    v_lshrrev_b32 v1, 6, v0
    s_getreg_b32 s{sX}, hwreg(HW_REG_XCC_ID)
    v_readfirstlane_b32 s{S_WAVE}, v1
    s_and_b32 s{sX}, s{sX}, {6 if os.environ.get('FAKEX') else 7}
    s_and_b32 s{S_TMP}, s{sX}, 1
    s_lshl_b32 s{S_TMP}, s{S_TMP}, 7
    s_lshl_b32 s{S_TMP + 1}, s{sX}, 1
    s_and_b32 s{S_TMP + 1}, s{S_TMP + 1}, 12
    s_add_u32 s{S_TMP}, s{S_TMP}, s{S_TMP + 1}
    v_mov_b32 v2, 0
    v_mov_b32 v3, 1
    v_mov_b32 v4, s{S_TMP}
    s_mov_b32 s{R.sSTEP}, 0
    s_waitcnt lgkmcnt(0)
    s_cmp_lg_u32 s{S_WAVE}, 0
    s_cbranch_scc1 L_tk_wait
    s_mov_b64 exec, 1
    global_atomic_add v3, v4, v3, {DBG} sc0
    v_readfirstlane_b32 s{sTK}, v3
    s_cmp_lt_u32 s{sTK}, 32
    s_cbranch_scc1 L_tk_have
    """)
    a(f"""
    v_mov_b32 v3, 1
    v_mov_b32 v4, {DB_HOMELESS}
    global_atomic_add v3, v4, v3, {DBG} sc0
    v_readfirstlane_b32 s5, v3
    s_mov_b64 exec, 0xff
    v_and_b32 v4, 1, v0
    v_lshlrev_b32 v4, 7, v4
    v_lshlrev_b32 v5, 1, v0
    v_and_or_b32 v4, v5, 12, v4
    s_mov_b32 s{S_SPIN}, 0
    L_hl_poll:
    global_load_dword v5, v4, {DBG} sc1
    """)
    spin_check(a, "L_abort")
    a("s_mov_b32 s6, 0")
    for i in range(8):
        a(f"v_readlane_b32 s{40 + i}, v5, {i}")
        a(f"s_add_u32 s6, s6, s{40 + i}")
    a(f"""
    s_cmp_lt_u32 s6, 256
    s_cbranch_scc1 L_hl_poll
    s_mov_b32 s{sX}, 0
    s_mov_b32 s{sTK}, 0
    """)
    for i in range(7, -1, -1):
        a(f"""
        s_min_u32 s6, s{40 + i}, 32
        s_sub_u32 s7, 32, s6
        s_cmp_lt_u32 s5, s7
        s_cselect_b32 s{sX}, {i}, s{sX}
        s_add_u32 s6, s6, s5
        s_cmp_lt_u32 s5, s7
        s_cselect_b32 s{sTK}, s6, s{sTK}
        s_sub_u32 s5, s5, s7
        """)
    a(f"""
    L_tk_have:
    s_lshl_b32 s5, s{sX}, 8
    s_or_b32 s5, s5, s{sTK}
    v_mov_b32 v3, s5
    s_mov_b64 exec, 1
    ds_write_b32 v2, v3
    s_mov_b64 exec, -1
    L_tk_wait:
    """)
    a.force_wait(vm=0, lg=0)
    a("s_barrier")
    a("ds_read_b32 v3, v2")
    a(f"v_readfirstlane_b32 s5, v3")
    a(f"s_lshr_b32 s{sX}, s5, 8")
    a(f"s_and_b32 s{sTK}, s5, 255")
    a("s_barrier")
    if TLBW:
        a(f"s_cmp_lg_u32 s{S_WAVE}, 1")
        a("s_cbranch_scc1 L_notlb")
        a("v_and_b32 v253, 63, v0")
        a("v_lshlrev_b32 v253, 21, v253")
        a(f"buffer_load_dword v254, v253, s[{SRD_WS}:{SRD_WS + 3}], 0 offen sc1 nt")
        a(f"s_mov_b32 s6, {64 << 21}")
        a(f"buffer_load_dword v255, v253, s[{SRD_WS}:{SRD_WS + 3}], s6 offen sc1 nt")
        a.vmq = []
        a.label("L_notlb")
    trace_init(a)
    if DBGT:
        a("s_memrealtime s[6:7]")
        a.force_wait(lg=0)
        a("s_mov_b32 s5, s6")
    trace(a, 2, 3, True)
    en = dbg_roles or "RPWTAO"

    def tgt(ch, lab):
        return lab if ch in en else "L_exit"
    LAB = {"P": "L_role_p", "W": "L_role_tw", "T": "L_role_ta", "A": "L_role_aq", "O": "L_role_awo"}
    a(f"s_cmp_lt_u32 s{sX}, 2")
    a(f"s_cbranch_scc1 {tgt('R', 'L_role_r')}")
    init_index(a, sX, sTK)
    a.label("L_doinit")
    pool_init(a)
    a.label("L_noinit")
    base = {k: 0 for k in LAB}
    for cls, lst in ROLE_MAP.items():
        a(f"s_cmp_lg_u32 s{sX}, {cls}")
        a(f"s_cbranch_scc1 L_cls{cls}_no")
        t0 = 0
        for ch, n in lst:
            a(f"s_add_u32 s{S_ROLE}, s{sTK}, {(base[ch] - t0) & 0xffffffff}")
            a(f"s_cmp_lt_u32 s{sTK}, {t0 + n}")
            a(f"s_cbranch_scc1 {tgt(ch, LAB[ch])}")
            base[ch] += n
            t0 += n
        a("s_endpgm")
        a.label(f"L_cls{cls}_no")
    assert base == {"P": 96, "W": 36, "T": 16, "A": 32, "O": 10}, base
    a(f"""
    L_exit:
    s_endpgm
    L_abort:
    """)
    a.force_wait(lg=0)
    a(f"""
    s_mov_b64 exec, -1
    v_mov_b32 v0, {DB_ABORT}
    s_lshl_b32 s5, s{sX}, 8
    s_or_b32 s5, s5, s{sTK}
    s_or_b32 s5, s5, 0x10000
    v_mov_b32 v1, s5
    global_store_dword v0, v1, s[{S_DBG}:{S_DBG + 1}]
    s_endpgm
    """)
    for ch, lab, fn in (("P", "L_role_p", pool.role_p if os.environ.get("PV1") else pool2.role_p2),
                        ("W", "L_role_tw", role_tw2.role_tw2 if os.environ.get("TWV2") else role_t.role_tw),
                        ("O", "L_role_awo", pool.role_awo), ("A", "L_role_aq", pool.role_aq), ("T", "L_role_ta", role_t.role_ta)):
        if ch not in en:
            continue
        a.text(".p2align 6")
        a.label(lab)
        a.reset_window()
        fn(a, f"{lab}_abort", f"{lab}_exit")
        a.label(f"{lab}_abort")
        a("s_branch L_abort") if False else far_jump(a, "L_abort")
        a.label(f"{lab}_exit")
        if ch == "P" and role_t.TWX and "W" in en:
            a(f"s_cmp_lg_u32 s{pool.sLAYS}, 0")
            a("s_cbranch_scc1 L_p_end")
            a(f"s_cmp_ge_u32 s{S_ROLE}, 24")
            a("s_cbranch_scc1 L_p_end")
            a(f"s_add_u32 s{S_ROLE}, s{S_ROLE}, 36")
            a("v_lshrrev_b32 v0, 4, v0")
            a.force_wait(vm=0, lg=0)
            a("s_barrier")
            a("s_branch L_role_tw")
            a.label("L_p_end")
        if WBL2 and ch in "AT":
            lab2 = f"{lab}_nowb"
            a(f"s_and_b32 s6, s{S_ROLE}, {15 if ch == 'A' else 7}")
            a(f"s_add_u32 s6, s6, s{S_WAVE}")
            a("s_cmp_lg_u32 s6, 0")
            a(f"s_cbranch_scc1 {lab2}")
            a.force_wait(vm=0)
            a("buffer_wbl2 sc1")
            a.force_wait(vm=0)
            a.label(lab2)
        trace_end(a)
        a("s_endpgm")
    if "R" in en:
        a.text(".p2align 6")
        a.label("L_role_r")
        a.reset_window()
        a(f"s_mov_b32 s{R.sLAY}, s{sX}")
        a(f"s_mov_b32 s{R.sH}, s{sTK}")
        R.r_setup(a)
        a(f"""
        s_mov_b64 exec, 0xff
        v_lshlrev_b32 v12, 5, v{R.vL4}
        v_and_b32 v12, 128, v12
        v_lshrrev_b32 v13, 1, v{R.vL4}
        v_and_or_b32 v12, v13, 12, v12
        s_mov_b32 s{S_SPIN}, 0
        L_pure:
        global_load_dword v13, v12, {DBG} sc1
        """)
        spin_check(a, "Lr_abort")
        a("s_mov_b32 s6, 0")
        for i in range(8):
            a(f"v_readlane_b32 s7, v13, {i}")
            a(f"s_add_u32 s6, s6, s7")
        a(f"""
        v_readlane_b32 s7, v13, s{R.sLAY}
        s_cmp_ge_u32 s7, 32
        s_cselect_b32 s{R.sFAST}, {0 if os.environ.get('FAKEX') or os.environ.get('SLOW') else 1}, 0
        s_cselect_b32 s6, 256, s6
        s_cmp_lt_u32 s6, 256
        s_cbranch_scc1 L_pure
        s_mov_b64 exec, -1
        s_lshl_b32 s6, s{R.sLAY}, 2
        s_add_u32 s6, s6, {DB_TEAM}
        """)
        dbg_wait(a, "s6", 32, 12, 13, "Lr_abort", "L_team")
        dbg_wait(a, DB_POOL, N_POOL, 12, 13, "Lr_abort", "L_rpool")
        a("s_barrier")
        trace(a, 12, 13, True)
        stamp_max(a, 4, 12, 13, (R.sLAY, 0))
        for fast in (1, 0):
            if fast:
                a(f"s_cmp_eq_u32 s{R.sFAST}, 0")
                a("s_cbranch_scc1 L_slow")
            else:
                a.label("L_slow")
            for w in range(4):
                if w < 3:
                    a(f"s_cmp_lg_u32 s{S_WAVE}, {w}")
                    a(f"s_cbranch_scc1 L_w{w + 1}_{fast}")
                a.restore(([], []))
                R.r_loop(a, w, fast, "Lr_abort", "Lr_exit", stamps)
                if w < 3:
                    a.label(f"L_w{w + 1}_{fast}")
        a.label("Lr_abort")
        far_jump(a, "L_abort")
        a.label("Lr_exit")
        if WBL2:
            a(f"s_add_u32 s6, s{R.sH}, s{S_WAVE}")
            a("s_cmp_lg_u32 s6, 0")
            a(f"s_cbranch_scc1 Lr_nowb")
            a.force_wait(vm=0)
            a("buffer_wbl2 sc1")
            a.force_wait(vm=0)
            a.label("Lr_nowb")
        trace_end(a)
        a("s_endpgm")


def far_jump(a, lab):
    a.force_wait(lg=0)
    a(f"""
    s_mov_b64 exec, -1
    v_mov_b32 v0, {DB_ABORT}
    s_lshl_b32 s5, s3, 8
    s_or_b32 s5, s5, s4
    s_or_b32 s5, s5, 0x10000
    v_mov_b32 v1, s5
    global_store_dword v0, v1, s[{S_DBG}:{S_DBG + 1}]
    s_endpgm
    """)


def build(stamps=0, dbg_roles=None):
    a = Asm()
    hdr = open(os.path.join(os.path.dirname(__file__), "..", KNAME + ".s.ref")).read().split("; Override launch")[0]
    a.text(hdr.rstrip())
    a.text("; @launch grid=(256,1,1) block=(256,1,1) lds=163840")
    a.text('.amdgcn_target "amdgcn-amd-amdhsa--gfx950"\n.text')
    gen_main(a, stamps, dbg_roles)
    a.text('.section .rodata,"a"')
    a.text(kd(MAIN, 512, 256))
    return a.render()


if __name__ == "__main__":
    out = sys.argv[1]
    open(out, "w").write(build(int(os.environ.get("STAMPS", "0")), os.environ.get("ROLES")))
```

```python
from pool import *


def MF16(acc, A, B):
    return f"v_mfma_f32_16x16x16_bf16 {vr(acc, 4)}, {vr(A, 2)}, {vr(B, 2)}, {vr(acc, 4)}"


def role_ta(a, abort, done):
    lane_setup(a, 12)
    vKM, vL8 = 9, 10
    BI, ON, PB, PX, LQ = 236, 16, 20, 24, 28
    SX, SMm = 32, 44
    KMf, VMf, O, OUT = 52, 68, 76, 108
    SET = [("v", 140), ("a", 0)]
    NEG = hex(f32bits(-1e30))
    sQO, sNQ, sRDY, sPN, sKPH, sKMB = sO1, sK3, sPF, sK1, sCL, sCS

    OSC = [" sc1"]
    sPM = sO3 + 0 if False else sSB

    def publish():
        a(f"s_and_b32 s{S_TMP}, s{sPN}, s{sPM}")
        a("s_cselect_b64 exec, 1, 0")
        a(f"buffer_store_dword v{vONE}, v{vZERO}, {WS}, s{sPEND} offen")
        a(f"s_andn2_b32 s{S_TMP}, s{sPN}, s{sPM}")
        a("s_cselect_b64 exec, 1, 0")
        a(f"buffer_store_dword v{vONE}, v{vZERO}, {WS}, s{sPEND} offen sc1")
        a("s_mov_b64 exec, -1")
        a(f"s_add_u32 s{sPEND}, s{sPEND}, s{sPN}")
        a(f"s_mov_b32 s{sPN}, 0")

    def fr(st, m, i):
        k, b = SET[st]
        return f"{k}[{b + 32 * m + 4 * i}:{b + 32 * m + 4 * i + 3}]"

    a(f"""
    s_lshl_b32 s{S_TMP}, s{S_ROLE}, 2
    s_add_u32 s{S_TMP}, s{S_TMP}, s{S_WAVE}
    s_lshr_b32 s{sNL}, s{S_TMP}, 5
    s_and_b32 s{sK2}, s{S_TMP}, 31
    s_mov_b32 s{sNS}, 0
    s_mov_b32 s{sK4}, {hex(f32bits(128 ** -0.5 * 1.4426950408889634))}
    v_lshrrev_b32 v{vT0}, 2, v{vC}
    v_and_b32 v{vT1}, 1, v{vC}
    v_lshl_add_u32 v{vT0}, v{vT0}, 1, v{vT1}
    v_lshlrev_b32 v{vKM}, 8, v{vT0}
    v_lshl_add_u32 v{vKM}, v{vG}, 4, v{vKM}
    v_lshrrev_b32 v{vL8}, 1, v{vL16}
    v_mov_b32 v{vT1}, {NEG}
    v_mov_b32 v{PB + 1}, 0
    v_mov_b32 v{PB + 2}, 0
    s_mul_i32 s{sNFL}, s{sNL}, {NSEG * FL_STRIDE}
    s_lshl_b32 s{S_TMP}, s{sK2}, 9
    s_add_u32 s{sNFL}, s{sNFL}, s{S_TMP}
    s_add_u32 s{sNFL}, s{sNFL}, {WS_FLAGS + FL_QKV}
    s_mul_i32 s{sNQ}, s{sNL}, {3 * QKV_M}
    s_lshl_b32 s{S_TMP}, s{sK2}, 13
    s_add_u32 s{sNQ}, s{sNQ}, s{S_TMP}
    s_add_u32 s{sNQ}, s{sNQ}, {WS_QKV}
    s_lshl_b32 s{sO2}, s{sNL}, 11
    s_add_u32 s{sO2}, s{sO2}, s{sK2}
    s_lshl_b32 s{sO3}, s{sO2}, 13
    s_add_u32 s{sO3}, s{sO3}, {WS_OF}
    s_mul_i32 s{sKMB}, s{sNL}, {KM_D * 32}
    s_add_u32 s{sKMB}, s{sKMB}, s{sK2}
    s_lshl_b32 s{sKMB}, s{sKMB}, 12
    s_add_u32 s{sKMB}, s{sKMB}, {WS_KM}
    s_mul_i32 s{sPEND}, s{sNL}, {NSEG * FL_STRIDE}
    s_lshr_b32 s{S_TMP}, s{sK2}, 2
    s_lshl_b32 s{S_TMP}, s{S_TMP}, 7
    s_add_u32 s{sPEND}, s{sPEND}, s{S_TMP}
    s_lshl_b32 s{S_TMP}, s{S_WAVE}, 2
    s_add_u32 s{sPEND}, s{sPEND}, s{S_TMP}
    s_add_u32 s{sPEND}, s{sPEND}, {WS_FLAGS + FL_OF}
    s_mov_b32 s{SRD_C}, s{SRD_WS}
    s_mov_b32 s{SRD_C + 1}, s{SRD_WS + 1}
    s_mov_b32 s{SRD_C + 2}, 0
    s_mov_b32 s{SRD_C + 3}, 0x00020000
    s_mov_b32 s{sRDY}, 0
    s_mov_b32 s{sPN}, 0
    s_mov_b32 s{sSB}, 0
    s_lshl_b32 s{sO2}, s{sNL}, 2
    s_add_u32 s{sO2}, s{sO2}, {DB_TEAM}
    """)
    for i in range(4):
        a(f"v_mov_b32 v{ON + i}, 0x3f803f80")
        a(f"v_lshl_add_u32 v{vT0}, v{vG}, 2, {i}")
        a(f"v_cmp_le_u32 vcc, v{vT0}, v{vC}")
        a(f"v_cndmask_b32 v{BI + i}, v{vT1}, v{vZERO}, vcc")

    def qkv_ops(st, srd_):
        ops = []
        for m in range(3):
            for i in range(8):
                pre = [f"s_add_u32 s{sQO}, s{sNQ}, {m * QKV_M + i * 1024}"] if i % 4 == 0 else []
                ops.append(pre + [f"buffer_load_dwordx4 {fr(st, m, i)}, v{vL16}, {srd_}, s{sQO} offen offset:{(i % 4) * 1024}{TALD}"])
        return ops

    km_ops = ([f"buffer_load_dwordx4 {vr(KMf + 4 * j, 4)}, v{vKM}, {WS}, s{sO2} offen offset:{j * 64} sc1" for j in range(4)] +
              [f"buffer_load_dwordx2 {vr(VMf + 2 * j, 2)}, v{vL8}, {WS}, s{sO2} offen offset:{2048 + j * 512} sc1" for j in range(4)])

    def km_check():
        heads = [KMf + 4 * j for j in range(4)] + [VMf + 2 * j for j in range(4)]
        a(f"v_xor_b32 v{vT0}, s{sKPH}, v{heads[0]}")
        for r in heads[1:]:
            a(f"v_xor_b32 v{vT1}, s{sKPH}, v{r}")
            a(f"v_or_b32 v{vT0}, v{vT0}, v{vT1}")
        a(f"v_and_b32 v{vT0}, 1, v{vT0}")
        a(f"v_cmp_ne_u32 vcc, 0, v{vT0}")

    MX, T1 = vT0, vT1
    dbg_wait(a, DB_POOL, N_POOL, vT0, vT1, abort, "Lta_ini", 64)
    dbg_wait(a, f"s{sO2}", 32, vT0, vT1, abort, "Lta_team", 64)
    trace(a, vT0, vT1)
    class_pure(a, 3, sF1, vT0, vT1, abort, "Lta_pure")

    def pick(st, here):
        a(f"""
        s_sub_u32 s{S_TMP}, s{sNS}, {TW_S0 - 1}
        s_mul_i32 s{S_TMP + 1}, s{S_TMP}, 43
        s_lshr_b32 s{S_TMP + 1}, s{S_TMP + 1}, 7
        s_mul_i32 s{S_TMP + 1}, s{S_TMP + 1}, 3
        s_cmp_eq_u32 s{S_TMP + 1}, s{S_TMP}
        s_cselect_b32 s{S_TMP + 1}, 1, 0
        s_cmp_lt_u32 s{sNS}, {TW_S0}
        s_cselect_b32 s{S_TMP + 1}, 1, s{S_TMP + 1}
        s_cmp_eq_u32 s{sNL}, 0
        s_cselect_b32 s{S_TMP + 1}, 1, s{S_TMP + 1}
        s_and_b32 s{S_TMP + 1}, s{S_TMP + 1}, s{sF1}
        """)
        if here == "F":
            a(f"s_cbranch_scc0 LtaS{st}_in")
        else:
            a(f"s_cbranch_scc1 LtaF{st}_in")
    for osc, st in (("", 0), ("", 1), (" sc1", 0), (" sc1", 1)):
        pre = "LtaS" if osc else "LtaF"
        nm = f"{pre}{st}"
        a.label(nm)
        a.restore(([], []))
        pick(st, pre[-1])
        a.label(nm + "_in")
        OSC[0] = osc
        a(f"s_and_b32 s{S_TMP}, s{sNS}, {KM_D - 1}")
        a(f"s_mul_i32 s{S_TMP}, s{S_TMP}, {32 * KM_UNIT}")
        a(f"s_add_u32 s{sO2}, s{sKMB}, s{S_TMP}")
        a(f"s_bfe_u32 s{sKPH}, s{sNS}, {0x10000 + KM_D.bit_length() - 1}")
        a(f"s_cmp_eq_u32 s{sRDY}, 1")
        a(f"s_cbranch_scc1 {nm}_have")
        a.force_wait(vm=0)
        publish()
        flag_block(a, nm + "_f", abort)
        seq(a, qkv_ops(st, WS))
        a.label(nm + "_have")
        a.restore(([], []))
        a(f"s_add_u32 s{S_TMP}, s{sNFL}, {FL_STRIDE}")
        a(f"buffer_load_dword v{vFL1}, v{vFLA}, {WS}, s{S_TMP} offen sc1")
        seq(a, km_ops)
        a.force_wait(vm=9)
        publish()
        for j in range(4):
            for (tt, kt, d) in ((0, 0, 0), (1, 0, 4), (1, 1, 8)):
                a(MF(SX + d, fr(st, 1, 2 * j + kt), fr(st, 0, 2 * j + tt), "0" if j == 0 else None))
        a.force_wait(vm=2)
        a(f"""
        v_cmp_eq_u32 vcc, 0, v{vFL1}
        s_add_u32 s{sNQ}, s{sNQ}, {32 * 8192}
        s_add_u32 s{sNFL}, s{sNFL}, {FL_STRIDE}
        s_add_u32 s{sNS}, s{sNS}, 1
        s_cmp_eq_u64 vcc, 0
        s_cselect_b32 s{sRDY}, 1, 0
        s_cmp_lt_u32 s{sNS}, {NSEG}
        s_cselect_b32 s{sRDY}, s{sRDY}, 0
        s_cmp_eq_u32 s{sRDY}, 1
        s_cselect_b32 s{SRD_C + 2}, {WS_BYTES}, 0
        """)
        if QRING:
            a(f"s_and_b32 s{S_TMP}, s{sNS}, {QRING - 1}")
            a(f"s_cselect_b32 s{S_TMP}, 0, {QRING << 18}")
            a(f"s_sub_u32 s{sNQ}, s{sNQ}, s{S_TMP}")
        for d, diag in ((0, 1), (4, 0), (8, 1)):
            for i in range(4):
                r = SX + d + i
                a(f"v_fma_f32 v{r}, v{r}, s{sK4}, v{BI + i}" if diag else f"v_mul_f32 v{r}, s{sK4}, v{r}")
        km_check()
        a(f"s_cbranch_vccz {nm}_r")
        a(f"s_mov_b32 s{S_SPIN}, 0")
        a.label(nm + "_rp")
        a.restore(([], []))
        seq(a, km_ops)
        spin_check(a, abort)
        a.force_wait(vm=0)
        km_check()
        a(f"s_cbranch_vccz {nm}_r")
        a(f"s_sleep {TASLP}")
        a(f"s_branch {nm}_rp")
        a.label(nm + "_r")
        a.restore(([], []))
        a(f"s_and_b32 s{S_TMP}, s{sNS}, 3")
        a(f"s_cmp_eq_u32 s{S_TMP}, 0")
        a(f"s_cselect_b32 s{S_TMP}, s{sNL}, 0")
        a(f"s_cmp_lg_u32 s{S_TMP}, 0")
        a("s_cselect_b64 exec, 1, 0")
        a(f"s_sub_u32 s{S_TMP}, s{sNFL}, {FL_STRIDE}")
        a(f"buffer_store_dword v{vONE}, v{vZERO}, {WS}, s{S_TMP} offen offset:384 sc1")
        a("s_mov_b64 exec, -1")
        nxt = qkv_ops(1 - st, PFS)
        seq(a, nxt.pop(0), nxt.pop(0))
        for j in range(4):
            for tt in range(2):
                a(MF(SMm + 4 * tt, vr(KMf + 4 * j, 4), fr(st, 0, 2 * j + tt), "0" if j == 0 else None))
        for tt in range(2):
            xs = list(range(SX, SX + 4)) if tt == 0 else list(range(SX + 4, SX + 12))
            ms = [SMm + 4 * tt, SMm + 4 * tt + 1]
            vals = xs + ms
            a(f"v_max3_f32 v{MX}, v{xs[0]}, v{xs[1]}, v{xs[2]}")
            a(f"v_max_f32 v{MX}, v{MX}, v{xs[3]}")
            for i in range(4, len(xs), 2):
                a(f"v_max3_f32 v{MX}, v{MX}, v{xs[i]}, v{xs[i + 1]}")
            for r in ms:
                a(f"v_mul_f32 v{r}, s{sK4}, v{r}")
            a(f"v_max3_f32 v{MX}, v{MX}, v{ms[0]}, v{ms[1]}")
            seq(a, f"v_mov_b32 v{T1}, v{MX}", nxt.pop(0), f"v_permlane32_swap_b32 v{MX}, v{T1}", f"v_max_f32 v{MX}, v{MX}, v{T1}",
                f"v_mov_b32 v{T1}, v{MX}", nxt.pop(0), f"v_permlane16_swap_b32 v{MX}, v{T1}", f"v_max_f32 v{MX}, v{MX}, v{T1}",
                [f"v_sub_f32 v{r}, v{r}, v{MX}" for r in vals], [f"v_exp_f32 v{r}, v{r}" for r in vals])
            for i in range(4):
                if 2 * i < len(xs):
                    a(f"v_cvt_pk_bf16_f32 v{PX + i}, v{xs[2 * i]}, v{xs[2 * i + 1]}")
                else:
                    a(f"v_mov_b32 v{PX + i}, 0")
            a(f"v_cvt_pk_bf16_f32 v{PB}, v{ms[0]}, v{ms[1]}")
            a(f"v_cvt_pk_bf16_f32 v{PB + 3}, v{ms[0]}, v{ms[1]}")
            a(MF(LQ, vr(ON, 4), vr(PX, 4), "0"))
            for t in range(8):
                a(MF(O + 4 * t, fr(st, 2, t), vr(PX, 4), "0"))
                if t & 1 and nxt:
                    seq(a, nxt.pop(0))
                if t == 5:
                    a(MF16(LQ, ON, PB))
            for t in range(8):
                a(MF16(O + 4 * t, VMf + 2 * (t >> 1), PB + 2 * (t & 1)))
                if t == 1:
                    a(f"v_rcp_f32 v{T1}, v{LQ}")
                if t >= 3 and t & 1:
                    norm(a, O, OUT, T1, (t - 3) >> 1, tt, sO3, nxt, osc)
            norm(a, O, OUT, T1, 3, tt, sO3, nxt, osc)
        seq(a, nxt)
        a(f"s_add_u32 s{sO3}, s{sO3}, {32 * 8192}")
        if ORING:
            a(f"s_and_b32 s{S_TMP}, s{sNS}, {ORING - 1}")
            a(f"s_cselect_b32 s{S_TMP}, 0, {ORING << 18}")
            a(f"s_cmp_eq_u32 s{sNL}, 0")
            a(f"s_cselect_b32 s{S_TMP}, s{S_TMP}, 0")
            a(f"s_sub_u32 s{sO3}, s{sO3}, s{S_TMP}")
        a(f"s_mov_b32 s{sPN}, {FL_STRIDE}")
        a(f"s_mov_b32 s{sPM}, {0 if osc else -1}")
        trace_at(a, sNS, vT0, vZERO)
        trace(a, vT0, vT1)
        a(f"s_cmp_ge_u32 s{sNS}, {NSEG}")
        a(f"s_cbranch_scc1 {pre}_end")
        if st == 1:
            a(f"s_branch {pre}0")
            a.label(f"{pre}_end")
            a.restore(([], []))
            a.force_wait(vm=0)
            publish()
            a(f"s_branch {done}")


TALD = " nt" if os.environ.get("TANT") else ""
TASLP = int(os.environ.get("TASLP", "2"))


def norm(a, O, OUT, T1, j, tt, sO3, nxt, osc=" sc1"):
    for i in range(4):
        x, y = O + 8 * j + i, O + 8 * j + 4 + i
        a(f"v_mul_f32 v{x}, v{T1}, v{x}")
        a(f"v_mul_f32 v{y}, v{T1}, v{y}")
        a(f"v_cvt_pk_bf16_f32 v{OUT + 16 * tt + 4 * j + i}, v{x}, v{y}")
    if j % 2 == 0:
        a(f"s_add_u32 s{S_TMP}, s{sO3}, {j * 2048}")
    a(f"buffer_store_dwordx4 {vr(OUT + 16 * tt + 4 * j, 4)}, v{vL16}, {WS}, s{S_TMP} offen offset:{(j % 2) * 2048 + tt * 1024}{osc}")
    if nxt:
        seq(a, nxt.pop(0))


TWX = int(os.environ.get("TWX", "1"))
TW_S0 = int(os.environ.get("TW_S0", "34"))
TWPF = int(os.environ.get("TWPF", "1"))
OUTSC = os.environ.get("OUTSC", "")
TWLD = {"": "", "nt": " nt", "sc1": " sc1", "sc0": " sc0"}[os.environ.get("TWLD", "")]


def role_tw(a, abort, done, nt=os.environ.get("NT_W", "")):
    lane_setup(a, 32)
    vA0, vSEL, vRES, vROW, vSTO, vRED, vMBT, vRD2, OUTP = 9, 11, 12, 13, 14, 48, 49, 50, 52
    nst_ = 0
    ACC, RES, SS, RING, ZB = 16, 40, 44, 64, 128
    sSL = sK2
    TWLDW = int(os.environ.get("TWLDW", "1"))
    TWG = int(os.environ.get("TWG", "24"))
    if TWLDW:
        a(f"s_cmp_lt_u32 s{S_ROLE}, {TWG}")
        a("s_cbranch_scc1 Ltw_noord")
        dbg_wait(a, DB_STEP0 if GATE0 & 4 else DB_LOADED, TWLDW, vT0, vT1, abort, "Ltw_ord", 64)
        a.label("Ltw_noord")
    srd(a, SRD_A, KA_BWO, 4096 * 1152)
    srd(a, SRD_B, KA_OUT, 2048 * 1152)
    A_ = f"s[{SRD_A}:{SRD_A + 3}]"
    OUTS = f"s[{SRD_B}:{SRD_B + 3}]"
    a(f"""
    s_mul_i32 s{S_TMP}, s{S_ROLE}, 43
    s_lshr_b32 s{sN0}, s{S_TMP}, 9
    s_mul_i32 s{S_TMP}, s{sN0}, 12
    s_sub_u32 s{sSL}, s{S_ROLE}, s{S_TMP}
    s_add_u32 s{sN1}, s{sN0}, {(TW_S0 - (3 if TWX else 0)) & 0xffffffff}
    s_cmp_eq_u32 s{sN0}, 2
    s_cselect_b32 s{sN1}, 0, s{sN1}
    s_cmp_lt_u32 s{sN0}, 2
    s_cselect_b32 s{sN1}, {f"{NSEG}" if TWX else f"s{sN1}"}, s{sN1}
    s_cselect_b32 s{sN0}, s{sN0}, {NSEG}
    s_mul_i32 s{sK1}, s{sSL}, 96
    s_mul_i32 s{S_TMP}, s{S_WAVE}, {1024 * 1152}
    s_add_u32 s{sK1}, s{sK1}, s{S_TMP}
    v_mul_u32_u24 v{vT0}, {4 * 1152}, v{vG}
    v_lshl_add_u32 v{vA0}, v{vC}, 2, v{vT0}
    v_add_u32 v{vA0 + 1}, {16 * 1152}, v{vA0}
    v_and_b32 v{vT1}, 14, v{vC}
    v_lshl_add_u32 v{vRES}, v{vT1}, 1, v{vT0}
    v_add_u32 v{vRES}, 64, v{vRES}
    v_add_u32 v{vROW}, {16 * 1152}, v{vRES}
    v_and_b32 v{vT0}, 1, v{vC}
    v_mov_b32 v{vSEL}, s{sSELX}
    v_mov_b32 v{vT1}, s{sSELY}
    v_cmp_eq_u32 vcc, 1, v{vT0}
    v_cndmask_b32 v{vSEL}, v{vSEL}, v{vT1}, vcc
    """)
    STG = 16
    n = 128
    D = 14
    for i in range(n + D):
        if i < n:
            kk, d = i >> 2, i & 3
            r = STG + 4 * (i % 28)
            a(f"s_add_u32 s{S_TMP}, s{sK1}, {(32 * kk + d) * 1152}")
            for q, ad in enumerate((vA0, vA0 + 1, vRES, vROW)):
                a(f"buffer_load_dword v{r + q}, v{ad}, {A_}, s{S_TMP} offen {nt}")
        j = i - D
        if j >= 0:
            kk, d = j >> 2, j & 3
            r = STG + 4 * (j % 28)
            a(f"v_perm_b32 v{vT0}, v{r + 1}, v{r}, s{sSELX}")
            a(f"v_perm_b32 v{vT1}, v{r + 1}, v{r}, s{sSELY}")
            a(f"v_perm_b32 v{ZB + 4 * kk + d}, v{r + 3}, v{r + 2}, v{vSEL}")
            a(f"v_accvgpr_write_b32 a{8 * kk + d}, v{vT0}")
            a(f"v_accvgpr_write_b32 a{8 * kk + 4 + d}, v{vT1}")
    a(f"""
    s_and_b32 s{sK3}, s{S_WAVE}, 1
    s_lshl_b32 s{S_TMP}, s{sK3}, 4
    v_add_u32 v{vT0}, s{S_TMP}, v{vC}
    v_lshlrev_b32 v{vSTO}, 4, v{vT0}
    v_mul_u32_u24 v{vROW}, 1152, v{vT0}
    s_mul_i32 s{S_TMP}, s{sSL}, 96
    v_add_u32 v{vROW}, s{S_TMP}, v{vROW}
    s_mul_i32 s{S_TMP}, s{sSL}, 3072
    v_add_u32 v{vRES}, s{S_TMP}, v{vSTO}
    v_lshrrev_b32 v{vSTO}, 1, v{vSTO}
    s_lshl_b32 s{S_TMP}, s{sSL}, 9
    v_add_u32 v{vSTO}, s{S_TMP}, v{vSTO}
    s_lshl_b32 s{sK1}, s{sSL}, 7
    s_lshl_b32 s{S_TMP}, s{S_WAVE}, 2
    s_add_u32 s{sK1}, s{sK1}, s{S_TMP}
    s_add_u32 s{sK1}, s{sK1}, {WS_FLAGS + FL_XA + NSEG * FL_STRIDE}
    s_mul_i32 s{S_TMP}, s{S_WAVE}, 6144
    v_add_u32 v{vRED}, s{S_TMP}, v{vL16}
    v_mov_b32 v{vMBT}, 0x10000
    v_lshrrev_b32 v51, 4, v{vL16}
    v_min_u32 v51, 42, v51
    s_mul_i32 s{S_TMP}, s{sSL}, 43
    v_add_u32 v51, s{S_TMP}, v51
    v_lshlrev_b32 v51, 7, v51
    s_cmp_gt_u32 s{S_WAVE}, 1
    s_cbranch_scc1 Ltw_z
    """)
    for z in (0, 1):
        nm = "LtwZ" if z else "LtwX"
        if z:
            a.label("Ltw_z")
            a.restore(([], []))
            a(f"""
            v_lshrrev_b32 v{vT0}, 1, v{vG}
            v_lshl_add_u32 v{vRES}, v{vT0}, 9, v{vRES}
            v_and_b32 v{vT0}, 1, v{vG}
            v_lshl_add_u32 v{vRES}, v{vT0}, 3, v{vRES}
            v_add_u32 v{vRES}, 2048, v{vRES}
            v_lshl_add_u32 v{vROW}, v{vG}, 3, v{vROW}
            v_add_u32 v{vROW}, 64, v{vROW}
            v_add_u32 v{vSTO}, 256, v{vSTO}
            """)
        else:
            a(f"v_lshl_add_u32 v{vRES}, v{vG}, 9, v{vRES}")
            a(f"v_lshl_add_u32 v{vROW}, v{vG}, 4, v{vROW}")
        st = "dwordx2" if z else "dwordx4"
        nq = 1 if z else 2
        nv = 4 * nq
        R = ACC
        RDL = [ACC + 8, ACC + 12, ACC + 16, ACC + 20, 56, 60, RING + 60, OUTP]
        RD = lambda k: RDL[k]

        def step1():
            return [f"s_cmp_lt_u32 s{sN1}, {TW_S0 - 1}", f"s_cselect_b32 s{sLEFT}, 1, 3"]

        def addr_next():
            first = [f"s_lshl_b32 s{sO1}, s{sNO}, 18"] if not ORING else \
                [f"s_cmp_eq_u32 s{sNL}, 0", f"s_cselect_b32 s{sO1}, {ORING - 1}, -1", f"s_and_b32 s{sO1}, s{sO1}, s{sNO}",
                 f"s_lshl_b32 s{sO1}, s{sO1}, 18"]
            return first + [f"s_add_u32 s{sO1}, s{sO1}, s{sWQ}",
                    f"s_mul_i32 s{sNX}, s{sNL}, {2 * X_BYTES}", f"s_mul_i32 s{S_TMP}, s{sNS}, {X_SEG}",
                    f"s_add_u32 s{sNX}, s{sNX}, s{S_TMP}", f"s_add_u32 s{sNX}, s{sNX}, {WS_X + X_BYTES}"]

        def ld(i, srd_):
            if i % 4 == 0:
                a(f"s_add_u32 s{sO3}, s{sO1}, {i * 1024}")
            a(f"buffer_load_dwordx4 {vr(RING + 4 * (i % 16), 4)}, v{vL16}, {srd_}, s{sO3} offen offset:{(i % 4) * 1024}{TWLD}")

        def line_pf(srd_):
            if TWPF:
                a(f"buffer_load_dword v10, v51, {srd_}, s{sO1} offen")
                a.vmq.pop()

        def first_loads(srd_):
            line_pf(srd_)
            for i in range(15):
                ld(i, srd_)
            a(f"buffer_load_{st} {vr(RES, nv // 2)}, v{vRES}, {srd_}, s{sNX} offen")

        def w0(fn, lab):
            if not z:
                a(f"s_cmp_lg_u32 s{S_WAVE}, 0")
                a(f"s_cbranch_scc1 {lab}")
                sn = a.snap()
                fn()
                a.restore(sn)
                a.label(lab)

        def post():
            a(f"v_mov_b32 v{vT0}, s{sDEC}")
            a(f"ds_write_b32 v{vMBT}, v{vT0}")

        a(f"""
        s_lshl_b32 s{sWQ}, s{S_WAVE}, 16
        s_add_u32 s{sWQ}, s{sWQ}, {WS_OF}
        s_mov_b32 s{sPEND}, 0
        s_mov_b32 s{SRD_C}, s{SRD_WS}
        s_mov_b32 s{SRD_C + 1}, s{SRD_WS + 1}
        s_mov_b32 s{SRD_C + 2}, 0
        s_mov_b32 s{SRD_C + 3}, 0x00020000
        s_mul_i32 s{S_TMP}, s{sK3}, 3072
        v_add_u32 v{vRD2}, s{S_TMP}, v{vL16}
        """)
        a(f"ds_write2_b32 v{vMBT}, v{vZERO}, v{vZERO} offset0:0 offset1:1")
        a.wait(lg=0)
        dbg_wait(a, DB_POOL, N_POOL, vT0, vT1, abort, nm + "_ini")
        a.label(nm + "_idle")
        a.restore(([], []))
        w0(lambda: (poll2(a, nm + "_p", abort, FL_OF, 0), post(), a.wait(lg=0)), nm + "_nw0")
        a("s_barrier")
        a(f"ds_read_b32 v{vT1}, v{vMBT}")
        a(f"v_xor_b32 v{vMBT}, 4, v{vMBT}")
        a(f"v_readfirstlane_b32 s{sDEC}, v{vT1}")
        a(f"s_cmp_eq_u32 s{sDEC}, 0")
        a(f"s_cbranch_scc1 {abort}")
        seq(a, step1(), take(sDEC, 2, f"s{sLEFT}"), addr_next(), f"s_cmp_ge_u32 s{sNS}, {NSEG}", f"s_cbranch_scc1 {abort}")
        first_loads(WS)
        for _ in range(nst_):
            a.vmq.append((frozenset(), "st"))
        a.label(nm + "_item")
        trace(a, vT0, vT1, True) if TRACE == 1 else None
        a(f"s_mov_b32 s{sCL}, s{sNL}")
        a(f"s_mov_b32 s{sCS}, s{sNS}")
        a(f"s_mov_b32 s{sO2}, s{sNX}")
        a.vmq = a.vmq[:16]
        for i in range(64):
            kk, tt = i >> 1, i & 1
            ld((i + 15) % 64, WS if i + 15 < 64 else PFS)
            b = vr(RING + 4 * (i % 16), 4)
            c = "0" if kk == 0 else None
            a(MF(ACC + 12 * tt, ar(8 * kk, 4), b, c))
            a(MF(ACC + 12 * tt + 4, ar(8 * kk + 4, 4), b, c))
            a(MF(ACC + 12 * tt + 8, vr(ZB + 4 * kk, 4), b, c))
            if i == 17:
                a(f"s_cmp_lg_u32 s{sPEND}, 0")
                a("s_cselect_b64 exec, 1, 0")
                a(f"buffer_store_dword v{vONE}, v{vZERO}, {WS}, s{sPEND} offen sc1")
                a("s_mov_b64 exec, -1")
                a(f"s_mov_b32 s{sPEND}, 0")
            if i == 26:
                w0(lambda: (cand_addr(a, FL_OF), sample2(a)), nm + "_nw1")
            if i == 44:
                w0(lambda: (decide(a, 0), post(), a.force_wait(lg=0)), nm + "_nw2")
                a("s_barrier")
                a(f"ds_read_b32 v{vT1}, v{vMBT}")
                a(f"v_xor_b32 v{vMBT}, 4, v{vMBT}")
            if i == 47:
                a(f"v_readfirstlane_b32 s{sDEC}, v{vT1}")
                seq(a, step1(), take(sDEC, 2, f"s{sLEFT}"))
            if i == 48:
                seq(a, f"s_cmp_lt_u32 s{sNS}, {NSEG}", f"s_cselect_b32 s{sDEC}, s{sDEC}, 0")
                seq(a, addr_next(), f"s_cmp_lg_u32 s{sDEC}, 0", f"s_cselect_b32 s{SRD_C + 2}, {WS_BYTES}, 0")
                line_pf(PFS)
        a.nop(6)
        for q in range(6):
            a(f"ds_write_b128 v{vRED}, {vr(ACC + 4 * q, 4)} offset:{q * 1024}")
        a.force_wait(lg=0)
        a("s_barrier")
        for wv in range(4):
            for q in range(nq):
                a(f"ds_read_b128 {vr(RD(wv * nq + q), 4)}, v{vRD2} offset:{wv * 6144 + (2 if z else q) * 1024}")
        a(f"v_xor_b32 v{vRED}, 0x8000, v{vRED}")
        a(f"v_xor_b32 v{vRD2}, 0x8000, v{vRD2}")
        if z:
            for i in range(2):
                a(f"v_lshlrev_b32 v{R + 2 * i}, 16, v{RES + i}")
                a(f"v_and_b32 v{R + 2 * i + 1}, 0xffff0000, v{RES + i}")
        else:
            for i in range(4):
                a(f"v_lshlrev_b32 v{R + i}, 16, v{RES + i}")
                a(f"v_and_b32 v{R + 4 + i}, 0xffff0000, v{RES + i}")
        a(f"buffer_load_{st} {vr(RES, nv // 2)}, v{vRES}, {PFS}, s{sNX} offen")
        for wv in range(4):
            for i in range(nv):
                a(f"v_add_f32 v{R + i}, v{R + i}, v{RD(wv * nq + i // 4) + i % 4}")
        if z:
            a(f"v_cvt_pk_bf16_f32 v{OUTP}, v{R}, v{R + 1}")
            a(f"v_cvt_pk_bf16_f32 v{OUTP + 1}, v{R + 2}, v{R + 3}")
        else:
            for i in range(4):
                a(f"v_cvt_pk_bf16_f32 v{OUTP + i}, v{R + i}, v{R + 4 + i}")
        a(f"s_cmp_eq_u32 s{sCL}, 0")
        a(f"s_cbranch_scc1 {nm}_l0")
        win = list(a.win)
        sn = a.snap()
        a(f"s_mul_i32 s{S_TMP}, s{sCS}, {32 * 1152}")
        a(f"buffer_store_{st} {vr(OUTP, nv // 2)}, v{vROW}, {OUTS}, s{S_TMP} offen{OUTSC}")
        a(f"s_cmp_lg_u32 s{sDEC}, 0")
        a(f"s_cbranch_scc1 {nm}_item")
        a.label(nm + "_chk")
        a(f"s_min_u32 s{S_TMP}, s{sN0}, s{sN1}")
        a(f"s_cmp_lt_u32 s{S_TMP}, {NSEG}")
        a(f"s_cbranch_scc1 {nm}_idle")
        trace(a, vT0, vT1, True) if TRACE != 4 else None
        stamp_max(a, 7, vT0, vT1) if DBGT == 1 else None
        a(f"s_branch {done}")
        a.label(nm + "_l0")
        a.win = win
        a.restore(sn)
        a(f"s_add_u32 s{sO2}, s{sO2}, {X_BYTES}")
        a(f"buffer_store_{st} {vr(OUTP, nv // 2)}, v{vRES}, {WS}, s{sO2} offen sc1")
        a(f"v_add_f32 v{SS}, v{R}, v{R + 1}")
        a(f"v_mul_f32 v{SS + 1}, v{R}, v{R}")
        a(f"v_fmac_f32 v{SS + 1}, v{R + 1}, v{R + 1}")
        for i in range(2, nv):
            a(f"v_add_f32 v{SS}, v{SS}, v{R + i}")
            a(f"v_fmac_f32 v{SS + 1}, v{R + i}, v{R + i}")
        for sw in (32, 16):
            seq(a, f"v_mov_b32 v{SS + 2}, v{SS}", f"v_mov_b32 v{SS + 3}, v{SS + 1}",
                f"v_permlane{sw}_swap_b32 v{SS}, v{SS + 2}", f"v_permlane{sw}_swap_b32 v{SS + 1}, v{SS + 3}",
                f"v_add_f32 v{SS}, v{SS}, v{SS + 2}", f"v_add_f32 v{SS + 1}, v{SS + 1}, v{SS + 3}")
        a(f"""
        s_mul_i32 s{S_TMP}, s{sCS}, {ST_SEG}
        s_add_u32 s{S_TMP}, s{S_TMP}, {WS_ST + 2 * ST_BYTES}
        s_mov_b64 exec, 0xffff
        buffer_store_dwordx2 {vr(SS, 2)}, v{vSTO}, {WS}, s{S_TMP} offen sc1
        s_mov_b64 exec, -1
        s_mul_i32 s{sPEND}, s{sCS}, {FL_STRIDE}
        s_add_u32 s{sPEND}, s{sPEND}, s{sK1}
        """)
        trace_at(a, sCS, vT0, vZERO)
        a(f"s_cmp_lg_u32 s{sDEC}, 0")
        a(f"s_cbranch_scc1 {nm}_item")
        w0(lambda: (cand_addr(a, FL_OF), sample2(a)), nm + "_nw3")
        a.force_wait(vm=0)
        flag_out(a, sPEND)
        a(f"s_mov_b32 s{sPEND}, 0")
        a(f"s_min_u32 s{S_TMP}, s{sN0}, s{sN1}")
        a(f"s_cmp_lt_u32 s{S_TMP}, {NSEG}")
        a(f"s_cbranch_scc0 {nm}_chk")
        if not z:
            a(f"s_cmp_lg_u32 s{S_WAVE}, 0")
            a(f"s_cbranch_scc1 {nm}_nw0")
            decide(a, 0)
            a(f"s_cmp_eq_u32 s{sDEC}, 0")
            a(f"s_cbranch_scc1 {nm}_idle")
            post()
            a.force_wait(lg=0)
        a(f"s_branch {nm}_idle" if z else f"s_branch {nm}_nw0")
```
